```python
import torch

def _softmax(x, axis=-1):
    return torch.softmax(x, dim=axis)
def _gelu(x):
    return torch.nn.functional.gelu(x, approximate="tanh")
def _silu(x):
    return torch.nn.functional.silu(x)
def _sigmoid(x):
    return torch.sigmoid(x)
def _layernorm(x, axis=-1, eps=1e-5):
    m = x.mean(dim=axis, keepdim=True)
    v = x.var(dim=axis, keepdim=True, unbiased=False)
    return (x - m) / torch.sqrt(v + eps)
def _scatter_add(tgt, idx, src, axis=0):
    return tgt.clone().index_add_(axis, idx, src)
def _segment_sum(src, seg, n):
    out = torch.zeros((n,) + src.shape[1:], dtype=src.dtype)
    return out.index_add_(0, seg, src)
def _pad(x, pw):
    flat = tuple(v for pair in reversed(pw) for v in pair)
    return torch.nn.functional.pad(x, flat)

kernel_name = 'gated_mix__mha_block__mha_block__prompt'

def setup_inputs():

    _w = (lambda a: (lambda t: t.to(torch.bfloat16) if t.is_floating_point() else t)(torch.as_tensor(a)))
    def _A_setup():
        B, S, D, H = 1, 2048, 576, 32
        return {
            "x": _w((lambda *s: torch.randn(*s, dtype=torch.bfloat16) * 0.05)(B, S, D)),
            "wqkv": _w((lambda *s: torch.randn(*s, dtype=torch.bfloat16) * 0.8)(D, 3 * D)),
            "wo": _w((lambda *s: torch.randn(*s, dtype=torch.bfloat16) * 0.05)(D, D)),
        }
    _A_in = _A_setup()

    def _B_setup():
        B, S, D, H = 1, 2048, 576, 32
        return {
            "x": _w((lambda *s: torch.randn(*s, dtype=torch.bfloat16) * 0.05)(B, S, D)),
            "wqkv": _w((lambda *s: torch.randn(*s, dtype=torch.bfloat16) * 0.8)(D, 3 * D)),
            "wo": _w((lambda *s: torch.randn(*s, dtype=torch.bfloat16) * 0.05)(D, D)),
        }
    _B_in = _B_setup()

    return {
        "A_x": _A_in["x"],
        "A_wqkv": _A_in["wqkv"],
        "A_wo": _A_in["wo"],
        "B_x": _B_in["x"],
        "B_wqkv": _B_in["wqkv"],
        "B_wo": _B_in["wo"],
        "gate_w": _w((lambda *s: torch.randn(*s, dtype=torch.bfloat16) * 0.05)(576) * 16.0),
    }

def reference(A_x, A_wqkv, A_wo, B_x, B_wqkv, B_wo, gate_w):
    def _A_ref(x, wqkv, wo):
        B, S, D = x.shape
        H = 32
        Dh = D // H
        qkv = (lambda x, *d: x.permute(*d))((x @ wqkv).reshape(B, S, 3, H, Dh), 2, 0, 3, 1, 4)
        q, k, v = qkv[0], qkv[1], qkv[2]
        scores = torch.einsum("bhqd,bhkd->bhqk", q, k) * (Dh ** -0.5)
        p = _softmax(scores, axis=-1)
        o = torch.einsum("bhqk,bhkd->bhqd", p, v)
        return (lambda x, *d: x.permute(*d))(o, 0, 2, 1, 3).reshape(B, S, D) @ wo

    def _B_ref(x, wqkv, wo):
        B, S, D = x.shape
        H = 32
        Dh = D // H
        qkv = (lambda x, *d: x.permute(*d))((x @ wqkv).reshape(B, S, 3, H, Dh), 2, 0, 3, 1, 4)
        q, k, v = qkv[0], qkv[1], qkv[2]
        scores = torch.einsum("bhqd,bhkd->bhqk", q, k) * (Dh ** -0.5)
        p = _softmax(scores, axis=-1)
        o = torch.einsum("bhqk,bhkd->bhqd", p, v)
        return (lambda x, *d: x.permute(*d))(o, 0, 2, 1, 3).reshape(B, S, D) @ wo

    x = A_x
    g = _sigmoid((x * gate_w).sum(-1, keepdims=True))
    a = _A_ref(x, A_wqkv, A_wo)
    b = _B_ref(x, B_wqkv, B_wo)
    return g * a + (1 - g) * b
```

```python
import sys, struct

NAME = "gated_mix__mha_block__mha_block__prompt"
def f32(x): return "0x%08x" % struct.unpack("<I", struct.pack("<f", x))[0]
CSCALE = (18 ** -0.5) * 1.4426950408889634
LOG2E = 1.4426950408889634

BLK = 9472
KVH = 16 * BLK
WS_KV = 0
WS_O = 0x0A00000
WS_WOM = 0x0F00000
WS_WOT = 0x1080000
WS_SIZE = 0x1200000
L_WO = 0
L_W = 6912
L_XR = 90112
L_SCR = 40960
LDS_BYTES = 163840
OOBL = 0x30000

class Asm:
    def __init__(self): self.l = []
    def __call__(self, s):
        for x in s.strip("\n").split("\n"):
            x = x.strip()
            if not x: continue
            self.l.append(x if x.endswith(":") else "    " + x)
    def text(self): return "\n".join(self.l) + "\n"

def vr(a, n): return f"v[{a}:{a+n-1}]"
def ar(a, n): return f"a[{a}:{a+n-1}]"

OPT = dict(mapping="A", force_fb=False)

def srd(a, d, lo, hi, size):
    a(f"""s_mov_b32 s{d}, s{lo}
    s_and_b32 s{d+1}, s{hi}, 0xffff
    s_mov_b32 s{d+2}, {size}
    s_mov_b32 s{d+3}, 0x00020000""")

sX, sW, sWo, sG, sD, sWS = 8, 12, 16, 20, 24, 28
sWv, sBH, sC, sHd, sRot = 32, 33, 34, 35, 36
sT0, sT1, sT2, sT3 = 37, 38, 39, 40
sRef, sCnt, sKo, sXb, sRing, sIt, sKVg, sSpin = 41, 42, 43, 44, 45, 46, 47, 48
sRet = 50
sEx = 52

def kernel_a(a):
    K = "ka"
    a(f"""
    s_cmp_ge_u32 s2, 256
    s_cbranch_scc1 {K}_end
    s_load_dwordx4 s[56:59], s[0:1], 0
    s_load_dwordx2 s[60:61], s[0:1], 16
    s_load_dwordx4 s[64:67], s[0:1], 32
    s_load_dwordx2 s[68:69], s[0:1], 48
    s_load_dwordx4 s[72:75], s[0:1], 64
    v_lshrrev_b32 v1, 6, v0
    v_and_b32 v0, 63, v0
    s_nop 0
    v_readfirstlane_b32 s{sWv}, v1
    """)
    if OPT["mapping"] == "A":
        a(f"""s_lshr_b32 s{sC}, s2, 3
        s_and_b32 s{sC}, s{sC}, 3
        s_lshr_b32 s{sRot}, s2, 5
        s_and_b32 s{sBH}, s2, 7
        s_lshl_b32 s{sBH}, s{sBH}, 3
        s_add_u32 s{sBH}, s{sBH}, s{sRot}
        s_mul_i32 s{sT3}, s{sC}, 6""")
    else:
        a(f"""s_and_b32 s{sC}, s2, 7
        s_lshr_b32 s{sC}, s{sC}, 1
        s_lshr_b32 s{sRot}, s2, 3
        s_and_b32 s{sBH}, s2, 1
        s_lshl_b32 s{sBH}, s{sBH}, 5
        s_add_u32 s{sBH}, s{sBH}, s{sRot}
        s_mul_i32 s{sT0}, s{sRot}, 57
        s_lshr_b32 s{sT0}, s{sT0}, 9
        s_mul_i32 s{sT0}, s{sT0}, 9
        s_sub_u32 s{sRot}, s{sRot}, s{sT0}
        s_and_b32 s{sT3}, s{sBH}, 3
        s_mul_i32 s{sT3}, s{sT3}, 6""")
    a(f"s_and_b32 s{sHd}, s{sBH}, 31")
    vXs = [2, 3, 4, 5]
    vWs, vWos = 6, 7
    vXr = [8, 9, 10, 11]
    vWq, vWv = 12, 13
    vT = [14, 15, 16, 17, 18, 19]
    t0, t1, t2, t3, t4, t5 = vT
    vGa = [20, 22, 24]
    a(f"""v_lshrrev_b32 v{t0}, 3, v0
    v_mul_u32_u24 v{t0}, 1152, v{t0}
    v_and_b32 v{t1}, 7, v0
    v_lshrrev_b32 v{t2}, 4, v0
    v_xor_b32 v{t1}, v{t1}, v{t2}
    v_lshlrev_b32 v{t1}, 4, v{t1}
    v_xor_b32 v{t2}, 64, v{t1}
    v_add_u32 v{vXs[0]}, v{t0}, v{t1}
    v_add_u32 v{vXs[1]}, v{t0}, v{t2}
    v_add_u32 v{vXs[2]}, {16*1152-2048}, v{vXs[0]}
    v_add_u32 v{vXs[3]}, {24*1152-3072}, v{vXs[1]}
    v_add_u32 v{vXs[1]}, {8*1152-1024}, v{vXs[1]}""")
    a(f"""v_mul_u32_u24 v{t0}, 86, v0
    v_lshrrev_b32 v{t0}, 8, v{t0}
    v_mul_u32_u24 v{t1}, 3, v{t0}
    v_sub_u32 v{t1}, v0, v{t1}
    v_lshlrev_b32 v{t1}, 4, v{t1}
    v_mul_u32_u24 v{vWs}, 1152, v{t0}
    v_add_u32 v{vWs}, v{vWs}, v{t1}""")
    a(f"""v_mul_u32_u24 v{t0}, 57, v0
    v_lshrrev_b32 v{t0}, 10, v{t0}
    v_mul_u32_u24 v{t1}, 18, v{t0}
    v_sub_u32 v{t1}, v0, v{t1}
    v_lshlrev_b32 v{t1}, 4, v{t1}
    v_mul_u32_u24 v{vWos}, 1152, v{t0}
    v_add_u32 v{vWos}, v{vWos}, v{t1}""")
    a("s_waitcnt lgkmcnt(0)")
    a(f"""s_cmp_ge_u32 s{sBH}, 32
    s_cselect_b32 s58, s64, s58
    s_cselect_b32 s59, s65, s59
    s_cselect_b32 s60, s66, s60
    s_cselect_b32 s61, s67, s61""")
    srd(a, sW, 58, 59, 576 * 3456)
    srd(a, sX, 56, 57, 2048 * 1152)
    srd(a, sWo, 60, 61, 576 * 1152)
    srd(a, sG, 68, 69, 1152)
    srd(a, sD, 72, 73, 256)
    srd(a, sWS, 74, 75, WS_SIZE)
    a(f"""s_mov_b32 exec_hi, 0x003fffff
    s_mul_i32 s{sT0}, s{sWv}, {144*3456}
    s_mul_i32 s{sT1}, s{sHd}, 36
    s_add_u32 s{sT0}, s{sT0}, s{sT1}
    s_mul_i32 s{sT1}, s{sWv}, {144*144}""")
    for g in range(4):
        a(f"""s_mul_i32 s{sT2}, s{sT3}, {6*3456}
        s_add_u32 s{sRef}, s{sT2}, s{sT0}
        s_mul_i32 s{sT2}, s{sT3}, 864
        s_add_u32 s{sCnt}, s{sT2}, s{sT1}""")
        for i in range(6):
            a(f"""s_add_u32 m0, s{sCnt}, {L_W + i*864}
            s_add_u32 s{sT2}, s{sRef}, {i*6*3456}
            buffer_load_dwordx4 v{vWs}, s[{sW}:{sW+3}], s{sT2} offen lds""")
        if g < 3:
            a(f"""s_add_u32 s{sT3}, s{sT3}, 6
            s_cmp_ge_u32 s{sT3}, 24
            s_cselect_b32 s{sT3}, 0, s{sT3}""")
    a(f"""s_mul_i32 s{sT0}, s{sHd}, {18*1152}
    s_mul_i32 s{sT1}, s{sC}, 288
    s_add_u32 s{sT0}, s{sT0}, s{sT1}
    s_mul_i32 s{sT1}, s{sWv}, {3*1152}
    s_add_u32 s{sT0}, s{sT0}, s{sT1}
    s_mul_i32 s{sT1}, s{sWv}, 864
    s_add_u32 m0, s{sT1}, {L_WO}
    s_add_u32 s{sT2}, s{sT0}, {12*1152}
    buffer_load_dwordx4 v{vWos}, s[{sWo}:{sWo+3}], s{sT0} offen lds
    s_add_u32 m0, s{sT1}, {L_WO + 4*864}
    s_nop 0
    buffer_load_dwordx4 v{vWos}, s[{sWo}:{sWo+3}], s{sT2} offen lds""")
    a(f"""s_mov_b64 exec, -1
    v_lshlrev_b32 v{t0}, 1, v0
    s_mul_i32 s{sT0}, s{sWv}, 288""")
    for i in range(3):
        a(f"buffer_load_ushort v{vGa[i]}, v{t0}, s[{sG}:{sG+3}], s{sT0} offen offset:{96*i}")
    a(f"""s_lshl_b32 s{sXb}, s{sC}, 2
    s_add_u32 s{sXb}, s{sXb}, s{sWv}
    s_mul_i32 s{sXb}, s{sXb}, {128*1152}
    s_lshl_b32 s{sKo}, s{sRot}, 7
    s_lshl_b32 s{sRing}, s{sWv}, 14
    s_add_u32 s{sRing}, s{sRing}, {L_XR}
    s_add_u32 s{sRef}, s{sXb}, s{sKo}""")
    def xdma(slot):
        a(f"""s_add_u32 m0, s{sRing}, {slot*4096}
        s_add_u32 s{sT0}, s{sRef}, {slot*32*1152}""")
        for i in range(4):
            a(f"buffer_load_dwordx4 v{vXs[i]}, s[{sX}:{sX+3}], s{sT0} offen offset:{1024*i} lds")
    for s_ in range(4): xdma(s_)
    def next_ref():
        a(f"""s_add_u32 s{sKo}, s{sKo}, 128
        s_cmp_ge_u32 s{sKo}, 1152
        s_cselect_b32 s{sKo}, 0, s{sKo}
        s_add_u32 s{sRef}, s{sXb}, s{sKo}
        s_sub_u32 s{sCnt}, s{sCnt}, 1
        s_cmp_lt_i32 s{sCnt}, 0
        s_cselect_b32 s{sRef}, 0x40000000, s{sRef}""")
    a(f"""v_and_b32 v{t0}, 31, v0
    v_lshrrev_b32 v{t1}, 5, v0
    v_bfe_u32 v{t2}, v0, 1, 3
    v_xor_b32 v{t2}, v{t2}, v{t1}
    v_lshlrev_b32 v{t2}, 4, v{t2}
    v_lshlrev_b32 v{t3}, 7, v{t0}
    v_add_u32 v{t3}, s{sRing}, v{t3}""")
    for ks in range(4):
        a(f"""v_xor_b32 v{t4}, {32*ks}, v{t2}
        v_add_u32 v{vXr[ks]}, v{t3}, v{t4}""")
    a(f"""v_bfe_u32 v{t2}, v0, 2, 2
    v_lshl_add_u32 v{t2}, v{t1}, 3, v{t2}
    v_mul_u32_u24 v{t2}, 144, v{t2}
    s_mul_i32 s{sT0}, s{sRot}, {64*144}
    v_add_u32 v{t2}, s{sT0}, v{t2}
    v_and_b32 v{t3}, 3, v0
    v_lshlrev_b32 v{t4}, 3, v{t3}
    v_and_b32 v{t5}, 16, v0
    v_cmp_eq_u32 vcc, 0, v{t5}
    v_add_u32 v{t5}, 48, v{t4}
    s_nop 0
    v_cndmask_b32 v{vWq}, v{t4}, v{t5}, vcc
    v_add_u32 v{vWq}, v{vWq}, v{t2}
    s_mov_b32 s{sT0}, {128 | (80 << 8) | (32 << 16) | (40 << 24)}
    v_lshrrev_b32 v{t5}, v{t4}, s{sT0}
    v_and_b32 v{t5}, 0xff, v{t5}
    v_add_u32 v{t4}, 96, v{t4}
    v_cndmask_b32 v{vWv}, v{t5}, v{t4}, vcc
    v_add_u32 v{vWv}, v{vWv}, v{t2}""")
    ACC = 128
    for i in range(128): a(f"v_mov_b32 v{ACC+i}, 0")
    a(f"""v_mov_b32 v{vGa[0]+1}, 0
    v_mov_b32 v{vGa[1]+1}, 0
    v_mov_b32 v{vGa[2]+1}, 0
    v_mul_u32_u24 v{t0}, 144, v0
    s_mul_i32 s{sT0}, s{sWv}, {144*144}
    v_add_u32 v{t0}, s{sT0}, v{t0}
    s_waitcnt vmcnt(16)
    s_mov_b32 exec_hi, 0x0000ffff""")
    for i in range(3):
        a(f"ds_write_b64 v{t0}, {vr(vGa[i],2)} offset:{L_W + 40 + 48*144*i}")
    a(f"""s_mov_b64 exec, -1
    s_waitcnt lgkmcnt(0)
    s_barrier""")
    WF = 32
    XF = [96, 112]
    a(f"""v_bfe_u32 v{t0}, v0, 2, 3
    v_mul_u32_u24 v{t0}, 288, v{t0}
    v_and_b32 v{t1}, 3, v0
    v_lshlrev_b32 v{t1}, 3, v{t1}
    v_and_b32 v{t2}, 32, v0
    v_add3_u32 v{t0}, v{t0}, v{t1}, v{t2}
    s_lshl_b32 s{sT0}, s{sWv}, 6
    v_add_u32 v{t2}, s{sT0}, v{t0}
    ds_read_b64_tr_b16 {vr(64,2)}, v{t2} offset:{L_WO}
    ds_read_b64_tr_b16 {vr(66,2)}, v{t2} offset:{L_WO+2304}
    ds_read_b64_tr_b16 {vr(68,2)}, v{t0} offset:{L_WO+256}
    ds_read_b64_tr_b16 {vr(70,2)}, v{t0} offset:{L_WO+256+2304}""")
    a(f"""v_bfe_u32 v{t0}, v0, 2, 2
    v_mul_u32_u24 v{t0}, 288, v{t0}
    v_lshrrev_b32 v{t2}, 4, v0
    v_lshlrev_b32 v{t2}, 5, v{t2}
    v_add3_u32 v{t0}, v{t0}, v{t1}, v{t2}
    s_lshl_b32 s{sT0}, s{sWv}, 7
    v_add_u32 v{t0}, s{sT0}, v{t0}
    ds_read_b64_tr_b16 {vr(72,2)}, v{t0} offset:{L_WO+16*288-128}""")
    def wfrag(ks):
        for tile, va in ((0, vWq), (1, vWv)):
            for hf in range(2):
                a(f"ds_read_b64_tr_b16 {vr(WF+8*ks+4*tile+2*hf,2)}, v{va} offset:{L_W + (16*ks+4*hf)*144}")
    a(f"""s_lshl_b32 s{sT0}, s{sC}, 6
    s_add_u32 s{sT0}, s{sT0}, s{sBH}
    s_mul_i32 s{sT0}, s{sT0}, 4608
    s_add_u32 s{sT0}, s{sT0}, {WS_WOM}
    s_lshl_b32 s{sT1}, s{sWv}, 10
    s_add_u32 s{sT1}, s{sT1}, s{sT0}
    v_lshlrev_b32 v{t0}, 4, v0
    s_lshl_b32 s{sT2}, s{sC}, 4
    s_lshr_b32 s{sT3}, s{sBH}, 2
    s_add_u32 s{sT2}, s{sT2}, s{sT3}
    s_mul_i32 s{sT2}, s{sT2}, 2304
    s_and_b32 s{sT3}, s{sBH}, 3
    s_lshl_b32 s{sT3}, s{sT3}, 2
    s_add_u32 s{sT2}, s{sT2}, s{sT3}
    s_lshl_b32 s{sT3}, s{sWv}, 10
    s_add_u32 s{sT2}, s{sT2}, s{sT3}
    s_add_u32 s{sT2}, s{sT2}, {WS_WOT - 1024}
    s_waitcnt lgkmcnt(0)
    buffer_store_dwordx4 {vr(64,4)}, v{t0}, s[{sWS}:{sWS+3}], s{sT1} offen sc1""")
    for ks in range(4): wfrag(ks)
    a(f"""s_cmp_eq_u32 s{sWv}, 0
    s_cbranch_scc0 {K}_wo_tail
    s_mov_b32 exec_hi, 0
    buffer_store_dwordx4 {vr(68,4)}, v{t0}, s[{sWS}:{sWS+3}], s{sT0} offen offset:4095 sc1
    s_branch {K}_wo_done
    {K}_wo_tail:
    s_cmp_eq_u32 s{sWv}, 3
    s_cselect_b32 exec_lo, 0xffff, -1
    s_cselect_b32 exec_hi, 0, -1
    buffer_store_dword v72, v{t0}, s[{sWS}:{sWS+3}], s{sT2} offen sc1
    {K}_wo_done:
    s_mov_b64 exec, -1""".replace(f"s{sT0} offen offset:4095 sc1", f"s{sT3} offen sc1").replace(f"s_mov_b32 exec_hi, 0", f"s_mov_b32 exec_hi, 0\n s_add_u32 s{sT3}, s{sT0}, 4096"))
    def xread(buf, slot):
        for ks in range(4):
            a(f"ds_read_b128 {vr(XF[buf]+4*ks,4)}, v{vXr[ks]} offset:{slot*4096}")
    a(f"s_mov_b32 s{sCnt}, 8")
    next_ref()
    a("s_waitcnt vmcnt(12)")
    xread(0, 0)
    a("s_waitcnt lgkmcnt(0)")
    xdma(0)
    a(f"s_mov_b32 s{sIt}, 9")
    a(f"{K}_p1:")
    for tt in range(4):
        cur = XF[tt & 1]
        a("s_waitcnt vmcnt(12)")
        xread((tt + 1) & 1, (tt + 1) & 3)
        if tt == 3:
            a(f"""s_add_u32 s{sRot}, s{sRot}, 1
            s_cmp_ge_u32 s{sRot}, 9
            s_cselect_b32 s{sRot}, 0, s{sRot}
            s_movk_i32 s{sT1}, {64*144}
            s_cselect_b32 s{sT1}, {(-8*64*144) & 0xffffffff}, s{sT1}
            v_add_u32 v{vWq}, s{sT1}, v{vWq}
            v_add_u32 v{vWv}, s{sT1}, v{vWv}""")
            next_ref()
        for ks in range(4):
            if tt == 0:
                a(f"s_waitcnt lgkmcnt({min(15, 16-4*ks)})")
            qa, va = ACC + 32 * tt, ACC + 32 * tt + 16
            a(f"v_mfma_f32_32x32x16_bf16 {vr(qa,16)}, {vr(WF+8*ks,4)}, {vr(cur+4*ks,4)}, {vr(qa,16)}")
            a(f"v_mfma_f32_32x32x16_bf16 {vr(va,16)}, {vr(cur+4*ks,4)}, {vr(WF+8*ks+4,4)}, {vr(va,16)}")
            if tt == 3: wfrag(ks)
            if (ks == 1 and tt != 0) or (ks == 3 and tt == 0):
                a(f"s_waitcnt lgkmcnt({8 if tt == 3 else 0})")
                xdma((tt + 1) & 3)
    a(f"""s_sub_u32 s{sIt}, s{sIt}, 1
    s_cmp_lg_u32 s{sIt}, 0
    s_cbranch_scc1 {K}_p1""")
    QM, QT = 32, 48
    KF, V0, V1, KT = [80, 84], [88, 92], [96, 100], 104
    vKa, vTa, vVa, vInc, vIdx = 2, 3, 4, 5, 6
    vKw, vVw, vMul, vSk, vSq, vGl = 7, 8, 9, 10, 11, 20
    TP = 108
    a(f"""s_mul_i32 s{sT0}, s{sWv}, {BLK}
    s_mul_i32 s{sT1}, s{sWv}, 4864
    s_add_u32 s{sT1}, s{sT1}, {L_SCR}
    v_and_b32 v{t0}, 31, v0
    v_lshrrev_b32 v{t1}, 5, v0
    v_and_b32 v{t2}, 0x33, v0
    v_and_b32 v{t3}, 4, v0
    v_lshlrev_b32 v{t3}, 1, v{t3}
    v_and_b32 v{t4}, 8, v0
    v_lshrrev_b32 v{t4}, 1, v{t4}
    v_or3_b32 v{t2}, v{t2}, v{t3}, v{t4}
    v_lshlrev_b32 v{vKw}, 4, v{t2}
    v_add_u32 v{vKw}, s{sT0}, v{vKw}""")
    a(f"""v_mul_u32_u24 v{t3}, 304, v{t1}
    v_lshl_add_u32 v{t3}, v{t0}, 4, v{t3}
    v_mov_b32 v{vVa}, {OOBL}
    v_cmp_gt_u32 vcc, 19, v{t0}
    v_mov_b32 v{vInc}, 0
    v_mov_b32 v{t4}, {BLK}
    v_cndmask_b32 v{vVa}, v{vVa}, v{t3}, vcc
    v_cndmask_b32 v{vInc}, v{vInc}, v{t4}, vcc
    s_add_u32 s{sT2}, s{sT0}, 4608
    v_add_u32 v{vVw}, s{sT2}, v{vVa}
    v_subrev_u32 v{t3}, 20, v{t0}
    v_lshrrev_b32 v{t4}, 2, v{t3}
    v_and_b32 v{t5}, 1, v{t3}
    v_lshl_add_u32 v{t4}, v{t4}, 1, v{t5}
    v_lshlrev_b32 v{t4}, 5, v{t4}
    v_lshl_add_u32 v{t4}, v{t1}, 4, v{t4}
    v_add_u32 v{t4}, s{sT1}, v{t4}
    s_mov_b32 vcc_lo, {(1<<20)|(1<<21)|(1<<24)|(1<<25)|(1<<28)}
    s_mov_b32 vcc_hi, {(1<<20)|(1<<21)|(1<<24)|(1<<25)|(1<<28)}
    v_mov_b32 v{t5}, {f32(CSCALE)}
    v_cndmask_b32 v{vVw}, v{vVw}, v{t4}, vcc
    s_mov_b32 vcc_lo, {(1<<24)|(1<<25)}
    s_mov_b32 vcc_hi, {(1<<24)|(1<<25)}
    v_mov_b32 v{vMul}, 1.0
    s_nop 0
    v_cndmask_b32 v{vMul}, v{vMul}, v{t5}, vcc""")
    for dst, src in ((vSk, 0), (vSq, t2)):
        a(f"""v_bfe_u32 v{t3}, v{src}, 4, 1
        v_mul_u32_u24 v{t3}, 608, v{t3}
        v_and_b32 v{t4}, 15, v{src}
        v_lshl_add_u32 v{t3}, v{t4}, 1, v{t3}
        v_add_u32 v{dst}, s{sT1}, v{t3}""")
    a(f"""v_mov_b32 v{t5}, v{vSq}
    v_lshl_add_u32 v{vSk}, v{t1}, 5, v{vSk}
    v_lshl_add_u32 v{vSq}, v{t1}, 5, v{vSq}
    v_lshlrev_b32 v{vKa}, 4, v0
    v_lshlrev_b32 v{vTa}, 3, v0
    v_mov_b32 v{vIdx}, 0xdddddddd
    s_mov_b32 s{sT3}, {f32(CSCALE)}
    s_mov_b32 vcc_lo, {1<<18}
    s_mov_b32 vcc_hi, {1<<18}
    v_mov_b32 v{t4}, 0x3f803f80
    s_waitcnt vmcnt(0) lgkmcnt(0)
    s_barrier""")
    for tt in range(4):
        qa, va = ACC + 32 * tt, ACC + 32 * tt + 16
        tp = TP if tt % 2 == 0 else 80
        for i in range(4):
            a(f"v_cvt_pk_bf16_f32 v{tp+i}, v{qa+2*i}, v{qa+2*i+1}")
        a(f"ds_write_b128 v{vKw}, {vr(tp,4)} offset:{tt*1024}")
        for i in range(8):
            a(f"v_mul_f32 v{qa+8+i}, s{sT3}, v{qa+8+i}")
        for i in range(4):
            a(f"v_cvt_pk_bf16_f32 v{QM+4*tt+i}, v{qa+8+2*i}, v{qa+8+2*i+1}")
        for i in range(16):
            a(f"v_mul_f32 v{va+i}, v{vMul}, v{va+i}")
        for i in range(8):
            a(f"v_cvt_pk_bf16_f32 v{tp+4+i}, v{va+2*i}, v{va+2*i+1}")
        for i in range(8):
            a(f"v_cndmask_b32 v{tp+4+i}, v{tp+4+i}, v{t4}, vcc")
        a(f"ds_write_b128 v{vVw}, {vr(tp+4,4)} offset:{tt*1216}")
        a(f"ds_write_b128 v{vVw}, {vr(tp+8,4)} offset:{tt*1216+608}")
    a("s_waitcnt lgkmcnt(0)")
    a(f"""ds_read_u16 v{TP}, v{vSk} offset:0
    ds_read_u16 v{TP+1}, v{vSk} offset:{2*1216}
    ds_read_u16 v{TP+2}, v{vSk} offset:{1216}
    ds_read_u16 v{TP+3}, v{vSk} offset:{3*1216}""")
    for x in range(4):
        a(f"ds_read_u16 v{QT+8*x}, v{vSq} offset:{x*1216+64}")
        a(f"ds_read_u16 v{vGl+x}, v{t5} offset:{x*1216+128}")
    a(f"""v_add_u32 v{t3}, s{sT0}, v{vTa}
    v_add_u32 v{t2}, s{sT0}, v{vKa}""")
    S = [128, 144, 160, 176]
    O = [192, 208, 224, 240]
    for i in range(64): a(f"v_mov_b32 v{O[0]+i}, 0")
    a(f"""s_waitcnt lgkmcnt(0)
    v_lshl_or_b32 v{TP}, v{TP+2}, 16, v{TP}
    v_lshl_or_b32 v{TP+1}, v{TP+3}, 16, v{TP+1}
    ds_write_b64 v{t3}, {vr(TP,2)} offset:4096""")
    for x in range(4):
        q = QT + 8 * x
        a(f"""v_mov_b32 v{q+1}, 0
        v_lshlrev_b32 v{q+2}, 16, v{q}
        v_mov_b32 v{q+3}, 0
        v_mov_b32 v{q+4}, 0
        v_mov_b32 v{q+5}, v{q}
        v_mov_b32 v{q+6}, 0
        v_lshlrev_b32 v{q+7}, 16, v{q}""")
    a("s_waitcnt lgkmcnt(0)")
    for i in range(10):
        a(f"ds_read_b128 {vr(S[0]+4*i,4)}, v{t2} offset:{1024*i}")
    a(f"""s_barrier
    s_mul_i32 s{sKVg}, s{sBH}, {KVH}
    s_lshl_b32 s{sT1}, s{sC}, 2
    s_add_u32 s{sT1}, s{sT1}, s{sWv}
    s_mul_i32 s{sT1}, s{sT1}, {BLK}
    s_add_u32 s{sT1}, s{sT1}, s{sKVg}""")
    for i in range(10):
        if i == 9: a("s_mov_b64 exec, 0xffff")
        if i % 4 == 0 and i: a(f"s_add_u32 s{sT1}, s{sT1}, 4096")
        a(f"s_waitcnt lgkmcnt({9-i})")
        a(f"buffer_store_dwordx4 {vr(S[0]+4*i,4)}, v{vKa}, s[{sWS}:{sWS+3}], s{sT1} offen offset:{1024*(i%4)} sc1")
    a("s_mov_b64 exec, -1")
    def ldK(t, buf): return f"ds_read_b128 {vr(KF[buf],4)}, v{vKa} offset:{(t//4)*BLK + (t%4)*1024}"
    def ldV(t, half, buf): return f"ds_read_b128 {vr((V0,V1)[half][buf],4)}, v{vVa} offset:{(t//4)*BLK + 4608 + (t%4)*1216 + 608*half}"
    def ldT(b): return f"ds_read_b64 {vr(KT,2)}, v{vTa} offset:{b*BLK + 4096}"
    def QKM(t, x, s, c="0"): return f"v_mfma_f32_32x32x16_bf16 {vr(s,16)}, {vr(KF[t%2],4)}, {vr(QM+4*x,4)}, {c}"
    def QKT(t, x, s): return f"v_mfma_f32_32x32x8_bf16 {vr(s,16)}, {vr(KT,2)}, {vr(QT+8*x+2*(t%4),2)}, {vr(s,16)}"
    def PV(half, t, x, s): return f"v_smfmac_f32_32x32x32_bf16 {vr(O[x],16)}, {vr((V0,V1)[half][t%2],4)}, {vr(s+8*half,8)}, v{vIdx}"
    a(ldK(0, 0)); a(ldT(0)); a(ldV(0, 0, 0)); a(ldV(0, 1, 0))
    for i in range(8): a(f"v_mov_b32 v{S[3]+8+i}, 0")
    for i in range(4): a(f"v_mov_b32 v{V1[1]+i}, 0")
    a(f"""s_mov_b32 s{sIt}, 0
    s_waitcnt lgkmcnt(0)""")
    a(QKM(0, 0, S[0])); a(QKT(0, 0, S[0])); a(QKM(0, 1, S[1])); a(QKT(0, 1, S[1]))
    a("s_nop 7")
    a(".p2align 6")
    a(f"{K}_att:")
    pos = (2, 6, 10, 14)
    for u in range(16):
        t, x = divmod(u, 4)
        tn, xn = divmod(u + 2, 4)
        tp_, xp = divmod(u - 1, 4)
        s, sn, sp = S[u % 4], S[(u + 2) % 4], S[(u - 1) % 4]
        ins = {i: [] for i in range(17)}
        ins[pos[0]].append(PV(1, tp_, xp, sp))
        ins[pos[1]].append(QKM(tn, xn, sn))
        ins[pos[2]].append(QKT(tn, xn, sn))
        ins[pos[3]].append(PV(0, t, x, s))
        if x == 0:
            ins[pos[0]].append(ldV(t + 1, 1, (t + 1) % 2))
            ins[pos[1]].append(ldK(t + 1, (t + 1) % 2))
            ins[pos[3]].append(ldV(t + 1, 0, (t + 1) % 2))
        if u == 13: ins[pos[2]].append(ldT(1))
        if x == 2: ins[pos[1]].insert(0, "s_waitcnt lgkmcnt(0)")
        if u == 12:
            ins[0] += [f"s_cmp_lt_u32 s{sIt}, 4", f"s_cbranch_scc1 {K}_hook", f"{K}_hook_ret:"]
        if u == 15:
            ins[pos[0]].append(f"v_add_u32 v{vKa}, {BLK}, v{vKa}")
            ins[pos[1]].append(f"v_add_u32 v{vTa}, {BLK}, v{vTa}")
            ins[pos[2]].append(f"v_add_u32 v{vVa}, v{vInc}, v{vVa}")
            ins[pos[3]] += [f"s_add_u32 s{sIt}, s{sIt}, 1", f"s_cmp_lt_u32 s{sIt}, 16"]
        for i in range(16):
            for m in ins[i]: a(m)
            a(f"v_exp_f32 v{s+i}, v{s+i}")
    a(f"s_cbranch_scc1 {K}_att")
    a("s_nop 1")
    a(PV(1, 3, 3, S[3]))
    for x in range(4):
        g = vGl + x
        a(f"""v_lshlrev_b32 v{g}, 16, v{g}
        v_mul_f32 v{g}, {f32(-LOG2E)}, v{g}""")
    a(f"""s_cmp_ge_u32 s{sBH}, 32
    s_cselect_b32 s{sT0}, 0x80000000, 0""")
    for x in range(4):
        g = vGl + x
        a(f"""v_xor_b32 v{g}, s{sT0}, v{g}
        v_exp_f32 v{g}, v{g}""")
    a("s_nop 0")
    for x in range(4): a(f"v_add_f32 v{vGl+x}, 1.0, v{vGl+x}")
    a(f"""s_lshl_b32 s{sT1}, s{sC}, 2
    s_add_u32 s{sT1}, s{sT1}, s{sWv}
    s_lshl_b32 s{sT1}, s{sT1}, 8
    s_add_u32 s{sT1}, s{sT1}, s{sBH}
    s_mul_i32 s{sT1}, s{sT1}, 1152
    s_add_u32 s{sT1}, s{sT1}, {WS_O}
    v_lshlrev_b32 v{t0}, 4, v0
    v_lshlrev_b32 v{t1}, 2, v0
    s_mov_b32 s{sT2}, {f32(2.0**-40)}
    s_mov_b32 s{sT3}, {f32(2.0**40) if not OPT['force_fb'] else f32(2.0**-39)}
    s_waitcnt lgkmcnt(0)
    s_nop 7""")
    for x in range(4):
        o = O[x]
        a(f"""v_cmp_le_f32 vcc, s{sT2}, v{o+10}
        v_cmp_ge_f32 s[{sEx}:{sEx+1}], s{sT3}, v{o+10}
        s_nop 1
        s_and_b32 vcc_lo, vcc_lo, s{sEx}
        s_cmp_eq_u32 vcc_lo, -1
        s_cbranch_scc0 {K}_fb{x}
        {K}_fbret{x}:
        v_mov_b32 v{t2}, v{o+10}
        s_nop 1
        v_permlane32_swap_b32 v{o+10}, v{t2}
        s_nop 1
        v_mul_f32 v{t2}, v{o+10}, v{vGl+x}
        v_rcp_f32 v{t2}, v{t2}
        s_nop 0""")
        for i in range(10): a(f"v_mul_f32 v{o+i}, v{t2}, v{o+i}")
        tp = TP + 6 * (x % 2)
        for i in range(5): a(f"v_cvt_pk_bf16_f32 v{tp+i}, v{o+2*i}, v{o+2*i+1}")
        a(f"""buffer_store_dwordx4 {vr(tp,4)}, v{t0}, s[{sWS}:{sWS+3}], s{sT1} offen
        s_mov_b32 exec_hi, 0
        buffer_store_dword v{tp+4}, v{t1}, s[{sWS}:{sWS+3}], s{sT1} offen offset:1024
        s_mov_b64 exec, -1
        s_add_u32 s{sT1}, s{sT1}, {64*1152}""")
    a(f"{K}_end:")
    a("s_endpgm")
    vP, vPa = 24, 25
    a(f"""{K}_hook:
    s_cmp_eq_u32 s{sIt}, 0
    s_cbranch_scc1 {K}_h0
    s_cmp_eq_u32 s{sIt}, 1
    s_cbranch_scc1 {K}_h1
    s_cmp_eq_u32 s{sIt}, 2
    s_cbranch_scc1 {K}_h2
    s_waitcnt vmcnt(0)
    s_barrier
    s_branch {K}_hook_ret
    {K}_h0:
    s_waitcnt vmcnt(0)
    s_barrier
    s_lshl_b32 s{sT0}, s{sBH}, 2
    v_mov_b32 v{vPa}, s{sT0}
    s_cmp_eq_u32 s{sWv}, 0
    s_cbranch_scc0 {K}_hook_ret
    v_mov_b32 v{vP}, 1
    s_mov_b64 exec, 1
    buffer_atomic_add v{vP}, v{vPa}, s[{sD}:{sD+3}], 0 offen
    s_mov_b64 exec, -1
    s_branch {K}_hook_ret
    {K}_h1:
    buffer_load_dword v{vP}, v{vPa}, s[{sD}:{sD+3}], 0 offen sc1
    s_branch {K}_hook_ret
    {K}_h2:
    s_mov_b32 s{sSpin}, 200000
    {K}_h2l:
    s_waitcnt vmcnt(0)
    v_readfirstlane_b32 s{sT0}, v{vP}
    s_and_b32 s{sT0}, s{sT0}, 0xff
    s_cmp_ge_u32 s{sT0}, 4
    s_cbranch_scc1 {K}_h2go
    s_sub_u32 s{sSpin}, s{sSpin}, 1
    s_cmp_eq_u32 s{sSpin}, 0
    s_cbranch_scc1 {K}_h2go
    s_sleep 2
    buffer_load_dword v{vP}, v{vPa}, s[{sD}:{sD+3}], 0 offen sc1
    s_branch {K}_h2l
    {K}_h2go:
    buffer_inv sc1
    v_lshlrev_b32 v{vP}, 4, v0
    s_add_u32 s{sT0}, s{sC}, 1
    s_lshl_b32 s{sT1}, s{sWv}, 10""")
    for j in range(3):
        a(f"""s_and_b32 s{sT0}, s{sT0}, 3
        s_mul_i32 s{sT2}, s{sT0}, {4*BLK}
        s_add_u32 s{sT2}, s{sT2}, s{sKVg}
        s_add_u32 s{sT2}, s{sT2}, s{sT1}
        s_add_u32 s{sT0}, s{sT0}, 1""")
        for i in range(10):
            if i == 9:
                a(f"""s_cmp_eq_u32 s{sWv}, 0
                s_cbranch_scc0 {K}_h2s{j}""")
            a(f"""s_add_u32 m0, s{sT1}, {4*BLK*(j+1) + 4096*i}
            s_add_u32 s{sT3}, s{sT2}, {4096*i}
            buffer_load_dwordx4 v{vP}, s[{sWS}:{sWS+3}], s{sT3} offen lds""")
        a(f"{K}_h2s{j}:")
    a(f"s_branch {K}_hook_ret")
    FQ = S[3]
    for x in range(4):
        a(f"{K}_fb{x}:")
        for i in range(4): a(f"v_mov_b32 v{FQ+i}, v{QM+4*x+i}")
        for i in range(8): a(f"v_mov_b32 v{FQ+4+i}, v{QT+8*x+i}")
        a(f"s_call_b64 s[{sRet}:{sRet+1}], {K}_slow")
        for i in range(16): a(f"v_mov_b32 v{O[x]+i}, v{S[2]+i}")
        a(f"s_branch {K}_fbret{x}")
    a(f"{K}_slow:")
    va, vb, vc, vm = 26, 27, 28, 29
    def slow_addr():
        a(f"""v_lshlrev_b32 v{va}, 4, v0
        v_lshlrev_b32 v{vb}, 3, v0
        v_lshlrev_b32 v{vc}, 4, v{vInc}
        v_sub_u32 v{vc}, v{vVa}, v{vc}
        s_mov_b32 s{sIt}, 16""")
    def slow_qk(t, c):
        a(f"""v_mfma_f32_32x32x16_bf16 {vr(S[0],16)}, {vr(KF[0],4)}, {vr(FQ,4)}, {c}
        v_mfma_f32_32x32x8_bf16 {vr(S[0],16)}, {vr(KT,2)}, {vr(FQ+4+2*t,2)}, {vr(S[0],16)}
        s_nop 15""")
    def slow_next(lbl):
        a(f"""v_add_u32 v{va}, {BLK}, v{va}
        v_add_u32 v{vb}, {BLK}, v{vb}
        v_add_u32 v{vc}, v{vInc}, v{vc}
        s_sub_u32 s{sIt}, s{sIt}, 1
        s_cmp_lg_u32 s{sIt}, 0
        s_cbranch_scc1 {lbl}""")
    slow_addr()
    a(f"v_mov_b32 v{vm}, 0xff800000")
    a(f"{K}_sl1:")
    a(f"ds_read_b64 {vr(KT,2)}, v{vb} offset:4096")
    for t in range(4):
        a(f"""ds_read_b128 {vr(KF[0],4)}, v{va} offset:{1024*t}
        s_waitcnt lgkmcnt(0)""")
        slow_qk(t, "0")
        for i in range(8): a(f"v_max3_f32 v{vm}, v{S[0]+2*i}, v{S[0]+2*i+1}, v{vm}")
    slow_next(f"{K}_sl1")
    a(f"""v_mov_b32 v{S[0]}, v{vm}
    s_nop 1
    v_permlane32_swap_b32 v{vm}, v{S[0]}
    s_nop 1
    v_max_f32 v{vm}, v{vm}, v{S[0]}""")
    for i in range(16):
        a(f"v_sub_f32 v{S[1]+i}, 0, v{vm}")
        a(f"v_mov_b32 v{S[2]+i}, 0")
    slow_addr()
    a(f"{K}_sl2:")
    a(f"ds_read_b64 {vr(KT,2)}, v{vb} offset:4096")
    for t in range(4):
        a(f"""ds_read_b128 {vr(KF[0],4)}, v{va} offset:{1024*t}
        ds_read_b128 {vr(V0[0],4)}, v{vc} offset:{4608+1216*t}
        ds_read_b128 {vr(V1[0],4)}, v{vc} offset:{4608+1216*t+608}
        s_waitcnt lgkmcnt(0)""")
        slow_qk(t, vr(S[1], 16))
        for i in range(16): a(f"v_exp_f32 v{S[0]+i}, v{S[0]+i}")
        a(f"""s_nop 3
        v_smfmac_f32_32x32x32_bf16 {vr(S[2],16)}, {vr(V0[0],4)}, {vr(S[0],8)}, v{vIdx}
        v_smfmac_f32_32x32x32_bf16 {vr(S[2],16)}, {vr(V1[0],4)}, {vr(S[0]+8,8)}, v{vIdx}
        s_nop 7""")
    slow_next(f"{K}_sl2")
    a(f"""s_nop 15
    s_setpc_b64 s[{sRet}:{sRet+1}]""")

def kernel_b(a):
    K = "kb"
    sO = 8
    sT, sCq = 33, 34
    a(f"""
    s_cmp_ge_u32 s2, 256
    s_cbranch_scc1 {K}_end
    s_load_dwordx2 s[56:57], s[0:1], 56
    s_load_dwordx2 s[74:75], s[0:1], 72
    v_lshrrev_b32 v1, 6, v0
    v_mov_b32 v9, v0
    v_and_b32 v0, 63, v0
    v_readfirstlane_b32 s{sWv}, v1
    s_and_b32 s{sT}, s2, 7
    s_lshr_b32 s{sT0}, s2, 5
    s_lshl_b32 s{sT0}, s{sT0}, 3
    s_add_u32 s{sT}, s{sT}, s{sT0}
    s_lshr_b32 s{sCq}, s2, 3
    s_and_b32 s{sCq}, s{sCq}, 3""")
    vOm, vOt, vWm, vWt = 2, 3, 4, 5
    a(f"""v_and_b32 v6, 15, v0
    v_lshrrev_b32 v7, 5, v0
    v_bfe_u32 v8, v0, 4, 1
    v_mul_u32_u24 v{vOm}, 1152, v7
    v_lshl_add_u32 v{vOm}, v8, 9, v{vOm}
    v_lshl_add_u32 v{vOm}, v6, 4, v{vOm}
    v_mul_u32_u24 v{vWm}, 4608, v7
    v_lshl_add_u32 v{vWm}, v8, 8, v{vWm}
    v_lshl_add_u32 v{vWm}, v6, 4, v{vWm}
    v_lshrrev_b32 v7, 4, v0
    v_mul_u32_u24 v{vOt}, 4608, v7
    v_lshl_add_u32 v{vOt}, v6, 2, v{vOt}
    v_mul_u32_u24 v{vWt}, 2304, v7
    v_lshl_add_u32 v{vWt}, v6, 4, v{vWt}
    s_lshl_b32 s{sT0}, s{sT}, 6
    s_lshl_b32 s{sT3}, s{sWv}, 4
    s_add_u32 s{sT0}, s{sT0}, s{sT3}
    s_mul_i32 s{sT0}, s{sT0}, 1152
    s_add_u32 s{sT0}, s{sT0}, {WS_O}
    s_lshl_b32 s{sT1}, s{sCq}, 6
    s_add_u32 s{sT1}, s{sT1}, s{sT3}
    s_mul_i32 s{sT1}, s{sT1}, 4608
    s_add_u32 s{sT1}, s{sT1}, {WS_WOM}
    s_lshl_b32 s{sT2}, s{sCq}, 2
    s_add_u32 s{sT2}, s{sT2}, s{sWv}
    s_mul_i32 s{sT2}, s{sT2}, {4*2304}
    s_add_u32 s{sT2}, s{sT2}, {WS_WOT}
    s_waitcnt lgkmcnt(0)""")
    srd(a, sWS, 74, 75, WS_SIZE)
    srd(a, sO, 56, 57, 2048 * 1152)
    OF = 16
    AC = 88
    WV = 160
    def wreg(s, ct):
        return ar(36 * s + 4 * ct, 4) if s < 7 else vr(WV + 36 * (s - 7) + 4 * ct, 4)
    def loads(s):
        n = 0
        if s < 8:
            a(f"s_add_u32 s{sT3}, s{sT0}, {2*s*1152}")
            for th in range(2):
                a(f"buffer_load_dwordx4 {vr(OF+8*s+4*th,4)}, v{vOm}, s[{sWS}:{sWS+3}], s{sT3} offen offset:{256*th}"); n += 1
            a(f"s_add_u32 s{sT3}, s{sT1}, {2*s*4608}")
            for ct in range(8):
                a(f"buffer_load_dwordx4 {wreg(s,ct)}, v{vWm}, s[{sWS}:{sWS+3}], s{sT3} offen offset:{512*ct}"); n += 1
            a(f"s_add_u32 s{sT3}, s{sT3}, 4096")
            a(f"buffer_load_dwordx4 {wreg(s,8)}, v{vWm}, s[{sWS}:{sWS+3}], s{sT3} offen"); n += 1
        else:
            for i in range(4):
                a(f"s_add_u32 s{sT3}, s{sT0}, {i*1152}")
                for th in range(2):
                    a(f"buffer_load_dword v{OF+64+4*th+i}, v{vOt}, s[{sWS}:{sWS+3}], s{sT3} offen offset:{1024+64*th}"); n += 1
            for ct in range(9):
                a(f"buffer_load_dwordx4 {wreg(8,ct)}, v{vWt}, s[{sWS}:{sWS+3}], s{sT2} offen offset:{256*ct}"); n += 1
        return n
    cnt = [11] * 8 + [17]
    AHEAD = 4
    for s in range(AHEAD): loads(s)
    for i in range(72): a(f"v_mov_b32 v{AC+i}, 0")
    for s in range(9):
        if s + AHEAD < 9: loads(s + AHEAD)
        later = sum(cnt[s + 1:min(9, s + AHEAD + 1)])
        a(f"s_waitcnt vmcnt({later})")
        for ct in range(9):
            for th in range(2):
                d = AC + 8 * ct + 4 * th
                a(f"v_mfma_f32_16x16x32_bf16 {vr(d,4)}, {wreg(s,ct)}, {vr(OF+8*s+4*th,4)}, {vr(d,4)}")
    RS = 592
    a(f"""v_mul_u32_u24 v10, {RS}, v6
    v_lshl_add_u32 v10, v7, 4, v10
    s_mul_i32 s{sT3}, s{sWv}, {32*RS}
    v_add_u32 v10, s{sT3}, v10
    s_nop 7""")
    for ct in range(9):
        for th in range(2):
            a(f"ds_write_b128 v10, {vr(AC+8*ct+4*th,4)} offset:{16*th*RS + 64*ct}")
    a(f"""s_mul_i32 s{sT0}, s{sT}, {32*1152}
    s_mul_i32 s{sT1}, s{sCq}, 288
    s_add_u32 s{sT0}, s{sT0}, s{sT1}""")
    for r in range(3):
        a(f"""v_add_u32 v11, {256*r}, v9
        v_mul_u32_u24 v12, 3641, v11
        v_lshrrev_b32 v12, 16, v12
        v_mul_u32_u24 v13, 18, v12
        v_sub_u32 v13, v11, v13
        v_mul_u32_u24 v{16+r}, {RS}, v12
        v_lshl_add_u32 v{16+r}, v13, 5, v{16+r}
        v_mul_u32_u24 v{20+r}, 1152, v12
        v_lshl_add_u32 v{20+r}, v13, 4, v{20+r}""")
    a("""s_waitcnt lgkmcnt(0)
    s_barrier""")
    for r in range(3):
        if r == 2:
            a(f"""s_cmp_eq_u32 s{sWv}, 0
            s_cbranch_scc0 {K}_end""")
        b = 24 + 32 * r
        for w in range(4):
            for hf in range(2):
                a(f"ds_read_b128 {vr(b+8*w+4*hf,4)}, v{16+r} offset:{w*32*RS + 16*hf}")
        a("s_waitcnt lgkmcnt(0)")
        for i in range(8):
            a(f"v_add_f32 v{b+i}, v{b+i}, v{b+8+i}")
            a(f"v_add_f32 v{b+16+i}, v{b+16+i}, v{b+24+i}")
        for i in range(8): a(f"v_add_f32 v{b+i}, v{b+i}, v{b+16+i}")
        for i in range(4): a(f"v_cvt_pk_bf16_f32 v{b+8+i}, v{b+2*i}, v{b+2*i+1}")
        a(f"buffer_store_dwordx4 {vr(b+8,4)}, v{20+r}, s[{sO}:{sO+3}], s{sT0} offen")
    a(f"{K}_end:")
    a("s_endpgm")

def desc(name, nfv, acc):
    return f""".amdhsa_kernel {name}
  .amdhsa_next_free_vgpr {nfv}
  .amdhsa_next_free_sgpr 96
  .amdhsa_accum_offset {acc}
  .amdhsa_group_segment_fixed_size 0
  .amdhsa_kernarg_size 80
  .amdhsa_user_sgpr_count 2
  .amdhsa_user_sgpr_kernarg_segment_ptr 1
  .amdhsa_system_sgpr_workgroup_id_x 1
.end_amdhsa_kernel
"""

def main(out):
    ka, kb = f"{NAME}_kernel", "outproj_kernel"
    t = f"""; gated mix of two MHA blocks: fused QKV projection + attention, then output projection (generated by gen/gen.py)
; @launch kernel={ka} grid=(256,1,1) block=(256,1,1) lds={LDS_BYTES}
; @launch kernel={kb} grid=(256,1,1) block=(256,1,1) lds={4*32*592}
.amdgcn_target "amdgcn-amd-amdhsa--gfx950"
.text
"""
    for nm, fn in ((ka, kernel_a), (kb, kernel_b)):
        a = Asm(); fn(a)
        t += f".globl {nm}\n.p2align 8\n.type {nm},@function\n{nm}:\n" + a.text()
    t += '.section .rodata,"a"\n.p2align 6\n' + desc(ka, 256, 256) + ".p2align 6\n" + desc(kb, 512, 256)
    open(out, "w").write(t)

if __name__ == "__main__":
    for kv in sys.argv[2:]:
        k, v = kv.split("=")
        OPT[k] = {"True": True, "False": False}.get(v, v)
    main(sys.argv[1])
```

```python
import sys, struct

NAME = "gated_mix__mha_block__mha_block__prompt"
def f32(x): return "0x%08x" % struct.unpack("<I", struct.pack("<f", x))[0]
CSCALE = (18 ** -0.5) * 1.4426950408889634
LOG2E = 1.4426950408889634

BLK = 9472
KVH = 16 * BLK
WS_KV = 0
WS_O = 0x0A00000
WS_WOM = 0x0F00000
WS_WOT = 0x1080000
WS_SIZE = 0x1200000
L_WO = 0
L_W = 6912
L_XR = 90112
L_SCR = 40960
LDS_BYTES = 163840
OOBL = 0x30000

class Asm:
    def __init__(self): self.l = []
    def __call__(self, s):
        for x in s.strip("\n").split("\n"):
            x = x.strip()
            if not x: continue
            self.l.append(x if x.endswith(":") else "    " + x)
    def text(self): return "\n".join(self.l) + "\n"

def vr(a, n): return f"v[{a}:{a+n-1}]"
def ar(a, n): return f"a[{a}:{a+n-1}]"

OPT = dict(mapping="A", force_fb=False, stamp=False)
WS_STAMP = 0x1100000
def stamp(a, idx, vreg=30):
    if not OPT["stamp"]: return
    a(f"""s_memrealtime s[80:81]
    s_memtime s[82:83]
    s_waitcnt lgkmcnt(0)
    v_writelane_b32 v{vreg}, s80, {idx}
    v_writelane_b32 v{vreg+1}, s82, {idx}""")
def stamp_out(a, kern, vreg=30, vt=1):
    if not OPT["stamp"]: return
    a(f"""s_lshl_b32 s80, s2, 2
    s_add_u32 s80, s80, s{sWv}
    s_lshl_b32 s80, s80, 8
    s_add_u32 s80, s80, {WS_STAMP + kern * 0x40000}
    v_lshlrev_b32 v{vt}, 3, v0
    s_mov_b32 exec_hi, 0
    buffer_store_dwordx2 v[{vreg}:{vreg+1}], v{vt}, s[{sWS}:{sWS+3}], s80 offen
    s_mov_b64 exec, -1""")

def srd(a, d, lo, hi, size):
    a(f"""s_mov_b32 s{d}, s{lo}
    s_and_b32 s{d+1}, s{hi}, 0xffff
    s_mov_b32 s{d+2}, {size}
    s_mov_b32 s{d+3}, 0x00020000""")

sX, sW, sWo, sG, sD, sWS = 8, 12, 16, 20, 24, 28
sWv, sBH, sC, sHd, sRot = 32, 33, 34, 35, 36
sT0, sT1, sT2, sT3 = 37, 38, 39, 40
sRef, sCnt, sKo, sXb, sRing, sIt, sKVg, sSpin = 41, 42, 43, 44, 45, 46, 47, 48
sRet = 50
sEx = 52

def kernel_a(a):
    K = "ka"
    a(f"""
    s_cmp_ge_u32 s2, 256
    s_cbranch_scc1 {K}_end
    s_load_dwordx4 s[56:59], s[0:1], 0
    s_load_dwordx2 s[60:61], s[0:1], 16
    s_load_dwordx4 s[64:67], s[0:1], 32
    s_load_dwordx2 s[68:69], s[0:1], 48
    s_load_dwordx4 s[72:75], s[0:1], 64
    v_lshrrev_b32 v1, 6, v0
    v_and_b32 v0, 63, v0
    s_nop 0
    v_readfirstlane_b32 s{sWv}, v1
    """)
    stamp(a, 0)
    if OPT["mapping"] == "A":
        a(f"""s_lshr_b32 s{sC}, s2, 3
        s_and_b32 s{sC}, s{sC}, 3
        s_lshr_b32 s{sRot}, s2, 5
        s_and_b32 s{sBH}, s2, 7
        s_lshl_b32 s{sBH}, s{sBH}, 3
        s_add_u32 s{sBH}, s{sBH}, s{sRot}
        s_mul_i32 s{sT3}, s{sC}, 6""")
    else:
        a(f"""s_and_b32 s{sC}, s2, 7
        s_lshr_b32 s{sC}, s{sC}, 1
        s_lshr_b32 s{sRot}, s2, 3
        s_and_b32 s{sBH}, s2, 1
        s_lshl_b32 s{sBH}, s{sBH}, 5
        s_add_u32 s{sBH}, s{sBH}, s{sRot}
        s_mul_i32 s{sT0}, s{sRot}, 57
        s_lshr_b32 s{sT0}, s{sT0}, 9
        s_mul_i32 s{sT0}, s{sT0}, 9
        s_sub_u32 s{sRot}, s{sRot}, s{sT0}
        s_and_b32 s{sT3}, s{sBH}, 3
        s_mul_i32 s{sT3}, s{sT3}, 6""")
    a(f"s_and_b32 s{sHd}, s{sBH}, 31")
    vXs = [2, 3, 4, 5]
    vWs, vWos = 6, 7
    vXr = [8, 9, 10, 11]
    vWq, vWv = 12, 13
    vT = [14, 15, 16, 17, 18, 19]
    t0, t1, t2, t3, t4, t5 = vT
    vGa = [20, 22, 24]
    a(f"""v_lshrrev_b32 v{t0}, 3, v0
    v_mul_u32_u24 v{t0}, 1152, v{t0}
    v_and_b32 v{t1}, 7, v0
    v_lshrrev_b32 v{t2}, 4, v0
    v_xor_b32 v{t1}, v{t1}, v{t2}
    v_lshlrev_b32 v{t1}, 4, v{t1}
    v_xor_b32 v{t2}, 64, v{t1}
    v_add_u32 v{vXs[0]}, v{t0}, v{t1}
    v_add_u32 v{vXs[1]}, v{t0}, v{t2}
    v_add_u32 v{vXs[2]}, {16*1152-2048}, v{vXs[0]}
    v_add_u32 v{vXs[3]}, {24*1152-3072}, v{vXs[1]}
    v_add_u32 v{vXs[1]}, {8*1152-1024}, v{vXs[1]}""")
    a(f"""v_mul_u32_u24 v{t0}, 86, v0
    v_lshrrev_b32 v{t0}, 8, v{t0}
    v_mul_u32_u24 v{t1}, 3, v{t0}
    v_sub_u32 v{t1}, v0, v{t1}
    v_lshlrev_b32 v{t1}, 4, v{t1}
    v_mul_u32_u24 v{vWs}, 1152, v{t0}
    v_add_u32 v{vWs}, v{vWs}, v{t1}""")
    a(f"""v_mul_u32_u24 v{t0}, 57, v0
    v_lshrrev_b32 v{t0}, 10, v{t0}
    v_mul_u32_u24 v{t1}, 18, v{t0}
    v_sub_u32 v{t1}, v0, v{t1}
    v_lshlrev_b32 v{t1}, 4, v{t1}
    v_mul_u32_u24 v{vWos}, 1152, v{t0}
    v_add_u32 v{vWos}, v{vWos}, v{t1}""")
    a("s_waitcnt lgkmcnt(0)")
    a(f"""s_cmp_ge_u32 s{sBH}, 32
    s_cselect_b32 s58, s64, s58
    s_cselect_b32 s59, s65, s59
    s_cselect_b32 s60, s66, s60
    s_cselect_b32 s61, s67, s61""")
    srd(a, sW, 58, 59, 576 * 3456)
    srd(a, sX, 56, 57, 2048 * 1152)
    srd(a, sWo, 60, 61, 576 * 1152)
    srd(a, sG, 68, 69, 1152)
    srd(a, sD, 72, 73, 256)
    srd(a, sWS, 74, 75, WS_SIZE)
    a(f"""s_mov_b32 exec_hi, 0x003fffff
    s_mul_i32 s{sT0}, s{sWv}, {144*3456}
    s_mul_i32 s{sT1}, s{sHd}, 36
    s_add_u32 s{sT0}, s{sT0}, s{sT1}
    s_mul_i32 s{sT1}, s{sWv}, {144*144}""")
    for g in range(4):
        a(f"""s_mul_i32 s{sT2}, s{sT3}, {6*3456}
        s_add_u32 s{sRef}, s{sT2}, s{sT0}
        s_mul_i32 s{sT2}, s{sT3}, 864
        s_add_u32 s{sCnt}, s{sT2}, s{sT1}""")
        for i in range(6):
            a(f"""s_add_u32 m0, s{sCnt}, {L_W + i*864}
            s_add_u32 s{sT2}, s{sRef}, {i*6*3456}
            buffer_load_dwordx4 v{vWs}, s[{sW}:{sW+3}], s{sT2} offen lds""")
        if g < 3:
            a(f"""s_add_u32 s{sT3}, s{sT3}, 6
            s_cmp_ge_u32 s{sT3}, 24
            s_cselect_b32 s{sT3}, 0, s{sT3}""")
    a(f"""s_mul_i32 s{sT0}, s{sHd}, {18*1152}
    s_mul_i32 s{sT1}, s{sC}, 288
    s_add_u32 s{sT0}, s{sT0}, s{sT1}
    s_mul_i32 s{sT1}, s{sWv}, {3*1152}
    s_add_u32 s{sT0}, s{sT0}, s{sT1}
    s_mul_i32 s{sT1}, s{sWv}, 864
    s_add_u32 m0, s{sT1}, {L_WO}
    s_add_u32 s{sT2}, s{sT0}, {12*1152}
    buffer_load_dwordx4 v{vWos}, s[{sWo}:{sWo+3}], s{sT0} offen lds
    s_add_u32 m0, s{sT1}, {L_WO + 4*864}
    s_nop 0
    buffer_load_dwordx4 v{vWos}, s[{sWo}:{sWo+3}], s{sT2} offen lds""")
    a(f"""s_mov_b64 exec, -1
    v_lshlrev_b32 v{t0}, 1, v0
    s_mul_i32 s{sT0}, s{sWv}, 288""")
    for i in range(3):
        a(f"buffer_load_ushort v{vGa[i]}, v{t0}, s[{sG}:{sG+3}], s{sT0} offen offset:{96*i}")
    a(f"""s_lshl_b32 s{sXb}, s{sC}, 2
    s_add_u32 s{sXb}, s{sXb}, s{sWv}
    s_mul_i32 s{sXb}, s{sXb}, {128*1152}
    s_lshl_b32 s{sKo}, s{sRot}, 7
    s_lshl_b32 s{sRing}, s{sWv}, 14
    s_add_u32 s{sRing}, s{sRing}, {L_XR}
    s_add_u32 s{sRef}, s{sXb}, s{sKo}""")
    def xdma(slot):
        a(f"""s_add_u32 m0, s{sRing}, {slot*4096}
        s_add_u32 s{sT0}, s{sRef}, {slot*32*1152}""")
        for i in range(4):
            a(f"buffer_load_dwordx4 v{vXs[i]}, s[{sX}:{sX+3}], s{sT0} offen offset:{1024*i} lds")
    for s_ in range(4): xdma(s_)
    def next_ref():
        a(f"""s_add_u32 s{sKo}, s{sKo}, 128
        s_cmp_ge_u32 s{sKo}, 1152
        s_cselect_b32 s{sKo}, 0, s{sKo}
        s_add_u32 s{sRef}, s{sXb}, s{sKo}
        s_sub_u32 s{sCnt}, s{sCnt}, 1
        s_cmp_lt_i32 s{sCnt}, 0
        s_cselect_b32 s{sRef}, 0x40000000, s{sRef}""")
    a(f"""v_and_b32 v{t0}, 31, v0
    v_lshrrev_b32 v{t1}, 5, v0
    v_bfe_u32 v{t2}, v0, 1, 3
    v_xor_b32 v{t2}, v{t2}, v{t1}
    v_lshlrev_b32 v{t2}, 4, v{t2}
    v_lshlrev_b32 v{t3}, 7, v{t0}
    v_add_u32 v{t3}, s{sRing}, v{t3}""")
    for ks in range(4):
        a(f"""v_xor_b32 v{t4}, {32*ks}, v{t2}
        v_add_u32 v{vXr[ks]}, v{t3}, v{t4}""")
    a(f"""v_bfe_u32 v{t2}, v0, 2, 2
    v_lshl_add_u32 v{t2}, v{t1}, 3, v{t2}
    v_mul_u32_u24 v{t2}, 144, v{t2}
    s_mul_i32 s{sT0}, s{sRot}, {64*144}
    v_add_u32 v{t2}, s{sT0}, v{t2}
    v_and_b32 v{t3}, 3, v0
    v_lshlrev_b32 v{t4}, 3, v{t3}
    v_and_b32 v{t5}, 16, v0
    v_cmp_eq_u32 vcc, 0, v{t5}
    v_add_u32 v{t5}, 48, v{t4}
    s_nop 0
    v_cndmask_b32 v{vWq}, v{t4}, v{t5}, vcc
    v_add_u32 v{vWq}, v{vWq}, v{t2}
    s_mov_b32 s{sT0}, {128 | (80 << 8) | (32 << 16) | (40 << 24)}
    v_lshrrev_b32 v{t5}, v{t4}, s{sT0}
    v_and_b32 v{t5}, 0xff, v{t5}
    v_add_u32 v{t4}, 96, v{t4}
    v_cndmask_b32 v{vWv}, v{t5}, v{t4}, vcc
    v_add_u32 v{vWv}, v{vWv}, v{t2}""")
    ACC = 128
    for i in range(128): a(f"v_mov_b32 v{ACC+i}, 0")
    a(f"""v_mov_b32 v{vGa[0]+1}, 0
    v_mov_b32 v{vGa[1]+1}, 0
    v_mov_b32 v{vGa[2]+1}, 0
    v_mul_u32_u24 v{t0}, 144, v0
    s_mul_i32 s{sT0}, s{sWv}, {144*144}
    v_add_u32 v{t0}, s{sT0}, v{t0}
    s_waitcnt vmcnt(16)
    s_mov_b32 exec_hi, 0x0000ffff""")
    for i in range(3):
        a(f"ds_write_b64 v{t0}, {vr(vGa[i],2)} offset:{L_W + 40 + 48*144*i}")
    a(f"""s_mov_b64 exec, -1
    s_waitcnt lgkmcnt(0)
    s_barrier""")
    stamp(a, 1)
    WF = 32
    XF = [96, 112]
    a(f"""v_bfe_u32 v{t0}, v0, 2, 3
    v_mul_u32_u24 v{t0}, 288, v{t0}
    v_and_b32 v{t1}, 3, v0
    v_lshlrev_b32 v{t1}, 3, v{t1}
    v_and_b32 v{t2}, 32, v0
    v_add3_u32 v{t0}, v{t0}, v{t1}, v{t2}
    s_lshl_b32 s{sT0}, s{sWv}, 6
    v_add_u32 v{t2}, s{sT0}, v{t0}
    ds_read_b64_tr_b16 {vr(64,2)}, v{t2} offset:{L_WO}
    ds_read_b64_tr_b16 {vr(66,2)}, v{t2} offset:{L_WO+2304}
    ds_read_b64_tr_b16 {vr(68,2)}, v{t0} offset:{L_WO+256}
    ds_read_b64_tr_b16 {vr(70,2)}, v{t0} offset:{L_WO+256+2304}""")
    a(f"""v_bfe_u32 v{t0}, v0, 2, 2
    v_mul_u32_u24 v{t0}, 288, v{t0}
    v_lshrrev_b32 v{t2}, 4, v0
    v_lshlrev_b32 v{t2}, 5, v{t2}
    v_add3_u32 v{t0}, v{t0}, v{t1}, v{t2}
    s_lshl_b32 s{sT0}, s{sWv}, 7
    v_add_u32 v{t0}, s{sT0}, v{t0}
    ds_read_b64_tr_b16 {vr(72,2)}, v{t0} offset:{L_WO+16*288-128}""")
    def wfrag(ks):
        for tile, va in ((0, vWq), (1, vWv)):
            for hf in range(2):
                a(f"ds_read_b64_tr_b16 {vr(WF+8*ks+4*tile+2*hf,2)}, v{va} offset:{L_W + (16*ks+4*hf)*144}")
    a(f"""s_lshl_b32 s{sT0}, s{sC}, 6
    s_add_u32 s{sT0}, s{sT0}, s{sBH}
    s_mul_i32 s{sT0}, s{sT0}, 4608
    s_add_u32 s{sT0}, s{sT0}, {WS_WOM}
    s_lshl_b32 s{sT1}, s{sWv}, 10
    s_add_u32 s{sT1}, s{sT1}, s{sT0}
    v_lshlrev_b32 v{t0}, 4, v0
    s_lshl_b32 s{sT2}, s{sC}, 4
    s_lshr_b32 s{sT3}, s{sBH}, 2
    s_add_u32 s{sT2}, s{sT2}, s{sT3}
    s_mul_i32 s{sT2}, s{sT2}, 2304
    s_and_b32 s{sT3}, s{sBH}, 3
    s_lshl_b32 s{sT3}, s{sT3}, 2
    s_add_u32 s{sT2}, s{sT2}, s{sT3}
    s_lshl_b32 s{sT3}, s{sWv}, 10
    s_add_u32 s{sT2}, s{sT2}, s{sT3}
    s_add_u32 s{sT2}, s{sT2}, {WS_WOT - 1024}
    s_waitcnt lgkmcnt(0)
    buffer_store_dwordx4 {vr(64,4)}, v{t0}, s[{sWS}:{sWS+3}], s{sT1} offen sc1""")
    for ks in range(4): wfrag(ks)
    a(f"""s_cmp_eq_u32 s{sWv}, 0
    s_cbranch_scc0 {K}_wo_tail
    s_mov_b32 exec_hi, 0
    buffer_store_dwordx4 {vr(68,4)}, v{t0}, s[{sWS}:{sWS+3}], s{sT0} offen offset:4095 sc1
    s_branch {K}_wo_done
    {K}_wo_tail:
    s_cmp_eq_u32 s{sWv}, 3
    s_cselect_b32 exec_lo, 0xffff, -1
    s_cselect_b32 exec_hi, 0, -1
    buffer_store_dword v72, v{t0}, s[{sWS}:{sWS+3}], s{sT2} offen sc1
    {K}_wo_done:
    s_mov_b64 exec, -1""".replace(f"s{sT0} offen offset:4095 sc1", f"s{sT3} offen sc1").replace(f"s_mov_b32 exec_hi, 0", f"s_mov_b32 exec_hi, 0\n s_add_u32 s{sT3}, s{sT0}, 4096"))
    def xread(buf, slot):
        for ks in range(4):
            a(f"ds_read_b128 {vr(XF[buf]+4*ks,4)}, v{vXr[ks]} offset:{slot*4096}")
    a(f"s_mov_b32 s{sCnt}, 8")
    next_ref()
    a("s_waitcnt vmcnt(12)")
    xread(0, 0)
    a("s_waitcnt lgkmcnt(0)")
    xdma(0)
    a(f"s_mov_b32 s{sIt}, 9")
    a(f"{K}_p1:")
    for tt in range(4):
        cur = XF[tt & 1]
        a("s_waitcnt vmcnt(12)")
        xread((tt + 1) & 1, (tt + 1) & 3)
        if tt == 3:
            a(f"""s_add_u32 s{sRot}, s{sRot}, 1
            s_cmp_ge_u32 s{sRot}, 9
            s_cselect_b32 s{sRot}, 0, s{sRot}
            s_movk_i32 s{sT1}, {64*144}
            s_cselect_b32 s{sT1}, {(-8*64*144) & 0xffffffff}, s{sT1}
            v_add_u32 v{vWq}, s{sT1}, v{vWq}
            v_add_u32 v{vWv}, s{sT1}, v{vWv}""")
            next_ref()
        for ks in range(4):
            if tt == 0:
                a(f"s_waitcnt lgkmcnt({min(15, 16-4*ks)})")
            qa, va = ACC + 32 * tt, ACC + 32 * tt + 16
            a(f"v_mfma_f32_32x32x16_bf16 {vr(qa,16)}, {vr(WF+8*ks,4)}, {vr(cur+4*ks,4)}, {vr(qa,16)}")
            a(f"v_mfma_f32_32x32x16_bf16 {vr(va,16)}, {vr(cur+4*ks,4)}, {vr(WF+8*ks+4,4)}, {vr(va,16)}")
            if tt == 3: wfrag(ks)
            if (ks == 1 and tt != 0) or (ks == 3 and tt == 0):
                a(f"s_waitcnt lgkmcnt({8 if tt == 3 else 0})")
                xdma((tt + 1) & 3)
    a(f"""s_sub_u32 s{sIt}, s{sIt}, 1
    s_cmp_lg_u32 s{sIt}, 0
    s_cbranch_scc1 {K}_p1""")
    stamp(a, 2)
    QM, QT = 32, 48
    KF, V0, V1, KT = [80, 84], [88, 92], [96, 100], 104
    vKa, vTa, vVa, vInc, vIdx = 2, 3, 4, 5, 6
    vKw, vVw, vMul, vSk, vSq, vGl = 7, 8, 9, 10, 11, 20
    TP = 108
    a(f"""s_mul_i32 s{sT0}, s{sWv}, {BLK}
    s_mul_i32 s{sT1}, s{sWv}, 4864
    s_add_u32 s{sT1}, s{sT1}, {L_SCR}
    v_and_b32 v{t0}, 31, v0
    v_lshrrev_b32 v{t1}, 5, v0
    v_and_b32 v{t2}, 0x33, v0
    v_and_b32 v{t3}, 4, v0
    v_lshlrev_b32 v{t3}, 1, v{t3}
    v_and_b32 v{t4}, 8, v0
    v_lshrrev_b32 v{t4}, 1, v{t4}
    v_or3_b32 v{t2}, v{t2}, v{t3}, v{t4}
    v_lshlrev_b32 v{vKw}, 4, v{t2}
    v_add_u32 v{vKw}, s{sT0}, v{vKw}""")
    a(f"""v_mul_u32_u24 v{t3}, 304, v{t1}
    v_lshl_add_u32 v{t3}, v{t0}, 4, v{t3}
    v_mov_b32 v{vVa}, {OOBL}
    v_cmp_gt_u32 vcc, 19, v{t0}
    v_mov_b32 v{vInc}, 0
    v_mov_b32 v{t4}, {BLK}
    v_cndmask_b32 v{vVa}, v{vVa}, v{t3}, vcc
    v_cndmask_b32 v{vInc}, v{vInc}, v{t4}, vcc
    s_add_u32 s{sT2}, s{sT0}, 4608
    v_add_u32 v{vVw}, s{sT2}, v{vVa}
    v_subrev_u32 v{t3}, 20, v{t0}
    v_lshrrev_b32 v{t4}, 2, v{t3}
    v_and_b32 v{t5}, 1, v{t3}
    v_lshl_add_u32 v{t4}, v{t4}, 1, v{t5}
    v_lshlrev_b32 v{t4}, 5, v{t4}
    v_lshl_add_u32 v{t4}, v{t1}, 4, v{t4}
    v_add_u32 v{t4}, s{sT1}, v{t4}
    s_mov_b32 vcc_lo, {(1<<20)|(1<<21)|(1<<24)|(1<<25)|(1<<28)}
    s_mov_b32 vcc_hi, {(1<<20)|(1<<21)|(1<<24)|(1<<25)|(1<<28)}
    v_mov_b32 v{t5}, {f32(CSCALE)}
    v_cndmask_b32 v{vVw}, v{vVw}, v{t4}, vcc
    s_mov_b32 vcc_lo, {(1<<24)|(1<<25)}
    s_mov_b32 vcc_hi, {(1<<24)|(1<<25)}
    v_mov_b32 v{vMul}, 1.0
    s_nop 0
    v_cndmask_b32 v{vMul}, v{vMul}, v{t5}, vcc""")
    for dst, src in ((vSk, 0), (vSq, t2)):
        a(f"""v_bfe_u32 v{t3}, v{src}, 4, 1
        v_mul_u32_u24 v{t3}, 608, v{t3}
        v_and_b32 v{t4}, 15, v{src}
        v_lshl_add_u32 v{t3}, v{t4}, 1, v{t3}
        v_add_u32 v{dst}, s{sT1}, v{t3}""")
    a(f"""v_mov_b32 v{t5}, v{vSq}
    v_lshl_add_u32 v{vSk}, v{t1}, 5, v{vSk}
    v_lshl_add_u32 v{vSq}, v{t1}, 5, v{vSq}
    v_lshlrev_b32 v{vKa}, 4, v0
    v_lshlrev_b32 v{vTa}, 3, v0
    v_mov_b32 v{vIdx}, 0xdddddddd
    s_mov_b32 s{sT3}, {f32(CSCALE)}
    s_mov_b32 vcc_lo, {1<<18}
    s_mov_b32 vcc_hi, {1<<18}
    v_mov_b32 v{t4}, 0x3f803f80
    s_waitcnt vmcnt(0) lgkmcnt(0)
    s_barrier""")
    for tt in range(4):
        qa, va = ACC + 32 * tt, ACC + 32 * tt + 16
        tp = TP if tt % 2 == 0 else 80
        for i in range(4):
            a(f"v_cvt_pk_bf16_f32 v{tp+i}, v{qa+2*i}, v{qa+2*i+1}")
        a(f"ds_write_b128 v{vKw}, {vr(tp,4)} offset:{tt*1024}")
        for i in range(8):
            a(f"v_mul_f32 v{qa+8+i}, s{sT3}, v{qa+8+i}")
        for i in range(4):
            a(f"v_cvt_pk_bf16_f32 v{QM+4*tt+i}, v{qa+8+2*i}, v{qa+8+2*i+1}")
        for i in range(16):
            a(f"v_mul_f32 v{va+i}, v{vMul}, v{va+i}")
        for i in range(8):
            a(f"v_cvt_pk_bf16_f32 v{tp+4+i}, v{va+2*i}, v{va+2*i+1}")
        for i in range(8):
            a(f"v_cndmask_b32 v{tp+4+i}, v{tp+4+i}, v{t4}, vcc")
        a(f"ds_write_b128 v{vVw}, {vr(tp+4,4)} offset:{tt*1216}")
        a(f"ds_write_b128 v{vVw}, {vr(tp+8,4)} offset:{tt*1216+608}")
    a("s_waitcnt lgkmcnt(0)")
    a(f"""ds_read_u16 v{TP}, v{vSk} offset:0
    ds_read_u16 v{TP+1}, v{vSk} offset:{2*1216}
    ds_read_u16 v{TP+2}, v{vSk} offset:{1216}
    ds_read_u16 v{TP+3}, v{vSk} offset:{3*1216}""")
    for x in range(4):
        a(f"ds_read_u16 v{QT+8*x}, v{vSq} offset:{x*1216+64}")
        a(f"ds_read_u16 v{vGl+x}, v{t5} offset:{x*1216+128}")
    a(f"""v_add_u32 v{t3}, s{sT0}, v{vTa}
    v_add_u32 v{t2}, s{sT0}, v{vKa}""")
    S = [128, 144, 160, 176]
    O = [192, 208, 224, 240]
    for i in range(64): a(f"v_mov_b32 v{O[0]+i}, 0")
    a(f"""s_waitcnt lgkmcnt(0)
    v_lshl_or_b32 v{TP}, v{TP+2}, 16, v{TP}
    v_lshl_or_b32 v{TP+1}, v{TP+3}, 16, v{TP+1}
    ds_write_b64 v{t3}, {vr(TP,2)} offset:4096""")
    for x in range(4):
        q = QT + 8 * x
        a(f"""v_mov_b32 v{q+1}, 0
        v_lshlrev_b32 v{q+2}, 16, v{q}
        v_mov_b32 v{q+3}, 0
        v_mov_b32 v{q+4}, 0
        v_mov_b32 v{q+5}, v{q}
        v_mov_b32 v{q+6}, 0
        v_lshlrev_b32 v{q+7}, 16, v{q}""")
    a("s_waitcnt lgkmcnt(0)")
    for i in range(10):
        a(f"ds_read_b128 {vr(S[0]+4*i,4)}, v{t2} offset:{1024*i}")
    a(f"""s_barrier
    s_mul_i32 s{sKVg}, s{sBH}, {KVH}
    s_lshl_b32 s{sT1}, s{sC}, 2
    s_add_u32 s{sT1}, s{sT1}, s{sWv}
    s_mul_i32 s{sT1}, s{sT1}, {BLK}
    s_add_u32 s{sT1}, s{sT1}, s{sKVg}""")
    for i in range(10):
        if i == 9: a("s_mov_b64 exec, 0xffff")
        if i % 4 == 0 and i: a(f"s_add_u32 s{sT1}, s{sT1}, 4096")
        a(f"s_waitcnt lgkmcnt({9-i})")
        a(f"buffer_store_dwordx4 {vr(S[0]+4*i,4)}, v{vKa}, s[{sWS}:{sWS+3}], s{sT1} offen offset:{1024*(i%4)} sc1")
    a("s_mov_b64 exec, -1")
    stamp(a, 3)
    def ldK(t, buf): return f"ds_read_b128 {vr(KF[buf],4)}, v{vKa} offset:{(t//4)*BLK + (t%4)*1024}"
    def ldV(t, half, buf): return f"ds_read_b128 {vr((V0,V1)[half][buf],4)}, v{vVa} offset:{(t//4)*BLK + 4608 + (t%4)*1216 + 608*half}"
    def ldT(b): return f"ds_read_b64 {vr(KT,2)}, v{vTa} offset:{b*BLK + 4096}"
    def QKM(t, x, s, c="0"): return f"v_mfma_f32_32x32x16_bf16 {vr(s,16)}, {vr(KF[t%2],4)}, {vr(QM+4*x,4)}, {c}"
    def QKT(t, x, s): return f"v_mfma_f32_32x32x8_bf16 {vr(s,16)}, {vr(KT,2)}, {vr(QT+8*x+2*(t%4),2)}, {vr(s,16)}"
    def PV(half, t, x, s): return f"v_smfmac_f32_32x32x32_bf16 {vr(O[x],16)}, {vr((V0,V1)[half][t%2],4)}, {vr(s+8*half,8)}, v{vIdx}"
    a(ldK(0, 0)); a(ldT(0)); a(ldV(0, 0, 0)); a(ldV(0, 1, 0))
    for i in range(8): a(f"v_mov_b32 v{S[3]+8+i}, 0")
    for i in range(4): a(f"v_mov_b32 v{V1[1]+i}, 0")
    a(f"""s_mov_b32 s{sIt}, 0
    s_waitcnt lgkmcnt(0)""")
    a(QKM(0, 0, S[0])); a(QKT(0, 0, S[0])); a(QKM(0, 1, S[1])); a(QKT(0, 1, S[1]))
    a("s_nop 7")
    a(".p2align 6")
    a(f"{K}_att:")
    pos = (2, 6, 10, 14)
    for u in range(16):
        t, x = divmod(u, 4)
        tn, xn = divmod(u + 2, 4)
        tp_, xp = divmod(u - 1, 4)
        s, sn, sp = S[u % 4], S[(u + 2) % 4], S[(u - 1) % 4]
        ins = {i: [] for i in range(17)}
        ins[pos[0]].append(PV(1, tp_, xp, sp))
        ins[pos[1]].append(QKM(tn, xn, sn))
        ins[pos[2]].append(QKT(tn, xn, sn))
        ins[pos[3]].append(PV(0, t, x, s))
        if x == 0:
            ins[pos[0]].append(ldV(t + 1, 1, (t + 1) % 2))
            ins[pos[1]].append(ldK(t + 1, (t + 1) % 2))
            ins[pos[3]].append(ldV(t + 1, 0, (t + 1) % 2))
        if u == 13: ins[pos[2]].append(ldT(1))
        if x == 2: ins[pos[1]].insert(0, "s_waitcnt lgkmcnt(0)")
        if u == 12:
            ins[0] += [f"s_cmp_lt_u32 s{sIt}, 4", f"s_cbranch_scc1 {K}_hook", f"{K}_hook_ret:"]
        if u == 15:
            ins[pos[0]].append(f"v_add_u32 v{vKa}, {BLK}, v{vKa}")
            ins[pos[1]].append(f"v_add_u32 v{vTa}, {BLK}, v{vTa}")
            ins[pos[2]].append(f"v_add_u32 v{vVa}, v{vInc}, v{vVa}")
            ins[pos[3]] += [f"s_add_u32 s{sIt}, s{sIt}, 1", f"s_cmp_lt_u32 s{sIt}, 16"]
        for i in range(16):
            for m in ins[i]: a(m)
            a(f"v_exp_f32 v{s+i}, v{s+i}")
    a(f"s_cbranch_scc1 {K}_att")
    a("s_nop 1")
    a(PV(1, 3, 3, S[3]))
    stamp(a, 12)
    for x in range(4):
        g = vGl + x
        a(f"""v_lshlrev_b32 v{g}, 16, v{g}
        v_mul_f32 v{g}, {f32(-LOG2E)}, v{g}""")
    a(f"""s_cmp_ge_u32 s{sBH}, 32
    s_cselect_b32 s{sT0}, 0x80000000, 0""")
    for x in range(4):
        g = vGl + x
        a(f"""v_xor_b32 v{g}, s{sT0}, v{g}
        v_exp_f32 v{g}, v{g}""")
    a("s_nop 0")
    for x in range(4): a(f"v_add_f32 v{vGl+x}, 1.0, v{vGl+x}")
    a(f"""s_lshl_b32 s{sT1}, s{sC}, 2
    s_add_u32 s{sT1}, s{sT1}, s{sWv}
    s_lshl_b32 s{sT1}, s{sT1}, 8
    s_add_u32 s{sT1}, s{sT1}, s{sBH}
    s_mul_i32 s{sT1}, s{sT1}, 1152
    s_add_u32 s{sT1}, s{sT1}, {WS_O}
    v_lshlrev_b32 v{t0}, 4, v0
    v_lshlrev_b32 v{t1}, 2, v0
    s_mov_b32 s{sT2}, {f32(2.0**-40)}
    s_mov_b32 s{sT3}, {f32(2.0**40) if not OPT['force_fb'] else f32(2.0**-39)}
    s_waitcnt lgkmcnt(0)
    s_nop 7""")
    for x in range(4):
        o = O[x]
        a(f"""v_cmp_le_f32 vcc, s{sT2}, v{o+10}
        v_cmp_ge_f32 s[{sEx}:{sEx+1}], s{sT3}, v{o+10}
        s_nop 1
        s_and_b32 vcc_lo, vcc_lo, s{sEx}
        s_cmp_eq_u32 vcc_lo, -1
        s_cbranch_scc0 {K}_fb{x}
        {K}_fbret{x}:
        v_mov_b32 v{t2}, v{o+10}
        s_nop 1
        v_permlane32_swap_b32 v{o+10}, v{t2}
        s_nop 1
        v_mul_f32 v{t2}, v{o+10}, v{vGl+x}
        v_rcp_f32 v{t2}, v{t2}
        s_nop 0""")
        for i in range(10): a(f"v_mul_f32 v{o+i}, v{t2}, v{o+i}")
        tp = TP + 6 * (x % 2)
        for i in range(5): a(f"v_cvt_pk_bf16_f32 v{tp+i}, v{o+2*i}, v{o+2*i+1}")
        a(f"""buffer_store_dwordx4 {vr(tp,4)}, v{t0}, s[{sWS}:{sWS+3}], s{sT1} offen
        s_mov_b32 exec_hi, 0
        buffer_store_dword v{tp+4}, v{t1}, s[{sWS}:{sWS+3}], s{sT1} offen offset:1024
        s_mov_b64 exec, -1
        s_add_u32 s{sT1}, s{sT1}, {64*1152}""")
    if OPT["stamp"]: a("s_waitcnt vmcnt(0)")
    stamp(a, 13)
    stamp_out(a, 0)
    a(f"{K}_end:")
    a("s_endpgm")
    vP, vPa = 24, 25
    a(f"{K}_hook:")
    if OPT["stamp"]:
        a(f"""s_memrealtime s[80:81]
        s_memtime s[82:83]
        s_lshl_b32 m0, s{sIt}, 1
        s_add_u32 m0, m0, 4
        s_waitcnt lgkmcnt(0)
        v_writelane_b32 v30, s80, m0
        v_writelane_b32 v31, s82, m0""")
    HR = f"{K}_hook_x" if OPT["stamp"] else f"{K}_hook_ret"
    a(f"""s_cmp_eq_u32 s{sIt}, 0
    s_cbranch_scc1 {K}_h0
    s_cmp_eq_u32 s{sIt}, 1
    s_cbranch_scc1 {K}_h1
    s_cmp_eq_u32 s{sIt}, 2
    s_cbranch_scc1 {K}_h2
    s_waitcnt vmcnt(0)
    s_barrier
    s_branch {HR}
    {K}_h0:
    s_waitcnt vmcnt(0)
    s_barrier
    s_lshl_b32 s{sT0}, s{sBH}, 2
    v_mov_b32 v{vPa}, s{sT0}
    s_cmp_eq_u32 s{sWv}, 0
    s_cbranch_scc0 {HR}
    v_mov_b32 v{vP}, 1
    s_mov_b64 exec, 1
    buffer_atomic_add v{vP}, v{vPa}, s[{sD}:{sD+3}], 0 offen
    s_mov_b64 exec, -1
    s_branch {HR}
    {K}_h1:
    buffer_load_dword v{vP}, v{vPa}, s[{sD}:{sD+3}], 0 offen sc1
    s_branch {HR}
    {K}_h2:
    s_mov_b32 s{sSpin}, 200000
    {K}_h2l:
    s_waitcnt vmcnt(0)
    v_readfirstlane_b32 s{sT0}, v{vP}
    s_and_b32 s{sT0}, s{sT0}, 0xff
    s_cmp_ge_u32 s{sT0}, 4
    s_cbranch_scc1 {K}_h2go
    s_sub_u32 s{sSpin}, s{sSpin}, 1
    s_cmp_eq_u32 s{sSpin}, 0
    s_cbranch_scc1 {K}_h2go
    s_sleep 2
    buffer_load_dword v{vP}, v{vPa}, s[{sD}:{sD+3}], 0 offen sc1
    s_branch {K}_h2l
    {K}_h2go:
    v_lshlrev_b32 v{vP}, 4, v0
    s_add_u32 s{sT0}, s{sC}, 1
    s_lshl_b32 s{sT1}, s{sWv}, 10""")
    for j in range(3):
        a(f"""s_and_b32 s{sT0}, s{sT0}, 3
        s_mul_i32 s{sT2}, s{sT0}, {4*BLK}
        s_add_u32 s{sT2}, s{sT2}, s{sKVg}
        s_add_u32 s{sT2}, s{sT2}, s{sT1}
        s_add_u32 s{sT0}, s{sT0}, 1""")
        for i in range(10):
            if i == 9:
                a(f"""s_cmp_eq_u32 s{sWv}, 0
                s_cbranch_scc0 {K}_h2s{j}""")
            a(f"""s_add_u32 m0, s{sT1}, {4*BLK*(j+1) + 4096*i}
            s_add_u32 s{sT3}, s{sT2}, {4096*i}
            buffer_load_dwordx4 v{vP}, s[{sWS}:{sWS+3}], s{sT3} offen sc1 lds""")
        a(f"{K}_h2s{j}:")
    a(f"s_branch {HR}")
    if OPT["stamp"]:
        a(f"""{HR}:
        s_memrealtime s[80:81]
        s_memtime s[82:83]
        s_lshl_b32 m0, s{sIt}, 1
        s_add_u32 m0, m0, 5
        s_waitcnt lgkmcnt(0)
        v_writelane_b32 v30, s80, m0
        v_writelane_b32 v31, s82, m0
        s_branch {K}_hook_ret""")
    FQ = S[3]
    for x in range(4):
        a(f"{K}_fb{x}:")
        for i in range(4): a(f"v_mov_b32 v{FQ+i}, v{QM+4*x+i}")
        for i in range(8): a(f"v_mov_b32 v{FQ+4+i}, v{QT+8*x+i}")
        a(f"s_call_b64 s[{sRet}:{sRet+1}], {K}_slow")
        for i in range(16): a(f"v_mov_b32 v{O[x]+i}, v{S[2]+i}")
        a(f"s_branch {K}_fbret{x}")
    a(f"{K}_slow:")
    va, vb, vc, vm = 26, 27, 28, 29
    def slow_addr():
        a(f"""v_lshlrev_b32 v{va}, 4, v0
        v_lshlrev_b32 v{vb}, 3, v0
        v_lshlrev_b32 v{vc}, 4, v{vInc}
        v_sub_u32 v{vc}, v{vVa}, v{vc}
        s_mov_b32 s{sIt}, 16""")
    def slow_qk(t, c):
        a(f"""v_mfma_f32_32x32x16_bf16 {vr(S[0],16)}, {vr(KF[0],4)}, {vr(FQ,4)}, {c}
        v_mfma_f32_32x32x8_bf16 {vr(S[0],16)}, {vr(KT,2)}, {vr(FQ+4+2*t,2)}, {vr(S[0],16)}
        s_nop 15""")
    def slow_next(lbl):
        a(f"""v_add_u32 v{va}, {BLK}, v{va}
        v_add_u32 v{vb}, {BLK}, v{vb}
        v_add_u32 v{vc}, v{vInc}, v{vc}
        s_sub_u32 s{sIt}, s{sIt}, 1
        s_cmp_lg_u32 s{sIt}, 0
        s_cbranch_scc1 {lbl}""")
    slow_addr()
    a(f"v_mov_b32 v{vm}, 0xff800000")
    a(f"{K}_sl1:")
    a(f"ds_read_b64 {vr(KT,2)}, v{vb} offset:4096")
    for t in range(4):
        a(f"""ds_read_b128 {vr(KF[0],4)}, v{va} offset:{1024*t}
        s_waitcnt lgkmcnt(0)""")
        slow_qk(t, "0")
        for i in range(8): a(f"v_max3_f32 v{vm}, v{S[0]+2*i}, v{S[0]+2*i+1}, v{vm}")
    slow_next(f"{K}_sl1")
    a(f"""v_mov_b32 v{S[0]}, v{vm}
    s_nop 1
    v_permlane32_swap_b32 v{vm}, v{S[0]}
    s_nop 1
    v_max_f32 v{vm}, v{vm}, v{S[0]}""")
    for i in range(16):
        a(f"v_sub_f32 v{S[1]+i}, 0, v{vm}")
        a(f"v_mov_b32 v{S[2]+i}, 0")
    slow_addr()
    a(f"{K}_sl2:")
    a(f"ds_read_b64 {vr(KT,2)}, v{vb} offset:4096")
    for t in range(4):
        a(f"""ds_read_b128 {vr(KF[0],4)}, v{va} offset:{1024*t}
        ds_read_b128 {vr(V0[0],4)}, v{vc} offset:{4608+1216*t}
        ds_read_b128 {vr(V1[0],4)}, v{vc} offset:{4608+1216*t+608}
        s_waitcnt lgkmcnt(0)""")
        slow_qk(t, vr(S[1], 16))
        for i in range(16): a(f"v_exp_f32 v{S[0]+i}, v{S[0]+i}")
        a(f"""s_nop 3
        v_smfmac_f32_32x32x32_bf16 {vr(S[2],16)}, {vr(V0[0],4)}, {vr(S[0],8)}, v{vIdx}
        v_smfmac_f32_32x32x32_bf16 {vr(S[2],16)}, {vr(V1[0],4)}, {vr(S[0]+8,8)}, v{vIdx}
        s_nop 7""")
    slow_next(f"{K}_sl2")
    a(f"""s_nop 15
    s_setpc_b64 s[{sRet}:{sRet+1}]""")

def kernel_b(a):
    K = "kb"
    sO = 8
    sT, sCq = 33, 34
    a(f"""
    s_cmp_ge_u32 s2, 256
    s_cbranch_scc1 {K}_end
    s_load_dwordx2 s[56:57], s[0:1], 56
    s_load_dwordx2 s[74:75], s[0:1], 72
    v_lshrrev_b32 v1, 6, v0
    v_mov_b32 v9, v0
    v_and_b32 v0, 63, v0
    v_readfirstlane_b32 s{sWv}, v1
    s_and_b32 s{sT}, s2, 7
    s_lshr_b32 s{sT0}, s2, 5
    s_lshl_b32 s{sT0}, s{sT0}, 3
    s_add_u32 s{sT}, s{sT}, s{sT0}
    s_lshr_b32 s{sCq}, s2, 3
    s_and_b32 s{sCq}, s{sCq}, 3""")
    stamp(a, 0, 14)
    vOm, vOt, vWm, vWt = 2, 3, 4, 5
    a(f"""v_and_b32 v6, 15, v0
    v_lshrrev_b32 v7, 5, v0
    v_bfe_u32 v8, v0, 4, 1
    v_mul_u32_u24 v{vOm}, 1152, v7
    v_lshl_add_u32 v{vOm}, v8, 9, v{vOm}
    v_lshl_add_u32 v{vOm}, v6, 4, v{vOm}
    v_mul_u32_u24 v{vWm}, 4608, v7
    v_lshl_add_u32 v{vWm}, v8, 8, v{vWm}
    v_lshl_add_u32 v{vWm}, v6, 4, v{vWm}
    v_lshrrev_b32 v7, 4, v0
    v_mul_u32_u24 v{vOt}, 4608, v7
    v_lshl_add_u32 v{vOt}, v6, 2, v{vOt}
    v_mul_u32_u24 v{vWt}, 2304, v7
    v_lshl_add_u32 v{vWt}, v6, 4, v{vWt}
    s_lshl_b32 s{sT0}, s{sT}, 6
    s_lshl_b32 s{sT3}, s{sWv}, 4
    s_add_u32 s{sT0}, s{sT0}, s{sT3}
    s_mul_i32 s{sT0}, s{sT0}, 1152
    s_add_u32 s{sT0}, s{sT0}, {WS_O}
    s_lshl_b32 s{sT1}, s{sCq}, 6
    s_add_u32 s{sT1}, s{sT1}, s{sT3}
    s_mul_i32 s{sT1}, s{sT1}, 4608
    s_add_u32 s{sT1}, s{sT1}, {WS_WOM}
    s_lshl_b32 s{sT2}, s{sCq}, 2
    s_add_u32 s{sT2}, s{sT2}, s{sWv}
    s_mul_i32 s{sT2}, s{sT2}, {4*2304}
    s_add_u32 s{sT2}, s{sT2}, {WS_WOT}
    s_waitcnt lgkmcnt(0)""")
    srd(a, sWS, 74, 75, WS_SIZE)
    srd(a, sO, 56, 57, 2048 * 1152)
    OF = 16
    AC = 88
    WV = 160
    def wreg(s, ct):
        return ar(36 * s + 4 * ct, 4) if s < 7 else vr(WV + 36 * (s - 7) + 4 * ct, 4)
    def loads(s):
        n = 0
        if s < 8:
            a(f"s_add_u32 s{sT3}, s{sT0}, {2*s*1152}")
            for th in range(2):
                a(f"buffer_load_dwordx4 {vr(OF+8*s+4*th,4)}, v{vOm}, s[{sWS}:{sWS+3}], s{sT3} offen offset:{256*th}"); n += 1
            a(f"s_add_u32 s{sT3}, s{sT1}, {2*s*4608}")
            for ct in range(8):
                a(f"buffer_load_dwordx4 {wreg(s,ct)}, v{vWm}, s[{sWS}:{sWS+3}], s{sT3} offen offset:{512*ct}"); n += 1
            a(f"s_add_u32 s{sT3}, s{sT3}, 4096")
            a(f"buffer_load_dwordx4 {wreg(s,8)}, v{vWm}, s[{sWS}:{sWS+3}], s{sT3} offen"); n += 1
        else:
            for i in range(4):
                a(f"s_add_u32 s{sT3}, s{sT0}, {i*1152}")
                for th in range(2):
                    a(f"buffer_load_dword v{OF+64+4*th+i}, v{vOt}, s[{sWS}:{sWS+3}], s{sT3} offen offset:{1024+64*th}"); n += 1
            for ct in range(9):
                a(f"buffer_load_dwordx4 {wreg(8,ct)}, v{vWt}, s[{sWS}:{sWS+3}], s{sT2} offen offset:{256*ct}"); n += 1
        return n
    cnt = [11] * 8 + [17]
    AHEAD = 4
    for s in range(AHEAD): loads(s)
    for i in range(72): a(f"v_mov_b32 v{AC+i}, 0")
    for s in range(9):
        if s + AHEAD < 9: loads(s + AHEAD)
        later = sum(cnt[s + 1:min(9, s + AHEAD + 1)])
        a(f"s_waitcnt vmcnt({later})")
        for ct in range(9):
            for th in range(2):
                d = AC + 8 * ct + 4 * th
                a(f"v_mfma_f32_16x16x32_bf16 {vr(d,4)}, {wreg(s,ct)}, {vr(OF+8*s+4*th,4)}, {vr(d,4)}")
    stamp(a, 1, 14)
    RS = 592
    a(f"""v_mul_u32_u24 v10, {RS}, v6
    v_lshl_add_u32 v10, v7, 4, v10
    s_mul_i32 s{sT3}, s{sWv}, {32*RS}
    v_add_u32 v10, s{sT3}, v10
    s_nop 7""")
    for ct in range(9):
        for th in range(2):
            a(f"ds_write_b128 v10, {vr(AC+8*ct+4*th,4)} offset:{16*th*RS + 64*ct}")
    a(f"""s_mul_i32 s{sT0}, s{sT}, {32*1152}
    s_mul_i32 s{sT1}, s{sCq}, 288
    s_add_u32 s{sT0}, s{sT0}, s{sT1}""")
    for r in range(3):
        a(f"""v_add_u32 v11, {256*r}, v9
        v_mul_u32_u24 v12, 3641, v11
        v_lshrrev_b32 v12, 16, v12
        v_mul_u32_u24 v13, 18, v12
        v_sub_u32 v13, v11, v13
        v_mul_u32_u24 v{16+r}, {RS}, v12
        v_lshl_add_u32 v{16+r}, v13, 5, v{16+r}
        v_mul_u32_u24 v{20+r}, 1152, v12
        v_lshl_add_u32 v{20+r}, v13, 4, v{20+r}""")
    a("""s_waitcnt lgkmcnt(0)
    s_barrier""")
    for r in range(3):
        if r == 2:
            if OPT["stamp"]: a("s_waitcnt vmcnt(0)")
            stamp(a, 2, 14)
            stamp_out(a, 1, 14)
            a(f"""s_cmp_eq_u32 s{sWv}, 0
            s_cbranch_scc0 {K}_end""")
        b = 24 + 32 * r
        for w in range(4):
            for hf in range(2):
                a(f"ds_read_b128 {vr(b+8*w+4*hf,4)}, v{16+r} offset:{w*32*RS + 16*hf}")
        a("s_waitcnt lgkmcnt(0)")
        for i in range(8):
            a(f"v_add_f32 v{b+i}, v{b+i}, v{b+8+i}")
            a(f"v_add_f32 v{b+16+i}, v{b+16+i}, v{b+24+i}")
        for i in range(8): a(f"v_add_f32 v{b+i}, v{b+i}, v{b+16+i}")
        for i in range(4): a(f"v_cvt_pk_bf16_f32 v{b+8+i}, v{b+2*i}, v{b+2*i+1}")
        a(f"buffer_store_dwordx4 {vr(b+8,4)}, v{20+r}, s[{sO}:{sO+3}], s{sT0} offen")
    a(f"{K}_end:")
    a("s_endpgm")

def desc(name, nfv, acc):
    return f""".amdhsa_kernel {name}
  .amdhsa_next_free_vgpr {nfv}
  .amdhsa_next_free_sgpr 96
  .amdhsa_accum_offset {acc}
  .amdhsa_group_segment_fixed_size 0
  .amdhsa_kernarg_size 80
  .amdhsa_user_sgpr_count 2
  .amdhsa_user_sgpr_kernarg_segment_ptr 1
  .amdhsa_system_sgpr_workgroup_id_x 1
.end_amdhsa_kernel
"""

def main(out):
    ka, kb = f"{NAME}_kernel", "outproj_kernel"
    t = f"""; gated mix of two MHA blocks: fused QKV projection + attention, then output projection (generated by gen/gen.py)
; @launch kernel={ka} grid=(256,1,1) block=(256,1,1) lds={LDS_BYTES}
; @launch kernel={kb} grid=(256,1,1) block=(256,1,1) lds={4*32*592}
""" + "".join("; @launch kernel=empty_kernel grid=(256,1,1) block=(256,1,1) lds=0\n" for _ in range(int(OPT.get("empty", 0)))) + """.amdgcn_target "amdgcn-amd-amdhsa--gfx950"
.text
"""
    if int(OPT.get("empty", 0)):
        t += ".globl empty_kernel\n.p2align 8\n.type empty_kernel,@function\nempty_kernel:\n    s_endpgm\n"
    for nm, fn in ((ka, kernel_a), (kb, kernel_b)):
        a = Asm(); fn(a)
        t += f".globl {nm}\n.p2align 8\n.type {nm},@function\n{nm}:\n" + a.text()
    t += '.section .rodata,"a"\n.p2align 6\n' + desc(ka, 256, 256) + ".p2align 6\n" + desc(kb, 512, 256)
    if int(OPT.get("empty", 0)): t += ".p2align 6\n" + desc("empty_kernel", 8, 8)
    open(out, "w").write(t)

if __name__ == "__main__":
    for kv in sys.argv[2:]:
        k, v = kv.split("=")
        OPT[k] = {"True": True, "False": False}.get(v, v)
    main(sys.argv[1])
```

```python
import sys, struct

NAME = "gated_mix__mha_block__mha_block__prompt"
def f32(x): return "0x%08x" % struct.unpack("<I", struct.pack("<f", x))[0]
CSCALE = (18 ** -0.5) * 1.4426950408889634
LOG2E = 1.4426950408889634

BLK = 9472
KVH = 16 * BLK
WS_O = 0x0A00000
WS_WOM = 0x0F00000
WS_WOT = 0x1080000
WS_STAMP = 0x1100000
WS_SIZE = 0x1200000
L_WR = 0
L_XR = 40960
RX = 5
RW = 3
WS_F = 0x10C0000
SENT = 0xffffffff
L_GT = 155648
L_SYNC = L_GT + 3 * 2048 + 1536
L_WO = 151552
LDS_BYTES = 163840
OOBL = 0x30000
RS = 592

class Asm:
    def __init__(self): self.l = []
    def __call__(self, s):
        for x in s.strip("\n").split("\n"):
            x = x.strip()
            if not x: continue
            self.l.append(x if x.endswith(":") else "    " + x)
    def text(self): return "\n".join(self.l) + "\n"

def vr(a, n): return f"v[{a}:{a+n-1}]"
OPT = dict(mapping="A", force_fb=False, stamp=False)

def srd(a, d, lo, hi, size):
    a(f"""s_mov_b32 s{d}, s{lo}
    s_and_b32 s{d+1}, s{hi}, 0xffff
    s_mov_b32 s{d+2}, {size}
    s_mov_b32 s{d+3}, 0x00020000""")

sX, sW, sWo, sG, sD, sWS, sOut = 8, 12, 16, 20, 24, 28, 84
sWv, sBH, sC, sHd, sRot = 32, 33, 34, 35, 36
sT0, sT1, sT2, sT3 = 37, 38, 39, 40
sRef, sCnt, sKo, sXb, sRing, sIt, sKVg, sSpin = 41, 42, 43, 44, 45, 46, 47, 48
sW8 = 49
sRet, sEx = 50, 52
sWsrc, sWm0, sWk, sWcnt, sXm0, sGk, sTt = 54, 55, 62, 63, 76, 77, 78
SV = 254

def stamp(a, idx, vreg):
    if not OPT["stamp"]: return
    a(f"""s_memrealtime s[80:81]
    s_memtime s[82:83]
    s_waitcnt lgkmcnt(0)
    v_writelane_b32 v{vreg}, s80, {idx}
    v_writelane_b32 v{vreg+1}, s82, {idx}""")
def stamp_out(a, vreg, vt=1):
    if not OPT["stamp"]: return
    a(f"""s_lshl_b32 s80, s2, 3
    s_add_u32 s80, s80, s{sW8}
    s_lshl_b32 s80, s80, 8
    s_add_u32 s80, s80, {WS_STAMP}
    v_lshlrev_b32 v{vt}, 3, v0
    s_mov_b32 exec_hi, 0
    buffer_store_dwordx2 v[{vreg}:{vreg+1}], v{vt}, s[{sWS}:{sWS+3}], s80 offen
    s_mov_b64 exec, -1""")

def p3_addr(a, vOm, vOt, vWm, vWt, vRd, t0, t1, t2):
    a(f"""v_and_b32 v{t0}, 15, v0
    v_lshrrev_b32 v{t1}, 5, v0
    v_bfe_u32 v{t2}, v0, 4, 1
    v_mul_u32_u24 v{vOm}, 1152, v{t1}
    v_lshl_add_u32 v{vOm}, v{t2}, 9, v{vOm}
    v_lshl_add_u32 v{vOm}, v{t0}, 4, v{vOm}
    v_mul_u32_u24 v{vWm}, 4608, v{t1}
    v_lshl_add_u32 v{vWm}, v{t2}, 8, v{vWm}
    v_lshl_add_u32 v{vWm}, v{t0}, 4, v{vWm}
    v_lshrrev_b32 v{t1}, 4, v0
    v_mul_u32_u24 v{vOt}, 4608, v{t1}
    v_lshl_add_u32 v{vOt}, v{t0}, 2, v{vOt}
    v_mul_u32_u24 v{vWt}, 2304, v{t1}
    v_lshl_add_u32 v{vWt}, v{t0}, 4, v{vWt}
    v_mul_u32_u24 v{vRd}, {RS}, v{t0}
    v_lshl_add_u32 v{vRd}, v{t1}, 4, v{vRd}
    s_mul_i32 s{sT3}, s{sWv}, {32*RS}
    v_add_u32 v{vRd}, s{sT3}, v{vRd}""")
sP3T, sP3C, sOb, sWmb, sWtb = 88, 89, 90, 91, 92
def p3_scal(a):
    a(f"""s_and_b32 s{sP3T}, s2, 7
    s_lshr_b32 s{sT0}, s2, 5
    s_lshl_b32 s{sT0}, s{sT0}, 3
    s_add_u32 s{sP3T}, s{sP3T}, s{sT0}
    s_lshr_b32 s{sP3C}, s2, 3
    s_and_b32 s{sP3C}, s{sP3C}, 3
    s_lshl_b32 s{sOb}, s{sP3T}, 6
    s_lshl_b32 s{sT3}, s{sWv}, 4
    s_add_u32 s{sOb}, s{sOb}, s{sT3}
    s_mul_i32 s{sOb}, s{sOb}, 1152
    s_add_u32 s{sOb}, s{sOb}, {WS_O}
    s_lshl_b32 s{sWmb}, s{sP3C}, 6
    s_add_u32 s{sWmb}, s{sWmb}, s{sT3}
    s_mul_i32 s{sWmb}, s{sWmb}, 4608
    s_add_u32 s{sWmb}, s{sWmb}, {WS_WOM}
    s_lshl_b32 s{sWtb}, s{sP3C}, 2
    s_add_u32 s{sWtb}, s{sWtb}, s{sWv}
    s_mul_i32 s{sWtb}, s{sWtb}, {4*2304}
    s_add_u32 s{sWtb}, s{sWtb}, {WS_WOT}""")
def p3_wo_loads(a, cts, WB, vWm, vWt):
    n = len(cts)
    for s in range(8):
        a(f"s_add_u32 s{sT3}, s{sWmb}, {2*s*4608 + 512*cts[0]}")
        for i in range(n):
            a(f"buffer_load_dwordx4 {vr(WB+4*(n*s+i),4)}, v{vWm}, s[{sWS}:{sWS+3}], s{sT3} offen offset:{512*i} sc1")
    for i, ct in enumerate(cts):
        a(f"buffer_load_dwordx4 {vr(WB+4*(n*8+i),4)}, v{vWt}, s[{sWS}:{sWS+3}], s{sWtb} offen offset:{256*ct} sc1")
def p3_o_load(a, s, dst, vOm, vOt):
    if s < 8:
        a(f"s_add_u32 s{sT3}, s{sOb}, {2*s*1152}")
        for th in range(2):
            a(f"buffer_load_dwordx4 {vr(dst+4*th,4)}, v{vOm}, s[{sWS}:{sWS+3}], s{sT3} offen offset:{256*th} sc1")
        return 2
    for i in range(4):
        a(f"s_add_u32 s{sT3}, s{sOb}, {i*1152}")
        for th in range(2):
            a(f"buffer_load_dword v{dst+4*th+i}, v{vOt}, s[{sWS}:{sWS+3}], s{sT3} offen offset:{1024+64*th} sc1")
    return 8
def p3_compute(a, L, cts, WB, AC, OF, depth, vOm, vOt, vRd):
    n = len(cts)
    cnt = [2] * 8 + [8]
    a(f"s_mov_b32 s{sSpin}, 400000")
    for s in range(min(depth, 9)): p3_o_load(a, s, OF + 8 * (s % depth), vOm, vOt)
    retry = []
    for s in range(9):
        later = sum(cnt[s + 1:min(9, s + depth)])
        o = OF + 8 * (s % depth)
        a(f"s_waitcnt vmcnt({later})")
        a(f"{L}_c{s}:")
        if s < 8:
            a(f"v_max_u32 v1, v{o}, v{o+4}")
        else:
            a(f"""v_max3_u32 v1, v{o}, v{o+1}, v{o+2}
            v_max3_u32 v1, v{o+3}, v{o+4}, v1
            v_max3_u32 v1, v{o+5}, v{o+6}, v1
            v_max_u32 v1, v{o+7}, v1""")
        a(f"""v_cmp_eq_u32 vcc, -1, v1
        s_nop 1
        s_cbranch_vccnz {L}_r{s}
        {L}_g{s}:""")
        for i in range(n):
            for th in range(2):
                d = AC + 8 * i + 4 * th
                c = vr(d, 4) if s else "0"
                a(f"v_mfma_f32_16x16x32_bf16 {vr(d,4)}, {vr(WB+4*(n*s+i),4)}, {vr(o+4*th,4)}, {c}")
        if s + depth < 9: p3_o_load(a, s + depth, o, vOm, vOt)
        retry.append((s, o))
    a(f"s_branch {L}_done")
    for s, o in retry:
        a(f"""{L}_r{s}:
        s_sub_u32 s{sSpin}, s{sSpin}, 1
        s_cmp_lt_i32 s{sSpin}, 0
        s_cbranch_scc1 {L}_g{s}
        s_sleep 3""")
        p3_o_load(a, s, o, vOm, vOt)
        a(f"""s_waitcnt vmcnt(0)
        s_branch {L}_c{s}""")
    a(f"{L}_done:")
    a("s_nop 7")
    for i, ct in enumerate(cts):
        for th in range(2):
            a(f"ds_write_b128 v{vRd}, {vr(AC+8*i+4*th,4)} offset:{16*th*RS + 64*ct}")

def kernel(a):
    K = "k"
    a(f"""
    s_cmp_ge_u32 s2, 256
    s_cbranch_scc1 {K}_end
    s_load_dwordx4 s[56:59], s[0:1], 0
    s_load_dwordx2 s[60:61], s[0:1], 16
    s_load_dwordx4 s[64:67], s[0:1], 32
    s_load_dwordx4 s[68:71], s[0:1], 48
    s_load_dwordx4 s[72:75], s[0:1], 64
    v_lshrrev_b32 v1, 6, v0
    v_and_b32 v0, 63, v0
    s_nop 0
    v_readfirstlane_b32 s{sW8}, v1
    """)
    if OPT["mapping"] == "A":
        a(f"""s_lshr_b32 s{sC}, s2, 3
        s_and_b32 s{sC}, s{sC}, 3
        s_lshr_b32 s{sT0}, s2, 5
        s_and_b32 s{sBH}, s2, 7
        s_lshl_b32 s{sBH}, s{sBH}, 3
        s_add_u32 s{sBH}, s{sBH}, s{sT0}
        s_lshl_b32 s{sRot}, s{sC}, 1
        s_add_u32 s{sRot}, s{sRot}, s{sT0}
        s_sub_u32 s{sT1}, s{sRot}, 9
        s_cmp_ge_u32 s{sRot}, 9
        s_cselect_b32 s{sRot}, s{sT1}, s{sRot}""")
    else:
        a(f"""s_and_b32 s{sC}, s2, 7
        s_lshr_b32 s{sC}, s{sC}, 1
        s_lshr_b32 s{sRot}, s2, 3
        s_and_b32 s{sBH}, s2, 1
        s_lshl_b32 s{sBH}, s{sBH}, 5
        s_add_u32 s{sBH}, s{sBH}, s{sRot}
        s_lshl_b32 s{sRot}, s{sRot}, 1
        s_mul_i32 s{sT0}, s{sRot}, 57
        s_lshr_b32 s{sT0}, s{sT0}, 9
        s_mul_i32 s{sT0}, s{sT0}, 9
        s_sub_u32 s{sRot}, s{sRot}, s{sT0}""")
    a(f"""s_and_b32 s{sHd}, s{sBH}, 31
    s_and_b32 s{sWv}, s{sW8}, 3
    s_mul_i32 s{sKVg}, s{sBH}, {KVH}
    s_waitcnt lgkmcnt(0)
    s_cmp_ge_u32 s{sBH}, 32
    s_cselect_b32 s58, s64, s58
    s_cselect_b32 s59, s65, s59
    s_cselect_b32 s60, s66, s60
    s_cselect_b32 s61, s67, s61""")
    srd(a, sW, 58, 59, 576 * 3456)
    srd(a, sX, 56, 57, 2048 * 1152)
    srd(a, sG, 68, 69, 1152)
    srd(a, sWS, 74, 75, WS_SIZE)
    srd(a, sOut, 70, 71, 2048 * 1152)
    srd(a, sD, 72, 73, 256)
    if OPT.get("txor", "1") == "1":
        a(f"""s_and_b32 s{sTt}, s2, 1
        s_lshl_b32 s{sTt}, s{sTt}, 1""")
    else:
        a(f"s_mov_b32 s{sTt}, 0")
    a(f"""s_cmp_ge_u32 s{sW8}, 4
    s_cbranch_scc0 {K}_compute""")
    helper(a, K)
    a(f"{K}_compute:")
    compute(a, K)

def final_reduce(a, K, SVr):
    a(f"""s_lshl_b32 s{sT3}, s{sW8}, 6
    v_add_u32 v1, s{sT3}, v0
    s_mul_i32 s{sT0}, s{sP3T}, {32*1152}
    s_mul_i32 s{sT1}, s{sP3C}, 288
    s_add_u32 s{sT0}, s{sT0}, s{sT1}""")
    for r in range(2):
        a(f"""v_add_u32 v2, {512*r}, v1
        v_mul_u32_u24 v3, 3641, v2
        v_lshrrev_b32 v3, 16, v3
        v_mul_u32_u24 v4, 18, v3
        v_sub_u32 v4, v2, v4
        v_mul_u32_u24 v{6+r}, {RS}, v3
        v_lshl_add_u32 v{6+r}, v4, 5, v{6+r}
        v_mul_u32_u24 v{8+r}, 1152, v3
        v_lshl_add_u32 v{8+r}, v4, 4, v{8+r}""")
    a("""s_waitcnt lgkmcnt(0)
    s_barrier""")
    for r in range(2):
        if r == 1:
            if OPT["stamp"]: a("s_waitcnt vmcnt(0)")
            stamp(a, 15, SVr)
            stamp_out(a, SVr)
            a(f"""s_cmp_eq_u32 s{sW8}, 0
            s_cbranch_scc0 {K}_end""")
        b = 32 + 32 * r
        for w in range(4):
            for hf in range(2):
                a(f"ds_read_b128 {vr(b+8*w+4*hf,4)}, v{6+r} offset:{w*32*RS + 16*hf}")
        a("s_waitcnt lgkmcnt(4)")
        for i in range(8): a(f"v_add_f32 v{b+i}, v{b+i}, v{b+8+i}")
        a("s_waitcnt lgkmcnt(0)")
        for i in range(8): a(f"v_add_f32 v{b+16+i}, v{b+16+i}, v{b+24+i}")
        for i in range(8): a(f"v_add_f32 v{b+i}, v{b+i}, v{b+16+i}")
        for i in range(4): a(f"v_cvt_pk_bf16_f32 v{b+8+i}, v{b+2*i}, v{b+2*i+1}")
        a(f"buffer_store_dwordx4 {vr(b+8,4)}, v{8+r}, s[{sOut}:{sOut+3}], s{sT0} offen")

def poll(a, lbl, vP, vPa, cond, slp, x4=False):
    ld = f"buffer_load_dwordx4 {vr(vP,4)}, v{vPa}, s[{sWS}:{sWS+3}], 0 offen sc1" if x4 else f"buffer_load_dword v{vP}, v{vPa}, s[{sD}:{sD+3}], 0 offen sc1"
    a(f"""s_mov_b32 s{sSpin}, 400000
    {lbl}:
    {ld}
    s_waitcnt vmcnt(0)""")
    cond()
    a(f"""s_cbranch_scc1 {lbl}_go
    s_sub_u32 s{sSpin}, s{sSpin}, 1
    s_cmp_eq_u32 s{sSpin}, 0
    s_cbranch_scc1 {lbl}_go
    s_sleep {slp}
    s_branch {lbl}
    {lbl}_go:""")

def helper(a, K):
    stamp(a, 0, SV)
    a("s_setprio 2")
    vXs = [2, 3, 4, 5]
    vWs, vL16, vGr, vGw = 6, 7, 8, 9
    t0, t1, t2, t3 = 10, 11, 12, 13
    vGv = 14
    WMASK = sum(1 << i for i in range(40) if i % 10 != 9)
    a(f"""v_mul_u32_u24 v{t0}, 26, v0
    v_lshrrev_b32 v{t0}, 8, v{t0}
    v_mul_u32_u24 v{t1}, 10, v{t0}
    v_sub_u32 v{t1}, v0, v{t1}
    v_mul_u32_u24 v{t2}, 86, v{t1}
    v_lshrrev_b32 v{t2}, 8, v{t2}
    v_mul_u32_u24 v{vWs}, 3456, v{t0}
    v_lshl_add_u32 v{vWs}, v{t1}, 4, v{vWs}
    v_mul_u32_u24 v{t2}, {1152-48}, v{t2}
    v_add_u32 v{vWs}, v{vWs}, v{t2}
    v_lshlrev_b32 v{vL16}, 4, v0
    s_mul_i32 s{sT0}, s{sWv}, {16*3456}
    s_mul_i32 s{sT1}, s{sHd}, 36
    s_add_u32 s{sWsrc}, s{sT0}, s{sT1}
    s_mul_i32 s{sWk}, s{sRot}, {64*3456}
    s_mul_i32 s{sWm0}, s{sWv}, {16*160}
    s_lshl_b32 s{sT2}, s{sWv}, 11
    s_add_u32 s{sT2}, s{sT2}, {L_GT}""")
    def wdma(u):
        a(f"""s_add_u32 m0, s{sWm0}, {L_WR + u*640}
        s_add_u32 s{sT0}, s{sWsrc}, s{sWk}
        s_add_u32 s{sT0}, s{sT0}, {u*4*3456}
        s_mov_b32 exec_lo, {WMASK & 0xffffffff}
        s_mov_b32 exec_hi, {WMASK >> 32}
        buffer_load_dwordx4 v{vWs}, s[{sW}:{sW+3}], {'s%d' % sT0 if not OPT.get('now') else 's%d' % sWsrc} offen lds
        s_mov_b64 exec, -1""")
    def wnext():
        a(f"""s_add_u32 s{sWk}, s{sWk}, {64*3456}
        s_cmp_ge_u32 s{sWk}, {576*3456}
        s_cselect_b32 s{sWk}, 0, s{sWk}
        s_add_u32 s{sWm0}, s{sWm0}, 10240
        s_sub_u32 s{sT0}, s{sWm0}, {RW*10240}
        s_cmp_ge_u32 s{sWm0}, {RW*10240}
        s_cselect_b32 s{sWm0}, s{sT0}, s{sWm0}""")
    order = []
    a(f"""s_mov_b32 m0, s{sT2}
    s_nop 0
    buffer_load_dwordx4 v{vL16}, s[{sG}:{sG+3}], 0 offen lds
    s_mov_b64 exec, 0xff
    buffer_load_dwordx4 v{vL16}, s[{sG}:{sG+3}], 0 offen offset:1024 lds
    s_mov_b64 exec, -1""")
    order += ["G"] * 2
    for u in range(4): wdma(u)
    order += ["W0"] * 4
    wnext()
    a(f"""v_lshrrev_b32 v{t0}, 3, v0
    v_mul_u32_u24 v{t0}, 1152, v{t0}
    v_and_b32 v{t1}, 7, v0
    v_lshrrev_b32 v{t2}, 4, v0
    v_xor_b32 v{t1}, v{t1}, v{t2}
    v_lshlrev_b32 v{t1}, 4, v{t1}
    v_xor_b32 v{t2}, 64, v{t1}
    v_add_u32 v{vXs[0]}, v{t0}, v{t1}
    v_add_u32 v{vXs[1]}, v{t0}, v{t2}
    v_add_u32 v{vXs[2]}, {16*1152-2048}, v{vXs[0]}
    v_add_u32 v{vXs[3]}, {24*1152-3072}, v{vXs[1]}
    v_add_u32 v{vXs[1]}, {8*1152-1024}, v{vXs[1]}
    s_lshl_b32 s{sXb}, s{sC}, 2
    s_add_u32 s{sXb}, s{sXb}, s{sWv}
    s_mul_i32 s{sXb}, s{sXb}, {128*1152}
    s_lshl_b32 s{sKo}, s{sRot}, 7
    s_lshl_b32 s{sRing}, s{sWv}, 12
    s_add_u32 s{sRing}, s{sRing}, {L_XR}
    s_add_u32 s{sRef}, s{sXb}, s{sKo}
    s_mov_b32 s{sXm0}, s{sRing}""")
    sTo = [56, 57, 58, 59]
    for tt in range(4):
        a(f"""s_xor_b32 s{sTo[tt]}, s{sTt}, {tt}
        s_mul_i32 s{sTo[tt]}, s{sTo[tt]}, {32*1152}""")
    def xdma(tt):
        a(f"""s_mov_b32 m0, s{sXm0}
        s_add_u32 s{sT0}, s{sRef}, s{sTo[tt]}""")
        for i in range(4):
            a(f"buffer_load_dwordx4 v{vXs[i]}, s[{sX}:{sX+3}], s{sT0} offen offset:{1024*i} lds")
        a(f"""s_add_u32 s{sXm0}, s{sXm0}, 16384
        s_cmp_ge_u32 s{sXm0}, {L_XR + RX*16384}
        s_cselect_b32 s{sXm0}, s{sRing}, s{sXm0}""")
    def xnext():
        a(f"""s_add_u32 s{sKo}, s{sKo}, 128
        s_cmp_ge_u32 s{sKo}, 1152
        s_cselect_b32 s{sKo}, 0, s{sKo}
        s_add_u32 s{sRef}, s{sXb}, s{sKo}""")
    xdma(0); xdma(1)
    order += ["X0"] * 4 + ["X1"] * 4
    stamp(a, 16, SV)
    srd(a, sWo, 60, 61, 576 * 1152)
    a(f"""s_lshl_b32 s{sT0}, s{sWv}, 5
    s_add_u32 s{sT0}, s{sT0}, s{sT2}
    v_lshl_add_u32 v{vGr}, v0, 1, s{sT0}
    s_mul_i32 s{sT0}, s{sWv}, {16*160}
    v_mul_u32_u24 v{t1}, 160, v0
    v_add_u32 v{vGw}, s{sT0}, v{t1}
    v_mov_b32 v{vGv+1}, 0
    s_lshl_b32 s{sGk}, s{sRot}, 7
    v_mov_b32 v{t0}, {L_SYNC}
    v_mov_b32 v20, 0
    v_mov_b32 v21, 0
    v_mov_b32 v22, 0
    v_mov_b32 v23, 0
    ds_write_b128 v{t0}, v[20:23]""")
    def gate(slotreg=None, slot=None):
        a(f"""v_add_u32 v{t0}, s{sGk}, v{vGr}
        s_mov_b64 exec, 0xffff
        ds_read_u16 v{vGv}, v{t0}""")
        if slot is not None:
            a(f"""s_waitcnt lgkmcnt(0)
            ds_write_b64 v{vGw}, {vr(vGv,2)} offset:{L_WR + slot*10240 + 144}""")
        else:
            a(f"""v_add_u32 v{t0}, s{slotreg}, v{t1}
            s_waitcnt lgkmcnt(0)
            ds_write_b64 v{t0}, {vr(vGv,2)} offset:{L_WR + 144}""")
        a(f"""s_mov_b64 exec, -1
        s_add_u32 s{sGk}, s{sGk}, 128
        s_cmp_ge_u32 s{sGk}, 1152
        s_cselect_b32 s{sGk}, 0, s{sGk}""")
    a("s_waitcnt vmcnt(12)")
    stamp(a, 17, SV)
    for s_ in range(2): gate(slot=s_)
    a("""s_waitcnt vmcnt(4) lgkmcnt(0)
    s_barrier""")
    stamp(a, 1, SV)
    xdma(2)
    for u in range(4): wdma(u)
    wnext()
    xdma(3); xnext(); xdma(0)
    order += ["X2"] * 4 + ["W1"] * 4 + ["X3"] * 4 + ["X4"] * 4
    stamp(a, 18, SV)
    a(f"""s_mov_b32 s{sIt}, 0
    {K}_hl:""")
    for tt in range(4):
        a(f"""s_waitcnt vmcnt(@W{tt}@) lgkmcnt(0)
        s_barrier""")
        if tt == 0:
            a(f"""s_cmp_ge_u32 s{sIt}, 7
            s_cselect_b32 s{sWm0}, {OOBL}, s{sWm0}
            s_cselect_b32 s{sWsrc}, 0x40000000, s{sWsrc}""")
        if tt == 3:
            xnext()
            a(f"""s_cmp_ge_u32 s{sIt}, 7
            s_cselect_b32 s{sRef}, 0x40000000, s{sRef}
            s_cselect_b32 s{sRing}, {OOBL}, s{sRing}
            s_cselect_b32 s{sXm0}, {OOBL}, s{sXm0}""")
        if not OPT.get("skipw"): wdma(tt)
        if OPT.get("skipx"): a(f"s_mov_b32 s{sRef}, 0x40000000")
        xdma((tt + 1) & 3)
        if tt == 0: gate(slotreg=sWm0)
    wnext()
    a(f"""s_add_u32 s{sIt}, s{sIt}, 1
    s_cmp_lt_u32 s{sIt}, 9
    s_cbranch_scc1 {K}_hl""")
    need = [99] * 4
    for j in range(36):
        req = [f"X{j+1}"]
        if j % 4 == 3: req.append(f"W{j//4+1}")
        last = max(i for i, o in enumerate(order) if o in req)
        need[j % 4] = min(need[j % 4], len(order) - 1 - last)
        order += ([f"W{j//4+2}"] if not OPT.get("skipw") else []) + [f"X{j+RX}"] * 4
    a.l = [x.replace("@W0@", str(need[0])).replace("@W1@", str(need[1])).replace("@W2@", str(need[2])).replace("@W3@", str(need[3])) for x in a.l]
    stamp(a, 2, SV)
    vWos = 6
    a(f"""v_mul_u32_u24 v{t0}, 57, v0
    v_lshrrev_b32 v{t0}, 10, v{t0}
    v_mul_u32_u24 v{t1}, 18, v{t0}
    v_sub_u32 v{t1}, v0, v{t1}
    v_lshlrev_b32 v{t1}, 4, v{t1}
    v_mul_u32_u24 v{vWos}, 1152, v{t0}
    v_add_u32 v{vWos}, v{vWos}, v{t1}
    s_mul_i32 s{sT0}, s{sHd}, {18*1152}
    s_mul_i32 s{sT1}, s{sC}, 288
    s_add_u32 s{sT0}, s{sT0}, s{sT1}
    s_mul_i32 s{sT1}, s{sWv}, {3*1152}
    s_add_u32 s{sT0}, s{sT0}, s{sT1}
    s_mul_i32 s{sT1}, s{sWv}, 864
    s_add_u32 m0, s{sT1}, {L_WO}
    s_add_u32 s{sT2}, s{sT0}, {12*1152}
    s_mov_b32 exec_hi, 0x003fffff
    buffer_load_dwordx4 v{vWos}, s[{sWo}:{sWo+3}], s{sT0} offen lds
    s_add_u32 m0, s{sT1}, {L_WO + 4*864}
    s_nop 0
    buffer_load_dwordx4 v{vWos}, s[{sWo}:{sWo+3}], s{sT2} offen lds
    s_mov_b64 exec, -1
    s_mul_i32 s{sT0}, s{sWv}, {BLK}
    v_add_u32 v{t0}, s{sT0}, v{vL16}
    s_lshl_b32 s{sT1}, s{sC}, 2
    s_add_u32 s{sT1}, s{sT1}, s{sWv}
    s_mul_i32 s{sT1}, s{sT1}, {BLK}
    s_add_u32 s{sT1}, s{sT1}, s{sKVg}
    s_barrier""")
    stamp(a, 3, SV)
    for i in range(10): a(f"ds_read_b128 {vr(32+4*i,4)}, v{t0} offset:{1024*i}")
    for i in range(10):
        if i == 9: a("s_mov_b64 exec, 0xffff")
        if i % 4 == 0 and i: a(f"s_add_u32 s{sT1}, s{sT1}, 4096")
        a(f"s_waitcnt lgkmcnt({9-i})")
        a(f"buffer_store_dwordx4 {vr(32+4*i,4)}, v{vL16}, s[{sWS}:{sWS+3}], s{sT1} offen offset:{1024*(i%4)} sc1")
    vP, vPa, vSy, vOne, vFa = 20, 17, 18, 19, 16
    def arrive(word):
        a(f"""s_mov_b64 exec, 1
        s_waitcnt vmcnt(0)
        ds_add_rtn_u32 v{vP}, v{vSy}, v{vOne} offset:{4*word}
        s_waitcnt lgkmcnt(0)
        v_readfirstlane_b32 s{sT1}, v{vP}
        s_mov_b64 exec, -1
        s_cmp_eq_u32 s{sT1}, 3""")
    def lds_wait(lbl, word):
        a(f"""s_mov_b32 s{sSpin}, 4000000
        {lbl}:
        ds_read_b32 v{vP}, v{vSy} offset:{4*word}
        s_waitcnt lgkmcnt(0)
        v_readfirstlane_b32 s{sT1}, v{vP}
        s_cmp_lg_u32 s{sT1}, 0
        s_cbranch_scc1 {lbl}_go
        s_sub_u32 s{sSpin}, s{sSpin}, 1
        s_cmp_eq_u32 s{sSpin}, 0
        s_cbranch_scc1 {lbl}_go
        s_sleep 2
        s_branch {lbl}
        {lbl}_go:""")
    a(f"""s_mov_b64 exec, -1
    s_lshl_b32 s{sT0}, s{sBH}, 2
    v_mov_b32 v{vPa}, s{sT0}
    s_lshl_b32 s{sT0}, s{sBH}, 7
    s_add_u32 s{sT0}, s{sT0}, {WS_F}
    v_mov_b32 v{vFa}, s{sT0}
    v_mov_b32 v{vSy}, {L_SYNC}
    v_mov_b32 v{vOne}, 1""")
    arrive(0)
    a(f"""s_cbranch_scc0 {K}_kw
    s_mov_b64 exec, 1
    s_lshl_b32 s{sT0}, s{sC}, 2
    buffer_store_dword v{vOne}, v{vFa}, s[{sWS}:{sWS+3}], s{sT0} offen sc1""")
    stamp(a, 4, SV)
    def rst_ok():
        a(f"""v_readfirstlane_b32 s{sT0}, v{vP}
        s_and_b32 s{sT0}, s{sT0}, 0xff
        s_cmp_eq_u32 s{sT0}, 4""")
    poll(a, f"{K}_pl0", vP, vPa, rst_ok, 8)
    def kv_ready():
        a(f"""v_and_b32 v{vP}, v{vP}, v{vP+1}
        v_and_b32 v{vP+2}, v{vP+2}, v{vP+3}
        v_and_b32 v{vP}, v{vP}, v{vP+2}
        s_nop 0
        v_readfirstlane_b32 s{sT0}, v{vP}
        s_cmp_eq_u32 s{sT0}, 1""")
    poll(a, f"{K}_pl1", vP, vFa, kv_ready, 2, x4=True)
    a(f"""ds_write_b32 v{vSy}, v{vOne} offset:8
    s_mov_b64 exec, -1
    s_branch {K}_kgo
    {K}_kw:""")
    stamp(a, 4, SV)
    lds_wait(f"{K}_lw1", 2)
    a(f"{K}_kgo:")
    stamp(a, 5, SV)
    a(f"""s_add_u32 s{sT0}, s{sC}, 1
    s_lshl_b32 s{sT1}, s{sWv}, 10""")
    for j in range(3):
        a(f"""s_and_b32 s{sT0}, s{sT0}, 3
        s_mul_i32 s{sT2}, s{sT0}, {4*BLK}
        s_add_u32 s{sT2}, s{sT2}, s{sKVg}
        s_add_u32 s{sT2}, s{sT2}, s{sT1}
        s_add_u32 s{sT0}, s{sT0}, 1""")
        for i in range(10):
            if i == 9:
                a(f"""s_cmp_eq_u32 s{sWv}, 0
                s_cbranch_scc0 {K}_h2s{j}""")
            a(f"""s_add_u32 m0, s{sT1}, {4*BLK*(j+1) + 4096*i}
            s_add_u32 s{sT3}, s{sT2}, {4096*i}
            buffer_load_dwordx4 v{vL16}, s[{sWS}:{sWS+3}], s{sT3} offen sc1 lds""")
        a(f"{K}_h2s{j}:")
    a("s_waitcnt vmcnt(0)")
    stamp(a, 6, SV)
    a("s_barrier")
    stamp(a, 7, SV)
    a(f"""v_bfe_u32 v{t0}, v0, 2, 3
    v_mul_u32_u24 v{t0}, 288, v{t0}
    v_and_b32 v{t1}, 3, v0
    v_lshlrev_b32 v{t1}, 3, v{t1}
    v_add_u32 v{t1}, {L_WO}, v{t1}
    v_and_b32 v{t2}, 32, v0
    v_add3_u32 v{t0}, v{t0}, v{t1}, v{t2}
    s_lshl_b32 s{sT0}, s{sWv}, 6
    v_add_u32 v{t2}, s{sT0}, v{t0}
    ds_read_b64_tr_b16 {vr(64,2)}, v{t2}
    ds_read_b64_tr_b16 {vr(66,2)}, v{t2} offset:2304
    ds_read_b64_tr_b16 {vr(68,2)}, v{t0} offset:256
    ds_read_b64_tr_b16 {vr(70,2)}, v{t0} offset:{256+2304}
    v_bfe_u32 v{t0}, v0, 2, 2
    v_mul_u32_u24 v{t0}, 288, v{t0}
    v_lshrrev_b32 v{t2}, 4, v0
    v_lshlrev_b32 v{t2}, 5, v{t2}
    v_add3_u32 v{t0}, v{t0}, v{t1}, v{t2}
    s_lshl_b32 s{sT0}, s{sWv}, 7
    v_add_u32 v{t0}, s{sT0}, v{t0}
    ds_read_b64_tr_b16 {vr(72,2)}, v{t0} offset:{16*288-128}
    s_lshl_b32 s{sT0}, s{sC}, 6
    s_add_u32 s{sT0}, s{sT0}, s{sBH}
    s_mul_i32 s{sT0}, s{sT0}, 4608
    s_add_u32 s{sT0}, s{sT0}, {WS_WOM}
    s_lshl_b32 s{sT1}, s{sWv}, 10
    s_add_u32 s{sT1}, s{sT1}, s{sT0}
    s_lshl_b32 s{sT2}, s{sC}, 4
    s_lshr_b32 s{sT3}, s{sBH}, 2
    s_add_u32 s{sT2}, s{sT2}, s{sT3}
    s_mul_i32 s{sT2}, s{sT2}, 2304
    s_and_b32 s{sT3}, s{sBH}, 3
    s_lshl_b32 s{sT3}, s{sT3}, 2
    s_add_u32 s{sT2}, s{sT2}, s{sT3}
    s_lshl_b32 s{sT3}, s{sWv}, 10
    s_add_u32 s{sT2}, s{sT2}, s{sT3}
    s_add_u32 s{sT2}, s{sT2}, {WS_WOT - 1024}
    s_waitcnt lgkmcnt(0)
    buffer_store_dwordx4 {vr(64,4)}, v{vL16}, s[{sWS}:{sWS+3}], s{sT1} offen sc1
    s_cmp_eq_u32 s{sWv}, 0
    s_cbranch_scc0 {K}_wo_tail
    s_mov_b32 exec_hi, 0
    s_add_u32 s{sT3}, s{sT0}, 4096
    buffer_store_dwordx4 {vr(68,4)}, v{vL16}, s[{sWS}:{sWS+3}], s{sT3} offen sc1
    s_branch {K}_wo_done
    {K}_wo_tail:
    s_cmp_eq_u32 s{sWv}, 3
    s_cselect_b32 exec_lo, 0xffff, -1
    s_cselect_b32 exec_hi, 0, -1
    buffer_store_dword v72, v{vL16}, s[{sWS}:{sWS+3}], s{sT2} offen sc1
    {K}_wo_done:
    s_mov_b64 exec, -1""")
    a(f"""v_mov_b32 v32, {SENT}
    v_mov_b32 v33, {SENT}
    v_mov_b32 v34, {SENT}
    v_mov_b32 v35, {SENT}
    s_lshl_b32 s{sT1}, s{sC}, 2
    s_add_u32 s{sT1}, s{sT1}, s{sWv}
    s_lshl_b32 s{sT1}, s{sT1}, 8
    s_add_u32 s{sT1}, s{sT1}, s{sBH}
    s_mul_i32 s{sT1}, s{sT1}, 1152
    s_add_u32 s{sT1}, s{sT1}, {WS_O}""")
    for x in range(4):
        a(f"""buffer_store_dwordx4 v[32:35], v{vL16}, s[{sWS}:{sWS+3}], s{sT1} offen sc1
        s_mov_b64 exec, 0xff
        buffer_store_dwordx4 v[32:35], v{vL16}, s[{sWS}:{sWS+3}], s{sT1} offen offset:1024 sc1
        s_mov_b64 exec, -1
        s_add_u32 s{sT1}, s{sT1}, {64*1152}""")
    arrive(1)
    a(f"""s_cbranch_scc0 {K}_sg2
    s_mov_b64 exec, 1
    v_mov_b32 v{vP}, 0x100
    buffer_atomic_add v{vP}, v{vPa}, s[{sD}:{sD+3}], 0 offen
    s_mov_b64 exec, -1
    {K}_sg2:""")
    p3_scal(a)
    vOm, vOt, vWm, vWt, vRd, vA4 = 2, 3, 4, 5, 6, 7
    p3_addr(a, vOm, vOt, vWm, vWt, vRd, t0, t1, t2)
    a(f"""v_lshlrev_b32 v{vA4}, 2, v0
    s_barrier""")
    stamp(a, 12, SV)
    a(f"""s_cmp_eq_u32 s{sWv}, 0
    s_cbranch_scc0 {K}_gw""")
    def all_init():
        a(f"""v_bfe_u32 v{vP}, v{vP}, 8, 8
        v_cmp_eq_u32 vcc, 4, v{vP}
        s_nop 1
        s_cmp_eq_u64 vcc, -1""")
    poll(a, f"{K}_pl2", vP, vA4, all_init, 32)
    a(f"""ds_write_b32 v{vSy}, v{vOne} offset:12
    s_branch {K}_ggo
    {K}_gw:""")
    lds_wait(f"{K}_lw2", 3)
    a(f"{K}_ggo:")
    HC = [0, 1, 2, 3, 4]
    HWB, HAC, HOF = 8, 188, 228
    p3_wo_loads(a, HC, HWB, vWm, vWt)
    stamp(a, 8, SV)
    a("s_barrier")
    a("s_barrier")
    stamp(a, 10, SV)
    p3_compute(a, "h3", HC, HWB, HAC, HOF, 3, vOm, vOt, vRd)
    stamp(a, 11, SV)
    if OPT["stamp"]:
        a(f"v_mov_b32 v30, v{SV}\nv_mov_b32 v31, v{SV+1}")
    a(f"s_branch {K}_final")

def compute(a, K):
    stamp(a, 0, 30)
    vXr = [2, 3]
    vWa, vWm = 4, 5
    t0, t1, t2, t3, t4, t5 = 14, 15, 16, 17, 18, 19
    WF = 32
    XF = [96, 112]
    ACC = 128
    a(f"""v_and_b32 v{t0}, 15, v0
    v_lshrrev_b32 v{t1}, 4, v0
    v_bfe_u32 v{t2}, v0, 1, 3
    v_xor_b32 v{t2}, v{t2}, v{t1}
    v_lshlrev_b32 v{t2}, 4, v{t2}
    v_lshlrev_b32 v{t3}, 7, v{t0}
    s_lshl_b32 s{sT0}, s{sWv}, 12
    s_add_u32 s{sT0}, s{sT0}, {L_XR}
    v_add_u32 v{t3}, s{sT0}, v{t3}
    v_add_u32 v{vXr[0]}, v{t3}, v{t2}
    v_xor_b32 v{t2}, 64, v{t2}
    v_add_u32 v{vXr[1]}, v{t3}, v{t2}
    v_bfe_u32 v{t2}, v0, 2, 2
    v_lshl_add_u32 v{t2}, v{t1}, 3, v{t2}
    v_mul_u32_u24 v{t2}, 160, v{t2}
    v_and_b32 v{t3}, 3, v0
    v_lshlrev_b32 v{t3}, 3, v{t3}
    v_add_u32 v{vWa}, v{t2}, v{t3}
    s_mov_b32 s{sT0}, {128 | (80 << 8) | (32 << 16) | (144 << 24)}
    v_lshrrev_b32 v{t3}, v{t3}, s{sT0}
    v_and_b32 v{t3}, 0xff, v{t3}
    v_add_u32 v{vWm}, v{t2}, v{t3}""")
    for i in range(128): a(f"v_mov_b32 v{ACC+i}, 0")
    a(f"""s_cmp_eq_u32 s{sWv}, 0
    s_cselect_b32 s{sCnt}, 5, 100
    s_cbranch_scc0 {K}_norst
    s_lshl_b32 s{sT0}, s{sBH}, 7
    s_lshl_b32 s{sT1}, s{sC}, 2
    s_add_u32 s{sT0}, s{sT0}, s{sT1}
    s_add_u32 s{sT0}, s{sT0}, {WS_F}
    s_mov_b64 exec, 1
    buffer_store_dword v{ACC}, v{ACC}, s[{sWS}:{sWS+3}], s{sT0} offen sc1
    s_mov_b64 exec, -1
    {K}_norst:""")
    vKa, vTa, vVa, vInc, vIdx = 6, 7, 8, 9, 10
    vKw, vQw, vVw, vM0, vM1, vDs, vDt, vMul, vSq = 11, 12, 13, 20, 21, 22, 23, 24, 25
    sBlk, sScr = sXb, sRing
    a(f"""s_mul_i32 s{sBlk}, s{sWv}, {BLK}
    s_lshl_b32 s{sScr}, s{sWv}, 12
    s_add_u32 s{sScr}, s{sScr}, {L_XR + 2*16384}
    v_lshrrev_b32 v{t2}, 2, v{t0}
    v_and_b32 v{t3}, 3, v0
    v_lshl_add_u32 v{t4}, v{t2}, 3, v{t3}
    v_lshrrev_b32 v{t5}, 5, v0
    v_lshlrev_b32 v{t5}, 9, v{t5}
    v_and_b32 v{vQw}, 16, v0
    v_lshrrev_b32 v{vQw}, 1, v{vQw}
    v_add_u32 v{t5}, v{t5}, v{vQw}
    v_lshl_add_u32 v{vKw}, v{t4}, 4, v{t5}
    v_add_u32 v{vKw}, s{sBlk}, v{vKw}
    v_lshl_add_u32 v{vQw}, v{t0}, 4, v{t5}
    v_add_u32 v{vQw}, s{sScr}, v{vQw}
    v_mul_u32_u24 v{vVw}, 304, v{t1}
    v_lshl_add_u32 v{vVw}, v{t0}, 4, v{vVw}
    v_add_u32 v{vVw}, s{sBlk}, v{vVw}""")
    a(f"""v_mul_u32_u24 v{vM0}, 304, v{t2}
    v_lshl_add_u32 v{vM0}, v{t3}, 1, v{vM0}
    s_add_u32 s{sT0}, s{sBlk}, {4608+256}
    v_add_u32 v{vM0}, s{sT0}, v{vM0}
    s_add_u32 s{sT0}, s{sBlk}, 4096
    s_add_u32 s{sT1}, s{sScr}, {16384-1024}
    v_lshlrev_b32 v{t5}, 9, v{t1}
    v_add_u32 v{t5}, s{sT1}, v{t5}
    v_mov_b32 v{vM1}, s{sT0}
    v_cmp_eq_u32 vcc, 1, v{t1}
    v_mov_b32 v{vDs}, 32
    v_mov_b32 v{vDt}, {(2-32) & 0xffffffff}
    v_cndmask_b32 v{t5}, v{t5}, v{vM1}, vcc
    v_lshl_add_u32 v{t5}, v{t4}, 3, v{t5}
    v_cmp_eq_u32 vcc, 0, v{t1}
    v_mov_b32 v{t2}, 256
    v_mov_b32 v{t3}, {1216-8}
    v_cndmask_b32 v{vM0}, v{t5}, v{vM0}, vcc
    v_cndmask_b32 v{vDs}, v{vDs}, 8, vcc
    v_cndmask_b32 v{vDt}, v{vDt}, v{t3}, vcc
    v_cndmask_b32 v{t2}, v{t2}, 16, vcc
    v_add_u32 v{vM1}, v{vM0}, v{t2}
    v_cmp_eq_u32 vcc, 2, v{t1}
    v_mov_b32 v{vMul}, 1.0
    v_mov_b32 v{t2}, {f32(CSCALE)}
    v_cndmask_b32 v{vMul}, v{vMul}, v{t2}, vcc""")
    a(f"""v_and_b32 v{t2}, 16, v0
    v_lshrrev_b32 v{t2}, 2, v{t2}
    v_add_u32 v{t2}, v{t2}, v{t4}
    v_lshlrev_b32 v{vSq}, 3, v{t2}
    s_add_u32 s{sT1}, s{sScr}, 16384
    v_add_u32 v{vSq}, s{sT1}, v{vSq}
    v_and_b32 v{t0}, 31, v0
    v_lshrrev_b32 v{t1}, 5, v0
    v_mul_u32_u24 v{t3}, 304, v{t1}
    v_lshl_add_u32 v{t3}, v{t0}, 4, v{t3}
    v_mov_b32 v{vVa}, {OOBL}
    v_cmp_gt_u32 vcc, 19, v{t0}
    v_mov_b32 v{vInc}, 0
    v_mov_b32 v{t4}, {BLK}
    v_cndmask_b32 v{vVa}, v{vVa}, v{t3}, vcc
    v_cndmask_b32 v{vInc}, v{vInc}, v{t4}, vcc
    v_lshlrev_b32 v{vKa}, 4, v0
    v_lshlrev_b32 v{vTa}, 3, v0
    v_mov_b32 v{vIdx}, 0xdddddddd
    v_lshl_add_u32 v{t5}, v{t1}, 8, v{vSq}
    s_mov_b32 s{sWsrc}, 0
    s_mov_b32 s{sXm0}, 0""")
    vSqh = t5
    p3_scal(a)
    coff = (48, 0, 96, 0)
    def wfrag(k2):
        r = []
        for ct in range(4):
            va = vWm if ct == 3 else vWa
            for hf in range(2):
                r.append(f"ds_read_b64_tr_b16 {vr(WF+16*k2+4*ct+2*hf,2)}, v{va} offset:{L_WR + (32*k2+4*hf)*160 + coff[ct]}")
        return r
    def xread(buf):
        r = []
        for k2 in range(2):
            for s in range(2):
                r.append(f"ds_read_b128 {vr(XF[buf]+8*k2+4*s,4)}, v{vXr[k2]} offset:{2048*s}")
        return r
    xadv = [f"s_add_u32 s{sXm0}, s{sXm0}, 1", f"s_cmp_eq_u32 s{sXm0}, {RX}", f"s_cselect_b32 s{sXm0}, 0, s{sXm0}",
            f"s_cselect_b32 s{sT1}, s{sWk}, s{sWcnt}",
            f"v_add_u32 v{vXr[0]}, s{sT1}, v{vXr[0]}", f"v_add_u32 v{vXr[1]}, s{sT1}, v{vXr[1]}"]
    wadv = [f"s_add_u32 s{sWsrc}, s{sWsrc}, 1", f"s_cmp_eq_u32 s{sWsrc}, {RW}", f"s_cselect_b32 s{sWsrc}, 0, s{sWsrc}",
            f"s_cselect_b32 s{sT2}, s{sWm0}, s{sGk}",
            f"v_add_u32 v{vWa}, s{sT2}, v{vWa}", f"v_add_u32 v{vWm}, s{sT2}, v{vWm}"]
    a(f"""s_mov_b32 s{sWk}, {(-(RX-1)*16384) & 0xffffffff}
    s_mov_b32 s{sWcnt}, 16384
    s_mov_b32 s{sWm0}, {(-(RW-1)*10240) & 0xffffffff}
    s_mov_b32 s{sGk}, 10240
    s_barrier""")
    stamp(a, 1, 30)
    for m in xread(0) + xadv + wfrag(0) + wfrag(1): a(m)
    a(f"""s_mov_b32 s{sIt}, 9
    s_waitcnt lgkmcnt(0)
    {K}_p1:""")
    for tt in range(4):
        cur = XF[tt & 1]
        mf = []
        for k2 in range(2):
            for ct in range(4):
                for s in range(2):
                    d = ACC + 32 * tt + 16 * s + 4 * ct
                    w_, x_ = vr(WF + 16 * k2 + 4 * ct, 4), vr(cur + 8 * k2 + 4 * s, 4)
                    A_, B_ = (x_, w_) if ct == 2 else (w_, x_)
                    mf.append(f"v_mfma_f32_16x16x32_bf16 {vr(d,4)}, {A_}, {B_}, {vr(d,4)}")
        fill = {i: [] for i in range(-1, 16)}
        xr = xread((tt + 1) & 1)
        if tt == 0:
            fill[-1].append("s_waitcnt lgkmcnt(8)")
            for i in range(4): fill[i].append(xr[i])
            for i in range(6): fill[8 + i].append(xadv[i])
            fill[7].append("s_waitcnt lgkmcnt(4)")
        elif tt == 3:
            for i in range(4): fill[-1 + (i + 1) // 2].append(xr[i])
            w0, w1 = wfrag(0), wfrag(1)
            for ct in range(4):
                fill[2 * ct + 1] += [w0[2 * ct]]; fill[2 * ct + 2] += [w0[2 * ct + 1]]
                fill[8 + 2 * ct + 1] += [w1[2 * ct]]; fill[min(15, 8 + 2 * ct + 2)] += [w1[2 * ct + 1]]
            for i in range(6): fill[3 + i].append(xadv[i])
            fill[10].append(f"s_sub_u32 s{sIt}, s{sIt}, 1")
        else:
            for i in range(4): fill[i].append(xr[i])
            for i in range(6): fill[4 + i].append(xadv[i])
            if tt == 2:
                for i in range(6): fill[10 + i].append(wadv[i])
        a("s_barrier")
        for m in fill[-1]: a(m)
        for i in range(16):
            if not OPT.get("nomf"): a(mf[i])
            for m in fill[i]: a(m)
        if tt == 3:
            a(f"""s_waitcnt lgkmcnt(15)
            s_cmp_eq_u32 s{sIt}, s{sCnt}
            s_cbranch_scc1 {K}_rst
            {K}_rst_ret:
            s_cmp_lg_u32 s{sIt}, 0""")
        else:
            a("s_waitcnt lgkmcnt(0)")
    a(f"s_cbranch_scc1 {K}_p1")
    stamp(a, 2, 30)
    QM, QT = 32, 48
    KF, V0, V1, KT = [80, 84], [88, 92], [96, 100], 104
    vGl = 26
    TP = 108
    a(f"""s_mov_b32 s{sT3}, {f32(CSCALE)}
    v_mov_b32 v{TP+16}, 0x3f803f80
    v_mov_b32 v{TP+17}, 0x3f803f80
    v_mov_b32 v{TP+18}, 0x3f803f80
    v_mov_b32 v{TP+19}, 0x3f803f80
    v_mul_u32_u24 v{t0}, 304, v0
    v_add_u32 v{t0}, s{sBlk}, v{t0}
    s_waitcnt lgkmcnt(0)
    s_mov_b64 exec, 0xffff
    ds_write_b128 v{t0}, {vr(TP+16,4)} offset:{4608+288}
    s_mov_b64 exec, -1""")
    for tt in range(4):
        tp = (TP, 80)[tt % 2]
        for s in range(2):
            b = ACC + 32 * tt + 16 * s
            k_, q_, m_ = tp + 2 * s, tp + 4 + 2 * s, tp + 12 + s
            a(f"""v_cvt_pk_bf16_f32 v{k_}, v{b}, v{b+1}
            v_cvt_pk_bf16_f32 v{k_+1}, v{b+2}, v{b+3}
            v_mul_f32 v{b+4}, s{sT3}, v{b+4}
            v_mul_f32 v{b+5}, s{sT3}, v{b+5}
            v_mul_f32 v{b+6}, s{sT3}, v{b+6}
            v_mul_f32 v{b+7}, s{sT3}, v{b+7}
            ds_write_b64 v{vKw}, {vr(k_,2)} offset:{tt*1024 + s*64}
            v_cvt_pk_bf16_f32 v{q_}, v{b+4}, v{b+5}
            v_cvt_pk_bf16_f32 v{q_+1}, v{b+6}, v{b+7}
            v_mul_f32 v{b+12}, v{vMul}, v{b+12}
            v_mul_f32 v{b+13}, v{vMul}, v{b+13}
            ds_write_b64 v{vQw}, {vr(q_,2)} offset:{tt*1024 + s*256}
            v_cvt_pk_bf16_f32 v{m_}, v{b+12}, v{b+13}
            v_cvt_pk_bf16_f32 v{tp+8+2*s}, v{b+8}, v{b+9}
            v_cvt_pk_bf16_f32 v{tp+9+2*s}, v{b+10}, v{b+11}
            ds_write_b16 v{vM0}, v{m_}
            ds_write_b16_d16_hi v{vM1}, v{m_}""")
            dl = vDs if s == 0 else vDt
            if (tt, s) != (3, 1):
                a(f"""v_add_u32 v{vM0}, v{dl}, v{vM0}
                v_add_u32 v{vM1}, v{dl}, v{vM1}""")
        a(f"ds_write_b128 v{vVw}, {vr(tp+8,4)} offset:{4608 + tt*1216}")
    S = [128, 144, 160, 176]
    O = [192, 208, 224, 240]
    a(f"""v_add_u32 v{t0}, s{sScr}, v{vKa}
    s_waitcnt lgkmcnt(0)""")
    for x in range(4): a(f"ds_read_b128 {vr(QM+4*x,4)}, v{t0} offset:{1024*x}")
    a(f"""ds_read_b64 {vr(TP,2)}, v{vSqh}
    ds_read_b64 {vr(TP+2,2)}, v{vSq} offset:512""")
    for i in range(64): a(f"v_mov_b32 v{O[0]+i}, 0")
    a("""s_waitcnt lgkmcnt(0)
    s_barrier""")
    stamp(a, 3, 30)
    def ldK(t, buf): return f"ds_read_b128 {vr(KF[buf],4)}, v{vKa} offset:{(t//4)*BLK + (t%4)*1024}"
    def ldV(t, half, buf): return f"ds_read_b128 {vr((V0,V1)[half][buf],4)}, v{vVa} offset:{(t//4)*BLK + 4608 + (t%4)*1216 + 608*half}"
    def ldT(b): return f"ds_read_b64 {vr(KT,2)}, v{vTa} offset:{b*BLK + 4096}"
    def QKM(t, x, s, c="0"): return f"v_mfma_f32_32x32x16_bf16 {vr(s,16)}, {vr(KF[t%2],4)}, {vr(QM+4*x,4)}, {c}"
    def QKT(t, x, s): return f"v_mfma_f32_32x32x8_bf16 {vr(s,16)}, {vr(KT,2)}, {vr(QT+8*x+2*(t%4),2)}, {vr(s,16)}"
    def PV(half, t, x, s): return f"v_smfmac_f32_32x32x32_bf16 {vr(O[x],16)}, {vr((V0,V1)[half][t%2],4)}, {vr(s+8*half,8)}, v{vIdx}"
    a(ldK(0, 0)); a(ldT(0)); a(ldV(0, 0, 0)); a(ldV(0, 1, 0))
    for x in range(4):
        q, r = QT + 8 * x, TP + (x >> 1)
        if x % 2 == 0:
            a(f"""v_and_b32 v{q}, 0xffff, v{r}
            v_lshlrev_b32 v{q+2}, 16, v{r}
            v_lshlrev_b32 v{vGl+x}, 16, v{r+2}""")
        else:
            a(f"""v_lshrrev_b32 v{q}, 16, v{r}
            v_and_b32 v{q+2}, 0xffff0000, v{r}
            v_and_b32 v{vGl+x}, 0xffff0000, v{r+2}""")
        a(f"""v_mov_b32 v{q+1}, 0
        v_mov_b32 v{q+3}, 0
        v_mov_b32 v{q+4}, 0
        v_mov_b32 v{q+5}, v{q}
        v_mov_b32 v{q+6}, 0
        v_mov_b32 v{q+7}, v{q+2}""")
    for i in range(8): a(f"v_mov_b32 v{S[3]+8+i}, 0")
    for i in range(4): a(f"v_mov_b32 v{V1[1]+i}, 0")
    a(f"""s_mov_b32 s{sIt}, 0
    s_mov_b32 s{sCnt}, {(1<<3)|(1<<8)|(1<<14)}
    s_waitcnt lgkmcnt(0)""")
    a(QKM(0, 0, S[0])); a(QKT(0, 0, S[0])); a(QKM(0, 1, S[1])); a(QKT(0, 1, S[1]))
    a("s_nop 9")
    a(".p2align 6")
    a(f"{K}_att:")
    pos = (2, 6, 10, 14)
    for u in range(16):
        t, x = divmod(u, 4)
        tn, xn = divmod(u + 2, 4)
        tp_, xp = divmod(u - 1, 4)
        s, sn, sp = S[u % 4], S[(u + 2) % 4], S[(u - 1) % 4]
        ins = {i: [] for i in range(17)}
        ins[pos[0]].append(PV(1, tp_, xp, sp))
        ins[pos[1]].append(QKM(tn, xn, sn))
        ins[pos[2]].append(QKT(tn, xn, sn))
        ins[pos[3]].append(PV(0, t, x, s))
        if x == 0:
            ins[pos[0]].append(ldV(t + 1, 1, (t + 1) % 2))
            ins[pos[1]].append(ldK(t + 1, (t + 1) % 2))
            ins[pos[3]].append(ldV(t + 1, 0, (t + 1) % 2))
        if u == 13: ins[pos[2]].append(ldT(1))
        if x == 2: ins[pos[1]].insert(0, "s_waitcnt lgkmcnt(0)")
        if u == 11:
            ins[pos[3]] += [f"s_bitcmp1_b32 s{sCnt}, s{sIt}", f"s_cbranch_scc1 {K}_hook", f"{K}_hook_ret:"]
        if u == 15:
            ins[pos[0]].append(f"v_add_u32 v{vKa}, {BLK}, v{vKa}")
            ins[pos[1]].append(f"v_add_u32 v{vTa}, {BLK}, v{vTa}")
            ins[pos[2]].append(f"v_add_u32 v{vVa}, v{vInc}, v{vVa}")
            ins[pos[3]] += [f"s_add_u32 s{sIt}, s{sIt}, 1", f"s_cmp_lt_u32 s{sIt}, 16"]
        for i in range(16):
            for m in ins[i]: a(m)
            a(f"v_exp_f32 v{s+i}, v{s+i}")
    a(f"s_cbranch_scc1 {K}_att")
    a("s_nop 1")
    a(PV(1, 3, 3, S[3]))
    stamp(a, 8, 30)
    a(f"""s_cmp_ge_u32 s{sBH}, 32
    s_mov_b32 s{sT0}, {f32(-LOG2E)}
    s_cselect_b32 s{sT0}, {f32(LOG2E)}, s{sT0}""")
    for x in range(4): a(f"v_mul_f32 v{vGl+x}, s{sT0}, v{vGl+x}")
    for x in range(4): a(f"v_exp_f32 v{vGl+x}, v{vGl+x}")
    a(f"""s_lshl_b32 s{sT1}, s{sC}, 2
    s_add_u32 s{sT1}, s{sT1}, s{sWv}
    s_lshl_b32 s{sT1}, s{sT1}, 8
    s_add_u32 s{sT1}, s{sT1}, s{sBH}
    s_mul_i32 s{sT1}, s{sT1}, 1152
    s_add_u32 s{sRef}, s{sT1}, {WS_O}""")
    for x in range(4): a(f"v_add_f32 v{vGl+x}, 1.0, v{vGl+x}")
    a(f"""v_lshlrev_b32 v{t0}, 4, v0
    v_lshlrev_b32 v{t1}, 2, v0
    s_mov_b32 s{sT2}, {f32(2.0**-40)}
    s_mov_b32 s{sKo}, {f32(2.0**40) if not OPT['force_fb'] else f32(2.0**-39)}
    s_waitcnt lgkmcnt(0)""")
    for x in range(4):
        o = O[x]
        a(f"""v_cmp_le_f32 vcc, s{sT2}, v{o+10}
        v_cmp_ge_f32 s[{sEx}:{sEx+1}], s{sKo}, v{o+10}
        s_nop 1
        s_and_b32 vcc_lo, vcc_lo, s{sEx}
        s_cmp_eq_u32 vcc_lo, -1
        s_cbranch_scc0 {K}_fb{x}
        {K}_fbret{x}:
        v_mov_b32 v{t2}, v{o+10}
        s_nop 1
        v_permlane32_swap_b32 v{o+10}, v{t2}
        s_nop 1
        v_mul_f32 v{t2}, v{o+10}, v{vGl+x}
        v_rcp_f32 v{t2}, v{t2}
        s_nop 0""")
        for i in range(10): a(f"v_mul_f32 v{o+i}, v{t2}, v{o+i}")
        for i in range(4): a(f"v_cvt_pk_bf16_f32 v{o+12+i}, v{o+2*i}, v{o+2*i+1}")
        a(f"""v_cvt_pk_bf16_f32 v{o+11}, v{o+8}, v{o+9}
        s_xor_b32 s{sT1}, s{sTt}, {x}
        s_mul_i32 s{sT1}, s{sT1}, {64*1152}
        s_add_u32 s{sT1}, s{sT1}, s{sRef}
        buffer_store_dwordx4 {vr(o+12,4)}, v{t0}, s[{sWS}:{sWS+3}], s{sT1} offen sc1
        s_mov_b32 exec_hi, 0
        buffer_store_dword v{o+11}, v{t1}, s[{sWS}:{sWS+3}], s{sT1} offen offset:1024 sc1
        s_mov_b64 exec, -1""")
    vOm, vOt, vWm3, vWt, vRd = 2, 3, 4, 5, 6
    p3_addr(a, vOm, vOt, vWm3, vWt, vRd, t0, t1, t2)
    CC = [5, 6, 7, 8]
    CWB, COF, CAC = 32, 176, 0
    stamp(a, 9, 30)
    a("s_barrier")
    p3_wo_loads(a, CC, CWB, vWm3, vWt)
    stamp(a, 10, 30)
    p3_compute(a, "c3", CC, CWB, 224, COF, 6, vOm, vOt, vRd)
    stamp(a, 11, 30)
    a(f"{K}_final:")
    final_reduce(a, K, 30)
    a(f"{K}_end:")
    a("s_endpgm")
    a(f"""{K}_rst:
    s_lshl_b32 s{sT0}, s{sBH}, 2
    v_mov_b32 v28, s{sT0}
    v_mov_b32 v29, 1
    s_mov_b64 exec, 1
    s_waitcnt vmcnt(0)
    buffer_atomic_add v29, v28, s[{sD}:{sD+3}], 0 offen
    s_mov_b64 exec, -1
    s_branch {K}_rst_ret""")
    a(f"{K}_hook:")
    if OPT["stamp"]:
        a(f"s_cmp_eq_u32 s{sIt}, 3\ns_cbranch_scc0 {K}_hook2")
        stamp(a, 4, 30); a("s_barrier"); stamp(a, 5, 30); a(f"s_branch {K}_hook_ret")
        a(f"{K}_hook2:")
        stamp(a, 6, 30); a("s_barrier"); stamp(a, 7, 30); a(f"s_branch {K}_hook_ret")
    else:
        a(f"""s_barrier
        s_branch {K}_hook_ret""")
    FQ = S[3]
    for x in range(4):
        a(f"{K}_fb{x}:")
        for i in range(4): a(f"v_mov_b32 v{FQ+i}, v{QM+4*x+i}")
        for i in range(8): a(f"v_mov_b32 v{FQ+4+i}, v{QT+8*x+i}")
        a(f"s_call_b64 s[{sRet}:{sRet+1}], {K}_slow")
        for i in range(16): a(f"v_mov_b32 v{O[x]+i}, v{S[2]+i}")
        a(f"s_branch {K}_fbret{x}")
    a(f"{K}_slow:")
    va, vb, vc, vm = 20, 21, 22, 23
    def slow_addr():
        a(f"""v_lshlrev_b32 v{va}, 4, v0
        v_lshlrev_b32 v{vb}, 3, v0
        v_lshlrev_b32 v{vc}, 4, v{vInc}
        v_sub_u32 v{vc}, v{vVa}, v{vc}
        s_mov_b32 s{sIt}, 16""")
    def slow_qk(t, c):
        a(f"""v_mfma_f32_32x32x16_bf16 {vr(S[0],16)}, {vr(KF[0],4)}, {vr(FQ,4)}, {c}
        v_mfma_f32_32x32x8_bf16 {vr(S[0],16)}, {vr(KT,2)}, {vr(FQ+4+2*t,2)}, {vr(S[0],16)}
        s_nop 15""")
    def slow_next(lbl):
        a(f"""v_add_u32 v{va}, {BLK}, v{va}
        v_add_u32 v{vb}, {BLK}, v{vb}
        v_add_u32 v{vc}, v{vInc}, v{vc}
        s_sub_u32 s{sIt}, s{sIt}, 1
        s_cmp_lg_u32 s{sIt}, 0
        s_cbranch_scc1 {lbl}""")
    slow_addr()
    a(f"v_mov_b32 v{vm}, 0xff800000")
    a(f"{K}_sl1:")
    a(f"ds_read_b64 {vr(KT,2)}, v{vb} offset:4096")
    for t in range(4):
        a(f"""ds_read_b128 {vr(KF[0],4)}, v{va} offset:{1024*t}
        s_waitcnt lgkmcnt(0)""")
        slow_qk(t, "0")
        for i in range(8): a(f"v_max3_f32 v{vm}, v{S[0]+2*i}, v{S[0]+2*i+1}, v{vm}")
    slow_next(f"{K}_sl1")
    a(f"""v_mov_b32 v{S[0]}, v{vm}
    s_nop 1
    v_permlane32_swap_b32 v{vm}, v{S[0]}
    s_nop 1
    v_max_f32 v{vm}, v{vm}, v{S[0]}""")
    for i in range(16):
        a(f"v_sub_f32 v{S[1]+i}, 0, v{vm}")
        a(f"v_mov_b32 v{S[2]+i}, 0")
    slow_addr()
    a(f"{K}_sl2:")
    a(f"ds_read_b64 {vr(KT,2)}, v{vb} offset:4096")
    for t in range(4):
        a(f"""ds_read_b128 {vr(KF[0],4)}, v{va} offset:{1024*t}
        ds_read_b128 {vr(V0[0],4)}, v{vc} offset:{4608+1216*t}
        ds_read_b128 {vr(V1[0],4)}, v{vc} offset:{4608+1216*t+608}
        s_waitcnt lgkmcnt(0)""")
        slow_qk(t, vr(S[1], 16))
        for i in range(16): a(f"v_exp_f32 v{S[0]+i}, v{S[0]+i}")
        a(f"""s_nop 3
        v_smfmac_f32_32x32x32_bf16 {vr(S[2],16)}, {vr(V0[0],4)}, {vr(S[0],8)}, v{vIdx}
        v_smfmac_f32_32x32x32_bf16 {vr(S[2],16)}, {vr(V1[0],4)}, {vr(S[0]+8,8)}, v{vIdx}
        s_nop 7""")
    slow_next(f"{K}_sl2")
    a(f"""s_nop 15
    s_setpc_b64 s[{sRet}:{sRet+1}]""")

def main(out):
    ka = f"{NAME}_kernel"
    a = Asm(); kernel(a)
    t = f"""; gated mix of two MHA blocks: one fused kernel (QKV projection, attention, output projection); generated by gen/gen3.py
; @launch grid=(256,1,1) block=(512,1,1) lds={LDS_BYTES}
.amdgcn_target "amdgcn-amd-amdhsa--gfx950"
.text
.globl {ka}
.p2align 8
.type {ka},@function
{ka}:
{a.text()}.section .rodata,"a"
.p2align 6
.amdhsa_kernel {ka}
  .amdhsa_next_free_vgpr 256
  .amdhsa_next_free_sgpr 96
  .amdhsa_accum_offset 256
  .amdhsa_group_segment_fixed_size 0
  .amdhsa_kernarg_size 80
  .amdhsa_user_sgpr_count 2
  .amdhsa_user_sgpr_kernarg_segment_ptr 1
  .amdhsa_system_sgpr_workgroup_id_x 1
.end_amdhsa_kernel
"""
    open(out, "w").write(t)

if __name__ == "__main__":
    for kv in sys.argv[2:]:
        k, v = kv.split("=")
        OPT[k] = {"True": True, "False": False}.get(v, v)
    main(sys.argv[1])
```

```python
import sys, struct

NAME = "gated_mix__mha_block__mha_block__prompt"
def f32(x): return "0x%08x" % struct.unpack("<I", struct.pack("<f", x))[0]
CSCALE = (18 ** -0.5) * 1.4426950408889634
LOG2E = 1.4426950408889634

BLK = 9472
KVH = 16 * BLK
WS_O = 0x0A00000
WS_WOM = 0x0F00000
WS_WOT = 0x1080000
WS_STAMP = 0x1100000
WS_SIZE = 0x1200000
L_WR = 0
L_XR = 40960
RX = 5
RW = 3
WS_F = 0x10C0000
SENT = 0xffffffff
L_GT = 155648
L_SYNC = L_GT + 3 * 2048 + 1536
L_WO = 151552
LDS_BYTES = 163840
OOBL = 0x30000
RS = 592

class Asm:
    def __init__(self): self.l = []
    def __call__(self, s):
        for x in s.strip("\n").split("\n"):
            x = x.strip()
            if not x: continue
            self.l.append(x if x.endswith(":") else "    " + x)
    def text(self): return "\n".join(self.l) + "\n"

def vr(a, n): return f"v[{a}:{a+n-1}]"
OPT = dict(mapping="A", force_fb=False, stamp=False)

def srd(a, d, lo, hi, size):
    a(f"""s_mov_b32 s{d}, s{lo}
    s_and_b32 s{d+1}, s{hi}, 0xffff
    s_mov_b32 s{d+2}, {size}
    s_mov_b32 s{d+3}, 0x00020000""")

sX, sW, sWo, sG, sD, sWS, sOut = 8, 12, 16, 20, 24, 28, 84
sWv, sBH, sC, sHd, sRot = 32, 33, 34, 35, 36
sT0, sT1, sT2, sT3 = 37, 38, 39, 40
sRef, sCnt, sKo, sXb, sRing, sIt, sKVg, sSpin = 41, 42, 43, 44, 45, 46, 47, 48
sW8 = 49
sRet, sEx = 50, 52
sWsrc, sWm0, sWk, sWcnt, sXm0, sGk, sTt = 54, 55, 62, 63, 76, 77, 78
SV = 254

def stamp(a, idx, vreg):
    if not OPT["stamp"]: return
    a(f"""s_memrealtime s[80:81]
    s_memtime s[82:83]
    s_waitcnt lgkmcnt(0)
    v_writelane_b32 v{vreg}, s80, {idx}
    v_writelane_b32 v{vreg+1}, s82, {idx}""")
def stamp_out(a, vreg, vt=1):
    if not OPT["stamp"]: return
    if OPT.get("dbgst"):
        idx = [int(z) for z in OPT["dbgst"].split(",")]
        a(f"""s_cmp_eq_u32 s{sW8}, 1
        s_cbranch_scc0 k_dbgskip
        s_mul_i32 s80, s2, 852
        s_lshr_b32 s80, s80, 16
        s_mul_i32 s81, s80, 77
        s_cmp_eq_u32 s81, s2
        s_cbranch_scc0 k_dbgskip
        s_lshl_b32 s80, s80, 4
        s_mov_b64 exec, 1""")
        for k in range(4):
            a(f"""v_readlane_b32 s82, v{vreg}, {idx[k]}
            v_readlane_b32 s83, v{vreg}, {idx[k+1]}
            s_nop 3
            s_sub_u32 s82, s83, s82
            s_lshl_b32 s82, s82, 16
            v_mov_b32 v{vt}, s80
            v_mov_b32 v2, s82
            buffer_atomic_add v2, v{vt}, s[{sD}:{sD+3}], 0 offen offset:{4*k}
            s_nop 1""")
        a("""s_mov_b64 exec, -1
        k_dbgskip:""")
    a(f"""s_lshl_b32 s80, s2, 3
    s_add_u32 s80, s80, s{sW8}
    s_lshl_b32 s80, s80, 8
    s_add_u32 s80, s80, {WS_STAMP}
    v_lshlrev_b32 v{vt}, 3, v0
    s_mov_b32 exec_hi, 0
    buffer_store_dwordx2 v[{vreg}:{vreg+1}], v{vt}, s[{sWS}:{sWS+3}], s80 offen
    s_mov_b64 exec, -1""")

def p3_addr(a, vOm, vOt, vWm, vWt, vRd, t0, t1, t2):
    a(f"""v_and_b32 v{t0}, 15, v0
    v_lshrrev_b32 v{t1}, 5, v0
    v_bfe_u32 v{t2}, v0, 4, 1
    v_mul_u32_u24 v{vOm}, 1152, v{t1}
    v_lshl_add_u32 v{vOm}, v{t2}, 9, v{vOm}
    v_lshl_add_u32 v{vOm}, v{t0}, 4, v{vOm}
    v_mul_u32_u24 v{vWm}, 4608, v{t1}
    v_lshl_add_u32 v{vWm}, v{t2}, 8, v{vWm}
    v_lshl_add_u32 v{vWm}, v{t0}, 4, v{vWm}
    v_lshrrev_b32 v{t1}, 4, v0
    v_mul_u32_u24 v{vOt}, 4608, v{t1}
    v_lshl_add_u32 v{vOt}, v{t0}, 2, v{vOt}
    v_mul_u32_u24 v{vWt}, 2304, v{t1}
    v_lshl_add_u32 v{vWt}, v{t0}, 4, v{vWt}
    v_mul_u32_u24 v{vRd}, {RS}, v{t0}
    v_lshl_add_u32 v{vRd}, v{t1}, 4, v{vRd}
    s_mul_i32 s{sT3}, s{sWv}, {32*RS}
    v_add_u32 v{vRd}, s{sT3}, v{vRd}""")
sP3T, sP3C, sOb, sWmb, sWtb = 88, 89, 90, 91, 92
def p3_scal(a):
    a(f"""s_and_b32 s{sP3T}, s2, 7
    s_lshr_b32 s{sT0}, s2, 5
    s_lshl_b32 s{sT0}, s{sT0}, 3
    s_add_u32 s{sP3T}, s{sP3T}, s{sT0}
    s_lshr_b32 s{sP3C}, s2, 3
    s_and_b32 s{sP3C}, s{sP3C}, 3
    s_lshl_b32 s{sOb}, s{sP3T}, 6
    s_lshl_b32 s{sT3}, s{sWv}, 4
    s_add_u32 s{sOb}, s{sOb}, s{sT3}
    s_mul_i32 s{sOb}, s{sOb}, 1152
    s_add_u32 s{sOb}, s{sOb}, {WS_O}
    s_lshl_b32 s{sWmb}, s{sP3C}, 6
    s_add_u32 s{sWmb}, s{sWmb}, s{sT3}
    s_mul_i32 s{sWmb}, s{sWmb}, 4608
    s_add_u32 s{sWmb}, s{sWmb}, {WS_WOM}
    s_lshl_b32 s{sWtb}, s{sP3C}, 2
    s_add_u32 s{sWtb}, s{sWtb}, s{sWv}
    s_mul_i32 s{sWtb}, s{sWtb}, {4*2304}
    s_add_u32 s{sWtb}, s{sWtb}, {WS_WOT}""")
def p3_wo_loads(a, cts, WB, vWm, vWt):
    n = len(cts)
    for s in range(8):
        a(f"s_add_u32 s{sT3}, s{sWmb}, {2*s*4608 + 512*cts[0]}")
        for i in range(n):
            a(f"buffer_load_dwordx4 {vr(WB+4*(n*s+i),4)}, v{vWm}, s[{sWS}:{sWS+3}], s{sT3} offen offset:{512*i} sc1")
    for i, ct in enumerate(cts):
        a(f"buffer_load_dwordx4 {vr(WB+4*(n*8+i),4)}, v{vWt}, s[{sWS}:{sWS+3}], s{sWtb} offen offset:{256*ct} sc1")
def p3_o_load(a, s, dst, vOm, vOt):
    if s < 8:
        a(f"s_add_u32 s{sT3}, s{sOb}, {2*s*1152}")
        for th in range(2):
            a(f"buffer_load_dwordx4 {vr(dst+4*th,4)}, v{vOm}, s[{sWS}:{sWS+3}], s{sT3} offen offset:{256*th} sc1")
        return 2
    for i in range(4):
        a(f"s_add_u32 s{sT3}, s{sOb}, {i*1152}")
        for th in range(2):
            a(f"buffer_load_dword v{dst+4*th+i}, v{vOt}, s[{sWS}:{sWS+3}], s{sT3} offen offset:{1024+64*th} sc1")
    return 8
def p3_compute(a, L, cts, WB, AC, OF, depth, vOm, vOt, vRd):
    n = len(cts)
    cnt = [2] * 8 + [8]
    a(f"s_mov_b32 s{sSpin}, 40000")
    for s in range(min(depth, 9)): p3_o_load(a, s, OF + 8 * (s % depth), vOm, vOt)
    retry = []
    for s in range(9):
        later = sum(cnt[s + 1:min(9, s + depth)])
        o = OF + 8 * (s % depth)
        a(f"s_waitcnt vmcnt({later})")
        a(f"{L}_c{s}:")
        if s < 8:
            a(f"v_max_u32 v1, v{o}, v{o+4}")
        else:
            a(f"""v_max3_u32 v1, v{o}, v{o+1}, v{o+2}
            v_max3_u32 v1, v{o+3}, v{o+4}, v1
            v_max3_u32 v1, v{o+5}, v{o+6}, v1
            v_max_u32 v1, v{o+7}, v1""")
        a(f"""v_cmp_eq_u32 vcc, -1, v1
        s_nop 1
        s_cbranch_vccnz {L}_r{s}
        {L}_g{s}:""")
        for i in range(n):
            for th in range(2):
                d = AC + 8 * i + 4 * th
                c = vr(d, 4) if s else "0"
                a(f"v_mfma_f32_16x16x32_bf16 {vr(d,4)}, {vr(WB+4*(n*s+i),4)}, {vr(o+4*th,4)}, {c}")
        if s + depth < 9: p3_o_load(a, s + depth, o, vOm, vOt)
        retry.append((s, o))
    a(f"s_branch {L}_done")
    for s, o in retry:
        a(f"""{L}_r{s}:
        s_sub_u32 s{sSpin}, s{sSpin}, 1
        s_cmp_lt_i32 s{sSpin}, 0
        s_cbranch_scc1 {L}_g{s}
        s_sleep 3""")
        p3_o_load(a, s, o, vOm, vOt)
        a(f"""s_waitcnt vmcnt(0)
        s_branch {L}_c{s}""")
    a(f"{L}_done:")
    a("s_nop 7")
    for i, ct in enumerate(cts):
        for th in range(2):
            a(f"ds_write_b128 v{vRd}, {vr(AC+8*i+4*th,4)} offset:{16*th*RS + 64*ct}")

def kernel(a):
    K = "k"
    a(f"""
    s_cmp_ge_u32 s2, 256
    s_cbranch_scc1 {K}_end
    s_load_dwordx4 s[56:59], s[0:1], 0
    s_load_dwordx2 s[60:61], s[0:1], 16
    s_load_dwordx4 s[64:67], s[0:1], 32
    s_load_dwordx4 s[68:71], s[0:1], 48
    s_load_dwordx4 s[72:75], s[0:1], 64
    v_lshrrev_b32 v1, 6, v0
    v_and_b32 v0, 63, v0
    s_nop 0
    v_readfirstlane_b32 s{sW8}, v1
    """)
    if OPT["mapping"] == "A":
        a(f"""s_lshr_b32 s{sC}, s2, 3
        s_and_b32 s{sC}, s{sC}, 3
        s_lshr_b32 s{sT0}, s2, 5
        s_and_b32 s{sBH}, s2, 7
        s_lshl_b32 s{sBH}, s{sBH}, 3
        s_add_u32 s{sBH}, s{sBH}, s{sT0}
        s_lshl_b32 s{sRot}, s{sC}, 1
        s_add_u32 s{sRot}, s{sRot}, s{sT0}
        s_sub_u32 s{sT1}, s{sRot}, 9
        s_cmp_ge_u32 s{sRot}, 9
        s_cselect_b32 s{sRot}, s{sT1}, s{sRot}""")
    else:
        a(f"""s_and_b32 s{sC}, s2, 7
        s_lshr_b32 s{sC}, s{sC}, 1
        s_lshr_b32 s{sRot}, s2, 3
        s_and_b32 s{sBH}, s2, 1
        s_lshl_b32 s{sBH}, s{sBH}, 5
        s_add_u32 s{sBH}, s{sBH}, s{sRot}
        s_lshl_b32 s{sRot}, s{sRot}, 1
        s_mul_i32 s{sT0}, s{sRot}, 57
        s_lshr_b32 s{sT0}, s{sT0}, 9
        s_mul_i32 s{sT0}, s{sT0}, 9
        s_sub_u32 s{sRot}, s{sRot}, s{sT0}""")
    a(f"""s_and_b32 s{sHd}, s{sBH}, 31
    s_and_b32 s{sWv}, s{sW8}, 3
    s_mul_i32 s{sKVg}, s{sBH}, {KVH}
    s_waitcnt lgkmcnt(0)
    s_cmp_ge_u32 s{sBH}, 32
    s_cselect_b32 s58, s64, s58
    s_cselect_b32 s59, s65, s59
    s_cselect_b32 s60, s66, s60
    s_cselect_b32 s61, s67, s61""")
    srd(a, sW, 58, 59, 576 * 3456)
    srd(a, sX, 56, 57, 2048 * 1152)
    srd(a, sG, 68, 69, 1152)
    srd(a, sWS, 74, 75, WS_SIZE)
    srd(a, sOut, 70, 71, 2048 * 1152)
    srd(a, sD, 72, 73, 256)
    if OPT.get("txor", "1") == "1":
        a(f"""s_and_b32 s{sTt}, s2, 1
        s_lshl_b32 s{sTt}, s{sTt}, 1""")
    else:
        a(f"s_mov_b32 s{sTt}, 0")
    a(f"""s_cmp_ge_u32 s{sW8}, 4
    s_cbranch_scc0 {K}_compute""")
    helper(a, K)
    a(f"{K}_compute:")
    compute(a, K)

def final_reduce(a, K, SVr):
    a(f"""s_lshl_b32 s{sT3}, s{sW8}, 6
    v_add_u32 v1, s{sT3}, v0
    s_mul_i32 s{sT0}, s{sP3T}, {32*1152}
    s_mul_i32 s{sT1}, s{sP3C}, 288
    s_add_u32 s{sT0}, s{sT0}, s{sT1}""")
    for r in range(2):
        a(f"""v_add_u32 v2, {512*r}, v1
        v_mul_u32_u24 v3, 3641, v2
        v_lshrrev_b32 v3, 16, v3
        v_mul_u32_u24 v4, 18, v3
        v_sub_u32 v4, v2, v4
        v_mul_u32_u24 v{6+r}, {RS}, v3
        v_lshl_add_u32 v{6+r}, v4, 5, v{6+r}
        v_mul_u32_u24 v{8+r}, 1152, v3
        v_lshl_add_u32 v{8+r}, v4, 4, v{8+r}""")
    a("""s_waitcnt lgkmcnt(0)
    s_barrier""")
    for r in range(2):
        if r == 1:
            if OPT["stamp"]: a("s_waitcnt vmcnt(0)")
            stamp(a, 15, SVr)
            stamp_out(a, SVr)
            a(f"""s_cmp_eq_u32 s{sW8}, 0
            s_cbranch_scc0 {K}_end""")
        b = 32 + 32 * r
        for w in range(4):
            for hf in range(2):
                a(f"ds_read_b128 {vr(b+8*w+4*hf,4)}, v{6+r} offset:{w*32*RS + 16*hf}")
        a("s_waitcnt lgkmcnt(4)")
        for i in range(8): a(f"v_add_f32 v{b+i}, v{b+i}, v{b+8+i}")
        a("s_waitcnt lgkmcnt(0)")
        for i in range(8): a(f"v_add_f32 v{b+16+i}, v{b+16+i}, v{b+24+i}")
        for i in range(8): a(f"v_add_f32 v{b+i}, v{b+i}, v{b+16+i}")
        for i in range(4): a(f"v_cvt_pk_bf16_f32 v{b+8+i}, v{b+2*i}, v{b+2*i+1}")
        a(f"buffer_store_dwordx4 {vr(b+8,4)}, v{8+r}, s[{sOut}:{sOut+3}], s{sT0} offen")

def poll(a, lbl, vP, vPa, cond, slp, x4=False):
    ld = f"buffer_load_dwordx4 {vr(vP,4)}, v{vPa}, s[{sWS}:{sWS+3}], 0 offen sc1" if x4 else f"buffer_load_dword v{vP}, v{vPa}, s[{sD}:{sD+3}], 0 offen sc1"
    a(f"""s_mov_b32 s{sSpin}, 40000
    {lbl}:
    {ld}
    s_waitcnt vmcnt(0)""")
    cond()
    a(f"""s_cbranch_scc1 {lbl}_go
    s_sub_u32 s{sSpin}, s{sSpin}, 1
    s_cmp_eq_u32 s{sSpin}, 0
    s_cbranch_scc1 {lbl}_go
    s_sleep {slp}
    s_branch {lbl}
    {lbl}_go:""")

def helper(a, K):
    stamp(a, 0, SV)
    a("s_setprio 2")
    vXs = [2, 3, 4, 5]
    vWs, vL16, vGr, vGw = 6, 7, 8, 9
    t0, t1, t2, t3 = 10, 11, 12, 13
    vGv = 14
    WMASK = sum(1 << i for i in range(40) if i % 10 != 9)
    a(f"""v_mul_u32_u24 v{t0}, 26, v0
    v_lshrrev_b32 v{t0}, 8, v{t0}
    v_mul_u32_u24 v{t1}, 10, v{t0}
    v_sub_u32 v{t1}, v0, v{t1}
    v_mul_u32_u24 v{t2}, 86, v{t1}
    v_lshrrev_b32 v{t2}, 8, v{t2}
    v_mul_u32_u24 v{vWs}, 3456, v{t0}
    v_lshl_add_u32 v{vWs}, v{t1}, 4, v{vWs}
    v_mul_u32_u24 v{t2}, {1152-48}, v{t2}
    v_add_u32 v{vWs}, v{vWs}, v{t2}
    v_lshlrev_b32 v{vL16}, 4, v0
    s_mul_i32 s{sT0}, s{sWv}, {16*3456}
    s_mul_i32 s{sT1}, s{sHd}, 36
    s_add_u32 s{sWsrc}, s{sT0}, s{sT1}
    s_mul_i32 s{sWk}, s{sRot}, {64*3456}
    s_mul_i32 s{sWm0}, s{sWv}, {16*160}
    s_lshl_b32 s{sT2}, s{sWv}, 11
    s_add_u32 s{sT2}, s{sT2}, {L_GT}""")
    def wdma(u):
        a(f"""s_add_u32 m0, s{sWm0}, {L_WR + u*640}
        s_add_u32 s{sT0}, s{sWsrc}, s{sWk}
        s_add_u32 s{sT0}, s{sT0}, {u*4*3456}
        s_mov_b32 exec_lo, {WMASK & 0xffffffff}
        s_mov_b32 exec_hi, {WMASK >> 32}
        buffer_load_dwordx4 v{vWs}, s[{sW}:{sW+3}], {'s%d' % sT0 if not OPT.get('now') else 's%d' % sWsrc} offen lds
        s_mov_b64 exec, -1""")
    def wnext():
        a(f"""s_add_u32 s{sWk}, s{sWk}, {64*3456}
        s_cmp_ge_u32 s{sWk}, {576*3456}
        s_cselect_b32 s{sWk}, 0, s{sWk}
        s_add_u32 s{sWm0}, s{sWm0}, 10240
        s_sub_u32 s{sT0}, s{sWm0}, {RW*10240}
        s_cmp_ge_u32 s{sWm0}, {RW*10240}
        s_cselect_b32 s{sWm0}, s{sT0}, s{sWm0}""")
    order = []
    a(f"""s_mov_b32 m0, s{sT2}
    s_nop 0
    buffer_load_dwordx4 v{vL16}, s[{sG}:{sG+3}], 0 offen lds
    s_mov_b64 exec, 0xff
    buffer_load_dwordx4 v{vL16}, s[{sG}:{sG+3}], 0 offen offset:1024 lds
    s_mov_b64 exec, -1""")
    order += ["G"] * 2
    for u in range(4): wdma(u)
    order += ["W0"] * 4
    wnext()
    a(f"""v_lshrrev_b32 v{t0}, 3, v0
    v_mul_u32_u24 v{t0}, 1152, v{t0}
    v_and_b32 v{t1}, 7, v0
    v_lshrrev_b32 v{t2}, 4, v0
    v_xor_b32 v{t1}, v{t1}, v{t2}
    v_lshlrev_b32 v{t1}, 4, v{t1}
    v_xor_b32 v{t2}, 64, v{t1}
    v_add_u32 v{vXs[0]}, v{t0}, v{t1}
    v_add_u32 v{vXs[1]}, v{t0}, v{t2}
    v_add_u32 v{vXs[2]}, {16*1152-2048}, v{vXs[0]}
    v_add_u32 v{vXs[3]}, {24*1152-3072}, v{vXs[1]}
    v_add_u32 v{vXs[1]}, {8*1152-1024}, v{vXs[1]}
    s_lshl_b32 s{sXb}, s{sC}, 2
    s_add_u32 s{sXb}, s{sXb}, s{sWv}
    s_mul_i32 s{sXb}, s{sXb}, {128*1152}
    s_lshl_b32 s{sKo}, s{sRot}, 7
    s_lshl_b32 s{sRing}, s{sWv}, 12
    s_add_u32 s{sRing}, s{sRing}, {L_XR}
    s_add_u32 s{sRef}, s{sXb}, s{sKo}
    s_mov_b32 s{sXm0}, s{sRing}""")
    sTo = [56, 57, 58, 59]
    for tt in range(4):
        a(f"""s_xor_b32 s{sTo[tt]}, s{sTt}, {tt}
        s_mul_i32 s{sTo[tt]}, s{sTo[tt]}, {32*1152}""")
    def xdma(tt):
        a(f"""s_mov_b32 m0, s{sXm0}
        s_add_u32 s{sT0}, s{sRef}, s{sTo[tt]}""")
        for i in range(4):
            a(f"buffer_load_dwordx4 v{vXs[i]}, s[{sX}:{sX+3}], s{sT0} offen offset:{1024*i} lds")
        a(f"""s_add_u32 s{sXm0}, s{sXm0}, 16384
        s_cmp_ge_u32 s{sXm0}, {L_XR + RX*16384}
        s_cselect_b32 s{sXm0}, s{sRing}, s{sXm0}""")
    def xnext():
        a(f"""s_add_u32 s{sKo}, s{sKo}, 128
        s_cmp_ge_u32 s{sKo}, 1152
        s_cselect_b32 s{sKo}, 0, s{sKo}
        s_add_u32 s{sRef}, s{sXb}, s{sKo}""")
    xdma(0); xdma(1)
    order += ["X0"] * 4 + ["X1"] * 4
    stamp(a, 16, SV)
    srd(a, sWo, 60, 61, 576 * 1152)
    a(f"""s_lshl_b32 s{sT0}, s{sWv}, 5
    s_add_u32 s{sT0}, s{sT0}, s{sT2}
    v_lshl_add_u32 v{vGr}, v0, 1, s{sT0}
    s_mul_i32 s{sT0}, s{sWv}, {16*160}
    v_mul_u32_u24 v{t1}, 160, v0
    v_add_u32 v{vGw}, s{sT0}, v{t1}
    v_mov_b32 v{vGv+1}, 0
    s_lshl_b32 s{sGk}, s{sRot}, 7
    v_mov_b32 v{t0}, {L_SYNC}
    v_mov_b32 v20, 0
    v_mov_b32 v21, 0
    v_mov_b32 v22, 0
    v_mov_b32 v23, 0
    ds_write_b128 v{t0}, v[20:23]""")
    def gate(slotreg=None, slot=None):
        a(f"""v_add_u32 v{t0}, s{sGk}, v{vGr}
        s_mov_b64 exec, 0xffff
        ds_read_u16 v{vGv}, v{t0}""")
        if slot is not None:
            a(f"""s_waitcnt lgkmcnt(0)
            ds_write_b64 v{vGw}, {vr(vGv,2)} offset:{L_WR + slot*10240 + 144}""")
        else:
            a(f"""v_add_u32 v{t0}, s{slotreg}, v{t1}
            s_waitcnt lgkmcnt(0)
            ds_write_b64 v{t0}, {vr(vGv,2)} offset:{L_WR + 144}""")
        a(f"""s_mov_b64 exec, -1
        s_add_u32 s{sGk}, s{sGk}, 128
        s_cmp_ge_u32 s{sGk}, 1152
        s_cselect_b32 s{sGk}, 0, s{sGk}""")
    a("s_waitcnt vmcnt(12)")
    stamp(a, 17, SV)
    for s_ in range(2): gate(slot=s_)
    a("""s_waitcnt vmcnt(4) lgkmcnt(0)
    s_barrier""")
    stamp(a, 1, SV)
    xdma(2)
    for u in range(4): wdma(u)
    wnext()
    xdma(3); xnext(); xdma(0)
    order += ["X2"] * 4 + ["W1"] * 4 + ["X3"] * 4 + ["X4"] * 4
    stamp(a, 18, SV)
    a(f"""s_mov_b32 s{sIt}, 0
    {K}_hl:""")
    for tt in range(4):
        a(f"""s_waitcnt vmcnt(@W{tt}@) lgkmcnt(0)
        s_barrier""")
        if tt == 0:
            a(f"""s_cmp_ge_u32 s{sIt}, 7
            s_cselect_b32 s{sWm0}, {OOBL}, s{sWm0}
            s_cselect_b32 s{sWsrc}, 0x400000, s{sWsrc}""")
        if tt == 3:
            xnext()
            a(f"""s_cmp_ge_u32 s{sIt}, 7
            s_cselect_b32 s{sRef}, 0x400000, s{sRef}
            s_cselect_b32 s{sRing}, {OOBL}, s{sRing}
            s_cselect_b32 s{sXm0}, {OOBL}, s{sXm0}""")
        if not OPT.get("skipw"): wdma(tt)
        if OPT.get("skipx"): a(f"s_mov_b32 s{sRef}, 0x400000")
        xdma((tt + 1) & 3)
        if tt == 0: gate(slotreg=sWm0)
    wnext()
    a(f"""s_add_u32 s{sIt}, s{sIt}, 1
    s_cmp_lt_u32 s{sIt}, 9
    s_cbranch_scc1 {K}_hl""")
    need = [99] * 4
    for j in range(36):
        req = [f"X{j+1}"]
        if j % 4 == 3: req.append(f"W{j//4+1}")
        last = max(i for i, o in enumerate(order) if o in req)
        need[j % 4] = min(need[j % 4], len(order) - 1 - last)
        order += ([f"W{j//4+2}"] if not OPT.get("skipw") else []) + [f"X{j+RX}"] * 4
    a.l = [x.replace("@W0@", str(need[0])).replace("@W1@", str(need[1])).replace("@W2@", str(need[2])).replace("@W3@", str(need[3])) for x in a.l]
    stamp(a, 2, SV)
    vWos = 6
    a(f"""v_mul_u32_u24 v{t0}, 57, v0
    v_lshrrev_b32 v{t0}, 10, v{t0}
    v_mul_u32_u24 v{t1}, 18, v{t0}
    v_sub_u32 v{t1}, v0, v{t1}
    v_lshlrev_b32 v{t1}, 4, v{t1}
    v_mul_u32_u24 v{vWos}, 1152, v{t0}
    v_add_u32 v{vWos}, v{vWos}, v{t1}
    s_mul_i32 s{sT0}, s{sHd}, {18*1152}
    s_mul_i32 s{sT1}, s{sC}, 288
    s_add_u32 s{sT0}, s{sT0}, s{sT1}
    s_mul_i32 s{sT1}, s{sWv}, {3*1152}
    s_add_u32 s{sT0}, s{sT0}, s{sT1}
    s_mul_i32 s{sT1}, s{sWv}, 864
    s_add_u32 m0, s{sT1}, {L_WO}
    s_add_u32 s{sT2}, s{sT0}, {12*1152}
    s_mov_b32 exec_hi, 0x003fffff
    buffer_load_dwordx4 v{vWos}, s[{sWo}:{sWo+3}], s{sT0} offen lds
    s_add_u32 m0, s{sT1}, {L_WO + 4*864}
    s_nop 0
    buffer_load_dwordx4 v{vWos}, s[{sWo}:{sWo+3}], s{sT2} offen lds
    s_mov_b64 exec, -1
    s_mul_i32 s{sT0}, s{sWv}, {BLK}
    v_add_u32 v{t0}, s{sT0}, v{vL16}
    s_lshl_b32 s{sT1}, s{sC}, 2
    s_add_u32 s{sT1}, s{sT1}, s{sWv}
    s_mul_i32 s{sT1}, s{sT1}, {BLK}
    s_add_u32 s{sT1}, s{sT1}, s{sKVg}
    s_barrier""")
    stamp(a, 3, SV)
    for i in range(10): a(f"ds_read_b128 {vr(32+4*i,4)}, v{t0} offset:{1024*i}")
    for i in range(10):
        if i == 9: a("s_mov_b64 exec, 0xffff")
        if i % 4 == 0 and i: a(f"s_add_u32 s{sT1}, s{sT1}, 4096")
        a(f"s_waitcnt lgkmcnt({9-i})")
        a(f"buffer_store_dwordx4 {vr(32+4*i,4)}, v{vL16}, s[{sWS}:{sWS+3}], s{sT1} offen offset:{1024*(i%4)} sc1")
    vP, vPa, vSy, vOne, vFa = 20, 17, 18, 19, 16
    def arrive(word):
        a(f"""s_mov_b64 exec, 1
        s_waitcnt vmcnt(0)
        ds_add_rtn_u32 v{vP}, v{vSy}, v{vOne} offset:{4*word}
        s_waitcnt lgkmcnt(0)
        v_readfirstlane_b32 s{sT1}, v{vP}
        s_mov_b64 exec, -1
        s_cmp_eq_u32 s{sT1}, 3""")
    def lds_wait(lbl, word):
        a(f"""s_mov_b32 s{sSpin}, 400000
        {lbl}:
        ds_read_b32 v{vP}, v{vSy} offset:{4*word}
        s_waitcnt lgkmcnt(0)
        v_readfirstlane_b32 s{sT1}, v{vP}
        s_cmp_lg_u32 s{sT1}, 0
        s_cbranch_scc1 {lbl}_go
        s_sub_u32 s{sSpin}, s{sSpin}, 1
        s_cmp_eq_u32 s{sSpin}, 0
        s_cbranch_scc1 {lbl}_go
        s_sleep 2
        s_branch {lbl}
        {lbl}_go:""")
    a(f"""s_mov_b64 exec, -1
    s_lshl_b32 s{sT0}, s{sBH}, 2
    v_mov_b32 v{vPa}, s{sT0}
    s_lshl_b32 s{sT0}, s{sBH}, 7
    s_add_u32 s{sT0}, s{sT0}, {WS_F}
    v_mov_b32 v{vFa}, s{sT0}
    v_mov_b32 v{vSy}, {L_SYNC}
    v_mov_b32 v{vOne}, 1""")
    arrive(0)
    a(f"""s_cbranch_scc0 {K}_kw
    s_mov_b64 exec, 1
    s_lshl_b32 s{sT0}, s{sC}, 2
    buffer_store_dword v{vOne}, v{vFa}, s[{sWS}:{sWS+3}], s{sT0} offen sc1""")
    stamp(a, 4, SV)
    def rst_ok():
        a(f"""v_readfirstlane_b32 s{sT0}, v{vP}
        s_and_b32 s{sT0}, s{sT0}, 0xff
        s_cmp_ge_u32 s{sT0}, 4""")
    poll(a, f"{K}_pl0", vP, vPa, rst_ok, 8)
    def kv_ready():
        a(f"""v_and_b32 v{vP}, v{vP}, v{vP+1}
        v_and_b32 v{vP+2}, v{vP+2}, v{vP+3}
        v_and_b32 v{vP}, v{vP}, v{vP+2}
        s_nop 0
        v_readfirstlane_b32 s{sT0}, v{vP}
        s_cmp_eq_u32 s{sT0}, 1""")
    poll(a, f"{K}_pl1", vP, vFa, kv_ready, 2, x4=True)
    a(f"""ds_write_b32 v{vSy}, v{vOne} offset:8
    s_mov_b64 exec, -1
    s_branch {K}_kgo
    {K}_kw:""")
    stamp(a, 4, SV)
    lds_wait(f"{K}_lw1", 2)
    a(f"{K}_kgo:")
    stamp(a, 5, SV)
    a(f"""s_add_u32 s{sT0}, s{sC}, 1
    s_lshl_b32 s{sT1}, s{sWv}, 10""")
    for j in range(3):
        a(f"""s_and_b32 s{sT0}, s{sT0}, 3
        s_mul_i32 s{sT2}, s{sT0}, {4*BLK}
        s_add_u32 s{sT2}, s{sT2}, s{sKVg}
        s_add_u32 s{sT2}, s{sT2}, s{sT1}
        s_add_u32 s{sT0}, s{sT0}, 1""")
        for i in range(10):
            if i == 9:
                a(f"""s_cmp_eq_u32 s{sWv}, 0
                s_cbranch_scc0 {K}_h2s{j}""")
            a(f"""s_add_u32 m0, s{sT1}, {4*BLK*(j+1) + 4096*i}
            s_add_u32 s{sT3}, s{sT2}, {4096*i}
            buffer_load_dwordx4 v{vL16}, s[{sWS}:{sWS+3}], s{sT3} offen sc1 lds""")
        a(f"{K}_h2s{j}:")
    a("s_waitcnt vmcnt(0)")
    stamp(a, 6, SV)
    a("s_barrier")
    stamp(a, 7, SV)
    a(f"""v_bfe_u32 v{t0}, v0, 2, 3
    v_mul_u32_u24 v{t0}, 288, v{t0}
    v_and_b32 v{t1}, 3, v0
    v_lshlrev_b32 v{t1}, 3, v{t1}
    v_add_u32 v{t1}, {L_WO}, v{t1}
    v_and_b32 v{t2}, 32, v0
    v_add3_u32 v{t0}, v{t0}, v{t1}, v{t2}
    s_lshl_b32 s{sT0}, s{sWv}, 6
    v_add_u32 v{t2}, s{sT0}, v{t0}
    ds_read_b64_tr_b16 {vr(64,2)}, v{t2}
    ds_read_b64_tr_b16 {vr(66,2)}, v{t2} offset:2304
    ds_read_b64_tr_b16 {vr(68,2)}, v{t0} offset:256
    ds_read_b64_tr_b16 {vr(70,2)}, v{t0} offset:{256+2304}
    v_bfe_u32 v{t0}, v0, 2, 2
    v_mul_u32_u24 v{t0}, 288, v{t0}
    v_lshrrev_b32 v{t2}, 4, v0
    v_lshlrev_b32 v{t2}, 5, v{t2}
    v_add3_u32 v{t0}, v{t0}, v{t1}, v{t2}
    s_lshl_b32 s{sT0}, s{sWv}, 7
    v_add_u32 v{t0}, s{sT0}, v{t0}
    ds_read_b64_tr_b16 {vr(72,2)}, v{t0} offset:{16*288-128}
    s_lshl_b32 s{sT0}, s{sC}, 6
    s_add_u32 s{sT0}, s{sT0}, s{sBH}
    s_mul_i32 s{sT0}, s{sT0}, 4608
    s_add_u32 s{sT0}, s{sT0}, {WS_WOM}
    s_lshl_b32 s{sT1}, s{sWv}, 10
    s_add_u32 s{sT1}, s{sT1}, s{sT0}
    s_lshl_b32 s{sT2}, s{sC}, 4
    s_lshr_b32 s{sT3}, s{sBH}, 2
    s_add_u32 s{sT2}, s{sT2}, s{sT3}
    s_mul_i32 s{sT2}, s{sT2}, 2304
    s_and_b32 s{sT3}, s{sBH}, 3
    s_lshl_b32 s{sT3}, s{sT3}, 2
    s_add_u32 s{sT2}, s{sT2}, s{sT3}
    s_lshl_b32 s{sT3}, s{sWv}, 10
    s_add_u32 s{sT2}, s{sT2}, s{sT3}
    s_add_u32 s{sT2}, s{sT2}, {WS_WOT - 1024}
    s_waitcnt lgkmcnt(0)
    buffer_store_dwordx4 {vr(64,4)}, v{vL16}, s[{sWS}:{sWS+3}], s{sT1} offen sc1
    s_cmp_eq_u32 s{sWv}, 0
    s_cbranch_scc0 {K}_wo_tail
    s_mov_b32 exec_hi, 0
    s_add_u32 s{sT3}, s{sT0}, 4096
    buffer_store_dwordx4 {vr(68,4)}, v{vL16}, s[{sWS}:{sWS+3}], s{sT3} offen sc1
    s_branch {K}_wo_done
    {K}_wo_tail:
    s_cmp_eq_u32 s{sWv}, 3
    s_cselect_b32 exec_lo, 0xffff, -1
    s_cselect_b32 exec_hi, 0, -1
    buffer_store_dword v72, v{vL16}, s[{sWS}:{sWS+3}], s{sT2} offen sc1
    {K}_wo_done:
    s_mov_b64 exec, -1""")
    a(f"""v_mov_b32 v32, {SENT}
    v_mov_b32 v33, {SENT}
    v_mov_b32 v34, {SENT}
    v_mov_b32 v35, {SENT}
    s_lshl_b32 s{sT1}, s{sC}, 2
    s_add_u32 s{sT1}, s{sT1}, s{sWv}
    s_lshl_b32 s{sT1}, s{sT1}, 8
    s_add_u32 s{sT1}, s{sT1}, s{sBH}
    s_mul_i32 s{sT1}, s{sT1}, 1152
    s_add_u32 s{sT1}, s{sT1}, {WS_O}""")
    for x in range(4):
        a(f"""buffer_store_dwordx4 v[32:35], v{vL16}, s[{sWS}:{sWS+3}], s{sT1} offen sc1
        s_mov_b64 exec, 0xff
        buffer_store_dwordx4 v[32:35], v{vL16}, s[{sWS}:{sWS+3}], s{sT1} offen offset:1024 sc1
        s_mov_b64 exec, -1
        s_add_u32 s{sT1}, s{sT1}, {64*1152}""")
    arrive(1)
    a(f"""s_cbranch_scc0 {K}_sg2
    s_mov_b64 exec, 1
    v_mov_b32 v{vP}, 0x100
    buffer_atomic_add v{vP}, v{vPa}, s[{sD}:{sD+3}], 0 offen
    s_mov_b64 exec, -1
    {K}_sg2:""")
    p3_scal(a)
    vOm, vOt, vWm, vWt, vRd, vA4 = 2, 3, 4, 5, 6, 7
    p3_addr(a, vOm, vOt, vWm, vWt, vRd, t0, t1, t2)
    a(f"""v_lshlrev_b32 v{vA4}, 2, v0
    s_barrier""")
    stamp(a, 12, SV)
    a(f"""s_cmp_eq_u32 s{sWv}, 0
    s_cbranch_scc0 {K}_gw""")
    def all_init():
        a(f"""v_bfe_u32 v{vP}, v{vP}, 8, 8
        v_cmp_le_u32 vcc, 4, v{vP}
        s_nop 1
        s_cmp_eq_u64 vcc, -1""")
    poll(a, f"{K}_pl2", vP, vA4, all_init, 32)
    a(f"""ds_write_b32 v{vSy}, v{vOne} offset:12
    s_branch {K}_ggo
    {K}_gw:""")
    lds_wait(f"{K}_lw2", 3)
    a(f"{K}_ggo:")
    HC = [0, 1, 2, 3, 4]
    HWB, HAC, HOF = 8, 188, 228
    p3_wo_loads(a, HC, HWB, vWm, vWt)
    stamp(a, 8, SV)
    a("s_barrier")
    a("s_barrier")
    stamp(a, 10, SV)
    p3_compute(a, "h3", HC, HWB, HAC, HOF, 3, vOm, vOt, vRd)
    stamp(a, 11, SV)
    if OPT["stamp"]:
        a(f"v_mov_b32 v30, v{SV}\nv_mov_b32 v31, v{SV+1}")
    a(f"s_branch {K}_final")

def compute(a, K):
    stamp(a, 0, 30)
    vXr = [2, 3]
    vWa, vWm = 4, 5
    t0, t1, t2, t3, t4, t5 = 14, 15, 16, 17, 18, 19
    WF = 32
    XF = [96, 112]
    ACC = 128
    a(f"""v_and_b32 v{t0}, 15, v0
    v_lshrrev_b32 v{t1}, 4, v0
    v_bfe_u32 v{t2}, v0, 1, 3
    v_xor_b32 v{t2}, v{t2}, v{t1}
    v_lshlrev_b32 v{t2}, 4, v{t2}
    v_lshlrev_b32 v{t3}, 7, v{t0}
    s_lshl_b32 s{sT0}, s{sWv}, 12
    s_add_u32 s{sT0}, s{sT0}, {L_XR}
    v_add_u32 v{t3}, s{sT0}, v{t3}
    v_add_u32 v{vXr[0]}, v{t3}, v{t2}
    v_xor_b32 v{t2}, 64, v{t2}
    v_add_u32 v{vXr[1]}, v{t3}, v{t2}
    v_bfe_u32 v{t2}, v0, 2, 2
    v_lshl_add_u32 v{t2}, v{t1}, 3, v{t2}
    v_mul_u32_u24 v{t2}, 160, v{t2}
    v_and_b32 v{t3}, 3, v0
    v_lshlrev_b32 v{t3}, 3, v{t3}
    v_add_u32 v{vWa}, v{t2}, v{t3}
    s_mov_b32 s{sT0}, {128 | (80 << 8) | (32 << 16) | (144 << 24)}
    v_lshrrev_b32 v{t3}, v{t3}, s{sT0}
    v_and_b32 v{t3}, 0xff, v{t3}
    v_add_u32 v{vWm}, v{t2}, v{t3}""")
    for i in range(128): a(f"v_mov_b32 v{ACC+i}, 0")
    a(f"""s_cmp_eq_u32 s{sWv}, 0
    s_cselect_b32 s{sCnt}, 5, 100
    s_cbranch_scc0 {K}_norst
    s_lshl_b32 s{sT0}, s{sBH}, 7
    s_lshl_b32 s{sT1}, s{sC}, 2
    s_add_u32 s{sT0}, s{sT0}, s{sT1}
    s_add_u32 s{sT0}, s{sT0}, {WS_F}
    s_mov_b64 exec, 1
    buffer_store_dword v{ACC}, v{ACC}, s[{sWS}:{sWS+3}], s{sT0} offen sc1
    s_mov_b64 exec, -1
    {K}_norst:""")
    vKa, vTa, vVa, vInc, vIdx = 6, 7, 8, 9, 10
    vKw, vQw, vVw, vM0, vM1, vDs, vDt, vMul, vSq = 11, 12, 13, 20, 21, 22, 23, 24, 25
    sBlk, sScr = sXb, sRing
    a(f"""s_mul_i32 s{sBlk}, s{sWv}, {BLK}
    s_lshl_b32 s{sScr}, s{sWv}, 12
    s_add_u32 s{sScr}, s{sScr}, {L_XR + 2*16384}
    v_lshrrev_b32 v{t2}, 2, v{t0}
    v_and_b32 v{t3}, 3, v0
    v_lshl_add_u32 v{t4}, v{t2}, 3, v{t3}
    v_lshrrev_b32 v{t5}, 5, v0
    v_lshlrev_b32 v{t5}, 9, v{t5}
    v_and_b32 v{vQw}, 16, v0
    v_lshrrev_b32 v{vQw}, 1, v{vQw}
    v_add_u32 v{t5}, v{t5}, v{vQw}
    v_lshl_add_u32 v{vKw}, v{t4}, 4, v{t5}
    v_add_u32 v{vKw}, s{sBlk}, v{vKw}
    v_lshl_add_u32 v{vQw}, v{t0}, 4, v{t5}
    v_add_u32 v{vQw}, s{sScr}, v{vQw}
    v_mul_u32_u24 v{vVw}, 304, v{t1}
    v_lshl_add_u32 v{vVw}, v{t0}, 4, v{vVw}
    v_add_u32 v{vVw}, s{sBlk}, v{vVw}""")
    a(f"""v_mul_u32_u24 v{vM0}, 304, v{t2}
    v_lshl_add_u32 v{vM0}, v{t3}, 1, v{vM0}
    s_add_u32 s{sT0}, s{sBlk}, {4608+256}
    v_add_u32 v{vM0}, s{sT0}, v{vM0}
    s_add_u32 s{sT0}, s{sBlk}, 4096
    s_add_u32 s{sT1}, s{sScr}, {16384-1024}
    v_lshlrev_b32 v{t5}, 9, v{t1}
    v_add_u32 v{t5}, s{sT1}, v{t5}
    v_mov_b32 v{vM1}, s{sT0}
    v_cmp_eq_u32 vcc, 1, v{t1}
    v_mov_b32 v{vDs}, 32
    v_mov_b32 v{vDt}, {(2-32) & 0xffffffff}
    v_cndmask_b32 v{t5}, v{t5}, v{vM1}, vcc
    v_lshl_add_u32 v{t5}, v{t4}, 3, v{t5}
    v_cmp_eq_u32 vcc, 0, v{t1}
    v_mov_b32 v{t2}, 256
    v_mov_b32 v{t3}, {1216-8}
    v_cndmask_b32 v{vM0}, v{t5}, v{vM0}, vcc
    v_cndmask_b32 v{vDs}, v{vDs}, 8, vcc
    v_cndmask_b32 v{vDt}, v{vDt}, v{t3}, vcc
    v_cndmask_b32 v{t2}, v{t2}, 16, vcc
    v_add_u32 v{vM1}, v{vM0}, v{t2}
    v_cmp_eq_u32 vcc, 2, v{t1}
    v_mov_b32 v{vMul}, 1.0
    v_mov_b32 v{t2}, {f32(CSCALE)}
    v_cndmask_b32 v{vMul}, v{vMul}, v{t2}, vcc""")
    a(f"""v_and_b32 v{t2}, 16, v0
    v_lshrrev_b32 v{t2}, 2, v{t2}
    v_add_u32 v{t2}, v{t2}, v{t4}
    v_lshlrev_b32 v{vSq}, 3, v{t2}
    s_add_u32 s{sT1}, s{sScr}, 16384
    v_add_u32 v{vSq}, s{sT1}, v{vSq}
    v_and_b32 v{t0}, 31, v0
    v_lshrrev_b32 v{t1}, 5, v0
    v_mul_u32_u24 v{t3}, 304, v{t1}
    v_lshl_add_u32 v{t3}, v{t0}, 4, v{t3}
    v_mov_b32 v{vVa}, {OOBL}
    v_cmp_gt_u32 vcc, 19, v{t0}
    v_mov_b32 v{vInc}, 0
    v_mov_b32 v{t4}, {BLK}
    v_cndmask_b32 v{vVa}, v{vVa}, v{t3}, vcc
    v_cndmask_b32 v{vInc}, v{vInc}, v{t4}, vcc
    v_lshlrev_b32 v{vKa}, 4, v0
    v_lshlrev_b32 v{vTa}, 3, v0
    v_mov_b32 v{vIdx}, 0xdddddddd
    v_lshl_add_u32 v{t5}, v{t1}, 8, v{vSq}
    s_mov_b32 s{sWsrc}, 0
    s_mov_b32 s{sXm0}, 0""")
    vSqh = t5
    p3_scal(a)
    coff = (48, 0, 96, 0)
    def wfrag(k2):
        r = []
        for ct in range(4):
            va = vWm if ct == 3 else vWa
            for hf in range(2):
                r.append(f"ds_read_b64_tr_b16 {vr(WF+16*k2+4*ct+2*hf,2)}, v{va} offset:{L_WR + (32*k2+4*hf)*160 + coff[ct]}")
        return r
    def xread(buf):
        r = []
        for k2 in range(2):
            for s in range(2):
                r.append(f"ds_read_b128 {vr(XF[buf]+8*k2+4*s,4)}, v{vXr[k2]} offset:{2048*s}")
        return r
    xadv = [f"s_add_u32 s{sXm0}, s{sXm0}, 1", f"s_cmp_eq_u32 s{sXm0}, {RX}", f"s_cselect_b32 s{sXm0}, 0, s{sXm0}",
            f"s_cselect_b32 s{sT1}, s{sWk}, s{sWcnt}",
            f"v_add_u32 v{vXr[0]}, s{sT1}, v{vXr[0]}", f"v_add_u32 v{vXr[1]}, s{sT1}, v{vXr[1]}"]
    wadv = [f"s_add_u32 s{sWsrc}, s{sWsrc}, 1", f"s_cmp_eq_u32 s{sWsrc}, {RW}", f"s_cselect_b32 s{sWsrc}, 0, s{sWsrc}",
            f"s_cselect_b32 s{sT2}, s{sWm0}, s{sGk}",
            f"v_add_u32 v{vWa}, s{sT2}, v{vWa}", f"v_add_u32 v{vWm}, s{sT2}, v{vWm}"]
    a(f"""s_mov_b32 s{sWk}, {(-(RX-1)*16384) & 0xffffffff}
    s_mov_b32 s{sWcnt}, 16384
    s_mov_b32 s{sWm0}, {(-(RW-1)*10240) & 0xffffffff}
    s_mov_b32 s{sGk}, 10240
    s_barrier""")
    stamp(a, 1, 30)
    for m in xread(0) + xadv + wfrag(0) + wfrag(1): a(m)
    a(f"""s_mov_b32 s{sIt}, 9
    s_waitcnt lgkmcnt(0)
    {K}_p1:""")
    for tt in range(4):
        cur = XF[tt & 1]
        mf = []
        for k2 in range(2):
            for ct in range(4):
                for s in range(2):
                    d = ACC + 32 * tt + 16 * s + 4 * ct
                    w_, x_ = vr(WF + 16 * k2 + 4 * ct, 4), vr(cur + 8 * k2 + 4 * s, 4)
                    A_, B_ = (x_, w_) if ct == 2 else (w_, x_)
                    mf.append(f"v_mfma_f32_16x16x32_bf16 {vr(d,4)}, {A_}, {B_}, {vr(d,4)}")
        fill = {i: [] for i in range(-1, 16)}
        xr = xread((tt + 1) & 1)
        if tt == 0:
            fill[-1].append("s_waitcnt lgkmcnt(8)")
            for i in range(4): fill[i].append(xr[i])
            for i in range(6): fill[8 + i].append(xadv[i])
            fill[7].append("s_waitcnt lgkmcnt(4)")
        elif tt == 3:
            for i in range(4): fill[-1 + (i + 1) // 2].append(xr[i])
            w0, w1 = wfrag(0), wfrag(1)
            for ct in range(4):
                fill[2 * ct + 1] += [w0[2 * ct]]; fill[2 * ct + 2] += [w0[2 * ct + 1]]
                fill[8 + 2 * ct + 1] += [w1[2 * ct]]; fill[min(15, 8 + 2 * ct + 2)] += [w1[2 * ct + 1]]
            for i in range(6): fill[3 + i].append(xadv[i])
            fill[10].append(f"s_sub_u32 s{sIt}, s{sIt}, 1")
        else:
            for i in range(4): fill[i].append(xr[i])
            for i in range(6): fill[4 + i].append(xadv[i])
            if tt == 2:
                for i in range(6): fill[10 + i].append(wadv[i])
        a("s_barrier")
        for m in fill[-1]: a(m)
        for i in range(16):
            if not OPT.get("nomf"): a(mf[i])
            for m in fill[i]: a(m)
        if tt == 3:
            a(f"""s_waitcnt lgkmcnt(15)
            s_cmp_eq_u32 s{sIt}, s{sCnt}
            s_cbranch_scc1 {K}_rst
            {K}_rst_ret:
            s_cmp_lg_u32 s{sIt}, 0""")
        else:
            a("s_waitcnt lgkmcnt(0)")
    a(f"s_cbranch_scc1 {K}_p1")
    stamp(a, 2, 30)
    QM, QT = 32, 48
    KF, V0, V1, KT = [80, 84], [88, 92], [96, 100], 104
    vGl = 26
    TP = 108
    a(f"""s_mov_b32 s{sT3}, {f32(CSCALE)}
    v_mov_b32 v{TP+16}, 0x3f803f80
    v_mov_b32 v{TP+17}, 0x3f803f80
    v_mov_b32 v{TP+18}, 0x3f803f80
    v_mov_b32 v{TP+19}, 0x3f803f80
    v_mul_u32_u24 v{t0}, 304, v0
    v_add_u32 v{t0}, s{sBlk}, v{t0}
    s_waitcnt lgkmcnt(0)
    s_mov_b64 exec, 0xffff
    ds_write_b128 v{t0}, {vr(TP+16,4)} offset:{4608+288}
    s_mov_b64 exec, -1""")
    for tt in range(4):
        tp = (TP, 80)[tt % 2]
        for s in range(2):
            b = ACC + 32 * tt + 16 * s
            k_, q_, m_ = tp + 2 * s, tp + 4 + 2 * s, tp + 12 + s
            a(f"""v_cvt_pk_bf16_f32 v{k_}, v{b}, v{b+1}
            v_cvt_pk_bf16_f32 v{k_+1}, v{b+2}, v{b+3}
            v_mul_f32 v{b+4}, s{sT3}, v{b+4}
            v_mul_f32 v{b+5}, s{sT3}, v{b+5}
            v_mul_f32 v{b+6}, s{sT3}, v{b+6}
            v_mul_f32 v{b+7}, s{sT3}, v{b+7}
            ds_write_b64 v{vKw}, {vr(k_,2)} offset:{tt*1024 + s*64}
            v_cvt_pk_bf16_f32 v{q_}, v{b+4}, v{b+5}
            v_cvt_pk_bf16_f32 v{q_+1}, v{b+6}, v{b+7}
            v_mul_f32 v{b+12}, v{vMul}, v{b+12}
            v_mul_f32 v{b+13}, v{vMul}, v{b+13}
            ds_write_b64 v{vQw}, {vr(q_,2)} offset:{tt*1024 + s*256}
            v_cvt_pk_bf16_f32 v{m_}, v{b+12}, v{b+13}
            v_cvt_pk_bf16_f32 v{tp+8+2*s}, v{b+8}, v{b+9}
            v_cvt_pk_bf16_f32 v{tp+9+2*s}, v{b+10}, v{b+11}
            ds_write_b16 v{vM0}, v{m_}
            ds_write_b16_d16_hi v{vM1}, v{m_}""")
            dl = vDs if s == 0 else vDt
            if (tt, s) != (3, 1):
                a(f"""v_add_u32 v{vM0}, v{dl}, v{vM0}
                v_add_u32 v{vM1}, v{dl}, v{vM1}""")
        a(f"ds_write_b128 v{vVw}, {vr(tp+8,4)} offset:{4608 + tt*1216}")
    S = [128, 144, 160, 176]
    O = [192, 208, 224, 240]
    a(f"""v_add_u32 v{t0}, s{sScr}, v{vKa}
    s_waitcnt lgkmcnt(0)""")
    for x in range(4): a(f"ds_read_b128 {vr(QM+4*x,4)}, v{t0} offset:{1024*x}")
    a(f"""ds_read_b64 {vr(TP,2)}, v{vSqh}
    ds_read_b64 {vr(TP+2,2)}, v{vSq} offset:512""")
    for i in range(64): a(f"v_mov_b32 v{O[0]+i}, 0")
    a("""s_waitcnt lgkmcnt(0)
    s_barrier""")
    stamp(a, 3, 30)
    def ldK(t, buf): return f"ds_read_b128 {vr(KF[buf],4)}, v{vKa} offset:{(t//4)*BLK + (t%4)*1024}"
    def ldV(t, half, buf): return f"ds_read_b128 {vr((V0,V1)[half][buf],4)}, v{vVa} offset:{(t//4)*BLK + 4608 + (t%4)*1216 + 608*half}"
    def ldT(b): return f"ds_read_b64 {vr(KT,2)}, v{vTa} offset:{b*BLK + 4096}"
    def QKM(t, x, s, c="0"): return f"v_mfma_f32_32x32x16_bf16 {vr(s,16)}, {vr(KF[t%2],4)}, {vr(QM+4*x,4)}, {c}"
    def QKT(t, x, s): return f"v_mfma_f32_32x32x8_bf16 {vr(s,16)}, {vr(KT,2)}, {vr(QT+8*x+2*(t%4),2)}, {vr(s,16)}"
    def PV(half, t, x, s): return f"v_smfmac_f32_32x32x32_bf16 {vr(O[x],16)}, {vr((V0,V1)[half][t%2],4)}, {vr(s+8*half,8)}, v{vIdx}"
    a(ldK(0, 0)); a(ldT(0)); a(ldV(0, 0, 0)); a(ldV(0, 1, 0))
    for x in range(4):
        q, r = QT + 8 * x, TP + (x >> 1)
        if x % 2 == 0:
            a(f"""v_and_b32 v{q}, 0xffff, v{r}
            v_lshlrev_b32 v{q+2}, 16, v{r}
            v_lshlrev_b32 v{vGl+x}, 16, v{r+2}""")
        else:
            a(f"""v_lshrrev_b32 v{q}, 16, v{r}
            v_and_b32 v{q+2}, 0xffff0000, v{r}
            v_and_b32 v{vGl+x}, 0xffff0000, v{r+2}""")
        a(f"""v_mov_b32 v{q+1}, 0
        v_mov_b32 v{q+3}, 0
        v_mov_b32 v{q+4}, 0
        v_mov_b32 v{q+5}, v{q}
        v_mov_b32 v{q+6}, 0
        v_mov_b32 v{q+7}, v{q+2}""")
    for i in range(8): a(f"v_mov_b32 v{S[3]+8+i}, 0")
    for i in range(4): a(f"v_mov_b32 v{V1[1]+i}, 0")
    a(f"""s_mov_b32 s{sIt}, 0
    s_mov_b32 s{sCnt}, {(1<<3)|(1<<8)|(1<<14)}
    s_waitcnt lgkmcnt(0)""")
    a(QKM(0, 0, S[0])); a(QKT(0, 0, S[0])); a(QKM(0, 1, S[1])); a(QKT(0, 1, S[1]))
    a("s_nop 9")
    a(".p2align 6")
    a(f"{K}_att:")
    pos = (2, 6, 10, 14)
    for u in range(16):
        t, x = divmod(u, 4)
        tn, xn = divmod(u + 2, 4)
        tp_, xp = divmod(u - 1, 4)
        s, sn, sp = S[u % 4], S[(u + 2) % 4], S[(u - 1) % 4]
        ins = {i: [] for i in range(17)}
        ins[pos[0]].append(PV(1, tp_, xp, sp))
        ins[pos[1]].append(QKM(tn, xn, sn))
        ins[pos[2]].append(QKT(tn, xn, sn))
        ins[pos[3]].append(PV(0, t, x, s))
        if x == 0:
            ins[pos[0]].append(ldV(t + 1, 1, (t + 1) % 2))
            ins[pos[1]].append(ldK(t + 1, (t + 1) % 2))
            ins[pos[3]].append(ldV(t + 1, 0, (t + 1) % 2))
        if u == 13: ins[pos[2]].append(ldT(1))
        if x == 2: ins[pos[1]].insert(0, "s_waitcnt lgkmcnt(0)")
        if u == 11:
            ins[pos[3]] += [f"s_bitcmp1_b32 s{sCnt}, s{sIt}", f"s_cbranch_scc1 {K}_hook", f"{K}_hook_ret:"]
        if u == 15:
            ins[pos[0]].append(f"v_add_u32 v{vKa}, {BLK}, v{vKa}")
            ins[pos[1]].append(f"v_add_u32 v{vTa}, {BLK}, v{vTa}")
            ins[pos[2]].append(f"v_add_u32 v{vVa}, v{vInc}, v{vVa}")
            ins[pos[3]] += [f"s_add_u32 s{sIt}, s{sIt}, 1", f"s_cmp_lt_u32 s{sIt}, 16"]
        for i in range(16):
            for m in ins[i]: a(m)
            a(f"v_exp_f32 v{s+i}, v{s+i}")
    a(f"s_cbranch_scc1 {K}_att")
    a("s_nop 1")
    a(PV(1, 3, 3, S[3]))
    stamp(a, 8, 30)
    a(f"""s_cmp_ge_u32 s{sBH}, 32
    s_mov_b32 s{sT0}, {f32(-LOG2E)}
    s_cselect_b32 s{sT0}, {f32(LOG2E)}, s{sT0}""")
    for x in range(4): a(f"v_mul_f32 v{vGl+x}, s{sT0}, v{vGl+x}")
    for x in range(4): a(f"v_exp_f32 v{vGl+x}, v{vGl+x}")
    a(f"""s_lshl_b32 s{sT1}, s{sC}, 2
    s_add_u32 s{sT1}, s{sT1}, s{sWv}
    s_lshl_b32 s{sT1}, s{sT1}, 8
    s_add_u32 s{sT1}, s{sT1}, s{sBH}
    s_mul_i32 s{sT1}, s{sT1}, 1152
    s_add_u32 s{sRef}, s{sT1}, {WS_O}""")
    for x in range(4): a(f"v_add_f32 v{vGl+x}, 1.0, v{vGl+x}")
    a(f"""v_lshlrev_b32 v{t0}, 4, v0
    v_lshlrev_b32 v{t1}, 2, v0
    s_mov_b32 s{sT2}, {f32(2.0**-40)}
    s_mov_b32 s{sKo}, {f32(2.0**40) if not OPT['force_fb'] else f32(2.0**-39)}
    s_waitcnt lgkmcnt(0)""")
    for x in range(4):
        o = O[x]
        a(f"""v_cmp_le_f32 vcc, s{sT2}, v{o+10}
        v_cmp_ge_f32 s[{sEx}:{sEx+1}], s{sKo}, v{o+10}
        s_nop 1
        s_and_b32 vcc_lo, vcc_lo, s{sEx}
        s_cmp_eq_u32 vcc_lo, -1
        s_cbranch_scc0 {K}_fb{x}
        {K}_fbret{x}:
        v_mov_b32 v{t2}, v{o+10}
        s_nop 1
        v_permlane32_swap_b32 v{o+10}, v{t2}
        s_nop 1
        v_mul_f32 v{t2}, v{o+10}, v{vGl+x}
        v_rcp_f32 v{t2}, v{t2}
        s_nop 0""")
        for i in range(10): a(f"v_mul_f32 v{o+i}, v{t2}, v{o+i}")
        for i in range(4): a(f"v_cvt_pk_bf16_f32 v{o+12+i}, v{o+2*i}, v{o+2*i+1}")
        a(f"""v_cvt_pk_bf16_f32 v{o+11}, v{o+8}, v{o+9}
        s_xor_b32 s{sT1}, s{sTt}, {x}
        s_mul_i32 s{sT1}, s{sT1}, {64*1152}
        s_add_u32 s{sT1}, s{sT1}, s{sRef}
        buffer_store_dwordx4 {vr(o+12,4)}, v{t0}, s[{sWS}:{sWS+3}], s{sT1} offen sc1
        s_mov_b32 exec_hi, 0
        buffer_store_dword v{o+11}, v{t1}, s[{sWS}:{sWS+3}], s{sT1} offen offset:1024 sc1
        s_mov_b64 exec, -1""")
    vOm, vOt, vWm3, vWt, vRd = 2, 3, 4, 5, 6
    p3_addr(a, vOm, vOt, vWm3, vWt, vRd, t0, t1, t2)
    CC = [5, 6, 7, 8]
    CWB, COF, CAC = 32, 176, 0
    stamp(a, 9, 30)
    a("s_barrier")
    p3_wo_loads(a, CC, CWB, vWm3, vWt)
    stamp(a, 10, 30)
    p3_compute(a, "c3", CC, CWB, 224, COF, 6, vOm, vOt, vRd)
    stamp(a, 11, 30)
    a(f"{K}_final:")
    final_reduce(a, K, 30)
    a(f"{K}_end:")
    a("s_endpgm")
    a(f"""{K}_rst:
    s_lshl_b32 s{sT0}, s{sBH}, 2
    v_mov_b32 v28, s{sT0}
    v_mov_b32 v29, 1
    s_mov_b64 exec, 1
    s_waitcnt vmcnt(0)
    buffer_atomic_add v29, v28, s[{sD}:{sD+3}], 0 offen
    s_mov_b64 exec, -1
    s_branch {K}_rst_ret""")
    a(f"{K}_hook:")
    if OPT["stamp"]:
        a(f"s_cmp_eq_u32 s{sIt}, 3\ns_cbranch_scc0 {K}_hook2")
        stamp(a, 4, 30); a("s_barrier"); stamp(a, 5, 30); a(f"s_branch {K}_hook_ret")
        a(f"{K}_hook2:")
        stamp(a, 6, 30); a("s_barrier"); stamp(a, 7, 30); a(f"s_branch {K}_hook_ret")
    else:
        a(f"""s_barrier
        s_branch {K}_hook_ret""")
    FQ = S[3]
    for x in range(4):
        a(f"{K}_fb{x}:")
        for i in range(4): a(f"v_mov_b32 v{FQ+i}, v{QM+4*x+i}")
        for i in range(8): a(f"v_mov_b32 v{FQ+4+i}, v{QT+8*x+i}")
        a(f"s_call_b64 s[{sRet}:{sRet+1}], {K}_slow")
        for i in range(16): a(f"v_mov_b32 v{O[x]+i}, v{S[2]+i}")
        a(f"s_branch {K}_fbret{x}")
    a(f"{K}_slow:")
    va, vb, vc, vm = 20, 21, 22, 23
    def slow_addr():
        a(f"""v_lshlrev_b32 v{va}, 4, v0
        v_lshlrev_b32 v{vb}, 3, v0
        v_lshlrev_b32 v{vc}, 4, v{vInc}
        v_sub_u32 v{vc}, v{vVa}, v{vc}
        s_mov_b32 s{sIt}, 16""")
    def slow_qk(t, c):
        a(f"""v_mfma_f32_32x32x16_bf16 {vr(S[0],16)}, {vr(KF[0],4)}, {vr(FQ,4)}, {c}
        v_mfma_f32_32x32x8_bf16 {vr(S[0],16)}, {vr(KT,2)}, {vr(FQ+4+2*t,2)}, {vr(S[0],16)}
        s_nop 15""")
    def slow_next(lbl):
        a(f"""v_add_u32 v{va}, {BLK}, v{va}
        v_add_u32 v{vb}, {BLK}, v{vb}
        v_add_u32 v{vc}, v{vInc}, v{vc}
        s_sub_u32 s{sIt}, s{sIt}, 1
        s_cmp_lg_u32 s{sIt}, 0
        s_cbranch_scc1 {lbl}""")
    slow_addr()
    a(f"v_mov_b32 v{vm}, 0xff800000")
    a(f"{K}_sl1:")
    a(f"ds_read_b64 {vr(KT,2)}, v{vb} offset:4096")
    for t in range(4):
        a(f"""ds_read_b128 {vr(KF[0],4)}, v{va} offset:{1024*t}
        s_waitcnt lgkmcnt(0)""")
        slow_qk(t, "0")
        for i in range(8): a(f"v_max3_f32 v{vm}, v{S[0]+2*i}, v{S[0]+2*i+1}, v{vm}")
    slow_next(f"{K}_sl1")
    a(f"""v_mov_b32 v{S[0]}, v{vm}
    s_nop 1
    v_permlane32_swap_b32 v{vm}, v{S[0]}
    s_nop 1
    v_max_f32 v{vm}, v{vm}, v{S[0]}""")
    for i in range(16):
        a(f"v_sub_f32 v{S[1]+i}, 0, v{vm}")
        a(f"v_mov_b32 v{S[2]+i}, 0")
    slow_addr()
    a(f"{K}_sl2:")
    a(f"ds_read_b64 {vr(KT,2)}, v{vb} offset:4096")
    for t in range(4):
        a(f"""ds_read_b128 {vr(KF[0],4)}, v{va} offset:{1024*t}
        ds_read_b128 {vr(V0[0],4)}, v{vc} offset:{4608+1216*t}
        ds_read_b128 {vr(V1[0],4)}, v{vc} offset:{4608+1216*t+608}
        s_waitcnt lgkmcnt(0)""")
        slow_qk(t, vr(S[1], 16))
        for i in range(16): a(f"v_exp_f32 v{S[0]+i}, v{S[0]+i}")
        a(f"""s_nop 3
        v_smfmac_f32_32x32x32_bf16 {vr(S[2],16)}, {vr(V0[0],4)}, {vr(S[0],8)}, v{vIdx}
        v_smfmac_f32_32x32x32_bf16 {vr(S[2],16)}, {vr(V1[0],4)}, {vr(S[0]+8,8)}, v{vIdx}
        s_nop 7""")
    slow_next(f"{K}_sl2")
    a(f"""s_nop 15
    s_setpc_b64 s[{sRet}:{sRet+1}]""")

def main(out):
    ka = f"{NAME}_kernel"
    a = Asm(); kernel(a)
    t = f"""; gated mix of two MHA blocks: one fused kernel (QKV projection, attention, output projection); generated by gen/gen3.py
; @launch grid=(256,1,1) block=(512,1,1) lds={LDS_BYTES}
.amdgcn_target "amdgcn-amd-amdhsa--gfx950"
.text
.globl {ka}
.p2align 8
.type {ka},@function
{ka}:
{a.text()}.section .rodata,"a"
.p2align 6
.amdhsa_kernel {ka}
  .amdhsa_next_free_vgpr 256
  .amdhsa_next_free_sgpr 96
  .amdhsa_accum_offset 256
  .amdhsa_group_segment_fixed_size 0
  .amdhsa_kernarg_size 80
  .amdhsa_user_sgpr_count 2
  .amdhsa_user_sgpr_kernarg_segment_ptr 1
  .amdhsa_system_sgpr_workgroup_id_x 1
.end_amdhsa_kernel
"""
    open(out, "w").write(t)

if __name__ == "__main__":
    for kv in sys.argv[2:]:
        k, v = kv.split("=")
        OPT[k] = {"True": True, "False": False}.get(v, v)
    main(sys.argv[1])
```

```python
import sys, struct

NAME = "gated_mix__mha_block__mha_block__prompt"
def f32(x): return "0x%08x" % struct.unpack("<I", struct.pack("<f", x))[0]
CSCALE = (18 ** -0.5) * 1.4426950408889634
LOG2E = 1.4426950408889634

BLK = 9472
KVH = 16 * BLK
RING = 8 * BLK
WS_O = 0x0A00000
WS_WOM = 0x0F00000
WS_WOT = 0x1080000
WS_F = 0x10C0000
WS_STAMP = 0x1100000
WS_SIZE = 0x1200000
SENT = 0xffffffff
L_WR = 0
WSL = 16384
RW = 3
L_XR = 98304
L_SCR = 49152
L_GT = 155648
L_SYNC = L_GT + 3 * 2048 + 1536
L_WO = 151552
LDS_BYTES = 163840
RS = 592
L_O = 77824

class Asm:
    def __init__(self): self.l = []
    def __call__(self, s):
        for x in s.strip("\n").split("\n"):
            x = x.strip()
            if not x: continue
            self.l.append(x if x.endswith(":") else "    " + x)
    def text(self): return "\n".join(self.l) + "\n"

def vr(a, n): return f"v[{a}:{a+n-1}]"
OPT = dict(force_fb=False, stamp=False, rx="6", txor="0", nb="4", cprio="3")

def srd(a, d, lo, hi, size):
    a(f"""s_mov_b32 s{d}, s{lo}
    s_and_b32 s{d+1}, s{hi}, 0xffff
    s_mov_b32 s{d+2}, {size}
    s_mov_b32 s{d+3}, 0x00020000""")

sX, sW, sWo, sG, sD, sWS, sOut = 8, 12, 16, 20, 24, 28, 84
sWv, sPr, sE, sHd, sRot = 32, 33, 34, 35, 36
sT0, sT1, sT2, sT3 = 37, 38, 39, 40
sRef, sCnt, sKo, sXb, sRing, sIt, sKVg, sSpin, sW8 = 41, 42, 43, 44, 45, 46, 47, 48, 49
sRet, sEx = 50, 52
sWsrc, sWm0, sWk, sWcnt, sXm0, sGk, sTt, sBH = 54, 55, 62, 63, 76, 77, 78, 79
sP3T, sP3C, sOb, sWmb, sWtb, sHH, sTH, sOtb = 88, 89, 90, 91, 92, 93, 94, 95
SV = 254
sGO = [66, 67, 68, 69]
sGW = [70, 71, 72, 73]

def stamp(a, idx, vreg):
    if not OPT["stamp"]: return
    a(f"""s_memrealtime s[80:81]
    s_memtime s[82:83]
    s_waitcnt lgkmcnt(0)
    v_writelane_b32 v{vreg}, s80, {idx}
    v_writelane_b32 v{vreg+1}, s82, {idx}""")
def sstamp(a, k):
    if not OPT["stamp"]: return
    a(f"""s_memrealtime s[80:81]
    s_waitcnt lgkmcnt(0)
    s_mov_b32 s{96+k}, s80""")
def stamp_out(a, vreg, vt=1, mask=None):
    if not OPT["stamp"]: return
    a(f"""s_lshl_b32 s80, s2, 3
    s_add_u32 s80, s80, s{sW8}
    s_lshl_b32 s80, s80, 8
    s_add_u32 s80, s80, {WS_STAMP}
    v_lshlrev_b32 v{vt}, 3, v0
    s_mov_b32 exec_hi, 0""")
    if mask is not None: a(f"s_mov_b32 exec_lo, {mask}")
    a(f"""buffer_store_dwordx2 v[{vreg}:{vreg+1}], v{vt}, s[{sWS}:{sWS+3}], s80 offen
    s_mov_b64 exec, -1""")

def p3_addr(a, vOm, vOt, vWm, vWt, vRd, t0, t1, t2):
    a(f"""v_and_b32 v{t0}, 15, v0
    v_lshrrev_b32 v{t1}, 5, v0
    v_bfe_u32 v{t2}, v0, 4, 1
    s_mul_i32 s{sT3}, s{sWv}, 20480
    s_add_u32 s{sT3}, s{sT3}, {L_O}
    v_mul_u32_u24 v{vOm}, 1152, v{t1}
    v_lshl_add_u32 v{vOm}, v{t2}, 9, v{vOm}
    v_lshl_add_u32 v{vOm}, v{t0}, 4, v{vOm}
    v_add_u32 v{vOm}, s{sT3}, v{vOm}
    v_mul_u32_u24 v{vWm}, 4608, v{t1}
    v_lshl_add_u32 v{vWm}, v{t2}, 8, v{vWm}
    v_lshl_add_u32 v{vWm}, v{t0}, 4, v{vWm}
    v_lshrrev_b32 v{t1}, 4, v0
    v_mul_u32_u24 v{vOt}, 5120, v{t1}
    v_lshl_add_u32 v{vOt}, v{t0}, 2, v{vOt}
    v_add_u32 v{vOt}, s{sT3}, v{vOt}
    v_add_u32 v{t2}, s{sP3C}, v{t1}
    v_and_b32 v{t2}, 3, v{t2}
    v_mul_u32_u24 v{vWt}, {4*2304}, v{t2}
    v_lshl_add_u32 v{vWt}, v{t0}, 4, v{vWt}
    v_mul_u32_u24 v{vRd}, {RS}, v{t0}
    v_lshl_add_u32 v{vRd}, v{t1}, 4, v{vRd}
    s_mul_i32 s{sT3}, s{sWv}, {32*RS}
    v_add_u32 v{vRd}, s{sT3}, v{vRd}""")
def p3_scal(a):
    a(f"""s_and_b32 s{sP3T}, s2, 7
    s_lshr_b32 s{sT0}, s2, 5
    s_lshl_b32 s{sT0}, s{sT0}, 3
    s_add_u32 s{sP3T}, s{sP3T}, s{sT0}
    s_lshr_b32 s{sP3C}, s2, 3
    s_and_b32 s{sP3C}, s{sP3C}, 3
    s_lshl_b32 s{sOb}, s{sP3T}, 6
    s_lshl_b32 s{sT3}, s{sWv}, 2
    s_add_u32 s{sOb}, s{sOb}, s{sT3}
    s_mul_i32 s{sOb}, s{sOb}, 1152
    s_add_u32 s{sOb}, s{sOb}, {WS_O}
    s_lshl_b32 s{sWmb}, s{sP3C}, 6
    s_add_u32 s{sWmb}, s{sWmb}, s{sT3}
    s_mul_i32 s{sWmb}, s{sWmb}, 4608
    s_add_u32 s{sWmb}, s{sWmb}, {WS_WOM}
    s_lshl_b32 s{sWtb}, s{sP3C}, 4
    s_add_u32 s{sWtb}, s{sWtb}, s{sWv}
    s_mul_i32 s{sWtb}, s{sWtb}, 2304
    s_add_u32 s{sWtb}, s{sWtb}, {WS_WOT}""")
    for g in range(4):
        a(f"""s_add_u32 s{sT3}, s{sP3C}, {g}
        s_and_b32 s{sT3}, s{sT3}, 3
        s_mul_i32 s{sGO[g]}, s{sT3}, {16*1152}
        s_add_u32 s{sGO[g]}, s{sGO[g]}, s{sOb}
        s_mul_i32 s{sGW[g]}, s{sT3}, {16*4608}
        s_add_u32 s{sGW[g]}, s{sGW[g]}, s{sWmb}""")
def p3_wo_loads(a, cts, reg, vWm, vWt):
    for s in range(8):
        a(f"s_add_u32 s{sT3}, s{sGW[s>>1]}, {2*(s&1)*4608 + 512*cts[0]}")
        for i, ct in enumerate(cts):
            a(f"buffer_load_dwordx4 {vr(reg(s,ct),4)}, v{vWm}, s[{sWS}:{sWS+3}], s{sT3} offen offset:{512*i} sc1")
    for ct in cts:
        a(f"buffer_load_dwordx4 {vr(reg(8,ct),4)}, v{vWt}, s[{sWS}:{sWS+3}], s{sWtb} offen offset:{256*ct} sc1")
def p3_oread(a, g, OF, vOm):
    for k in range(2):
        for th in range(2):
            a(f"ds_read_b128 {vr(OF+8*k+4*th,4)}, v{vOm} offset:{5120*g + 2304*k + 256*th}")
def p3_mf(a, cts, reg, AC, st, o):
    for i, ct in enumerate(cts):
        for th in range(2):
            d = AC + 8 * i + 4 * th
            a(f"v_mfma_f32_16x16x32_bf16 {vr(d,4)}, {vr(reg(st,ct),4)}, {vr(o+4*th,4)}, {vr(d,4)}")
def p3_tail(a, cts, reg, AC, OF, vOt, vRd):
    for th in range(2):
        for i in range(4):
            a(f"ds_read_b32 v{OF+4*th+i}, v{vOt} offset:{1152*i + 1024 + 64*th}")
    a("s_waitcnt lgkmcnt(0)")
    p3_mf(a, cts, reg, AC, 8, OF)
    sstamp(a, 5)
    a("s_nop 7")
    for i, ct in enumerate(cts):
        for th in range(2):
            a(f"ds_write_b128 v{vRd}, {vr(AC+8*i+4*th,4)} offset:{16*th*RS + 64*ct}")
def p3_helper(a, cts, reg, AC, OF, vOm, vOt, vRd, vL16, vVa, vSy, slp):
    L = "h3"
    sDone, sLo = sCnt, sKo
    a(f"""s_mov_b32 s{sSpin}, 20000
    s_mov_b32 s{sIt}, {SENT}
    s_mov_b32 s{sDone}, 0
    {L}_round:""")
    for g in range(4):
        a(f"""s_bitcmp1_b32 s{sDone}, {g}
        s_cbranch_scc1 {L}_l{g}
        s_add_u32 m0, s{sLo}, {5120*g}
        s_add_u32 s{sT3}, s{sGO[g]}, 4096""")
        for i in range(4):
            a(f"buffer_load_dwordx4 v{vL16}, s[{sWS}:{sWS+3}], s{sGO[g]} offen offset:{1024*i} sc1 lds")
        a(f"""s_add_u32 m0, s{sLo}, {5120*g + 4096}
        s_mov_b32 exec_hi, 0
        buffer_load_dwordx4 v{vL16}, s[{sWS}:{sWS+3}], s{sT3} offen sc1 lds
        s_mov_b64 exec, -1
        {L}_l{g}:""")
    if OPT["stamp"]:
        a(f"s_cmp_eq_u32 s{sSpin}, 20000\ns_cbranch_scc0 {L}_ns0"); sstamp(a, 2); a(f"{L}_ns0:")
    a(f"""s_cmp_eq_u32 s{sDone}, 0
    s_cbranch_scc1 {L}_chk
    s_waitcnt vmcnt(0)
    {L}_chk:""")
    for g in range(4):
        a(f"""s_bitcmp1_b32 s{sDone}, {g}
        s_cbranch_scc1 {L}_n{g}
        s_waitcnt vmcnt({5*(3-g)})""")
        p3_oread(a, g, OF, vOm)
        a(f"""ds_read_b64 {vr(OF+16,2)}, v{vVa} offset:{5120*g}
        s_waitcnt lgkmcnt(0)
        v_max3_u32 v1, v{OF}, v{OF+4}, v{OF+8}
        v_max3_u32 v1, v{OF+12}, v{OF+16}, v1
        v_max_u32 v1, v{OF+17}, v1
        v_cmp_eq_u32 vcc, s{sIt}, v1
        s_nop 1
        s_cbranch_vccnz {L}_n{g}
        s_bitset1_b32 s{sDone}, {g}
        v_mov_b32 v1, s{sDone}
        ds_write_b32 v{vSy}, v1""")
        p3_mf(a, cts, reg, AC, 2 * g, OF)
        p3_mf(a, cts, reg, AC, 2 * g + 1, OF + 8)
        a(f"{L}_n{g}:")
    if OPT["stamp"]:
        a(f"""s_cmp_eq_u32 s{sSpin}, 20000
        s_cbranch_scc0 {L}_ns""")
        sstamp(a, 3)
        a(f"s_mov_b32 s100, s{sDone}")
        a(f"{L}_ns:")
    a(f"""s_cmp_eq_u32 s{sDone}, 15
    s_cbranch_scc1 {L}_done
    s_sub_u32 s{sSpin}, s{sSpin}, 1
    s_cmp_lt_i32 s{sSpin}, 0
    s_cbranch_scc1 {L}_giveup
    s_sleep {slp}
    s_branch {L}_round
    {L}_giveup:
    v_mov_b32 v1, 15
    ds_write_b32 v{vSy}, v1
    {L}_done:""")
    p3_tail(a, cts, reg, AC, OF, vOt, vRd)
def p3_comp(a, cts, reg, AC, OF, vOm, vOt, vRd, vSy):
    L = "c3"
    sDone = sCnt
    a(f"""s_mov_b32 s{sSpin}, 4000000
    s_mov_b32 s{sDone}, 0
    s_waitcnt vmcnt(8)
    {L}_round:
    ds_read_b32 v1, v{vSy}
    s_waitcnt lgkmcnt(0)
    v_readfirstlane_b32 s{sT0}, v1
    s_andn2_b32 s{sT0}, s{sT0}, s{sDone}
    s_or_b32 s{sDone}, s{sDone}, s{sT0}""")
    for g in range(4):
        a(f"""s_bitcmp1_b32 s{sT0}, {g}
        s_cbranch_scc0 {L}_n{g}""")
        p3_oread(a, g, OF, vOm)
        a("s_waitcnt lgkmcnt(2)")
        p3_mf(a, cts, reg, AC, 2 * g, OF)
        a("s_waitcnt lgkmcnt(0)")
        p3_mf(a, cts, reg, AC, 2 * g + 1, OF + 8)
        a(f"{L}_n{g}:")
    a(f"""s_cmp_eq_u32 s{sDone}, 15
    s_cbranch_scc1 {L}_done
    s_sub_u32 s{sSpin}, s{sSpin}, 1
    s_cmp_lt_i32 s{sSpin}, 0
    s_cbranch_scc0 {L}_round
    {L}_done:""")
    p3_tail(a, cts, reg, AC, OF, vOt, vRd)

def kernel(a):
    K = "k"
    if OPT["stamp"]: a("s_memrealtime s[96:97]")
    a(f"""
    s_cmp_ge_u32 s2, 256
    s_cbranch_scc1 {K}_end
    s_load_dwordx4 s[56:59], s[0:1], 0
    s_load_dwordx2 s[60:61], s[0:1], 16
    s_load_dwordx4 s[64:67], s[0:1], 32
    s_load_dwordx4 s[68:71], s[0:1], 48
    s_load_dwordx4 s[72:75], s[0:1], 64
    v_lshrrev_b32 v1, 6, v0
    v_and_b32 v0, 63, v0
    s_lshr_b32 s{sT0}, s2, 3
    v_readfirstlane_b32 s{sW8}, v1
    s_and_b32 s{sT1}, s{sT0}, 3
    s_lshr_b32 s{sT2}, s{sT0}, 2
    s_and_b32 s{sE}, s2, 1
    s_lshl_b32 s{sE}, s{sE}, 2
    s_add_u32 s{sE}, s{sE}, s{sT1}
    s_and_b32 s{sPr}, s2, 6
    s_lshl_b32 s{sPr}, s{sPr}, 2
    s_add_u32 s{sPr}, s{sPr}, s{sT2}
    s_lshl_b32 s{sRot}, s{sT1}, 1
    s_add_u32 s{sRot}, s{sRot}, s{sT2}
    s_sub_u32 s{sT1}, s{sRot}, 9
    s_cmp_ge_u32 s{sRot}, 9
    s_cselect_b32 s{sRot}, s{sT1}, s{sRot}
    s_and_b32 s{sWv}, s{sW8}, 3
    s_lshr_b32 s{sHH}, s{sWv}, 1
    s_and_b32 s{sTH}, s{sWv}, 1
    s_lshl_b32 s{sBH}, s{sPr}, 1
    s_add_u32 s{sBH}, s{sBH}, s{sHH}
    s_mul_i32 s{sKVg}, s{sBH}, {KVH}
    s_waitcnt lgkmcnt(0)
    s_cmp_ge_u32 s{sPr}, 16
    s_cselect_b32 s58, s64, s58
    s_cselect_b32 s59, s65, s59
    s_cselect_b32 s60, s66, s60
    s_cselect_b32 s61, s67, s61""")
    srd(a, sW, 58, 59, 576 * 3456)
    srd(a, sX, 56, 57, 2048 * 1152)
    srd(a, sG, 68, 69, 1152)
    srd(a, sWS, 74, 75, WS_SIZE)
    srd(a, sOut, 70, 71, 2048 * 1152)
    srd(a, sD, 72, 73, 256)
    if OPT["txor"] == "1":
        a(f"s_and_b32 s{sTt}, s2, 2")
    else:
        a(f"s_mov_b32 s{sTt}, 0")
    a(f"""s_cmp_ge_u32 s{sW8}, 4
    s_cbranch_scc0 {K}_compute""")
    helper(a, K)
    a(f"{K}_compute:")
    compute(a, K)

def final_reduce(a, K, SVr):
    a(f"""s_lshl_b32 s{sT3}, s{sW8}, 6
    v_add_u32 v1, s{sT3}, v0
    s_mul_i32 s{sT0}, s{sP3T}, {32*1152}
    s_mul_i32 s{sT1}, s{sP3C}, 288
    s_add_u32 s{sT0}, s{sT0}, s{sT1}""")
    for r in range(2):
        a(f"""v_add_u32 v2, {512*r}, v1
        v_mul_u32_u24 v3, 3641, v2
        v_lshrrev_b32 v3, 16, v3
        v_mul_u32_u24 v4, 18, v3
        v_sub_u32 v4, v2, v4
        v_mul_u32_u24 v{6+r}, {RS}, v3
        v_lshl_add_u32 v{6+r}, v4, 5, v{6+r}
        v_mul_u32_u24 v{8+r}, 1152, v3
        v_lshl_add_u32 v{8+r}, v4, 4, v{8+r}""")
    a("""s_waitcnt lgkmcnt(0)
    s_barrier""")
    for r in range(2):
        if r == 1:
            if OPT["stamp"]: a("s_waitcnt vmcnt(0)")
            stamp(a, 15, SVr)
            if OPT["stamp"]:
                for k in range(6): a(f"v_writelane_b32 v{SVr}, s{96+k}, {20+k}")
                a(f"s_sub_u32 s80, 20000, s{sSpin}\nv_writelane_b32 v{SVr}, s80, 26")
            stamp_out(a, SVr)
            a(f"""s_cmp_eq_u32 s{sW8}, 0
            s_cbranch_scc0 {K}_end""")
        b = 32 + 32 * r
        for w in range(4):
            for hf in range(2):
                a(f"ds_read_b128 {vr(b+8*w+4*hf,4)}, v{6+r} offset:{w*32*RS + 16*hf}")
        a("s_waitcnt lgkmcnt(4)")
        for i in range(8): a(f"v_add_f32 v{b+i}, v{b+i}, v{b+8+i}")
        a("s_waitcnt lgkmcnt(0)")
        for i in range(8): a(f"v_add_f32 v{b+16+i}, v{b+16+i}, v{b+24+i}")
        for i in range(8): a(f"v_add_f32 v{b+i}, v{b+i}, v{b+16+i}")
        for i in range(4): a(f"v_cvt_pk_bf16_f32 v{b+8+i}, v{b+2*i}, v{b+2*i+1}")
        a(f"buffer_store_dwordx4 {vr(b+8,4)}, v{8+r}, s[{sOut}:{sOut+3}], s{sT0} offen {OPT.get('osc','')}")

def poll(a, lbl, ld, cond, slp):
    a(f"""s_mov_b32 s{sSpin}, 40000
    {lbl}:
    {ld}
    s_waitcnt vmcnt(0)""")
    cond()
    a(f"""s_cbranch_scc1 {lbl}_go
    s_sub_u32 s{sSpin}, s{sSpin}, 1
    s_cmp_eq_u32 s{sSpin}, 0
    s_cbranch_scc1 {lbl}_go
    s_sleep {slp}
    s_branch {lbl}
    {lbl}_go:""")

CL = [5, 6, 7]
def wo_lds_base(w): return (w >> 1) * RING + (w & 1) * 27648

def helper(a, K):
    RX = int(OPT["rx"])
    stamp(a, 0, SV)
    a("s_setprio 2")
    vXs, vWs = [2, 3], [4, 5]
    vL16, vGr, vGw = 7, 8, 9
    t0, t1, t2, t3 = 10, 11, 12, 13
    vGv = 14
    WM = [sum(1 << L for L in range(64) if ((L & 15) ^ (((L >> 4) | (hi << 2)) << 1)) != 15) for hi in range(2)]
    sM0, sM1 = sEx, 64
    a(f"""v_lshrrev_b32 v{t0}, 4, v0
    v_lshlrev_b32 v{t1}, 1, v{t0}
    v_and_b32 v{t2}, 15, v0
    v_xor_b32 v{t1}, v{t1}, v{t2}
    v_mul_u32_u24 v{t0}, 3456, v{t0}""")
    for hi in range(2):
        if hi: a(f"v_xor_b32 v{t1}, 8, v{t1}")
        a(f"""v_mul_u32_u24 v{t2}, 52, v{t1}
        v_lshrrev_b32 v{t2}, 8, v{t2}
        v_mul_u32_u24 v{t2}, {1152-80}, v{t2}
        v_lshl_add_u32 v{t2}, v{t1}, 4, v{t2}
        v_add_u32 v{vWs[hi]}, v{t0}, v{t2}""")
    a(f"""v_lshlrev_b32 v{vL16}, 4, v0
    s_mul_i32 s{sT0}, s{sWv}, {16*3456}
    s_and_b32 s{sT1}, s{sPr}, 15
    s_mul_i32 s{sT1}, s{sT1}, 72
    s_add_u32 s{sWsrc}, s{sT0}, s{sT1}
    s_mul_i32 s{sWk}, s{sRot}, {64*3456}
    s_add_u32 s{sWcnt}, s{sWsrc}, s{sWk}
    s_lshl_b32 s{sWm0}, s{sWv}, 12
    s_lshl_b32 s{sT2}, s{sWv}, 11
    s_add_u32 s{sT2}, s{sT2}, {L_GT}
    s_mov_b32 s{sM0}, {WM[0] & 0xffffffff}
    s_mov_b32 s{sM0+1}, {WM[0] >> 32}
    s_mov_b32 s{sM1}, {WM[1] & 0xffffffff}
    s_mov_b32 s{sM1+1}, {WM[1] >> 32}""")
    def wdma2(hi):
        m = (sM0, sM1)[hi]
        a(f"""s_add_u32 m0, s{sWm0}, {L_WR + hi*2048}
        s_add_u32 s{sT0}, s{sWcnt}, {hi*8*3456}
        s_add_u32 s{sT1}, s{sWcnt}, {hi*8*3456 + 4*3456 - 1024}
        s_mov_b64 exec, s[{m}:{m+1}]
        buffer_load_dwordx4 v{vWs[hi]}, s[{sW}:{sW+3}], s{sT0} offen lds
        buffer_load_dwordx4 v{vWs[hi]}, s[{sW}:{sW+3}], s{sT1} offen offset:1024 lds
        s_mov_b64 exec, -1""")
    def wnext():
        a(f"""s_add_u32 s{sWk}, s{sWk}, {64*3456}
        s_cmp_ge_u32 s{sWk}, {576*3456}
        s_cselect_b32 s{sWk}, 0, s{sWk}
        s_add_u32 s{sWcnt}, s{sWsrc}, s{sWk}
        s_add_u32 s{sWm0}, s{sWm0}, {WSL}
        s_sub_u32 s{sT0}, s{sWm0}, {RW*WSL}
        s_cmp_ge_u32 s{sWm0}, {RW*WSL}
        s_cselect_b32 s{sWm0}, s{sT0}, s{sWm0}""")
    order = []
    a(f"""s_mov_b32 m0, s{sT2}
    s_nop 0
    buffer_load_dwordx4 v{vL16}, s[{sG}:{sG+3}], 0 offen lds
    s_mov_b64 exec, 0xff
    buffer_load_dwordx4 v{vL16}, s[{sG}:{sG+3}], 0 offen offset:1024 lds
    s_mov_b64 exec, -1""")
    order += ["G"] * 2
    wdma2(0); wdma2(1)
    order += ["W0"] * 4
    wnext()
    a(f"""v_lshrrev_b32 v{t0}, 3, v0
    v_mul_u32_u24 v{t0}, 1152, v{t0}
    v_and_b32 v{t1}, 7, v0
    v_lshrrev_b32 v{t2}, 4, v0
    v_xor_b32 v{t1}, v{t1}, v{t2}
    v_lshlrev_b32 v{t1}, 4, v{t1}
    v_xor_b32 v{t2}, 64, v{t1}
    v_add_u32 v{vXs[0]}, v{t0}, v{t1}
    v_add_u32 v{vXs[1]}, v{t0}, v{t2}
    v_add_u32 v{vXs[1]}, {8*1152-1024}, v{vXs[1]}
    s_lshl_b32 s{sXb}, s{sE}, 4
    s_lshl_b32 s{sT0}, s{sHH}, 3
    s_add_u32 s{sXb}, s{sXb}, s{sT0}
    s_add_u32 s{sXb}, s{sXb}, s{sTH}
    s_mul_i32 s{sXb}, s{sXb}, {16*1152}
    s_lshl_b32 s{sKo}, s{sRot}, 7
    s_lshl_b32 s{sRing}, s{sWv}, 11
    s_add_u32 s{sRing}, s{sRing}, {L_XR}
    s_add_u32 s{sRef}, s{sXb}, s{sKo}
    s_mov_b32 s{sXm0}, s{sRing}""")
    sTo = [56, 57, 58, 59]
    for tt in range(4):
        a(f"""s_xor_b32 s{sTo[tt]}, s{sTt}, {tt}
        s_mul_i32 s{sTo[tt]}, s{sTo[tt]}, {32*1152}""")
    xstate = [0]
    def xnext():
        a(f"""s_add_u32 s{sKo}, s{sKo}, 128
        s_cmp_ge_u32 s{sKo}, 1152
        s_cselect_b32 s{sKo}, 0, s{sKo}
        s_add_u32 s{sRef}, s{sXb}, s{sKo}""")
    def xdma(j):
        tt = j & 3
        if tt == 0 and j: xnext()
        a(f"""s_mov_b32 m0, s{sXm0}
        s_add_u32 s{sT0}, s{sRef}, s{sTo[tt]}
        buffer_load_dwordx4 v{vXs[0]}, s[{sX}:{sX+3}], s{sT0} offen lds
        buffer_load_dwordx4 v{vXs[1]}, s[{sX}:{sX+3}], s{sT0} offen offset:1024 lds
        s_add_u32 s{sXm0}, s{sXm0}, 8192
        s_cmp_ge_u32 s{sXm0}, {L_XR + RX*8192}
        s_cselect_b32 s{sXm0}, s{sRing}, s{sXm0}""")
    xdma(0); xdma(1)
    order += ["X0"] * 2 + ["X1"] * 2
    stamp(a, 16, SV)
    srd(a, sWo, 60, 61, 576 * 1152)
    a(f"""s_lshl_b32 s{sT0}, s{sWv}, 5
    s_add_u32 s{sT0}, s{sT0}, s{sT2}
    v_lshl_add_u32 v{vGr}, v0, 1, s{sT0}
    v_and_b32 v{t1}, 3, v0
    v_lshlrev_b32 v{t1}, 1, v{t1}
    v_and_b32 v{t2}, 8, v0
    v_or_b32 v{t1}, v{t1}, v{t2}
    v_xor_b32 v{t1}, 15, v{t1}
    v_lshlrev_b32 v{t1}, 4, v{t1}
    v_lshl_add_u32 v{t1}, v0, 8, v{t1}
    s_lshl_b32 s{sGk}, s{sRot}, 7
    v_mov_b32 v{t0}, {L_SYNC}
    v_mov_b32 v20, 0
    v_mov_b32 v21, 0
    v_mov_b32 v22, 0
    v_mov_b32 v23, 0
    ds_write_b128 v{t0}, v[20:23]
    ds_write_b128 v{t0}, v[20:23] offset:16
    ds_write_b128 v{t0}, v[20:23] offset:32""")
    def gate(slotreg):
        a(f"""v_add_u32 v{t0}, s{sGk}, v{vGr}
        s_mov_b64 exec, 0xffff
        ds_read_u16 v{vGv}, v{t0}
        v_add_u32 v{t0}, s{slotreg}, v{t1}
        s_add_u32 s{sGk}, s{sGk}, 128
        s_cmp_ge_u32 s{sGk}, 1152
        s_cselect_b32 s{sGk}, 0, s{sGk}
        s_waitcnt lgkmcnt(0)
        ds_write2_b32 v{t0}, v{vGv}, v{vGv} offset0:0 offset1:1
        s_mov_b64 exec, -1""")
    a(f"""s_sub_u32 s{sT3}, s{sWm0}, {WSL}
    s_waitcnt vmcnt(8)""")
    stamp(a, 17, SV)
    gate(sT3); gate(sWm0)
    a("""s_waitcnt vmcnt(2) lgkmcnt(0)
    s_barrier""")
    stamp(a, 1, SV)
    xdma(2)
    wdma2(0); wdma2(1)
    wnext()
    order += ["X2"] * 2 + ["W1"] * 4
    for j in range(3, RX - 1):
        xdma(j); order += [f"X{j}"] * 2
    stamp(a, 18, SV)
    a(f"""s_mov_b32 s{sIt}, 0
    {K}_hl:""")
    for tt in (0, 2):
        a(f"""s_waitcnt vmcnt(@W{tt}@) lgkmcnt(0)
        s_barrier""")
        if not OPT.get("noh"):
            wdma2(tt >> 1)
            xdma(tt + RX - 1); xdma(tt + RX)
            if tt == 0: gate(sWm0)
    wnext()
    a(f"""s_add_u32 s{sIt}, s{sIt}, 1
    s_cmp_lt_u32 s{sIt}, 7
    s_cbranch_scc1 {K}_hl""")
    need = {0: 99, 2: 99}
    for j in range(0, 36, 2):
        req = [f"X{min(j+2,35)}"]
        if j % 4 == 2 and j // 4 + 1 <= 8: req.append(f"W{j//4+1}")
        last = max(i for i, o in enumerate(order) if o in req)
        n_ = len(order) - 1 - last
        if j < 28:
            need[j % 4] = min(need[j % 4], n_)
            order += [f"W{j//4+2}"] * 2 + [f"X{j+RX-1}"] * 2 + [f"X{j+RX}"] * 2
        else:
            a(f"""s_waitcnt vmcnt({n_})
            s_barrier""")
            for jj in (j + RX - 1, j + RX):
                if jj <= 35:
                    xdma(jj); order += [f"X{jj}"] * 2
    for i in (0, 2): a.l = [x.replace(f"@W{i}@", str(need[i])) for x in a.l]
    stamp(a, 2, SV)
    sPH, sPC = sWsrc, sWm0
    vWos = 6
    a(f"""s_lshl_b32 s{sPH}, s{sPr}, 1
    s_and_b32 s{sT0}, s{sE}, 1
    s_add_u32 s{sPH}, s{sPH}, s{sT0}
    s_lshr_b32 s{sPC}, s{sE}, 1
    v_mul_u32_u24 v{t0}, 57, v0
    v_lshrrev_b32 v{t0}, 10, v{t0}
    v_mul_u32_u24 v{t1}, 18, v{t0}
    v_sub_u32 v{t1}, v0, v{t1}
    v_lshlrev_b32 v{t1}, 4, v{t1}
    s_lshl_b32 s{sT0}, s{sT0}, 1
    s_mul_i32 s{sT1}, s{sWv}, 3
    s_add_u32 s{sT0}, s{sT0}, s{sT1}
    v_add_u32 v{t0}, s{sT0}, v{t0}
    v_mul_u32_u24 v{vWos}, 1152, v{t0}
    v_add_u32 v{vWos}, v{vWos}, v{t1}
    v_cmp_le_u32 vcc, 6, v{t0}
    v_add_u32 v{t2}, {12*1152}, v{vWos}
    v_subrev_u32 v{t3}, {6*1152}, v{vWos}
    v_cndmask_b32 v{t2}, v{t2}, v{t3}, vcc
    s_and_b32 s{sT0}, s{sPH}, 31
    s_mul_i32 s{sT0}, s{sT0}, {18*1152}
    s_mul_i32 s{sT1}, s{sPC}, 288
    s_add_u32 s{sT0}, s{sT0}, s{sT1}
    s_mul_i32 s{sT1}, s{sWv}, 864
    s_add_u32 m0, s{sT1}, {L_WO}
    s_mov_b32 exec_hi, 0x003fffff
    buffer_load_dwordx4 v{vWos}, s[{sWo}:{sWo+3}], s{sT0} offen lds
    s_add_u32 m0, s{sT1}, {L_WO + 4*864}
    s_nop 0
    buffer_load_dwordx4 v{t2}, s[{sWo}:{sWo+3}], s{sT0} offen lds
    s_mov_b64 exec, -1""")
    sQ = sGk
    vP, vPa, vSy, vOne, vFa = 20, 17, 18, 19, 16
    a(f"""s_mul_i32 s{sRing}, s{sHH}, {RING}
    s_mul_i32 s{sT2}, s{sTH}, 5120
    s_add_u32 s{sT0}, s{sRing}, s{sT2}
    v_add_u32 v{t0}, s{sT0}, v{vL16}
    s_mul_i32 s{sT1}, s{sE}, {2*BLK}
    s_add_u32 s{sT1}, s{sT1}, s{sKVg}
    s_add_u32 s{sT1}, s{sT1}, s{sT2}
    s_mov_b32 s{sQ}, s{sTH}
    s_lshl_b32 s{sT0}, s{sPr}, 2
    v_mov_b32 v{vPa}, s{sT0}
    s_lshl_b32 s{sT0}, s{sPr}, 7
    s_add_u32 s{sT0}, s{sT0}, {WS_F}
    v_lshl_add_u32 v{vFa}, v0, 2, s{sT0}
    v_mov_b32 v{vSy}, {L_SYNC}
    v_mov_b32 v{vOne}, 1
    s_cmp_eq_u32 s{sTH}, 1
    s_cselect_b32 s{sM0}, 0xffff, -1
    s_cselect_b32 s{sM0+1}, 0, -1
    s_mov_b64 exec, 1
    buffer_load_dword v{vP+1}, v{vPa}, s[{sD}:{sD+3}], 0 offen sc1
    s_mov_b64 exec, -1
    s_barrier""")
    stamp(a, 3, SV)
    for i in range(10): a(f"ds_read_b128 {vr(32+4*i,4)}, v{t0} offset:{(i//5)*BLK + 1024*(i%5)}")
    a(f"s_mov_b32 s{sXb}, s{sT1}")
    def publish(ph):
        for i in range(5 * ph, 5 * ph + 5):
            if i % 5 == 4: a(f"""s_add_u32 s{sXb}, s{sXb}, 4096
            s_mov_b64 exec, s[{sM0}:{sM0+1}]""")
            if ph == 0: a(f"s_waitcnt lgkmcnt({9-i})")
            a(f"buffer_store_dwordx4 {vr(32+4*i,4)}, v{vL16}, s[{sWS}:{sWS+3}], s{sXb} offen offset:{1024*((i%5)%4)} sc1")
            if i % 5 == 4: a(f"""s_mov_b64 exec, -1
            s_add_u32 s{sXb}, s{sXb}, {BLK-4096}""")
    publish(0)
    def arrive(word, vm=0):
        a(f"""s_mov_b64 exec, 1
        s_waitcnt vmcnt({vm})
        ds_add_rtn_u32 v{vP}, v{vSy}, v{vOne} offset:{4*word}
        s_waitcnt lgkmcnt(0)
        v_readfirstlane_b32 s{sT1}, v{vP}
        s_mov_b64 exec, -1
        s_cmp_eq_u32 s{sT1}, 3""")
    def lds_wait(lbl, word):
        a(f"""s_mov_b32 s{sSpin}, 400000
        {lbl}:
        ds_read_b32 v{vP}, v{vSy} offset:{4*word}
        s_waitcnt lgkmcnt(0)
        v_readfirstlane_b32 s{sT1}, v{vP}
        s_cmp_lg_u32 s{sT1}, 0
        s_cbranch_scc1 {lbl}_go
        s_sub_u32 s{sSpin}, s{sSpin}, 1
        s_cmp_eq_u32 s{sSpin}, 0
        s_cbranch_scc1 {lbl}_go
        s_sleep 1
        s_branch {lbl}
        {lbl}_go:""")
    def flag(lbl, off):
        a(f"""s_cbranch_scc0 {lbl}
        s_mov_b64 exec, 1
        s_lshl_b32 s{sT0}, s{sE}, 2
        buffer_store_dword v{vOne}, v{vFa}, s[{sWS}:{sWS+3}], s{sT0} offen offset:{off} sc1
        s_mov_b64 exec, -1
        {lbl}:""")
    arrive(0)
    flag(f"{K}_fa", 0)
    stamp(a, 4, SV)
    def rst_ok(r):
        a(f"""v_readfirstlane_b32 s{sT0}, v{r}
        s_and_b32 s{sT0}, s{sT0}, 0xff
        s_cmp_ge_u32 s{sT0}, 8""")
    def kv_ready():
        a(f"""v_cmp_eq_u32 vcc, 1, v{vP}
        s_nop 1
        s_cmp_eq_u32 vcc_lo, 0xff""")
    a(f"""s_cmp_eq_u32 s{sT1}, 0
    s_cbranch_scc0 {K}_kw
    s_mov_b64 exec, 1""")
    rst_ok(vP + 1)
    a(f"s_cbranch_scc1 {K}_pl0_go")
    poll(a, f"{K}_pl0", f"buffer_load_dword v{vP}, v{vPa}, s[{sD}:{sD+3}], 0 offen sc1", lambda: rst_ok(vP), 8)
    a("s_mov_b64 exec, 0xff")
    a(f"""s_xor_b32 s{sT0}, s{sE}, 1
    s_lshl_b32 s{sT2}, 1, s{sT0}
    s_xor_b32 s{sT0}, s{sE}, 2
    s_bitset1_b32 s{sT2}, s{sT0}""")
    def kv2_ready():
        a(f"""v_cmp_eq_u32 vcc, 1, v{vP}
        s_nop 1
        s_and_b32 s{sT0}, vcc_lo, s{sT2}
        s_cmp_eq_u32 s{sT0}, s{sT2}""")
    poll(a, f"{K}_pl1", f"buffer_load_dword v{vP}, v{vFa}, s[{sWS}:{sWS+3}], 0 offen sc1", kv2_ready, 1)
    a(f"""ds_write_b32 v{vSy}, v{vOne} offset:8
    s_mov_b64 exec, -1
    s_branch {K}_kgo
    {K}_kw:""")
    lds_wait(f"{K}_lw1", 2)
    a(f"{K}_kgo:")
    stamp(a, 5, SV)
    def ldblock():
        a(f"s_call_b64 s[{sRet}:{sRet+1}], {K}_ldblk")
    ldblock()
    publish(1)
    a("s_waitcnt vmcnt(5)")
    stamp(a, 6, SV)
    a("s_barrier")
    a("s_mov_b64 exec, 0xff")
    poll(a, f"{K}_pl1a", f"buffer_load_dword v{vP}, v{vFa}, s[{sWS}:{sWS+3}], 0 offen sc1", kv_ready, 4)
    a("s_mov_b64 exec, -1")
    ldblock(); ldblock()
    arrive(4, 20)
    flag(f"{K}_fbb", 32)
    a(f"""s_cmp_eq_u32 s{sWv}, 0
    s_cbranch_scc0 {K}_pl1b_go
    s_mov_b64 exec, 0xff""")
    poll(a, f"{K}_pl1b", f"buffer_load_dword v{vP}, v{vFa}, s[{sWS}:{sWS+3}], 0 offen offset:32 sc1", kv_ready, 2)
    a("""s_mov_b64 exec, -1
    s_waitcnt vmcnt(0)""")
    stamp(a, 7, SV)
    a("s_barrier")
    ldblock(); ldblock()
    a(f"""v_bfe_u32 v{t0}, v0, 2, 3
    v_mul_u32_u24 v{t0}, 288, v{t0}
    v_and_b32 v{t1}, 3, v0
    v_lshlrev_b32 v{t1}, 3, v{t1}
    v_add_u32 v{t1}, {L_WO}, v{t1}
    v_and_b32 v{t2}, 32, v0
    v_add3_u32 v{t0}, v{t0}, v{t1}, v{t2}
    s_lshl_b32 s{sT0}, s{sWv}, 6
    v_add_u32 v{t2}, s{sT0}, v{t0}
    ds_read_b64_tr_b16 {vr(64,2)}, v{t2}
    ds_read_b64_tr_b16 {vr(66,2)}, v{t2} offset:2304
    ds_read_b64_tr_b16 {vr(68,2)}, v{t0} offset:256
    ds_read_b64_tr_b16 {vr(70,2)}, v{t0} offset:{256+2304}
    v_bfe_u32 v{t0}, v0, 2, 2
    v_mul_u32_u24 v{t0}, 288, v{t0}
    v_lshrrev_b32 v{t2}, 4, v0
    v_lshlrev_b32 v{t2}, 5, v{t2}
    v_add3_u32 v{t0}, v{t0}, v{t1}, v{t2}
    s_lshl_b32 s{sT0}, s{sWv}, 7
    v_add_u32 v{t0}, s{sT0}, v{t0}
    ds_read_b64_tr_b16 {vr(72,2)}, v{t0} offset:{16*288-128}
    s_lshl_b32 s{sT0}, s{sPC}, 6
    s_add_u32 s{sT0}, s{sT0}, s{sPH}
    s_mul_i32 s{sT0}, s{sT0}, 4608
    s_add_u32 s{sT0}, s{sT0}, {WS_WOM}
    s_lshl_b32 s{sT1}, s{sWv}, 10
    s_add_u32 s{sT1}, s{sT1}, s{sT0}
    s_lshl_b32 s{sT2}, s{sPC}, 4
    s_lshr_b32 s{sT3}, s{sPH}, 2
    s_add_u32 s{sT2}, s{sT2}, s{sT3}
    s_mul_i32 s{sT2}, s{sT2}, 2304
    s_and_b32 s{sT3}, s{sPH}, 3
    s_lshl_b32 s{sT3}, s{sT3}, 2
    s_add_u32 s{sT2}, s{sT2}, s{sT3}
    s_lshl_b32 s{sT3}, s{sWv}, 10
    s_add_u32 s{sT2}, s{sT2}, s{sT3}
    s_add_u32 s{sT2}, s{sT2}, {WS_WOT - 1024}
    s_waitcnt lgkmcnt(0)
    buffer_store_dwordx4 {vr(64,4)}, v{vL16}, s[{sWS}:{sWS+3}], s{sT1} offen sc1
    s_cmp_eq_u32 s{sWv}, 0
    s_cbranch_scc0 {K}_wo_tail
    s_mov_b32 exec_hi, 0
    s_add_u32 s{sT3}, s{sT0}, 4096
    buffer_store_dwordx4 {vr(68,4)}, v{vL16}, s[{sWS}:{sWS+3}], s{sT3} offen sc1
    s_branch {K}_wo_done
    {K}_wo_tail:
    s_cmp_eq_u32 s{sWv}, 3
    s_cselect_b32 exec_lo, 0xffff, -1
    s_cselect_b32 exec_hi, 0, -1
    buffer_store_dword v72, v{vL16}, s[{sWS}:{sWS+3}], s{sT2} offen sc1
    {K}_wo_done:
    s_mov_b64 exec, -1""")
    a(f"""v_mov_b32 v32, {SENT}
    v_mov_b32 v33, {SENT}
    v_mov_b32 v34, {SENT}
    v_mov_b32 v35, {SENT}
    s_lshl_b32 s{sT1}, s{sE}, 1
    s_add_u32 s{sT1}, s{sT1}, s{sTH}
    s_lshl_b32 s{sT1}, s{sT1}, 8
    s_add_u32 s{sT1}, s{sT1}, s{sBH}
    s_mul_i32 s{sT1}, s{sT1}, 1152
    s_add_u32 s{sT1}, s{sT1}, {WS_O}""")
    for x in range(4):
        a(f"""buffer_store_dwordx4 v[32:35], v{vL16}, s[{sWS}:{sWS+3}], s{sT1} offen sc1
        s_mov_b64 exec, 0xff
        buffer_store_dwordx4 v[32:35], v{vL16}, s[{sWS}:{sWS+3}], s{sT1} offen offset:1024 sc1
        s_mov_b64 exec, -1
        s_add_u32 s{sT1}, s{sT1}, {64*1152}""")
    arrive(1)
    a(f"""s_cbranch_scc0 {K}_sg2
    s_mov_b64 exec, 1
    v_mov_b32 v{vP}, 0x100
    buffer_atomic_add v{vP}, v{vPa}, s[{sD}:{sD+3}], 0 offen
    s_mov_b64 exec, -1
    {K}_sg2:""")
    p3_scal(a)
    vOm, vOt, vWm, vWt, vRd = 2, 3, 4, 5, 6
    p3_addr(a, vOm, vOt, vWm, vWt, vRd, t0, t1, t2)
    a("s_barrier")
    ldblock(); ldblock()
    stamp(a, 12, SV)
    a(f"""s_cmp_eq_u32 s{sWv}, 0
    s_cbranch_scc0 {K}_gw
    v_lshlrev_b32 v{t0}, 2, v0
    s_mov_b32 exec_hi, 0""")
    def all_init():
        a(f"""v_bfe_u32 v{vP}, v{vP}, 8, 8
        v_cmp_le_u32 vcc, 8, v{vP}
        s_nop 1
        s_cmp_eq_u32 vcc_lo, -1""")
    poll(a, f"{K}_pl2", f"buffer_load_dword v{vP}, v{t0}, s[{sD}:{sD+3}], 0 offen sc1", all_init, 32)
    a(f"""ds_write_b32 v{vSy}, v{vOne} offset:12
    s_mov_b64 exec, -1
    s_branch {K}_ggo
    {K}_gw:""")
    lds_wait(f"{K}_lw2", 3)
    a(f"{K}_ggo:")
    HC = [0, 1, 2, 3, 4]
    HWB, HAC, HOF = 8, 188, 228
    hreg = lambda s, ct: HWB + 4 * (5 * s + ct)
    p3_wo_loads(a, HC, hreg, vWm, vWt)
    a("s_waitcnt vmcnt(45)")
    stamp(a, 8, SV)
    a("s_barrier")
    p3_wo_loads(a, [8], lambda s, ct: HAC + 4 * s, vWm, vWt)
    a(f"""s_mul_i32 s{sT0}, s{sTH}, 27648
    s_add_u32 s{sT0}, s{sT0}, s{sRing}
    s_barrier""")
    for s in range(9):
        for i, ct in enumerate(CL):
            n = 3 * s + i
            if s < 8:
                a(f"""s_add_u32 m0, s{sT0}, {1024*n}
                s_add_u32 s{sT3}, s{sGW[s>>1]}, {2*(s&1)*4608 + 512*ct}
                buffer_load_dwordx4 v{vWm}, s[{sWS}:{sWS+3}], s{sT3} offen sc1 lds""")
            else:
                a(f"""s_add_u32 m0, s{sT0}, {1024*n}
                s_add_u32 s{sT3}, s{sWtb}, {256*ct}
                buffer_load_dwordx4 v{vWt}, s[{sWS}:{sWS+3}], s{sT3} offen sc1 lds""")
    a(f"""s_mul_i32 s{sT0}, s{sP3T}, {32*1152}
    buffer_load_dword v1, v{vL16}, s[{sOut}:{sOut+3}], s{sT0} offen
    s_waitcnt vmcnt(0)""")
    stamp(a, 9, SV)
    vVa3, vSy3 = 4, 5
    for i in range(40): a(f"v_mov_b32 v{HAC+i}, 0")
    a(f"""s_mul_i32 s{sKo}, s{sWv}, 20480
    s_add_u32 s{sKo}, s{sKo}, {L_O}
    v_lshrrev_b32 v1, 4, v0
    v_mul_u32_u24 v{vVa3}, 1152, v1
    v_and_b32 v1, 15, v0
    v_lshl_add_u32 v{vVa3}, v1, 3, v{vVa3}
    s_add_u32 s{sT0}, s{sKo}, 1024
    v_add_u32 v{vVa3}, s{sT0}, v{vVa3}
    s_lshl_b32 s{sT0}, s{sWv}, 2
    s_add_u32 s{sT0}, s{sT0}, {L_SYNC + 32}
    v_mov_b32 v{vSy3}, s{sT0}
    s_barrier
    s_setprio 3
    s_barrier""")
    stamp(a, 10, SV)
    p3_helper(a, HC, hreg, HAC, HOF, vOm, vOt, vRd, vL16, vVa3, vSy3, int(OPT.get("hslp", 4)))
    stamp(a, 11, SV)
    if OPT["stamp"]: a(f"v_mov_b32 v30, v{SV}\nv_mov_b32 v31, v{SV+1}")
    a(f"s_branch {K}_final")
    a(f"""{K}_ldblk:
    s_add_u32 s{sQ}, s{sQ}, 2
    s_cmp_ge_u32 s{sQ}, 9
    s_cselect_b32 s{sT0}, 0, 7
    s_cselect_b32 s{sT2}, 1, 0
    s_add_u32 s{sT0}, s{sT0}, s{sQ}
    s_and_b32 s{sT0}, s{sT0}, 7
    s_xor_b32 s{sT0}, s{sT0}, s{sE}
    s_lshl_b32 s{sT0}, s{sT0}, 1
    s_add_u32 s{sT0}, s{sT0}, s{sT2}
    s_mul_i32 s{sT1}, s{sT0}, {BLK}
    s_add_u32 s{sT1}, s{sT1}, s{sKVg}
    s_and_b32 s{sT0}, s{sQ}, 7
    s_mul_i32 s{sT0}, s{sT0}, {BLK}
    s_add_u32 s{sT0}, s{sT0}, s{sRing}""")
    for i in range(10):
        if i % 4 == 0:
            a(f"""s_add_u32 m0, s{sT0}, {1024*i}
            s_add_u32 s{sT2}, s{sT1}, {1024*i}""")
        if i == 9: a("s_mov_b64 exec, 0xffff")
        a(f"buffer_load_dwordx4 v{vL16}, s[{sWS}:{sWS+3}], s{sT2} offen offset:{1024*(i%4)} sc1 lds")
    a(f"""s_mov_b64 exec, -1
    s_setpc_b64 s[{sRet}:{sRet+1}]""")

def compute(a, K):
    RX = int(OPT["rx"])
    stamp(a, 0, 30)
    vXr = [2, 3]
    vWc = [4, 5, 9, 1]
    t0, t1, t2, t3, t4, t5 = 14, 15, 16, 17, 18, 19
    WF = 32
    XF = [96, 112]
    ACC = 128
    a(f"""v_mov_b32 v{ACC}, 0
    s_cmp_eq_u32 s{sWv}, 0
    s_cselect_b32 s{sCnt}, 5, 100
    s_cbranch_scc0 {K}_norst
    s_lshl_b32 s{sT0}, s{sPr}, 7
    s_lshl_b32 s{sT1}, s{sE}, 2
    s_add_u32 s{sT0}, s{sT0}, s{sT1}
    s_add_u32 s{sT0}, s{sT0}, {WS_F}
    s_mov_b64 exec, 1
    buffer_store_dword v{ACC}, v{ACC}, s[{sWS}:{sWS+3}], s{sT0} offen sc1
    buffer_store_dword v{ACC}, v{ACC}, s[{sWS}:{sWS+3}], s{sT0} offen offset:32 sc1
    s_mov_b64 exec, -1
    {K}_norst:""")
    a(f"""v_and_b32 v{t0}, 15, v0
    v_lshrrev_b32 v{t1}, 4, v0
    v_bfe_u32 v{t2}, v0, 1, 3
    v_xor_b32 v{t2}, v{t2}, v{t1}
    v_lshlrev_b32 v{t2}, 4, v{t2}
    v_lshlrev_b32 v{t3}, 7, v{t0}
    s_lshl_b32 s{sT0}, s{sTH}, 12
    s_add_u32 s{sT0}, s{sT0}, {L_XR}
    v_add_u32 v{t3}, s{sT0}, v{t3}
    v_add_u32 v{vXr[0]}, v{t3}, v{t2}
    v_xor_b32 v{t2}, 64, v{t2}
    v_add_u32 v{vXr[1]}, v{t3}, v{t2}
    v_bfe_u32 v{t2}, v0, 2, 2
    v_lshl_add_u32 v{t2}, v{t1}, 3, v{t2}
    v_lshlrev_b32 v{t2}, 8, v{t2}
    v_bfe_u32 v{t4}, v0, 2, 3
    v_lshlrev_b32 v{t4}, 5, v{t4}
    v_and_b32 v{t3}, 3, v0
    v_lshlrev_b32 v{t3}, 3, v{t3}
    s_mul_i32 s{sT1}, s{sHH}, 40
    s_mov_b32 s{sT0}, {192 | (112 << 8) | (32 << 16) | (240 << 24)}
    v_lshrrev_b32 v{t5}, v{t3}, s{sT0}
    v_and_b32 v{t5}, 0xff, v{t5}
    v_xor_b32 v{t5}, v{t5}, v{t4}
    v_add_u32 v{vWc[3]}, v{t2}, v{t5}
    v_add_u32 v{t3}, s{sT1}, v{t3}""")
    for ct, off in enumerate((80, 0, 160)):
        a(f"""v_add_u32 v{t5}, {off}, v{t3}
        v_xor_b32 v{t5}, v{t5}, v{t4}
        v_add_u32 v{vWc[ct]}, v{t2}, v{t5}""")
    for i in range(1, 128): a(f"v_mov_b32 v{ACC+i}, 0")
    vKa, vTa, vVa, vIdx = 6, 7, 8, 10
    vKw, vQw, vVw, vM0, vM1, vDs, vDt, vMul, vSq, vMulO = 11, 12, 13, 20, 21, 22, 23, 24, 25, 26
    sBlk, sScr = sXb, sKo
    a(f"""s_mul_i32 s{sRing}, s{sHH}, {RING}
    s_mul_i32 s{sBlk}, s{sTH}, {BLK}
    s_add_u32 s{sBlk}, s{sBlk}, s{sRing}
    s_mul_i32 s{sScr}, s{sWv}, 5120
    s_add_u32 s{sScr}, s{sScr}, {L_SCR}
    v_lshrrev_b32 v{t2}, 2, v{t0}
    v_and_b32 v{t3}, 3, v0
    v_lshl_add_u32 v{t4}, v{t2}, 3, v{t3}
    v_lshrrev_b32 v{t5}, 5, v0
    v_lshlrev_b32 v{t5}, 9, v{t5}
    v_and_b32 v{vQw}, 16, v0
    v_lshrrev_b32 v{vQw}, 1, v{vQw}
    v_add_u32 v{t5}, v{t5}, v{vQw}
    v_lshl_add_u32 v{vKw}, v{t4}, 4, v{t5}
    v_add_u32 v{vKw}, s{sBlk}, v{vKw}
    v_lshl_add_u32 v{vQw}, v{t0}, 4, v{t5}
    v_add_u32 v{vQw}, s{sScr}, v{vQw}
    v_mul_u32_u24 v{vVw}, 304, v{t1}
    v_lshl_add_u32 v{vVw}, v{t0}, 4, v{vVw}
    v_add_u32 v{vVw}, s{sBlk}, v{vVw}""")
    a(f"""v_mul_u32_u24 v{vM0}, 304, v{t2}
    v_lshl_add_u32 v{vM0}, v{t3}, 1, v{vM0}
    s_add_u32 s{sT0}, s{sBlk}, {4608+256}
    v_add_u32 v{vM0}, s{sT0}, v{vM0}
    s_add_u32 s{sT0}, s{sBlk}, 4096
    s_add_u32 s{sT1}, s{sScr}, {4096-1024}
    v_lshlrev_b32 v{t5}, 9, v{t1}
    v_add_u32 v{t5}, s{sT1}, v{t5}
    v_mov_b32 v{vM1}, s{sT0}
    v_cmp_eq_u32 vcc, 1, v{t1}
    v_mov_b32 v{vDs}, 32
    v_mov_b32 v{vDt}, {(2-32) & 0xffffffff}
    v_cndmask_b32 v{t5}, v{t5}, v{vM1}, vcc
    v_lshl_add_u32 v{t5}, v{t4}, 3, v{t5}
    v_cmp_eq_u32 vcc, 0, v{t1}
    v_mov_b32 v{t2}, 256
    v_mov_b32 v{t3}, {1216-8}
    v_cndmask_b32 v{vM0}, v{t5}, v{vM0}, vcc
    v_cndmask_b32 v{vDs}, v{vDs}, 8, vcc
    v_cndmask_b32 v{vDt}, v{vDt}, v{t3}, vcc
    v_cndmask_b32 v{t2}, v{t2}, 16, vcc
    v_add_u32 v{vM1}, v{vM0}, v{t2}
    v_cmp_eq_u32 vcc, 2, v{t1}
    v_mov_b32 v{vMul}, 1.0
    v_mov_b32 v{t2}, {f32(CSCALE)}
    v_cndmask_b32 v{vMul}, v{vMul}, v{t2}, vcc
    s_mul_i32 s{sT0}, s{sHH}, 0x3f800000
    v_mul_f32 v{vMulO}, s{sT0}, v{vMul}
    v_sub_f32 v{vMul}, v{vMul}, v{vMulO}""")
    a(f"""v_and_b32 v{t2}, 16, v0
    v_lshrrev_b32 v{t2}, 2, v{t2}
    v_add_u32 v{t2}, v{t2}, v{t4}
    v_lshlrev_b32 v{vSq}, 3, v{t2}
    s_add_u32 s{sT1}, s{sScr}, 4096
    v_add_u32 v{vSq}, s{sT1}, v{vSq}
    v_and_b32 v{t0}, 31, v0
    v_lshrrev_b32 v{t1}, 5, v0
    v_mul_u32_u24 v{t3}, 304, v{t1}
    v_lshl_add_u32 v{t3}, v{t0}, 4, v{t3}
    v_add_u32 v{t3}, s{sRing}, v{t3}
    v_cmp_gt_u32 vcc, 19, v{t0}
    v_mov_b32 v{vVa}, {LDS_BYTES}
    v_lshl_add_u32 v{vKa}, v0, 4, s{sRing}
    v_cndmask_b32 v{vVa}, v{vVa}, v{t3}, vcc
    v_lshl_add_u32 v{vTa}, v0, 3, s{sRing}
    v_mov_b32 v{vIdx}, 0xdddddddd
    v_lshl_add_u32 v{t5}, v{t1}, 8, v{vSq}
    s_mov_b32 s{sWsrc}, 0
    s_mov_b32 s{sXm0}, 0""")
    vSqh = t5
    p3_scal(a)
    coff = (48, 0, 96, 0)
    def wfrag(k2):
        r = []
        for ct in range(4):
            for hf in range(2):
                r.append(f"ds_read_b64_tr_b16 {vr(WF+16*k2+4*ct+2*hf,2)}, v{vWc[ct]} offset:{L_WR + (32*k2+4*hf)*256}")
        return r
    def xread(buf):
        r = []
        for k2 in range(2):
            for s in range(2):
                r.append(f"ds_read_b128 {vr(XF[buf]+8*k2+4*s,4)}, v{vXr[k2]} offset:{2048*s}")
        return r
    xadv = [f"s_add_u32 s{sXm0}, s{sXm0}, 1", f"s_cmp_eq_u32 s{sXm0}, {RX}", f"s_cselect_b32 s{sXm0}, 0, s{sXm0}",
            f"s_cselect_b32 s{sT1}, s{sWk}, s{sWcnt}",
            f"v_add_u32 v{vXr[0]}, s{sT1}, v{vXr[0]}", f"v_add_u32 v{vXr[1]}, s{sT1}, v{vXr[1]}"]
    wadv = [f"s_add_u32 s{sWsrc}, s{sWsrc}, 1", f"s_cmp_eq_u32 s{sWsrc}, {RW}", f"s_cselect_b32 s{sWsrc}, 0, s{sWsrc}",
            f"s_cselect_b32 s{sT2}, s{sWm0}, s{sGk}",
            ] + [f"v_add_u32 v{c}, s{sT2}, v{c}" for c in vWc]
    a(f"""s_mov_b32 s{sWk}, {(-(RX-1)*8192) & 0xffffffff}
    s_mov_b32 s{sWcnt}, 8192
    s_mov_b32 s{sWm0}, {(-(RW-1)*WSL) & 0xffffffff}
    s_mov_b32 s{sGk}, {WSL}
    s_barrier""")
    stamp(a, 1, 30)
    for m in xread(0) + xadv + wfrag(0) + wfrag(1): a(m)
    QM, QT = 32, 48
    KF, V0, V1, KT = [80, 84], [88, 92], [96, 100], 104
    vGl = 26
    TP = 108
    def epi(tt):
        tp = (64, 80)[tt % 2]
        r = []
        for s in range(2):
            b = ACC + 32 * tt + 16 * s
            k_, q_, m_ = tp + 2 * s, tp + 4 + 2 * s, tp + 12 + s
            r += f"""v_cvt_pk_bf16_f32 v{k_}, v{b}, v{b+1}
            v_cvt_pk_bf16_f32 v{k_+1}, v{b+2}, v{b+3}
            v_mul_f32 v{b+4}, s{sT3}, v{b+4}
            v_mul_f32 v{b+5}, s{sT3}, v{b+5}
            v_mul_f32 v{b+6}, s{sT3}, v{b+6}
            v_mul_f32 v{b+7}, s{sT3}, v{b+7}
            ds_write_b64 v{vKw}, {vr(k_,2)} offset:{tt*1024 + s*64}
            v_cvt_pk_bf16_f32 v{q_}, v{b+4}, v{b+5}
            v_cvt_pk_bf16_f32 v{q_+1}, v{b+6}, v{b+7}
            v_cvt_pk_bf16_f32 v{tp+8+2*s}, v{b+8}, v{b+9}
            v_cvt_pk_bf16_f32 v{tp+9+2*s}, v{b+10}, v{b+11}
            ds_write_b64 v{vQw}, {vr(q_,2)} offset:{tt*1024 + s*256}
            v_mul_f32 v{b+12}, v{vMul}, v{b+12}
            v_mul_f32 v{b+13}, v{vMul}, v{b+13}
            v_fmac_f32 v{b+12}, v{vMulO}, v{b+14}
            v_fmac_f32 v{b+13}, v{vMulO}, v{b+15}
            v_cvt_pk_bf16_f32 v{m_}, v{b+12}, v{b+13}
            ds_write_b16 v{vM0}, v{m_}
            ds_write_b16_d16_hi v{vM1}, v{m_}""".split("\n")
            dl = vDs if s == 0 else vDt
            if (tt, s) != (3, 1):
                r += [f"v_add_u32 v{vM0}, v{dl}, v{vM0}", f"v_add_u32 v{vM1}, v{dl}, v{vM1}"]
        r.append(f"ds_write_b128 v{vVw}, {vr(tp+8,4)} offset:{4608 + tt*1216}")
        return r
    def chunk(last):
        for tt in range(4):
            cur = XF[tt & 1]
            mf = []
            for k2 in range(2):
                for ct in range(4):
                    for s in range(2):
                        d = ACC + 32 * tt + 16 * s + 4 * ct
                        w_, x_ = vr(WF + 16 * k2 + 4 * ct, 4), vr(cur + 8 * k2 + 4 * s, 4)
                        A_, B_ = (x_, w_) if ct == 2 else (w_, x_)
                        mf.append(f"v_mfma_f32_16x16x32_bf16 {vr(d,4)}, {A_}, {B_}, {vr(d,4)}")
            fill = {i: [] for i in range(-1, 16)}
            xr = xread((tt + 1) & 1)
            if tt == 0:
                fill[-1].append("s_waitcnt lgkmcnt(8)")
                for i in range(4): fill[i].append(xr[i])
                for i in range(6): fill[8 + i].append(xadv[i])
                fill[7].append("s_waitcnt lgkmcnt(4)")
                if last:
                    ones = f"""s_mov_b32 s{sT3}, {f32(CSCALE)}
                    v_mov_b32 v92, 0x3f803f80
                    v_mov_b32 v93, 0x3f803f80
                    v_mov_b32 v94, 0x3f803f80
                    v_mov_b32 v95, 0x3f803f80
                    v_mul_u32_u24 v{t0}, 304, v0""".split("\n")
                    for i, m in enumerate(ones): fill[i].append(m)
                    fill[14].append(f"v_add_u32 v{t0}, s{sBlk}, v{t0}")
                    fill[15] += ["s_mov_b64 exec, 0xffff", f"ds_write_b128 v{t0}, v[92:95] offset:{4608+288}", "s_mov_b64 exec, -1"]
            elif last:
                if tt < 3:
                    for i in range(4): fill[i // 2].append(xr[i])
                    if tt == 1:
                        for i in range(6): fill[2 + i // 2].append(xadv[i])
                e = epi(tt - 1)
                st = 5 if tt == 1 else 4
                per = -(-len(e) // (16 - st))
                for i, m in enumerate(e): fill[st + i // per].append(m)
            elif tt == 3:
                for i in range(4): fill[-1 + (i + 1) // 2].append(xr[i])
                w0, w1 = wfrag(0), wfrag(1)
                for ct in range(4):
                    fill[2 * ct + 1] += [w0[2 * ct]]; fill[2 * ct + 2] += [w0[2 * ct + 1]]
                    fill[8 + 2 * ct + 1] += [w1[2 * ct]]; fill[min(15, 8 + 2 * ct + 2)] += [w1[2 * ct + 1]]
                for i in range(6): fill[3 + i].append(xadv[i])
                fill[10].append(f"s_sub_u32 s{sIt}, s{sIt}, 1")
            else:
                for i in range(4): fill[i].append(xr[i])
                for i in range(6): fill[4 + i].append(xadv[i])
                if tt == 1:
                    for i in range(4): fill[10 + i].append(wadv[i])
                if tt == 2:
                    for i in range(4): fill[10 + i].append(wadv[4 + i])
            if tt % 2 == 0: a("s_barrier")
            for m in fill[-1]: a(m)
            for i in range(16):
                if not OPT.get("nomf"): a(mf[i])
                for m in fill[i]: a(m)
            if last:
                if tt == 0: a("s_waitcnt lgkmcnt(1)")
                elif tt < 3: a("s_waitcnt lgkmcnt(9)")
            elif tt == 3:
                a(f"""s_waitcnt lgkmcnt(15)
                s_cmp_eq_u32 s{sIt}, s{sCnt}
                s_cbranch_scc1 {K}_rst
                {K}_rst_ret:
                s_cmp_lg_u32 s{sIt}, 0""")
            else:
                a("s_waitcnt lgkmcnt(0)")
    a(f"""s_mov_b32 s{sIt}, 8
    s_waitcnt lgkmcnt(0)
    {K}_p1:""")
    chunk(False)
    a(f"s_cbranch_scc1 {K}_p1")
    chunk(True)
    stamp(a, 2, 30)
    a("s_nop 1")
    for m in epi(3): a(m)
    S = [128, 144, 160, 176]
    O = [192, 208, 224, 240]
    a(f"""v_lshl_add_u32 v{t0}, v0, 4, s{sScr}
    s_waitcnt lgkmcnt(0)""")
    for x in range(4): a(f"ds_read_b128 {vr(QM+4*x,4)}, v{t0} offset:{1024*x}")
    a(f"""ds_read_b64 {vr(TP,2)}, v{vSqh}
    ds_read_b64 {vr(TP+2,2)}, v{vSq} offset:512""")
    for i in range(12): a(f"v_mov_b32 v{O[0]+i}, 0")
    a("""s_waitcnt lgkmcnt(0)
    s_barrier""")
    stamp(a, 3, 30)
    NB = int(OPT["nb"])
    def ldK(t, buf): return f"ds_read_b128 {vr(KF[buf],4)}, v{vKa} offset:{((t//4)%NB)*BLK + (t%4)*1024}"
    def ldV(t, half, buf): return f"ds_read_b128 {vr((V0,V1)[half][buf],4)}, v{vVa} offset:{((t//4)%NB)*BLK + 4608 + (t%4)*1216 + 608*half}"
    def ldT(b=0): return f"ds_read_b64 {vr(KT,2)}, v{vTa} offset:{(b%NB)*BLK + 4096}"
    def QKM(t, x, s, c="0"): return f"v_mfma_f32_32x32x16_bf16 {vr(s,16)}, {vr(KF[t%2],4)}, {vr(QM+4*x,4)}, {c}"
    def QKT(t, x, s): return f"v_mfma_f32_32x32x8_bf16 {vr(s,16)}, {vr(KT,2)}, {vr(QT+8*x+2*(t%4),2)}, {vr(s,16)}"
    def PV(half, t, x, s): return f"v_smfmac_f32_32x32x32_bf16 {vr(O[x],16)}, {vr((V0,V1)[half][t%2],4)}, {vr(s+8*half,8)}, v{vIdx}"
    a(ldK(0, 0)); a(ldT()); a(ldV(0, 0, 0)); a(ldV(0, 1, 0))
    def qvar(x):
        q, r = QT + 8 * x, TP + (x >> 1)
        if x % 2 == 0:
            a(f"""v_and_b32 v{q}, 0xffff, v{r}
            v_lshlrev_b32 v{q+2}, 16, v{r}
            v_lshlrev_b32 v{vGl+x}, 16, v{r+2}""")
        else:
            a(f"""v_lshrrev_b32 v{q}, 16, v{r}
            v_and_b32 v{q+2}, 0xffff0000, v{r}
            v_and_b32 v{vGl+x}, 0xffff0000, v{r+2}""")
        a(f"""v_mov_b32 v{q+1}, 0
        v_mov_b32 v{q+3}, 0
        v_mov_b32 v{q+4}, 0
        v_mov_b32 v{q+5}, v{q}
        v_mov_b32 v{q+6}, 0
        v_mov_b32 v{q+7}, v{q+2}""")
    qvar(0); qvar(1)
    vOm, vOt, vWm3, vWt, vRd = 2, 3, 5, 9, 4
    HOOKS = [1, 3, 7, 11, 13, 15]
    a(f"""s_mov_b32 s{sIt}, 0
    s_mov_b32 s{sWk}, {NB*BLK}
    s_mov_b32 s{sWcnt}, {(NB*BLK - RING) & 0xffffffff}
    s_waitcnt lgkmcnt(2)""")
    rest = [f"v_mov_b32 v{O[0]+i}, 0" for i in range(12, 64)] + [f"v_mov_b32 v{S[3]+8+i}, 0" for i in range(8)] + [f"v_mov_b32 v{V1[1]+i}, 0" for i in range(4)]
    a(QKM(0, 0, S[0])); qvar(2)
    a(QKT(0, 0, S[0])); qvar(3)
    a(QKM(0, 1, S[1]))
    for m in rest[:8]: a(m)
    a(QKT(0, 1, S[1]))
    for m in rest[8:]: a(m)
    p3_addr(a, vOm, vOt, vWm3, vWt, vRd, t3, t1, t2)
    a("s_waitcnt lgkmcnt(0)")
    if OPT.get("cprio"): a(f"s_setprio {OPT['cprio']}")
    hookblks = []
    a(".p2align 6")
    a(f"{K}_att:")
    pos = (2, 6, 10, 14)
    NIT = 16 // NB
    for u in range(16 * NB):
        t, x = divmod(u, 4)
        tn, xn = divmod(u + 2, 4)
        tp_, xp = divmod(u - 1, 4)
        blk, ub = divmod(u, 16)
        s, sn, sp = S[u % 4], S[(u + 2) % 4], S[(u - 1) % 4]
        ins = {i: [] for i in range(17)}
        ins[pos[0]].append(PV(1, tp_, xp, sp))
        ins[pos[1]].append(QKM(tn, xn, sn))
        ins[pos[2]].append(QKT(tn, xn, sn))
        ins[pos[3]].append(PV(0, t, x, s))
        if x == 0:
            ins[pos[0]].append(ldV(t + 1, 1, (t + 1) % 2))
            ins[pos[1]].append(ldK(t + 1, (t + 1) % 2))
            ins[pos[3]].append(ldV(t + 1, 0, (t + 1) % 2))
        if ub == 13: ins[pos[2]].append(ldT(blk + 1))
        if x == 2: ins[pos[1]].insert(0, "s_waitcnt lgkmcnt(0)")
        if ub == 10 and blk == NB - 1:
            ins[pos[2]].append(f"s_cmp_eq_u32 s{sIt}, {NIT//2 - 1}")
            ins[pos[3]].append(f"s_cselect_b32 s{sT0}, s{sWcnt}, s{sWk}")
        if ub == 11:
            if blk == NB - 1:
                ins[pos[0]].append(f"v_add_u32 v{vKa}, s{sT0}, v{vKa}")
                ins[pos[1]].append(f"v_add_u32 v{vTa}, s{sT0}, v{vTa}")
                ins[pos[2]].append(f"v_add_u32 v{vVa}, s{sT0}, v{vVa}")
            its = [it for it in range(NIT) if it * NB + blk in HOOKS]
            if len(its) == NIT and not OPT["stamp"]:
                ins[pos[3]].append("s_barrier")
            elif its:
                ins[pos[3]] += [f"s_bitcmp1_b32 {sum(1 << i for i in its)}, s{sIt}", f"s_cbranch_scc1 {K}_hook{blk}", f"{K}_hook_ret{blk}:"]
                hookblks.append(blk)
        if u == 16 * NB - 1:
            ins[pos[3]] += [f"s_add_u32 s{sIt}, s{sIt}, 1", f"s_cmp_lt_u32 s{sIt}, {NIT}"]
        for i in range(16):
            for m in ins[i]: a(m)
            a(f"v_exp_f32 v{s+i}, v{s+i}")
    a(f"s_cbranch_scc1 {K}_att")
    a("s_nop 1")
    a(PV(1, 3, 3, S[3]))
    stamp(a, 8, 30)
    CC = [5, 6, 7, 8]
    R8 = [84, 92, 108, 112, 116, 120, 124, 20, 100]
    RL = list(range(32, 84, 4)) + [88, 96] + list(range(128, 176, 4))
    creg = lambda s, ct: R8[s] if ct == 8 else RL[3 * s + ct - 5]
    p3_wo_loads(a, [8], creg, vWm3, vWt)
    a(f"""s_cmp_ge_u32 s{sPr}, 16
    s_mov_b32 s{sT0}, {f32(-LOG2E)}
    s_cselect_b32 s{sT0}, {f32(LOG2E)}, s{sT0}""")
    for x in range(4): a(f"v_mul_f32 v{vGl+x}, s{sT0}, v{vGl+x}")
    for x in range(4): a(f"v_exp_f32 v{vGl+x}, v{vGl+x}")
    a(f"""s_lshl_b32 s{sT1}, s{sE}, 1
    s_add_u32 s{sT1}, s{sT1}, s{sTH}
    s_lshl_b32 s{sT1}, s{sT1}, 8
    s_add_u32 s{sT1}, s{sT1}, s{sBH}
    s_mul_i32 s{sT1}, s{sT1}, 1152
    s_add_u32 s{sRef}, s{sT1}, {WS_O}""")
    for x in range(4): a(f"v_add_f32 v{vGl+x}, 1.0, v{vGl+x}")
    a(f"""v_lshlrev_b32 v{t0}, 4, v0
    v_lshlrev_b32 v{t1}, 2, v0
    s_mov_b32 s{sT2}, {f32(2.0**-40)}
    s_mov_b32 s{sKo}, {f32(2.0**40) if not OPT['force_fb'] else f32(2.0**-39)}
    s_waitcnt lgkmcnt(0)""")
    for x in range(4):
        o = O[x]
        a(f"""v_cmp_le_f32 vcc, s{sT2}, v{o+10}
        v_cmp_ge_f32 s[{sEx}:{sEx+1}], s{sKo}, v{o+10}
        s_nop 1
        s_and_b32 vcc_lo, vcc_lo, s{sEx}
        s_cmp_eq_u32 vcc_lo, -1
        s_cbranch_scc0 {K}_fb{x}
        {K}_fbret{x}:""")
    a(f"""s_mul_i32 s{sT0}, s{sTH}, 27648
    s_add_u32 s{sT0}, s{sT0}, s{sRing}
    v_add_u32 v7, s{sT0}, v{t0}""")
    cp = [f"ds_read_b128 {vr(creg(s_,ct),4)}, v7 offset:{1024*(3*s_+i)}" for s_ in range(9) for i, ct in enumerate(CL)]
    tq = [t2, t3, t4, t5]
    for x in range(4): a(f"v_mov_b32 v{tq[x]}, v{O[x]+10}")
    a(cp.pop(0))
    for x in range(4): a(f"v_permlane32_swap_b32 v{O[x]+10}, v{tq[x]}")
    a(cp.pop(0))
    for x in range(4): a(f"v_mul_f32 v{tq[x]}, v{O[x]+10}, v{vGl+x}")
    for x in range(4): a(f"v_rcp_f32 v{tq[x]}, v{tq[x]}")
    a(cp.pop(0))
    for x in range(4):
        o = O[x]
        for i in range(10):
            a(f"v_mul_f32 v{o+i}, v{tq[x]}, v{o+i}")
            if i % 3 == 2: a(cp.pop(0))
        for i in range(4): a(f"v_cvt_pk_bf16_f32 v{o+12+i}, v{o+2*i}, v{o+2*i+1}")
        a(f"""v_cvt_pk_bf16_f32 v{o+11}, v{o+8}, v{o+9}
        s_xor_b32 s{sT1}, s{sTt}, {x}
        s_mul_i32 s{sT1}, s{sT1}, {64*1152}
        s_add_u32 s{sT1}, s{sT1}, s{sRef}
        buffer_store_dwordx4 {vr(o+12,4)}, v{t0}, s[{sWS}:{sWS+3}], s{sT1} offen sc1
        s_mov_b32 exec_hi, 0
        buffer_store_dword v{o+11}, v{t1}, s[{sWS}:{sWS+3}], s{sT1} offen offset:1024 sc1
        s_mov_b64 exec, -1""")
    for m in cp: a(m)
    stamp(a, 9, 30)
    a(f"""s_lshl_b32 s{sT0}, s{sWv}, 2
    s_add_u32 s{sT0}, s{sT0}, {L_SYNC + 32}
    v_mov_b32 v6, s{sT0}
    s_setprio 1
    s_waitcnt lgkmcnt(0)
    s_barrier""")
    for i in range(32): a(f"v_mov_b32 v{224+i}, 0")
    stamp(a, 10, 30)
    p3_comp(a, CC, creg, 224, 176, vOm, vOt, vRd, 6)
    stamp(a, 11, 30)
    a(f"{K}_final:")
    final_reduce(a, K, 30)
    a(f"{K}_end:")
    a("s_endpgm")
    a(f"""{K}_rst:
    s_lshl_b32 s{sT0}, s{sPr}, 2
    v_mov_b32 v28, s{sT0}
    v_mov_b32 v29, 1
    s_mov_b64 exec, 1
    s_waitcnt vmcnt(0)
    buffer_atomic_add v29, v28, s[{sD}:{sD+3}], 0 offen
    s_mov_b64 exec, -1
    s_branch {K}_rst_ret""")
    for blk in hookblks:
        a(f"{K}_hook{blk}:")
        if OPT["stamp"]:
            for hb, i_ in ((1, 4), (3, 6)):
                if hb % NB == blk:
                    a(f"s_cmp_eq_u32 s{sIt}, {hb // NB}\ns_cbranch_scc0 {K}_hk{hb}")
                    stamp(a, i_, 30); a("s_barrier"); stamp(a, i_ + 1, 30); a(f"s_branch {K}_hook_ret{blk}")
                    a(f"{K}_hk{hb}:")
        a(f"""s_barrier
        s_branch {K}_hook_ret{blk}""")
    FQ = S[3]
    for x in range(4):
        a(f"{K}_fb{x}:")
        for i in range(4): a(f"v_mov_b32 v{FQ+i}, v{QM+4*x+i}")
        for i in range(8): a(f"v_mov_b32 v{FQ+4+i}, v{QT+8*x+i}")
        a(f"s_call_b64 s[{sRet}:{sRet+1}], {K}_slow")
        for i in range(16): a(f"v_mov_b32 v{O[x]+i}, v{S[2]+i}")
        a(f"s_branch {K}_fbret{x}")
    a(f"{K}_slow:")
    vb, vc, vm = 11, 12, 13
    sA, sB = sWsrc, sWm0
    a(f"""v_lshlrev_b32 v{vb}, 3, v0
    v_and_b32 v{vm}, 31, v0
    v_lshrrev_b32 v{vc}, 5, v0
    v_mul_u32_u24 v{vc}, 304, v{vc}
    v_lshl_add_u32 v{vc}, v{vm}, 4, v{vc}
    v_cmp_lt_u32 vcc, 18, v{vm}
    v_mov_b32 v{vm}, 0x40000000
    s_nop 1
    v_cndmask_b32 v{vc}, v{vc}, v{vm}, vcc""")
    def slow_qk(t, c):
        a(f"""v_mfma_f32_32x32x16_bf16 {vr(S[0],16)}, {vr(KF[0],4)}, {vr(FQ,4)}, {c}
        v_mfma_f32_32x32x8_bf16 {vr(S[0],16)}, {vr(KT,2)}, {vr(FQ+4+2*t,2)}, {vr(S[0],16)}
        s_nop 15""")
    def slow_next(lbl):
        a(f"""s_add_u32 s{sA}, s{sA}, {BLK}
        s_sub_u32 s{sIt}, s{sIt}, 1
        s_cmp_lg_u32 s{sIt}, 0
        s_cbranch_scc1 {lbl}""")
    a(f"""v_mov_b32 v{vm}, 0xff800000
    s_mov_b32 s{sA}, s{sKVg}
    s_mov_b32 s{sIt}, 16
    {K}_sl1:
    s_add_u32 s{sB}, s{sA}, 4096
    buffer_load_dwordx2 {vr(KT,2)}, v{vb}, s[{sWS}:{sWS+3}], s{sB} offen sc1""")
    for t in range(4):
        a(f"""buffer_load_dwordx4 {vr(KF[0],4)}, v{t0}, s[{sWS}:{sWS+3}], s{sA} offen offset:{1024*t} sc1
        s_waitcnt vmcnt(0)""")
        slow_qk(t, "0")
        for i in range(8): a(f"v_max3_f32 v{vm}, v{S[0]+2*i}, v{S[0]+2*i+1}, v{vm}")
    slow_next(f"{K}_sl1")
    a(f"""v_mov_b32 v{S[0]}, v{vm}
    s_nop 1
    v_permlane32_swap_b32 v{vm}, v{S[0]}
    s_nop 1
    v_max_f32 v{vm}, v{vm}, v{S[0]}""")
    for i in range(16):
        a(f"v_sub_f32 v{S[1]+i}, 0, v{vm}")
        a(f"v_mov_b32 v{S[2]+i}, 0")
    a(f"""s_mov_b32 s{sA}, s{sKVg}
    s_mov_b32 s{sIt}, 16
    {K}_sl2:
    s_add_u32 s{sB}, s{sA}, 4096
    buffer_load_dwordx2 {vr(KT,2)}, v{vb}, s[{sWS}:{sWS+3}], s{sB} offen sc1""")
    for t in range(4):
        a(f"""buffer_load_dwordx4 {vr(KF[0],4)}, v{t0}, s[{sWS}:{sWS+3}], s{sA} offen offset:{1024*t} sc1
        s_add_u32 s{sB}, s{sA}, {4608+1216*t}
        buffer_load_dwordx4 {vr(V0[0],4)}, v{vc}, s[{sWS}:{sWS+3}], s{sB} offen sc1
        buffer_load_dwordx4 {vr(V1[0],4)}, v{vc}, s[{sWS}:{sWS+3}], s{sB} offen offset:608 sc1
        s_waitcnt vmcnt(0)""")
        slow_qk(t, vr(S[1], 16))
        for i in range(16): a(f"v_exp_f32 v{S[0]+i}, v{S[0]+i}")
        a(f"""s_nop 3
        v_smfmac_f32_32x32x32_bf16 {vr(S[2],16)}, {vr(V0[0],4)}, {vr(S[0],8)}, v{vIdx}
        v_smfmac_f32_32x32x32_bf16 {vr(S[2],16)}, {vr(V1[0],4)}, {vr(S[0]+8,8)}, v{vIdx}
        s_nop 7""")
    slow_next(f"{K}_sl2")
    a(f"""s_nop 15
    s_setpc_b64 s[{sRet}:{sRet+1}]""")

def main(out):
    ka = f"{NAME}_kernel"
    a = Asm(); kernel(a)
    t = f"""; gated mix of two MHA blocks: one fused kernel (QKV projection, attention, output projection); generated by gen/gen9.py
; @launch grid=(256,1,1) block=(512,1,1) lds={LDS_BYTES}
.amdgcn_target "amdgcn-amd-amdhsa--gfx950"
.text
.globl {ka}
.p2align 8
.type {ka},@function
{ka}:
{a.text()}.section .rodata,"a"
.p2align 6
.amdhsa_kernel {ka}
  .amdhsa_next_free_vgpr 256
  .amdhsa_next_free_sgpr 102
  .amdhsa_accum_offset 256
  .amdhsa_group_segment_fixed_size 0
  .amdhsa_kernarg_size 80
  .amdhsa_user_sgpr_count 2
  .amdhsa_user_sgpr_kernarg_segment_ptr 1
  .amdhsa_system_sgpr_workgroup_id_x 1
.end_amdhsa_kernel
"""
    open(out, "w").write(t)

if __name__ == "__main__":
    for kv in sys.argv[2:]:
        k, v = kv.split("=")
        OPT[k] = {"True": True, "False": False}.get(v, v)
    main(sys.argv[1])
```

```python
import sys, struct

NAME = "gated_mix__mha_block__mha_block__prompt"
def f32(x): return "0x%08x" % struct.unpack("<I", struct.pack("<f", x))[0]
CSCALE = (18 ** -0.5) * 1.4426950408889634
LOG2E = 1.4426950408889634

BLK = 9472
KVH = 16 * BLK
RING = 8 * BLK
WS_O = 0x0A00000
WS_WOM = 0x0F00000
WS_WOT = 0x1080000
WS_F = 0x10C0000
WS_STAMP = 0x1100000
WS_SIZE = 0x1200000
SENT = 0xffffffff
L_WR = 0
WSL = 16384
RW = 3
L_XR = 98304
L_SCR = 49152
L_GT = 155648
L_SYNC = L_GT + 3 * 2048 + 1536
L_WO = 151552
LDS_BYTES = 163840
RS = 592
L_OA = 6 * BLK
L_OB = 94720
PLANE = 32 * RS

class Asm:
    def __init__(self): self.l = []
    def __call__(self, s):
        for x in s.strip("\n").split("\n"):
            x = x.strip()
            if not x: continue
            self.l.append(x if x.endswith(":") else "    " + x)
    def text(self): return "\n".join(self.l) + "\n"

def vr(a, n): return f"v[{a}:{a+n-1}]"
OPT = dict(force_fb=False, stamp=False, rx="6", txor="0", nb="4", cprio="3")

def srd(a, d, lo, hi, size):
    a(f"""s_mov_b32 s{d}, s{lo}
    s_and_b32 s{d+1}, s{hi}, 0xffff
    s_mov_b32 s{d+2}, {size}
    s_mov_b32 s{d+3}, 0x00020000""")

sX, sW, sWo, sG, sD, sWS, sOut = 8, 12, 16, 20, 24, 28, 84
sWv, sPr, sE, sHd, sRot = 32, 33, 34, 35, 36
sT0, sT1, sT2, sT3 = 37, 38, 39, 40
sRef, sCnt, sKo, sXb, sRing, sIt, sKVg, sSpin, sW8 = 41, 42, 43, 44, 45, 46, 47, 48, 49
sRet, sEx = 50, 52
sWsrc, sWm0, sWk, sWcnt, sXm0, sGk, sTt, sBH = 54, 55, 62, 63, 76, 77, 78, 79
sP3T, sP3C, sOb, sWmb, sWtb, sHH, sTH, sOtb = 88, 89, 90, 91, 92, 93, 94, 95
SV = 254
sLA, sLB = 74, 75
sGO = [66, 67, 68, 69]
sGW = [70, 71, 72, 73]

def stamp(a, idx, vreg):
    if not OPT["stamp"]: return
    a(f"""s_memrealtime s[80:81]
    s_memtime s[82:83]
    s_waitcnt lgkmcnt(0)
    v_writelane_b32 v{vreg}, s80, {idx}
    v_writelane_b32 v{vreg+1}, s82, {idx}""")
def sstamp(a, k):
    if not OPT["stamp"]: return
    a(f"""s_memrealtime s[80:81]
    s_waitcnt lgkmcnt(0)
    s_mov_b32 s{96+k}, s80""")
def stamp_out(a, vreg, vt=1, mask=None):
    if not OPT["stamp"]: return
    a(f"""s_lshl_b32 s80, s2, 3
    s_add_u32 s80, s80, s{sW8}
    s_lshl_b32 s80, s80, 8
    s_add_u32 s80, s80, {WS_STAMP}
    v_lshlrev_b32 v{vt}, 3, v0
    s_mov_b32 exec_hi, 0""")
    if mask is not None: a(f"s_mov_b32 exec_lo, {mask}")
    a(f"""buffer_store_dwordx2 v[{vreg}:{vreg+1}], v{vt}, s[{sWS}:{sWS+3}], s80 offen
    s_mov_b64 exec, -1""")

def p3_addr(a, vOm, vOm2, vOt, vWm, vWt, vRd, t0, t1, t2):
    a(f"""v_and_b32 v{t0}, 15, v0
    v_lshrrev_b32 v{t1}, 5, v0
    v_bfe_u32 v{t2}, v0, 4, 1
    v_mul_u32_u24 v{vOm}, 1152, v{t1}
    v_lshl_add_u32 v{vOm}, v{t2}, 9, v{vOm}
    v_lshl_add_u32 v{vOm}, v{t0}, 4, v{vOm}
    v_add_u32 v{vOm2}, s{sLB}, v{vOm}
    v_add_u32 v{vOm}, s{sLA}, v{vOm}
    s_sub_u32 s{sT3}, s{sLB}, s{sLA}
    v_mul_lo_u32 v{vOt}, s{sT3}, v{t1}
    v_add_u32 v{vOt}, s{sLA}, v{vOt}
    v_mul_u32_u24 v{vWm}, 4608, v{t2}
    v_add_u32 v{vOt}, v{vOt}, v{vWm}
    v_lshl_add_u32 v{vOt}, v{t0}, 2, v{vOt}
    v_mul_u32_u24 v{vWm}, 4608, v{t1}
    v_lshl_add_u32 v{vWm}, v{t2}, 8, v{vWm}
    v_lshl_add_u32 v{vWm}, v{t0}, 4, v{vWm}
    v_lshrrev_b32 v{t1}, 4, v0
    v_add_u32 v{t2}, s{sP3C}, v{t1}
    v_and_b32 v{t2}, 3, v{t2}
    v_mul_u32_u24 v{vWt}, {4*2304}, v{t2}
    v_lshl_add_u32 v{vWt}, v{t0}, 4, v{vWt}
    v_mul_u32_u24 v{vRd}, {RS}, v{t0}
    v_lshl_add_u32 v{vRd}, v{t1}, 4, v{vRd}
    s_cmp_eq_u32 s{sWv}, 3
    s_cselect_b32 s{sT3}, 4, s{sWv}
    s_mul_i32 s{sT3}, s{sT3}, {PLANE}
    v_add_u32 v{vRd}, s{sT3}, v{vRd}""")
def p3_scal(a):
    a(f"""s_and_b32 s{sP3T}, s2, 7
    s_lshr_b32 s{sT0}, s2, 5
    s_lshl_b32 s{sT0}, s{sT0}, 3
    s_add_u32 s{sP3T}, s{sP3T}, s{sT0}
    s_lshr_b32 s{sP3C}, s2, 3
    s_and_b32 s{sP3C}, s{sP3C}, 3
    s_lshl_b32 s{sOb}, s{sP3T}, 6
    s_lshl_b32 s{sT3}, s{sWv}, 2
    s_add_u32 s{sOb}, s{sOb}, s{sT3}
    s_mul_i32 s{sOb}, s{sOb}, 1152
    s_add_u32 s{sOb}, s{sOb}, {WS_O}
    s_lshl_b32 s{sWmb}, s{sP3C}, 6
    s_add_u32 s{sWmb}, s{sWmb}, s{sT3}
    s_mul_i32 s{sWmb}, s{sWmb}, 4608
    s_add_u32 s{sWmb}, s{sWmb}, {WS_WOM}
    s_lshl_b32 s{sWtb}, s{sP3C}, 4
    s_add_u32 s{sWtb}, s{sWtb}, s{sWv}
    s_mul_i32 s{sWtb}, s{sWtb}, 2304
    s_add_u32 s{sWtb}, s{sWtb}, {WS_WOT}
    s_mul_i32 s{sLA}, s{sHH}, {RING}
    s_mul_i32 s{sT3}, s{sTH}, 9216
    s_add_u32 s{sLA}, s{sLA}, s{sT3}
    s_add_u32 s{sLA}, s{sLA}, {L_OA}
    s_mul_i32 s{sLB}, s{sWv}, 9216
    s_add_u32 s{sLB}, s{sLB}, {L_OB}""")
    for g in range(4):
        a(f"""s_add_u32 s{sT3}, s{sP3C}, {g}
        s_and_b32 s{sT3}, s{sT3}, 3
        s_mul_i32 s{sGO[g]}, s{sT3}, {16*1152}
        s_add_u32 s{sGO[g]}, s{sGO[g]}, s{sOb}
        s_mul_i32 s{sGW[g]}, s{sT3}, {16*4608}
        s_add_u32 s{sGW[g]}, s{sGW[g]}, s{sWmb}""")
def p3_wo_loads(a, cts, reg, vWm, vWt, steps=range(9)):
    for s in range(8):
        if s not in steps: continue
        a(f"s_add_u32 s{sT3}, s{sGW[s>>1]}, {2*(s&1)*4608 + 512*cts[0]}")
        for i, ct in enumerate(cts):
            a(f"buffer_load_dwordx4 {vr(reg(s,ct),4)}, v{vWm}, s[{sWS}:{sWS+3}], s{sT3} offen offset:{512*i} sc1")
    for ct in (cts if 8 in steps else []):
        a(f"buffer_load_dwordx4 {vr(reg(8,ct),4)}, v{vWt}, s[{sWS}:{sWS+3}], s{sWtb} offen offset:{256*ct} sc1")
def p3_oread(a, g, OF, vOm):
    for k in range(2):
        for th in range(2):
            a(f"ds_read_b128 {vr(OF+8*k+4*th,4)}, v{vOm[g>>1]} offset:{4608*(g&1) + 2304*k + 256*th}")
def p3_mf(a, cts, reg, AC, st, o):
    for i, ct in enumerate(cts):
        for th in range(2):
            d = AC + 8 * i + 4 * th
            a(f"v_mfma_f32_16x16x32_bf16 {vr(d,4)}, {vr(reg(st,ct),4)}, {vr(o+4*th,4)}, {vr(d,4)}")
def p3_tail(a, cts, reg, AC, OF, vOt, vRd):
    for th in range(2):
        for i in range(4):
            a(f"ds_read_b32 v{OF+4*th+i}, v{vOt} offset:{1152*i + 1024 + 64*th}")
    a("s_waitcnt lgkmcnt(0)")
    p3_mf(a, cts, reg, AC, 8, OF)
    sstamp(a, 5)
    a("s_nop 7")
    for i, ct in enumerate(cts):
        for th in range(2):
            a(f"ds_write_b128 v{vRd}, {vr(AC+8*i+4*th,4)} offset:{16*th*RS + 64*ct}")
def p3_helper(a, cts, reg, AC, OF, vOm, vOt, vRd, vL16, vVa, vSy, slp):
    L = "h3"
    sDone = sCnt
    def dma(g):
        lb = (sLA, sLB)[g >> 1]
        a(f"""s_add_u32 m0, s{lb}, {4608*(g&1)}
        s_add_u32 s{sT3}, s{sGO[g]}, 4096""")
        for i in range(4):
            a(f"buffer_load_dwordx4 v{vL16}, s[{sWS}:{sWS+3}], s{sGO[g]} offen offset:{1024*i} sc1 lds")
        a(f"""s_add_u32 m0, s{lb}, {4608*(g&1) + 4096}
        s_mov_b32 exec_hi, 0
        buffer_load_dwordx4 v{vL16}, s[{sWS}:{sWS+3}], s{sT3} offen sc1 lds
        s_mov_b64 exec, -1""")
    sFly, sLand, sTry, sBlk_ = sWk, sWcnt, sKo, sXb
    vH, vHa, vE4 = OF + 18, OF + 21, OF + 22
    a(f"""v_and_b32 v1, 3, v0
    v_mul_u32_u24 v{vHa}, 1152, v1
    v_bfe_u32 v1, v0, 2, 2
    v_add_u32 v1, s{sP3C}, v1
    v_and_b32 v1, 3, v1
    v_mul_u32_u24 v1, {16*1152}, v1
    v_add_u32 v{vHa}, v{vHa}, v1
    v_mov_b32 v{vE4}, {L_SYNC + 20}
    s_mov_b32 s{sSpin}, 60000
    s_mov_b32 s{sIt}, {SENT}
    s_mov_b32 s{sDone}, 0
    s_mov_b32 s{sFly}, 0
    s_mov_b32 s{sLand}, 0
    s_mov_b32 s{sBlk_}, 12
    {L}_round:
    s_mov_b64 exec, 0xffff
    buffer_load_dword v{vH}, v{vHa}, s[{sWS}:{sWS+3}], s{sOb} offen offset:1024 sc1
    s_mov_b64 exec, -1
    ds_read_b32 v1, v{vE4}
    s_cmp_eq_u32 s{sFly}, 0
    s_cbranch_scc1 {L}_nofly
    s_or_b32 s{sLand}, s{sLand}, s{sFly}
    s_waitcnt vmcnt(1)
    v_mov_b32 v{vH+1}, s{sLand}
    ds_write_b32 v{vSy}, v{vH+1}
    {L}_nofly:
    s_mov_b32 s{sTry}, s{sFly}
    s_waitcnt lgkmcnt(0)
    v_readfirstlane_b32 s{sT0}, v1
    s_cmp_ge_u32 s{sT0}, 4
    s_cselect_b32 s{sBlk_}, 0, s{sBlk_}
    s_or_b32 s{sT1}, s{sDone}, s{sTry}
    s_cmp_eq_u32 s{sT1}, 15
    s_mov_b32 s{sFly}, 0
    s_cbranch_scc1 {L}_work
    s_or_b32 s{sT1}, s{sT1}, s{sBlk_}
    s_waitcnt vmcnt(0)
    v_cmp_ne_u32 vcc, s{sIt}, v{vH}""")
    for g in range(4):
        a(f"""s_bitcmp1_b32 s{sT1}, {g}
        s_cbranch_scc1 {L}_l{g}
        s_bfe_u32 s{sT0}, vcc_lo, {(4 << 16) | (4 * g)}
        s_cmp_eq_u32 s{sT0}, 15
        s_cbranch_scc0 {L}_l{g}
        s_bitset1_b32 s{sFly}, {g}""")
        dma(g)
        a(f"{L}_l{g}:")
    a(f"{L}_work:")
    for g in range(4):
        a(f"""s_bitcmp1_b32 s{sTry}, {g}
        s_cbranch_scc0 {L}_n{g}""")
        p3_check(a, g, OF, vOm, vVa)
        a(f"""s_cbranch_vccnz {L}_n{g}
        s_bitset1_b32 s{sDone}, {g}""")
        stamp(a, 27 + g, SV)
        p3_mf(a, cts, reg, AC, 2 * g, OF)
        p3_mf(a, cts, reg, AC, 2 * g + 1, OF + 8)
        a(f"{L}_n{g}:")
    a(f"""s_cmp_eq_u32 s{sDone}, 15
    s_cbranch_scc1 {L}_done
    s_sub_u32 s{sSpin}, s{sSpin}, 1
    s_cmp_lt_i32 s{sSpin}, 0
    s_cbranch_scc1 {L}_done
    s_or_b32 s{sT0}, s{sFly}, s{sTry}
    s_cbranch_scc1 {L}_round
    s_sleep {slp}
    s_branch {L}_round
    {L}_done:
    s_waitcnt vmcnt(0)""")
    p3_tail(a, cts, reg, AC, OF, vOt, vRd)
def p3_check(a, g, OF, vOm, vVa):
    p3_oread(a, g, OF, vOm)
    a(f"""ds_read_b64 {vr(OF+16,2)}, v{vVa[g>>1]} offset:{4608*(g&1)}
    s_waitcnt lgkmcnt(3)
    v_max3_u32 v1, v{OF}, v{OF+1}, v{OF+2}
    v_max3_u32 v1, v{OF+3}, v{OF+4}, v1
    v_max3_u32 v1, v{OF+5}, v{OF+6}, v1
    s_waitcnt lgkmcnt(0)
    v_max3_u32 v1, v{OF+7}, v{OF+8}, v1
    v_max3_u32 v1, v{OF+9}, v{OF+10}, v1
    v_max3_u32 v1, v{OF+11}, v{OF+12}, v1
    v_max3_u32 v1, v{OF+13}, v{OF+14}, v1
    v_max3_u32 v1, v{OF+15}, v{OF+16}, v1
    v_max_u32 v1, v{OF+17}, v1
    v_cmp_eq_u32 vcc, s{sIt}, v1
    s_nop 1""")
def p3_comp(a, cts, reg, AC, OF, vOm, vOt, vRd, vSy, vVa):
    L = "c3"
    sDone = sCnt
    a(f"""s_mov_b32 s{sSpin}, 400000
    s_mov_b32 s{sIt}, {SENT}
    s_mov_b32 s{sDone}, 0
    s_waitcnt vmcnt(6)
    {L}_round:
    ds_read_b32 v1, v{vSy}
    s_waitcnt lgkmcnt(0)
    v_readfirstlane_b32 s{sT0}, v1
    s_andn2_b32 s{sT0}, s{sT0}, s{sDone}""")
    for g in range(4):
        a(f"""s_bitcmp1_b32 s{sT0}, {g}
        s_cbranch_scc0 {L}_n{g}""")
        p3_check(a, g, OF, vOm, vVa)
        a(f"""s_cbranch_vccnz {L}_n{g}
        s_bitset1_b32 s{sDone}, {g}""")
        p3_mf(a, cts, reg, AC, 2 * g, OF)
        p3_mf(a, cts, reg, AC, 2 * g + 1, OF + 8)
        a(f"{L}_n{g}:")
    a(f"""s_cmp_eq_u32 s{sDone}, 15
    s_cbranch_scc1 {L}_done
    s_sub_u32 s{sSpin}, s{sSpin}, 1
    s_cmp_lt_i32 s{sSpin}, 0
    s_cbranch_scc0 {L}_round
    {L}_done:""")
    p3_tail(a, cts, reg, AC, OF, vOt, vRd)

def kernel(a):
    K = "k"
    if OPT["stamp"]: a("s_memrealtime s[96:97]")
    a(f"""
    s_cmp_ge_u32 s2, 256
    s_cbranch_scc1 {K}_end
    s_load_dwordx4 s[56:59], s[0:1], 0
    s_load_dwordx2 s[60:61], s[0:1], 16
    s_load_dwordx4 s[64:67], s[0:1], 32
    s_load_dwordx4 s[68:71], s[0:1], 48
    s_load_dwordx4 s[72:75], s[0:1], 64
    v_lshrrev_b32 v1, 6, v0
    v_and_b32 v0, 63, v0
    s_lshr_b32 s{sT0}, s2, 3
    v_readfirstlane_b32 s{sW8}, v1
    s_and_b32 s{sT1}, s{sT0}, 3
    s_lshr_b32 s{sT2}, s{sT0}, 2
    s_and_b32 s{sE}, s2, 1
    s_lshl_b32 s{sE}, s{sE}, 2
    s_add_u32 s{sE}, s{sE}, s{sT1}
    s_and_b32 s{sPr}, s2, 6
    s_lshl_b32 s{sPr}, s{sPr}, 2
    s_add_u32 s{sPr}, s{sPr}, s{sT2}
    s_lshl_b32 s{sRot}, s{sT1}, 1
    s_add_u32 s{sRot}, s{sRot}, s{sT2}
    s_sub_u32 s{sT1}, s{sRot}, 9
    s_cmp_ge_u32 s{sRot}, 9
    s_cselect_b32 s{sRot}, s{sT1}, s{sRot}
    s_and_b32 s{sWv}, s{sW8}, 3
    s_lshr_b32 s{sHH}, s{sWv}, 1
    s_and_b32 s{sTH}, s{sWv}, 1
    s_lshl_b32 s{sBH}, s{sPr}, 1
    s_add_u32 s{sBH}, s{sBH}, s{sHH}
    s_mul_i32 s{sKVg}, s{sBH}, {KVH}
    s_waitcnt lgkmcnt(0)
    s_cmp_ge_u32 s{sPr}, 16
    s_cselect_b32 s58, s64, s58
    s_cselect_b32 s59, s65, s59
    s_cselect_b32 s60, s66, s60
    s_cselect_b32 s61, s67, s61""")
    srd(a, sW, 58, 59, 576 * 3456)
    srd(a, sX, 56, 57, 2048 * 1152)
    srd(a, sG, 68, 69, 1152)
    srd(a, sWS, 74, 75, WS_SIZE)
    srd(a, sOut, 70, 71, 2048 * 1152)
    srd(a, sD, 72, 73, 256)
    if OPT["txor"] == "1":
        a(f"s_and_b32 s{sTt}, s2, 2")
    else:
        a(f"s_mov_b32 s{sTt}, 0")
    a(f"""s_cmp_ge_u32 s{sW8}, 4
    s_cbranch_scc0 {K}_compute""")
    helper(a, K)
    a(f"{K}_compute:")
    compute(a, K)

def final_reduce(a, K, SVr):
    a(f"""s_lshl_b32 s{sT3}, s{sW8}, 6
    v_add_u32 v1, s{sT3}, v0
    s_mul_i32 s{sT0}, s{sP3T}, {32*1152}
    s_mul_i32 s{sT1}, s{sP3C}, 288
    s_add_u32 s{sT0}, s{sT0}, s{sT1}""")
    for r in range(2):
        a(f"""v_add_u32 v2, {512*r}, v1
        v_mul_u32_u24 v3, 3641, v2
        v_lshrrev_b32 v3, 16, v3
        v_mul_u32_u24 v4, 18, v3
        v_sub_u32 v4, v2, v4
        v_mul_u32_u24 v{6+r}, {RS}, v3
        v_lshl_add_u32 v{6+r}, v4, 5, v{6+r}
        v_add_u32 v{10+r}, {4*PLANE}, v{6+r}
        v_mul_u32_u24 v{8+r}, 1152, v3
        v_lshl_add_u32 v{8+r}, v4, 4, v{8+r}""")
    a("""s_waitcnt lgkmcnt(0)
    s_barrier""")
    for r in range(2):
        if r == 1:
            if OPT["stamp"]: a("s_waitcnt vmcnt(0)")
            stamp(a, 15, SVr)
            if OPT["stamp"]:
                for k in range(6): a(f"v_writelane_b32 v{SVr}, s{96+k}, {20+k}")
                a(f"s_sub_u32 s80, 60000, s{sSpin}\nv_writelane_b32 v{SVr}, s80, 26")
            stamp_out(a, SVr)
            a(f"""s_cmp_eq_u32 s{sW8}, 0
            s_cbranch_scc0 {K}_end""")
        b = 32 + 32 * r
        for w in range(4):
            for hf in range(2):
                if w < 3: a(f"ds_read_b128 {vr(b+8*w+4*hf,4)}, v{6+r} offset:{w*PLANE + 16*hf}")
                else: a(f"ds_read_b128 {vr(b+8*w+4*hf,4)}, v{10+r} offset:{16*hf}")
        a("s_waitcnt lgkmcnt(4)")
        for i in range(8): a(f"v_add_f32 v{b+i}, v{b+i}, v{b+8+i}")
        a("s_waitcnt lgkmcnt(0)")
        for i in range(8): a(f"v_add_f32 v{b+16+i}, v{b+16+i}, v{b+24+i}")
        for i in range(8): a(f"v_add_f32 v{b+i}, v{b+i}, v{b+16+i}")
        for i in range(4): a(f"v_cvt_pk_bf16_f32 v{b+8+i}, v{b+2*i}, v{b+2*i+1}")
        a(f"buffer_store_dwordx4 {vr(b+8,4)}, v{8+r}, s[{sOut}:{sOut+3}], s{sT0} offen {OPT.get('osc','')}")

def poll(a, lbl, ld, cond, slp):
    a(f"""s_mov_b32 s{sSpin}, 40000
    {lbl}:
    {ld}
    s_waitcnt vmcnt(0)""")
    cond()
    a(f"""s_cbranch_scc1 {lbl}_go
    s_sub_u32 s{sSpin}, s{sSpin}, 1
    s_cmp_eq_u32 s{sSpin}, 0
    s_cbranch_scc1 {lbl}_go
    s_sleep {slp}
    s_branch {lbl}
    {lbl}_go:""")

CL = [5, 6, 7]
def wo_lds_base(w): return (w >> 1) * RING + (w & 1) * 27648

def helper(a, K):
    RX = int(OPT["rx"])
    stamp(a, 0, SV)
    a("s_setprio 2")
    vXs, vWs = [2, 3], [4, 5]
    vL16, vGr, vGw = 7, 8, 9
    t0, t1, t2, t3 = 10, 11, 12, 13
    vGv = 14
    WM = [sum(1 << L for L in range(64) if ((L & 15) ^ (((L >> 4) | (hi << 2)) << 1)) != 15) for hi in range(2)]
    sM0, sM1 = sEx, 64
    a(f"""v_lshrrev_b32 v{t0}, 4, v0
    v_lshlrev_b32 v{t1}, 1, v{t0}
    v_and_b32 v{t2}, 15, v0
    v_xor_b32 v{t1}, v{t1}, v{t2}
    v_mul_u32_u24 v{t0}, 3456, v{t0}""")
    for hi in range(2):
        if hi: a(f"v_xor_b32 v{t1}, 8, v{t1}")
        a(f"""v_mul_u32_u24 v{t2}, 52, v{t1}
        v_lshrrev_b32 v{t2}, 8, v{t2}
        v_mul_u32_u24 v{t2}, {1152-80}, v{t2}
        v_lshl_add_u32 v{t2}, v{t1}, 4, v{t2}
        v_add_u32 v{vWs[hi]}, v{t0}, v{t2}""")
    a(f"""v_lshlrev_b32 v{vL16}, 4, v0
    s_mul_i32 s{sT0}, s{sWv}, {16*3456}
    s_and_b32 s{sT1}, s{sPr}, 15
    s_mul_i32 s{sT1}, s{sT1}, 72
    s_add_u32 s{sWsrc}, s{sT0}, s{sT1}
    s_mul_i32 s{sWk}, s{sRot}, {64*3456}
    s_add_u32 s{sWcnt}, s{sWsrc}, s{sWk}
    s_lshl_b32 s{sWm0}, s{sWv}, 12
    s_lshl_b32 s{sT2}, s{sWv}, 11
    s_add_u32 s{sT2}, s{sT2}, {L_GT}
    s_mov_b32 s{sM0}, {WM[0] & 0xffffffff}
    s_mov_b32 s{sM0+1}, {WM[0] >> 32}
    s_mov_b32 s{sM1}, {WM[1] & 0xffffffff}
    s_mov_b32 s{sM1+1}, {WM[1] >> 32}""")
    def wdma2(hi):
        m = (sM0, sM1)[hi]
        a(f"""s_add_u32 m0, s{sWm0}, {L_WR + hi*2048}
        s_add_u32 s{sT0}, s{sWcnt}, {hi*8*3456}
        s_add_u32 s{sT1}, s{sWcnt}, {hi*8*3456 + 4*3456 - 1024}
        s_mov_b64 exec, s[{m}:{m+1}]
        buffer_load_dwordx4 v{vWs[hi]}, s[{sW}:{sW+3}], s{sT0} offen lds
        buffer_load_dwordx4 v{vWs[hi]}, s[{sW}:{sW+3}], s{sT1} offen offset:1024 lds
        s_mov_b64 exec, -1""")
    def wnext():
        a(f"""s_add_u32 s{sWk}, s{sWk}, {64*3456}
        s_cmp_ge_u32 s{sWk}, {576*3456}
        s_cselect_b32 s{sWk}, 0, s{sWk}
        s_add_u32 s{sWcnt}, s{sWsrc}, s{sWk}
        s_add_u32 s{sWm0}, s{sWm0}, {WSL}
        s_sub_u32 s{sT0}, s{sWm0}, {RW*WSL}
        s_cmp_ge_u32 s{sWm0}, {RW*WSL}
        s_cselect_b32 s{sWm0}, s{sT0}, s{sWm0}""")
    order = []
    a(f"""s_mov_b32 m0, s{sT2}
    s_nop 0
    buffer_load_dwordx4 v{vL16}, s[{sG}:{sG+3}], 0 offen lds
    s_mov_b64 exec, 0xff
    buffer_load_dwordx4 v{vL16}, s[{sG}:{sG+3}], 0 offen offset:1024 lds
    s_mov_b64 exec, -1""")
    order += ["G"] * 2
    wdma2(0); wdma2(1)
    order += ["W0"] * 4
    wnext()
    a(f"""v_lshrrev_b32 v{t0}, 3, v0
    v_mul_u32_u24 v{t0}, 1152, v{t0}
    v_and_b32 v{t1}, 7, v0
    v_lshrrev_b32 v{t2}, 4, v0
    v_xor_b32 v{t1}, v{t1}, v{t2}
    v_lshlrev_b32 v{t1}, 4, v{t1}
    v_xor_b32 v{t2}, 64, v{t1}
    v_add_u32 v{vXs[0]}, v{t0}, v{t1}
    v_add_u32 v{vXs[1]}, v{t0}, v{t2}
    v_add_u32 v{vXs[1]}, {8*1152-1024}, v{vXs[1]}
    s_lshl_b32 s{sXb}, s{sE}, 4
    s_lshl_b32 s{sT0}, s{sHH}, 3
    s_add_u32 s{sXb}, s{sXb}, s{sT0}
    s_add_u32 s{sXb}, s{sXb}, s{sTH}
    s_mul_i32 s{sXb}, s{sXb}, {16*1152}
    s_lshl_b32 s{sKo}, s{sRot}, 7
    s_lshl_b32 s{sRing}, s{sWv}, 11
    s_add_u32 s{sRing}, s{sRing}, {L_XR}
    s_add_u32 s{sRef}, s{sXb}, s{sKo}
    s_mov_b32 s{sXm0}, s{sRing}""")
    sTo = [56, 57, 58, 59]
    for tt in range(4):
        a(f"""s_xor_b32 s{sTo[tt]}, s{sTt}, {tt}
        s_mul_i32 s{sTo[tt]}, s{sTo[tt]}, {32*1152}""")
    xstate = [0]
    def xnext():
        a(f"""s_add_u32 s{sKo}, s{sKo}, 128
        s_cmp_ge_u32 s{sKo}, 1152
        s_cselect_b32 s{sKo}, 0, s{sKo}
        s_add_u32 s{sRef}, s{sXb}, s{sKo}""")
    def xdma(j):
        tt = j & 3
        if tt == 0 and j: xnext()
        a(f"""s_mov_b32 m0, s{sXm0}
        s_add_u32 s{sT0}, s{sRef}, s{sTo[tt]}
        buffer_load_dwordx4 v{vXs[0]}, s[{sX}:{sX+3}], s{sT0} offen lds
        buffer_load_dwordx4 v{vXs[1]}, s[{sX}:{sX+3}], s{sT0} offen offset:1024 lds
        s_add_u32 s{sXm0}, s{sXm0}, 8192
        s_cmp_ge_u32 s{sXm0}, {L_XR + RX*8192}
        s_cselect_b32 s{sXm0}, s{sRing}, s{sXm0}""")
    xdma(0); xdma(1)
    order += ["X0"] * 2 + ["X1"] * 2
    stamp(a, 16, SV)
    srd(a, sWo, 60, 61, 576 * 1152)
    a(f"""s_lshl_b32 s{sT0}, s{sWv}, 5
    s_add_u32 s{sT0}, s{sT0}, s{sT2}
    v_lshl_add_u32 v{vGr}, v0, 1, s{sT0}
    v_and_b32 v{t1}, 3, v0
    v_lshlrev_b32 v{t1}, 1, v{t1}
    v_and_b32 v{t2}, 8, v0
    v_or_b32 v{t1}, v{t1}, v{t2}
    v_xor_b32 v{t1}, 15, v{t1}
    v_lshlrev_b32 v{t1}, 4, v{t1}
    v_lshl_add_u32 v{t1}, v0, 8, v{t1}
    s_lshl_b32 s{sGk}, s{sRot}, 7
    v_mov_b32 v{t0}, {L_SYNC}
    v_mov_b32 v20, 0
    v_mov_b32 v21, 0
    v_mov_b32 v22, 0
    v_mov_b32 v23, 0
    ds_write_b128 v{t0}, v[20:23]
    ds_write_b128 v{t0}, v[20:23] offset:16
    ds_write_b128 v{t0}, v[20:23] offset:32""")
    def gate(slotreg):
        a(f"""v_add_u32 v{t0}, s{sGk}, v{vGr}
        s_mov_b64 exec, 0xffff
        ds_read_u16 v{vGv}, v{t0}
        v_add_u32 v{t0}, s{slotreg}, v{t1}
        s_add_u32 s{sGk}, s{sGk}, 128
        s_cmp_ge_u32 s{sGk}, 1152
        s_cselect_b32 s{sGk}, 0, s{sGk}
        s_waitcnt lgkmcnt(0)
        ds_write2_b32 v{t0}, v{vGv}, v{vGv} offset0:0 offset1:1
        s_mov_b64 exec, -1""")
    a(f"""s_sub_u32 s{sT3}, s{sWm0}, {WSL}
    s_waitcnt vmcnt(8)""")
    stamp(a, 17, SV)
    gate(sT3); gate(sWm0)
    a("""s_waitcnt vmcnt(2) lgkmcnt(0)
    s_barrier""")
    stamp(a, 1, SV)
    xdma(2)
    wdma2(0); wdma2(1)
    wnext()
    order += ["X2"] * 2 + ["W1"] * 4
    for j in range(3, RX - 1):
        xdma(j); order += [f"X{j}"] * 2
    stamp(a, 18, SV)
    a(f"""s_mov_b32 s{sIt}, 0
    {K}_hl:""")
    for tt in (0, 2):
        a(f"""s_waitcnt vmcnt(@W{tt}@) lgkmcnt(0)
        s_barrier""")
        if not OPT.get("noh"):
            wdma2(tt >> 1)
            xdma(tt + RX - 1); xdma(tt + RX)
            if tt == 0: gate(sWm0)
    wnext()
    a(f"""s_add_u32 s{sIt}, s{sIt}, 1
    s_cmp_lt_u32 s{sIt}, 7
    s_cbranch_scc1 {K}_hl""")
    need = {0: 99, 2: 99}
    for j in range(0, 36, 2):
        req = [f"X{min(j+2,35)}"]
        if j % 4 == 2 and j // 4 + 1 <= 8: req.append(f"W{j//4+1}")
        last = max(i for i, o in enumerate(order) if o in req)
        n_ = len(order) - 1 - last
        if j < 28:
            need[j % 4] = min(need[j % 4], n_)
            order += [f"W{j//4+2}"] * 2 + [f"X{j+RX-1}"] * 2 + [f"X{j+RX}"] * 2
        else:
            a(f"""s_waitcnt vmcnt({n_})
            s_barrier""")
            for jj in (j + RX - 1, j + RX):
                if jj <= 35:
                    xdma(jj); order += [f"X{jj}"] * 2
    for i in (0, 2): a.l = [x.replace(f"@W{i}@", str(need[i])) for x in a.l]
    stamp(a, 2, SV)
    sPH, sPC = sWsrc, sWm0
    vWos = 6
    a(f"""s_lshl_b32 s{sPH}, s{sPr}, 1
    s_and_b32 s{sT0}, s{sE}, 1
    s_add_u32 s{sPH}, s{sPH}, s{sT0}
    s_lshr_b32 s{sPC}, s{sE}, 1
    v_mul_u32_u24 v{t0}, 57, v0
    v_lshrrev_b32 v{t0}, 10, v{t0}
    v_mul_u32_u24 v{t1}, 18, v{t0}
    v_sub_u32 v{t1}, v0, v{t1}
    v_lshlrev_b32 v{t1}, 4, v{t1}
    s_lshl_b32 s{sT0}, s{sT0}, 1
    s_mul_i32 s{sT1}, s{sWv}, 3
    s_add_u32 s{sT0}, s{sT0}, s{sT1}
    v_add_u32 v{t0}, s{sT0}, v{t0}
    v_mul_u32_u24 v{vWos}, 1152, v{t0}
    v_add_u32 v{vWos}, v{vWos}, v{t1}
    v_cmp_le_u32 vcc, 6, v{t0}
    v_add_u32 v{t2}, {12*1152}, v{vWos}
    v_subrev_u32 v{t3}, {6*1152}, v{vWos}
    v_cndmask_b32 v{t2}, v{t2}, v{t3}, vcc
    s_and_b32 s{sT0}, s{sPH}, 31
    s_mul_i32 s{sT0}, s{sT0}, {18*1152}
    s_mul_i32 s{sT1}, s{sPC}, 288
    s_add_u32 s{sT0}, s{sT0}, s{sT1}
    s_mul_i32 s{sT1}, s{sWv}, 864
    s_add_u32 m0, s{sT1}, {L_WO}
    s_mov_b32 exec_hi, 0x003fffff
    buffer_load_dwordx4 v{vWos}, s[{sWo}:{sWo+3}], s{sT0} offen lds
    s_add_u32 m0, s{sT1}, {L_WO + 4*864}
    s_nop 0
    buffer_load_dwordx4 v{t2}, s[{sWo}:{sWo+3}], s{sT0} offen lds
    s_mov_b64 exec, -1""")
    sQ = sGk
    vP, vPa, vSy, vOne, vFa = 20, 17, 18, 19, 16
    a(f"""s_mul_i32 s{sRing}, s{sHH}, {RING}
    s_mul_i32 s{sT2}, s{sTH}, 5120
    s_add_u32 s{sT0}, s{sRing}, s{sT2}
    v_add_u32 v{t0}, s{sT0}, v{vL16}
    s_mul_i32 s{sT1}, s{sE}, {2*BLK}
    s_add_u32 s{sT1}, s{sT1}, s{sKVg}
    s_add_u32 s{sT1}, s{sT1}, s{sT2}
    s_mov_b32 s{sQ}, s{sTH}
    s_lshl_b32 s{sT0}, s{sPr}, 2
    v_mov_b32 v{vPa}, s{sT0}
    s_lshl_b32 s{sT0}, s{sPr}, 7
    s_add_u32 s{sT0}, s{sT0}, {WS_F}
    v_lshl_add_u32 v{vFa}, v0, 2, s{sT0}
    v_mov_b32 v{vSy}, {L_SYNC}
    v_mov_b32 v{vOne}, 1
    s_cmp_eq_u32 s{sTH}, 1
    s_cselect_b32 s{sM0}, 0xffff, -1
    s_cselect_b32 s{sM0+1}, 0, -1
    s_mov_b64 exec, 1
    buffer_load_dword v{vP+1}, v{vPa}, s[{sD}:{sD+3}], 0 offen sc1
    s_mov_b64 exec, -1
    s_barrier""")
    stamp(a, 3, SV)
    for i in range(10): a(f"ds_read_b128 {vr(32+4*i,4)}, v{t0} offset:{(i//5)*BLK + 1024*(i%5)}")
    a(f"s_mov_b32 s{sXb}, s{sT1}")
    def publish(ph):
        for i in range(5 * ph, 5 * ph + 5):
            if i % 5 == 4: a(f"""s_add_u32 s{sXb}, s{sXb}, 4096
            s_mov_b64 exec, s[{sM0}:{sM0+1}]""")
            if ph == 0: a(f"s_waitcnt lgkmcnt({9-i})")
            a(f"buffer_store_dwordx4 {vr(32+4*i,4)}, v{vL16}, s[{sWS}:{sWS+3}], s{sXb} offen offset:{1024*((i%5)%4)} sc1")
            if i % 5 == 4: a(f"""s_mov_b64 exec, -1
            s_add_u32 s{sXb}, s{sXb}, {BLK-4096}""")
    publish(0)
    def arrive(word, vm=0):
        a(f"""s_mov_b64 exec, 1
        s_waitcnt vmcnt({vm})
        ds_add_rtn_u32 v{vP}, v{vSy}, v{vOne} offset:{4*word}
        s_waitcnt lgkmcnt(0)
        v_readfirstlane_b32 s{sT1}, v{vP}
        s_mov_b64 exec, -1
        s_cmp_eq_u32 s{sT1}, 3""")
    def lds_wait(lbl, word):
        a(f"""s_mov_b32 s{sSpin}, 400000
        {lbl}:
        ds_read_b32 v{vP}, v{vSy} offset:{4*word}
        s_waitcnt lgkmcnt(0)
        v_readfirstlane_b32 s{sT1}, v{vP}
        s_cmp_lg_u32 s{sT1}, 0
        s_cbranch_scc1 {lbl}_go
        s_sub_u32 s{sSpin}, s{sSpin}, 1
        s_cmp_eq_u32 s{sSpin}, 0
        s_cbranch_scc1 {lbl}_go
        s_sleep 1
        s_branch {lbl}
        {lbl}_go:""")
    def flag(lbl, off):
        a(f"""s_cbranch_scc0 {lbl}
        s_mov_b64 exec, 1
        s_lshl_b32 s{sT0}, s{sE}, 2
        buffer_store_dword v{vOne}, v{vFa}, s[{sWS}:{sWS+3}], s{sT0} offen offset:{off} sc1
        s_mov_b64 exec, -1
        {lbl}:""")
    arrive(0)
    flag(f"{K}_fa", 0)
    stamp(a, 4, SV)
    def rst_ok(r):
        a(f"""v_readfirstlane_b32 s{sT0}, v{r}
        s_and_b32 s{sT0}, s{sT0}, 0xff
        s_cmp_ge_u32 s{sT0}, 8""")
    def kv_ready():
        a(f"""v_cmp_eq_u32 vcc, 1, v{vP}
        s_nop 1
        s_cmp_eq_u32 vcc_lo, 0xff""")
    a(f"""s_cmp_eq_u32 s{sT1}, 0
    s_cbranch_scc0 {K}_kw
    s_mov_b64 exec, 1""")
    rst_ok(vP + 1)
    a(f"s_cbranch_scc1 {K}_pl0_go")
    poll(a, f"{K}_pl0", f"buffer_load_dword v{vP}, v{vPa}, s[{sD}:{sD+3}], 0 offen sc1", lambda: rst_ok(vP), 8)
    a("s_mov_b64 exec, 0xff")
    a(f"""s_xor_b32 s{sT0}, s{sE}, 1
    s_lshl_b32 s{sT2}, 1, s{sT0}
    s_xor_b32 s{sT0}, s{sE}, 2
    s_bitset1_b32 s{sT2}, s{sT0}""")
    def kv2_ready():
        a(f"""v_cmp_eq_u32 vcc, 1, v{vP}
        s_nop 1
        s_and_b32 s{sT0}, vcc_lo, s{sT2}
        s_cmp_eq_u32 s{sT0}, s{sT2}""")
    poll(a, f"{K}_pl1", f"buffer_load_dword v{vP}, v{vFa}, s[{sWS}:{sWS+3}], 0 offen sc1", kv2_ready, 1)
    a(f"""ds_write_b32 v{vSy}, v{vOne} offset:8
    s_mov_b64 exec, -1
    s_branch {K}_kgo
    {K}_kw:""")
    lds_wait(f"{K}_lw1", 2)
    a(f"{K}_kgo:")
    stamp(a, 5, SV)
    def ldblock():
        a(f"s_call_b64 s[{sRet}:{sRet+1}], {K}_ldblk")
    ldblock()
    publish(1)
    a("s_waitcnt vmcnt(5)")
    stamp(a, 6, SV)
    a("s_barrier")
    a("s_mov_b64 exec, 0xff")
    poll(a, f"{K}_pl1a", f"buffer_load_dword v{vP}, v{vFa}, s[{sWS}:{sWS+3}], 0 offen sc1", kv_ready, 4)
    a("s_mov_b64 exec, -1")
    ldblock(); ldblock()
    arrive(4, 20)
    flag(f"{K}_fbb", 32)
    a(f"""s_cmp_eq_u32 s{sWv}, 0
    s_cbranch_scc0 {K}_pl1b_go
    s_mov_b64 exec, 0xff""")
    poll(a, f"{K}_pl1b", f"buffer_load_dword v{vP}, v{vFa}, s[{sWS}:{sWS+3}], 0 offen offset:32 sc1", kv_ready, 2)
    a("""s_mov_b64 exec, -1
    s_waitcnt vmcnt(0)""")
    stamp(a, 7, SV)
    a("s_barrier")
    ldblock(); ldblock()
    a(f"""v_bfe_u32 v{t0}, v0, 2, 3
    v_mul_u32_u24 v{t0}, 288, v{t0}
    v_and_b32 v{t1}, 3, v0
    v_lshlrev_b32 v{t1}, 3, v{t1}
    v_add_u32 v{t1}, {L_WO}, v{t1}
    v_and_b32 v{t2}, 32, v0
    v_add3_u32 v{t0}, v{t0}, v{t1}, v{t2}
    s_lshl_b32 s{sT0}, s{sWv}, 6
    v_add_u32 v{t2}, s{sT0}, v{t0}
    ds_read_b64_tr_b16 {vr(64,2)}, v{t2}
    ds_read_b64_tr_b16 {vr(66,2)}, v{t2} offset:2304
    ds_read_b64_tr_b16 {vr(68,2)}, v{t0} offset:256
    ds_read_b64_tr_b16 {vr(70,2)}, v{t0} offset:{256+2304}
    v_bfe_u32 v{t0}, v0, 2, 2
    v_mul_u32_u24 v{t0}, 288, v{t0}
    v_lshrrev_b32 v{t2}, 4, v0
    v_lshlrev_b32 v{t2}, 5, v{t2}
    v_add3_u32 v{t0}, v{t0}, v{t1}, v{t2}
    s_lshl_b32 s{sT0}, s{sWv}, 7
    v_add_u32 v{t0}, s{sT0}, v{t0}
    ds_read_b64_tr_b16 {vr(72,2)}, v{t0} offset:{16*288-128}
    s_lshl_b32 s{sT0}, s{sPC}, 6
    s_add_u32 s{sT0}, s{sT0}, s{sPH}
    s_mul_i32 s{sT0}, s{sT0}, 4608
    s_add_u32 s{sT0}, s{sT0}, {WS_WOM}
    s_lshl_b32 s{sT1}, s{sWv}, 10
    s_add_u32 s{sT1}, s{sT1}, s{sT0}
    s_lshl_b32 s{sT2}, s{sPC}, 4
    s_lshr_b32 s{sT3}, s{sPH}, 2
    s_add_u32 s{sT2}, s{sT2}, s{sT3}
    s_mul_i32 s{sT2}, s{sT2}, 2304
    s_and_b32 s{sT3}, s{sPH}, 3
    s_lshl_b32 s{sT3}, s{sT3}, 2
    s_add_u32 s{sT2}, s{sT2}, s{sT3}
    s_lshl_b32 s{sT3}, s{sWv}, 10
    s_add_u32 s{sT2}, s{sT2}, s{sT3}
    s_add_u32 s{sT2}, s{sT2}, {WS_WOT - 1024}
    s_waitcnt lgkmcnt(0)
    buffer_store_dwordx4 {vr(64,4)}, v{vL16}, s[{sWS}:{sWS+3}], s{sT1} offen sc1
    s_cmp_eq_u32 s{sWv}, 0
    s_cbranch_scc0 {K}_wo_tail
    s_mov_b32 exec_hi, 0
    s_add_u32 s{sT3}, s{sT0}, 4096
    buffer_store_dwordx4 {vr(68,4)}, v{vL16}, s[{sWS}:{sWS+3}], s{sT3} offen sc1
    s_branch {K}_wo_done
    {K}_wo_tail:
    s_cmp_eq_u32 s{sWv}, 3
    s_cselect_b32 exec_lo, 0xffff, -1
    s_cselect_b32 exec_hi, 0, -1
    buffer_store_dword v72, v{vL16}, s[{sWS}:{sWS+3}], s{sT2} offen sc1
    {K}_wo_done:
    s_mov_b64 exec, -1""")
    a(f"""v_mov_b32 v32, {SENT}
    v_mov_b32 v33, {SENT}
    v_mov_b32 v34, {SENT}
    v_mov_b32 v35, {SENT}
    s_lshl_b32 s{sT1}, s{sE}, 1
    s_add_u32 s{sT1}, s{sT1}, s{sTH}
    s_lshl_b32 s{sT1}, s{sT1}, 8
    s_add_u32 s{sT1}, s{sT1}, s{sBH}
    s_mul_i32 s{sT1}, s{sT1}, 1152
    s_add_u32 s{sT1}, s{sT1}, {WS_O}""")
    for x in range(4):
        a(f"""buffer_store_dwordx4 v[32:35], v{vL16}, s[{sWS}:{sWS+3}], s{sT1} offen sc1
        s_mov_b64 exec, 0xff
        buffer_store_dwordx4 v[32:35], v{vL16}, s[{sWS}:{sWS+3}], s{sT1} offen offset:1024 sc1
        s_mov_b64 exec, -1
        s_add_u32 s{sT1}, s{sT1}, {64*1152}""")
    arrive(1)
    a(f"""s_cbranch_scc0 {K}_sg2
    s_mov_b64 exec, 1
    v_mov_b32 v{vP}, 0x100
    buffer_atomic_add v{vP}, v{vPa}, s[{sD}:{sD+3}], 0 offen
    s_mov_b64 exec, -1
    {K}_sg2:""")
    p3_scal(a)
    vOm, vOt, vWm, vWt, vRd = [2, 252], 3, 4, 5, 6
    p3_addr(a, vOm[0], vOm[1], vOt, vWm, vWt, vRd, t0, t1, t2)
    a("s_barrier")
    ldblock(); ldblock()
    stamp(a, 12, SV)
    a(f"""s_cmp_eq_u32 s{sWv}, 0
    s_cbranch_scc0 {K}_gw
    v_lshlrev_b32 v{t0}, 2, v0
    s_mov_b32 exec_hi, 0""")
    def all_init():
        a(f"""v_bfe_u32 v{vP}, v{vP}, 8, 8
        v_cmp_le_u32 vcc, 8, v{vP}
        s_nop 1
        s_cmp_eq_u32 vcc_lo, -1""")
    poll(a, f"{K}_pl2", f"buffer_load_dword v{vP}, v{t0}, s[{sD}:{sD+3}], 0 offen sc1", all_init, 32)
    a(f"""ds_write_b32 v{vSy}, v{vOne} offset:12
    s_mov_b64 exec, -1
    s_branch {K}_ggo
    {K}_gw:""")
    lds_wait(f"{K}_lw2", 3)
    a(f"{K}_ggo:")
    HC = [0, 1, 2, 3, 4]
    HWB, HAC, HOF = 8, 188, 228
    hreg = lambda s, ct: HWB + 4 * (5 * s + ct)
    p3_wo_loads(a, HC, hreg, vWm, vWt)
    a("s_waitcnt vmcnt(45)")
    stamp(a, 8, SV)
    a("s_barrier")
    p3_wo_loads(a, [8], lambda s, ct: HAC + 4 * s, vWm, vWt)
    a(f"""s_mul_i32 s{sT0}, s{sTH}, 27648
    s_add_u32 s{sT0}, s{sT0}, s{sRing}
    s_barrier""")
    for s in range(9):
        for i, ct in enumerate(CL):
            n = 3 * s + i
            if s < 8:
                a(f"""s_add_u32 m0, s{sT0}, {1024*n}
                s_add_u32 s{sT3}, s{sGW[s>>1]}, {2*(s&1)*4608 + 512*ct}
                buffer_load_dwordx4 v{vWm}, s[{sWS}:{sWS+3}], s{sT3} offen sc1 lds""")
            else:
                a(f"""s_add_u32 m0, s{sT0}, {1024*n}
                s_add_u32 s{sT3}, s{sWtb}, {256*ct}
                buffer_load_dwordx4 v{vWt}, s[{sWS}:{sWS+3}], s{sT3} offen sc1 lds""")
    a(f"""s_mul_i32 s{sT0}, s{sP3T}, {32*1152}
    buffer_load_dword v1, v{vL16}, s[{sOut}:{sOut+3}], s{sT0} offen
    s_waitcnt vmcnt(0)""")
    stamp(a, 9, SV)
    vVa3, vSy3 = [4, 253], 5
    for i in range(40): a(f"v_mov_b32 v{HAC+i}, 0")
    a(f"""v_lshrrev_b32 v1, 4, v0
    v_mul_u32_u24 v{vVa3[0]}, 1152, v1
    v_and_b32 v1, 15, v0
    v_lshl_add_u32 v{vVa3[0]}, v1, 3, v{vVa3[0]}
    v_add_u32 v{vVa3[0]}, 1024, v{vVa3[0]}
    v_add_u32 v{vVa3[1]}, s{sLB}, v{vVa3[0]}
    v_add_u32 v{vVa3[0]}, s{sLA}, v{vVa3[0]}
    s_lshl_b32 s{sT0}, s{sWv}, 2
    s_add_u32 s{sT0}, s{sT0}, {L_SYNC + 32}
    v_mov_b32 v{vSy3}, s{sT0}
    s_barrier""")
    stamp(a, 10, SV)
    p3_helper(a, HC, hreg, HAC, HOF, vOm, vOt, vRd, vL16, vVa3, vSy3, int(OPT.get("hslp", 1)))
    stamp(a, 11, SV)
    if OPT["stamp"]: a(f"v_mov_b32 v30, v{SV}\nv_mov_b32 v31, v{SV+1}")
    a(f"s_branch {K}_final")
    a(f"""{K}_ldblk:
    s_add_u32 s{sQ}, s{sQ}, 2
    s_cmp_ge_u32 s{sQ}, 9
    s_cselect_b32 s{sT0}, 0, 7
    s_cselect_b32 s{sT2}, 1, 0
    s_add_u32 s{sT0}, s{sT0}, s{sQ}
    s_and_b32 s{sT0}, s{sT0}, 7
    s_xor_b32 s{sT0}, s{sT0}, s{sE}
    s_lshl_b32 s{sT0}, s{sT0}, 1
    s_add_u32 s{sT0}, s{sT0}, s{sT2}
    s_mul_i32 s{sT1}, s{sT0}, {BLK}
    s_add_u32 s{sT1}, s{sT1}, s{sKVg}
    s_and_b32 s{sT0}, s{sQ}, 7
    s_mul_i32 s{sT0}, s{sT0}, {BLK}
    s_add_u32 s{sT0}, s{sT0}, s{sRing}""")
    for i in range(10):
        if i % 4 == 0:
            a(f"""s_add_u32 m0, s{sT0}, {1024*i}
            s_add_u32 s{sT2}, s{sT1}, {1024*i}""")
        if i == 9: a("s_mov_b64 exec, 0xffff")
        a(f"buffer_load_dwordx4 v{vL16}, s[{sWS}:{sWS+3}], s{sT2} offen offset:{1024*(i%4)} sc1 lds")
    a(f"""s_mov_b64 exec, -1
    s_setpc_b64 s[{sRet}:{sRet+1}]""")

def compute(a, K):
    RX = int(OPT["rx"])
    stamp(a, 0, 30)
    vXr = [2, 3]
    vWc = [4, 5, 9, 1]
    t0, t1, t2, t3, t4, t5 = 14, 15, 16, 17, 18, 19
    WF = 32
    XF = [96, 112]
    ACC = 128
    a(f"""v_mov_b32 v{ACC}, 0
    s_cmp_eq_u32 s{sWv}, 0
    s_cselect_b32 s{sCnt}, 5, 100
    s_cbranch_scc0 {K}_norst
    s_lshl_b32 s{sT0}, s{sPr}, 7
    s_lshl_b32 s{sT1}, s{sE}, 2
    s_add_u32 s{sT0}, s{sT0}, s{sT1}
    s_add_u32 s{sT0}, s{sT0}, {WS_F}
    s_mov_b64 exec, 1
    buffer_store_dword v{ACC}, v{ACC}, s[{sWS}:{sWS+3}], s{sT0} offen sc1
    buffer_store_dword v{ACC}, v{ACC}, s[{sWS}:{sWS+3}], s{sT0} offen offset:32 sc1
    s_mov_b64 exec, -1
    {K}_norst:""")
    a(f"""v_and_b32 v{t0}, 15, v0
    v_lshrrev_b32 v{t1}, 4, v0
    v_bfe_u32 v{t2}, v0, 1, 3
    v_xor_b32 v{t2}, v{t2}, v{t1}
    v_lshlrev_b32 v{t2}, 4, v{t2}
    v_lshlrev_b32 v{t3}, 7, v{t0}
    s_lshl_b32 s{sT0}, s{sTH}, 12
    s_add_u32 s{sT0}, s{sT0}, {L_XR}
    v_add_u32 v{t3}, s{sT0}, v{t3}
    v_add_u32 v{vXr[0]}, v{t3}, v{t2}
    v_xor_b32 v{t2}, 64, v{t2}
    v_add_u32 v{vXr[1]}, v{t3}, v{t2}
    v_bfe_u32 v{t2}, v0, 2, 2
    v_lshl_add_u32 v{t2}, v{t1}, 3, v{t2}
    v_lshlrev_b32 v{t2}, 8, v{t2}
    v_bfe_u32 v{t4}, v0, 2, 3
    v_lshlrev_b32 v{t4}, 5, v{t4}
    v_and_b32 v{t3}, 3, v0
    v_lshlrev_b32 v{t3}, 3, v{t3}
    s_mul_i32 s{sT1}, s{sHH}, 40
    s_mov_b32 s{sT0}, {192 | (112 << 8) | (32 << 16) | (240 << 24)}
    v_lshrrev_b32 v{t5}, v{t3}, s{sT0}
    v_and_b32 v{t5}, 0xff, v{t5}
    v_xor_b32 v{t5}, v{t5}, v{t4}
    v_add_u32 v{vWc[3]}, v{t2}, v{t5}
    v_add_u32 v{t3}, s{sT1}, v{t3}""")
    for ct, off in enumerate((80, 0, 160)):
        a(f"""v_add_u32 v{t5}, {off}, v{t3}
        v_xor_b32 v{t5}, v{t5}, v{t4}
        v_add_u32 v{vWc[ct]}, v{t2}, v{t5}""")
    for i in range(1, 128): a(f"v_mov_b32 v{ACC+i}, 0")
    vKa, vTa, vVa, vIdx = 6, 7, 8, 10
    vKw, vQw, vVw, vM0, vM1, vDs, vDt, vMul, vSq, vMulO = 11, 12, 13, 20, 21, 22, 23, 24, 25, 26
    sBlk, sScr = sXb, sKo
    a(f"""s_mul_i32 s{sRing}, s{sHH}, {RING}
    s_mul_i32 s{sBlk}, s{sTH}, {BLK}
    s_add_u32 s{sBlk}, s{sBlk}, s{sRing}
    s_mul_i32 s{sScr}, s{sWv}, 5120
    s_add_u32 s{sScr}, s{sScr}, {L_SCR}
    v_lshrrev_b32 v{t2}, 2, v{t0}
    v_and_b32 v{t3}, 3, v0
    v_lshl_add_u32 v{t4}, v{t2}, 3, v{t3}
    v_lshrrev_b32 v{t5}, 5, v0
    v_lshlrev_b32 v{t5}, 9, v{t5}
    v_and_b32 v{vQw}, 16, v0
    v_lshrrev_b32 v{vQw}, 1, v{vQw}
    v_add_u32 v{t5}, v{t5}, v{vQw}
    v_lshl_add_u32 v{vKw}, v{t4}, 4, v{t5}
    v_add_u32 v{vKw}, s{sBlk}, v{vKw}
    v_lshl_add_u32 v{vQw}, v{t0}, 4, v{t5}
    v_add_u32 v{vQw}, s{sScr}, v{vQw}
    v_mul_u32_u24 v{vVw}, 304, v{t1}
    v_lshl_add_u32 v{vVw}, v{t0}, 4, v{vVw}
    v_add_u32 v{vVw}, s{sBlk}, v{vVw}""")
    a(f"""v_mul_u32_u24 v{vM0}, 304, v{t2}
    v_lshl_add_u32 v{vM0}, v{t3}, 1, v{vM0}
    s_add_u32 s{sT0}, s{sBlk}, {4608+256}
    v_add_u32 v{vM0}, s{sT0}, v{vM0}
    s_add_u32 s{sT0}, s{sBlk}, 4096
    s_add_u32 s{sT1}, s{sScr}, {4096-1024}
    v_lshlrev_b32 v{t5}, 9, v{t1}
    v_add_u32 v{t5}, s{sT1}, v{t5}
    v_mov_b32 v{vM1}, s{sT0}
    v_cmp_eq_u32 vcc, 1, v{t1}
    v_mov_b32 v{vDs}, 32
    v_mov_b32 v{vDt}, {(2-32) & 0xffffffff}
    v_cndmask_b32 v{t5}, v{t5}, v{vM1}, vcc
    v_lshl_add_u32 v{t5}, v{t4}, 3, v{t5}
    v_cmp_eq_u32 vcc, 0, v{t1}
    v_mov_b32 v{t2}, 256
    v_mov_b32 v{t3}, {1216-8}
    v_cndmask_b32 v{vM0}, v{t5}, v{vM0}, vcc
    v_cndmask_b32 v{vDs}, v{vDs}, 8, vcc
    v_cndmask_b32 v{vDt}, v{vDt}, v{t3}, vcc
    v_cndmask_b32 v{t2}, v{t2}, 16, vcc
    v_add_u32 v{vM1}, v{vM0}, v{t2}
    v_cmp_eq_u32 vcc, 2, v{t1}
    v_mov_b32 v{vMul}, 1.0
    v_mov_b32 v{t2}, {f32(CSCALE)}
    v_cndmask_b32 v{vMul}, v{vMul}, v{t2}, vcc
    s_mul_i32 s{sT0}, s{sHH}, 0x3f800000
    v_mul_f32 v{vMulO}, s{sT0}, v{vMul}
    v_sub_f32 v{vMul}, v{vMul}, v{vMulO}""")
    a(f"""v_and_b32 v{t2}, 16, v0
    v_lshrrev_b32 v{t2}, 2, v{t2}
    v_add_u32 v{t2}, v{t2}, v{t4}
    v_lshlrev_b32 v{vSq}, 3, v{t2}
    s_add_u32 s{sT1}, s{sScr}, 4096
    v_add_u32 v{vSq}, s{sT1}, v{vSq}
    v_and_b32 v{t0}, 31, v0
    v_lshrrev_b32 v{t1}, 5, v0
    v_mul_u32_u24 v{t3}, 304, v{t1}
    v_lshl_add_u32 v{t3}, v{t0}, 4, v{t3}
    v_add_u32 v{t3}, s{sRing}, v{t3}
    v_cmp_gt_u32 vcc, 19, v{t0}
    v_mov_b32 v{vVa}, {LDS_BYTES}
    v_lshl_add_u32 v{vKa}, v0, 4, s{sRing}
    v_cndmask_b32 v{vVa}, v{vVa}, v{t3}, vcc
    v_lshl_add_u32 v{vTa}, v0, 3, s{sRing}
    v_mov_b32 v{vIdx}, 0xdddddddd
    v_lshl_add_u32 v{t5}, v{t1}, 8, v{vSq}
    s_mov_b32 s{sWsrc}, 0
    s_mov_b32 s{sXm0}, 0""")
    vSqh = t5
    p3_scal(a)
    coff = (48, 0, 96, 0)
    def wfrag(k2):
        r = []
        for ct in range(4):
            for hf in range(2):
                r.append(f"ds_read_b64_tr_b16 {vr(WF+16*k2+4*ct+2*hf,2)}, v{vWc[ct]} offset:{L_WR + (32*k2+4*hf)*256}")
        return r
    def xread(buf):
        r = []
        for k2 in range(2):
            for s in range(2):
                r.append(f"ds_read_b128 {vr(XF[buf]+8*k2+4*s,4)}, v{vXr[k2]} offset:{2048*s}")
        return r
    xadv = [f"s_add_u32 s{sXm0}, s{sXm0}, 1", f"s_cmp_eq_u32 s{sXm0}, {RX}", f"s_cselect_b32 s{sXm0}, 0, s{sXm0}",
            f"s_cselect_b32 s{sT1}, s{sWk}, s{sWcnt}",
            f"v_add_u32 v{vXr[0]}, s{sT1}, v{vXr[0]}", f"v_add_u32 v{vXr[1]}, s{sT1}, v{vXr[1]}"]
    wadv = [f"s_add_u32 s{sWsrc}, s{sWsrc}, 1", f"s_cmp_eq_u32 s{sWsrc}, {RW}", f"s_cselect_b32 s{sWsrc}, 0, s{sWsrc}",
            f"s_cselect_b32 s{sT2}, s{sWm0}, s{sGk}",
            ] + [f"v_add_u32 v{c}, s{sT2}, v{c}" for c in vWc]
    a(f"""s_mov_b32 s{sWk}, {(-(RX-1)*8192) & 0xffffffff}
    s_mov_b32 s{sWcnt}, 8192
    s_mov_b32 s{sWm0}, {(-(RW-1)*WSL) & 0xffffffff}
    s_mov_b32 s{sGk}, {WSL}
    s_barrier""")
    stamp(a, 1, 30)
    for m in xread(0) + xadv + wfrag(0) + wfrag(1): a(m)
    QM, QT = 32, 48
    KF, V0, V1, KT = [80, 84], [88, 92], [96, 100], 104
    vGl = 26
    TP = 108
    def epi(tt):
        tp = (64, 80)[tt % 2]
        r = []
        for s in range(2):
            b = ACC + 32 * tt + 16 * s
            k_, q_, m_ = tp + 2 * s, tp + 4 + 2 * s, tp + 12 + s
            r += f"""v_cvt_pk_bf16_f32 v{k_}, v{b}, v{b+1}
            v_cvt_pk_bf16_f32 v{k_+1}, v{b+2}, v{b+3}
            v_mul_f32 v{b+4}, s{sT3}, v{b+4}
            v_mul_f32 v{b+5}, s{sT3}, v{b+5}
            v_mul_f32 v{b+6}, s{sT3}, v{b+6}
            v_mul_f32 v{b+7}, s{sT3}, v{b+7}
            ds_write_b64 v{vKw}, {vr(k_,2)} offset:{tt*1024 + s*64}
            v_cvt_pk_bf16_f32 v{q_}, v{b+4}, v{b+5}
            v_cvt_pk_bf16_f32 v{q_+1}, v{b+6}, v{b+7}
            v_cvt_pk_bf16_f32 v{tp+8+2*s}, v{b+8}, v{b+9}
            v_cvt_pk_bf16_f32 v{tp+9+2*s}, v{b+10}, v{b+11}
            ds_write_b64 v{vQw}, {vr(q_,2)} offset:{tt*1024 + s*256}
            v_mul_f32 v{b+12}, v{vMul}, v{b+12}
            v_mul_f32 v{b+13}, v{vMul}, v{b+13}
            v_fmac_f32 v{b+12}, v{vMulO}, v{b+14}
            v_fmac_f32 v{b+13}, v{vMulO}, v{b+15}
            v_cvt_pk_bf16_f32 v{m_}, v{b+12}, v{b+13}
            ds_write_b16 v{vM0}, v{m_}
            ds_write_b16_d16_hi v{vM1}, v{m_}""".split("\n")
            dl = vDs if s == 0 else vDt
            if (tt, s) != (3, 1):
                r += [f"v_add_u32 v{vM0}, v{dl}, v{vM0}", f"v_add_u32 v{vM1}, v{dl}, v{vM1}"]
        r.append(f"ds_write_b128 v{vVw}, {vr(tp+8,4)} offset:{4608 + tt*1216}")
        return r
    def chunk(last):
        for tt in range(4):
            cur = XF[tt & 1]
            mf = []
            for k2 in range(2):
                for ct in range(4):
                    for s in range(2):
                        d = ACC + 32 * tt + 16 * s + 4 * ct
                        w_, x_ = vr(WF + 16 * k2 + 4 * ct, 4), vr(cur + 8 * k2 + 4 * s, 4)
                        A_, B_ = (x_, w_) if ct == 2 else (w_, x_)
                        mf.append(f"v_mfma_f32_16x16x32_bf16 {vr(d,4)}, {A_}, {B_}, {vr(d,4)}")
            fill = {i: [] for i in range(-1, 16)}
            xr = xread((tt + 1) & 1)
            if tt == 0:
                fill[-1].append("s_waitcnt lgkmcnt(8)")
                for i in range(4): fill[i].append(xr[i])
                for i in range(6): fill[8 + i].append(xadv[i])
                fill[7].append("s_waitcnt lgkmcnt(4)")
                if last:
                    ones = f"""s_mov_b32 s{sT3}, {f32(CSCALE)}
                    v_mov_b32 v92, 0x3f803f80
                    v_mov_b32 v93, 0x3f803f80
                    v_mov_b32 v94, 0x3f803f80
                    v_mov_b32 v95, 0x3f803f80
                    v_mul_u32_u24 v{t0}, 304, v0""".split("\n")
                    for i, m in enumerate(ones): fill[i].append(m)
                    fill[14].append(f"v_add_u32 v{t0}, s{sBlk}, v{t0}")
                    fill[15] += ["s_mov_b64 exec, 0xffff", f"ds_write_b128 v{t0}, v[92:95] offset:{4608+288}", "s_mov_b64 exec, -1"]
            elif last:
                if tt < 3:
                    for i in range(4): fill[i // 2].append(xr[i])
                    if tt == 1:
                        for i in range(6): fill[2 + i // 2].append(xadv[i])
                e = epi(tt - 1)
                st = 5 if tt == 1 else 4
                per = -(-len(e) // (16 - st))
                for i, m in enumerate(e): fill[st + i // per].append(m)
            elif tt == 3:
                for i in range(4): fill[-1 + (i + 1) // 2].append(xr[i])
                w0, w1 = wfrag(0), wfrag(1)
                for ct in range(4):
                    fill[2 * ct + 1] += [w0[2 * ct]]; fill[2 * ct + 2] += [w0[2 * ct + 1]]
                    fill[8 + 2 * ct + 1] += [w1[2 * ct]]; fill[min(15, 8 + 2 * ct + 2)] += [w1[2 * ct + 1]]
                for i in range(6): fill[3 + i].append(xadv[i])
                fill[10].append(f"s_sub_u32 s{sIt}, s{sIt}, 1")
            else:
                for i in range(4): fill[i].append(xr[i])
                for i in range(6): fill[4 + i].append(xadv[i])
                if tt == 1:
                    for i in range(4): fill[10 + i].append(wadv[i])
                if tt == 2:
                    for i in range(4): fill[10 + i].append(wadv[4 + i])
            if tt % 2 == 0: a("s_barrier")
            for m in fill[-1]: a(m)
            for i in range(16):
                if not OPT.get("nomf"): a(mf[i])
                for m in fill[i]: a(m)
            if last:
                if tt == 0: a("s_waitcnt lgkmcnt(1)")
                elif tt < 3: a("s_waitcnt lgkmcnt(9)")
            elif tt == 3:
                a(f"""s_waitcnt lgkmcnt(15)
                s_cmp_eq_u32 s{sIt}, s{sCnt}
                s_cbranch_scc1 {K}_rst
                {K}_rst_ret:
                s_cmp_lg_u32 s{sIt}, 0""")
            else:
                a("s_waitcnt lgkmcnt(0)")
    a(f"""s_mov_b32 s{sIt}, 8
    s_waitcnt lgkmcnt(0)
    {K}_p1:""")
    chunk(False)
    a(f"s_cbranch_scc1 {K}_p1")
    chunk(True)
    stamp(a, 2, 30)
    a("s_nop 1")
    for m in epi(3): a(m)
    S = [128, 144, 160, 176]
    O = [192, 208, 224, 240]
    a(f"""v_lshl_add_u32 v{t0}, v0, 4, s{sScr}
    s_waitcnt lgkmcnt(0)""")
    for x in range(4): a(f"ds_read_b128 {vr(QM+4*x,4)}, v{t0} offset:{1024*x}")
    a(f"""ds_read_b64 {vr(TP,2)}, v{vSqh}
    ds_read_b64 {vr(TP+2,2)}, v{vSq} offset:512""")
    for i in range(12): a(f"v_mov_b32 v{O[0]+i}, 0")
    a("""s_waitcnt lgkmcnt(0)
    s_barrier""")
    stamp(a, 3, 30)
    NB = int(OPT["nb"])
    def ldK(t, buf): return f"ds_read_b128 {vr(KF[buf],4)}, v{vKa} offset:{((t//4)%NB)*BLK + (t%4)*1024}"
    def ldV(t, half, buf): return f"ds_read_b128 {vr((V0,V1)[half][buf],4)}, v{vVa} offset:{((t//4)%NB)*BLK + 4608 + (t%4)*1216 + 608*half}"
    def ldT(b=0): return f"ds_read_b64 {vr(KT,2)}, v{vTa} offset:{(b%NB)*BLK + 4096}"
    def QKM(t, x, s, c="0"): return f"v_mfma_f32_32x32x16_bf16 {vr(s,16)}, {vr(KF[t%2],4)}, {vr(QM+4*x,4)}, {c}"
    def QKT(t, x, s): return f"v_mfma_f32_32x32x8_bf16 {vr(s,16)}, {vr(KT,2)}, {vr(QT+8*x+2*(t%4),2)}, {vr(s,16)}"
    def PV(half, t, x, s): return f"v_smfmac_f32_32x32x32_bf16 {vr(O[x],16)}, {vr((V0,V1)[half][t%2],4)}, {vr(s+8*half,8)}, v{vIdx}"
    a(ldK(0, 0)); a(ldT()); a(ldV(0, 0, 0)); a(ldV(0, 1, 0))
    def qvar(x):
        q, r = QT + 8 * x, TP + (x >> 1)
        if x % 2 == 0:
            a(f"""v_and_b32 v{q}, 0xffff, v{r}
            v_lshlrev_b32 v{q+2}, 16, v{r}
            v_lshlrev_b32 v{vGl+x}, 16, v{r+2}""")
        else:
            a(f"""v_lshrrev_b32 v{q}, 16, v{r}
            v_and_b32 v{q+2}, 0xffff0000, v{r}
            v_and_b32 v{vGl+x}, 0xffff0000, v{r+2}""")
        a(f"""v_mov_b32 v{q+1}, 0
        v_mov_b32 v{q+3}, 0
        v_mov_b32 v{q+4}, 0
        v_mov_b32 v{q+5}, v{q}
        v_mov_b32 v{q+6}, 0
        v_mov_b32 v{q+7}, v{q+2}""")
    qvar(0); qvar(1)
    vOm, vOt, vWm3, vWt, vRd = [2, 106], 3, 5, 9, 4
    HOOKS = [1, 3, 7, 11, 13, 15]
    a(f"""s_mov_b32 s{sIt}, 0
    s_mov_b32 s{sWk}, {NB*BLK}
    s_mov_b32 s{sWcnt}, {(NB*BLK - RING) & 0xffffffff}
    s_waitcnt lgkmcnt(2)""")
    rest = [f"v_mov_b32 v{O[0]+i}, 0" for i in range(12, 64)] + [f"v_mov_b32 v{S[3]+8+i}, 0" for i in range(8)] + [f"v_mov_b32 v{V1[1]+i}, 0" for i in range(4)]
    a(QKM(0, 0, S[0])); qvar(2)
    a(QKT(0, 0, S[0])); qvar(3)
    a(QKM(0, 1, S[1]))
    for m in rest[:8]: a(m)
    a(QKT(0, 1, S[1]))
    for m in rest[8:]: a(m)
    p3_addr(a, vOm[0], vOm[1], vOt, vWm3, vWt, vRd, t3, t1, t2)
    a(f"""s_cmp_ge_u32 s{sPr}, 16
    s_mov_b32 s{sT0}, {f32(-LOG2E)}
    s_cselect_b32 s{sT0}, {f32(LOG2E)}, s{sT0}""")
    for x in range(4): a(f"v_mul_f32 v{vGl+x}, s{sT0}, v{vGl+x}")
    for x in range(4): a(f"v_exp_f32 v{vGl+x}, v{vGl+x}")
    a(f"""s_lshl_b32 s{sT1}, s{sE}, 1
    s_add_u32 s{sT1}, s{sT1}, s{sTH}
    s_lshl_b32 s{sT1}, s{sT1}, 8
    s_add_u32 s{sT1}, s{sT1}, s{sBH}
    s_mul_i32 s{sT1}, s{sT1}, 1152
    s_add_u32 s{sRef}, s{sT1}, {WS_O}""")
    for x in range(4):
        a(f"""v_add_f32 v{vGl+x}, 1.0, v{vGl+x}
        s_xor_b32 s{56+x}, s{sTt}, {x}
        s_mul_i32 s{56+x}, s{56+x}, {64*1152}
        s_add_u32 s{56+x}, s{56+x}, s{sRef}""")
    a(f"""v_lshlrev_b32 v{t0}, 4, v0
    v_lshrrev_b32 v{t1}, 5, v0
    v_mul_u32_u24 v{t1}, {64*1152 - 128}, v{t1}
    v_lshl_add_u32 v{t1}, v0, 2, v{t1}
    s_mov_b32 s{sGk}, {f32(2.0**-40)}
    s_mov_b32 s{sKo}, {f32(2.0**40) if not OPT['force_fb'] else f32(2.0**-39)}
    s_mul_i32 s{sT0}, s{sTH}, 27648
    s_add_u32 s{sT0}, s{sT0}, s{sRing}
    v_add_u32 v24, s{sT0}, v{t0}
    s_lshl_b32 s{sT0}, s{sWv}, 2
    s_add_u32 s{sT0}, s{sT0}, {L_SYNC + 32}
    v_mov_b32 v25, s{sT0}""")
    a("s_waitcnt lgkmcnt(0)")
    if OPT.get("cprio"): a(f"s_setprio {OPT['cprio']}")
    hookblks = []
    a(".p2align 6")
    a(f"{K}_att:")
    pos = (2, 6, 10, 14)
    NIT = 16 // NB
    for u in range(16 * NB):
        t, x = divmod(u, 4)
        tn, xn = divmod(u + 2, 4)
        tp_, xp = divmod(u - 1, 4)
        blk, ub = divmod(u, 16)
        s, sn, sp = S[u % 4], S[(u + 2) % 4], S[(u - 1) % 4]
        ins = {i: [] for i in range(17)}
        ins[pos[0]].append(PV(1, tp_, xp, sp))
        ins[pos[1]].append(QKM(tn, xn, sn))
        ins[pos[2]].append(QKT(tn, xn, sn))
        ins[pos[3]].append(PV(0, t, x, s))
        if x == 0:
            ins[pos[0]].append(ldV(t + 1, 1, (t + 1) % 2))
            ins[pos[1]].append(ldK(t + 1, (t + 1) % 2))
            ins[pos[3]].append(ldV(t + 1, 0, (t + 1) % 2))
        if ub == 13: ins[pos[2]].append(ldT(blk + 1))
        if x == 2: ins[pos[1]].insert(0, "s_waitcnt lgkmcnt(0)")
        if ub == 10 and blk == NB - 1:
            ins[pos[2]].append(f"s_cmp_eq_u32 s{sIt}, {NIT//2 - 1}")
            ins[pos[3]].append(f"s_cselect_b32 s{sT0}, s{sWcnt}, s{sWk}")
        if ub == 11:
            if blk == NB - 1:
                ins[pos[0]].append(f"v_add_u32 v{vKa}, s{sT0}, v{vKa}")
                ins[pos[1]].append(f"v_add_u32 v{vTa}, s{sT0}, v{vTa}")
                ins[pos[2]].append(f"v_add_u32 v{vVa}, s{sT0}, v{vVa}")
            its = [it for it in range(NIT) if it * NB + blk in HOOKS]
            if len(its) == NIT and not OPT["stamp"]:
                ins[pos[3]].append("s_barrier")
            elif its:
                ins[pos[3]] += [f"s_bitcmp1_b32 {sum(1 << i for i in its)}, s{sIt}", f"s_cbranch_scc1 {K}_hook{blk}", f"{K}_hook_ret{blk}:"]
                hookblks.append(blk)
        if u == 16 * NB - 1:
            ins[pos[3]] += [f"s_add_u32 s{sIt}, s{sIt}, 1", f"s_cmp_lt_u32 s{sIt}, {NIT}"]
        for i in range(16):
            for m in ins[i]: a(m)
            a(f"v_exp_f32 v{s+i}, v{s+i}")
    a(f"s_cbranch_scc1 {K}_att")
    a("s_nop 1")
    a(PV(1, 3, 3, S[3]))
    stamp(a, 8, 30)
    CC = [5, 6, 7, 8]
    R8 = [84, 92, 108, 112, 116, 120, 124, 20, 100]
    RL = list(range(32, 84, 4)) + [88, 96] + list(range(128, 176, 4))
    creg = lambda s, ct: R8[s] if ct == 8 else RL[3 * s + ct - 5]
    p3_wo_loads(a, [8], creg, vWm3, vWt, (0, 1, 8))
    a('s_nop 4')
    l_ = [O[x] + 10 for x in range(4)]
    a(f"""v_add_f32 v{t2}, v{l_[0]}, v{l_[1]}
    v_min3_f32 v{t3}, v{l_[0]}, v{l_[1]}, v{l_[2]}
    v_add_f32 v{t2}, v{t2}, v{l_[2]}
    s_waitcnt lgkmcnt(0)
    v_add_f32 v{t2}, v{t2}, v{l_[3]}
    v_min_f32 v{t3}, v{t3}, v{l_[3]}
    v_cmp_ge_f32 s[{sEx}:{sEx+1}], s{sKo}, v{t2}
    v_cmp_le_f32 vcc, s{sGk}, v{t3}
    s_nop 1
    s_and_b32 vcc_lo, vcc_lo, s{sEx}
    s_cmp_eq_u32 vcc_lo, -1
    s_cbranch_scc0 {K}_fbchk
    {K}_fbdone:""")
    cp = [f"ds_read_b128 {vr(creg(s_,ct),4)}, v24 offset:{1024*(3*s_+i)}" for s_ in range(9) for i, ct in enumerate(CL)]
    tq = [t2, t3, t4, t5]
    for x in range(4): a(f"v_mov_b32 v{tq[x]}, v{O[x]+10}")
    a(cp.pop(0))
    for x in range(4): a(f"v_permlane32_swap_b32 v{O[x]+10}, v{tq[x]}")
    a(cp.pop(0))
    for x in range(4): a(f"v_mul_f32 v{tq[x]}, v{O[x]+10}, v{vGl+x}")
    for x in range(4): a(f"v_rcp_f32 v{tq[x]}, v{tq[x]}")
    a(cp.pop(0))
    for x in range(4):
        o = O[x]
        for i in range(10):
            a(f"v_mul_f32 v{o+i}, v{tq[x]}, v{o+i}")
            if i % 3 == 2: a(cp.pop(0))
        for i in range(4): a(f"v_cvt_pk_bf16_f32 v{o+12+i}, v{o+2*i}, v{o+2*i+1}")
        a(f"""v_cvt_pk_bf16_f32 v{o+11}, v{o+8}, v{o+9}
        buffer_store_dwordx4 {vr(o+12,4)}, v{t0}, s[{sWS}:{sWS+3}], s{56+x} offen sc1""")
        if x % 2 == 1:
            a(f"""s_nop 0
            v_permlane32_swap_b32 v{O[x-1]+11}, v{o+11}
            buffer_store_dword v{O[x-1]+11}, v{t1}, s[{sWS}:{sWS+3}], s{56+x-1} offen offset:1024 sc1""")
    for m in cp: a(m)
    stamp(a, 9, 30)
    a(f"""v_mov_b32 v6, {L_SYNC + 20}
    v_mov_b32 v7, 1
    s_setprio {OPT.get("p3prio", 2)}
    s_mov_b64 exec, 1
    s_waitcnt lgkmcnt(0)
    ds_add_u32 v6, v7
    s_mov_b64 exec, -1""")
    for i in range(32): a(f"v_mov_b32 v{224+i}, 0")
    a(f"""v_lshrrev_b32 v1, 4, v0
    v_mul_u32_u24 v6, 1152, v1
    v_and_b32 v1, 15, v0
    v_lshl_add_u32 v6, v1, 3, v6
    v_add_u32 v6, 1024, v6
    v_add_u32 v7, s{sLB}, v6
    v_add_u32 v6, s{sLA}, v6""")
    stamp(a, 10, 30)
    if OPT.get("drain"):
        a("s_waitcnt vmcnt(0)")
        stamp(a, 12, 30)
    p3_comp(a, CC, creg, 224, 176, vOm, vOt, vRd, 25, [6, 7])
    stamp(a, 11, 30)
    a(f"{K}_final:")
    final_reduce(a, K, 30)
    a(f"{K}_end:")
    a("s_endpgm")
    a(f"""{K}_rst:
    s_lshl_b32 s{sT0}, s{sPr}, 2
    v_mov_b32 v28, s{sT0}
    v_mov_b32 v29, 1
    s_mov_b64 exec, 1
    s_waitcnt vmcnt(0)
    buffer_atomic_add v29, v28, s[{sD}:{sD+3}], 0 offen
    s_mov_b64 exec, -1
    s_branch {K}_rst_ret""")
    for blk in hookblks:
        a(f"{K}_hook{blk}:")
        if OPT["stamp"]:
            for hb, i_ in ((1, 4), (3, 6)):
                if hb % NB == blk:
                    a(f"s_cmp_eq_u32 s{sIt}, {hb // NB}\ns_cbranch_scc0 {K}_hk{hb}")
                    stamp(a, i_, 30); a("s_barrier"); stamp(a, i_ + 1, 30); a(f"s_branch {K}_hook_ret{blk}")
                    a(f"{K}_hk{hb}:")
        if 13 % NB == blk:
            a(f"""s_cmp_eq_u32 s{sIt}, {13 // NB}
            s_cbranch_scc0 {K}_hkb{blk}""")
            p3_wo_loads(a, [8], creg, vWm3, vWt, range(2, 8))
            a(f"{K}_hkb{blk}:")
        a(f"""s_barrier
        s_branch {K}_hook_ret{blk}""")
    FQ = S[3]
    a(f"{K}_fbchk:")
    for x in range(4):
        a(f"""v_cmp_le_f32 vcc, s{sGk}, v{O[x]+10}
        v_cmp_ge_f32 s[{sEx}:{sEx+1}], s{sKo}, v{O[x]+10}
        s_nop 1
        s_and_b32 vcc_lo, vcc_lo, s{sEx}
        s_cmp_eq_u32 vcc_lo, -1
        s_cbranch_scc0 {K}_fb{x}
        {K}_fbret{x}:""")
    a(f"s_branch {K}_fbdone")
    for x in range(4):
        a(f"{K}_fb{x}:")
        for i in range(4): a(f"v_mov_b32 v{FQ+i}, v{QM+4*x+i}")
        for i in range(8): a(f"v_mov_b32 v{FQ+4+i}, v{QT+8*x+i}")
        a(f"s_call_b64 s[{sRet}:{sRet+1}], {K}_slow")
        for i in range(16): a(f"v_mov_b32 v{O[x]+i}, v{S[2]+i}")
        a(f"s_branch {K}_fbret{x}")
    a(f"{K}_slow:")
    vb, vc, vm = 11, 12, 13
    sA, sB = sWsrc, sWm0
    a(f"""v_lshlrev_b32 v{vb}, 3, v0
    v_and_b32 v{vm}, 31, v0
    v_lshrrev_b32 v{vc}, 5, v0
    v_mul_u32_u24 v{vc}, 304, v{vc}
    v_lshl_add_u32 v{vc}, v{vm}, 4, v{vc}
    v_cmp_lt_u32 vcc, 18, v{vm}
    v_mov_b32 v{vm}, 0x40000000
    s_nop 1
    v_cndmask_b32 v{vc}, v{vc}, v{vm}, vcc""")
    def slow_qk(t, c):
        a(f"""v_mfma_f32_32x32x16_bf16 {vr(S[0],16)}, {vr(KF[0],4)}, {vr(FQ,4)}, {c}
        v_mfma_f32_32x32x8_bf16 {vr(S[0],16)}, {vr(KT,2)}, {vr(FQ+4+2*t,2)}, {vr(S[0],16)}
        s_nop 15""")
    def slow_next(lbl):
        a(f"""s_add_u32 s{sA}, s{sA}, {BLK}
        s_sub_u32 s{sIt}, s{sIt}, 1
        s_cmp_lg_u32 s{sIt}, 0
        s_cbranch_scc1 {lbl}""")
    a(f"""v_mov_b32 v{vm}, 0xff800000
    s_mov_b32 s{sA}, s{sKVg}
    s_mov_b32 s{sIt}, 16
    {K}_sl1:
    s_add_u32 s{sB}, s{sA}, 4096
    buffer_load_dwordx2 {vr(KT,2)}, v{vb}, s[{sWS}:{sWS+3}], s{sB} offen sc1""")
    for t in range(4):
        a(f"""buffer_load_dwordx4 {vr(KF[0],4)}, v{t0}, s[{sWS}:{sWS+3}], s{sA} offen offset:{1024*t} sc1
        s_waitcnt vmcnt(0)""")
        slow_qk(t, "0")
        for i in range(8): a(f"v_max3_f32 v{vm}, v{S[0]+2*i}, v{S[0]+2*i+1}, v{vm}")
    slow_next(f"{K}_sl1")
    a(f"""v_mov_b32 v{S[0]}, v{vm}
    s_nop 1
    v_permlane32_swap_b32 v{vm}, v{S[0]}
    s_nop 1
    v_max_f32 v{vm}, v{vm}, v{S[0]}""")
    for i in range(16):
        a(f"v_sub_f32 v{S[1]+i}, 0, v{vm}")
        a(f"v_mov_b32 v{S[2]+i}, 0")
    a(f"""s_mov_b32 s{sA}, s{sKVg}
    s_mov_b32 s{sIt}, 16
    {K}_sl2:
    s_add_u32 s{sB}, s{sA}, 4096
    buffer_load_dwordx2 {vr(KT,2)}, v{vb}, s[{sWS}:{sWS+3}], s{sB} offen sc1""")
    for t in range(4):
        a(f"""buffer_load_dwordx4 {vr(KF[0],4)}, v{t0}, s[{sWS}:{sWS+3}], s{sA} offen offset:{1024*t} sc1
        s_add_u32 s{sB}, s{sA}, {4608+1216*t}
        buffer_load_dwordx4 {vr(V0[0],4)}, v{vc}, s[{sWS}:{sWS+3}], s{sB} offen sc1
        buffer_load_dwordx4 {vr(V1[0],4)}, v{vc}, s[{sWS}:{sWS+3}], s{sB} offen offset:608 sc1
        s_waitcnt vmcnt(0)""")
        slow_qk(t, vr(S[1], 16))
        for i in range(16): a(f"v_exp_f32 v{S[0]+i}, v{S[0]+i}")
        a(f"""s_nop 3
        v_smfmac_f32_32x32x32_bf16 {vr(S[2],16)}, {vr(V0[0],4)}, {vr(S[0],8)}, v{vIdx}
        v_smfmac_f32_32x32x32_bf16 {vr(S[2],16)}, {vr(V1[0],4)}, {vr(S[0]+8,8)}, v{vIdx}
        s_nop 7""")
    slow_next(f"{K}_sl2")
    a(f"""s_nop 15
    s_setpc_b64 s[{sRet}:{sRet+1}]""")

def main(out):
    ka = f"{NAME}_kernel"
    a = Asm(); kernel(a)
    t = f"""; gated mix of two MHA blocks: one fused kernel (QKV projection, attention, output projection); generated by gen/gen14.py
; @launch grid=(256,1,1) block=(512,1,1) lds={LDS_BYTES}
.amdgcn_target "amdgcn-amd-amdhsa--gfx950"
.text
.globl {ka}
.p2align 8
.type {ka},@function
{ka}:
{a.text()}.section .rodata,"a"
.p2align 6
.amdhsa_kernel {ka}
  .amdhsa_next_free_vgpr 256
  .amdhsa_next_free_sgpr 102
  .amdhsa_accum_offset 256
  .amdhsa_group_segment_fixed_size 0
  .amdhsa_kernarg_size 80
  .amdhsa_user_sgpr_count 2
  .amdhsa_user_sgpr_kernarg_segment_ptr 1
  .amdhsa_system_sgpr_workgroup_id_x 1
.end_amdhsa_kernel
"""
    open(out, "w").write(t)

if __name__ == "__main__":
    for kv in sys.argv[2:]:
        k, v = kv.split("=")
        OPT[k] = {"True": True, "False": False}.get(v, v)
    main(sys.argv[1])
```

```python
import sys, struct

NAME = "gated_mix__mha_block__mha_block__prompt"
def f32(x): return "0x%08x" % struct.unpack("<I", struct.pack("<f", x))[0]
CSCALE = (18 ** -0.5) * 1.4426950408889634
LOG2E = 1.4426950408889634

BLK = 9472
KVH = 16 * BLK
RING = 8 * BLK
WS_O = 0x0A00000
WS_WOM = 0x0F00000
WS_WOT = 0x1080000
WS_F = 0x10C0000
WS_STAMP = 0x1100000
WS_SIZE = 0x1200000
SENT = 0xffffffff
L_WR = 0
WSL = 16384
RW = 3
L_XR = 98304
L_SCR = 49152
L_GT = 155648
L_SYNC = L_GT + 3 * 2048 + 1536
L_WO = 151552
LDS_BYTES = 163840
RS = 592
L_OA = 6 * BLK
L_OB = 94720
PLANE = 32 * RS

class Asm:
    def __init__(self): self.l = []
    def __call__(self, s):
        for x in s.strip("\n").split("\n"):
            x = x.strip()
            if not x: continue
            self.l.append(x if x.endswith(":") else "    " + x)
    def text(self): return "\n".join(self.l) + "\n"

def vr(a, n): return f"v[{a}:{a+n-1}]"
OPT = dict(force_fb=False, stamp=False, rx="6", txor="0", nb="4", cprio="3")

def srd(a, d, lo, hi, size):
    a(f"""s_mov_b32 s{d}, s{lo}
    s_and_b32 s{d+1}, s{hi}, 0xffff
    s_mov_b32 s{d+2}, {size}
    s_mov_b32 s{d+3}, 0x00020000""")

sX, sW, sWo, sG, sD, sWS, sOut = 8, 12, 16, 20, 24, 28, 84
sWv, sPr, sE, sHd, sRot = 32, 33, 34, 35, 36
sT0, sT1, sT2, sT3 = 37, 38, 39, 40
sRef, sCnt, sKo, sXb, sRing, sIt, sKVg, sSpin, sW8 = 41, 42, 43, 44, 45, 46, 47, 48, 49
sRet, sEx = 50, 52
sWsrc, sWm0, sWk, sWcnt, sXm0, sGk, sTt, sBH = 54, 55, 62, 63, 76, 77, 78, 79
sP3T, sP3C, sOb, sWmb, sWtb, sHH, sTH, sOtb = 88, 89, 90, 91, 92, 93, 94, 95
SV = 254
sLA, sLB = 74, 75
sGO = [66, 67, 68, 69]
sGW = [70, 71, 72, 73]

def stamp(a, idx, vreg):
    if not OPT["stamp"]: return
    a(f"""s_memrealtime s[80:81]
    s_memtime s[82:83]
    s_waitcnt lgkmcnt(0)
    v_writelane_b32 v{vreg}, s80, {idx}
    v_writelane_b32 v{vreg+1}, s82, {idx}""")
def sstamp(a, k):
    if not OPT["stamp"]: return
    a(f"""s_memrealtime s[80:81]
    s_waitcnt lgkmcnt(0)
    s_mov_b32 s{96+k}, s80""")
def stamp_out(a, vreg, vt=1, mask=None):
    if not OPT["stamp"]: return
    a(f"""s_lshl_b32 s80, s2, 3
    s_add_u32 s80, s80, s{sW8}
    s_lshl_b32 s80, s80, 8
    s_add_u32 s80, s80, {WS_STAMP}
    v_lshlrev_b32 v{vt}, 3, v0
    s_mov_b32 exec_hi, 0""")
    if mask is not None: a(f"s_mov_b32 exec_lo, {mask}")
    a(f"""buffer_store_dwordx2 v[{vreg}:{vreg+1}], v{vt}, s[{sWS}:{sWS+3}], s80 offen
    s_mov_b64 exec, -1""")

def p3_addr(a, vOm, vOm2, vOt, vWm, vWt, vRd, t0, t1, t2):
    a(f"""v_and_b32 v{t0}, 15, v0
    v_lshrrev_b32 v{t1}, 5, v0
    v_bfe_u32 v{t2}, v0, 4, 1
    v_mul_u32_u24 v{vOm}, 1152, v{t1}
    v_lshl_add_u32 v{vOm}, v{t2}, 9, v{vOm}
    v_lshl_add_u32 v{vOm}, v{t0}, 4, v{vOm}
    v_add_u32 v{vOm2}, s{sLB}, v{vOm}
    v_add_u32 v{vOm}, s{sLA}, v{vOm}
    s_sub_u32 s{sT3}, s{sLB}, s{sLA}
    v_mul_lo_u32 v{vOt}, s{sT3}, v{t1}
    v_add_u32 v{vOt}, s{sLA}, v{vOt}
    v_mul_u32_u24 v{vWm}, 4608, v{t2}
    v_add_u32 v{vOt}, v{vOt}, v{vWm}
    v_lshl_add_u32 v{vOt}, v{t0}, 2, v{vOt}
    v_mul_u32_u24 v{vWm}, 4608, v{t1}
    v_lshl_add_u32 v{vWm}, v{t2}, 8, v{vWm}
    v_lshl_add_u32 v{vWm}, v{t0}, 4, v{vWm}
    v_lshrrev_b32 v{t1}, 4, v0
    v_add_u32 v{t2}, s{sP3C}, v{t1}
    v_and_b32 v{t2}, 3, v{t2}
    v_mul_u32_u24 v{vWt}, {4*2304}, v{t2}
    v_lshl_add_u32 v{vWt}, v{t0}, 4, v{vWt}
    v_mul_u32_u24 v{vRd}, {RS}, v{t0}
    v_lshl_add_u32 v{vRd}, v{t1}, 4, v{vRd}
    s_cmp_eq_u32 s{sWv}, 3
    s_cselect_b32 s{sT3}, 4, s{sWv}
    s_mul_i32 s{sT3}, s{sT3}, {PLANE}
    v_add_u32 v{vRd}, s{sT3}, v{vRd}""")
def p3_scal(a):
    a(f"""s_and_b32 s{sP3T}, s2, 7
    s_lshr_b32 s{sT0}, s2, 5
    s_lshl_b32 s{sT0}, s{sT0}, 3
    s_add_u32 s{sP3T}, s{sP3T}, s{sT0}
    s_lshr_b32 s{sP3C}, s2, 3
    s_and_b32 s{sP3C}, s{sP3C}, 3
    s_lshl_b32 s{sOb}, s{sP3T}, 6
    s_lshl_b32 s{sT3}, s{sWv}, 2
    s_add_u32 s{sOb}, s{sOb}, s{sT3}
    s_mul_i32 s{sOb}, s{sOb}, 1152
    s_add_u32 s{sOb}, s{sOb}, {WS_O}
    s_lshl_b32 s{sWmb}, s{sP3C}, 6
    s_add_u32 s{sWmb}, s{sWmb}, s{sT3}
    s_mul_i32 s{sWmb}, s{sWmb}, 4608
    s_add_u32 s{sWmb}, s{sWmb}, {WS_WOM}
    s_lshl_b32 s{sWtb}, s{sP3C}, 4
    s_add_u32 s{sWtb}, s{sWtb}, s{sWv}
    s_mul_i32 s{sWtb}, s{sWtb}, 2304
    s_add_u32 s{sWtb}, s{sWtb}, {WS_WOT}
    s_mul_i32 s{sLA}, s{sHH}, {RING}
    s_mul_i32 s{sT3}, s{sTH}, 9216
    s_add_u32 s{sLA}, s{sLA}, s{sT3}
    s_add_u32 s{sLA}, s{sLA}, {L_OA}
    s_mul_i32 s{sLB}, s{sWv}, 9216
    s_add_u32 s{sLB}, s{sLB}, {L_OB}""")
    for g in range(4):
        a(f"""s_add_u32 s{sT3}, s{sP3C}, {g}
        s_and_b32 s{sT3}, s{sT3}, 3
        s_mul_i32 s{sGO[g]}, s{sT3}, {16*1152}
        s_add_u32 s{sGO[g]}, s{sGO[g]}, s{sOb}
        s_mul_i32 s{sGW[g]}, s{sT3}, {16*4608}
        s_add_u32 s{sGW[g]}, s{sGW[g]}, s{sWmb}""")
def p3_wo_loads(a, cts, reg, vWm, vWt, steps=range(9)):
    for s in range(8):
        if s not in steps: continue
        a(f"s_add_u32 s{sT3}, s{sGW[s>>1]}, {2*(s&1)*4608 + 512*cts[0]}")
        for i, ct in enumerate(cts):
            a(f"buffer_load_dwordx4 {vr(reg(s,ct),4)}, v{vWm}, s[{sWS}:{sWS+3}], s{sT3} offen offset:{512*i} sc1")
    for ct in (cts if 8 in steps else []):
        a(f"buffer_load_dwordx4 {vr(reg(8,ct),4)}, v{vWt}, s[{sWS}:{sWS+3}], s{sWtb} offen offset:{256*ct} sc1")
def p3_oread(a, g, OF, vOm):
    for k in range(2):
        for th in range(2):
            a(f"ds_read_b128 {vr(OF+8*k+4*th,4)}, v{vOm[g>>1]} offset:{4608*(g&1) + 2304*k + 256*th}")
def p3_mf(a, cts, reg, AC, st, o):
    for i, ct in enumerate(cts):
        for th in range(2):
            d = AC + 8 * i + 4 * th
            a(f"v_mfma_f32_16x16x32_bf16 {vr(d,4)}, {vr(reg(st,ct),4)}, {vr(o+4*th,4)}, {vr(d,4)}")
def p3_tail(a, cts, reg, AC, OF, vOt, vRd):
    for th in range(2):
        for i in range(4):
            a(f"ds_read_b32 v{OF+4*th+i}, v{vOt} offset:{1152*i + 1024 + 64*th}")
    a("s_waitcnt lgkmcnt(0)")
    p3_mf(a, cts, reg, AC, 8, OF)
    sstamp(a, 5)
    a("s_nop 7")
    for i, ct in enumerate(cts):
        for th in range(2):
            a(f"ds_write_b128 v{vRd}, {vr(AC+8*i+4*th,4)} offset:{16*th*RS + 64*ct}")
def p3_helper(a, cts, reg, AC, OF, vOm, vOt, vRd, vL16, vVa, vSy, slp):
    L = "h3"
    sDone = sCnt
    def dma(g):
        lb = (sLA, sLB)[g >> 1]
        a(f"""s_add_u32 m0, s{lb}, {4608*(g&1)}
        s_add_u32 s{sT3}, s{sGO[g]}, 4096""")
        for i in range(4):
            a(f"buffer_load_dwordx4 v{vL16}, s[{sWS}:{sWS+3}], s{sGO[g]} offen offset:{1024*i} sc1 lds")
        a(f"""s_add_u32 m0, s{lb}, {4608*(g&1) + 4096}
        s_mov_b32 exec_hi, 0
        buffer_load_dwordx4 v{vL16}, s[{sWS}:{sWS+3}], s{sT3} offen sc1 lds
        s_mov_b64 exec, -1""")
    sFly, sLand, sTry, sBlk_ = sWk, sWcnt, sKo, sXb
    vH, vHa, vE4 = OF + 18, OF + 21, OF + 22
    a(f"""v_and_b32 v1, 3, v0
    v_mul_u32_u24 v{vHa}, 1152, v1
    v_bfe_u32 v1, v0, 2, 2
    v_add_u32 v1, s{sP3C}, v1
    v_and_b32 v1, 3, v1
    v_mul_u32_u24 v1, {16*1152}, v1
    v_add_u32 v{vHa}, v{vHa}, v1
    v_mov_b32 v{vE4}, {L_SYNC + 20}
    s_mov_b32 s{sSpin}, 60000
    s_mov_b32 s{sIt}, {SENT}
    s_mov_b32 s{sDone}, 0
    s_mov_b32 s{sFly}, 0
    s_mov_b32 s{sLand}, 0
    s_mov_b32 s{sBlk_}, 12
    {L}_round:
    s_mov_b64 exec, 0xffff
    buffer_load_dword v{vH}, v{vHa}, s[{sWS}:{sWS+3}], s{sOb} offen offset:1024 sc1
    s_mov_b64 exec, -1
    ds_read_b32 v1, v{vE4}
    s_cmp_eq_u32 s{sFly}, 0
    s_cbranch_scc1 {L}_nofly
    s_or_b32 s{sLand}, s{sLand}, s{sFly}
    s_waitcnt vmcnt(1)
    v_mov_b32 v{vH+1}, s{sLand}
    ds_write_b32 v{vSy}, v{vH+1}
    {L}_nofly:
    s_mov_b32 s{sTry}, s{sFly}
    s_waitcnt lgkmcnt(0)
    v_readfirstlane_b32 s{sT0}, v1
    s_cmp_ge_u32 s{sT0}, 4
    s_cselect_b32 s{sBlk_}, 0, s{sBlk_}
    s_or_b32 s{sT1}, s{sDone}, s{sTry}
    s_cmp_eq_u32 s{sT1}, 15
    s_mov_b32 s{sFly}, 0
    s_cbranch_scc1 {L}_work
    s_or_b32 s{sT1}, s{sT1}, s{sBlk_}
    s_waitcnt vmcnt(0)
    v_cmp_ne_u32 vcc, s{sIt}, v{vH}""")
    for g in range(4):
        a(f"""s_bitcmp1_b32 s{sT1}, {g}
        s_cbranch_scc1 {L}_l{g}
        s_bfe_u32 s{sT0}, vcc_lo, {(4 << 16) | (4 * g)}
        s_cmp_eq_u32 s{sT0}, 15
        s_cbranch_scc0 {L}_l{g}
        s_bitset1_b32 s{sFly}, {g}""")
        dma(g)
        a(f"{L}_l{g}:")
    a(f"{L}_work:")
    for g in range(4):
        a(f"""s_bitcmp1_b32 s{sTry}, {g}
        s_cbranch_scc0 {L}_n{g}""")
        p3_check(a, g, OF, vOm, vVa)
        a(f"""s_cbranch_vccnz {L}_n{g}
        s_bitset1_b32 s{sDone}, {g}""")
        stamp(a, 27 + g, SV)
        p3_mf(a, cts, reg, AC, 2 * g, OF)
        p3_mf(a, cts, reg, AC, 2 * g + 1, OF + 8)
        a(f"{L}_n{g}:")
    a(f"""s_cmp_eq_u32 s{sDone}, 15
    s_cbranch_scc1 {L}_done
    s_sub_u32 s{sSpin}, s{sSpin}, 1
    s_cmp_lt_i32 s{sSpin}, 0
    s_cbranch_scc1 {L}_done
    s_or_b32 s{sT0}, s{sFly}, s{sTry}
    s_cbranch_scc1 {L}_round
    s_sleep {slp}
    s_branch {L}_round
    {L}_done:
    s_waitcnt vmcnt(0)""")
    p3_tail(a, cts, reg, AC, OF, vOt, vRd)
def p3_check(a, g, OF, vOm, vVa):
    p3_oread(a, g, OF, vOm)
    a(f"""ds_read_b64 {vr(OF+16,2)}, v{vVa[g>>1]} offset:{4608*(g&1)}
    s_waitcnt lgkmcnt(3)
    v_max3_u32 v1, v{OF}, v{OF+1}, v{OF+2}
    v_max3_u32 v1, v{OF+3}, v{OF+4}, v1
    v_max3_u32 v1, v{OF+5}, v{OF+6}, v1
    s_waitcnt lgkmcnt(0)
    v_max3_u32 v1, v{OF+7}, v{OF+8}, v1
    v_max3_u32 v1, v{OF+9}, v{OF+10}, v1
    v_max3_u32 v1, v{OF+11}, v{OF+12}, v1
    v_max3_u32 v1, v{OF+13}, v{OF+14}, v1
    v_max3_u32 v1, v{OF+15}, v{OF+16}, v1
    v_max_u32 v1, v{OF+17}, v1
    v_cmp_eq_u32 vcc, s{sIt}, v1
    s_nop 1""")
def p3_comp(a, cts, reg, AC, OF, vOm, vOt, vRd, vSy, vVa):
    L = "c3"
    sDone = sCnt
    a(f"""s_mov_b32 s{sSpin}, 400000
    s_mov_b32 s{sIt}, {SENT}
    s_mov_b32 s{sDone}, 0
    s_waitcnt vmcnt(6)
    {L}_round:
    ds_read_b32 v1, v{vSy}
    s_waitcnt lgkmcnt(0)
    v_readfirstlane_b32 s{sT0}, v1
    s_andn2_b32 s{sT0}, s{sT0}, s{sDone}""")
    for g in range(4):
        a(f"""s_bitcmp1_b32 s{sT0}, {g}
        s_cbranch_scc0 {L}_n{g}""")
        p3_check(a, g, OF, vOm, vVa)
        a(f"""s_cbranch_vccnz {L}_n{g}
        s_bitset1_b32 s{sDone}, {g}""")
        p3_mf(a, cts, reg, AC, 2 * g, OF)
        p3_mf(a, cts, reg, AC, 2 * g + 1, OF + 8)
        a(f"{L}_n{g}:")
    a(f"""s_cmp_eq_u32 s{sDone}, 15
    s_cbranch_scc1 {L}_done
    s_sub_u32 s{sSpin}, s{sSpin}, 1
    s_cmp_lt_i32 s{sSpin}, 0
    s_cbranch_scc0 {L}_round
    {L}_done:""")
    p3_tail(a, cts, reg, AC, OF, vOt, vRd)

def kernel(a):
    K = "k"
    if OPT["stamp"]: a("s_memrealtime s[96:97]")
    a(f"""
    s_cmp_ge_u32 s2, 256
    s_cbranch_scc1 {K}_end
    s_load_dwordx4 s[56:59], s[0:1], 0
    s_load_dwordx2 s[60:61], s[0:1], 16
    s_load_dwordx4 s[64:67], s[0:1], 32
    s_load_dwordx4 s[68:71], s[0:1], 48
    s_load_dwordx4 s[72:75], s[0:1], 64
    v_lshrrev_b32 v1, 6, v0
    v_and_b32 v0, 63, v0
    s_lshr_b32 s{sT0}, s2, 3
    v_readfirstlane_b32 s{sW8}, v1
    s_and_b32 s{sT1}, s{sT0}, 3
    s_lshr_b32 s{sT2}, s{sT0}, 2
    s_and_b32 s{sE}, s2, 1
    s_lshl_b32 s{sE}, s{sE}, 2
    s_add_u32 s{sE}, s{sE}, s{sT1}
    s_and_b32 s{sPr}, s2, 6
    s_lshl_b32 s{sPr}, s{sPr}, 2
    s_add_u32 s{sPr}, s{sPr}, s{sT2}
    s_lshl_b32 s{sRot}, s{sT1}, 1
    s_add_u32 s{sRot}, s{sRot}, s{sT2}
    s_sub_u32 s{sT1}, s{sRot}, 9
    s_cmp_ge_u32 s{sRot}, 9
    s_cselect_b32 s{sRot}, s{sT1}, s{sRot}
    s_and_b32 s{sWv}, s{sW8}, 3
    s_lshr_b32 s{sHH}, s{sWv}, 1
    s_and_b32 s{sTH}, s{sWv}, 1
    s_lshl_b32 s{sBH}, s{sPr}, 1
    s_add_u32 s{sBH}, s{sBH}, s{sHH}
    s_mul_i32 s{sKVg}, s{sBH}, {KVH}
    s_waitcnt lgkmcnt(0)
    s_cmp_ge_u32 s{sPr}, 16
    s_cselect_b32 s58, s64, s58
    s_cselect_b32 s59, s65, s59
    s_cselect_b32 s60, s66, s60
    s_cselect_b32 s61, s67, s61""")
    srd(a, sW, 58, 59, 576 * 3456)
    srd(a, sX, 56, 57, 2048 * 1152)
    srd(a, sG, 68, 69, 1152)
    srd(a, sWS, 74, 75, WS_SIZE)
    srd(a, sOut, 70, 71, 2048 * 1152)
    srd(a, sD, 72, 73, 256)
    if OPT["txor"] == "1":
        a(f"s_and_b32 s{sTt}, s2, 2")
    else:
        a(f"s_mov_b32 s{sTt}, 0")
    a(f"""s_cmp_ge_u32 s{sW8}, 4
    s_cbranch_scc0 {K}_compute""")
    helper(a, K)
    a(f"{K}_compute:")
    compute(a, K)

def final_reduce(a, K, SVr):
    a(f"""s_lshl_b32 s{sT3}, s{sW8}, 6
    v_add_u32 v1, s{sT3}, v0
    s_mul_i32 s{sT0}, s{sP3T}, {32*1152}
    s_mul_i32 s{sT1}, s{sP3C}, 288
    s_add_u32 s{sT0}, s{sT0}, s{sT1}""")
    for r in range(2):
        a(f"""v_add_u32 v2, {512*r}, v1
        v_mul_u32_u24 v3, 3641, v2
        v_lshrrev_b32 v3, 16, v3
        v_mul_u32_u24 v4, 18, v3
        v_sub_u32 v4, v2, v4
        v_mul_u32_u24 v{6+r}, {RS}, v3
        v_lshl_add_u32 v{6+r}, v4, 5, v{6+r}
        v_add_u32 v{10+r}, {4*PLANE}, v{6+r}
        v_mul_u32_u24 v{8+r}, 1152, v3
        v_lshl_add_u32 v{8+r}, v4, 4, v{8+r}""")
    a("""s_waitcnt lgkmcnt(0)
    s_barrier""")
    for r in range(2):
        if r == 1:
            if OPT["stamp"]: a("s_waitcnt vmcnt(0)")
            stamp(a, 15, SVr)
            if OPT["stamp"]:
                for k in range(6): a(f"v_writelane_b32 v{SVr}, s{96+k}, {20+k}")
                a(f"s_sub_u32 s80, 60000, s{sSpin}\nv_writelane_b32 v{SVr}, s80, 26")
            stamp_out(a, SVr)
            if OPT.get("amp"):
                i_, j_ = OPT["amp"].split(",")
                a(f"""s_cmp_ge_u32 s{sW8}, 4
                s_cbranch_scc1 k_ampx
                v_readlane_b32 s82, v{SVr}, {i_}
                v_readlane_b32 s83, v{SVr}, {j_}
                s_memrealtime s[80:81]
                s_waitcnt lgkmcnt(0)
                s_sub_u32 s82, s83, s82
                s_min_u32 s82, s82, 20000
                s_mov_b32 s83, s80
                k_amp:
                s_memrealtime s[80:81]
                s_waitcnt lgkmcnt(0)
                s_sub_u32 s80, s80, s83
                s_cmp_lt_u32 s80, s82
                s_cbranch_scc1 k_amp
                k_ampx:""")
            a(f"""s_cmp_eq_u32 s{sW8}, 0
            s_cbranch_scc0 {K}_end""")
        b = 32 + 32 * r
        for w in range(4):
            for hf in range(2):
                if w < 3: a(f"ds_read_b128 {vr(b+8*w+4*hf,4)}, v{6+r} offset:{w*PLANE + 16*hf}")
                else: a(f"ds_read_b128 {vr(b+8*w+4*hf,4)}, v{10+r} offset:{16*hf}")
        a("s_waitcnt lgkmcnt(4)")
        for i in range(8): a(f"v_add_f32 v{b+i}, v{b+i}, v{b+8+i}")
        a("s_waitcnt lgkmcnt(0)")
        for i in range(8): a(f"v_add_f32 v{b+16+i}, v{b+16+i}, v{b+24+i}")
        for i in range(8): a(f"v_add_f32 v{b+i}, v{b+i}, v{b+16+i}")
        for i in range(4): a(f"v_cvt_pk_bf16_f32 v{b+8+i}, v{b+2*i}, v{b+2*i+1}")
        a(f"buffer_store_dwordx4 {vr(b+8,4)}, v{8+r}, s[{sOut}:{sOut+3}], s{sT0} offen {OPT.get('osc','')}")

def poll(a, lbl, ld, cond, slp):
    a(f"""s_mov_b32 s{sSpin}, 40000
    {lbl}:
    {ld}
    s_waitcnt vmcnt(0)""")
    cond()
    a(f"""s_cbranch_scc1 {lbl}_go
    s_sub_u32 s{sSpin}, s{sSpin}, 1
    s_cmp_eq_u32 s{sSpin}, 0
    s_cbranch_scc1 {lbl}_go
    s_sleep {slp}
    s_branch {lbl}
    {lbl}_go:""")

CL = [5, 6, 7]
def wo_lds_base(w): return (w >> 1) * RING + (w & 1) * 27648

def helper(a, K):
    RX = int(OPT["rx"])
    stamp(a, 0, SV)
    a("s_setprio 2")
    vXs, vWs = [2, 3], [4, 5]
    vL16, vGr, vGw = 7, 8, 9
    t0, t1, t2, t3 = 10, 11, 12, 13
    vGv = 14
    WM = [sum(1 << L for L in range(64) if ((L & 15) ^ (((L >> 4) | (hi << 2)) << 1)) != 15) for hi in range(2)]
    sM0, sM1 = sEx, 64
    a(f"""v_lshrrev_b32 v{t0}, 4, v0
    v_lshlrev_b32 v{t1}, 1, v{t0}
    v_and_b32 v{t2}, 15, v0
    v_xor_b32 v{t1}, v{t1}, v{t2}
    v_mul_u32_u24 v{t0}, 3456, v{t0}""")
    for hi in range(2):
        if hi: a(f"v_xor_b32 v{t1}, 8, v{t1}")
        a(f"""v_mul_u32_u24 v{t2}, 52, v{t1}
        v_lshrrev_b32 v{t2}, 8, v{t2}
        v_mul_u32_u24 v{t2}, {1152-80}, v{t2}
        v_lshl_add_u32 v{t2}, v{t1}, 4, v{t2}
        v_add_u32 v{vWs[hi]}, v{t0}, v{t2}""")
    a(f"""v_lshlrev_b32 v{vL16}, 4, v0
    s_mul_i32 s{sT0}, s{sWv}, {16*3456}
    s_and_b32 s{sT1}, s{sPr}, 15
    s_mul_i32 s{sT1}, s{sT1}, 72
    s_add_u32 s{sWsrc}, s{sT0}, s{sT1}
    s_mul_i32 s{sWk}, s{sRot}, {64*3456}
    s_add_u32 s{sWcnt}, s{sWsrc}, s{sWk}
    s_lshl_b32 s{sWm0}, s{sWv}, 12
    s_lshl_b32 s{sT2}, s{sWv}, 11
    s_add_u32 s{sT2}, s{sT2}, {L_GT}
    s_mov_b32 s{sM0}, {WM[0] & 0xffffffff}
    s_mov_b32 s{sM0+1}, {WM[0] >> 32}
    s_mov_b32 s{sM1}, {WM[1] & 0xffffffff}
    s_mov_b32 s{sM1+1}, {WM[1] >> 32}""")
    def wdma2(hi):
        m = (sM0, sM1)[hi]
        a(f"""s_add_u32 m0, s{sWm0}, {L_WR + hi*2048}
        s_add_u32 s{sT0}, s{sWcnt}, {hi*8*3456}
        s_add_u32 s{sT1}, s{sWcnt}, {hi*8*3456 + 4*3456 - 1024}
        s_mov_b64 exec, s[{m}:{m+1}]
        buffer_load_dwordx4 v{vWs[hi]}, s[{sW}:{sW+3}], s{sT0} offen lds
        buffer_load_dwordx4 v{vWs[hi]}, s[{sW}:{sW+3}], s{sT1} offen offset:1024 lds
        s_mov_b64 exec, -1""")
    def wnext():
        a(f"""s_add_u32 s{sWk}, s{sWk}, {64*3456}
        s_cmp_ge_u32 s{sWk}, {576*3456}
        s_cselect_b32 s{sWk}, 0, s{sWk}
        s_add_u32 s{sWcnt}, s{sWsrc}, s{sWk}
        s_add_u32 s{sWm0}, s{sWm0}, {WSL}
        s_sub_u32 s{sT0}, s{sWm0}, {RW*WSL}
        s_cmp_ge_u32 s{sWm0}, {RW*WSL}
        s_cselect_b32 s{sWm0}, s{sT0}, s{sWm0}""")
    order = []
    a(f"""s_mov_b32 m0, s{sT2}
    s_nop 0
    buffer_load_dwordx4 v{vL16}, s[{sG}:{sG+3}], 0 offen lds
    s_mov_b64 exec, 0xff
    buffer_load_dwordx4 v{vL16}, s[{sG}:{sG+3}], 0 offen offset:1024 lds
    s_mov_b64 exec, -1""")
    order += ["G"] * 2
    wdma2(0); wdma2(1)
    order += ["W0"] * 4
    wnext()
    a(f"""v_lshrrev_b32 v{t0}, 3, v0
    v_mul_u32_u24 v{t0}, 1152, v{t0}
    v_and_b32 v{t1}, 7, v0
    v_lshrrev_b32 v{t2}, 4, v0
    v_xor_b32 v{t1}, v{t1}, v{t2}
    v_lshlrev_b32 v{t1}, 4, v{t1}
    v_xor_b32 v{t2}, 64, v{t1}
    v_add_u32 v{vXs[0]}, v{t0}, v{t1}
    v_add_u32 v{vXs[1]}, v{t0}, v{t2}
    v_add_u32 v{vXs[1]}, {8*1152-1024}, v{vXs[1]}
    s_lshl_b32 s{sXb}, s{sE}, 4
    s_lshl_b32 s{sT0}, s{sHH}, 3
    s_add_u32 s{sXb}, s{sXb}, s{sT0}
    s_add_u32 s{sXb}, s{sXb}, s{sTH}
    s_mul_i32 s{sXb}, s{sXb}, {16*1152}
    s_lshl_b32 s{sKo}, s{sRot}, 7
    s_lshl_b32 s{sRing}, s{sWv}, 11
    s_add_u32 s{sRing}, s{sRing}, {L_XR}
    s_add_u32 s{sRef}, s{sXb}, s{sKo}
    s_mov_b32 s{sXm0}, s{sRing}""")
    sTo = [56, 57, 58, 59]
    for tt in range(4):
        a(f"""s_xor_b32 s{sTo[tt]}, s{sTt}, {tt}
        s_mul_i32 s{sTo[tt]}, s{sTo[tt]}, {32*1152}""")
    xstate = [0]
    def xnext():
        a(f"""s_add_u32 s{sKo}, s{sKo}, 128
        s_cmp_ge_u32 s{sKo}, 1152
        s_cselect_b32 s{sKo}, 0, s{sKo}
        s_add_u32 s{sRef}, s{sXb}, s{sKo}""")
    def xdma(j):
        tt = j & 3
        if tt == 0 and j: xnext()
        a(f"""s_mov_b32 m0, s{sXm0}
        s_add_u32 s{sT0}, s{sRef}, s{sTo[tt]}
        buffer_load_dwordx4 v{vXs[0]}, s[{sX}:{sX+3}], s{sT0} offen lds
        buffer_load_dwordx4 v{vXs[1]}, s[{sX}:{sX+3}], s{sT0} offen offset:1024 lds
        s_add_u32 s{sXm0}, s{sXm0}, 8192
        s_cmp_ge_u32 s{sXm0}, {L_XR + RX*8192}
        s_cselect_b32 s{sXm0}, s{sRing}, s{sXm0}""")
    xdma(0); xdma(1)
    order += ["X0"] * 2 + ["X1"] * 2
    stamp(a, 16, SV)
    srd(a, sWo, 60, 61, 576 * 1152)
    a(f"""s_lshl_b32 s{sT0}, s{sWv}, 5
    s_add_u32 s{sT0}, s{sT0}, s{sT2}
    v_lshl_add_u32 v{vGr}, v0, 1, s{sT0}
    v_and_b32 v{t1}, 3, v0
    v_lshlrev_b32 v{t1}, 1, v{t1}
    v_and_b32 v{t2}, 8, v0
    v_or_b32 v{t1}, v{t1}, v{t2}
    v_xor_b32 v{t1}, 15, v{t1}
    v_lshlrev_b32 v{t1}, 4, v{t1}
    v_lshl_add_u32 v{t1}, v0, 8, v{t1}
    s_lshl_b32 s{sGk}, s{sRot}, 7
    v_mov_b32 v{t0}, {L_SYNC}
    v_mov_b32 v20, 0
    v_mov_b32 v21, 0
    v_mov_b32 v22, 0
    v_mov_b32 v23, 0
    ds_write_b128 v{t0}, v[20:23]
    ds_write_b128 v{t0}, v[20:23] offset:16
    ds_write_b128 v{t0}, v[20:23] offset:32""")
    def gate(slotreg):
        a(f"""v_add_u32 v{t0}, s{sGk}, v{vGr}
        s_mov_b64 exec, 0xffff
        ds_read_u16 v{vGv}, v{t0}
        v_add_u32 v{t0}, s{slotreg}, v{t1}
        s_add_u32 s{sGk}, s{sGk}, 128
        s_cmp_ge_u32 s{sGk}, 1152
        s_cselect_b32 s{sGk}, 0, s{sGk}
        s_waitcnt lgkmcnt(0)
        ds_write2_b32 v{t0}, v{vGv}, v{vGv} offset0:0 offset1:1
        s_mov_b64 exec, -1""")
    a(f"""s_sub_u32 s{sT3}, s{sWm0}, {WSL}
    s_waitcnt vmcnt(8)""")
    stamp(a, 17, SV)
    gate(sT3); gate(sWm0)
    a("""s_waitcnt vmcnt(2) lgkmcnt(0)
    s_barrier""")
    stamp(a, 1, SV)
    xdma(2)
    wdma2(0); wdma2(1)
    wnext()
    order += ["X2"] * 2 + ["W1"] * 4
    for j in range(3, RX - 1):
        xdma(j); order += [f"X{j}"] * 2
    stamp(a, 18, SV)
    a(f"""s_mov_b32 s{sIt}, 0
    {K}_hl:""")
    for tt in (0, 2):
        a(f"""s_waitcnt vmcnt(@W{tt}@) lgkmcnt(0)
        s_barrier""")
        if not OPT.get("noh"):
            wdma2(tt >> 1)
            xdma(tt + RX - 1); xdma(tt + RX)
            if tt == 0: gate(sWm0)
    wnext()
    a(f"""s_add_u32 s{sIt}, s{sIt}, 1
    s_cmp_lt_u32 s{sIt}, 7
    s_cbranch_scc1 {K}_hl""")
    need = {0: 99, 2: 99}
    for j in range(0, 36, 2):
        req = [f"X{min(j+2,35)}"]
        if j % 4 == 2 and j // 4 + 1 <= 8: req.append(f"W{j//4+1}")
        last = max(i for i, o in enumerate(order) if o in req)
        n_ = len(order) - 1 - last
        if j < 28:
            need[j % 4] = min(need[j % 4], n_)
            order += [f"W{j//4+2}"] * 2 + [f"X{j+RX-1}"] * 2 + [f"X{j+RX}"] * 2
        else:
            a(f"""s_waitcnt vmcnt({n_})
            s_barrier""")
            for jj in (j + RX - 1, j + RX):
                if jj <= 35:
                    xdma(jj); order += [f"X{jj}"] * 2
    for i in (0, 2): a.l = [x.replace(f"@W{i}@", str(need[i])) for x in a.l]
    stamp(a, 2, SV)
    sPH, sPC = sWsrc, sWm0
    vWos = 6
    a(f"""s_lshl_b32 s{sPH}, s{sPr}, 1
    s_and_b32 s{sT0}, s{sE}, 1
    s_add_u32 s{sPH}, s{sPH}, s{sT0}
    s_lshr_b32 s{sPC}, s{sE}, 1
    v_mul_u32_u24 v{t0}, 57, v0
    v_lshrrev_b32 v{t0}, 10, v{t0}
    v_mul_u32_u24 v{t1}, 18, v{t0}
    v_sub_u32 v{t1}, v0, v{t1}
    v_lshlrev_b32 v{t1}, 4, v{t1}
    s_lshl_b32 s{sT0}, s{sT0}, 1
    s_mul_i32 s{sT1}, s{sWv}, 3
    s_add_u32 s{sT0}, s{sT0}, s{sT1}
    v_add_u32 v{t0}, s{sT0}, v{t0}
    v_mul_u32_u24 v{vWos}, 1152, v{t0}
    v_add_u32 v{vWos}, v{vWos}, v{t1}
    v_cmp_le_u32 vcc, 6, v{t0}
    v_add_u32 v{t2}, {12*1152}, v{vWos}
    v_subrev_u32 v{t3}, {6*1152}, v{vWos}
    v_cndmask_b32 v{t2}, v{t2}, v{t3}, vcc
    s_and_b32 s{sT0}, s{sPH}, 31
    s_mul_i32 s{sT0}, s{sT0}, {18*1152}
    s_mul_i32 s{sT1}, s{sPC}, 288
    s_add_u32 s{sT0}, s{sT0}, s{sT1}
    s_mul_i32 s{sT1}, s{sWv}, 864
    s_add_u32 m0, s{sT1}, {L_WO}
    s_mov_b32 exec_hi, 0x003fffff
    buffer_load_dwordx4 v{vWos}, s[{sWo}:{sWo+3}], s{sT0} offen lds
    s_add_u32 m0, s{sT1}, {L_WO + 4*864}
    s_nop 0
    buffer_load_dwordx4 v{t2}, s[{sWo}:{sWo+3}], s{sT0} offen lds
    s_mov_b64 exec, -1""")
    sQ = sGk
    vP, vPa, vSy, vOne, vFa = 20, 17, 18, 19, 16
    a(f"""s_mul_i32 s{sRing}, s{sHH}, {RING}
    s_mul_i32 s{sT2}, s{sTH}, 5120
    s_add_u32 s{sT0}, s{sRing}, s{sT2}
    v_add_u32 v{t0}, s{sT0}, v{vL16}
    s_mul_i32 s{sT1}, s{sE}, {2*BLK}
    s_add_u32 s{sT1}, s{sT1}, s{sKVg}
    s_add_u32 s{sT1}, s{sT1}, s{sT2}
    s_mov_b32 s{sQ}, s{sTH}
    s_lshl_b32 s{sT0}, s{sPr}, 2
    v_mov_b32 v{vPa}, s{sT0}
    s_lshl_b32 s{sT0}, s{sPr}, 7
    s_add_u32 s{sT0}, s{sT0}, {WS_F}
    v_lshl_add_u32 v{vFa}, v0, 2, s{sT0}
    v_mov_b32 v{vSy}, {L_SYNC}
    v_mov_b32 v{vOne}, 1
    s_cmp_eq_u32 s{sTH}, 1
    s_cselect_b32 s{sM0}, 0xffff, -1
    s_cselect_b32 s{sM0+1}, 0, -1
    s_mov_b64 exec, 1
    buffer_load_dword v{vP+1}, v{vPa}, s[{sD}:{sD+3}], 0 offen sc1
    s_mov_b64 exec, -1
    s_barrier""")
    stamp(a, 3, SV)
    for i in range(10): a(f"ds_read_b128 {vr(32+4*i,4)}, v{t0} offset:{(i//5)*BLK + 1024*(i%5)}")
    a(f"s_mov_b32 s{sXb}, s{sT1}")
    def publish(ph):
        for i in range(5 * ph, 5 * ph + 5):
            if i % 5 == 4: a(f"""s_add_u32 s{sXb}, s{sXb}, 4096
            s_mov_b64 exec, s[{sM0}:{sM0+1}]""")
            if ph == 0: a(f"s_waitcnt lgkmcnt({9-i})")
            a(f"buffer_store_dwordx4 {vr(32+4*i,4)}, v{vL16}, s[{sWS}:{sWS+3}], s{sXb} offen offset:{1024*((i%5)%4)} sc1")
            if i % 5 == 4: a(f"""s_mov_b64 exec, -1
            s_add_u32 s{sXb}, s{sXb}, {BLK-4096}""")
    publish(0)
    def arrive(word, vm=0):
        a(f"""s_mov_b64 exec, 1
        s_waitcnt vmcnt({vm})
        ds_add_rtn_u32 v{vP}, v{vSy}, v{vOne} offset:{4*word}
        s_waitcnt lgkmcnt(0)
        v_readfirstlane_b32 s{sT1}, v{vP}
        s_mov_b64 exec, -1
        s_cmp_eq_u32 s{sT1}, 3""")
    def lds_wait(lbl, word):
        a(f"""s_mov_b32 s{sSpin}, 400000
        {lbl}:
        ds_read_b32 v{vP}, v{vSy} offset:{4*word}
        s_waitcnt lgkmcnt(0)
        v_readfirstlane_b32 s{sT1}, v{vP}
        s_cmp_lg_u32 s{sT1}, 0
        s_cbranch_scc1 {lbl}_go
        s_sub_u32 s{sSpin}, s{sSpin}, 1
        s_cmp_eq_u32 s{sSpin}, 0
        s_cbranch_scc1 {lbl}_go
        s_sleep 1
        s_branch {lbl}
        {lbl}_go:""")
    def flag(lbl, off):
        a(f"""s_cbranch_scc0 {lbl}
        s_mov_b64 exec, 1
        s_lshl_b32 s{sT0}, s{sE}, 2
        buffer_store_dword v{vOne}, v{vFa}, s[{sWS}:{sWS+3}], s{sT0} offen offset:{off} sc1
        s_mov_b64 exec, -1
        {lbl}:""")
    arrive(0)
    flag(f"{K}_fa", 0)
    stamp(a, 4, SV)
    def rst_ok(r):
        a(f"""v_readfirstlane_b32 s{sT0}, v{r}
        s_and_b32 s{sT0}, s{sT0}, 0xff
        s_cmp_ge_u32 s{sT0}, 8""")
    def kv_ready():
        a(f"""v_cmp_eq_u32 vcc, 1, v{vP}
        s_nop 1
        s_cmp_eq_u32 vcc_lo, 0xff""")
    a(f"""s_cmp_eq_u32 s{sT1}, 0
    s_cbranch_scc0 {K}_kw
    s_mov_b64 exec, 1""")
    rst_ok(vP + 1)
    a(f"s_cbranch_scc1 {K}_pl0_go")
    poll(a, f"{K}_pl0", f"buffer_load_dword v{vP}, v{vPa}, s[{sD}:{sD+3}], 0 offen sc1", lambda: rst_ok(vP), 8)
    a("s_mov_b64 exec, 0xff")
    a(f"""s_xor_b32 s{sT0}, s{sE}, 1
    s_lshl_b32 s{sT2}, 1, s{sT0}
    s_xor_b32 s{sT0}, s{sE}, 2
    s_bitset1_b32 s{sT2}, s{sT0}""")
    def kv2_ready():
        a(f"""v_cmp_eq_u32 vcc, 1, v{vP}
        s_nop 1
        s_and_b32 s{sT0}, vcc_lo, s{sT2}
        s_cmp_eq_u32 s{sT0}, s{sT2}""")
    poll(a, f"{K}_pl1", f"buffer_load_dword v{vP}, v{vFa}, s[{sWS}:{sWS+3}], 0 offen sc1", kv2_ready, 1)
    a(f"""ds_write_b32 v{vSy}, v{vOne} offset:8
    s_mov_b64 exec, -1
    s_branch {K}_kgo
    {K}_kw:""")
    lds_wait(f"{K}_lw1", 2)
    a(f"{K}_kgo:")
    stamp(a, 5, SV)
    def ldblock():
        a(f"s_call_b64 s[{sRet}:{sRet+1}], {K}_ldblk")
    ldblock()
    publish(1)
    a("s_waitcnt vmcnt(5)")
    stamp(a, 6, SV)
    a("s_barrier")
    a("s_mov_b64 exec, 0xff")
    poll(a, f"{K}_pl1a", f"buffer_load_dword v{vP}, v{vFa}, s[{sWS}:{sWS+3}], 0 offen sc1", kv_ready, 4)
    a("s_mov_b64 exec, -1")
    ldblock(); ldblock()
    arrive(4, 20)
    flag(f"{K}_fbb", 32)
    a(f"""s_cmp_eq_u32 s{sWv}, 0
    s_cbranch_scc0 {K}_pl1b_go
    s_mov_b64 exec, 0xff""")
    poll(a, f"{K}_pl1b", f"buffer_load_dword v{vP}, v{vFa}, s[{sWS}:{sWS+3}], 0 offen offset:32 sc1", kv_ready, 2)
    a("""s_mov_b64 exec, -1
    s_waitcnt vmcnt(0)""")
    stamp(a, 7, SV)
    a("s_barrier")
    ldblock(); ldblock()
    a(f"""v_bfe_u32 v{t0}, v0, 2, 3
    v_mul_u32_u24 v{t0}, 288, v{t0}
    v_and_b32 v{t1}, 3, v0
    v_lshlrev_b32 v{t1}, 3, v{t1}
    v_add_u32 v{t1}, {L_WO}, v{t1}
    v_and_b32 v{t2}, 32, v0
    v_add3_u32 v{t0}, v{t0}, v{t1}, v{t2}
    s_lshl_b32 s{sT0}, s{sWv}, 6
    v_add_u32 v{t2}, s{sT0}, v{t0}
    ds_read_b64_tr_b16 {vr(64,2)}, v{t2}
    ds_read_b64_tr_b16 {vr(66,2)}, v{t2} offset:2304
    ds_read_b64_tr_b16 {vr(68,2)}, v{t0} offset:256
    ds_read_b64_tr_b16 {vr(70,2)}, v{t0} offset:{256+2304}
    v_bfe_u32 v{t0}, v0, 2, 2
    v_mul_u32_u24 v{t0}, 288, v{t0}
    v_lshrrev_b32 v{t2}, 4, v0
    v_lshlrev_b32 v{t2}, 5, v{t2}
    v_add3_u32 v{t0}, v{t0}, v{t1}, v{t2}
    s_lshl_b32 s{sT0}, s{sWv}, 7
    v_add_u32 v{t0}, s{sT0}, v{t0}
    ds_read_b64_tr_b16 {vr(72,2)}, v{t0} offset:{16*288-128}
    s_lshl_b32 s{sT0}, s{sPC}, 6
    s_add_u32 s{sT0}, s{sT0}, s{sPH}
    s_mul_i32 s{sT0}, s{sT0}, 4608
    s_add_u32 s{sT0}, s{sT0}, {WS_WOM}
    s_lshl_b32 s{sT1}, s{sWv}, 10
    s_add_u32 s{sT1}, s{sT1}, s{sT0}
    s_lshl_b32 s{sT2}, s{sPC}, 4
    s_lshr_b32 s{sT3}, s{sPH}, 2
    s_add_u32 s{sT2}, s{sT2}, s{sT3}
    s_mul_i32 s{sT2}, s{sT2}, 2304
    s_and_b32 s{sT3}, s{sPH}, 3
    s_lshl_b32 s{sT3}, s{sT3}, 2
    s_add_u32 s{sT2}, s{sT2}, s{sT3}
    s_lshl_b32 s{sT3}, s{sWv}, 10
    s_add_u32 s{sT2}, s{sT2}, s{sT3}
    s_add_u32 s{sT2}, s{sT2}, {WS_WOT - 1024}
    s_waitcnt lgkmcnt(0)
    buffer_store_dwordx4 {vr(64,4)}, v{vL16}, s[{sWS}:{sWS+3}], s{sT1} offen sc1
    s_cmp_eq_u32 s{sWv}, 0
    s_cbranch_scc0 {K}_wo_tail
    s_mov_b32 exec_hi, 0
    s_add_u32 s{sT3}, s{sT0}, 4096
    buffer_store_dwordx4 {vr(68,4)}, v{vL16}, s[{sWS}:{sWS+3}], s{sT3} offen sc1
    s_branch {K}_wo_done
    {K}_wo_tail:
    s_cmp_eq_u32 s{sWv}, 3
    s_cselect_b32 exec_lo, 0xffff, -1
    s_cselect_b32 exec_hi, 0, -1
    buffer_store_dword v72, v{vL16}, s[{sWS}:{sWS+3}], s{sT2} offen sc1
    {K}_wo_done:
    s_mov_b64 exec, -1""")
    a(f"""v_mov_b32 v32, {SENT}
    v_mov_b32 v33, {SENT}
    v_mov_b32 v34, {SENT}
    v_mov_b32 v35, {SENT}
    s_lshl_b32 s{sT1}, s{sE}, 1
    s_add_u32 s{sT1}, s{sT1}, s{sTH}
    s_lshl_b32 s{sT1}, s{sT1}, 8
    s_add_u32 s{sT1}, s{sT1}, s{sBH}
    s_mul_i32 s{sT1}, s{sT1}, 1152
    s_add_u32 s{sT1}, s{sT1}, {WS_O}""")
    for x in range(4):
        a(f"""buffer_store_dwordx4 v[32:35], v{vL16}, s[{sWS}:{sWS+3}], s{sT1} offen sc1
        s_mov_b64 exec, 0xff
        buffer_store_dwordx4 v[32:35], v{vL16}, s[{sWS}:{sWS+3}], s{sT1} offen offset:1024 sc1
        s_mov_b64 exec, -1
        s_add_u32 s{sT1}, s{sT1}, {64*1152}""")
    arrive(1)
    a(f"""s_cbranch_scc0 {K}_sg2
    s_mov_b64 exec, 1
    v_mov_b32 v{vP}, 0x100
    buffer_atomic_add v{vP}, v{vPa}, s[{sD}:{sD+3}], 0 offen
    s_mov_b64 exec, -1
    {K}_sg2:""")
    p3_scal(a)
    vOm, vOt, vWm, vWt, vRd = [2, 252], 3, 4, 5, 6
    p3_addr(a, vOm[0], vOm[1], vOt, vWm, vWt, vRd, t0, t1, t2)
    a("s_barrier")
    ldblock(); ldblock()
    stamp(a, 12, SV)
    a(f"""s_cmp_eq_u32 s{sWv}, 0
    s_cbranch_scc0 {K}_gw
    v_lshlrev_b32 v{t0}, 2, v0
    s_mov_b32 exec_hi, 0""")
    def all_init():
        a(f"""v_bfe_u32 v{vP}, v{vP}, 8, 8
        v_cmp_le_u32 vcc, 8, v{vP}
        s_nop 1
        s_cmp_eq_u32 vcc_lo, -1""")
    poll(a, f"{K}_pl2", f"buffer_load_dword v{vP}, v{t0}, s[{sD}:{sD+3}], 0 offen sc1", all_init, 32)
    a(f"""ds_write_b32 v{vSy}, v{vOne} offset:12
    s_mov_b64 exec, -1
    s_branch {K}_ggo
    {K}_gw:""")
    lds_wait(f"{K}_lw2", 3)
    a(f"{K}_ggo:")
    HC = [0, 1, 2, 3, 4]
    HWB, HAC, HOF = 8, 188, 228
    hreg = lambda s, ct: HWB + 4 * (5 * s + ct)
    p3_wo_loads(a, HC, hreg, vWm, vWt)
    a("s_waitcnt vmcnt(45)")
    stamp(a, 8, SV)
    a("s_barrier")
    p3_wo_loads(a, [8], lambda s, ct: HAC + 4 * s, vWm, vWt)
    a(f"""s_mul_i32 s{sT0}, s{sTH}, 27648
    s_add_u32 s{sT0}, s{sT0}, s{sRing}
    s_barrier""")
    for s in range(9):
        for i, ct in enumerate(CL):
            n = 3 * s + i
            if s < 8:
                a(f"""s_add_u32 m0, s{sT0}, {1024*n}
                s_add_u32 s{sT3}, s{sGW[s>>1]}, {2*(s&1)*4608 + 512*ct}
                buffer_load_dwordx4 v{vWm}, s[{sWS}:{sWS+3}], s{sT3} offen sc1 lds""")
            else:
                a(f"""s_add_u32 m0, s{sT0}, {1024*n}
                s_add_u32 s{sT3}, s{sWtb}, {256*ct}
                buffer_load_dwordx4 v{vWt}, s[{sWS}:{sWS+3}], s{sT3} offen sc1 lds""")
    a(f"""s_mul_i32 s{sT0}, s{sP3T}, {32*1152}
    buffer_load_dword v1, v{vL16}, s[{sOut}:{sOut+3}], s{sT0} offen
    s_waitcnt vmcnt(0)""")
    stamp(a, 9, SV)
    vVa3, vSy3 = [4, 253], 5
    for i in range(40): a(f"v_mov_b32 v{HAC+i}, 0")
    a(f"""v_lshrrev_b32 v1, 4, v0
    v_mul_u32_u24 v{vVa3[0]}, 1152, v1
    v_and_b32 v1, 15, v0
    v_lshl_add_u32 v{vVa3[0]}, v1, 3, v{vVa3[0]}
    v_add_u32 v{vVa3[0]}, 1024, v{vVa3[0]}
    v_add_u32 v{vVa3[1]}, s{sLB}, v{vVa3[0]}
    v_add_u32 v{vVa3[0]}, s{sLA}, v{vVa3[0]}
    s_lshl_b32 s{sT0}, s{sWv}, 2
    s_add_u32 s{sT0}, s{sT0}, {L_SYNC + 32}
    v_mov_b32 v{vSy3}, s{sT0}
    s_barrier""")
    stamp(a, 10, SV)
    p3_helper(a, HC, hreg, HAC, HOF, vOm, vOt, vRd, vL16, vVa3, vSy3, int(OPT.get("hslp", 1)))
    stamp(a, 11, SV)
    if OPT["stamp"]: a(f"v_mov_b32 v30, v{SV}\nv_mov_b32 v31, v{SV+1}")
    a(f"s_branch {K}_final")
    a(f"""{K}_ldblk:
    s_add_u32 s{sQ}, s{sQ}, 2
    s_cmp_ge_u32 s{sQ}, 9
    s_cselect_b32 s{sT0}, 0, 7
    s_cselect_b32 s{sT2}, 1, 0
    s_add_u32 s{sT0}, s{sT0}, s{sQ}
    s_and_b32 s{sT0}, s{sT0}, 7
    s_xor_b32 s{sT0}, s{sT0}, s{sE}
    s_lshl_b32 s{sT0}, s{sT0}, 1
    s_add_u32 s{sT0}, s{sT0}, s{sT2}
    s_mul_i32 s{sT1}, s{sT0}, {BLK}
    s_add_u32 s{sT1}, s{sT1}, s{sKVg}
    s_and_b32 s{sT0}, s{sQ}, 7
    s_mul_i32 s{sT0}, s{sT0}, {BLK}
    s_add_u32 s{sT0}, s{sT0}, s{sRing}""")
    for i in range(10):
        if i % 4 == 0:
            a(f"""s_add_u32 m0, s{sT0}, {1024*i}
            s_add_u32 s{sT2}, s{sT1}, {1024*i}""")
        if i == 9: a("s_mov_b64 exec, 0xffff")
        a(f"buffer_load_dwordx4 v{vL16}, s[{sWS}:{sWS+3}], s{sT2} offen offset:{1024*(i%4)} sc1 lds")
    a(f"""s_mov_b64 exec, -1
    s_setpc_b64 s[{sRet}:{sRet+1}]""")

def compute(a, K):
    RX = int(OPT["rx"])
    stamp(a, 0, 30)
    vXr = [2, 3]
    vWc = [4, 5, 9, 1]
    t0, t1, t2, t3, t4, t5 = 14, 15, 16, 17, 18, 19
    WF = 32
    XF = [96, 112]
    ACC = 128
    a(f"""v_mov_b32 v{ACC}, 0
    s_cmp_eq_u32 s{sWv}, 0
    s_cselect_b32 s{sCnt}, 5, 100
    s_cbranch_scc0 {K}_norst
    s_lshl_b32 s{sT0}, s{sPr}, 7
    s_lshl_b32 s{sT1}, s{sE}, 2
    s_add_u32 s{sT0}, s{sT0}, s{sT1}
    s_add_u32 s{sT0}, s{sT0}, {WS_F}
    s_mov_b64 exec, 1
    buffer_store_dword v{ACC}, v{ACC}, s[{sWS}:{sWS+3}], s{sT0} offen sc1
    buffer_store_dword v{ACC}, v{ACC}, s[{sWS}:{sWS+3}], s{sT0} offen offset:32 sc1
    s_mov_b64 exec, -1
    {K}_norst:""")
    a(f"""v_and_b32 v{t0}, 15, v0
    v_lshrrev_b32 v{t1}, 4, v0
    v_bfe_u32 v{t2}, v0, 1, 3
    v_xor_b32 v{t2}, v{t2}, v{t1}
    v_lshlrev_b32 v{t2}, 4, v{t2}
    v_lshlrev_b32 v{t3}, 7, v{t0}
    s_lshl_b32 s{sT0}, s{sTH}, 12
    s_add_u32 s{sT0}, s{sT0}, {L_XR}
    v_add_u32 v{t3}, s{sT0}, v{t3}
    v_add_u32 v{vXr[0]}, v{t3}, v{t2}
    v_xor_b32 v{t2}, 64, v{t2}
    v_add_u32 v{vXr[1]}, v{t3}, v{t2}
    v_bfe_u32 v{t2}, v0, 2, 2
    v_lshl_add_u32 v{t2}, v{t1}, 3, v{t2}
    v_lshlrev_b32 v{t2}, 8, v{t2}
    v_bfe_u32 v{t4}, v0, 2, 3
    v_lshlrev_b32 v{t4}, 5, v{t4}
    v_and_b32 v{t3}, 3, v0
    v_lshlrev_b32 v{t3}, 3, v{t3}
    s_mul_i32 s{sT1}, s{sHH}, 40
    s_mov_b32 s{sT0}, {192 | (112 << 8) | (32 << 16) | (240 << 24)}
    v_lshrrev_b32 v{t5}, v{t3}, s{sT0}
    v_and_b32 v{t5}, 0xff, v{t5}
    v_xor_b32 v{t5}, v{t5}, v{t4}
    v_add_u32 v{vWc[3]}, v{t2}, v{t5}
    v_add_u32 v{t3}, s{sT1}, v{t3}""")
    for ct, off in enumerate((80, 0, 160)):
        a(f"""v_add_u32 v{t5}, {off}, v{t3}
        v_xor_b32 v{t5}, v{t5}, v{t4}
        v_add_u32 v{vWc[ct]}, v{t2}, v{t5}""")
    for i in range(1, 128): a(f"v_mov_b32 v{ACC+i}, 0")
    vKa, vTa, vVa, vIdx = 6, 7, 8, 10
    vKw, vQw, vVw, vM0, vM1, vDs, vDt, vMul, vSq, vMulO = 11, 12, 13, 20, 21, 22, 23, 24, 25, 26
    sBlk, sScr = sXb, sKo
    a(f"""s_mul_i32 s{sRing}, s{sHH}, {RING}
    s_mul_i32 s{sBlk}, s{sTH}, {BLK}
    s_add_u32 s{sBlk}, s{sBlk}, s{sRing}
    s_mul_i32 s{sScr}, s{sWv}, 5120
    s_add_u32 s{sScr}, s{sScr}, {L_SCR}
    v_lshrrev_b32 v{t2}, 2, v{t0}
    v_and_b32 v{t3}, 3, v0
    v_lshl_add_u32 v{t4}, v{t2}, 3, v{t3}
    v_lshrrev_b32 v{t5}, 5, v0
    v_lshlrev_b32 v{t5}, 9, v{t5}
    v_and_b32 v{vQw}, 16, v0
    v_lshrrev_b32 v{vQw}, 1, v{vQw}
    v_add_u32 v{t5}, v{t5}, v{vQw}
    v_lshl_add_u32 v{vKw}, v{t4}, 4, v{t5}
    v_add_u32 v{vKw}, s{sBlk}, v{vKw}
    v_lshl_add_u32 v{vQw}, v{t0}, 4, v{t5}
    v_add_u32 v{vQw}, s{sScr}, v{vQw}
    v_mul_u32_u24 v{vVw}, 304, v{t1}
    v_lshl_add_u32 v{vVw}, v{t0}, 4, v{vVw}
    v_add_u32 v{vVw}, s{sBlk}, v{vVw}""")
    a(f"""v_mul_u32_u24 v{vM0}, 304, v{t2}
    v_lshl_add_u32 v{vM0}, v{t3}, 1, v{vM0}
    s_add_u32 s{sT0}, s{sBlk}, {4608+256}
    v_add_u32 v{vM0}, s{sT0}, v{vM0}
    s_add_u32 s{sT0}, s{sBlk}, 4096
    s_add_u32 s{sT1}, s{sScr}, {4096-1024}
    v_lshlrev_b32 v{t5}, 9, v{t1}
    v_add_u32 v{t5}, s{sT1}, v{t5}
    v_mov_b32 v{vM1}, s{sT0}
    v_cmp_eq_u32 vcc, 1, v{t1}
    v_mov_b32 v{vDs}, 32
    v_mov_b32 v{vDt}, {(2-32) & 0xffffffff}
    v_cndmask_b32 v{t5}, v{t5}, v{vM1}, vcc
    v_lshl_add_u32 v{t5}, v{t4}, 3, v{t5}
    v_cmp_eq_u32 vcc, 0, v{t1}
    v_mov_b32 v{t2}, 256
    v_mov_b32 v{t3}, {1216-8}
    v_cndmask_b32 v{vM0}, v{t5}, v{vM0}, vcc
    v_cndmask_b32 v{vDs}, v{vDs}, 8, vcc
    v_cndmask_b32 v{vDt}, v{vDt}, v{t3}, vcc
    v_cndmask_b32 v{t2}, v{t2}, 16, vcc
    v_add_u32 v{vM1}, v{vM0}, v{t2}
    v_cmp_eq_u32 vcc, 2, v{t1}
    v_mov_b32 v{vMul}, 1.0
    v_mov_b32 v{t2}, {f32(CSCALE)}
    v_cndmask_b32 v{vMul}, v{vMul}, v{t2}, vcc
    s_mul_i32 s{sT0}, s{sHH}, 0x3f800000
    v_mul_f32 v{vMulO}, s{sT0}, v{vMul}
    v_sub_f32 v{vMul}, v{vMul}, v{vMulO}""")
    a(f"""v_and_b32 v{t2}, 16, v0
    v_lshrrev_b32 v{t2}, 2, v{t2}
    v_add_u32 v{t2}, v{t2}, v{t4}
    v_lshlrev_b32 v{vSq}, 3, v{t2}
    s_add_u32 s{sT1}, s{sScr}, 4096
    v_add_u32 v{vSq}, s{sT1}, v{vSq}
    v_and_b32 v{t0}, 31, v0
    v_lshrrev_b32 v{t1}, 5, v0
    v_mul_u32_u24 v{t3}, 304, v{t1}
    v_lshl_add_u32 v{t3}, v{t0}, 4, v{t3}
    v_add_u32 v{t3}, s{sRing}, v{t3}
    v_cmp_gt_u32 vcc, 19, v{t0}
    v_mov_b32 v{vVa}, {LDS_BYTES}
    v_lshl_add_u32 v{vKa}, v0, 4, s{sRing}
    v_cndmask_b32 v{vVa}, v{vVa}, v{t3}, vcc
    v_lshl_add_u32 v{vTa}, v0, 3, s{sRing}
    v_mov_b32 v{vIdx}, 0xdddddddd
    v_lshl_add_u32 v{t5}, v{t1}, 8, v{vSq}
    s_mov_b32 s{sWsrc}, 0
    s_mov_b32 s{sXm0}, 0""")
    vSqh = t5
    p3_scal(a)
    coff = (48, 0, 96, 0)
    def wfrag(k2):
        r = []
        for ct in range(4):
            for hf in range(2):
                r.append(f"ds_read_b64_tr_b16 {vr(WF+16*k2+4*ct+2*hf,2)}, v{vWc[ct]} offset:{L_WR + (32*k2+4*hf)*256}")
        return r
    def xread(buf):
        r = []
        for k2 in range(2):
            for s in range(2):
                r.append(f"ds_read_b128 {vr(XF[buf]+8*k2+4*s,4)}, v{vXr[k2]} offset:{2048*s}")
        return r
    xadv = [f"s_add_u32 s{sXm0}, s{sXm0}, 1", f"s_cmp_eq_u32 s{sXm0}, {RX}", f"s_cselect_b32 s{sXm0}, 0, s{sXm0}",
            f"s_cselect_b32 s{sT1}, s{sWk}, s{sWcnt}",
            f"v_add_u32 v{vXr[0]}, s{sT1}, v{vXr[0]}", f"v_add_u32 v{vXr[1]}, s{sT1}, v{vXr[1]}"]
    wadv = [f"s_add_u32 s{sWsrc}, s{sWsrc}, 1", f"s_cmp_eq_u32 s{sWsrc}, {RW}", f"s_cselect_b32 s{sWsrc}, 0, s{sWsrc}",
            f"s_cselect_b32 s{sT2}, s{sWm0}, s{sGk}",
            ] + [f"v_add_u32 v{c}, s{sT2}, v{c}" for c in vWc]
    a(f"""s_mov_b32 s{sWk}, {(-(RX-1)*8192) & 0xffffffff}
    s_mov_b32 s{sWcnt}, 8192
    s_mov_b32 s{sWm0}, {(-(RW-1)*WSL) & 0xffffffff}
    s_mov_b32 s{sGk}, {WSL}
    s_barrier""")
    stamp(a, 1, 30)
    for m in xread(0) + xadv + wfrag(0) + wfrag(1): a(m)
    QM, QT = 32, 48
    KF, V0, V1, KT = [80, 84], [88, 92], [96, 100], 104
    vGl = 26
    TP = 108
    def epi(tt):
        tp = (64, 80)[tt % 2]
        r = []
        for s in range(2):
            b = ACC + 32 * tt + 16 * s
            k_, q_, m_ = tp + 2 * s, tp + 4 + 2 * s, tp + 12 + s
            r += f"""v_cvt_pk_bf16_f32 v{k_}, v{b}, v{b+1}
            v_cvt_pk_bf16_f32 v{k_+1}, v{b+2}, v{b+3}
            v_mul_f32 v{b+4}, s{sT3}, v{b+4}
            v_mul_f32 v{b+5}, s{sT3}, v{b+5}
            v_mul_f32 v{b+6}, s{sT3}, v{b+6}
            v_mul_f32 v{b+7}, s{sT3}, v{b+7}
            ds_write_b64 v{vKw}, {vr(k_,2)} offset:{tt*1024 + s*64}
            v_cvt_pk_bf16_f32 v{q_}, v{b+4}, v{b+5}
            v_cvt_pk_bf16_f32 v{q_+1}, v{b+6}, v{b+7}
            v_cvt_pk_bf16_f32 v{tp+8+2*s}, v{b+8}, v{b+9}
            v_cvt_pk_bf16_f32 v{tp+9+2*s}, v{b+10}, v{b+11}
            ds_write_b64 v{vQw}, {vr(q_,2)} offset:{tt*1024 + s*256}
            v_mul_f32 v{b+12}, v{vMul}, v{b+12}
            v_mul_f32 v{b+13}, v{vMul}, v{b+13}
            v_fmac_f32 v{b+12}, v{vMulO}, v{b+14}
            v_fmac_f32 v{b+13}, v{vMulO}, v{b+15}
            v_cvt_pk_bf16_f32 v{m_}, v{b+12}, v{b+13}
            ds_write_b16 v{vM0}, v{m_}
            ds_write_b16_d16_hi v{vM1}, v{m_}""".split("\n")
            dl = vDs if s == 0 else vDt
            if (tt, s) != (3, 1):
                r += [f"v_add_u32 v{vM0}, v{dl}, v{vM0}", f"v_add_u32 v{vM1}, v{dl}, v{vM1}"]
        r.append(f"ds_write_b128 v{vVw}, {vr(tp+8,4)} offset:{4608 + tt*1216}")
        return r
    def chunk(last):
        for tt in range(4):
            cur = XF[tt & 1]
            mf = []
            for k2 in range(2):
                for ct in range(4):
                    for s in range(2):
                        d = ACC + 32 * tt + 16 * s + 4 * ct
                        w_, x_ = vr(WF + 16 * k2 + 4 * ct, 4), vr(cur + 8 * k2 + 4 * s, 4)
                        A_, B_ = (x_, w_) if ct == 2 else (w_, x_)
                        mf.append(f"v_mfma_f32_16x16x32_bf16 {vr(d,4)}, {A_}, {B_}, {vr(d,4)}")
            fill = {i: [] for i in range(-1, 16)}
            xr = xread((tt + 1) & 1)
            if tt == 0:
                fill[-1].append("s_waitcnt lgkmcnt(8)")
                for i in range(4): fill[i].append(xr[i])
                for i in range(6): fill[8 + i].append(xadv[i])
                fill[7].append("s_waitcnt lgkmcnt(4)")
                if last:
                    ones = f"""s_mov_b32 s{sT3}, {f32(CSCALE)}
                    v_mov_b32 v92, 0x3f803f80
                    v_mov_b32 v93, 0x3f803f80
                    v_mov_b32 v94, 0x3f803f80
                    v_mov_b32 v95, 0x3f803f80
                    v_mul_u32_u24 v{t0}, 304, v0""".split("\n")
                    for i, m in enumerate(ones): fill[i].append(m)
                    fill[14].append(f"v_add_u32 v{t0}, s{sBlk}, v{t0}")
                    fill[15] += ["s_mov_b64 exec, 0xffff", f"ds_write_b128 v{t0}, v[92:95] offset:{4608+288}", "s_mov_b64 exec, -1"]
            elif last:
                if tt < 3:
                    for i in range(4): fill[i // 2].append(xr[i])
                    if tt == 1:
                        for i in range(6): fill[2 + i // 2].append(xadv[i])
                e = epi(tt - 1)
                st = 5 if tt == 1 else 4
                per = -(-len(e) // (16 - st))
                for i, m in enumerate(e): fill[st + i // per].append(m)
            elif tt == 3:
                for i in range(4): fill[-1 + (i + 1) // 2].append(xr[i])
                w0, w1 = wfrag(0), wfrag(1)
                for ct in range(4):
                    fill[2 * ct + 1] += [w0[2 * ct]]; fill[2 * ct + 2] += [w0[2 * ct + 1]]
                    fill[8 + 2 * ct + 1] += [w1[2 * ct]]; fill[min(15, 8 + 2 * ct + 2)] += [w1[2 * ct + 1]]
                for i in range(6): fill[3 + i].append(xadv[i])
                fill[10].append(f"s_sub_u32 s{sIt}, s{sIt}, 1")
            else:
                for i in range(4): fill[i].append(xr[i])
                for i in range(6): fill[4 + i].append(xadv[i])
                if tt == 1:
                    for i in range(4): fill[10 + i].append(wadv[i])
                if tt == 2:
                    for i in range(4): fill[10 + i].append(wadv[4 + i])
            if tt % 2 == 0: a("s_barrier")
            for m in fill[-1]: a(m)
            for i in range(16):
                if not OPT.get("nomf"): a(mf[i])
                for m in fill[i]: a(m)
            if last:
                if tt == 0: a("s_waitcnt lgkmcnt(1)")
                elif tt < 3: a("s_waitcnt lgkmcnt(9)")
            elif tt == 3:
                a(f"""s_waitcnt lgkmcnt(15)
                s_cmp_eq_u32 s{sIt}, s{sCnt}
                s_cbranch_scc1 {K}_rst
                {K}_rst_ret:
                s_cmp_lg_u32 s{sIt}, 0""")
            else:
                a("s_waitcnt lgkmcnt(0)")
    a(f"""s_mov_b32 s{sIt}, 8
    s_waitcnt lgkmcnt(0)
    {K}_p1:""")
    chunk(False)
    a(f"s_cbranch_scc1 {K}_p1")
    chunk(True)
    stamp(a, 2, 30)
    a("s_nop 1")
    for m in epi(3): a(m)
    S = [128, 144, 160, 176]
    O = [192, 208, 224, 240]
    a(f"""v_lshl_add_u32 v{t0}, v0, 4, s{sScr}
    s_waitcnt lgkmcnt(0)""")
    for x in range(4): a(f"ds_read_b128 {vr(QM+4*x,4)}, v{t0} offset:{1024*x}")
    a(f"""ds_read_b64 {vr(TP,2)}, v{vSqh}
    ds_read_b64 {vr(TP+2,2)}, v{vSq} offset:512""")
    for i in range(12): a(f"v_mov_b32 v{O[0]+i}, 0")
    a("""s_waitcnt lgkmcnt(0)
    s_barrier""")
    stamp(a, 3, 30)
    NB = int(OPT["nb"])
    def ldK(t, buf): return f"ds_read_b128 {vr(KF[buf],4)}, v{vKa} offset:{((t//4)%NB)*BLK + (t%4)*1024}"
    def ldV(t, half, buf): return f"ds_read_b128 {vr((V0,V1)[half][buf],4)}, v{vVa} offset:{((t//4)%NB)*BLK + 4608 + (t%4)*1216 + 608*half}"
    def ldT(b=0): return f"ds_read_b64 {vr(KT,2)}, v{vTa} offset:{(b%NB)*BLK + 4096}"
    def QKM(t, x, s, c="0"): return f"v_mfma_f32_32x32x16_bf16 {vr(s,16)}, {vr(KF[t%2],4)}, {vr(QM+4*x,4)}, {c}"
    def QKT(t, x, s): return f"v_mfma_f32_32x32x8_bf16 {vr(s,16)}, {vr(KT,2)}, {vr(QT+8*x+2*(t%4),2)}, {vr(s,16)}"
    def PV(half, t, x, s): return f"v_smfmac_f32_32x32x32_bf16 {vr(O[x],16)}, {vr((V0,V1)[half][t%2],4)}, {vr(s+8*half,8)}, v{vIdx}"
    a(ldK(0, 0)); a(ldT()); a(ldV(0, 0, 0)); a(ldV(0, 1, 0))
    def qvar(x):
        q, r = QT + 8 * x, TP + (x >> 1)
        if x % 2 == 0:
            a(f"""v_and_b32 v{q}, 0xffff, v{r}
            v_lshlrev_b32 v{q+2}, 16, v{r}
            v_lshlrev_b32 v{vGl+x}, 16, v{r+2}""")
        else:
            a(f"""v_lshrrev_b32 v{q}, 16, v{r}
            v_and_b32 v{q+2}, 0xffff0000, v{r}
            v_and_b32 v{vGl+x}, 0xffff0000, v{r+2}""")
        a(f"""v_mov_b32 v{q+1}, 0
        v_mov_b32 v{q+3}, 0
        v_mov_b32 v{q+4}, 0
        v_mov_b32 v{q+5}, v{q}
        v_mov_b32 v{q+6}, 0
        v_mov_b32 v{q+7}, v{q+2}""")
    qvar(0); qvar(1)
    vOm, vOt, vWm3, vWt, vRd = [2, 106], 3, 5, 9, 4
    HOOKS = [1, 3, 7, 11, 13, 15]
    a(f"""s_mov_b32 s{sIt}, 0
    s_mov_b32 s{sWk}, {NB*BLK}
    s_mov_b32 s{sWcnt}, {(NB*BLK - RING) & 0xffffffff}
    s_waitcnt lgkmcnt(2)""")
    rest = [f"v_mov_b32 v{O[0]+i}, 0" for i in range(12, 64)] + [f"v_mov_b32 v{S[3]+8+i}, 0" for i in range(8)] + [f"v_mov_b32 v{V1[1]+i}, 0" for i in range(4)]
    a(QKM(0, 0, S[0])); qvar(2)
    a(QKT(0, 0, S[0])); qvar(3)
    a(QKM(0, 1, S[1]))
    for m in rest[:8]: a(m)
    a(QKT(0, 1, S[1]))
    for m in rest[8:]: a(m)
    p3_addr(a, vOm[0], vOm[1], vOt, vWm3, vWt, vRd, t3, t1, t2)
    a(f"""s_cmp_ge_u32 s{sPr}, 16
    s_mov_b32 s{sT0}, {f32(-LOG2E)}
    s_cselect_b32 s{sT0}, {f32(LOG2E)}, s{sT0}""")
    for x in range(4): a(f"v_mul_f32 v{vGl+x}, s{sT0}, v{vGl+x}")
    for x in range(4): a(f"v_exp_f32 v{vGl+x}, v{vGl+x}")
    a(f"""s_lshl_b32 s{sT1}, s{sE}, 1
    s_add_u32 s{sT1}, s{sT1}, s{sTH}
    s_lshl_b32 s{sT1}, s{sT1}, 8
    s_add_u32 s{sT1}, s{sT1}, s{sBH}
    s_mul_i32 s{sT1}, s{sT1}, 1152
    s_add_u32 s{sRef}, s{sT1}, {WS_O}""")
    for x in range(4):
        a(f"""v_add_f32 v{vGl+x}, 1.0, v{vGl+x}
        s_xor_b32 s{56+x}, s{sTt}, {x}
        s_mul_i32 s{56+x}, s{56+x}, {64*1152}
        s_add_u32 s{56+x}, s{56+x}, s{sRef}""")
    a(f"""v_lshlrev_b32 v{t0}, 4, v0
    v_lshrrev_b32 v{t1}, 5, v0
    v_mul_u32_u24 v{t1}, {64*1152 - 128}, v{t1}
    v_lshl_add_u32 v{t1}, v0, 2, v{t1}
    s_mov_b32 s{sGk}, {f32(2.0**-40)}
    s_mov_b32 s{sKo}, {f32(2.0**40) if not OPT['force_fb'] else f32(2.0**-39)}
    s_mul_i32 s{sT0}, s{sTH}, 27648
    s_add_u32 s{sT0}, s{sT0}, s{sRing}
    v_add_u32 v24, s{sT0}, v{t0}
    s_lshl_b32 s{sT0}, s{sWv}, 2
    s_add_u32 s{sT0}, s{sT0}, {L_SYNC + 32}
    v_mov_b32 v25, s{sT0}""")
    a("s_waitcnt lgkmcnt(0)")
    if OPT.get("cprio"): a(f"s_setprio {OPT['cprio']}")
    hookblks = []
    a(".p2align 6")
    a(f"{K}_att:")
    pos = (2, 6, 10, 14)
    NIT = 16 // NB
    for u in range(16 * NB):
        t, x = divmod(u, 4)
        tn, xn = divmod(u + 2, 4)
        tp_, xp = divmod(u - 1, 4)
        blk, ub = divmod(u, 16)
        s, sn, sp = S[u % 4], S[(u + 2) % 4], S[(u - 1) % 4]
        ins = {i: [] for i in range(17)}
        ins[pos[0]].append(PV(1, tp_, xp, sp))
        ins[pos[1]].append(QKM(tn, xn, sn))
        ins[pos[2]].append(QKT(tn, xn, sn))
        ins[pos[3]].append(PV(0, t, x, s))
        if x == 0:
            ins[pos[0]].append(ldV(t + 1, 1, (t + 1) % 2))
            ins[pos[1]].append(ldK(t + 1, (t + 1) % 2))
            ins[pos[3]].append(ldV(t + 1, 0, (t + 1) % 2))
        if ub == 13: ins[pos[2]].append(ldT(blk + 1))
        if x == 2: ins[pos[1]].insert(0, "s_waitcnt lgkmcnt(0)")
        if ub == 10 and blk == NB - 1:
            ins[pos[2]].append(f"s_cmp_eq_u32 s{sIt}, {NIT//2 - 1}")
            ins[pos[3]].append(f"s_cselect_b32 s{sT0}, s{sWcnt}, s{sWk}")
        if ub == 11:
            if blk == NB - 1:
                ins[pos[0]].append(f"v_add_u32 v{vKa}, s{sT0}, v{vKa}")
                ins[pos[1]].append(f"v_add_u32 v{vTa}, s{sT0}, v{vTa}")
                ins[pos[2]].append(f"v_add_u32 v{vVa}, s{sT0}, v{vVa}")
            its = [it for it in range(NIT) if it * NB + blk in HOOKS]
            if len(its) == NIT and not OPT["stamp"]:
                ins[pos[3]].append("s_barrier")
            elif its:
                ins[pos[3]] += [f"s_bitcmp1_b32 {sum(1 << i for i in its)}, s{sIt}", f"s_cbranch_scc1 {K}_hook{blk}", f"{K}_hook_ret{blk}:"]
                hookblks.append(blk)
        if u == 16 * NB - 1:
            ins[pos[3]] += [f"s_add_u32 s{sIt}, s{sIt}, 1", f"s_cmp_lt_u32 s{sIt}, {NIT}"]
        for i in range(16):
            for m in ins[i]: a(m)
            a(f"v_exp_f32 v{s+i}, v{s+i}")
    a(f"s_cbranch_scc1 {K}_att")
    a("s_nop 1")
    a(PV(1, 3, 3, S[3]))
    stamp(a, 8, 30)
    CC = [5, 6, 7, 8]
    R8 = [84, 92, 108, 112, 116, 120, 124, 20, 100]
    RL = list(range(32, 84, 4)) + [88, 96] + list(range(128, 176, 4))
    creg = lambda s, ct: R8[s] if ct == 8 else RL[3 * s + ct - 5]
    p3_wo_loads(a, [8], creg, vWm3, vWt, (0, 1, 8))
    a('s_nop 4')
    l_ = [O[x] + 10 for x in range(4)]
    a(f"""v_add_f32 v{t2}, v{l_[0]}, v{l_[1]}
    v_min3_f32 v{t3}, v{l_[0]}, v{l_[1]}, v{l_[2]}
    v_add_f32 v{t2}, v{t2}, v{l_[2]}
    s_waitcnt lgkmcnt(0)
    v_add_f32 v{t2}, v{t2}, v{l_[3]}
    v_min_f32 v{t3}, v{t3}, v{l_[3]}
    v_cmp_ge_f32 s[{sEx}:{sEx+1}], s{sKo}, v{t2}
    v_cmp_le_f32 vcc, s{sGk}, v{t3}
    s_nop 1
    s_and_b32 vcc_lo, vcc_lo, s{sEx}
    s_cmp_eq_u32 vcc_lo, -1
    s_cbranch_scc0 {K}_fbchk
    {K}_fbdone:""")
    cp = [f"ds_read_b128 {vr(creg(s_,ct),4)}, v24 offset:{1024*(3*s_+i)}" for s_ in range(9) for i, ct in enumerate(CL)]
    tq = [t2, t3, t4, t5]
    for x in range(4): a(f"v_mov_b32 v{tq[x]}, v{O[x]+10}")
    a(cp.pop(0))
    for x in range(4): a(f"v_permlane32_swap_b32 v{O[x]+10}, v{tq[x]}")
    a(cp.pop(0))
    for x in range(4): a(f"v_mul_f32 v{tq[x]}, v{O[x]+10}, v{vGl+x}")
    for x in range(4): a(f"v_rcp_f32 v{tq[x]}, v{tq[x]}")
    a(cp.pop(0))
    for x in range(4):
        o = O[x]
        for i in range(10):
            a(f"v_mul_f32 v{o+i}, v{tq[x]}, v{o+i}")
            if i % 3 == 2: a(cp.pop(0))
        for i in range(4): a(f"v_cvt_pk_bf16_f32 v{o+12+i}, v{o+2*i}, v{o+2*i+1}")
        a(f"""v_cvt_pk_bf16_f32 v{o+11}, v{o+8}, v{o+9}
        buffer_store_dwordx4 {vr(o+12,4)}, v{t0}, s[{sWS}:{sWS+3}], s{56+x} offen sc1""")
        if x % 2 == 1:
            a(f"""s_nop 0
            v_permlane32_swap_b32 v{O[x-1]+11}, v{o+11}
            buffer_store_dword v{O[x-1]+11}, v{t1}, s[{sWS}:{sWS+3}], s{56+x-1} offen offset:1024 sc1""")
    for m in cp: a(m)
    stamp(a, 9, 30)
    a(f"""v_mov_b32 v6, {L_SYNC + 20}
    v_mov_b32 v7, 1
    s_setprio {OPT.get("p3prio", 2)}
    s_mov_b64 exec, 1
    s_waitcnt lgkmcnt(0)
    ds_add_u32 v6, v7
    s_mov_b64 exec, -1""")
    for i in range(32): a(f"v_mov_b32 v{224+i}, 0")
    a(f"""v_lshrrev_b32 v1, 4, v0
    v_mul_u32_u24 v6, 1152, v1
    v_and_b32 v1, 15, v0
    v_lshl_add_u32 v6, v1, 3, v6
    v_add_u32 v6, 1024, v6
    v_add_u32 v7, s{sLB}, v6
    v_add_u32 v6, s{sLA}, v6""")
    stamp(a, 10, 30)
    if OPT.get("drain"):
        a("s_waitcnt vmcnt(0)")
        stamp(a, 12, 30)
    p3_comp(a, CC, creg, 224, 176, vOm, vOt, vRd, 25, [6, 7])
    stamp(a, 11, 30)
    a(f"{K}_final:")
    final_reduce(a, K, 30)
    a(f"{K}_end:")
    a("s_endpgm")
    a(f"""{K}_rst:
    s_lshl_b32 s{sT0}, s{sPr}, 2
    v_mov_b32 v28, s{sT0}
    v_mov_b32 v29, 1
    s_mov_b64 exec, 1
    s_waitcnt vmcnt(0)
    buffer_atomic_add v29, v28, s[{sD}:{sD+3}], 0 offen
    s_mov_b64 exec, -1
    s_branch {K}_rst_ret""")
    for blk in hookblks:
        a(f"{K}_hook{blk}:")
        if OPT["stamp"]:
            for hb, i_ in ((1, 4), (3, 6)):
                if hb % NB == blk:
                    a(f"s_cmp_eq_u32 s{sIt}, {hb // NB}\ns_cbranch_scc0 {K}_hk{hb}")
                    stamp(a, i_, 30); a("s_barrier"); stamp(a, i_ + 1, 30); a(f"s_branch {K}_hook_ret{blk}")
                    a(f"{K}_hk{hb}:")
        if 13 % NB == blk:
            a(f"""s_cmp_eq_u32 s{sIt}, {13 // NB}
            s_cbranch_scc0 {K}_hkb{blk}""")
            p3_wo_loads(a, [8], creg, vWm3, vWt, range(2, 8))
            a(f"{K}_hkb{blk}:")
        a(f"""s_barrier
        s_branch {K}_hook_ret{blk}""")
    FQ = S[3]
    a(f"{K}_fbchk:")
    for x in range(4):
        a(f"""v_cmp_le_f32 vcc, s{sGk}, v{O[x]+10}
        v_cmp_ge_f32 s[{sEx}:{sEx+1}], s{sKo}, v{O[x]+10}
        s_nop 1
        s_and_b32 vcc_lo, vcc_lo, s{sEx}
        s_cmp_eq_u32 vcc_lo, -1
        s_cbranch_scc0 {K}_fb{x}
        {K}_fbret{x}:""")
    a(f"s_branch {K}_fbdone")
    for x in range(4):
        a(f"{K}_fb{x}:")
        for i in range(4): a(f"v_mov_b32 v{FQ+i}, v{QM+4*x+i}")
        for i in range(8): a(f"v_mov_b32 v{FQ+4+i}, v{QT+8*x+i}")
        a(f"s_call_b64 s[{sRet}:{sRet+1}], {K}_slow")
        for i in range(16): a(f"v_mov_b32 v{O[x]+i}, v{S[2]+i}")
        a(f"s_branch {K}_fbret{x}")
    a(f"{K}_slow:")
    vb, vc, vm = 11, 12, 13
    sA, sB = sWsrc, sWm0
    a(f"""v_lshlrev_b32 v{vb}, 3, v0
    v_and_b32 v{vm}, 31, v0
    v_lshrrev_b32 v{vc}, 5, v0
    v_mul_u32_u24 v{vc}, 304, v{vc}
    v_lshl_add_u32 v{vc}, v{vm}, 4, v{vc}
    v_cmp_lt_u32 vcc, 18, v{vm}
    v_mov_b32 v{vm}, 0x40000000
    s_nop 1
    v_cndmask_b32 v{vc}, v{vc}, v{vm}, vcc""")
    def slow_qk(t, c):
        a(f"""v_mfma_f32_32x32x16_bf16 {vr(S[0],16)}, {vr(KF[0],4)}, {vr(FQ,4)}, {c}
        v_mfma_f32_32x32x8_bf16 {vr(S[0],16)}, {vr(KT,2)}, {vr(FQ+4+2*t,2)}, {vr(S[0],16)}
        s_nop 15""")
    def slow_next(lbl):
        a(f"""s_add_u32 s{sA}, s{sA}, {BLK}
        s_sub_u32 s{sIt}, s{sIt}, 1
        s_cmp_lg_u32 s{sIt}, 0
        s_cbranch_scc1 {lbl}""")
    a(f"""v_mov_b32 v{vm}, 0xff800000
    s_mov_b32 s{sA}, s{sKVg}
    s_mov_b32 s{sIt}, 16
    {K}_sl1:
    s_add_u32 s{sB}, s{sA}, 4096
    buffer_load_dwordx2 {vr(KT,2)}, v{vb}, s[{sWS}:{sWS+3}], s{sB} offen sc1""")
    for t in range(4):
        a(f"""buffer_load_dwordx4 {vr(KF[0],4)}, v{t0}, s[{sWS}:{sWS+3}], s{sA} offen offset:{1024*t} sc1
        s_waitcnt vmcnt(0)""")
        slow_qk(t, "0")
        for i in range(8): a(f"v_max3_f32 v{vm}, v{S[0]+2*i}, v{S[0]+2*i+1}, v{vm}")
    slow_next(f"{K}_sl1")
    a(f"""v_mov_b32 v{S[0]}, v{vm}
    s_nop 1
    v_permlane32_swap_b32 v{vm}, v{S[0]}
    s_nop 1
    v_max_f32 v{vm}, v{vm}, v{S[0]}""")
    for i in range(16):
        a(f"v_sub_f32 v{S[1]+i}, 0, v{vm}")
        a(f"v_mov_b32 v{S[2]+i}, 0")
    a(f"""s_mov_b32 s{sA}, s{sKVg}
    s_mov_b32 s{sIt}, 16
    {K}_sl2:
    s_add_u32 s{sB}, s{sA}, 4096
    buffer_load_dwordx2 {vr(KT,2)}, v{vb}, s[{sWS}:{sWS+3}], s{sB} offen sc1""")
    for t in range(4):
        a(f"""buffer_load_dwordx4 {vr(KF[0],4)}, v{t0}, s[{sWS}:{sWS+3}], s{sA} offen offset:{1024*t} sc1
        s_add_u32 s{sB}, s{sA}, {4608+1216*t}
        buffer_load_dwordx4 {vr(V0[0],4)}, v{vc}, s[{sWS}:{sWS+3}], s{sB} offen sc1
        buffer_load_dwordx4 {vr(V1[0],4)}, v{vc}, s[{sWS}:{sWS+3}], s{sB} offen offset:608 sc1
        s_waitcnt vmcnt(0)""")
        slow_qk(t, vr(S[1], 16))
        for i in range(16): a(f"v_exp_f32 v{S[0]+i}, v{S[0]+i}")
        a(f"""s_nop 3
        v_smfmac_f32_32x32x32_bf16 {vr(S[2],16)}, {vr(V0[0],4)}, {vr(S[0],8)}, v{vIdx}
        v_smfmac_f32_32x32x32_bf16 {vr(S[2],16)}, {vr(V1[0],4)}, {vr(S[0]+8,8)}, v{vIdx}
        s_nop 7""")
    slow_next(f"{K}_sl2")
    a(f"""s_nop 15
    s_setpc_b64 s[{sRet}:{sRet+1}]""")

def main(out):
    ka = f"{NAME}_kernel"
    a = Asm(); kernel(a)
    t = f"""; gated mix of two MHA blocks: one fused kernel (QKV projection, attention, output projection); generated by gen/gen14.py
; @launch grid=(256,1,1) block=(512,1,1) lds={LDS_BYTES}
.amdgcn_target "amdgcn-amd-amdhsa--gfx950"
.text
.globl {ka}
.p2align 8
.type {ka},@function
{ka}:
{a.text()}.section .rodata,"a"
.p2align 6
.amdhsa_kernel {ka}
  .amdhsa_next_free_vgpr 256
  .amdhsa_next_free_sgpr 102
  .amdhsa_accum_offset 256
  .amdhsa_group_segment_fixed_size 0
  .amdhsa_kernarg_size 80
  .amdhsa_user_sgpr_count 2
  .amdhsa_user_sgpr_kernarg_segment_ptr 1
  .amdhsa_system_sgpr_workgroup_id_x 1
.end_amdhsa_kernel
"""
    open(out, "w").write(t)

if __name__ == "__main__":
    for kv in sys.argv[2:]:
        k, v = kv.split("=")
        OPT[k] = {"True": True, "False": False}.get(v, v)
    main(sys.argv[1])
```

```python
import sys, struct

NAME = "gated_mix__mha_block__mha_block__prompt"
def f32(x): return "0x%08x" % struct.unpack("<I", struct.pack("<f", x))[0]
CSCALE = (18 ** -0.5) * 1.4426950408889634
LOG2E = 1.4426950408889634

BLK = 9472
KVH = 16 * BLK
RING = 8 * BLK
WS_O = 0x0A00000
WS_WOM = 0x0F00000
WS_WOT = 0x1080000
WS_F = 0x10C0000
WS_STAMP = 0x1100000
WS_SIZE = 0x1200000
SENT = 0xffffffff
L_WR = 0
WSL = 16384
RW = 3
L_XR = 98304
L_SCR = 49152
L_GT = 155648
L_SYNC = L_GT + 3 * 2048 + 1536
L_WO = 151552
LDS_BYTES = 163840
RS = 592
L_OA = 6 * BLK
L_OB = 94720
PLANE = 32 * RS

class Asm:
    def __init__(self): self.l = []
    def __call__(self, s):
        for x in s.strip("\n").split("\n"):
            x = x.strip()
            if not x: continue
            self.l.append(x if x.endswith(":") else "    " + x)
    def text(self): return "\n".join(self.l) + "\n"

def vr(a, n): return f"v[{a}:{a+n-1}]"
OPT = dict(force_fb=False, stamp=False, rx="6", txor="1", nb="4", cprio="3")

def srd(a, d, lo, hi, size):
    a(f"""s_mov_b32 s{d}, s{lo}
    s_and_b32 s{d+1}, s{hi}, 0xffff
    s_mov_b32 s{d+2}, {size}
    s_mov_b32 s{d+3}, 0x00020000""")

sX, sW, sWo, sG, sD, sWS, sOut = 8, 12, 16, 20, 24, 28, 84
sWv, sPr, sE, sHd, sRot = 32, 33, 34, 35, 36
sT0, sT1, sT2, sT3 = 37, 38, 39, 40
sRef, sCnt, sKo, sXb, sRing, sIt, sKVg, sSpin, sW8 = 41, 42, 43, 44, 45, 46, 47, 48, 49
sRet, sEx = 50, 52
sWsrc, sWm0, sWk, sWcnt, sXm0, sGk, sTt, sBH = 54, 55, 62, 63, 76, 77, 78, 79
sP3T, sP3C, sOb, sWmb, sWtb, sHH, sTH, sOtb = 88, 89, 90, 91, 92, 93, 94, 95
SV = 254
sLA, sLB = 74, 75
sGO = [66, 67, 68, 69]
sGW = [70, 71, 72, 73]

def stamp(a, idx, vreg):
    if not OPT["stamp"]: return
    a(f"""s_memrealtime s[80:81]
    s_memtime s[82:83]
    s_waitcnt lgkmcnt(0)
    v_writelane_b32 v{vreg}, s80, {idx}
    v_writelane_b32 v{vreg+1}, s82, {idx}""")
def sstamp(a, k):
    if not OPT["stamp"]: return
    a(f"""s_memrealtime s[80:81]
    s_waitcnt lgkmcnt(0)
    s_mov_b32 s{96+k}, s80""")
def stamp_out(a, vreg, vt=1, mask=None):
    if not OPT["stamp"]: return
    a(f"""s_lshl_b32 s80, s2, 3
    s_add_u32 s80, s80, s{sW8}
    s_lshl_b32 s80, s80, 8
    s_add_u32 s80, s80, {WS_STAMP}
    v_lshlrev_b32 v{vt}, 3, v0
    s_mov_b32 exec_hi, 0""")
    if mask is not None: a(f"s_mov_b32 exec_lo, {mask}")
    a(f"""buffer_store_dwordx2 v[{vreg}:{vreg+1}], v{vt}, s[{sWS}:{sWS+3}], s80 offen
    s_mov_b64 exec, -1""")

def p3_addr_w(a, vWm, vWt, t0, t1, t2):
    a(f"""v_and_b32 v{t0}, 15, v0
    v_lshrrev_b32 v{t1}, 5, v0
    v_bfe_u32 v{t2}, v0, 4, 1
    v_mul_u32_u24 v{vWm}, 4608, v{t1}
    v_lshl_add_u32 v{vWm}, v{t2}, 8, v{vWm}
    v_lshl_add_u32 v{vWm}, v{t0}, 4, v{vWm}
    v_lshrrev_b32 v{t1}, 4, v0
    v_add_u32 v{t2}, s{sP3C}, v{t1}
    v_and_b32 v{t2}, 3, v{t2}
    v_mul_u32_u24 v{vWt}, {4*2304}, v{t2}
    v_lshl_add_u32 v{vWt}, v{t0}, 4, v{vWt}""")
def p3_addr_o(a, vOm, vOt, vRd, vVa, vSy, t0, t1, t2):
    a(f"""v_and_b32 v{t0}, 15, v0
    v_lshrrev_b32 v{t1}, 5, v0
    v_bfe_u32 v{t2}, v0, 4, 1
    v_mul_u32_u24 v{vOm[0]}, 1152, v{t1}
    v_lshl_add_u32 v{vOm[0]}, v{t2}, 9, v{vOm[0]}
    v_lshl_add_u32 v{vOm[0]}, v{t0}, 4, v{vOm[0]}
    v_add_u32 v{vOm[1]}, s{sLB}, v{vOm[0]}
    v_add_u32 v{vOm[0]}, s{sLA}, v{vOm[0]}
    s_sub_u32 s{sT3}, s{sLB}, s{sLA}
    v_mul_lo_u32 v{vOt}, s{sT3}, v{t1}
    v_add_u32 v{vOt}, s{sLA}, v{vOt}
    v_mul_u32_u24 v{t2}, 4608, v{t2}
    v_add_u32 v{vOt}, v{vOt}, v{t2}
    v_lshl_add_u32 v{vOt}, v{t0}, 2, v{vOt}
    v_lshrrev_b32 v{t1}, 4, v0
    v_mul_u32_u24 v{vRd}, {RS}, v{t0}
    v_lshl_add_u32 v{vRd}, v{t1}, 4, v{vRd}
    s_cmp_eq_u32 s{sWv}, 3
    s_cselect_b32 s{sT3}, 4, s{sWv}
    s_mul_i32 s{sT3}, s{sT3}, {PLANE}
    v_add_u32 v{vRd}, s{sT3}, v{vRd}
    v_mul_u32_u24 v{vVa[0]}, 1152, v{t1}
    v_lshl_add_u32 v{vVa[0]}, v{t0}, 3, v{vVa[0]}
    v_add_u32 v{vVa[0]}, 1024, v{vVa[0]}
    v_add_u32 v{vVa[1]}, s{sLB}, v{vVa[0]}
    v_add_u32 v{vVa[0]}, s{sLA}, v{vVa[0]}
    s_lshl_b32 s{sT3}, s{sWv}, 2
    s_add_u32 s{sT3}, s{sT3}, {L_SYNC + 32}
    v_mov_b32 v{vSy}, s{sT3}""")
def p3_scal(a):
    a(f"""s_and_b32 s{sP3T}, s2, 7
    s_lshr_b32 s{sT0}, s2, 5
    s_lshl_b32 s{sT0}, s{sT0}, 3
    s_add_u32 s{sP3T}, s{sP3T}, s{sT0}
    s_lshr_b32 s{sP3C}, s2, 3
    s_and_b32 s{sP3C}, s{sP3C}, 3
    s_lshl_b32 s{sOb}, s{sP3T}, 6
    s_lshl_b32 s{sT3}, s{sWv}, 2
    s_add_u32 s{sOb}, s{sOb}, s{sT3}
    s_mul_i32 s{sOb}, s{sOb}, 1152
    s_add_u32 s{sOb}, s{sOb}, {WS_O}
    s_lshl_b32 s{sWmb}, s{sP3C}, 6
    s_add_u32 s{sWmb}, s{sWmb}, s{sT3}
    s_mul_i32 s{sWmb}, s{sWmb}, 4608
    s_add_u32 s{sWmb}, s{sWmb}, {WS_WOM}
    s_lshl_b32 s{sWtb}, s{sP3C}, 4
    s_add_u32 s{sWtb}, s{sWtb}, s{sWv}
    s_mul_i32 s{sWtb}, s{sWtb}, 2304
    s_add_u32 s{sWtb}, s{sWtb}, {WS_WOT}
    s_mul_i32 s{sLA}, s{sHH}, {RING}
    s_mul_i32 s{sT3}, s{sTH}, 9216
    s_add_u32 s{sLA}, s{sLA}, s{sT3}
    s_add_u32 s{sLA}, s{sLA}, {L_OA}
    s_mul_i32 s{sLB}, s{sWv}, 9216
    s_add_u32 s{sLB}, s{sLB}, {L_OB}""")
    for g in range(4):
        a(f"""s_add_u32 s{sT3}, s{sP3C}, {g}
        s_and_b32 s{sT3}, s{sT3}, 3
        s_mul_i32 s{sGO[g]}, s{sT3}, {16*1152}
        s_add_u32 s{sGO[g]}, s{sGO[g]}, s{sOb}
        s_mul_i32 s{sGW[g]}, s{sT3}, {16*4608}
        s_add_u32 s{sGW[g]}, s{sGW[g]}, s{sWmb}""")
def p3_wo_loads(a, cts, reg, vWm, vWt, steps=range(9)):
    for s in range(8):
        if s not in steps: continue
        a(f"s_add_u32 s{sT3}, s{sGW[s>>1]}, {2*(s&1)*4608 + 512*cts[0]}")
        for i, ct in enumerate(cts):
            a(f"buffer_load_dwordx4 {vr(reg(s,ct),4)}, v{vWm}, s[{sWS}:{sWS+3}], s{sT3} offen offset:{512*i} sc1")
    for ct in (cts if 8 in steps else []):
        a(f"buffer_load_dwordx4 {vr(reg(8,ct),4)}, v{vWt}, s[{sWS}:{sWS+3}], s{sWtb} offen offset:{256*ct} sc1")
def p3_oread(a, g, OF, vOm):
    for k in range(2):
        for th in range(2):
            a(f"ds_read_b128 {vr(OF+8*k+4*th,4)}, v{vOm[g>>1]} offset:{4608*(g&1) + 2304*k + 256*th}")
def p3_mf(a, cts, reg, AC, st, o):
    for i, ct in enumerate(cts):
        for th in range(2):
            d = AC + 8 * i + 4 * th
            a(f"v_mfma_f32_16x16x32_bf16 {vr(d,4)}, {vr(reg(st,ct),4)}, {vr(o+4*th,4)}, {vr(d,4)}")
def p3_tail(a, cts, reg, AC, OF, vOt, vRd):
    for th in range(2):
        for i in range(4):
            a(f"ds_read_b32 v{OF+4*th+i}, v{vOt} offset:{1152*i + 1024 + 64*th}")
    a("s_waitcnt lgkmcnt(0)")
    p3_mf(a, cts, reg, AC, 8, OF)
    sstamp(a, 5)
    a("s_nop 7")
    for i, ct in enumerate(cts):
        for th in range(2):
            a(f"ds_write_b128 v{vRd}, {vr(AC+8*i+4*th,4)} offset:{16*th*RS + 64*ct}")
def p3_helper(a, cts, reg, AC, OF, vOm, vOt, vRd, vL16, vVa, vSy, slp):
    L = "h3"
    sDone = sCnt
    def dma(g):
        lb = (sLA, sLB)[g >> 1]
        a(f"""s_add_u32 m0, s{lb}, {4608*(g&1)}
        s_add_u32 s{sT3}, s{sGO[g]}, 4096""")
        for i in range(4):
            a(f"buffer_load_dwordx4 v{vL16}, s[{sWS}:{sWS+3}], s{sGO[g]} offen offset:{1024*i} sc1 lds")
        a(f"""s_add_u32 m0, s{lb}, {4608*(g&1) + 4096}
        s_mov_b32 exec_hi, 0
        buffer_load_dwordx4 v{vL16}, s[{sWS}:{sWS+3}], s{sT3} offen sc1 lds
        s_mov_b64 exec, -1""")
    sFly, sLand, sTry, sBlk_ = sWk, sWcnt, sKo, sXb
    vH, vHa, vE4 = OF + 18, OF + 21, OF + 22
    a(f"""v_and_b32 v1, 3, v0
    v_mul_u32_u24 v{vHa}, 1152, v1
    v_bfe_u32 v1, v0, 2, 2
    v_add_u32 v1, s{sP3C}, v1
    v_and_b32 v1, 3, v1
    v_mul_u32_u24 v1, {16*1152}, v1
    v_add_u32 v{vHa}, v{vHa}, v1
    v_mov_b32 v{vE4}, {L_SYNC + 20}
    s_mov_b32 s{sSpin}, 60000
    s_mov_b32 s{sIt}, {SENT}
    s_mov_b32 s{sDone}, 0
    s_mov_b32 s{sFly}, 0
    s_mov_b32 s{sLand}, 0
    s_mov_b32 s{sBlk_}, 12
    {L}_round:
    s_mov_b64 exec, 0xffff
    buffer_load_dword v{vH}, v{vHa}, s[{sWS}:{sWS+3}], s{sOb} offen offset:1024 sc1
    s_mov_b64 exec, -1
    ds_read_b32 v1, v{vE4}
    s_cmp_eq_u32 s{sFly}, 0
    s_cbranch_scc1 {L}_nofly
    s_or_b32 s{sLand}, s{sLand}, s{sFly}
    s_waitcnt vmcnt(1)
    v_mov_b32 v{vH+1}, s{sLand}
    ds_write_b32 v{vSy}, v{vH+1}
    {L}_nofly:
    s_mov_b32 s{sTry}, s{sFly}
    s_waitcnt lgkmcnt(0)
    v_readfirstlane_b32 s{sT0}, v1
    s_cmp_ge_u32 s{sT0}, 4
    s_cselect_b32 s{sBlk_}, 0, s{sBlk_}
    s_or_b32 s{sT1}, s{sDone}, s{sTry}
    s_cmp_eq_u32 s{sT1}, 15
    s_mov_b32 s{sFly}, 0
    s_cbranch_scc1 {L}_work
    s_or_b32 s{sT1}, s{sT1}, s{sBlk_}
    s_waitcnt vmcnt(0)
    v_cmp_ne_u32 vcc, s{sIt}, v{vH}""")
    for g in range(4):
        a(f"""s_bitcmp1_b32 s{sT1}, {g}
        s_cbranch_scc1 {L}_l{g}
        s_bfe_u32 s{sT0}, vcc_lo, {(4 << 16) | (4 * g)}
        s_cmp_eq_u32 s{sT0}, 15
        s_cbranch_scc0 {L}_l{g}
        s_bitset1_b32 s{sFly}, {g}""")
        dma(g)
        a(f"{L}_l{g}:")
    a(f"{L}_work:")
    for g in range(4):
        a(f"""s_bitcmp1_b32 s{sTry}, {g}
        s_cbranch_scc0 {L}_n{g}""")
        p3_check(a, g, OF, vOm, vVa)
        a(f"""s_cbranch_vccnz {L}_n{g}
        s_bitset1_b32 s{sDone}, {g}""")
        stamp(a, 27 + g, SV)
        p3_mf(a, cts, reg, AC, 2 * g, OF)
        p3_mf(a, cts, reg, AC, 2 * g + 1, OF + 8)
        a(f"{L}_n{g}:")
    a(f"""s_cmp_eq_u32 s{sDone}, 15
    s_cbranch_scc1 {L}_done
    s_sub_u32 s{sSpin}, s{sSpin}, 1
    s_cmp_lt_i32 s{sSpin}, 0
    s_cbranch_scc1 {L}_done
    s_or_b32 s{sT0}, s{sFly}, s{sTry}
    s_cbranch_scc1 {L}_round
    s_sleep {slp}
    s_branch {L}_round
    {L}_done:
    s_waitcnt vmcnt(0)""")
    p3_tail(a, cts, reg, AC, OF, vOt, vRd)
def p3_check(a, g, OF, vOm, vVa):
    p3_oread(a, g, OF, vOm)
    a(f"""ds_read_b64 {vr(OF+16,2)}, v{vVa[g>>1]} offset:{4608*(g&1)}
    s_waitcnt lgkmcnt(3)
    v_max3_u32 v1, v{OF}, v{OF+1}, v{OF+2}
    v_max3_u32 v1, v{OF+3}, v{OF+4}, v1
    v_max3_u32 v1, v{OF+5}, v{OF+6}, v1
    s_waitcnt lgkmcnt(0)
    v_max3_u32 v1, v{OF+7}, v{OF+8}, v1
    v_max3_u32 v1, v{OF+9}, v{OF+10}, v1
    v_max3_u32 v1, v{OF+11}, v{OF+12}, v1
    v_max3_u32 v1, v{OF+13}, v{OF+14}, v1
    v_max3_u32 v1, v{OF+15}, v{OF+16}, v1
    v_max_u32 v1, v{OF+17}, v1
    v_cmp_eq_u32 vcc, s{sIt}, v1
    s_nop 1""")
def p3_comp(a, cts, reg, AC, OF, vOm, vOt, vRd, vSy, vVa):
    L = "c3"
    sDone = sCnt
    a(f"""s_mov_b32 s{sSpin}, 400000
    s_mov_b32 s{sIt}, {SENT}
    s_mov_b32 s{sDone}, 0
    s_waitcnt vmcnt(6)
    {L}_round:
    ds_read_b32 v1, v{vSy}
    s_waitcnt lgkmcnt(0)
    v_readfirstlane_b32 s{sT0}, v1
    s_andn2_b32 s{sT0}, s{sT0}, s{sDone}""")
    for g in range(4):
        a(f"""s_bitcmp1_b32 s{sT0}, {g}
        s_cbranch_scc0 {L}_n{g}""")
        p3_check(a, g, OF, vOm, vVa)
        a(f"""s_cbranch_vccnz {L}_n{g}
        s_bitset1_b32 s{sDone}, {g}""")
        p3_mf(a, cts, reg, AC, 2 * g, OF)
        p3_mf(a, cts, reg, AC, 2 * g + 1, OF + 8)
        a(f"{L}_n{g}:")
    a(f"""s_cmp_eq_u32 s{sDone}, 15
    s_cbranch_scc1 {L}_done
    s_sub_u32 s{sSpin}, s{sSpin}, 1
    s_cmp_lt_i32 s{sSpin}, 0
    s_cbranch_scc0 {L}_round
    {L}_done:""")
    p3_tail(a, cts, reg, AC, OF, vOt, vRd)

def kernel(a):
    K = "k"
    if OPT["stamp"]: a("s_memrealtime s[96:97]")
    a(f"""
    s_cmp_ge_u32 s2, 256
    s_cbranch_scc1 {K}_end
    s_load_dwordx4 s[56:59], s[0:1], 0
    s_load_dwordx2 s[60:61], s[0:1], 16
    s_load_dwordx4 s[64:67], s[0:1], 32
    s_load_dwordx4 s[68:71], s[0:1], 48
    s_load_dwordx4 s[72:75], s[0:1], 64
    v_lshrrev_b32 v1, 6, v0
    v_and_b32 v0, 63, v0
    s_lshr_b32 s{sT0}, s2, 3
    v_readfirstlane_b32 s{sW8}, v1
    s_and_b32 s{sT1}, s{sT0}, 3
    s_lshr_b32 s{sT2}, s{sT0}, 2
    s_and_b32 s{sE}, s2, 1
    s_lshl_b32 s{sE}, s{sE}, 2
    s_add_u32 s{sE}, s{sE}, s{sT1}
    s_and_b32 s{sPr}, s2, 6
    s_lshl_b32 s{sPr}, s{sPr}, 2
    s_add_u32 s{sPr}, s{sPr}, s{sT2}
    s_lshl_b32 s{sRot}, s{sT1}, 1
    s_add_u32 s{sRot}, s{sRot}, s{sT2}
    s_sub_u32 s{sT1}, s{sRot}, 9
    s_cmp_ge_u32 s{sRot}, 9
    s_cselect_b32 s{sRot}, s{sT1}, s{sRot}""")
    if OPT.get("rotmap"):
        tab = sum(int(ch) << (4 * i) for i, ch in enumerate(OPT["rotmap"]))
        a(f"""s_mov_b32 s52, {tab & 0xffffffff}
        s_mov_b32 s53, {tab >> 32}
        s_lshl_b32 s{sRot}, s{sRot}, 2
        s_lshr_b64 s[52:53], s[52:53], s{sRot}
        s_and_b32 s{sRot}, s52, 15""")
    a(f"""s_and_b32 s{sWv}, s{sW8}, 3
    s_lshr_b32 s{sHH}, s{sWv}, 1
    s_and_b32 s{sTH}, s{sWv}, 1
    s_lshl_b32 s{sBH}, s{sPr}, 1
    s_add_u32 s{sBH}, s{sBH}, s{sHH}
    s_mul_i32 s{sKVg}, s{sBH}, {KVH}
    s_waitcnt lgkmcnt(0)
    s_cmp_ge_u32 s{sPr}, 16
    s_cselect_b32 s58, s64, s58
    s_cselect_b32 s59, s65, s59
    s_cselect_b32 s60, s66, s60
    s_cselect_b32 s61, s67, s61""")
    srd(a, sW, 58, 59, 576 * 3456)
    srd(a, sX, 56, 57, 2048 * 1152)
    srd(a, sG, 68, 69, 1152)
    srd(a, sWS, 74, 75, WS_SIZE)
    srd(a, sOut, 70, 71, 2048 * 1152)
    srd(a, sD, 72, 73, 256)
    if OPT["txor"] == "1":
        a(f"s_and_b32 s{sTt}, s2, 2")
    else:
        a(f"s_mov_b32 s{sTt}, 0")
    a(f"""s_cmp_ge_u32 s{sW8}, 4
    s_cbranch_scc0 {K}_compute""")
    helper(a, K)
    a(f"{K}_compute:")
    compute(a, K)

def final_reduce(a, K, SVr):
    a(f"""s_lshl_b32 s{sT3}, s{sW8}, 6
    v_add_u32 v1, s{sT3}, v0
    s_mul_i32 s{sT0}, s{sP3T}, {32*1152}
    s_mul_i32 s{sT1}, s{sP3C}, 288
    s_add_u32 s{sT0}, s{sT0}, s{sT1}""")
    for r in range(2):
        a(f"""v_add_u32 v2, {512*r}, v1
        v_mul_u32_u24 v3, 3641, v2
        v_lshrrev_b32 v3, 16, v3
        v_mul_u32_u24 v4, 18, v3
        v_sub_u32 v4, v2, v4
        v_mul_u32_u24 v{6+r}, {RS}, v3
        v_lshl_add_u32 v{6+r}, v4, 5, v{6+r}
        v_add_u32 v{10+r}, {4*PLANE}, v{6+r}
        v_mul_u32_u24 v{8+r}, 1152, v3
        v_lshl_add_u32 v{8+r}, v4, 4, v{8+r}""")
    a("""s_waitcnt lgkmcnt(0)
    s_barrier""")
    for r in range(2):
        if r == 1:
            if OPT["stamp"]: a("s_waitcnt vmcnt(0)")
            stamp(a, 15, SVr)
            if OPT["stamp"]:
                for k in range(6): a(f"v_writelane_b32 v{SVr}, s{96+k}, {20+k}")
                a(f"s_sub_u32 s80, 60000, s{sSpin}\nv_writelane_b32 v{SVr}, s80, 26")
            stamp_out(a, SVr)
            a(f"""s_cmp_eq_u32 s{sW8}, 0
            s_cbranch_scc0 {K}_end""")
        b = 32 + 32 * r
        for w in range(4):
            for hf in range(2):
                if w < 3: a(f"ds_read_b128 {vr(b+8*w+4*hf,4)}, v{6+r} offset:{w*PLANE + 16*hf}")
                else: a(f"ds_read_b128 {vr(b+8*w+4*hf,4)}, v{10+r} offset:{16*hf}")
        a("s_waitcnt lgkmcnt(4)")
        for i in range(8): a(f"v_add_f32 v{b+i}, v{b+i}, v{b+8+i}")
        a("s_waitcnt lgkmcnt(0)")
        for i in range(8): a(f"v_add_f32 v{b+16+i}, v{b+16+i}, v{b+24+i}")
        for i in range(8): a(f"v_add_f32 v{b+i}, v{b+i}, v{b+16+i}")
        for i in range(4): a(f"v_cvt_pk_bf16_f32 v{b+8+i}, v{b+2*i}, v{b+2*i+1}")
        a(f"buffer_store_dwordx4 {vr(b+8,4)}, v{8+r}, s[{sOut}:{sOut+3}], s{sT0} offen {OPT.get('osc','')}")

def poll(a, lbl, ld, cond, slp):
    a(f"""s_mov_b32 s{sSpin}, 40000
    {lbl}:
    {ld}
    s_waitcnt vmcnt(0)""")
    cond()
    a(f"""s_cbranch_scc1 {lbl}_go
    s_sub_u32 s{sSpin}, s{sSpin}, 1
    s_cmp_eq_u32 s{sSpin}, 0
    s_cbranch_scc1 {lbl}_go
    s_sleep {slp}
    s_branch {lbl}
    {lbl}_go:""")

CL = [5, 6, 7]
def wo_lds_base(w): return (w >> 1) * RING + (w & 1) * 27648

def helper(a, K):
    RX = int(OPT["rx"])
    stamp(a, 0, SV)
    a(f"s_setprio {OPT.get('hprio', 2)}")
    vXs, vWs = [2, 3], [4, 5]
    vL16, vGr, vGw = 7, 8, 9
    t0, t1, t2, t3 = 10, 11, 12, 13
    vGv = 14
    WM = [sum(1 << L for L in range(64) if ((L & 15) ^ (((L >> 4) | (hi << 2)) << 1)) != 15) for hi in range(2)]
    sM0, sM1 = sEx, 64
    a(f"""v_lshrrev_b32 v{t0}, 4, v0
    v_lshlrev_b32 v{t1}, 1, v{t0}
    v_and_b32 v{t2}, 15, v0
    v_xor_b32 v{t1}, v{t1}, v{t2}
    v_mul_u32_u24 v{t0}, 3456, v{t0}""")
    for hi in range(2):
        if hi: a(f"v_xor_b32 v{t1}, 8, v{t1}")
        a(f"""v_mul_u32_u24 v{t2}, 52, v{t1}
        v_lshrrev_b32 v{t2}, 8, v{t2}
        v_mul_u32_u24 v{t2}, {1152-80}, v{t2}
        v_lshl_add_u32 v{t2}, v{t1}, 4, v{t2}
        v_add_u32 v{vWs[hi]}, v{t0}, v{t2}""")
    a(f"""v_lshlrev_b32 v{vL16}, 4, v0
    s_mul_i32 s{sT0}, s{sWv}, {16*3456}
    s_and_b32 s{sT1}, s{sPr}, 15
    s_mul_i32 s{sT1}, s{sT1}, 72
    s_add_u32 s{sWsrc}, s{sT0}, s{sT1}
    s_mul_i32 s{sWk}, s{sRot}, {64*3456}
    s_add_u32 s{sWcnt}, s{sWsrc}, s{sWk}
    s_lshl_b32 s{sWm0}, s{sWv}, 12
    s_lshl_b32 s{sT2}, s{sWv}, 11
    s_add_u32 s{sT2}, s{sT2}, {L_GT}
    s_mov_b32 s{sM0}, {WM[0] & 0xffffffff}
    s_mov_b32 s{sM0+1}, {WM[0] >> 32}
    s_mov_b32 s{sM1}, {WM[1] & 0xffffffff}
    s_mov_b32 s{sM1+1}, {WM[1] >> 32}""")
    def wdma2(hi):
        m = (sM0, sM1)[hi]
        a(f"""s_add_u32 m0, s{sWm0}, {L_WR + hi*2048}
        s_add_u32 s{sT0}, s{sWcnt}, {hi*8*3456}
        s_add_u32 s{sT1}, s{sWcnt}, {hi*8*3456 + 4*3456 - 1024}
        s_mov_b64 exec, s[{m}:{m+1}]
        buffer_load_dwordx4 v{vWs[hi]}, s[{sW}:{sW+3}], s{sT0} offen lds
        buffer_load_dwordx4 v{vWs[hi]}, s[{sW}:{sW+3}], s{sT1} offen offset:1024 lds
        s_mov_b64 exec, -1""")
    def wnext():
        a(f"""s_add_u32 s{sWk}, s{sWk}, {64*3456}
        s_cmp_ge_u32 s{sWk}, {576*3456}
        s_cselect_b32 s{sWk}, 0, s{sWk}
        s_add_u32 s{sWcnt}, s{sWsrc}, s{sWk}
        s_add_u32 s{sWm0}, s{sWm0}, {WSL}
        s_sub_u32 s{sT0}, s{sWm0}, {RW*WSL}
        s_cmp_ge_u32 s{sWm0}, {RW*WSL}
        s_cselect_b32 s{sWm0}, s{sT0}, s{sWm0}""")
    order = []
    a(f"""s_mov_b32 m0, s{sT2}
    s_nop 0
    buffer_load_dwordx4 v{vL16}, s[{sG}:{sG+3}], 0 offen lds
    s_mov_b64 exec, 0xff
    buffer_load_dwordx4 v{vL16}, s[{sG}:{sG+3}], 0 offen offset:1024 lds
    s_mov_b64 exec, -1""")
    order += ["G"] * 2
    wdma2(0); wdma2(1)
    order += ["W0"] * 4
    wnext()
    a(f"""v_lshrrev_b32 v{t0}, 3, v0
    v_mul_u32_u24 v{t0}, 1152, v{t0}
    v_and_b32 v{t1}, 7, v0
    v_lshrrev_b32 v{t2}, 4, v0
    v_xor_b32 v{t1}, v{t1}, v{t2}
    v_lshlrev_b32 v{t1}, 4, v{t1}
    v_xor_b32 v{t2}, 64, v{t1}
    v_add_u32 v{vXs[0]}, v{t0}, v{t1}
    v_add_u32 v{vXs[1]}, v{t0}, v{t2}
    v_add_u32 v{vXs[1]}, {8*1152-1024}, v{vXs[1]}
    s_lshl_b32 s{sXb}, s{sE}, 4
    s_lshl_b32 s{sT0}, s{sHH}, 3
    s_add_u32 s{sXb}, s{sXb}, s{sT0}
    s_add_u32 s{sXb}, s{sXb}, s{sTH}
    s_mul_i32 s{sXb}, s{sXb}, {16*1152}
    s_lshl_b32 s{sKo}, s{sRot}, 7
    s_lshl_b32 s{sRing}, s{sWv}, 11
    s_add_u32 s{sRing}, s{sRing}, {L_XR}
    s_add_u32 s{sRef}, s{sXb}, s{sKo}
    s_mov_b32 s{sXm0}, s{sRing}""")
    sTo = [56, 57, 58, 59]
    for tt in range(4):
        a(f"""s_xor_b32 s{sTo[tt]}, s{sTt}, {tt}
        s_mul_i32 s{sTo[tt]}, s{sTo[tt]}, {32*1152}""")
    xstate = [0]
    def xnext():
        a(f"""s_add_u32 s{sKo}, s{sKo}, 128
        s_cmp_ge_u32 s{sKo}, 1152
        s_cselect_b32 s{sKo}, 0, s{sKo}
        s_add_u32 s{sRef}, s{sXb}, s{sKo}""")
    def xdma(j):
        tt = j & 3
        if tt == 0 and j: xnext()
        a(f"""s_mov_b32 m0, s{sXm0}
        s_add_u32 s{sT0}, s{sRef}, s{sTo[tt]}
        buffer_load_dwordx4 v{vXs[0]}, s[{sX}:{sX+3}], s{sT0} offen lds
        buffer_load_dwordx4 v{vXs[1]}, s[{sX}:{sX+3}], s{sT0} offen offset:1024 lds
        s_add_u32 s{sXm0}, s{sXm0}, 8192
        s_cmp_ge_u32 s{sXm0}, {L_XR + RX*8192}
        s_cselect_b32 s{sXm0}, s{sRing}, s{sXm0}""")
    xdma(0); xdma(1)
    order += ["X0"] * 2 + ["X1"] * 2
    stamp(a, 16, SV)
    srd(a, sWo, 60, 61, 576 * 1152)
    a(f"""s_lshl_b32 s{sT0}, s{sWv}, 5
    s_add_u32 s{sT0}, s{sT0}, s{sT2}
    v_lshl_add_u32 v{vGr}, v0, 1, s{sT0}
    v_and_b32 v{t1}, 3, v0
    v_lshlrev_b32 v{t1}, 1, v{t1}
    v_and_b32 v{t2}, 8, v0
    v_or_b32 v{t1}, v{t1}, v{t2}
    v_xor_b32 v{t1}, 15, v{t1}
    v_lshlrev_b32 v{t1}, 4, v{t1}
    v_lshl_add_u32 v{t1}, v0, 8, v{t1}
    s_lshl_b32 s{sGk}, s{sRot}, 7
    v_mov_b32 v{t0}, {L_SYNC}
    v_mov_b32 v20, 0
    v_mov_b32 v21, 0
    v_mov_b32 v22, 0
    v_mov_b32 v23, 0
    ds_write_b128 v{t0}, v[20:23]
    ds_write_b128 v{t0}, v[20:23] offset:16
    ds_write_b128 v{t0}, v[20:23] offset:32""")
    def gate(slotreg):
        a(f"""v_add_u32 v{t0}, s{sGk}, v{vGr}
        s_mov_b64 exec, 0xffff
        ds_read_u16 v{vGv}, v{t0}
        v_add_u32 v{t0}, s{slotreg}, v{t1}
        s_add_u32 s{sGk}, s{sGk}, 128
        s_cmp_ge_u32 s{sGk}, 1152
        s_cselect_b32 s{sGk}, 0, s{sGk}
        s_waitcnt lgkmcnt(0)
        ds_write2_b32 v{t0}, v{vGv}, v{vGv} offset0:0 offset1:1
        s_mov_b64 exec, -1""")
    a(f"""s_sub_u32 s{sT3}, s{sWm0}, {WSL}
    s_waitcnt vmcnt(8)""")
    stamp(a, 17, SV)
    gate(sT3); gate(sWm0)
    a("""s_waitcnt vmcnt(2) lgkmcnt(0)
    s_barrier""")
    stamp(a, 1, SV)
    xdma(2)
    wdma2(0); wdma2(1)
    wnext()
    order += ["X2"] * 2 + ["W1"] * 4
    for j in range(3, RX - 1):
        xdma(j); order += [f"X{j}"] * 2
    stamp(a, 18, SV)
    a(f"""s_mov_b32 s{sIt}, 0
    {K}_hl:""")
    for tt in (0, 2):
        a(f"""s_waitcnt vmcnt(@W{tt}@) lgkmcnt(0)
        s_barrier""")
        if not OPT.get("noh"):
            wdma2(tt >> 1)
            xdma(tt + RX - 1); xdma(tt + RX)
            if tt == 0: gate(sWm0)
    wnext()
    a(f"""s_add_u32 s{sIt}, s{sIt}, 1
    s_cmp_lt_u32 s{sIt}, 7
    s_cbranch_scc1 {K}_hl""")
    need = {0: 99, 2: 99}
    for j in range(0, 36, 2):
        req = [f"X{min(j+2,35)}"]
        if j % 4 == 2 and j // 4 + 1 <= 8: req.append(f"W{j//4+1}")
        last = max(i for i, o in enumerate(order) if o in req)
        n_ = len(order) - 1 - last
        if j < 28:
            need[j % 4] = min(need[j % 4], n_)
            order += [f"W{j//4+2}"] * 2 + [f"X{j+RX-1}"] * 2 + [f"X{j+RX}"] * 2
        else:
            a(f"""s_waitcnt vmcnt({n_})
            s_barrier""")
            for jj in (j + RX - 1, j + RX):
                if jj <= 35:
                    xdma(jj); order += [f"X{jj}"] * 2
    for i in (0, 2): a.l = [x.replace(f"@W{i}@", str(need[i])) for x in a.l]
    stamp(a, 2, SV)
    sPH, sPC = sWsrc, sWm0
    vWos = 6
    a(f"""s_lshl_b32 s{sPH}, s{sPr}, 1
    s_and_b32 s{sT0}, s{sE}, 1
    s_add_u32 s{sPH}, s{sPH}, s{sT0}
    s_lshr_b32 s{sPC}, s{sE}, 1
    v_mul_u32_u24 v{t0}, 57, v0
    v_lshrrev_b32 v{t0}, 10, v{t0}
    v_mul_u32_u24 v{t1}, 18, v{t0}
    v_sub_u32 v{t1}, v0, v{t1}
    v_lshlrev_b32 v{t1}, 4, v{t1}
    s_lshl_b32 s{sT0}, s{sT0}, 1
    s_mul_i32 s{sT1}, s{sWv}, 3
    s_add_u32 s{sT0}, s{sT0}, s{sT1}
    v_add_u32 v{t0}, s{sT0}, v{t0}
    v_mul_u32_u24 v{vWos}, 1152, v{t0}
    v_add_u32 v{vWos}, v{vWos}, v{t1}
    v_cmp_le_u32 vcc, 6, v{t0}
    v_add_u32 v{t2}, {12*1152}, v{vWos}
    v_subrev_u32 v{t3}, {6*1152}, v{vWos}
    v_cndmask_b32 v{t2}, v{t2}, v{t3}, vcc
    s_and_b32 s{sT0}, s{sPH}, 31
    s_mul_i32 s{sT0}, s{sT0}, {18*1152}
    s_mul_i32 s{sT1}, s{sPC}, 288
    s_add_u32 s{sT0}, s{sT0}, s{sT1}
    s_mul_i32 s{sT1}, s{sWv}, 864
    s_add_u32 m0, s{sT1}, {L_WO}
    s_mov_b32 exec_hi, 0x003fffff
    buffer_load_dwordx4 v{vWos}, s[{sWo}:{sWo+3}], s{sT0} offen lds
    s_add_u32 m0, s{sT1}, {L_WO + 4*864}
    s_nop 0
    buffer_load_dwordx4 v{t2}, s[{sWo}:{sWo+3}], s{sT0} offen lds
    s_mov_b64 exec, -1""")
    sQ = sGk
    vP, vPa, vSy, vOne, vFa = 20, 17, 18, 19, 16
    a(f"""s_mul_i32 s{sRing}, s{sHH}, {RING}
    s_mul_i32 s{sT2}, s{sTH}, 5120
    s_add_u32 s{sT0}, s{sRing}, s{sT2}
    v_add_u32 v{t0}, s{sT0}, v{vL16}
    s_mul_i32 s{sT1}, s{sE}, {2*BLK}
    s_add_u32 s{sT1}, s{sT1}, s{sKVg}
    s_add_u32 s{sT1}, s{sT1}, s{sT2}
    s_mov_b32 s{sQ}, s{sTH}
    s_lshl_b32 s{sT0}, s{sPr}, 2
    v_mov_b32 v{vPa}, s{sT0}
    s_lshl_b32 s{sT0}, s{sPr}, 12
    s_lshl_b32 s{sT3}, s{sHH}, 7
    s_add_u32 s{sT0}, s{sT0}, s{sT3}
    s_add_u32 s{sT0}, s{sT0}, {WS_F}
    v_and_b32 v{vFa}, 1, v0
    v_lshl_add_u32 v{vFa}, v{vFa}, 2, s{sT0}
    v_lshrrev_b32 v{vP}, 1, v0
    v_lshl_add_u32 v{vFa}, v{vP}, 8, v{vFa}
    v_mov_b32 v{vSy}, {L_SYNC}
    v_mov_b32 v{vOne}, 1
    s_cmp_eq_u32 s{sTH}, 1
    s_cselect_b32 s{sM0}, 0xffff, -1
    s_cselect_b32 s{sM0+1}, 0, -1
    s_mov_b64 exec, 1
    buffer_load_dword v{vP+1}, v{vPa}, s[{sD}:{sD+3}], 0 offen sc1
    s_mov_b64 exec, -1
    s_barrier""")
    stamp(a, 3, SV)
    for i in range(5): a(f"ds_read_b128 {vr(32+4*i,4)}, v{t0} offset:{1024*i}")
    a(f"s_mov_b32 s{sXb}, s{sT1}")
    def publish(ph):
        for i in range(5 * ph, 5 * ph + 5):
            if i % 5 == 4: a(f"""s_add_u32 s{sXb}, s{sXb}, 4096
            s_mov_b64 exec, s[{sM0}:{sM0+1}]""")
            if ph == 0: a(f"s_waitcnt lgkmcnt({4-i})")
            a(f"buffer_store_dwordx4 {vr(32+4*i,4)}, v{vL16}, s[{sWS}:{sWS+3}], s{sXb} offen offset:{1024*((i%5)%4)} sc1")
            if i % 5 == 4: a(f"""s_mov_b64 exec, -1
            s_add_u32 s{sXb}, s{sXb}, {BLK-4096}""")
    publish(0)
    a("s_barrier")
    for i in range(5, 10): a(f"ds_read_b128 {vr(32+4*i,4)}, v{t0} offset:{BLK + 1024*(i-5)}")
    def arrive(word, vm=0):
        a(f"""s_mov_b64 exec, 1
        s_waitcnt vmcnt({vm})
        ds_add_rtn_u32 v{vP}, v{vSy}, v{vOne} offset:{4*word}
        s_waitcnt lgkmcnt(0)
        v_readfirstlane_b32 s{sT1}, v{vP}
        s_mov_b64 exec, -1
        s_cmp_eq_u32 s{sT1}, 3""")
    def lds_wait(lbl, word):
        a(f"""s_mov_b32 s{sSpin}, 400000
        {lbl}:
        ds_read_b32 v{vP}, v{vSy} offset:{4*word}
        s_waitcnt lgkmcnt(0)
        v_readfirstlane_b32 s{sT1}, v{vP}
        s_cmp_lg_u32 s{sT1}, 0
        s_cbranch_scc1 {lbl}_go
        s_sub_u32 s{sSpin}, s{sSpin}, 1
        s_cmp_eq_u32 s{sSpin}, 0
        s_cbranch_scc1 {lbl}_go
        s_sleep 1
        s_branch {lbl}
        {lbl}_go:""")
    def flag(off, vm):
        a(f"""s_lshl_b32 s{sT0}, s{sE}, 8
        s_lshl_b32 s{sT1}, s{sTH}, 2
        s_add_u32 s{sT0}, s{sT0}, s{sT1}
        s_mov_b64 exec, 1
        s_waitcnt vmcnt({vm})
        buffer_store_dword v{vOne}, v{vFa}, s[{sWS}:{sWS+3}], s{sT0} offen offset:{off} sc1
        s_mov_b64 exec, -1""")
    flag(0, 0)
    stamp(a, 4, SV)
    def rst_ok(r):
        a(f"""v_readfirstlane_b32 s{sT0}, v{r}
        s_and_b32 s{sT0}, s{sT0}, 0xff
        s_cmp_ge_u32 s{sT0}, 8""")
    def kv_ready():
        a(f"""v_cmp_eq_u32 vcc, 1, v{vP}
        s_nop 1
        s_cmp_eq_u32 vcc_lo, 0xffff""")
    a("s_mov_b64 exec, 1")
    rst_ok(vP + 1)
    a(f"s_cbranch_scc1 {K}_pl0_go")
    poll(a, f"{K}_pl0", f"buffer_load_dword v{vP}, v{vPa}, s[{sD}:{sD+3}], 0 offen sc1", lambda: rst_ok(vP), 8)
    a(f"""s_add_u32 s{sT2}, s{sTH}, 1
    s_xor_b32 s{sT2}, s{sT2}, s{sE}
    s_lshl_b32 s{sT2}, s{sT2}, 8
    s_mov_b64 exec, 3
    s_mov_b32 s{sSpin}, 40000
    buffer_load_dword v{vP}, v{vFa}, s[{sWS}:{sWS+3}], s{sT2} offen sc1
    s_sleep {OPT.get("fslp", 4)}
    buffer_load_dword v{vP+1}, v{vFa}, s[{sWS}:{sWS+3}], s{sT2} offen sc1
    s_sleep {OPT.get("fslp", 4)}
    {K}_pl1:""")
    for r_ in range(3):
        a(f"""buffer_load_dword v{vP+(r_+2)%3}, v{vFa}, s[{sWS}:{sWS+3}], s{sT2} offen sc1
        s_waitcnt vmcnt(2)
        v_cmp_eq_u32 vcc, 1, v{vP+r_}
        s_nop 1
        s_cmp_eq_u32 vcc_lo, 3
        s_cbranch_scc1 {K}_kgo""")
    a(f"""s_sub_u32 s{sSpin}, s{sSpin}, 1
    s_cmp_lg_u32 s{sSpin}, 0
    s_cbranch_scc1 {K}_pl1
    {K}_kgo:
    s_mov_b64 exec, -1""")
    stamp(a, 5, SV)
    def ldblock():
        a(f"s_call_b64 s[{sRet}:{sRet+1}], {K}_ldblk")
    ldblock()
    a("s_waitcnt lgkmcnt(0)")
    publish(1)
    a("s_waitcnt vmcnt(5)")
    stamp(a, 6, SV)
    a("s_barrier")
    flag(2048, 0)
    a("s_mov_b64 exec, 0xffff")
    poll(a, f"{K}_pl1a", f"buffer_load_dword v{vP}, v{vFa}, s[{sWS}:{sWS+3}], 0 offen sc1", kv_ready, 2)
    a("s_mov_b64 exec, -1")
    ldblock(); ldblock()
    a("s_waitcnt vmcnt(0)")
    stamp(a, 7, SV)
    a("s_barrier")
    a("s_mov_b64 exec, 0xffff")
    poll(a, f"{K}_pl1b", f"buffer_load_dword v{vP}, v{vFa}, s[{sWS}:{sWS+3}], 0 offen offset:2048 sc1", kv_ready, 2)
    a("s_mov_b64 exec, -1")
    ldblock(); ldblock()
    a(f"""v_bfe_u32 v{t0}, v0, 2, 3
    v_mul_u32_u24 v{t0}, 288, v{t0}
    v_and_b32 v{t1}, 3, v0
    v_lshlrev_b32 v{t1}, 3, v{t1}
    v_add_u32 v{t1}, {L_WO}, v{t1}
    v_and_b32 v{t2}, 32, v0
    v_add3_u32 v{t0}, v{t0}, v{t1}, v{t2}
    s_lshl_b32 s{sT0}, s{sWv}, 6
    v_add_u32 v{t2}, s{sT0}, v{t0}
    ds_read_b64_tr_b16 {vr(64,2)}, v{t2}
    ds_read_b64_tr_b16 {vr(66,2)}, v{t2} offset:2304
    ds_read_b64_tr_b16 {vr(68,2)}, v{t0} offset:256
    ds_read_b64_tr_b16 {vr(70,2)}, v{t0} offset:{256+2304}
    v_bfe_u32 v{t0}, v0, 2, 2
    v_mul_u32_u24 v{t0}, 288, v{t0}
    v_lshrrev_b32 v{t2}, 4, v0
    v_lshlrev_b32 v{t2}, 5, v{t2}
    v_add3_u32 v{t0}, v{t0}, v{t1}, v{t2}
    s_lshl_b32 s{sT0}, s{sWv}, 7
    v_add_u32 v{t0}, s{sT0}, v{t0}
    ds_read_b64_tr_b16 {vr(72,2)}, v{t0} offset:{16*288-128}
    s_lshl_b32 s{sT0}, s{sPC}, 6
    s_add_u32 s{sT0}, s{sT0}, s{sPH}
    s_mul_i32 s{sT0}, s{sT0}, 4608
    s_add_u32 s{sT0}, s{sT0}, {WS_WOM}
    s_lshl_b32 s{sT1}, s{sWv}, 10
    s_add_u32 s{sT1}, s{sT1}, s{sT0}
    s_lshl_b32 s{sT2}, s{sPC}, 4
    s_lshr_b32 s{sT3}, s{sPH}, 2
    s_add_u32 s{sT2}, s{sT2}, s{sT3}
    s_mul_i32 s{sT2}, s{sT2}, 2304
    s_and_b32 s{sT3}, s{sPH}, 3
    s_lshl_b32 s{sT3}, s{sT3}, 2
    s_add_u32 s{sT2}, s{sT2}, s{sT3}
    s_lshl_b32 s{sT3}, s{sWv}, 10
    s_add_u32 s{sT2}, s{sT2}, s{sT3}
    s_add_u32 s{sT2}, s{sT2}, {WS_WOT - 1024}
    s_waitcnt lgkmcnt(0)
    buffer_store_dwordx4 {vr(64,4)}, v{vL16}, s[{sWS}:{sWS+3}], s{sT1} offen sc1
    s_cmp_eq_u32 s{sWv}, 0
    s_cbranch_scc0 {K}_wo_tail
    s_mov_b32 exec_hi, 0
    s_add_u32 s{sT3}, s{sT0}, 4096
    buffer_store_dwordx4 {vr(68,4)}, v{vL16}, s[{sWS}:{sWS+3}], s{sT3} offen sc1
    s_branch {K}_wo_done
    {K}_wo_tail:
    s_cmp_eq_u32 s{sWv}, 3
    s_cselect_b32 exec_lo, 0xffff, -1
    s_cselect_b32 exec_hi, 0, -1
    buffer_store_dword v72, v{vL16}, s[{sWS}:{sWS+3}], s{sT2} offen sc1
    {K}_wo_done:
    s_mov_b64 exec, -1""")
    a(f"""v_mov_b32 v32, {SENT}
    v_mov_b32 v33, {SENT}
    v_mov_b32 v34, {SENT}
    v_mov_b32 v35, {SENT}
    s_lshl_b32 s{sT1}, s{sE}, 1
    s_add_u32 s{sT1}, s{sT1}, s{sTH}
    s_lshl_b32 s{sT1}, s{sT1}, 8
    s_add_u32 s{sT1}, s{sT1}, s{sBH}
    s_mul_i32 s{sT1}, s{sT1}, 1152
    s_add_u32 s{sT1}, s{sT1}, {WS_O}""")
    for x in range(4):
        a(f"""buffer_store_dwordx4 v[32:35], v{vL16}, s[{sWS}:{sWS+3}], s{sT1} offen sc1
        s_mov_b64 exec, 0xff
        buffer_store_dwordx4 v[32:35], v{vL16}, s[{sWS}:{sWS+3}], s{sT1} offen offset:1024 sc1
        s_mov_b64 exec, -1
        s_add_u32 s{sT1}, s{sT1}, {64*1152}""")
    arrive(1)
    a(f"""s_cbranch_scc0 {K}_sg2
    s_mov_b64 exec, 1
    v_mov_b32 v{vP}, 0x100
    buffer_atomic_add v{vP}, v{vPa}, s[{sD}:{sD+3}], 0 offen
    s_mov_b64 exec, -1
    {K}_sg2:""")
    p3_scal(a)
    vOm, vOt, vWm, vWt, vRd = [2, 252], 3, 4, 5, 6
    vVa3, vSy3 = [248, 253], 251
    p3_addr_w(a, vWm, vWt, t0, t1, t2)
    p3_addr_o(a, vOm, vOt, vRd, vVa3, vSy3, t0, t1, t2)
    a("s_barrier")
    ldblock(); ldblock()
    stamp(a, 12, SV)
    a(f"""s_cmp_eq_u32 s{sWv}, 0
    s_cbranch_scc0 {K}_gw
    v_lshlrev_b32 v{t0}, 2, v0
    s_mov_b32 exec_hi, 0""")
    def all_init():
        a(f"""v_bfe_u32 v{vP}, v{vP}, 8, 8
        v_cmp_le_u32 vcc, 8, v{vP}
        s_nop 1
        s_cmp_eq_u32 vcc_lo, -1""")
    poll(a, f"{K}_pl2", f"buffer_load_dword v{vP}, v{t0}, s[{sD}:{sD+3}], 0 offen sc1", all_init, 32)
    a(f"""ds_write_b32 v{vSy}, v{vOne} offset:12
    s_mov_b64 exec, -1
    s_branch {K}_ggo
    {K}_gw:""")
    lds_wait(f"{K}_lw2", 3)
    a(f"{K}_ggo:")
    HC = [0, 1, 2, 3, 4]
    HWB, HAC, HOF = 8, 188, 228
    hreg = lambda s, ct: HWB + 4 * (5 * s + ct)
    p3_wo_loads(a, HC, hreg, vWm, vWt)
    a("s_waitcnt vmcnt(45)")
    stamp(a, 8, SV)
    a("s_barrier")
    p3_wo_loads(a, [8], lambda s, ct: HAC + 4 * s, vWm, vWt)
    a(f"""s_mul_i32 s{sT0}, s{sTH}, 27648
    s_add_u32 s{sT0}, s{sT0}, s{sRing}
    s_barrier""")
    for s in range(9):
        for i, ct in enumerate(CL):
            n = 3 * s + i
            if s < 8:
                a(f"""s_add_u32 m0, s{sT0}, {1024*n}
                s_add_u32 s{sT3}, s{sGW[s>>1]}, {2*(s&1)*4608 + 512*ct}
                buffer_load_dwordx4 v{vWm}, s[{sWS}:{sWS+3}], s{sT3} offen sc1 lds""")
            else:
                a(f"""s_add_u32 m0, s{sT0}, {1024*n}
                s_add_u32 s{sT3}, s{sWtb}, {256*ct}
                buffer_load_dwordx4 v{vWt}, s[{sWS}:{sWS+3}], s{sT3} offen sc1 lds""")
    a(f"""s_mul_i32 s{sT0}, s{sP3T}, {32*1152}
    buffer_load_dword v1, v{vL16}, s[{sOut}:{sOut+3}], s{sT0} offen
    s_waitcnt vmcnt(0)""")
    stamp(a, 9, SV)
    for i in range(40): a(f"v_mov_b32 v{HAC+i}, 0")
    a("s_barrier")
    stamp(a, 10, SV)
    p3_helper(a, HC, hreg, HAC, HOF, vOm, vOt, vRd, vL16, vVa3, vSy3, int(OPT.get("hslp", 1)))
    stamp(a, 11, SV)
    if OPT["stamp"]: a(f"v_mov_b32 v30, v{SV}\nv_mov_b32 v31, v{SV+1}")
    a(f"s_branch {K}_final")
    a(f"""{K}_ldblk:
    s_add_u32 s{sQ}, s{sQ}, 2
    s_cmp_ge_u32 s{sQ}, 9
    s_cselect_b32 s{sT0}, 0, 7
    s_cselect_b32 s{sT2}, 1, 0
    s_add_u32 s{sT0}, s{sT0}, s{sQ}
    s_and_b32 s{sT0}, s{sT0}, 7
    s_xor_b32 s{sT0}, s{sT0}, s{sE}
    s_lshl_b32 s{sT0}, s{sT0}, 1
    s_add_u32 s{sT0}, s{sT0}, s{sT2}
    s_mul_i32 s{sT1}, s{sT0}, {BLK}
    s_add_u32 s{sT1}, s{sT1}, s{sKVg}
    s_and_b32 s{sT0}, s{sQ}, 7
    s_mul_i32 s{sT0}, s{sT0}, {BLK}
    s_add_u32 s{sT0}, s{sT0}, s{sRing}""")
    for i in range(10):
        if i % 4 == 0:
            a(f"""s_add_u32 m0, s{sT0}, {1024*i}
            s_add_u32 s{sT2}, s{sT1}, {1024*i}""")
        if i == 9: a("s_mov_b64 exec, 0xffff")
        a(f"buffer_load_dwordx4 v{vL16}, s[{sWS}:{sWS+3}], s{sT2} offen offset:{1024*(i%4)} sc1 lds")
    a(f"""s_mov_b64 exec, -1
    s_setpc_b64 s[{sRet}:{sRet+1}]""")

def compute(a, K):
    RX = int(OPT["rx"])
    stamp(a, 0, 30)
    vXr = [2, 3, 20, 21]
    vWc = [4, 5, 9, 1]
    t0, t1, t2, t3, t4, t5 = 64, 65, 66, 67, 68, 69
    WF = 32
    XF = [96, 112]
    ACC = 128
    def reset_flags():
        a(f"""s_cmp_eq_u32 s{sWv}, 0
        s_cselect_b32 s{sCnt}, {OPT.get("rstit", 4)}, 100
        s_cbranch_scc0 {K}_norst
        s_lshl_b32 s{sT0}, s{sPr}, 12
        s_lshl_b32 s{sT1}, s{sE}, 8
        s_add_u32 s{sT0}, s{sT0}, s{sT1}
        s_add_u32 s{sT0}, s{sT0}, {WS_F}
        v_lshlrev_b32 v75, 7, v0
        v_mov_b32 v76, 0
        v_mov_b32 v77, 0
        s_mov_b64 exec, 3
        buffer_store_dwordx2 v[76:77], v75, s[{sWS}:{sWS+3}], s{sT0} offen sc1
        buffer_store_dwordx2 v[76:77], v75, s[{sWS}:{sWS+3}], s{sT0} offen offset:2048 sc1""")
        if OPT.get("touch", "1") == "1":
            a(f"""s_mov_b64 exec, 1
            buffer_load_dword v78, v75, s[{sWS}:{sWS+3}], s{sKVg} offen
            s_add_u32 s{sT0}, s{sKVg}, {2*KVH-128}
            buffer_load_dword v79, v75, s[{sWS}:{sWS+3}], s{sT0} offen""")
        a(f"""s_mov_b64 exec, -1
        {K}_norst:""")
    a(f"v_mov_b32 v{ACC}, 0")
    if OPT.get("rstpos", "late") == "start": reset_flags()
    a(f"""v_and_b32 v{t0}, 15, v0
    v_lshrrev_b32 v{t1}, 4, v0
    v_bfe_u32 v{t2}, v0, 1, 3
    v_xor_b32 v{t2}, v{t2}, v{t1}
    v_lshlrev_b32 v{t2}, 4, v{t2}
    v_lshlrev_b32 v{t3}, 7, v{t0}
    s_lshl_b32 s{sT0}, s{sTH}, 12
    s_lshl_b32 s{sT1}, s{sHH}, 11
    s_add_u32 s{sT0}, s{sT0}, s{sT1}
    s_add_u32 s{sT0}, s{sT0}, {L_XR}
    v_add_u32 v{t3}, s{sT0}, v{t3}
    v_add_u32 v{vXr[0]}, v{t3}, v{t2}
    v_xor_b32 v{t2}, 64, v{t2}
    v_add_u32 v{vXr[1]}, v{t3}, v{t2}
    v_xor_b32 v{vXr[2]}, 2048, v{vXr[0]}
    v_xor_b32 v{vXr[3]}, 2048, v{vXr[1]}
    v_bfe_u32 v{t2}, v0, 2, 2
    v_lshl_add_u32 v{t2}, v{t1}, 3, v{t2}
    v_lshlrev_b32 v{t2}, 8, v{t2}
    v_bfe_u32 v{t4}, v0, 2, 3
    v_lshlrev_b32 v{t4}, 5, v{t4}
    v_and_b32 v{t3}, 3, v0
    v_lshlrev_b32 v{t3}, 3, v{t3}
    s_mul_i32 s{sT1}, s{sHH}, 40
    s_mov_b32 s{sT0}, {192 | (112 << 8) | (32 << 16) | (240 << 24)}
    v_lshrrev_b32 v{t5}, v{t3}, s{sT0}
    v_and_b32 v{t5}, 0xff, v{t5}
    v_xor_b32 v{t5}, v{t5}, v{t4}
    v_add_u32 v{vWc[3]}, v{t2}, v{t5}
    v_add_u32 v{t3}, s{sT1}, v{t3}""")
    for ct, off in enumerate((80, 0, 160)):
        a(f"""v_add_u32 v{t5}, {off}, v{t3}
        v_xor_b32 v{t5}, v{t5}, v{t4}
        v_add_u32 v{vWc[ct]}, v{t2}, v{t5}""")
    for i in range(1, 128):
        if i % 32 < 28: a(f"v_mov_b32 v{ACC+i}, 0")
    vKa, vTa, vVa, vIdx = 6, 7, 8, 10
    vKw, vQw, vVw, vMul, vSq, vSqh = 11, 12, 13, 24, 25, 19
    vSt, vStt, vWm3, vWt, vCp, vOnes, vQr = 14, 15, 16, 17, 18, 22, 23
    vM0, vDs, vDt, vDe, vDh = 70, 71, 72, 73, 74
    MA = lambda tt, i: ACC + 32 * tt + 28 + i
    sBlk, sScr = sXb, sKo
    a(f"""s_mul_i32 s{sRing}, s{sHH}, {RING}
    s_mul_i32 s{sBlk}, s{sTH}, {BLK}
    s_add_u32 s{sBlk}, s{sBlk}, s{sRing}
    s_mul_i32 s{sScr}, s{sWv}, 5120
    s_add_u32 s{sScr}, s{sScr}, {L_SCR}
    v_lshrrev_b32 v{t2}, 2, v{t0}
    v_and_b32 v{t3}, 3, v0
    v_lshl_add_u32 v{t4}, v{t2}, 3, v{t3}
    v_lshrrev_b32 v{t5}, 5, v0
    v_lshlrev_b32 v{t5}, 9, v{t5}
    v_and_b32 v{vQw}, 16, v0
    v_lshrrev_b32 v{vQw}, 1, v{vQw}
    v_add_u32 v{t5}, v{t5}, v{vQw}
    v_lshl_add_u32 v{vKw}, v{t4}, 4, v{t5}
    s_lshl_b32 s{sT0}, s{sTH}, 11
    s_add_u32 s{sT0}, s{sT0}, s{sRing}
    v_add_u32 v{vKw}, s{sT0}, v{vKw}
    v_lshl_add_u32 v{vQw}, v{t0}, 4, v{t5}
    v_add_u32 v{vQw}, s{sScr}, v{vQw}
    v_mul_u32_u24 v{vVw}, 304, v{t1}
    v_lshl_add_u32 v{vVw}, v{t0}, 4, v{vVw}
    s_mul_i32 s{sT0}, s{sTH}, 2432
    s_add_u32 s{sT0}, s{sT0}, s{sRing}
    v_add_u32 v{vVw}, s{sT0}, v{vVw}""")
    a(f"""s_mul_i32 s{sT2}, s{sTH}, 2432
    s_mul_i32 s{sT3}, s{sTH}, 5120
    v_mul_u32_u24 v{vM0}, 304, v{t2}
    v_lshl_add_u32 v{vM0}, v{t3}, 1, v{vM0}
    s_add_u32 s{sT0}, s{sT2}, {4608+256}
    v_add_u32 v{vM0}, s{sT0}, v{vM0}
    s_lshl_b32 s{sT0}, s{sTH}, 2
    s_add_u32 s{sT0}, s{sT0}, 4096
    s_add_u32 s{sT1}, s{sT3}, {L_SCR+4096-1024}
    v_lshlrev_b32 v{t5}, 9, v{t1}
    v_add_u32 v{t5}, s{sT1}, v{t5}
    v_mov_b32 v{vDh}, s{sT0}
    v_cmp_eq_u32 vcc, 1, v{t1}
    v_mov_b32 v{vDs}, 32
    v_mov_b32 v{vDt}, 2
    v_cndmask_b32 v{t5}, v{t5}, v{vDh}, vcc
    v_lshl_add_u32 v{t5}, v{t4}, 3, v{t5}
    v_cmp_eq_u32 vcc, 0, v{t1}
    v_mov_b32 v{vDe}, 256
    v_mov_b32 v{t3}, 1216
    v_cndmask_b32 v{vM0}, v{t5}, v{vM0}, vcc
    v_cndmask_b32 v{vDs}, v{vDs}, 8, vcc
    v_cndmask_b32 v{vDt}, v{vDt}, v{t3}, vcc
    v_cndmask_b32 v{vDe}, v{vDe}, 16, vcc
    v_cmp_gt_u32 vcc, 2, v{t1}
    v_mov_b32 v{vDh}, {2*5120}
    v_mov_b32 v{t3}, {RING}
    v_cndmask_b32 v{vDh}, v{vDh}, v{t3}, vcc
    v_mov_b32 v{t5}, 4
    v_mov_b32 v{t3}, {BLK}
    v_cndmask_b32 v{t5}, v{t5}, v{t3}, vcc
    v_mul_u32_u24 v{t3}, s{sHH}, v{vDs}
    v_add_u32 v{MA(0,0)}, v{vM0}, v{t3}
    v_sub_u32 v{t3}, v{vDs}, v{t3}
    v_add3_u32 v{MA(0,2)}, v{vM0}, v{t3}, v{vDh}
    v_add_u32 v{MA(0,1)}, v{MA(0,0)}, v{vDe}
    v_add_u32 v{MA(0,3)}, v{MA(0,2)}, v{vDe}""")
    for i in range(4):
        a(f"""v_add_u32 v{MA(1,i)}, v{MA(0,i)}, v{vDt}
        v_add_u32 v{MA(2,i)}, v{MA(0,i)}, v{t5}
        v_add_u32 v{MA(3,i)}, v{MA(1,i)}, v{t5}""")
    a(f"""v_cmp_eq_u32 vcc, 2, v{t1}
    v_mov_b32 v{vMul}, 1.0
    v_mov_b32 v{t2}, {f32(CSCALE)}
    v_cndmask_b32 v{vMul}, v{vMul}, v{t2}, vcc""")
    a(f"""v_and_b32 v{t2}, 16, v0
    v_lshrrev_b32 v{t2}, 2, v{t2}
    v_add_u32 v{t2}, v{t2}, v{t4}
    v_lshlrev_b32 v{vSq}, 3, v{t2}
    s_add_u32 s{sT1}, s{sScr}, 4096
    v_add_u32 v{vSq}, s{sT1}, v{vSq}
    v_and_b32 v{t0}, 31, v0
    v_lshrrev_b32 v{t1}, 5, v0
    v_mul_u32_u24 v{t3}, 304, v{t1}
    v_lshl_add_u32 v{t3}, v{t0}, 4, v{t3}
    v_add_u32 v{t3}, s{sRing}, v{t3}
    v_cmp_gt_u32 vcc, 19, v{t0}
    v_mov_b32 v{vVa}, {LDS_BYTES}
    v_lshl_add_u32 v{vKa}, v0, 4, s{sRing}
    v_cndmask_b32 v{vVa}, v{vVa}, v{t3}, vcc
    v_lshl_add_u32 v{vTa}, v0, 3, s{sRing}
    v_mov_b32 v{vIdx}, 0xdddddddd
    v_lshl_add_u32 v{vSqh}, v{t1}, 8, v{vSq}
    s_mov_b32 s{sWsrc}, 0
    s_mov_b32 s{sXm0}, 0
    v_mul_u32_u24 v{vOnes}, 304, v0
    v_add_u32 v{vOnes}, s{sBlk}, v{vOnes}
    v_lshl_add_u32 v{vQr}, v0, 4, s{sScr}
    s_mul_i32 s{sT0}, s{sTH}, 27648
    s_add_u32 s{sT0}, s{sT0}, s{sRing}
    v_lshl_add_u32 v{vCp}, v0, 4, s{sT0}
    s_lshl_b32 s{sT0}, s{sHH}, 4
    v_xor_b32 v{t2}, s{sT0}, v0
    v_lshlrev_b32 v{vSt}, 4, v{t2}
    v_mul_u32_u24 v{vStt}, {64*1152 - 128}, v{t1}
    v_lshl_add_u32 v{vStt}, v{t2}, 2, v{vStt}
    s_lshl_b32 s{sT1}, s{sE}, 1
    s_add_u32 s{sT1}, s{sT1}, s{sTH}
    s_lshl_b32 s{sT1}, s{sT1}, 8
    s_add_u32 s{sT1}, s{sT1}, s{sBH}
    s_mul_i32 s{sT1}, s{sT1}, 1152
    s_add_u32 s{sRef}, s{sT1}, {WS_O}
    s_cmp_ge_u32 s{sPr}, 16
    s_mov_b32 s60, {f32(-LOG2E)}
    s_cselect_b32 s60, {f32(LOG2E)}, s60
    s_mov_b32 s61, {f32(2.0**-40)}
    s_mov_b32 s64, {f32(2.0**40) if not OPT['force_fb'] else f32(2.0**-39)}
    s_mov_b32 s65, {f32(CSCALE)}""")
    for x in range(4):
        a(f"""s_xor_b32 s{56+x}, s{sTt}, {x}
        s_mul_i32 s{56+x}, s{56+x}, {64*1152}
        s_add_u32 s{56+x}, s{56+x}, s{sRef}""")
    p3_scal(a)
    p3_addr_w(a, vWm3, vWt, t0, t1, t2)
    coff = (48, 0, 96, 0)
    def wfrag(k2):
        r = []
        for ct in range(4):
            for hf in range(2):
                r.append(f"ds_read_b64_tr_b16 {vr(WF+16*k2+4*ct+2*hf,2)}, v{vWc[ct]} offset:{L_WR + (32*k2+4*hf)*256}")
        return r
    def xread(buf):
        r = []
        for k2 in range(2):
            for s in range(2):
                r.append(f"ds_read_b128 {vr(XF[buf]+8*k2+4*s,4)}, v{vXr[2*s+k2]}")
        return r
    xadv = [f"s_add_u32 s{sXm0}, s{sXm0}, 1", f"s_cmp_eq_u32 s{sXm0}, {RX}", f"s_cselect_b32 s{sXm0}, 0, s{sXm0}",
            f"s_cselect_b32 s{sT1}, s{sWk}, s{sWcnt}",
            ] + [f"v_add_u32 v{c}, s{sT1}, v{c}" for c in vXr]
    wadv = [f"s_add_u32 s{sWsrc}, s{sWsrc}, 1", f"s_cmp_eq_u32 s{sWsrc}, {RW}", f"s_cselect_b32 s{sWsrc}, 0, s{sWsrc}",
            f"s_cselect_b32 s{sT2}, s{sWm0}, s{sGk}",
            ] + [f"v_add_u32 v{c}, s{sT2}, v{c}" for c in vWc]
    a(f"""s_mov_b32 s{sWk}, {(-(RX-1)*8192) & 0xffffffff}
    s_mov_b32 s{sWcnt}, 8192
    s_mov_b32 s{sWm0}, {(-(RW-1)*WSL) & 0xffffffff}
    s_mov_b32 s{sGk}, {WSL}""")
    if OPT.get("rstpos", "late") == "late": reset_flags()
    a("s_barrier")
    stamp(a, 1, 30)
    if OPT.get("rstpos", "late") == "afterp": reset_flags()
    for m in xread(0) + xadv + wfrag(0) + wfrag(1): a(m)
    QM, QT = 32, 48
    KF, V0, V1, KT = [80, 84], [88, 92], [96, 100], 104
    vGl = 26
    TP = 108
    def epi(tt):
        tp = (64, 80)[tt % 2]
        r = []
        for s in range(2):
            b = ACC + 32 * tt + 16 * s
            k_, q_ = tp + 2 * s, tp + 4 + 2 * s
            r += f"""v_cvt_pk_bf16_f32 v{k_}, v{b}, v{b+1}
            v_cvt_pk_bf16_f32 v{k_+1}, v{b+2}, v{b+3}
            v_mul_f32 v{b+4}, s65, v{b+4}
            v_mul_f32 v{b+5}, s65, v{b+5}
            v_mul_f32 v{b+6}, s65, v{b+6}
            v_mul_f32 v{b+7}, s65, v{b+7}
            ds_write_b64 v{vKw}, {vr(k_,2)} offset:{(tt>>1)*BLK + (tt&1)*1024 + s*64}
            v_cvt_pk_bf16_f32 v{q_}, v{b+4}, v{b+5}
            v_cvt_pk_bf16_f32 v{q_+1}, v{b+6}, v{b+7}
            v_cvt_pk_bf16_f32 v{tp+8+2*s}, v{b+8}, v{b+9}
            v_cvt_pk_bf16_f32 v{tp+9+2*s}, v{b+10}, v{b+11}
            ds_write_b64 v{vQw}, {vr(q_,2)} offset:{tt*1024 + s*256}""".split("\n")
        b = ACC + 32 * tt
        r += f"""ds_write_b128 v{vVw}, {vr(tp+8,4)} offset:{4608 + (tt>>1)*BLK + (tt&1)*1216}
        v_mul_f32 v{b+12}, v{vMul}, v{b+12}
        v_mul_f32 v{b+13}, v{vMul}, v{b+13}
        v_mul_f32 v{b+14}, v{vMul}, v{b+14}
        v_mul_f32 v{b+15}, v{vMul}, v{b+15}
        v_cvt_pk_bf16_f32 v{tp+12}, v{b+12}, v{b+13}
        v_cvt_pk_bf16_f32 v{tp+13}, v{b+14}, v{b+15}
        ds_write_b16 v{MA(tt,0)}, v{tp+12}
        ds_write_b16_d16_hi v{MA(tt,1)}, v{tp+12}
        ds_write_b16 v{MA(tt,2)}, v{tp+13}
        ds_write_b16_d16_hi v{MA(tt,3)}, v{tp+13}""".split("\n")
        return r
    NM = 14
    def chunk(last):
        for tt in range(4):
            cur = XF[tt & 1]
            mf = []
            for k2 in range(2):
                for ct in range(4):
                    for s in range(2 if ct < 3 else 1):
                        d = ACC + 32 * tt + 16 * s + 4 * ct
                        w_, x_ = vr(WF + 16 * k2 + 4 * ct, 4), vr(cur + 8 * k2 + 4 * s, 4)
                        A_, B_ = (x_, w_) if ct == 2 else (w_, x_)
                        mf.append(f"v_mfma_f32_16x16x32_bf16 {vr(d,4)}, {A_}, {B_}, {vr(d,4)}")
            fill = {i: [] for i in range(-1, NM)}
            xr = xread((tt + 1) & 1)
            if tt == 0:
                fill[-1].append("s_waitcnt lgkmcnt(8)")
                for i in range(4): fill[i].append(xr[i])
                fill[6].append("s_waitcnt lgkmcnt(4)")
                for i in range(8): fill[(4, 5, 7, 8, 9, 10, 11, 12)[i]].append(xadv[i])
                if last:
                    for i in range(4): fill[i].append(f"v_mov_b32 v{92+i}, 0x3f803f80")
                    fill[13] += ["s_mov_b64 exec, 0xffff", f"ds_write_b128 v{vOnes}, v[92:95] offset:{4608+288}", "s_mov_b64 exec, -1"]
            elif last:
                if tt < 3:
                    for i in range(4): fill[i // 2].append(xr[i])
                    if tt == 1:
                        for i in range(8): fill[2 + i // 3].append(xadv[i])
                e = epi(tt - 1)
                st = (0, 5, 2, 1)[tt]
                per = -(-len(e) // (NM - st))
                for i, m in enumerate(e): fill[st + i // per].append(m)
            elif tt == 3:
                for i in range(4): fill[-1 + (i + 1) // 2].append(xr[i])
                w0, w1 = wfrag(0), wfrag(1)
                lastuse = (1, 3, 5, 6)
                for ct in range(4):
                    fill[lastuse[ct]] += [w0[2 * ct]]; fill[lastuse[ct] + 1] += [w0[2 * ct + 1]]
                    fill[7 + lastuse[ct]] += [w1[2 * ct]]; fill[min(NM - 1, 8 + lastuse[ct])] += [w1[2 * ct + 1]]
                for i in range(8): fill[(2, 3, 4, 5, 7, 8, 9, 10)[i]].append(xadv[i])
                fill[11].append(f"s_sub_u32 s{sIt}, s{sIt}, 1")
            else:
                for i in range(4): fill[i].append(xr[i])
                for i in range(8): fill[4 + i].append(xadv[i])
                if tt == 1:
                    for i in range(4): fill[10 + i].append(wadv[i])
                if tt == 2:
                    for i in range(4): fill[10 + i].append(wadv[4 + i])
            if tt % 2 == 0: a("s_barrier")
            for m in fill[-1]: a(m)
            for i in range(NM):
                if not OPT.get("nomf"): a(mf[i])
                for m in fill[i]: a(m)
            if last:
                if tt == 0: a("s_waitcnt lgkmcnt(1)")
                elif tt == 1: a("s_waitcnt lgkmcnt(9)")
                elif tt == 2: a("s_waitcnt lgkmcnt(0)\ns_barrier")
            elif tt == 3:
                a(f"""s_waitcnt lgkmcnt(15)
                s_cmp_eq_u32 s{sIt}, s{sCnt}
                s_cbranch_scc1 {K}_rst
                {K}_rst_ret:
                s_cmp_lg_u32 s{sIt}, 0""")
            else:
                a("s_waitcnt lgkmcnt(0)")
    a(f"""s_mov_b32 s{sIt}, 8
    s_waitcnt lgkmcnt(0)
    {K}_p1:""")
    chunk(False)
    a(f"s_cbranch_scc1 {K}_p1")
    chunk(True)
    stamp(a, 2, 30)
    a("s_nop 1")
    for m in epi(3): a(m)
    S = [128, 144, 160, 176]
    O = [192, 208, 224, 240]
    zo = [f"v_mov_b32 v{O[x]+i}, 0" for x in range(4) for i in range(11)]
    zq = [f"v_mov_b32 v{QT+8*x+i}, 0" for x in range(4) for i in (1, 3, 4, 6)]
    zs = [f"v_mov_b32 v{S[3]+8+i}, 0" for i in range(8)] + [f"v_mov_b32 v{V1[1]+i}, 0" for i in range(4)]
    for m in zo[:22]: a(m)
    a("s_waitcnt lgkmcnt(0)")
    for x in range(4): a(f"ds_read_b128 {vr(QM+4*x,4)}, v{vQr} offset:{1024*x}")
    a("s_barrier")
    stamp(a, 3, 30)
    NB = int(OPT["nb"])
    def ldK(t, buf): return f"ds_read_b128 {vr(KF[buf],4)}, v{vKa} offset:{((t//4)%NB)*BLK + (t%4)*1024}"
    def ldV(t, half, buf): return f"ds_read_b128 {vr((V0,V1)[half][buf],4)}, v{vVa} offset:{((t//4)%NB)*BLK + 4608 + (t%4)*1216 + 608*half}"
    def ldT(b=0): return f"ds_read_b64 {vr(KT,2)}, v{vTa} offset:{(b%NB)*BLK + 4096}"
    def QKM(t, x, s, c="0"): return f"v_mfma_f32_32x32x16_bf16 {vr(s,16)}, {vr(KF[t%2],4)}, {vr(QM+4*x,4)}, {c}"
    def QKT(t, x, s): return f"v_mfma_f32_32x32x8_bf16 {vr(s,16)}, {vr(KT,2)}, {vr(QT+8*x+2*(t%4),2)}, {vr(s,16)}"
    def PV(half, t, x, s): return f"v_smfmac_f32_32x32x32_bf16 {vr(O[x],16)}, {vr((V0,V1)[half][t%2],4)}, {vr(s+8*half,8)}, v{vIdx}"
    a(ldK(0, 0))
    a(f"ds_read_b64 {vr(TP,2)}, v{vSqh}")
    a(ldT()); a(ldV(0, 0, 0)); a(ldV(0, 1, 0))
    a(f"ds_read_b64 {vr(TP+2,2)}, v{vSq} offset:512")
    def qvar(x):
        q, r = QT + 8 * x, TP + (x >> 1)
        if x % 2 == 0:
            a(f"""v_and_b32 v{q}, 0xffff, v{r}
            v_lshlrev_b32 v{q+2}, 16, v{r}
            v_and_b32 v{q+5}, 0xffff, v{r}
            v_lshlrev_b32 v{q+7}, 16, v{r}""")
        else:
            a(f"""v_lshrrev_b32 v{q}, 16, v{r}
            v_and_b32 v{q+2}, 0xffff0000, v{r}
            v_lshrrev_b32 v{q+5}, 16, v{r}
            v_and_b32 v{q+7}, 0xffff0000, v{r}""")
    HOOKS = [1, 3, 7, 11, 13, 15]
    for m in zq: a(m)
    a(f"""s_mov_b32 s{sIt}, 0
    s_mov_b32 s{sWk}, {NB*BLK}
    s_mov_b32 s{sWcnt}, {(NB*BLK - RING) & 0xffffffff}
    s_waitcnt lgkmcnt(4)""")
    a(QKM(0, 0, S[0])); qvar(0); qvar(1)
    a(QKM(0, 1, S[1])); qvar(2); qvar(3)
    a("s_waitcnt lgkmcnt(3)")
    a(QKT(0, 0, S[0]))
    for m in zs[:8]: a(m)
    a(QKT(0, 1, S[1]))
    for m in zs[8:] + zo[22:]: a(m)
    a("s_waitcnt lgkmcnt(0)")
    if OPT.get("cprio"): a(f"s_setprio {OPT['cprio']}")
    hookblks = []
    a(".p2align 6")
    a(f"{K}_att:")
    pos = tuple(int(z) for z in OPT.get("pos", "2.6.10.14").split("."))
    NIT = 16 // NB
    for u in range(16 * NB):
        t, x = divmod(u, 4)
        tn, xn = divmod(u + 2, 4)
        tp_, xp = divmod(u - 1, 4)
        blk, ub = divmod(u, 16)
        s, sn, sp = S[u % 4], S[(u + 2) % 4], S[(u - 1) % 4]
        ins = {i: [] for i in range(17)}
        ins[pos[0]].append(PV(1, tp_, xp, sp))
        ins[pos[1]].append(QKM(tn, xn, sn))
        ins[pos[2]].append(QKT(tn, xn, sn))
        ins[pos[3]].append(PV(0, t, x, s))
        if x == 0:
            ins[pos[0]].append(ldV(t + 1, 1, (t + 1) % 2))
            ins[pos[1]].append(ldK(t + 1, (t + 1) % 2))
            ins[pos[3]].append(ldV(t + 1, 0, (t + 1) % 2))
        if ub == 13: ins[pos[2]].append(ldT(blk + 1))
        if x == 2:
            if OPT.get("wpos") == "m": ins[pos[0]].append("s_waitcnt lgkmcnt(0)" if ub != 14 else "s_nop 0");
            if OPT.get("wpos") != "m" or ub == 14: ins[pos[1]].insert(0, "s_waitcnt lgkmcnt(0)")
        if ub == 10 and blk == NB - 1:
            ins[pos[2]].append(f"s_cmp_eq_u32 s{sIt}, {NIT//2 - 1}")
            ins[pos[3]].append(f"s_cselect_b32 s{sT0}, s{sWcnt}, s{sWk}")
        if ub == 11:
            if blk == NB - 1:
                ins[pos[0]].append(f"v_add_u32 v{vKa}, s{sT0}, v{vKa}")
                ins[pos[1]].append(f"v_add_u32 v{vTa}, s{sT0}, v{vTa}")
                ins[pos[2]].append(f"v_add_u32 v{vVa}, s{sT0}, v{vVa}")
            its = [it for it in range(NIT) if it * NB + blk in HOOKS]
            if len(its) == NIT and (not OPT["stamp"] or OPT.get("light")):
                ins[pos[3]].append("s_barrier")
            elif its:
                ins[pos[3]] += [f"s_bitcmp1_b32 {sum(1 << i for i in its)}, s{sIt}", f"s_cbranch_scc1 {K}_hook{blk}", f"{K}_hook_ret{blk}:"]
                hookblks.append(blk)
        if u == 16 * NB - 1:
            ins[pos[3]] += [f"s_add_u32 s{sIt}, s{sIt}, 1", f"s_cmp_lt_u32 s{sIt}, {NIT}"]
        for i in range(16):
            for m in ins[i]: a(m)
            a(f"v_exp_f32 v{s+i}, v{s+i}")
    if OPT.get("light"):
        a(f"""s_memtime s[82:83]
        s_memrealtime s[80:81]
        s_add_u32 m0, s{sIt}, 15
        s_waitcnt lgkmcnt(0)
        v_writelane_b32 v30, s80, m0
        v_writelane_b32 v31, s82, m0
        s_cmp_lt_u32 s{sIt}, {NIT}""")
    a(f"s_cbranch_scc1 {K}_att")
    a("s_nop 1")
    a(PV(1, 3, 3, S[3]))
    stamp(a, 8, 30)
    CC = [5, 6, 7, 8]
    R8 = [84, 92, 108, 112, 116, 120, 124, 20, 100]
    RL = list(range(32, 84, 4)) + [88, 96] + list(range(128, 176, 4))
    creg = lambda s, ct: R8[s] if ct == 8 else RL[3 * s + ct - 5]
    p3_wo_loads(a, [8], creg, vWm3, vWt, (0, 1, 8))
    a('s_nop 4')
    l_ = [O[x] + 10 for x in range(4)]
    tq = [2, 3, 4, 5]
    a(f"""v_add_f32 v2, v{l_[0]}, v{l_[1]}
    v_min3_f32 v3, v{l_[0]}, v{l_[1]}, v{l_[2]}
    v_add_f32 v2, v2, v{l_[2]}
    s_waitcnt lgkmcnt(0)
    v_add_f32 v2, v2, v{l_[3]}
    v_min_f32 v3, v3, v{l_[3]}
    v_cmp_ge_f32 s[{sEx}:{sEx+1}], s64, v2
    v_cmp_le_f32 vcc, s61, v3
    s_nop 1
    s_and_b32 vcc_lo, vcc_lo, s{sEx}
    s_cmp_eq_u32 vcc_lo, -1
    s_cbranch_scc0 {K}_fbchk
    {K}_fbdone:""")
    cp = [f"ds_read_b128 {vr(creg(s_,ct),4)}, v{vCp} offset:{1024*(3*s_+i)}" for s_ in range(9) for i, ct in enumerate(CL)]
    for x in range(4): a(f"v_mov_b32 v{tq[x]}, v{O[x]+10}")
    a(cp.pop(0))
    for x in range(4): a(f"v_permlane32_swap_b32 v{O[x]+10}, v{tq[x]}")
    a(cp.pop(0))
    for x in range(4): a(f"v_mul_f32 v{tq[x]}, v{O[x]+10}, v{vGl+x}")
    for x in range(4): a(f"v_rcp_f32 v{tq[x]}, v{tq[x]}")
    a(cp.pop(0))
    for x in range(4):
        o = O[x]
        for i in range(10):
            a(f"v_mul_f32 v{o+i}, v{tq[x]}, v{o+i}")
            if i % 3 == 2: a(cp.pop(0))
        for i in range(4): a(f"v_cvt_pk_bf16_f32 v{o+12+i}, v{o+2*i}, v{o+2*i+1}")
        a(f"""v_cvt_pk_bf16_f32 v{o+11}, v{o+8}, v{o+9}
        buffer_store_dwordx4 {vr(o+12,4)}, v{vSt}, s[{sWS}:{sWS+3}], s{56+x} offen sc1""")
        if x % 2 == 1:
            a(f"""s_nop 0
            v_permlane32_swap_b32 v{O[x-1]+11}, v{o+11}
            buffer_store_dword v{O[x-1]+11}, v{vStt}, s[{sWS}:{sWS+3}], s{56+x-1} offen offset:1024 sc1""")
    for m in cp: a(m)
    stamp(a, 9, 30)
    a(f"""v_mov_b32 v6, {L_SYNC + 20}
    v_mov_b32 v7, 1
    s_setprio {OPT.get("p3prio", 2)}
    s_mov_b64 exec, 1
    s_waitcnt lgkmcnt(0)
    ds_add_u32 v6, v7
    s_mov_b64 exec, -1""")
    vOm, vOt, vRd = [2, 8], 3, 4
    p3_addr_o(a, vOm, vOt, vRd, [9, 10], 5, 11, 12, 13)
    for i in range(32): a(f"v_mov_b32 v{224+i}, 0")
    stamp(a, 10, 30)
    if OPT.get("drain"):
        a("s_waitcnt vmcnt(0)")
        stamp(a, 12, 30)
    p3_comp(a, CC, creg, 224, 176, vOm, vOt, vRd, 5, [9, 10])
    stamp(a, 11, 30)
    a(f"{K}_final:")
    final_reduce(a, K, 30)
    a(f"{K}_end:")
    a("s_endpgm")
    a(f"""{K}_rst:
    s_lshl_b32 s{sT0}, s{sPr}, 2
    v_mov_b32 v28, s{sT0}
    v_mov_b32 v29, 1
    s_mov_b64 exec, 1
    s_waitcnt vmcnt(0)
    buffer_atomic_add v29, v28, s[{sD}:{sD+3}], 0 offen
    s_mov_b64 exec, -1
    s_branch {K}_rst_ret""")
    for blk in hookblks:
        a(f"{K}_hook{blk}:")
        if 1 % NB == blk:
            a(f"""s_cmp_eq_u32 s{sIt}, {1 // NB}
            s_cbranch_scc0 {K}_hkg
            v_lshlrev_b32 v{vGl}, 16, v{TP+2}
            v_and_b32 v{vGl+1}, 0xffff0000, v{TP+2}
            v_lshlrev_b32 v{vGl+2}, 16, v{TP+3}
            v_and_b32 v{vGl+3}, 0xffff0000, v{TP+3}""")
            for x in range(4): a(f"v_mul_f32 v{vGl+x}, s60, v{vGl+x}")
            for x in range(4): a(f"v_exp_f32 v{vGl+x}, v{vGl+x}")
            a("s_nop 0")
            for x in range(4): a(f"v_add_f32 v{vGl+x}, 1.0, v{vGl+x}")
            for x in range(4):
                for i in range(11, 16): a(f"v_mov_b32 v{O[x]+i}, 0")
            a(f"{K}_hkg:")
        if OPT["stamp"]:
            for hb, i_ in ((1, 4), (3, 6)):
                if hb % NB == blk:
                    a(f"s_cmp_eq_u32 s{sIt}, {hb // NB}\ns_cbranch_scc0 {K}_hk{hb}")
                    stamp(a, i_, 30); a("s_barrier"); stamp(a, i_ + 1, 30); a(f"s_branch {K}_hook_ret{blk}")
                    a(f"{K}_hk{hb}:")
        if 13 % NB == blk:
            a(f"""s_cmp_eq_u32 s{sIt}, {13 // NB}
            s_cbranch_scc0 {K}_hkb{blk}""")
            p3_wo_loads(a, [8], creg, vWm3, vWt, range(2, 8))
            a(f"{K}_hkb{blk}:")
        a(f"""s_barrier
        s_branch {K}_hook_ret{blk}""")
    FQ = S[3]
    a(f"{K}_fbchk:")
    for x in range(4):
        a(f"""v_cmp_le_f32 vcc, s61, v{O[x]+10}
        v_cmp_ge_f32 s[{sEx}:{sEx+1}], s64, v{O[x]+10}
        s_nop 1
        s_and_b32 vcc_lo, vcc_lo, s{sEx}
        s_cmp_eq_u32 vcc_lo, -1
        s_cbranch_scc0 {K}_fb{x}
        {K}_fbret{x}:""")
    a(f"s_branch {K}_fbdone")
    for x in range(4):
        a(f"{K}_fb{x}:")
        for i in range(4): a(f"v_mov_b32 v{FQ+i}, v{QM+4*x+i}")
        for i in range(8): a(f"v_mov_b32 v{FQ+4+i}, v{QT+8*x+i}")
        a(f"s_call_b64 s[{sRet}:{sRet+1}], {K}_slow")
        for i in range(16): a(f"v_mov_b32 v{O[x]+i}, v{S[2]+i}")
        a(f"s_branch {K}_fbret{x}")
    a(f"{K}_slow:")
    vb, vc, vm = 11, 12, 13
    sA, sB = sWsrc, sWm0
    t0 = 9
    a(f"""v_lshlrev_b32 v{vb}, 3, v0
    v_lshlrev_b32 v{t0}, 4, v0
    v_and_b32 v{vm}, 31, v0
    v_lshrrev_b32 v{vc}, 5, v0
    v_mul_u32_u24 v{vc}, 304, v{vc}
    v_lshl_add_u32 v{vc}, v{vm}, 4, v{vc}
    v_cmp_lt_u32 vcc, 18, v{vm}
    v_mov_b32 v{vm}, 0x40000000
    s_nop 1
    v_cndmask_b32 v{vc}, v{vc}, v{vm}, vcc""")
    def slow_qk(t, c):
        a(f"""v_mfma_f32_32x32x16_bf16 {vr(S[0],16)}, {vr(KF[0],4)}, {vr(FQ,4)}, {c}
        v_mfma_f32_32x32x8_bf16 {vr(S[0],16)}, {vr(KT,2)}, {vr(FQ+4+2*t,2)}, {vr(S[0],16)}
        s_nop 15""")
    def slow_next(lbl):
        a(f"""s_add_u32 s{sA}, s{sA}, {BLK}
        s_sub_u32 s{sIt}, s{sIt}, 1
        s_cmp_lg_u32 s{sIt}, 0
        s_cbranch_scc1 {lbl}""")
    a(f"""v_mov_b32 v{vm}, 0xff800000
    s_mov_b32 s{sA}, s{sKVg}
    s_mov_b32 s{sIt}, 16
    {K}_sl1:
    s_add_u32 s{sB}, s{sA}, 4096
    buffer_load_dwordx2 {vr(KT,2)}, v{vb}, s[{sWS}:{sWS+3}], s{sB} offen sc1""")
    for t in range(4):
        a(f"""buffer_load_dwordx4 {vr(KF[0],4)}, v{t0}, s[{sWS}:{sWS+3}], s{sA} offen offset:{1024*t} sc1
        s_waitcnt vmcnt(0)""")
        slow_qk(t, "0")
        for i in range(8): a(f"v_max3_f32 v{vm}, v{S[0]+2*i}, v{S[0]+2*i+1}, v{vm}")
    slow_next(f"{K}_sl1")
    a(f"""v_mov_b32 v{S[0]}, v{vm}
    s_nop 1
    v_permlane32_swap_b32 v{vm}, v{S[0]}
    s_nop 1
    v_max_f32 v{vm}, v{vm}, v{S[0]}""")
    for i in range(16):
        a(f"v_sub_f32 v{S[1]+i}, 0, v{vm}")
        a(f"v_mov_b32 v{S[2]+i}, 0")
    a(f"""s_mov_b32 s{sA}, s{sKVg}
    s_mov_b32 s{sIt}, 16
    {K}_sl2:
    s_add_u32 s{sB}, s{sA}, 4096
    buffer_load_dwordx2 {vr(KT,2)}, v{vb}, s[{sWS}:{sWS+3}], s{sB} offen sc1""")
    for t in range(4):
        a(f"""buffer_load_dwordx4 {vr(KF[0],4)}, v{t0}, s[{sWS}:{sWS+3}], s{sA} offen offset:{1024*t} sc1
        s_add_u32 s{sB}, s{sA}, {4608+1216*t}
        buffer_load_dwordx4 {vr(V0[0],4)}, v{vc}, s[{sWS}:{sWS+3}], s{sB} offen sc1
        buffer_load_dwordx4 {vr(V1[0],4)}, v{vc}, s[{sWS}:{sWS+3}], s{sB} offen offset:608 sc1
        s_waitcnt vmcnt(0)""")
        slow_qk(t, vr(S[1], 16))
        for i in range(16): a(f"v_exp_f32 v{S[0]+i}, v{S[0]+i}")
        a(f"""s_nop 3
        v_smfmac_f32_32x32x32_bf16 {vr(S[2],16)}, {vr(V0[0],4)}, {vr(S[0],8)}, v{vIdx}
        v_smfmac_f32_32x32x32_bf16 {vr(S[2],16)}, {vr(V1[0],4)}, {vr(S[0]+8,8)}, v{vIdx}
        s_nop 7""")
    slow_next(f"{K}_sl2")
    a(f"""s_nop 15
    s_setpc_b64 s[{sRet}:{sRet+1}]""")

def main(out):
    ka = f"{NAME}_kernel"
    a = Asm(); kernel(a)
    t = f"""; gated mix of two MHA blocks: one fused kernel (QKV projection, attention, output projection); generated by gen/gen21.py
; @launch grid=(256,1,1) block=(512,1,1) lds={LDS_BYTES}
.amdgcn_target "amdgcn-amd-amdhsa--gfx950"
.text
.globl {ka}
.p2align 8
.type {ka},@function
{ka}:
{a.text()}.section .rodata,"a"
.p2align 6
.amdhsa_kernel {ka}
  .amdhsa_next_free_vgpr 256
  .amdhsa_next_free_sgpr 102
  .amdhsa_accum_offset 256
  .amdhsa_group_segment_fixed_size 0
  .amdhsa_kernarg_size 80
  .amdhsa_user_sgpr_count 2
  .amdhsa_user_sgpr_kernarg_segment_ptr 1
  .amdhsa_system_sgpr_workgroup_id_x 1
.end_amdhsa_kernel
"""
    open(out, "w").write(t)

if __name__ == "__main__":
    for kv in sys.argv[2:]:
        k, v = kv.split("=")
        OPT[k] = {"True": True, "False": False}.get(v, v)
    main(sys.argv[1])
```

```python
import sys, struct

NAME = "gated_mix__mha_block__mha_block__prompt"
def f32(x): return "0x%08x" % struct.unpack("<I", struct.pack("<f", x))[0]
CSCALE = (18 ** -0.5) * 1.4426950408889634
LOG2E = 1.4426950408889634

BLK = 9472
KVH = 16 * BLK
RING = 8 * BLK
WS_O = 0x0A00000
WS_WOM = 0x0F00000
WS_WOT = 0x1080000
WS_F = 0x10C0000
WS_STAMP = 0x1100000
WS_SIZE = 0x1200000
SENT = 0xffffffff
L_WR = 0
WSL = 16384
RW = 3
L_XR = 98304
L_SCR = 49152
L_GT = 155648
L_SYNC = L_GT + 3 * 2048 + 1536
L_WO = 151552
LDS_BYTES = 163840
RS = 592
L_OA = 6 * BLK
L_OB = 94720
PLANE = 32 * RS

class Asm:
    def __init__(self): self.l = []
    def __call__(self, s):
        for x in s.strip("\n").split("\n"):
            x = x.strip()
            if not x: continue
            self.l.append(x if x.endswith(":") else "    " + x)
    def text(self): return "\n".join(self.l) + "\n"

def vr(a, n): return f"v[{a}:{a+n-1}]"
OPT = dict(force_fb=False, stamp=False, rx="6", txor="1", nb="4", cprio="3")

def srd(a, d, lo, hi, size):
    a(f"""s_mov_b32 s{d}, s{lo}
    s_and_b32 s{d+1}, s{hi}, 0xffff
    s_mov_b32 s{d+2}, {size}
    s_mov_b32 s{d+3}, 0x00020000""")

sX, sW, sWo, sG, sD, sWS, sOut = 8, 12, 16, 20, 24, 28, 84
sWv, sPr, sE, sHd, sRot = 32, 33, 34, 35, 36
sT0, sT1, sT2, sT3 = 37, 38, 39, 40
sRef, sCnt, sKo, sXb, sRing, sIt, sKVg, sSpin, sW8 = 41, 42, 43, 44, 45, 46, 47, 48, 49
sRet, sEx = 50, 52
sWsrc, sWm0, sWk, sWcnt, sXm0, sGk, sTt, sBH = 54, 55, 62, 63, 76, 77, 78, 79
sP3T, sP3C, sOb, sWmb, sWtb, sHH, sTH, sOtb = 88, 89, 90, 91, 92, 93, 94, 95
SV = 254
sLA, sLB = 74, 75
sGO = [66, 67, 68, 69]
sGW = [70, 71, 72, 73]

def stamp(a, idx, vreg):
    if not OPT["stamp"]: return
    a(f"""s_memrealtime s[80:81]
    s_memtime s[82:83]
    s_waitcnt lgkmcnt(0)
    v_writelane_b32 v{vreg}, s80, {idx}
    v_writelane_b32 v{vreg+1}, s82, {idx}""")
def sstamp(a, k):
    if not OPT["stamp"]: return
    a(f"""s_memrealtime s[80:81]
    s_waitcnt lgkmcnt(0)
    s_mov_b32 s{96+k}, s80""")
def stamp_out(a, vreg, vt=1, mask=None):
    if not OPT["stamp"]: return
    a(f"""s_lshl_b32 s80, s2, 3
    s_add_u32 s80, s80, s{sW8}
    s_lshl_b32 s80, s80, 8
    s_add_u32 s80, s80, {WS_STAMP}
    v_lshlrev_b32 v{vt}, 3, v0
    s_mov_b32 exec_hi, 0""")
    if mask is not None: a(f"s_mov_b32 exec_lo, {mask}")
    a(f"""buffer_store_dwordx2 v[{vreg}:{vreg+1}], v{vt}, s[{sWS}:{sWS+3}], s80 offen
    s_mov_b64 exec, -1""")

def p3_addr_w(a, vWm, vWt, t0, t1, t2):
    a(f"""v_and_b32 v{t0}, 15, v0
    v_lshrrev_b32 v{t1}, 5, v0
    v_bfe_u32 v{t2}, v0, 4, 1
    v_mul_u32_u24 v{vWm}, 4608, v{t1}
    v_lshl_add_u32 v{vWm}, v{t2}, 8, v{vWm}
    v_lshl_add_u32 v{vWm}, v{t0}, 4, v{vWm}
    v_lshrrev_b32 v{t1}, 4, v0
    v_add_u32 v{t2}, s{sP3C}, v{t1}
    v_and_b32 v{t2}, 3, v{t2}
    v_mul_u32_u24 v{vWt}, {4*2304}, v{t2}
    v_lshl_add_u32 v{vWt}, v{t0}, 4, v{vWt}""")
def p3_addr_o(a, vOm, vOt, vRd, vVa, vSy, t0, t1, t2):
    a(f"""v_and_b32 v{t0}, 15, v0
    v_lshrrev_b32 v{t1}, 5, v0
    v_bfe_u32 v{t2}, v0, 4, 1
    v_mul_u32_u24 v{vOm[0]}, 1152, v{t1}
    v_lshl_add_u32 v{vOm[0]}, v{t2}, 9, v{vOm[0]}
    v_lshl_add_u32 v{vOm[0]}, v{t0}, 4, v{vOm[0]}
    v_add_u32 v{vOm[1]}, s{sLB}, v{vOm[0]}
    v_add_u32 v{vOm[0]}, s{sLA}, v{vOm[0]}
    s_sub_u32 s{sT3}, s{sLB}, s{sLA}
    v_mul_lo_u32 v{vOt}, s{sT3}, v{t1}
    v_add_u32 v{vOt}, s{sLA}, v{vOt}
    v_mul_u32_u24 v{t2}, 4608, v{t2}
    v_add_u32 v{vOt}, v{vOt}, v{t2}
    v_lshl_add_u32 v{vOt}, v{t0}, 2, v{vOt}
    v_lshrrev_b32 v{t1}, 4, v0
    v_mul_u32_u24 v{vRd}, {RS}, v{t0}
    v_lshl_add_u32 v{vRd}, v{t1}, 4, v{vRd}
    s_cmp_eq_u32 s{sWv}, 3
    s_cselect_b32 s{sT3}, 4, s{sWv}
    s_mul_i32 s{sT3}, s{sT3}, {PLANE}
    v_add_u32 v{vRd}, s{sT3}, v{vRd}
    v_mul_u32_u24 v{vVa[0]}, 1152, v{t1}
    v_lshl_add_u32 v{vVa[0]}, v{t0}, 3, v{vVa[0]}
    v_add_u32 v{vVa[0]}, 1024, v{vVa[0]}
    v_add_u32 v{vVa[1]}, s{sLB}, v{vVa[0]}
    v_add_u32 v{vVa[0]}, s{sLA}, v{vVa[0]}
    s_lshl_b32 s{sT3}, s{sWv}, 2
    s_add_u32 s{sT3}, s{sT3}, {L_SYNC + 32}
    v_mov_b32 v{vSy}, s{sT3}""")
def p3_scal(a):
    a(f"""s_and_b32 s{sP3T}, s2, 7
    s_lshr_b32 s{sT0}, s2, 5
    s_lshl_b32 s{sT0}, s{sT0}, 3
    s_add_u32 s{sP3T}, s{sP3T}, s{sT0}
    s_lshr_b32 s{sP3C}, s2, 3
    s_and_b32 s{sP3C}, s{sP3C}, 3
    s_lshl_b32 s{sOb}, s{sP3T}, 6
    s_lshl_b32 s{sT3}, s{sWv}, 2
    s_add_u32 s{sOb}, s{sOb}, s{sT3}
    s_mul_i32 s{sOb}, s{sOb}, 1152
    s_add_u32 s{sOb}, s{sOb}, {WS_O}
    s_lshl_b32 s{sWmb}, s{sP3C}, 6
    s_add_u32 s{sWmb}, s{sWmb}, s{sT3}
    s_mul_i32 s{sWmb}, s{sWmb}, 4608
    s_add_u32 s{sWmb}, s{sWmb}, {WS_WOM}
    s_lshl_b32 s{sWtb}, s{sP3C}, 4
    s_add_u32 s{sWtb}, s{sWtb}, s{sWv}
    s_mul_i32 s{sWtb}, s{sWtb}, 2304
    s_add_u32 s{sWtb}, s{sWtb}, {WS_WOT}
    s_mul_i32 s{sLA}, s{sHH}, {RING}
    s_mul_i32 s{sT3}, s{sTH}, 9216
    s_add_u32 s{sLA}, s{sLA}, s{sT3}
    s_add_u32 s{sLA}, s{sLA}, {L_OA}
    s_mul_i32 s{sLB}, s{sWv}, 9216
    s_add_u32 s{sLB}, s{sLB}, {L_OB}""")
    for g in range(4):
        a(f"""s_add_u32 s{sT3}, s{sP3C}, {g}
        s_and_b32 s{sT3}, s{sT3}, 3
        s_mul_i32 s{sGO[g]}, s{sT3}, {16*1152}
        s_add_u32 s{sGO[g]}, s{sGO[g]}, s{sOb}
        s_mul_i32 s{sGW[g]}, s{sT3}, {16*4608}
        s_add_u32 s{sGW[g]}, s{sGW[g]}, s{sWmb}""")
def p3_wo_loads(a, cts, reg, vWm, vWt, steps=range(9)):
    for s in range(8):
        if s not in steps: continue
        a(f"s_add_u32 s{sT3}, s{sGW[s>>1]}, {2*(s&1)*4608 + 512*cts[0]}")
        for i, ct in enumerate(cts):
            a(f"buffer_load_dwordx4 {vr(reg(s,ct),4)}, v{vWm}, s[{sWS}:{sWS+3}], s{sT3} offen offset:{512*i} sc1")
    for ct in (cts if 8 in steps else []):
        a(f"buffer_load_dwordx4 {vr(reg(8,ct),4)}, v{vWt}, s[{sWS}:{sWS+3}], s{sWtb} offen offset:{256*ct} sc1")
def p3_oread(a, g, OF, vOm):
    for k in range(2):
        for th in range(2):
            a(f"ds_read_b128 {vr(OF+8*k+4*th,4)}, v{vOm[g>>1]} offset:{4608*(g&1) + 2304*k + 256*th}")
def p3_mf(a, cts, reg, AC, st, o):
    for i, ct in enumerate(cts):
        for th in range(2):
            d = AC + 8 * i + 4 * th
            a(f"v_mfma_f32_16x16x32_bf16 {vr(d,4)}, {vr(reg(st,ct),4)}, {vr(o+4*th,4)}, {vr(d,4)}")
def p3_tail(a, cts, reg, AC, OF, vOt, vRd):
    for th in range(2):
        for i in range(4):
            a(f"ds_read_b32 v{OF+4*th+i}, v{vOt} offset:{1152*i + 1024 + 64*th}")
    a("s_waitcnt lgkmcnt(0)")
    p3_mf(a, cts, reg, AC, 8, OF)
    sstamp(a, 5)
    a("s_nop 7")
    for i, ct in enumerate(cts):
        for th in range(2):
            a(f"ds_write_b128 v{vRd}, {vr(AC+8*i+4*th,4)} offset:{16*th*RS + 64*ct}")
def p3_hint_addr(a, OF):
    vHa, vE4 = OF + 21, OF + 22
    a(f"""v_and_b32 v1, 3, v0
    v_mul_u32_u24 v{vHa}, 1152, v1
    v_bfe_u32 v1, v0, 2, 2
    v_add_u32 v1, s{sP3C}, v1
    v_and_b32 v1, 3, v1
    v_mul_u32_u24 v1, {16*1152}, v1
    v_add_u32 v{vHa}, v{vHa}, v1
    v_mov_b32 v{vE4}, {L_SYNC + 20}""")
def p3_helper(a, cts, reg, AC, OF, vOm, vOt, vRd, vL16, vVa, vSy, slp):
    L = "h3"
    sDone = sCnt
    def dma(g):
        lb = (sLA, sLB)[g >> 1]
        a(f"""s_add_u32 m0, s{lb}, {4608*(g&1)}
        s_add_u32 s{sT3}, s{sGO[g]}, 4096""")
        for i in range(4):
            a(f"buffer_load_dwordx4 v{vL16}, s[{sWS}:{sWS+3}], s{sGO[g]} offen offset:{1024*i} sc1 lds")
        a(f"""s_add_u32 m0, s{lb}, {4608*(g&1) + 4096}
        s_mov_b32 exec_hi, 0
        buffer_load_dwordx4 v{vL16}, s[{sWS}:{sWS+3}], s{sT3} offen sc1 lds
        s_mov_b64 exec, -1""")
    sFly, sLand, sTry, sBlk_ = sWk, sWcnt, sKo, sXb
    vH, vHa, vE4 = OF + 18, OF + 21, OF + 22
    a(f"""s_mov_b32 s{sSpin}, 60000
    s_mov_b32 s{sIt}, {SENT}
    s_mov_b32 s{sDone}, 0
    s_mov_b32 s{sFly}, 0
    s_mov_b32 s{sLand}, 0
    s_mov_b32 s{sBlk_}, 12
    {L}_round:
    s_mov_b64 exec, 0xffff
    buffer_load_dword v{vH}, v{vHa}, s[{sWS}:{sWS+3}], s{sOb} offen offset:1024 sc1
    s_mov_b64 exec, -1
    ds_read_b32 v1, v{vE4}
    s_cmp_eq_u32 s{sFly}, 0
    s_cbranch_scc1 {L}_nofly
    s_or_b32 s{sLand}, s{sLand}, s{sFly}
    s_waitcnt vmcnt(1)
    v_mov_b32 v{vH+1}, s{sLand}
    ds_write_b32 v{vSy}, v{vH+1}
    {L}_nofly:
    s_mov_b32 s{sTry}, s{sFly}
    s_waitcnt lgkmcnt(0)
    v_readfirstlane_b32 s{sT0}, v1
    s_cmp_ge_u32 s{sT0}, 4
    s_cselect_b32 s{sBlk_}, 0, s{sBlk_}
    s_or_b32 s{sT1}, s{sDone}, s{sTry}
    s_cmp_eq_u32 s{sT1}, 15
    s_mov_b32 s{sFly}, 0
    s_cbranch_scc1 {L}_work""")
    if int(OPT.get("spec", 0)):
        a(f"""s_bcnt1_i32_b32 s{sT0}, s{sT1}
        s_mov_b32 vcc_lo, -1
        s_cmp_ge_u32 s{sT0}, {4 - int(OPT["spec"])}
        s_cselect_b32 s{sT0}, s{sBlk_}, 1
        s_cmp_eq_u32 s{sT0}, 0
        s_cbranch_scc1 {L}_spec""")
    a(f"""s_or_b32 s{sT1}, s{sT1}, s{sBlk_}
    s_waitcnt vmcnt(0)
    v_cmp_ne_u32 vcc, s{sIt}, v{vH}
    {L}_spec:""")
    for g in range(4):
        a(f"""s_bitcmp1_b32 s{sT1}, {g}
        s_cbranch_scc1 {L}_l{g}
        s_bfe_u32 s{sT0}, vcc_lo, {(4 << 16) | (4 * g)}
        s_cmp_eq_u32 s{sT0}, 15
        s_cbranch_scc0 {L}_l{g}
        s_bitset1_b32 s{sFly}, {g}""")
        dma(g)
        a(f"{L}_l{g}:")
    a(f"{L}_work:")
    for g in range(4):
        a(f"""s_bitcmp1_b32 s{sTry}, {g}
        s_cbranch_scc0 {L}_n{g}""")
        p3_check(a, g, OF, vOm, vVa)
        a(f"""s_cbranch_vccnz {L}_n{g}
        s_bitset1_b32 s{sDone}, {g}""")
        stamp(a, 27 + g, SV)
        p3_mf(a, cts, reg, AC, 2 * g, OF)
        p3_mf(a, cts, reg, AC, 2 * g + 1, OF + 8)
        a(f"{L}_n{g}:")
    a(f"""s_cmp_eq_u32 s{sDone}, 15
    s_cbranch_scc1 {L}_done
    s_sub_u32 s{sSpin}, s{sSpin}, 1
    s_cmp_lt_i32 s{sSpin}, 0
    s_cbranch_scc1 {L}_done
    s_or_b32 s{sT0}, s{sFly}, s{sTry}
    s_cbranch_scc1 {L}_round
    s_sleep {slp}
    s_branch {L}_round
    {L}_done:
    s_waitcnt vmcnt(0)""")
    p3_tail(a, cts, reg, AC, OF, vOt, vRd)
def p3_check(a, g, OF, vOm, vVa):
    p3_oread(a, g, OF, vOm)
    a(f"""ds_read_b64 {vr(OF+16,2)}, v{vVa[g>>1]} offset:{4608*(g&1)}
    s_waitcnt lgkmcnt(3)
    v_max3_u32 v1, v{OF}, v{OF+1}, v{OF+2}
    v_max3_u32 v1, v{OF+3}, v{OF+4}, v1
    v_max3_u32 v1, v{OF+5}, v{OF+6}, v1
    s_waitcnt lgkmcnt(0)
    v_max3_u32 v1, v{OF+7}, v{OF+8}, v1
    v_max3_u32 v1, v{OF+9}, v{OF+10}, v1
    v_max3_u32 v1, v{OF+11}, v{OF+12}, v1
    v_max3_u32 v1, v{OF+13}, v{OF+14}, v1
    v_max3_u32 v1, v{OF+15}, v{OF+16}, v1
    v_max_u32 v1, v{OF+17}, v1
    v_cmp_eq_u32 vcc, s{sIt}, v1
    s_nop 1""")
def p3_comp(a, cts, reg, AC, OF, vOm, vOt, vRd, vSy, vVa):
    L = "c3"
    sDone = sCnt
    a(f"""s_mov_b32 s{sSpin}, 400000
    s_mov_b32 s{sIt}, {SENT}
    s_mov_b32 s{sDone}, 0
    s_waitcnt vmcnt(6)
    {L}_round:
    ds_read_b32 v1, v{vSy}
    s_waitcnt lgkmcnt(0)
    v_readfirstlane_b32 s{sT0}, v1
    s_andn2_b32 s{sT0}, s{sT0}, s{sDone}""")
    for g in range(4):
        a(f"""s_bitcmp1_b32 s{sT0}, {g}
        s_cbranch_scc0 {L}_n{g}""")
        p3_check(a, g, OF, vOm, vVa)
        a(f"""s_cbranch_vccnz {L}_n{g}
        s_bitset1_b32 s{sDone}, {g}""")
        p3_mf(a, cts, reg, AC, 2 * g, OF)
        p3_mf(a, cts, reg, AC, 2 * g + 1, OF + 8)
        a(f"{L}_n{g}:")
    a(f"""s_cmp_eq_u32 s{sDone}, 15
    s_cbranch_scc1 {L}_done
    s_sub_u32 s{sSpin}, s{sSpin}, 1
    s_cmp_lt_i32 s{sSpin}, 0
    s_cbranch_scc0 {L}_round
    {L}_done:""")
    p3_tail(a, cts, reg, AC, OF, vOt, vRd)

def kernel(a):
    K = "k"
    if OPT["stamp"]: a("s_memrealtime s[96:97]")
    a(f"""
    s_cmp_ge_u32 s2, 256
    s_cbranch_scc1 {K}_end
    s_load_dwordx4 s[56:59], s[0:1], 0
    s_load_dwordx2 s[60:61], s[0:1], 16
    s_load_dwordx4 s[64:67], s[0:1], 32
    s_load_dwordx4 s[68:71], s[0:1], 48
    s_load_dwordx4 s[72:75], s[0:1], 64
    v_lshrrev_b32 v1, 6, v0
    v_and_b32 v0, 63, v0
    s_lshr_b32 s{sT0}, s2, 3
    v_readfirstlane_b32 s{sW8}, v1
    s_and_b32 s{sT1}, s{sT0}, 3
    s_lshr_b32 s{sT2}, s{sT0}, 2
    s_and_b32 s{sE}, s2, 1
    s_lshl_b32 s{sE}, s{sE}, 2
    s_add_u32 s{sE}, s{sE}, s{sT1}
    s_and_b32 s{sPr}, s2, 6
    s_lshl_b32 s{sPr}, s{sPr}, 2
    s_add_u32 s{sPr}, s{sPr}, s{sT2}
    s_lshl_b32 s{sRot}, s{sT1}, 1
    s_add_u32 s{sRot}, s{sRot}, s{sT2}
    s_sub_u32 s{sT1}, s{sRot}, 9
    s_cmp_ge_u32 s{sRot}, 9
    s_cselect_b32 s{sRot}, s{sT1}, s{sRot}""")
    if OPT.get("rotmap"):
        tab = sum(int(ch) << (4 * i) for i, ch in enumerate(OPT["rotmap"]))
        a(f"""s_mov_b32 s52, {tab & 0xffffffff}
        s_mov_b32 s53, {tab >> 32}
        s_lshl_b32 s{sRot}, s{sRot}, 2
        s_lshr_b64 s[52:53], s[52:53], s{sRot}
        s_and_b32 s{sRot}, s52, 15""")
    a(f"""s_and_b32 s{sWv}, s{sW8}, 3
    s_lshr_b32 s{sHH}, s{sWv}, 1
    s_and_b32 s{sTH}, s{sWv}, 1
    s_lshl_b32 s{sBH}, s{sPr}, 1
    s_add_u32 s{sBH}, s{sBH}, s{sHH}
    s_mul_i32 s{sKVg}, s{sBH}, {KVH}
    s_waitcnt lgkmcnt(0)
    s_cmp_ge_u32 s{sPr}, 16
    s_cselect_b32 s58, s64, s58
    s_cselect_b32 s59, s65, s59
    s_cselect_b32 s60, s66, s60
    s_cselect_b32 s61, s67, s61""")
    srd(a, sW, 58, 59, 576 * 3456)
    srd(a, sX, 56, 57, 2048 * 1152)
    srd(a, sG, 68, 69, 1152)
    srd(a, sWS, 74, 75, WS_SIZE)
    srd(a, sOut, 70, 71, 2048 * 1152)
    srd(a, sD, 72, 73, 256)
    if OPT["txor"] == "1":
        a(f"s_and_b32 s{sTt}, s2, 2")
    else:
        a(f"s_mov_b32 s{sTt}, 0")
    a(f"""s_cmp_ge_u32 s{sW8}, 4
    s_cbranch_scc0 {K}_compute""")
    helper(a, K)
    a(f"{K}_compute:")
    compute(a, K)

def final_reduce(a, K, SVr):
    a(f"""s_lshl_b32 s{sT3}, s{sW8}, 6
    v_add_u32 v1, s{sT3}, v0
    s_mul_i32 s{sT0}, s{sP3T}, {32*1152}
    s_mul_i32 s{sT1}, s{sP3C}, 288
    s_add_u32 s{sT0}, s{sT0}, s{sT1}""")
    for r in range(2):
        a(f"""v_add_u32 v2, {512*r}, v1
        v_mul_u32_u24 v3, 3641, v2
        v_lshrrev_b32 v3, 16, v3
        v_mul_u32_u24 v4, 18, v3
        v_sub_u32 v4, v2, v4
        v_mul_u32_u24 v{6+r}, {RS}, v3
        v_lshl_add_u32 v{6+r}, v4, 5, v{6+r}
        v_add_u32 v{10+r}, {4*PLANE}, v{6+r}
        v_mul_u32_u24 v{8+r}, 1152, v3
        v_lshl_add_u32 v{8+r}, v4, 4, v{8+r}""")
    a("""s_waitcnt lgkmcnt(0)
    s_barrier""")
    for r in range(2):
        if r == 1:
            if OPT["stamp"]: a("s_waitcnt vmcnt(0)")
            stamp(a, 15, SVr)
            if OPT["stamp"]:
                for k in range(6): a(f"v_writelane_b32 v{SVr}, s{96+k}, {20+k}")
                a(f"s_sub_u32 s80, 60000, s{sSpin}\nv_writelane_b32 v{SVr}, s80, 26")
            stamp_out(a, SVr)
            a(f"""s_cmp_eq_u32 s{sW8}, 0
            s_cbranch_scc0 {K}_end""")
        b = 32 + 32 * r
        for w in range(4):
            for hf in range(2):
                if w < 3: a(f"ds_read_b128 {vr(b+8*w+4*hf,4)}, v{6+r} offset:{w*PLANE + 16*hf}")
                else: a(f"ds_read_b128 {vr(b+8*w+4*hf,4)}, v{10+r} offset:{16*hf}")
        a("s_waitcnt lgkmcnt(4)")
        for i in range(8): a(f"v_add_f32 v{b+i}, v{b+i}, v{b+8+i}")
        a("s_waitcnt lgkmcnt(0)")
        for i in range(8): a(f"v_add_f32 v{b+16+i}, v{b+16+i}, v{b+24+i}")
        for i in range(8): a(f"v_add_f32 v{b+i}, v{b+i}, v{b+16+i}")
        for i in range(4): a(f"v_cvt_pk_bf16_f32 v{b+8+i}, v{b+2*i}, v{b+2*i+1}")
        a(f"buffer_store_dwordx4 {vr(b+8,4)}, v{8+r}, s[{sOut}:{sOut+3}], s{sT0} offen {OPT.get('osc','')}")

def poll(a, lbl, ld, cond, slp):
    a(f"""s_mov_b32 s{sSpin}, 40000
    {lbl}:
    {ld}
    s_waitcnt vmcnt(0)""")
    cond()
    a(f"""s_cbranch_scc1 {lbl}_go
    s_sub_u32 s{sSpin}, s{sSpin}, 1
    s_cmp_eq_u32 s{sSpin}, 0
    s_cbranch_scc1 {lbl}_go
    s_sleep {slp}
    s_branch {lbl}
    {lbl}_go:""")

CL = [5, 6, 7]
def wo_lds_base(w): return (w >> 1) * RING + (w & 1) * 27648

def helper(a, K):
    RX = int(OPT["rx"])
    stamp(a, 0, SV)
    a(f"s_setprio {OPT.get('hprio', 2)}")
    vXs, vWs = [24, 25], [26, 27]
    vL16, vGr, vGw = 7, 8, 9
    t0, t1, t2, t3 = 10, 11, 12, 13
    vGv = 14
    WM = [sum(1 << L for L in range(64) if ((L & 15) ^ (((L >> 4) | (hi << 2)) << 1)) != 15) for hi in range(2)]
    sM0, sM1 = sEx, 64
    a(f"""v_lshrrev_b32 v{t0}, 4, v0
    v_lshlrev_b32 v{t1}, 1, v{t0}
    v_and_b32 v{t2}, 15, v0
    v_xor_b32 v{t1}, v{t1}, v{t2}
    v_mul_u32_u24 v{t0}, 3456, v{t0}""")
    for hi in range(2):
        if hi: a(f"v_xor_b32 v{t1}, 8, v{t1}")
        a(f"""v_mul_u32_u24 v{t2}, 52, v{t1}
        v_lshrrev_b32 v{t2}, 8, v{t2}
        v_mul_u32_u24 v{t2}, {1152-80}, v{t2}
        v_lshl_add_u32 v{t2}, v{t1}, 4, v{t2}
        v_add_u32 v{vWs[hi]}, v{t0}, v{t2}""")
    a(f"""v_lshlrev_b32 v{vL16}, 4, v0
    s_mul_i32 s{sT0}, s{sWv}, {16*3456}
    s_and_b32 s{sT1}, s{sPr}, 15
    s_mul_i32 s{sT1}, s{sT1}, 72
    s_add_u32 s{sWsrc}, s{sT0}, s{sT1}
    s_mul_i32 s{sWk}, s{sRot}, {64*3456}
    s_add_u32 s{sWcnt}, s{sWsrc}, s{sWk}
    s_lshl_b32 s{sWm0}, s{sWv}, 12
    s_lshl_b32 s{sT2}, s{sWv}, 11
    s_add_u32 s{sT2}, s{sT2}, {L_GT}
    s_mov_b32 s{sM0}, {WM[0] & 0xffffffff}
    s_mov_b32 s{sM0+1}, {WM[0] >> 32}
    s_mov_b32 s{sM1}, {WM[1] & 0xffffffff}
    s_mov_b32 s{sM1+1}, {WM[1] >> 32}""")
    def wdma2(hi):
        m = (sM0, sM1)[hi]
        a(f"""s_add_u32 m0, s{sWm0}, {L_WR + hi*2048}
        s_add_u32 s{sT0}, s{sWcnt}, {hi*8*3456}
        s_add_u32 s{sT1}, s{sWcnt}, {hi*8*3456 + 4*3456 - 1024}
        s_mov_b64 exec, s[{m}:{m+1}]
        buffer_load_dwordx4 v{vWs[hi]}, s[{sW}:{sW+3}], s{sT0} offen lds
        buffer_load_dwordx4 v{vWs[hi]}, s[{sW}:{sW+3}], s{sT1} offen offset:1024 lds
        s_mov_b64 exec, -1""")
    def wnext():
        a(f"""s_add_u32 s{sWk}, s{sWk}, {64*3456}
        s_cmp_ge_u32 s{sWk}, {576*3456}
        s_cselect_b32 s{sWk}, 0, s{sWk}
        s_add_u32 s{sWcnt}, s{sWsrc}, s{sWk}
        s_add_u32 s{sWm0}, s{sWm0}, {WSL}
        s_sub_u32 s{sT0}, s{sWm0}, {RW*WSL}
        s_cmp_ge_u32 s{sWm0}, {RW*WSL}
        s_cselect_b32 s{sWm0}, s{sT0}, s{sWm0}""")
    order = []
    a(f"""s_mov_b32 m0, s{sT2}
    s_nop 0
    buffer_load_dwordx4 v{vL16}, s[{sG}:{sG+3}], 0 offen lds
    s_mov_b64 exec, 0xff
    buffer_load_dwordx4 v{vL16}, s[{sG}:{sG+3}], 0 offen offset:1024 lds
    s_mov_b64 exec, -1""")
    order += ["G"] * 2
    wdma2(0); wdma2(1)
    order += ["W0"] * 4
    wnext()
    a(f"""v_lshrrev_b32 v{t0}, 3, v0
    v_mul_u32_u24 v{t0}, 1152, v{t0}
    v_and_b32 v{t1}, 7, v0
    v_lshrrev_b32 v{t2}, 4, v0
    v_xor_b32 v{t1}, v{t1}, v{t2}
    v_lshlrev_b32 v{t1}, 4, v{t1}
    v_xor_b32 v{t2}, 64, v{t1}
    v_add_u32 v{vXs[0]}, v{t0}, v{t1}
    v_add_u32 v{vXs[1]}, v{t0}, v{t2}
    v_add_u32 v{vXs[1]}, {8*1152-1024}, v{vXs[1]}
    s_lshl_b32 s{sXb}, s{sE}, 4
    s_lshl_b32 s{sT0}, s{sHH}, 3
    s_add_u32 s{sXb}, s{sXb}, s{sT0}
    s_add_u32 s{sXb}, s{sXb}, s{sTH}
    s_mul_i32 s{sXb}, s{sXb}, {16*1152}
    s_lshl_b32 s{sKo}, s{sRot}, 7
    s_lshl_b32 s{sRing}, s{sWv}, 11
    s_add_u32 s{sRing}, s{sRing}, {L_XR}
    s_add_u32 s{sRef}, s{sXb}, s{sKo}
    s_mov_b32 s{sXm0}, s{sRing}""")
    sTo = [56, 57, 58, 59]
    for tt in range(4):
        a(f"""s_xor_b32 s{sTo[tt]}, s{sTt}, {tt}
        s_mul_i32 s{sTo[tt]}, s{sTo[tt]}, {32*1152}""")
    xstate = [0]
    def xnext():
        a(f"""s_add_u32 s{sKo}, s{sKo}, 128
        s_cmp_ge_u32 s{sKo}, 1152
        s_cselect_b32 s{sKo}, 0, s{sKo}
        s_add_u32 s{sRef}, s{sXb}, s{sKo}""")
    def xdma(j):
        tt = j & 3
        if tt == 0 and j: xnext()
        a(f"""s_mov_b32 m0, s{sXm0}
        s_add_u32 s{sT0}, s{sRef}, s{sTo[tt]}
        buffer_load_dwordx4 v{vXs[0]}, s[{sX}:{sX+3}], s{sT0} offen lds
        buffer_load_dwordx4 v{vXs[1]}, s[{sX}:{sX+3}], s{sT0} offen offset:1024 lds
        s_add_u32 s{sXm0}, s{sXm0}, 8192
        s_cmp_ge_u32 s{sXm0}, {L_XR + RX*8192}
        s_cselect_b32 s{sXm0}, s{sRing}, s{sXm0}""")
    xdma(0); xdma(1)
    order += ["X0"] * 2 + ["X1"] * 2
    stamp(a, 16, SV)
    srd(a, sWo, 60, 61, 576 * 1152)
    a(f"""s_lshl_b32 s{sT0}, s{sWv}, 5
    s_add_u32 s{sT0}, s{sT0}, s{sT2}
    v_lshl_add_u32 v{vGr}, v0, 1, s{sT0}
    v_and_b32 v{t1}, 3, v0
    v_lshlrev_b32 v{t1}, 1, v{t1}
    v_and_b32 v{t2}, 8, v0
    v_or_b32 v{t1}, v{t1}, v{t2}
    v_xor_b32 v{t1}, 15, v{t1}
    v_lshlrev_b32 v{t1}, 4, v{t1}
    v_lshl_add_u32 v{t1}, v0, 8, v{t1}
    s_lshl_b32 s{sGk}, s{sRot}, 7
    v_mov_b32 v{t0}, {L_SYNC}
    v_mov_b32 v20, 0
    v_mov_b32 v21, 0
    v_mov_b32 v22, 0
    v_mov_b32 v23, 0
    ds_write_b128 v{t0}, v[20:23]
    ds_write_b128 v{t0}, v[20:23] offset:16
    ds_write_b128 v{t0}, v[20:23] offset:32""")
    def gate(slotreg):
        a(f"""v_add_u32 v{t0}, s{sGk}, v{vGr}
        s_mov_b64 exec, 0xffff
        ds_read_u16 v{vGv}, v{t0}
        v_add_u32 v{t0}, s{slotreg}, v{t1}
        s_add_u32 s{sGk}, s{sGk}, 128
        s_cmp_ge_u32 s{sGk}, 1152
        s_cselect_b32 s{sGk}, 0, s{sGk}
        s_waitcnt lgkmcnt(0)
        ds_write2_b32 v{t0}, v{vGv}, v{vGv} offset0:0 offset1:1
        s_mov_b64 exec, -1""")
    a(f"""s_sub_u32 s{sT3}, s{sWm0}, {WSL}
    s_waitcnt vmcnt(8)""")
    stamp(a, 17, SV)
    gate(sT3); gate(sWm0)
    vWos, vWos2, vPub, vC100, vPk, vA4, vSn = 28, 29, 30, 31, [76, 77, 78], 79, 80
    vP, vPa, vSy, vOne, vFa = 20, 17, 18, 19, 16
    vOm, vOt, vWm, vWt, vRd = [2, 252], 3, 4, 5, 6
    vVa3, vSy3 = [248, 253], 251
    HWB, HAC, HOF = 8, 188, 228
    u0, u1, u2, u3 = 84, 85, 86, 87
    a(f"""v_mul_u32_u24 v{u0}, 57, v0
    v_lshrrev_b32 v{u0}, 10, v{u0}
    v_mul_u32_u24 v{u1}, 18, v{u0}
    v_sub_u32 v{u1}, v0, v{u1}
    v_lshlrev_b32 v{u1}, 4, v{u1}
    s_and_b32 s{sT0}, s{sE}, 1
    s_lshl_b32 s{sT0}, s{sT0}, 1
    s_mul_i32 s{sT1}, s{sWv}, 3
    s_add_u32 s{sT0}, s{sT0}, s{sT1}
    v_add_u32 v{u0}, s{sT0}, v{u0}
    v_mul_u32_u24 v{vWos}, 1152, v{u0}
    v_add_u32 v{vWos}, v{vWos}, v{u1}
    v_cmp_le_u32 vcc, 6, v{u0}
    v_add_u32 v{u2}, {12*1152}, v{vWos}
    v_subrev_u32 v{u3}, {6*1152}, v{vWos}
    v_cndmask_b32 v{vWos2}, v{u2}, v{u3}, vcc
    s_mul_i32 s{sT0}, s{sHH}, {RING}
    s_mul_i32 s{sT1}, s{sTH}, 5120
    s_add_u32 s{sT0}, s{sT0}, s{sT1}
    v_add_u32 v{vPub}, s{sT0}, v{vL16}
    s_lshl_b32 s{sT0}, s{sPr}, 2
    v_mov_b32 v{vPa}, s{sT0}
    s_lshl_b32 s{sT0}, s{sPr}, 12
    s_lshl_b32 s{sT3}, s{sHH}, 7
    s_add_u32 s{sT0}, s{sT0}, s{sT3}
    s_add_u32 s{sT0}, s{sT0}, {WS_F}
    v_and_b32 v{vFa}, 1, v0
    v_lshl_add_u32 v{vFa}, v{vFa}, 2, s{sT0}
    v_lshrrev_b32 v{u0}, 1, v0
    v_lshl_add_u32 v{vFa}, v{u0}, 8, v{vFa}
    v_mov_b32 v{vSy}, {L_SYNC}
    v_mov_b32 v{vOne}, 1
    v_mov_b32 v{vC100}, 0x100
    v_lshlrev_b32 v{vA4}, 2, v0
    v_bfe_u32 v{u0}, v0, 2, 3
    v_mul_u32_u24 v{u0}, 288, v{u0}
    v_and_b32 v{u1}, 3, v0
    v_lshlrev_b32 v{u1}, 3, v{u1}
    v_add_u32 v{u1}, {L_WO}, v{u1}
    v_and_b32 v{u2}, 32, v0
    v_add3_u32 v{vPk[1]}, v{u0}, v{u1}, v{u2}
    s_lshl_b32 s{sT0}, s{sWv}, 6
    v_add_u32 v{vPk[0]}, s{sT0}, v{vPk[1]}
    v_bfe_u32 v{u0}, v0, 2, 2
    v_mul_u32_u24 v{u0}, 288, v{u0}
    v_lshrrev_b32 v{u2}, 4, v0
    v_lshlrev_b32 v{u2}, 5, v{u2}
    v_add3_u32 v{u0}, v{u0}, v{u1}, v{u2}
    s_lshl_b32 s{sT0}, s{sWv}, 7
    v_add_u32 v{vPk[2]}, s{sT0}, v{u0}""")
    for i in range(4): a(f"v_mov_b32 v{vSn+i}, {SENT}")
    p3_scal(a)
    p3_addr_w(a, vWm, vWt, u0, u1, u2)
    p3_addr_o(a, vOm, vOt, vRd, vVa3, vSy3, u0, u1, u2)
    p3_hint_addr(a, HOF)
    for i in range(40): a(f"v_mov_b32 v{HAC+i}, 0")
    a("""s_waitcnt vmcnt(2) lgkmcnt(0)
    s_barrier""")
    stamp(a, 1, SV)
    xdma(2)
    wdma2(0); wdma2(1)
    wnext()
    order += ["X2"] * 2 + ["W1"] * 4
    for j in range(3, RX - 1):
        xdma(j); order += [f"X{j}"] * 2
    stamp(a, 18, SV)
    a(f"""s_mov_b32 s{sIt}, 0
    {K}_hl:""")
    for tt in (0, 2):
        a(f"""s_waitcnt vmcnt(@W{tt}@) lgkmcnt(0)
        s_barrier""")
        if not OPT.get("noh"):
            wdma2(tt >> 1)
            xdma(tt + RX - 1); xdma(tt + RX)
            if tt == 0: gate(sWm0)
    wnext()
    a(f"""s_add_u32 s{sIt}, s{sIt}, 1
    s_cmp_lt_u32 s{sIt}, 7
    s_cbranch_scc1 {K}_hl""")
    need = {0: 99, 2: 99}
    for j in range(0, 36, 2):
        req = [f"X{min(j+2,35)}"]
        if j % 4 == 2 and j // 4 + 1 <= 8: req.append(f"W{j//4+1}")
        last = max(i for i, o in enumerate(order) if o in req)
        n_ = len(order) - 1 - last
        if j < 28:
            need[j % 4] = min(need[j % 4], n_)
            order += [f"W{j//4+2}"] * 2 + [f"X{j+RX-1}"] * 2 + [f"X{j+RX}"] * 2
        else:
            a(f"""s_waitcnt vmcnt({n_})
            s_barrier""")
            for jj in (j + RX - 1, j + RX):
                if jj <= 35:
                    xdma(jj); order += [f"X{jj}"] * 2
    for i in (0, 2): a.l = [x.replace(f"@W{i}@", str(need[i])) for x in a.l]
    stamp(a, 2, SV)
    sPH, sPC = sWsrc, sWm0
    sQ = sGk
    a(f"""s_lshl_b32 s{sPH}, s{sPr}, 1
    s_and_b32 s{sT0}, s{sE}, 1
    s_add_u32 s{sPH}, s{sPH}, s{sT0}
    s_lshr_b32 s{sPC}, s{sE}, 1
    s_and_b32 s{sT0}, s{sPH}, 31
    s_mul_i32 s{sT0}, s{sT0}, {18*1152}
    s_mul_i32 s{sT1}, s{sPC}, 288
    s_add_u32 s{sT0}, s{sT0}, s{sT1}
    s_mul_i32 s{sT1}, s{sWv}, 864
    s_add_u32 m0, s{sT1}, {L_WO}
    s_mov_b32 exec_hi, 0x003fffff
    buffer_load_dwordx4 v{vWos}, s[{sWo}:{sWo+3}], s{sT0} offen lds
    s_add_u32 m0, s{sT1}, {L_WO + 4*864}
    s_nop 0
    buffer_load_dwordx4 v{vWos2}, s[{sWo}:{sWo+3}], s{sT0} offen lds
    s_mov_b64 exec, 1
    buffer_load_dword v{vP+1}, v{vPa}, s[{sD}:{sD+3}], 0 offen sc1
    s_mov_b64 exec, -1
    s_mul_i32 s{sRing}, s{sHH}, {RING}
    s_mul_i32 s{sT2}, s{sTH}, 5120
    s_mul_i32 s{sT1}, s{sE}, {2*BLK}
    s_add_u32 s{sT1}, s{sT1}, s{sKVg}
    s_add_u32 s{sT1}, s{sT1}, s{sT2}
    s_mov_b32 s{sQ}, s{sTH}
    s_cmp_eq_u32 s{sTH}, 1
    s_cselect_b32 s{sM0}, 0xffff, -1
    s_cselect_b32 s{sM0+1}, 0, -1
    s_barrier""")
    t0 = vPub
    stamp(a, 3, SV)
    for i in range(5): a(f"ds_read_b128 {vr(32+4*i,4)}, v{t0} offset:{1024*i}")
    a(f"s_mov_b32 s{sXb}, s{sT1}")
    def publish(ph):
        for i in range(5 * ph, 5 * ph + 5):
            if i % 5 == 4: a(f"""s_add_u32 s{sXb}, s{sXb}, 4096
            s_mov_b64 exec, s[{sM0}:{sM0+1}]""")
            if ph == 0: a(f"s_waitcnt lgkmcnt({4-i})")
            a(f"buffer_store_dwordx4 {vr(32+4*i,4)}, v{vL16}, s[{sWS}:{sWS+3}], s{sXb} offen offset:{1024*((i%5)%4)} sc1")
            if i % 5 == 4: a(f"""s_mov_b64 exec, -1
            s_add_u32 s{sXb}, s{sXb}, {BLK-4096}""")
    publish(0)
    a("s_barrier")
    for i in range(5, 10): a(f"ds_read_b128 {vr(32+4*i,4)}, v{t0} offset:{BLK + 1024*(i-5)}")
    def arrive(word, vm=0):
        a(f"""s_mov_b64 exec, 1
        s_waitcnt vmcnt({vm})
        ds_add_rtn_u32 v{vP}, v{vSy}, v{vOne} offset:{4*word}
        s_waitcnt lgkmcnt(0)
        v_readfirstlane_b32 s{sT1}, v{vP}
        s_mov_b64 exec, -1
        s_cmp_eq_u32 s{sT1}, 3""")
    def lds_wait(lbl, word):
        a(f"""s_mov_b32 s{sSpin}, 400000
        {lbl}:
        ds_read_b32 v{vP}, v{vSy} offset:{4*word}
        s_waitcnt lgkmcnt(0)
        v_readfirstlane_b32 s{sT1}, v{vP}
        s_cmp_lg_u32 s{sT1}, 0
        s_cbranch_scc1 {lbl}_go
        s_sub_u32 s{sSpin}, s{sSpin}, 1
        s_cmp_eq_u32 s{sSpin}, 0
        s_cbranch_scc1 {lbl}_go
        s_sleep 6
        s_branch {lbl}
        {lbl}_go:""")
    def flag(off, vm):
        a(f"""s_lshl_b32 s{sT0}, s{sE}, 8
        s_lshl_b32 s{sT1}, s{sTH}, 2
        s_add_u32 s{sT0}, s{sT0}, s{sT1}
        s_mov_b64 exec, 1
        s_waitcnt vmcnt({vm})
        buffer_store_dword v{vOne}, v{vFa}, s[{sWS}:{sWS+3}], s{sT0} offen offset:{off} sc1
        s_mov_b64 exec, -1""")
    flag(0, 0)
    stamp(a, 4, SV)
    def rst_ok(r):
        a(f"""v_readfirstlane_b32 s{sT0}, v{r}
        s_and_b32 s{sT0}, s{sT0}, 0xff
        s_cmp_ge_u32 s{sT0}, 8""")
    def kv_ready():
        a(f"""v_cmp_eq_u32 vcc, 1, v{vP}
        s_nop 1
        s_cmp_eq_u32 vcc_lo, 0xffff""")
    a("s_mov_b64 exec, 1")
    rst_ok(vP + 1)
    a(f"s_cbranch_scc1 {K}_pl0_go")
    poll(a, f"{K}_pl0", f"buffer_load_dword v{vP}, v{vPa}, s[{sD}:{sD+3}], 0 offen sc1", lambda: rst_ok(vP), 8)
    a(f"""s_add_u32 s{sT2}, s{sTH}, 1
    s_xor_b32 s{sT2}, s{sT2}, s{sE}
    s_lshl_b32 s{sT2}, s{sT2}, 8
    s_mov_b64 exec, 3
    s_mov_b32 s{sSpin}, 40000
    buffer_load_dword v{vP}, v{vFa}, s[{sWS}:{sWS+3}], s{sT2} offen sc1
    s_sleep {OPT.get("fslp", 4)}
    buffer_load_dword v{vP+1}, v{vFa}, s[{sWS}:{sWS+3}], s{sT2} offen sc1
    s_sleep {OPT.get("fslp", 4)}
    {K}_pl1:""")
    for r_ in range(3):
        a(f"""buffer_load_dword v{vP+(r_+2)%3}, v{vFa}, s[{sWS}:{sWS+3}], s{sT2} offen sc1
        s_waitcnt vmcnt(2)
        v_cmp_eq_u32 vcc, 1, v{vP+r_}
        s_nop 1
        s_cmp_eq_u32 vcc_lo, 3
        s_cbranch_scc1 {K}_kgo""")
    a(f"""s_sub_u32 s{sSpin}, s{sSpin}, 1
    s_cmp_lg_u32 s{sSpin}, 0
    s_cbranch_scc1 {K}_pl1
    {K}_kgo:
    s_mov_b64 exec, -1""")
    stamp(a, 5, SV)
    def ldblock():
        a(f"s_call_b64 s[{sRet}:{sRet+1}], {K}_ldblk")
    ldblock()
    a("s_waitcnt lgkmcnt(0)")
    publish(1)
    a("s_waitcnt vmcnt(5)")
    stamp(a, 6, SV)
    a("s_barrier")
    flag(2048, 0)
    a("s_mov_b64 exec, 0xffff")
    poll(a, f"{K}_pl1a", f"buffer_load_dword v{vP}, v{vFa}, s[{sWS}:{sWS+3}], 0 offen sc1", kv_ready, 2)
    a("s_mov_b64 exec, -1")
    ldblock(); ldblock()
    a("s_waitcnt vmcnt(0)")
    stamp(a, 7, SV)
    a("s_barrier")
    a("s_mov_b64 exec, 0xffff")
    poll(a, f"{K}_pl1b", f"buffer_load_dword v{vP}, v{vFa}, s[{sWS}:{sWS+3}], 0 offen offset:2048 sc1", kv_ready, 2)
    a("s_mov_b64 exec, -1")
    ldblock(); ldblock()
    a(f"""ds_read_b64_tr_b16 {vr(64,2)}, v{vPk[0]}
    ds_read_b64_tr_b16 {vr(66,2)}, v{vPk[0]} offset:2304
    ds_read_b64_tr_b16 {vr(68,2)}, v{vPk[1]} offset:256
    ds_read_b64_tr_b16 {vr(70,2)}, v{vPk[1]} offset:{256+2304}
    ds_read_b64_tr_b16 {vr(72,2)}, v{vPk[2]} offset:{16*288-128}
    s_lshl_b32 s{sT0}, s{sPC}, 6
    s_add_u32 s{sT0}, s{sT0}, s{sPH}
    s_mul_i32 s{sT0}, s{sT0}, 4608
    s_add_u32 s{sT0}, s{sT0}, {WS_WOM}
    s_lshl_b32 s{sT1}, s{sWv}, 10
    s_add_u32 s{sT1}, s{sT1}, s{sT0}
    s_lshl_b32 s{sT2}, s{sPC}, 4
    s_lshr_b32 s{sT3}, s{sPH}, 2
    s_add_u32 s{sT2}, s{sT2}, s{sT3}
    s_mul_i32 s{sT2}, s{sT2}, 2304
    s_and_b32 s{sT3}, s{sPH}, 3
    s_lshl_b32 s{sT3}, s{sT3}, 2
    s_add_u32 s{sT2}, s{sT2}, s{sT3}
    s_lshl_b32 s{sT3}, s{sWv}, 10
    s_add_u32 s{sT2}, s{sT2}, s{sT3}
    s_add_u32 s{sT2}, s{sT2}, {WS_WOT - 1024}
    s_waitcnt lgkmcnt(0)
    buffer_store_dwordx4 {vr(64,4)}, v{vL16}, s[{sWS}:{sWS+3}], s{sT1} offen sc1
    s_cmp_eq_u32 s{sWv}, 0
    s_cbranch_scc0 {K}_wo_tail
    s_mov_b32 exec_hi, 0
    s_add_u32 s{sT3}, s{sT0}, 4096
    buffer_store_dwordx4 {vr(68,4)}, v{vL16}, s[{sWS}:{sWS+3}], s{sT3} offen sc1
    s_branch {K}_wo_done
    {K}_wo_tail:
    s_cmp_eq_u32 s{sWv}, 3
    s_cselect_b32 exec_lo, 0xffff, -1
    s_cselect_b32 exec_hi, 0, -1
    buffer_store_dword v72, v{vL16}, s[{sWS}:{sWS+3}], s{sT2} offen sc1
    {K}_wo_done:
    s_mov_b64 exec, -1""")
    a(f"""s_lshl_b32 s{sT1}, s{sE}, 1
    s_add_u32 s{sT1}, s{sT1}, s{sTH}
    s_lshl_b32 s{sT1}, s{sT1}, 8
    s_add_u32 s{sT1}, s{sT1}, s{sBH}
    s_mul_i32 s{sT1}, s{sT1}, 1152
    s_add_u32 s{sT1}, s{sT1}, {WS_O}""")
    for x in range(4):
        a(f"""buffer_store_dwordx4 {vr(vSn,4)}, v{vL16}, s[{sWS}:{sWS+3}], s{sT1} offen sc1
        s_mov_b64 exec, 0xff
        buffer_store_dwordx4 {vr(vSn,4)}, v{vL16}, s[{sWS}:{sWS+3}], s{sT1} offen offset:1024 sc1
        s_mov_b64 exec, -1
        s_add_u32 s{sT1}, s{sT1}, {64*1152}""")
    arrive(1)
    a(f"""s_cbranch_scc0 {K}_sg2
    s_mov_b64 exec, 1
    buffer_atomic_add v{vC100}, v{vPa}, s[{sD}:{sD+3}], 0 offen
    s_mov_b64 exec, -1
    {K}_sg2:""")
    a("s_barrier")
    ldblock(); ldblock()
    stamp(a, 12, SV)
    a(f"""s_cmp_eq_u32 s{sWv}, 0
    s_cbranch_scc0 {K}_gw
    s_mov_b32 exec_hi, 0""")
    def all_init():
        a(f"""v_bfe_u32 v{vP}, v{vP}, 8, 8
        v_cmp_le_u32 vcc, 8, v{vP}
        s_nop 1
        s_cmp_eq_u32 vcc_lo, -1""")
    poll(a, f"{K}_pl2", f"buffer_load_dword v{vP}, v{vA4}, s[{sD}:{sD+3}], 0 offen sc1", all_init, 32)
    a(f"""ds_write_b32 v{vSy}, v{vOne} offset:12
    s_mov_b64 exec, -1
    s_branch {K}_ggo
    {K}_gw:""")
    lds_wait(f"{K}_lw2", 3)
    a(f"{K}_ggo:")
    HC = [0, 1, 2, 3, 4]
    hreg = lambda s, ct: HWB + 4 * (5 * s + ct)
    p3_wo_loads(a, HC, hreg, vWm, vWt)
    a("s_waitcnt vmcnt(45)")
    stamp(a, 8, SV)
    a("s_barrier")
    p3_wo_loads(a, [8], lambda s, ct: HOF + 4 * (s % 4), vWm, vWt)
    a(f"""s_mul_i32 s{sT0}, s{sTH}, 27648
    s_add_u32 s{sT0}, s{sT0}, s{sRing}
    s_barrier""")
    for s in range(9):
        for i, ct in enumerate(CL):
            n = 3 * s + i
            if s < 8:
                a(f"""s_add_u32 m0, s{sT0}, {1024*n}
                s_add_u32 s{sT3}, s{sGW[s>>1]}, {2*(s&1)*4608 + 512*ct}
                buffer_load_dwordx4 v{vWm}, s[{sWS}:{sWS+3}], s{sT3} offen sc1 lds""")
            else:
                a(f"""s_add_u32 m0, s{sT0}, {1024*n}
                s_add_u32 s{sT3}, s{sWtb}, {256*ct}
                buffer_load_dwordx4 v{vWt}, s[{sWS}:{sWS+3}], s{sT3} offen sc1 lds""")
    a(f"""s_mul_i32 s{sT0}, s{sP3T}, {32*1152}
    buffer_load_dword v1, v{vL16}, s[{sOut}:{sOut+3}], s{sT0} offen
    s_waitcnt vmcnt(0)""")
    stamp(a, 9, SV)
    a("s_barrier")
    stamp(a, 10, SV)
    p3_helper(a, HC, hreg, HAC, HOF, vOm, vOt, vRd, vL16, vVa3, vSy3, int(OPT.get("hslp", 1)))
    stamp(a, 11, SV)
    if OPT["stamp"]: a(f"v_mov_b32 v30, v{SV}\nv_mov_b32 v31, v{SV+1}")
    a(f"s_branch {K}_final")
    a(f"""{K}_ldblk:
    s_add_u32 s{sQ}, s{sQ}, 2
    s_cmp_ge_u32 s{sQ}, 9
    s_cselect_b32 s{sT0}, 0, 7
    s_cselect_b32 s{sT2}, 1, 0
    s_add_u32 s{sT0}, s{sT0}, s{sQ}
    s_and_b32 s{sT0}, s{sT0}, 7
    s_xor_b32 s{sT0}, s{sT0}, s{sE}
    s_lshl_b32 s{sT0}, s{sT0}, 1
    s_add_u32 s{sT0}, s{sT0}, s{sT2}
    s_mul_i32 s{sT1}, s{sT0}, {BLK}
    s_add_u32 s{sT1}, s{sT1}, s{sKVg}
    s_and_b32 s{sT0}, s{sQ}, 7
    s_mul_i32 s{sT0}, s{sT0}, {BLK}
    s_add_u32 s{sT0}, s{sT0}, s{sRing}""")
    for i in range(10):
        if i % 4 == 0:
            a(f"""s_add_u32 m0, s{sT0}, {1024*i}
            s_add_u32 s{sT2}, s{sT1}, {1024*i}""")
        if i == 9: a("s_mov_b64 exec, 0xffff")
        a(f"buffer_load_dwordx4 v{vL16}, s[{sWS}:{sWS+3}], s{sT2} offen offset:{1024*(i%4)} sc1 lds")
    a(f"""s_mov_b64 exec, -1
    s_setpc_b64 s[{sRet}:{sRet+1}]""")

def compute(a, K):
    RX = int(OPT["rx"])
    stamp(a, 0, 30)
    vXr = [2, 3, 20, 21]
    vWc = [4, 5, 9, 1]
    t0, t1, t2, t3, t4, t5 = 64, 65, 66, 67, 68, 69
    WF = 32
    XF = [96, 112]
    ACC = 128
    def reset_flags():
        a(f"""s_cmp_eq_u32 s{sWv}, 0
        s_cselect_b32 s{sCnt}, {OPT.get("rstit", 4)}, 100
        s_cbranch_scc0 {K}_norst
        s_lshl_b32 s{sT0}, s{sPr}, 12
        s_lshl_b32 s{sT1}, s{sE}, 8
        s_add_u32 s{sT0}, s{sT0}, s{sT1}
        s_add_u32 s{sT0}, s{sT0}, {WS_F}
        v_lshlrev_b32 v75, 7, v0
        v_mov_b32 v76, 0
        v_mov_b32 v77, 0
        s_mov_b64 exec, 3
        buffer_store_dwordx2 v[76:77], v75, s[{sWS}:{sWS+3}], s{sT0} offen sc1
        buffer_store_dwordx2 v[76:77], v75, s[{sWS}:{sWS+3}], s{sT0} offen offset:2048 sc1""")
        if OPT.get("touch", "1") == "1":
            a(f"""s_mov_b64 exec, 1
            buffer_load_dword v78, v75, s[{sWS}:{sWS+3}], s{sKVg} offen
            s_add_u32 s{sT0}, s{sKVg}, {2*KVH-128}
            buffer_load_dword v79, v75, s[{sWS}:{sWS+3}], s{sT0} offen""")
        a(f"""s_mov_b64 exec, -1
        {K}_norst:""")
    a(f"v_mov_b32 v{ACC}, 0")
    if OPT.get("rstpos", "late") == "start": reset_flags()
    a(f"""v_and_b32 v{t0}, 15, v0
    v_lshrrev_b32 v{t1}, 4, v0
    v_bfe_u32 v{t2}, v0, 1, 3
    v_xor_b32 v{t2}, v{t2}, v{t1}
    v_lshlrev_b32 v{t2}, 4, v{t2}
    v_lshlrev_b32 v{t3}, 7, v{t0}
    s_lshl_b32 s{sT0}, s{sTH}, 12
    s_lshl_b32 s{sT1}, s{sHH}, 11
    s_add_u32 s{sT0}, s{sT0}, s{sT1}
    s_add_u32 s{sT0}, s{sT0}, {L_XR}
    v_add_u32 v{t3}, s{sT0}, v{t3}
    v_add_u32 v{vXr[0]}, v{t3}, v{t2}
    v_xor_b32 v{t2}, 64, v{t2}
    v_add_u32 v{vXr[1]}, v{t3}, v{t2}
    v_xor_b32 v{vXr[2]}, 2048, v{vXr[0]}
    v_xor_b32 v{vXr[3]}, 2048, v{vXr[1]}
    v_bfe_u32 v{t2}, v0, 2, 2
    v_lshl_add_u32 v{t2}, v{t1}, 3, v{t2}
    v_lshlrev_b32 v{t2}, 8, v{t2}
    v_bfe_u32 v{t4}, v0, 2, 3
    v_lshlrev_b32 v{t4}, 5, v{t4}
    v_and_b32 v{t3}, 3, v0
    v_lshlrev_b32 v{t3}, 3, v{t3}
    s_mul_i32 s{sT1}, s{sHH}, 40
    s_mov_b32 s{sT0}, {192 | (112 << 8) | (32 << 16) | (240 << 24)}
    v_lshrrev_b32 v{t5}, v{t3}, s{sT0}
    v_and_b32 v{t5}, 0xff, v{t5}
    v_xor_b32 v{t5}, v{t5}, v{t4}
    v_add_u32 v{vWc[3]}, v{t2}, v{t5}
    v_add_u32 v{t3}, s{sT1}, v{t3}""")
    for ct, off in enumerate((80, 0, 160)):
        a(f"""v_add_u32 v{t5}, {off}, v{t3}
        v_xor_b32 v{t5}, v{t5}, v{t4}
        v_add_u32 v{vWc[ct]}, v{t2}, v{t5}""")
    for i in range(1, 128):
        if i % 32 < 28: a(f"v_mov_b32 v{ACC+i}, 0")
    vKa, vTa, vVa, vIdx = 6, 7, 8, 10
    vKw, vQw, vVw, vMul, vSq, vSqh = 11, 12, 13, 24, 25, 19
    vSt, vStt, vWm3, vWt, vCp, vOnes, vQr = 14, 15, 16, 17, 18, 22, 23
    vM0, vDs, vDt, vDe, vDh = 70, 71, 72, 73, 74
    MA = lambda tt, i: ACC + 32 * tt + 28 + i
    sBlk, sScr = sXb, sKo
    a(f"""s_mul_i32 s{sRing}, s{sHH}, {RING}
    s_mul_i32 s{sBlk}, s{sTH}, {BLK}
    s_add_u32 s{sBlk}, s{sBlk}, s{sRing}
    s_mul_i32 s{sScr}, s{sWv}, 5120
    s_add_u32 s{sScr}, s{sScr}, {L_SCR}
    v_lshrrev_b32 v{t2}, 2, v{t0}
    v_and_b32 v{t3}, 3, v0
    v_lshl_add_u32 v{t4}, v{t2}, 3, v{t3}
    v_lshrrev_b32 v{t5}, 5, v0
    v_lshlrev_b32 v{t5}, 9, v{t5}
    v_and_b32 v{vQw}, 16, v0
    v_lshrrev_b32 v{vQw}, 1, v{vQw}
    v_add_u32 v{t5}, v{t5}, v{vQw}
    v_lshl_add_u32 v{vKw}, v{t4}, 4, v{t5}
    s_lshl_b32 s{sT0}, s{sTH}, 11
    s_add_u32 s{sT0}, s{sT0}, s{sRing}
    v_add_u32 v{vKw}, s{sT0}, v{vKw}
    v_lshl_add_u32 v{vQw}, v{t0}, 4, v{t5}
    v_add_u32 v{vQw}, s{sScr}, v{vQw}
    v_mul_u32_u24 v{vVw}, 304, v{t1}
    v_lshl_add_u32 v{vVw}, v{t0}, 4, v{vVw}
    s_mul_i32 s{sT0}, s{sTH}, 2432
    s_add_u32 s{sT0}, s{sT0}, s{sRing}
    v_add_u32 v{vVw}, s{sT0}, v{vVw}""")
    a(f"""s_mul_i32 s{sT2}, s{sTH}, 2432
    s_mul_i32 s{sT3}, s{sTH}, 5120
    v_mul_u32_u24 v{vM0}, 304, v{t2}
    v_lshl_add_u32 v{vM0}, v{t3}, 1, v{vM0}
    s_add_u32 s{sT0}, s{sT2}, {4608+256}
    v_add_u32 v{vM0}, s{sT0}, v{vM0}
    s_lshl_b32 s{sT0}, s{sTH}, 3
    s_add_u32 s{sT0}, s{sT0}, 4096
    s_add_u32 s{sT1}, s{sT3}, {L_SCR+4096-1024}
    v_lshlrev_b32 v{t5}, 9, v{t1}
    v_add_u32 v{t5}, s{sT1}, v{t5}
    v_mov_b32 v{vDh}, s{sT0}
    v_cmp_eq_u32 vcc, 1, v{t1}
    v_mov_b32 v{vDs}, 64
    v_mov_b32 v{vDt}, 4
    v_cndmask_b32 v{t5}, v{t5}, v{vDh}, vcc
    v_lshl_add_u32 v{t5}, v{t4}, 4, v{t5}
    v_cmp_eq_u32 vcc, 0, v{t1}
    v_mov_b32 v{vDe}, 2
    v_mov_b32 v{t3}, 1216
    v_cndmask_b32 v{vM0}, v{t5}, v{vM0}, vcc
    v_cndmask_b32 v{vDs}, v{vDs}, 8, vcc
    v_cndmask_b32 v{vDt}, v{vDt}, v{t3}, vcc
    v_cndmask_b32 v{vDe}, v{vDe}, 16, vcc
    v_cmp_gt_u32 vcc, 2, v{t1}
    v_mov_b32 v{vDh}, {2*5120}
    v_mov_b32 v{t3}, {RING}
    v_cndmask_b32 v{vDh}, v{vDh}, v{t3}, vcc
    v_mov_b32 v{t5}, 8
    v_mov_b32 v{t3}, {BLK}
    v_cndmask_b32 v{t5}, v{t5}, v{t3}, vcc
    v_mul_u32_u24 v{t3}, s{sHH}, v{vDs}
    v_add_u32 v{MA(0,0)}, v{vM0}, v{t3}
    v_sub_u32 v{t3}, v{vDs}, v{t3}
    v_add3_u32 v{MA(0,2)}, v{vM0}, v{t3}, v{vDh}
    v_add_u32 v{MA(0,1)}, v{MA(0,0)}, v{vDe}
    v_add_u32 v{MA(0,3)}, v{MA(0,2)}, v{vDe}""")
    for i in range(4):
        a(f"""v_add_u32 v{MA(1,i)}, v{MA(0,i)}, v{vDt}
        v_add_u32 v{MA(2,i)}, v{MA(0,i)}, v{t5}
        v_add_u32 v{MA(3,i)}, v{MA(1,i)}, v{t5}""")
    a(f"""v_cmp_eq_u32 vcc, 2, v{t1}
    v_mov_b32 v{vMul}, 1.0
    v_mov_b32 v{t2}, {f32(CSCALE)}
    v_cndmask_b32 v{vMul}, v{vMul}, v{t2}, vcc""")
    a(f"""v_and_b32 v{t2}, 16, v0
    v_lshrrev_b32 v{t2}, 2, v{t2}
    v_add_u32 v{t2}, v{t2}, v{t4}
    v_lshlrev_b32 v{vSq}, 4, v{t2}
    s_add_u32 s{sT1}, s{sScr}, 4096
    v_add_u32 v{vSq}, s{sT1}, v{vSq}
    v_and_b32 v{t0}, 31, v0
    v_lshrrev_b32 v{t1}, 5, v0
    v_mul_u32_u24 v{t3}, 304, v{t1}
    v_lshl_add_u32 v{t3}, v{t0}, 4, v{t3}
    v_add_u32 v{t3}, s{sRing}, v{t3}
    v_cmp_gt_u32 vcc, 19, v{t0}
    v_mov_b32 v{vVa}, {LDS_BYTES}
    v_lshl_add_u32 v{vKa}, v0, 4, s{sRing}
    v_cndmask_b32 v{vVa}, v{vVa}, v{t3}, vcc
    v_lshl_add_u32 v{vTa}, v{t0}, 4, s{sRing}
    v_mov_b32 v{vIdx}, 0xdddddddd
    v_lshl_add_u32 v{vSqh}, v{t1}, 2, v{vSq}
    s_mov_b32 s{sWsrc}, 0
    s_mov_b32 s{sXm0}, 0
    v_mul_u32_u24 v{vOnes}, 304, v0
    v_add_u32 v{vOnes}, s{sBlk}, v{vOnes}
    v_lshl_add_u32 v{vQr}, v0, 4, s{sScr}
    s_mul_i32 s{sT0}, s{sTH}, 27648
    s_add_u32 s{sT0}, s{sT0}, s{sRing}
    v_lshl_add_u32 v{vCp}, v0, 4, s{sT0}
    s_lshl_b32 s{sT0}, s{sHH}, 4
    v_xor_b32 v{t2}, s{sT0}, v0
    v_lshlrev_b32 v{vSt}, 4, v{t2}
    v_mul_u32_u24 v{vStt}, {64*1152 - 128}, v{t1}
    v_lshl_add_u32 v{vStt}, v{t2}, 2, v{vStt}
    s_lshl_b32 s{sT1}, s{sE}, 1
    s_add_u32 s{sT1}, s{sT1}, s{sTH}
    s_lshl_b32 s{sT1}, s{sT1}, 8
    s_add_u32 s{sT1}, s{sT1}, s{sBH}
    s_mul_i32 s{sT1}, s{sT1}, 1152
    s_add_u32 s{sRef}, s{sT1}, {WS_O}
    s_cmp_ge_u32 s{sPr}, 16
    s_mov_b32 s60, {f32(-LOG2E)}
    s_cselect_b32 s60, {f32(LOG2E)}, s60
    s_mov_b32 s61, {f32(2.0**-40)}
    s_mov_b32 s64, {f32(2.0**40) if not OPT['force_fb'] else f32(2.0**-39)}
    s_mov_b32 s65, {f32(CSCALE)}""")
    for x in range(4):
        a(f"""s_xor_b32 s{56+x}, s{sTt}, {x}
        s_mul_i32 s{56+x}, s{56+x}, {64*1152}
        s_add_u32 s{56+x}, s{56+x}, s{sRef}""")
    p3_scal(a)
    p3_addr_w(a, vWm3, vWt, t0, t1, t2)
    coff = (48, 0, 96, 0)
    def wfrag(k2):
        r = []
        for ct in range(4):
            for hf in range(2):
                r.append(f"ds_read_b64_tr_b16 {vr(WF+16*k2+4*ct+2*hf,2)}, v{vWc[ct]} offset:{L_WR + (32*k2+4*hf)*256}")
        return r
    def xread(buf):
        r = []
        for k2 in range(2):
            for s in range(2):
                r.append(f"ds_read_b128 {vr(XF[buf]+8*k2+4*s,4)}, v{vXr[2*s+k2]}")
        return r
    xadv = [f"s_add_u32 s{sXm0}, s{sXm0}, 1", f"s_cmp_eq_u32 s{sXm0}, {RX}", f"s_cselect_b32 s{sXm0}, 0, s{sXm0}",
            f"s_cselect_b32 s{sT1}, s{sWk}, s{sWcnt}",
            ] + [f"v_add_u32 v{c}, s{sT1}, v{c}" for c in vXr]
    wadv = [f"s_add_u32 s{sWsrc}, s{sWsrc}, 1", f"s_cmp_eq_u32 s{sWsrc}, {RW}", f"s_cselect_b32 s{sWsrc}, 0, s{sWsrc}",
            f"s_cselect_b32 s{sT2}, s{sWm0}, s{sGk}",
            ] + [f"v_add_u32 v{c}, s{sT2}, v{c}" for c in vWc]
    a(f"""s_mov_b32 s{sWk}, {(-(RX-1)*8192) & 0xffffffff}
    s_mov_b32 s{sWcnt}, 8192
    s_mov_b32 s{sWm0}, {(-(RW-1)*WSL) & 0xffffffff}
    s_mov_b32 s{sGk}, {WSL}""")
    if OPT.get("rstpos", "late") == "late": reset_flags()
    a("s_barrier")
    stamp(a, 1, 30)
    if OPT.get("rstpos", "late") == "afterp": reset_flags()
    for m in xread(0) + xadv + wfrag(0) + wfrag(1): a(m)
    QM, QT = 32, 48
    KF, V0, V1, KT = [80, 84], [88, 92], [96, 100], [56, 60]
    vGl = 26
    TP = 108
    def epi(tt):
        tp = (64, 80)[tt % 2]
        r = []
        for s in range(2):
            b = ACC + 32 * tt + 16 * s
            k_, q_ = tp + 2 * s, tp + 4 + 2 * s
            r += f"""v_cvt_pk_bf16_f32 v{k_}, v{b}, v{b+1}
            v_cvt_pk_bf16_f32 v{k_+1}, v{b+2}, v{b+3}
            v_mul_f32 v{b+4}, s65, v{b+4}
            v_mul_f32 v{b+5}, s65, v{b+5}
            v_mul_f32 v{b+6}, s65, v{b+6}
            v_mul_f32 v{b+7}, s65, v{b+7}
            ds_write_b64 v{vKw}, {vr(k_,2)} offset:{(tt>>1)*BLK + (tt&1)*1024 + s*64}
            v_cvt_pk_bf16_f32 v{q_}, v{b+4}, v{b+5}
            v_cvt_pk_bf16_f32 v{q_+1}, v{b+6}, v{b+7}
            v_cvt_pk_bf16_f32 v{tp+8+2*s}, v{b+8}, v{b+9}
            v_cvt_pk_bf16_f32 v{tp+9+2*s}, v{b+10}, v{b+11}
            ds_write_b64 v{vQw}, {vr(q_,2)} offset:{tt*1024 + s*256}""".split("\n")
        b = ACC + 32 * tt
        r += f"""ds_write_b128 v{vVw}, {vr(tp+8,4)} offset:{4608 + (tt>>1)*BLK + (tt&1)*1216}
        v_mul_f32 v{b+12}, v{vMul}, v{b+12}
        v_mul_f32 v{b+13}, v{vMul}, v{b+13}
        v_mul_f32 v{b+14}, v{vMul}, v{b+14}
        v_mul_f32 v{b+15}, v{vMul}, v{b+15}
        v_cvt_pk_bf16_f32 v{tp+12}, v{b+12}, v{b+13}
        v_cvt_pk_bf16_f32 v{tp+13}, v{b+14}, v{b+15}
        ds_write_b16 v{MA(tt,0)}, v{tp+12}
        ds_write_b16_d16_hi v{MA(tt,1)}, v{tp+12}
        ds_write_b16 v{MA(tt,2)}, v{tp+13}
        ds_write_b16_d16_hi v{MA(tt,3)}, v{tp+13}""".split("\n")
        return r
    NM = 14
    def chunk(last):
        for tt in range(4):
            cur = XF[tt & 1]
            mf = []
            for k2 in range(2):
                for ct in range(4):
                    for s in range(2 if ct < 3 else 1):
                        d = ACC + 32 * tt + 16 * s + 4 * ct
                        w_, x_ = vr(WF + 16 * k2 + 4 * ct, 4), vr(cur + 8 * k2 + 4 * s, 4)
                        A_, B_ = (x_, w_) if ct == 2 else (w_, x_)
                        mf.append(f"v_mfma_f32_16x16x32_bf16 {vr(d,4)}, {A_}, {B_}, {vr(d,4)}")
            fill = {i: [] for i in range(-1, NM)}
            xr = xread((tt + 1) & 1)
            if tt == 0:
                fill[-1].append("s_waitcnt lgkmcnt(8)")
                for i in range(4): fill[i].append(xr[i])
                fill[6].append("s_waitcnt lgkmcnt(4)")
                for i in range(8): fill[(4, 5, 7, 8, 9, 10, 11, 12)[i]].append(xadv[i])
                if last:
                    for i in range(4): fill[i].append(f"v_mov_b32 v{92+i}, 0x3f803f80")
                    fill[13] += ["s_mov_b64 exec, 0xffff", f"ds_write_b128 v{vOnes}, v[92:95] offset:{4608+288}", "s_mov_b64 exec, -1"]
            elif last:
                if tt < 3:
                    for i in range(4): fill[i // 2].append(xr[i])
                    if tt == 1:
                        for i in range(8): fill[2 + i // 3].append(xadv[i])
                e = epi(tt - 1)
                st = (0, 5, 2, 1)[tt]
                per = -(-len(e) // (NM - st))
                for i, m in enumerate(e): fill[st + i // per].append(m)
            elif tt == 3:
                for i in range(4): fill[-1 + (i + 1) // 2].append(xr[i])
                w0, w1 = wfrag(0), wfrag(1)
                lastuse = (1, 3, 5, 6)
                for ct in range(4):
                    fill[lastuse[ct]] += [w0[2 * ct]]; fill[lastuse[ct] + 1] += [w0[2 * ct + 1]]
                    fill[7 + lastuse[ct]] += [w1[2 * ct]]; fill[min(NM - 1, 8 + lastuse[ct])] += [w1[2 * ct + 1]]
                for i in range(8): fill[(2, 3, 4, 5, 7, 8, 9, 10)[i]].append(xadv[i])
                fill[11].append(f"s_sub_u32 s{sIt}, s{sIt}, 1")
            else:
                for i in range(4): fill[i].append(xr[i])
                for i in range(8): fill[4 + i].append(xadv[i])
                if tt == 1:
                    for i in range(4): fill[10 + i].append(wadv[i])
                if tt == 2:
                    for i in range(4): fill[10 + i].append(wadv[4 + i])
            if tt % 2 == 0: a("s_barrier")
            for m in fill[-1]: a(m)
            for i in range(NM):
                if not OPT.get("nomf"): a(mf[i])
                for m in fill[i]: a(m)
            if last:
                if tt == 0: a("s_waitcnt lgkmcnt(1)")
                elif tt == 1: a("s_waitcnt lgkmcnt(9)")
                elif tt == 2: a("s_waitcnt lgkmcnt(0)\ns_barrier")
            elif tt == 3:
                a(f"""s_waitcnt lgkmcnt(15)
                s_cmp_eq_u32 s{sIt}, s{sCnt}
                s_cbranch_scc1 {K}_rst
                {K}_rst_ret:
                s_cmp_lg_u32 s{sIt}, 0""")
            else:
                a("s_waitcnt lgkmcnt(0)")
    a(f"""s_mov_b32 s{sIt}, 8
    s_waitcnt lgkmcnt(0)
    {K}_p1:""")
    chunk(False)
    a(f"s_cbranch_scc1 {K}_p1")
    chunk(True)
    stamp(a, 2, 30)
    a("s_nop 1")
    for m in epi(3): a(m)
    S = [128, 144, 160, 176]
    O = [192, 208, 224, 240]
    zo = [f"v_mov_b32 v{O[x]+i}, 0" for x in range(4) for i in range(11)]
    zq = [f"v_mov_b32 v{QT+4*j+i}, 0" for j in range(2) for i in (1, 2)]
    zs = [f"v_mov_b32 v{S[3]+8+i}, 0" for i in range(8)] + [f"v_mov_b32 v{V1[1]+i}, 0" for i in range(4)]
    for m in zo[:22]: a(m)
    a("s_waitcnt lgkmcnt(0)")
    for x in range(4): a(f"ds_read_b128 {vr(QM+4*x,4)}, v{vQr} offset:{1024*x}")
    a("s_barrier")
    stamp(a, 3, 30)
    NB = int(OPT["nb"])
    T2F = OPT.get("t2f", "0") == "1"
    def ldK(t, buf): return f"ds_read_b128 {vr(KF[buf],4)}, v{vKa} offset:{((t//4)%NB)*BLK + (t%4)*1024}"
    def ldV(t, half, buf): return f"ds_read_b128 {vr((V0,V1)[half][buf],4)}, v{vVa} offset:{((t//4)%NB)*BLK + 4608 + (t%4)*1216 + 608*half}"
    def ldT(b=0): return f"ds_read_b128 {vr(KT[b%2],4)}, v{vTa} offset:{(b%NB)*BLK + 4096}"
    def QKM(t, x, s, c="0"): return f"v_mfma_f32_32x32x16_bf16 {vr(s,16)}, {vr(KF[t%2],4)}, {vr(QM+4*x,4)}, {c}"
    def QKT(t, x, s): return f"v_mfma_f32_32x32x4_2b_bf16 {vr(s,32)}, {vr(KT[(t//4)%2]+(t&2),2)}, {vr(QT+2*x+2*(t&1),2)}, {vr(s,32) if not T2F else 0}"
    def PV(half, t, x, s): return f"v_smfmac_f32_32x32x32_bf16 {vr(O[x],16)}, {vr((V0,V1)[half][t%2],4)}, {vr(s+8*half,8)}, v{vIdx}"
    a(ldK(0, 0))
    a(f"ds_read2_b32 {vr(TP,2)}, v{vSqh} offset0:0 offset1:2")
    a(ldT()); a(ldV(0, 0, 0)); a(ldV(0, 1, 0))
    a(f"ds_read_b128 {vr(TP+4,4)}, v{vSq} offset:512")
    HOOKS = [1, 3, 7, 11, 13, 15]
    assert NB % 2 == 0
    for m in zq + zs: a(m)
    a(f"""s_mov_b32 s{sIt}, 0
    s_mov_b32 s{sWk}, {NB*BLK}
    s_mov_b32 s{sWcnt}, {(NB*BLK - RING) & 0xffffffff}
    s_waitcnt lgkmcnt(4)""")
    if not T2F:
        a(QKM(0, 0, S[0]))
        a(f"""v_mov_b32 v{QT}, v{TP}
    v_mov_b32 v{QT+3}, v{TP}
    v_mov_b32 v{QT+4}, v{TP+1}
    v_mov_b32 v{QT+7}, v{TP+1}""")
        a(QKM(0, 1, S[1]))
        for m in zo[22:27]: a(m)
        a(QKM(0, 2, S[2]))
        for m in zo[27:32]: a(m)
        a("s_waitcnt lgkmcnt(3)")
        a(QKT(0, 0, S[0]))
        for m in zo[32:]: a(m)
        a("s_nop 6")
        a("s_waitcnt lgkmcnt(0)")
    else:
        a(f"""v_mov_b32 v{QT}, v{TP}
        v_mov_b32 v{QT+3}, v{TP}
        v_mov_b32 v{QT+4}, v{TP+1}
        v_mov_b32 v{QT+7}, v{TP+1}
        s_waitcnt lgkmcnt(3)""")
        a(QKT(0, 0, S[0]))
        for m in zo[22:40]: a(m)
        a(QKM(0, 0, S[0], vr(S[0], 16)))
        for m in zo[40:]: a(m)
        a(QKM(0, 1, S[1], vr(S[1], 16)))
        a("s_nop 5")
        a("s_waitcnt lgkmcnt(0)")
    if OPT.get("cprio"): a(f"s_setprio {OPT['cprio']}")
    hookblks = []
    a(".p2align 6")
    a(f"{K}_att:")
    pos = tuple(int(z) for z in OPT.get("pos", "2.5.10.14.22.26.30" if not T2F else "2.5.13.18.21.26.30").split("."))
    NIT = 16 // NB
    SB = lambda u: S[u % 4]
    for u in range(0, 16 * NB, 2):
        t, x = divmod(u, 4)
        blk, ub = divmod(u, 16)
        ins = {i: [] for i in range(33)}
        ins[pos[0]].append(PV(1, *divmod(u - 1, 4), SB(u - 1)))
        if not T2F:
            ins[pos[1]].append(QKM(*divmod(u + 3, 4), SB(u + 3)))
            ins[pos[2]].append(PV(0, t, x, SB(u)))
            ins[pos[3]].append(QKT(*divmod(u + 2, 4), SB(u + 2)))
            ins[pos[4]].append(PV(1, t, x, SB(u)))
            ins[pos[5]].append(PV(0, t, x + 1, SB(u + 1)))
            ins[pos[6]].append(QKM(*divmod(u + 4, 4), SB(u + 4)))
        else:
            ins[pos[1]].append(QKT(*divmod(u + 2, 4), SB(u + 2)))
            ins[pos[2]].append(PV(0, t, x, SB(u)))
            ins[pos[3]].append(PV(1, t, x, SB(u)))
            ins[pos[4]].append(QKM(*divmod(u + 2, 4), SB(u + 2), vr(SB(u + 2), 16)))
            ins[pos[5]].append(PV(0, t, x + 1, SB(u + 1)))
            ins[pos[6]].append(QKM(*divmod(u + 3, 4), SB(u + 3), vr(SB(u + 3), 16)))
        if x == 0:
            ins[pos[0]].append(ldV(t + 1, 1, (t + 1) % 2))
            ins[pos[1]].append(ldK(t + 1, (t + 1) % 2))
            ins[pos[2]].append(ldV(t + 1, 0, (t + 1) % 2))
            if ub == 12: ins[pos[3]].append(ldT(blk + 1))
            ins[pos[5]].append("s_waitcnt lgkmcnt(0)")
        if ub == 10:
            if blk == NB - 1:
                ins[pos[0]].append(f"s_cmp_eq_u32 s{sIt}, {NIT//2 - 1}")
                ins[pos[1]].append(f"s_cselect_b32 s{sT0}, s{sWcnt}, s{sWk}")
                ins[pos[2]].append(f"v_add_u32 v{vKa}, s{sT0}, v{vKa}")
                ins[pos[3]].append(f"v_add_u32 v{vTa}, s{sT0}, v{vTa}")
                ins[pos[4]].append(f"v_add_u32 v{vVa}, s{sT0}, v{vVa}")
            its = [it for it in range(NIT) if it * NB + blk in HOOKS]
            if len(its) == NIT and (not OPT["stamp"] or OPT.get("light")):
                ins[pos[6]].append("s_barrier")
            elif its:
                ins[pos[6]] += [f"s_bitcmp1_b32 {sum(1 << i for i in its)}, s{sIt}", f"s_cbranch_scc1 {K}_hook{blk}", f"{K}_hook_ret{blk}:"]
                hookblks.append(blk)
        if u == 16 * NB - 2:
            ins[pos[5]].append(f"s_add_u32 s{sIt}, s{sIt}, 1")
            ins[pos[6]].append(f"s_cmp_lt_u32 s{sIt}, {NIT}")
        for i in range(32):
            for m in ins[i]: a(m)
            a(f"v_exp_f32 v{SB(u)+i}, v{SB(u)+i}")
    if OPT.get("light"):
        a(f"""s_memtime s[82:83]
        s_memrealtime s[80:81]
        s_add_u32 m0, s{sIt}, 15
        s_waitcnt lgkmcnt(0)
        v_writelane_b32 v30, s80, m0
        v_writelane_b32 v31, s82, m0
        s_cmp_lt_u32 s{sIt}, {NIT}""")
    a(f"s_cbranch_scc1 {K}_att")
    a("s_nop 1")
    a(PV(1, 3, 3, S[3]))
    stamp(a, 8, 30)
    CC = [5, 6, 7, 8]
    R8 = [64, 68, 72, 76, 104, 108, 112, 116, 120]
    RL = list(range(32, 64, 4)) + list(range(80, 104, 4)) + [124] + list(range(128, 176, 4))
    creg = lambda s, ct: R8[s] if ct == 8 else RL[3 * s + ct - 5]
    a('s_nop 8')
    l_ = [O[x] + 10 for x in range(4)]
    tq = [2, 3, 4, 5]
    a(f"""v_add_f32 v2, v{l_[0]}, v{l_[1]}
    v_min3_f32 v3, v{l_[0]}, v{l_[1]}, v{l_[2]}
    v_add_f32 v2, v2, v{l_[2]}
    s_waitcnt lgkmcnt(0)
    v_add_f32 v2, v2, v{l_[3]}
    v_min_f32 v3, v3, v{l_[3]}
    v_cmp_ge_f32 s[{sEx}:{sEx+1}], s64, v2
    v_cmp_le_f32 vcc, s61, v3
    s_nop 1
    s_and_b32 vcc_lo, vcc_lo, s{sEx}
    s_cmp_eq_u32 vcc_lo, -1
    s_cbranch_scc0 {K}_fbchk
    {K}_fbdone:""")
    cp = [f"ds_read_b128 {vr(creg(s_,ct),4)}, v{vCp} offset:{1024*(3*s_+i)}" for s_ in range(9) for i, ct in enumerate(CL)]
    for x in range(4): a(f"v_mov_b32 v{tq[x]}, v{O[x]+10}")
    a(cp.pop(0))
    for x in range(4): a(f"v_permlane32_swap_b32 v{O[x]+10}, v{tq[x]}")
    a(cp.pop(0))
    for x in range(4): a(f"v_mul_f32 v{tq[x]}, v{O[x]+10}, v{vGl+x}")
    for x in range(4): a(f"v_rcp_f32 v{tq[x]}, v{tq[x]}")
    a(cp.pop(0))
    for x in range(4):
        o = O[x]
        for i in range(10):
            a(f"v_mul_f32 v{o+i}, v{tq[x]}, v{o+i}")
            if i % 3 == 2: a(cp.pop(0))
        for i in range(4): a(f"v_cvt_pk_bf16_f32 v{o+12+i}, v{o+2*i}, v{o+2*i+1}")
        a(f"""v_cvt_pk_bf16_f32 v{o+11}, v{o+8}, v{o+9}
        buffer_store_dwordx4 {vr(o+12,4)}, v{vSt}, s[{sWS}:{sWS+3}], s{56+x} offen sc1""")
        if x % 2 == 1:
            a(f"""s_nop 0
            v_permlane32_swap_b32 v{O[x-1]+11}, v{o+11}
            buffer_store_dword v{O[x-1]+11}, v{vStt}, s[{sWS}:{sWS+3}], s{56+x-1} offen offset:1024 sc1""")
    for m in cp: a(m)
    stamp(a, 9, 30)
    a(f"""v_mov_b32 v6, {L_SYNC + 20}
    v_mov_b32 v7, 1
    s_setprio {OPT.get("p3prio", 2)}
    s_mov_b64 exec, 1
    s_waitcnt lgkmcnt(0)
    ds_add_u32 v6, v7
    s_mov_b64 exec, -1""")
    vOm, vOt, vRd = [2, 8], 3, 4
    p3_addr_o(a, vOm, vOt, vRd, [9, 10], 5, 11, 12, 13)
    for i in range(32): a(f"v_mov_b32 v{224+i}, 0")
    stamp(a, 10, 30)
    if OPT.get("drain"):
        a("s_waitcnt vmcnt(0)")
        stamp(a, 12, 30)
    p3_comp(a, CC, creg, 224, 176, vOm, vOt, vRd, 5, [9, 10])
    stamp(a, 11, 30)
    a(f"{K}_final:")
    final_reduce(a, K, 30)
    a(f"{K}_end:")
    a("s_endpgm")
    a(f"""{K}_rst:
    s_lshl_b32 s{sT0}, s{sPr}, 2
    v_mov_b32 v28, s{sT0}
    v_mov_b32 v29, 1
    s_mov_b64 exec, 1
    s_waitcnt vmcnt(0)
    buffer_atomic_add v29, v28, s[{sD}:{sD+3}], 0 offen
    s_mov_b64 exec, -1
    s_branch {K}_rst_ret""")
    for blk in hookblks:
        a(f"{K}_hook{blk}:")
        if 1 % NB == blk:
            a(f"""s_cmp_eq_u32 s{sIt}, {1 // NB}
            s_cbranch_scc0 {K}_hkg
            v_lshlrev_b32 v{vGl}, 16, v{TP+4}
            v_lshlrev_b32 v{vGl+1}, 16, v{TP+5}
            v_lshlrev_b32 v{vGl+2}, 16, v{TP+6}
            v_lshlrev_b32 v{vGl+3}, 16, v{TP+7}""")
            for x in range(4): a(f"v_mul_f32 v{vGl+x}, s60, v{vGl+x}")
            for x in range(4): a(f"v_exp_f32 v{vGl+x}, v{vGl+x}")
            a("s_nop 0")
            for x in range(4): a(f"v_add_f32 v{vGl+x}, 1.0, v{vGl+x}")
            for x in range(4):
                for i in range(11, 16): a(f"v_mov_b32 v{O[x]+i}, 0")
            a(f"{K}_hkg:")
        if OPT["stamp"]:
            for hb, i_ in ((1, 4), (3, 6)):
                if hb % NB == blk:
                    a(f"s_cmp_eq_u32 s{sIt}, {hb // NB}\ns_cbranch_scc0 {K}_hk{hb}")
                    stamp(a, i_, 30); a("s_barrier"); stamp(a, i_ + 1, 30); a(f"s_branch {K}_hook_ret{blk}")
                    a(f"{K}_hk{hb}:")
        if 13 % NB == blk:
            a(f"""s_cmp_eq_u32 s{sIt}, {13 // NB}
            s_cbranch_scc0 {K}_hkb{blk}""")
            p3_wo_loads(a, [8], creg, vWm3, vWt)
            a(f"{K}_hkb{blk}:")
        a(f"""s_barrier
        s_branch {K}_hook_ret{blk}""")
    FQ = S[3]
    a(f"{K}_fbchk:")
    for x in range(4):
        a(f"""v_cmp_le_f32 vcc, s61, v{O[x]+10}
        v_cmp_ge_f32 s[{sEx}:{sEx+1}], s64, v{O[x]+10}
        s_nop 1
        s_and_b32 vcc_lo, vcc_lo, s{sEx}
        s_cmp_eq_u32 vcc_lo, -1
        s_cbranch_scc0 {K}_fb{x}
        {K}_fbret{x}:""")
    a(f"s_branch {K}_fbdone")
    for x in range(4):
        a(f"{K}_fb{x}:")
        for i in range(4): a(f"v_mov_b32 v{FQ+i}, v{QM+4*x+i}")
        for i in range(4): a(f"v_mov_b32 v{FQ+4+i}, 0")
        a(f"""s_mov_b32 {'exec_hi' if x % 2 == 0 else 'exec_lo'}, 0
        v_mov_b32 v{FQ+4}, v{QT+4*(x>>1)}
        v_mov_b32 v{FQ+7}, v{QT+4*(x>>1)}
        s_mov_b64 exec, -1""")
        a(f"s_call_b64 s[{sRet}:{sRet+1}], {K}_slow")
        for i in range(16): a(f"v_mov_b32 v{O[x]+i}, v{S[2]+i}")
        a(f"s_branch {K}_fbret{x}")
    a(f"{K}_slow:")
    vb, vc, vm = 11, 12, 13
    sA, sB = sWsrc, sWm0
    t0 = 9
    a(f"""v_lshlrev_b32 v{t0}, 4, v0
    v_and_b32 v{vm}, 31, v0
    v_lshlrev_b32 v{vb}, 4, v{vm}
    v_lshrrev_b32 v{vc}, 5, v0
    v_mul_u32_u24 v{vc}, 304, v{vc}
    v_lshl_add_u32 v{vc}, v{vm}, 4, v{vc}
    v_cmp_lt_u32 vcc, 18, v{vm}
    v_mov_b32 v{vm}, 0x40000000
    s_nop 1
    v_cndmask_b32 v{vc}, v{vc}, v{vm}, vcc""")
    def slow_qk(t, c):
        a(f"""v_mfma_f32_32x32x16_bf16 {vr(S[0],16)}, {vr(KF[0],4)}, {vr(FQ,4)}, {c}
        v_mfma_f32_32x32x8_bf16 {vr(S[0],16)}, {vr(KT[0]+(t&2),2)}, {vr(FQ+4+2*(t&1),2)}, {vr(S[0],16)}
        s_nop 15""")
    def slow_next(lbl):
        a(f"""s_add_u32 s{sA}, s{sA}, {BLK}
        s_sub_u32 s{sIt}, s{sIt}, 1
        s_cmp_lg_u32 s{sIt}, 0
        s_cbranch_scc1 {lbl}""")
    a(f"""v_mov_b32 v{vm}, 0xff800000
    s_mov_b32 s{sA}, s{sKVg}
    s_mov_b32 s{sIt}, 16
    {K}_sl1:
    s_add_u32 s{sB}, s{sA}, 4096
    buffer_load_dwordx4 {vr(KT[0],4)}, v{vb}, s[{sWS}:{sWS+3}], s{sB} offen sc1""")
    for t in range(4):
        a(f"""buffer_load_dwordx4 {vr(KF[0],4)}, v{t0}, s[{sWS}:{sWS+3}], s{sA} offen offset:{1024*t} sc1
        s_waitcnt vmcnt(0)""")
        slow_qk(t, "0")
        for i in range(8): a(f"v_max3_f32 v{vm}, v{S[0]+2*i}, v{S[0]+2*i+1}, v{vm}")
    slow_next(f"{K}_sl1")
    a(f"""v_mov_b32 v{S[0]}, v{vm}
    s_nop 1
    v_permlane32_swap_b32 v{vm}, v{S[0]}
    s_nop 1
    v_max_f32 v{vm}, v{vm}, v{S[0]}""")
    for i in range(16):
        a(f"v_sub_f32 v{S[1]+i}, 0, v{vm}")
        a(f"v_mov_b32 v{S[2]+i}, 0")
    a(f"""s_mov_b32 s{sA}, s{sKVg}
    s_mov_b32 s{sIt}, 16
    {K}_sl2:
    s_add_u32 s{sB}, s{sA}, 4096
    buffer_load_dwordx4 {vr(KT[0],4)}, v{vb}, s[{sWS}:{sWS+3}], s{sB} offen sc1""")
    for t in range(4):
        a(f"""buffer_load_dwordx4 {vr(KF[0],4)}, v{t0}, s[{sWS}:{sWS+3}], s{sA} offen offset:{1024*t} sc1
        s_add_u32 s{sB}, s{sA}, {4608+1216*t}
        buffer_load_dwordx4 {vr(V0[0],4)}, v{vc}, s[{sWS}:{sWS+3}], s{sB} offen sc1
        buffer_load_dwordx4 {vr(V1[0],4)}, v{vc}, s[{sWS}:{sWS+3}], s{sB} offen offset:608 sc1
        s_waitcnt vmcnt(0)""")
        slow_qk(t, vr(S[1], 16))
        for i in range(16): a(f"v_exp_f32 v{S[0]+i}, v{S[0]+i}")
        a(f"""s_nop 3
        v_smfmac_f32_32x32x32_bf16 {vr(S[2],16)}, {vr(V0[0],4)}, {vr(S[0],8)}, v{vIdx}
        v_smfmac_f32_32x32x32_bf16 {vr(S[2],16)}, {vr(V1[0],4)}, {vr(S[0]+8,8)}, v{vIdx}
        s_nop 7""")
    slow_next(f"{K}_sl2")
    a(f"""s_nop 15
    s_setpc_b64 s[{sRet}:{sRet+1}]""")

def main(out):
    ka = f"{NAME}_kernel"
    a = Asm(); kernel(a)
    t = f"""; gated mix of two MHA blocks: one fused kernel (QKV projection, attention, output projection); generated by gen/gen23.py
; @launch grid=(256,1,1) block=(512,1,1) lds={LDS_BYTES}
.amdgcn_target "amdgcn-amd-amdhsa--gfx950"
.text
.globl {ka}
.p2align 8
.type {ka},@function
{ka}:
{a.text()}.section .rodata,"a"
.p2align 6
.amdhsa_kernel {ka}
  .amdhsa_next_free_vgpr 256
  .amdhsa_next_free_sgpr 102
  .amdhsa_accum_offset 256
  .amdhsa_group_segment_fixed_size 0
  .amdhsa_kernarg_size 80
  .amdhsa_user_sgpr_count 2
  .amdhsa_user_sgpr_kernarg_segment_ptr 1
  .amdhsa_system_sgpr_workgroup_id_x 1
.end_amdhsa_kernel
"""
    open(out, "w").write(t)

if __name__ == "__main__":
    for kv in sys.argv[2:]:
        k, v = kv.split("=")
        OPT[k] = {"True": True, "False": False}.get(v, v)
    main(sys.argv[1])
```

```python
import sys, struct

NAME = "gated_mix__mha_block__mha_block__prompt"
def f32(x): return "0x%08x" % struct.unpack("<I", struct.pack("<f", x))[0]
CSCALE = (18 ** -0.5) * 1.4426950408889634
LOG2E = 1.4426950408889634

BLK = 9472
KVH = 16 * BLK
RING = 8 * BLK
WS_O = 0x0A00000
WS_WOM = 0x0F00000
WS_WOT = 0x1080000
WS_F = 0x10C0000
WS_STAMP = 0x1100000
WS_SIZE = 0x1200000
SENT = 0xffffffff
L_WR = 0
WSL = 16384
RW = 3
L_XR = 98304
L_SCR = 49152
L_GT = 155648
L_SYNC = L_GT + 3 * 2048 + 1536
L_WO = 151552
LDS_BYTES = 163840
RS = 592
STRAD = sum(1 << p for p in range(32) if (72 * (p & 15)) % 128 > 56)
L_OA = 6 * BLK
L_OB = 94720
PLANE = 32 * RS

class Asm:
    def __init__(self): self.l = []
    def __call__(self, s):
        for x in s.strip("\n").split("\n"):
            x = x.strip()
            if not x: continue
            self.l.append(x if x.endswith(":") else "    " + x)
    def text(self): return "\n".join(self.l) + "\n"

def vr(a, n): return f"v[{a}:{a+n-1}]"
OPT = dict(force_fb=False, stamp=False, rx="6", txor="1", nb="4", cprio="3")

def srd(a, d, lo, hi, size):
    a(f"""s_mov_b32 s{d}, s{lo}
    s_and_b32 s{d+1}, s{hi}, 0xffff
    s_mov_b32 s{d+2}, {size}
    s_mov_b32 s{d+3}, 0x00020000""")

sX, sW, sWo, sG, sD, sWS, sOut = 8, 12, 16, 20, 24, 28, 84
sWv, sPr, sE, sHd, sRot = 32, 33, 34, 35, 36
sT0, sT1, sT2, sT3 = 37, 38, 39, 40
sRef, sCnt, sKo, sXb, sRing, sIt, sKVg, sSpin, sW8 = 41, 42, 43, 44, 45, 46, 47, 48, 49
sRet, sEx = 50, 52
sWsrc, sWm0, sWk, sWcnt, sXm0, sGk, sTt, sBH = 54, 55, 62, 63, 76, 77, 78, 79
sP3T, sP3C, sOb, sWmb, sWtb, sHH, sTH, sOtb = 88, 89, 90, 91, 92, 93, 94, 95
SV = 254
sLA, sLB = 74, 75
sGO = [66, 67, 68, 69]
sGW = [70, 71, 72, 73]

def stamp(a, idx, vreg):
    if not OPT["stamp"]: return
    a(f"""s_memrealtime s[80:81]
    s_memtime s[82:83]
    s_waitcnt lgkmcnt(0)
    v_writelane_b32 v{vreg}, s80, {idx}
    v_writelane_b32 v{vreg+1}, s82, {idx}""")
def sstamp(a, k):
    if not OPT["stamp"]: return
    a(f"""s_memrealtime s[80:81]
    s_waitcnt lgkmcnt(0)
    s_mov_b32 s{96+k}, s80""")
def stamp_out(a, vreg, vt=1, mask=None):
    if not OPT["stamp"]: return
    a(f"""s_lshl_b32 s80, s2, 3
    s_add_u32 s80, s80, s{sW8}
    s_lshl_b32 s80, s80, 8
    s_add_u32 s80, s80, {WS_STAMP}
    v_lshlrev_b32 v{vt}, 3, v0
    s_mov_b32 exec_hi, 0""")
    if mask is not None: a(f"s_mov_b32 exec_lo, {mask}")
    a(f"""buffer_store_dwordx2 v[{vreg}:{vreg+1}], v{vt}, s[{sWS}:{sWS+3}], s80 offen
    s_mov_b64 exec, -1""")

def p3_addr_w(a, vWm, vWt, t0, t1, t2):
    a(f"""v_and_b32 v{t0}, 15, v0
    v_lshrrev_b32 v{t1}, 5, v0
    v_bfe_u32 v{t2}, v0, 4, 1
    v_mul_u32_u24 v{vWm}, 4608, v{t1}
    v_lshl_add_u32 v{vWm}, v{t2}, 8, v{vWm}
    v_lshl_add_u32 v{vWm}, v{t0}, 4, v{vWm}
    v_lshrrev_b32 v{t1}, 4, v0
    v_add_u32 v{t2}, s{sP3C}, v{t1}
    v_and_b32 v{t2}, 3, v{t2}
    v_mul_u32_u24 v{vWt}, {4*2304}, v{t2}
    v_lshl_add_u32 v{vWt}, v{t0}, 4, v{vWt}""")
def p3_addr_o(a, vOm, vOt, vRd, vVa, vSy, t0, t1, t2):
    a(f"""v_and_b32 v{t0}, 15, v0
    v_lshrrev_b32 v{t1}, 5, v0
    v_bfe_u32 v{t2}, v0, 4, 1
    v_mul_u32_u24 v{vOm[0]}, 1152, v{t1}
    v_lshl_add_u32 v{vOm[0]}, v{t2}, 9, v{vOm[0]}
    v_lshl_add_u32 v{vOm[0]}, v{t0}, 4, v{vOm[0]}
    v_add_u32 v{vOm[1]}, s{sLB}, v{vOm[0]}
    v_add_u32 v{vOm[0]}, s{sLA}, v{vOm[0]}
    s_sub_u32 s{sT3}, s{sLB}, s{sLA}
    v_mul_lo_u32 v{vOt}, s{sT3}, v{t1}
    v_add_u32 v{vOt}, s{sLA}, v{vOt}
    v_mul_u32_u24 v{t2}, 4608, v{t2}
    v_add_u32 v{vOt}, v{vOt}, v{t2}
    v_lshl_add_u32 v{vOt}, v{t0}, 2, v{vOt}
    v_lshrrev_b32 v{t1}, 4, v0
    v_mul_u32_u24 v{vRd}, {RS}, v{t0}
    v_lshl_add_u32 v{vRd}, v{t1}, 4, v{vRd}
    s_cmp_eq_u32 s{sWv}, 3
    s_cselect_b32 s{sT3}, 4, s{sWv}
    s_mul_i32 s{sT3}, s{sT3}, {PLANE}
    v_add_u32 v{vRd}, s{sT3}, v{vRd}
    v_mul_u32_u24 v{vVa[0]}, 1152, v{t1}
    v_lshl_add_u32 v{vVa[0]}, v{t0}, 3, v{vVa[0]}
    v_add_u32 v{vVa[0]}, 1024, v{vVa[0]}
    v_add_u32 v{vVa[1]}, s{sLB}, v{vVa[0]}
    v_add_u32 v{vVa[0]}, s{sLA}, v{vVa[0]}
    s_lshl_b32 s{sT3}, s{sWv}, 2
    s_add_u32 s{sT3}, s{sT3}, {L_SYNC + 32}
    v_mov_b32 v{vSy}, s{sT3}""")
def p3_scal(a):
    a(f"""s_and_b32 s{sP3T}, s2, 7
    s_lshr_b32 s{sT0}, s2, 5
    s_lshl_b32 s{sT0}, s{sT0}, 3
    s_add_u32 s{sP3T}, s{sP3T}, s{sT0}
    s_lshr_b32 s{sP3C}, s2, 3
    s_and_b32 s{sP3C}, s{sP3C}, 3
    s_lshl_b32 s{sOb}, s{sP3T}, 6
    s_lshl_b32 s{sT3}, s{sWv}, 2
    s_add_u32 s{sOb}, s{sOb}, s{sT3}
    s_mul_i32 s{sOb}, s{sOb}, 1152
    s_add_u32 s{sOb}, s{sOb}, {WS_O}
    s_lshl_b32 s{sWmb}, s{sP3C}, 6
    s_add_u32 s{sWmb}, s{sWmb}, s{sT3}
    s_mul_i32 s{sWmb}, s{sWmb}, 4608
    s_add_u32 s{sWmb}, s{sWmb}, {WS_WOM}
    s_lshl_b32 s{sWtb}, s{sP3C}, 4
    s_add_u32 s{sWtb}, s{sWtb}, s{sWv}
    s_mul_i32 s{sWtb}, s{sWtb}, 2304
    s_add_u32 s{sWtb}, s{sWtb}, {WS_WOT}
    s_mul_i32 s{sLA}, s{sHH}, {RING}
    s_mul_i32 s{sT3}, s{sTH}, 9216
    s_add_u32 s{sLA}, s{sLA}, s{sT3}
    s_add_u32 s{sLA}, s{sLA}, {L_OA}
    s_mul_i32 s{sLB}, s{sWv}, 9216
    s_add_u32 s{sLB}, s{sLB}, {L_OB}""")
    for g in range(4):
        a(f"""s_add_u32 s{sT3}, s{sP3C}, {g}
        s_and_b32 s{sT3}, s{sT3}, 3
        s_mul_i32 s{sGO[g]}, s{sT3}, {16*1152}
        s_add_u32 s{sGO[g]}, s{sGO[g]}, s{sOb}
        s_mul_i32 s{sGW[g]}, s{sT3}, {16*4608}
        s_add_u32 s{sGW[g]}, s{sGW[g]}, s{sWmb}""")
def p3_wo_loads(a, cts, reg, vWm, vWt, steps=range(9)):
    for s in range(8):
        if s not in steps: continue
        a(f"s_add_u32 s{sT3}, s{sGW[s>>1]}, {2*(s&1)*4608 + 512*cts[0]}")
        for i, ct in enumerate(cts):
            a(f"buffer_load_dwordx4 {vr(reg(s,ct),4)}, v{vWm}, s[{sWS}:{sWS+3}], s{sT3} offen offset:{512*i} sc1")
    for ct in (cts if 8 in steps else []):
        a(f"buffer_load_dwordx4 {vr(reg(8,ct),4)}, v{vWt}, s[{sWS}:{sWS+3}], s{sWtb} offen offset:{256*ct} sc1")
def p3_oread(a, g, OF, vOm):
    for k in range(2):
        for th in range(2):
            a(f"ds_read_b128 {vr(OF+8*k+4*th,4)}, v{vOm[g>>1]} offset:{4608*(g&1) + 2304*k + 256*th}")
def p3_mf(a, cts, reg, AC, st, o):
    for i, ct in enumerate(cts):
        for th in range(2):
            d = AC + 8 * i + 4 * th
            a(f"v_mfma_f32_16x16x32_bf16 {vr(d,4)}, {vr(reg(st,ct),4)}, {vr(o+4*th,4)}, {vr(d,4)}")
def p3_tail(a, cts, reg, AC, OF, vOt, vRd):
    for th in range(2):
        for i in range(4):
            a(f"ds_read_b32 v{OF+4*th+i}, v{vOt} offset:{1152*i + 1024 + 64*th}")
    final_addr(a)
    a("s_waitcnt lgkmcnt(0)")
    p3_mf(a, cts, reg, AC, 8, OF)
    sstamp(a, 5)
    a("s_nop 7")
    for i, ct in enumerate(cts):
        for th in range(2):
            a(f"ds_write_b128 v{vRd}, {vr(AC+8*i+4*th,4)} offset:{16*th*RS + 64*ct}")
def p3_hint_addr(a, OF):
    vHa, vE4 = OF + 21, OF + 22
    a(f"""v_and_b32 v1, 3, v0
    v_mul_u32_u24 v{vHa}, 1152, v1
    v_bfe_u32 v1, v0, 2, 2
    v_add_u32 v1, s{sP3C}, v1
    v_and_b32 v1, 3, v1
    v_mul_u32_u24 v1, {16*1152}, v1
    v_add_u32 v{vHa}, v{vHa}, v1
    v_mov_b32 v{vE4}, {L_SYNC + 20}""")
def p3_helper(a, cts, reg, AC, OF, vOm, vOt, vRd, vL16, vVa, vSy, slp):
    L = "h3"
    sDone = sCnt
    def dma(g):
        lb = (sLA, sLB)[g >> 1]
        a(f"""s_add_u32 m0, s{lb}, {4608*(g&1)}
        s_add_u32 s{sT3}, s{sGO[g]}, 4096""")
        for i in range(4):
            a(f"buffer_load_dwordx4 v{vL16}, s[{sWS}:{sWS+3}], s{sGO[g]} offen offset:{1024*i} sc1 lds")
        a(f"""s_add_u32 m0, s{lb}, {4608*(g&1) + 4096}
        s_mov_b32 exec_hi, 0
        buffer_load_dwordx4 v{vL16}, s[{sWS}:{sWS+3}], s{sT3} offen sc1 lds
        s_mov_b64 exec, -1""")
    sFly, sLand, sTry, sBlk_ = sWk, sWcnt, sKo, sXb
    vH, vHa, vE4 = OF + 18, OF + 21, OF + 22
    a(f"""s_mov_b32 s{sSpin}, 60000
    s_mov_b32 s{sIt}, {SENT}
    s_mov_b32 s{sDone}, 0
    s_mov_b32 s{sFly}, 0
    s_mov_b32 s{sLand}, 0
    s_mov_b32 s{sBlk_}, 12
    {L}_round:
    s_mov_b64 exec, 0xffff
    buffer_load_dword v{vH}, v{vHa}, s[{sWS}:{sWS+3}], s{sOb} offen offset:1024 sc1
    s_mov_b64 exec, -1
    ds_read_b32 v1, v{vE4}
    s_cmp_eq_u32 s{sFly}, 0
    s_cbranch_scc1 {L}_nofly
    s_or_b32 s{sLand}, s{sLand}, s{sFly}
    s_waitcnt vmcnt(1)
    v_mov_b32 v{vH+1}, s{sLand}
    ds_write_b32 v{vSy}, v{vH+1}
    {L}_nofly:
    s_mov_b32 s{sTry}, s{sFly}
    s_waitcnt lgkmcnt(0)
    v_readfirstlane_b32 s{sT0}, v1
    s_cmp_ge_u32 s{sT0}, 4
    s_cselect_b32 s{sBlk_}, 0, s{sBlk_}
    s_or_b32 s{sT1}, s{sDone}, s{sTry}
    s_cmp_eq_u32 s{sT1}, 15
    s_mov_b32 s{sFly}, 0
    s_cbranch_scc1 {L}_work""")
    if int(OPT.get("spec", 0)):
        a(f"""s_bcnt1_i32_b32 s{sT0}, s{sT1}
        s_mov_b32 vcc_lo, -1
        s_cmp_ge_u32 s{sT0}, {4 - int(OPT["spec"])}
        s_cselect_b32 s{sT0}, s{sBlk_}, 1
        s_cmp_eq_u32 s{sT0}, 0
        s_cbranch_scc1 {L}_spec""")
    a(f"""s_or_b32 s{sT1}, s{sT1}, s{sBlk_}
    s_waitcnt vmcnt(0)
    v_cmp_ne_u32 vcc, s{sIt}, v{vH}
    {L}_spec:""")
    for g in range(4):
        a(f"""s_bitcmp1_b32 s{sT1}, {g}
        s_cbranch_scc1 {L}_l{g}
        s_bfe_u32 s{sT0}, vcc_lo, {(4 << 16) | (4 * g)}
        s_cmp_eq_u32 s{sT0}, 15
        s_cbranch_scc0 {L}_l{g}
        s_bitset1_b32 s{sFly}, {g}""")
        dma(g)
        a(f"{L}_l{g}:")
    a(f"{L}_work:")
    for g in range(4):
        a(f"""s_bitcmp1_b32 s{sTry}, {g}
        s_cbranch_scc0 {L}_n{g}""")
        p3_check(a, g, OF, vOm, vVa)
        a(f"""s_cbranch_vccnz {L}_n{g}
        s_bitset1_b32 s{sDone}, {g}""")
        stamp(a, 27 + g, SV)
        p3_mf(a, cts, reg, AC, 2 * g, OF)
        p3_mf(a, cts, reg, AC, 2 * g + 1, OF + 8)
        a(f"{L}_n{g}:")
    a(f"""s_cmp_eq_u32 s{sDone}, 15
    s_cbranch_scc1 {L}_done
    s_sub_u32 s{sSpin}, s{sSpin}, 1
    s_cmp_lt_i32 s{sSpin}, 0
    s_cbranch_scc1 {L}_done
    s_or_b32 s{sT0}, s{sFly}, s{sTry}
    s_cbranch_scc1 {L}_round
    s_sleep {slp}
    s_branch {L}_round
    {L}_done:
    s_waitcnt vmcnt(0)""")
    p3_tail(a, cts, reg, AC, OF, vOt, vRd)
def p3_check(a, g, OF, vOm, vVa):
    p3_oread(a, g, OF, vOm)
    a(f"""ds_read_b64 {vr(OF+16,2)}, v{vVa[g>>1]} offset:{4608*(g&1)}
    s_waitcnt lgkmcnt(3)
    v_max3_u32 v1, v{OF}, v{OF+1}, v{OF+2}
    v_max3_u32 v1, v{OF+3}, v{OF+4}, v1
    v_max3_u32 v1, v{OF+5}, v{OF+6}, v1
    s_waitcnt lgkmcnt(0)
    v_max3_u32 v1, v{OF+7}, v{OF+8}, v1
    v_max3_u32 v1, v{OF+9}, v{OF+10}, v1
    v_max3_u32 v1, v{OF+11}, v{OF+12}, v1
    v_max3_u32 v1, v{OF+13}, v{OF+14}, v1
    v_max3_u32 v1, v{OF+15}, v{OF+16}, v1
    v_max_u32 v1, v{OF+17}, v1
    v_cmp_eq_u32 vcc, s{sIt}, v1
    s_nop 1""")
def p3_comp(a, cts, reg, AC, OF, vOm, vOt, vRd, vSy, vVa):
    L = "c3"
    sDone = sCnt
    a(f"""s_mov_b32 s{sSpin}, 400000
    s_mov_b32 s{sIt}, {SENT}
    s_mov_b32 s{sDone}, 0
    s_waitcnt vmcnt(6)
    {L}_round:
    ds_read_b32 v1, v{vSy}
    s_waitcnt lgkmcnt(0)
    v_readfirstlane_b32 s{sT0}, v1
    s_andn2_b32 s{sT0}, s{sT0}, s{sDone}""")
    for g in range(4):
        a(f"""s_bitcmp1_b32 s{sT0}, {g}
        s_cbranch_scc0 {L}_n{g}""")
        p3_check(a, g, OF, vOm, vVa)
        a(f"""s_cbranch_vccnz {L}_n{g}
        s_bitset1_b32 s{sDone}, {g}""")
        p3_mf(a, cts, reg, AC, 2 * g, OF)
        p3_mf(a, cts, reg, AC, 2 * g + 1, OF + 8)
        a(f"{L}_n{g}:")
    a(f"""s_cmp_eq_u32 s{sDone}, 15
    s_cbranch_scc1 {L}_done
    s_sub_u32 s{sSpin}, s{sSpin}, 1
    s_cmp_lt_i32 s{sSpin}, 0
    s_cbranch_scc0 {L}_round
    {L}_done:""")
    p3_tail(a, cts, reg, AC, OF, vOt, vRd)

def kernel(a):
    K = "k"
    if OPT["stamp"]: a("s_memrealtime s[96:97]")
    a(f"""
    s_cmp_ge_u32 s2, 256
    s_cbranch_scc1 {K}_end
    s_load_dwordx4 s[56:59], s[0:1], 0
    s_load_dwordx2 s[60:61], s[0:1], 16
    s_load_dwordx4 s[64:67], s[0:1], 32
    s_load_dwordx4 s[68:71], s[0:1], 48
    s_load_dwordx4 s[72:75], s[0:1], 64
    v_lshrrev_b32 v1, 6, v0
    v_and_b32 v0, 63, v0
    s_lshr_b32 s{sT0}, s2, 3
    v_readfirstlane_b32 s{sW8}, v1
    s_and_b32 s{sT1}, s{sT0}, 3
    s_lshr_b32 s{sT2}, s{sT0}, 2
    s_and_b32 s{sE}, s2, 1
    s_lshl_b32 s{sE}, s{sE}, 2
    s_add_u32 s{sE}, s{sE}, s{sT1}
    s_and_b32 s{sPr}, s2, 6
    s_lshl_b32 s{sPr}, s{sPr}, 2
    s_add_u32 s{sPr}, s{sPr}, s{sT2}
    s_lshl_b32 s{sRot}, s{sT1}, 1
    s_add_u32 s{sRot}, s{sRot}, s{sT2}
    s_sub_u32 s{sT1}, s{sRot}, 9
    s_cmp_ge_u32 s{sRot}, 9
    s_cselect_b32 s{sRot}, s{sT1}, s{sRot}""")
    if OPT.get("rf"):
        ra, sa, rb, rx_, ry = [int(z) for z in OPT["rf"].split(".")]
        a(f"""s_lshr_b32 s{sRot}, s2, {5 + sa}
        s_mul_i32 s{sRot}, s{sRot}, {ra}
        s_bfe_u32 s{sT1}, s2, {(2 << 16) | 3}
        s_mul_i32 s{sT1}, s{sT1}, {rb}
        s_add_u32 s{sRot}, s{sRot}, s{sT1}
        s_bfe_u32 s{sT1}, s2, {(2 << 16) | 1}
        s_mul_i32 s{sT1}, s{sT1}, {rx_}
        s_add_u32 s{sRot}, s{sRot}, s{sT1}
        s_and_b32 s{sT1}, s2, 1
        s_mul_i32 s{sT1}, s{sT1}, {ry}
        s_add_u32 s{sRot}, s{sRot}, s{sT1}
        s_mul_i32 s{sT1}, s{sRot}, 7282
        s_lshr_b32 s{sT1}, s{sT1}, 16
        s_mul_i32 s{sT1}, s{sT1}, 9
        s_sub_u32 s{sRot}, s{sRot}, s{sT1}""")
    if OPT.get("rotmap"):
        tab = sum(int(ch) << (4 * i) for i, ch in enumerate(OPT["rotmap"]))
        a(f"""s_mov_b32 s52, {tab & 0xffffffff}
        s_mov_b32 s53, {tab >> 32}
        s_lshl_b32 s{sRot}, s{sRot}, 2
        s_lshr_b64 s[52:53], s[52:53], s{sRot}
        s_and_b32 s{sRot}, s52, 15""")
    a(f"""s_and_b32 s{sWv}, s{sW8}, 3
    s_lshr_b32 s{sHH}, s{sWv}, 1
    s_and_b32 s{sTH}, s{sWv}, 1
    s_lshl_b32 s{sBH}, s{sPr}, 1
    s_add_u32 s{sBH}, s{sBH}, s{sHH}
    s_mul_i32 s{sKVg}, s{sBH}, {KVH}
    s_waitcnt lgkmcnt(0)
    s_cmp_ge_u32 s{sPr}, 16
    s_cselect_b32 s58, s64, s58
    s_cselect_b32 s59, s65, s59
    s_cselect_b32 s60, s66, s60
    s_cselect_b32 s61, s67, s61""")
    srd(a, sW, 58, 59, 576 * 3456)
    srd(a, sX, 56, 57, 2048 * 1152)
    srd(a, sG, 68, 69, 1152)
    srd(a, sWS, 74, 75, WS_SIZE)
    srd(a, sOut, 70, 71, 2048 * 1152)
    srd(a, sD, 72, 73, 256)
    if OPT.get("tx4"):
        a(f"""s_bfe_u32 s{sTt}, s2, {(1 << 16) | int(OPT["tx4"])}
        s_lshl_b32 s{sTt}, s{sTt}, 1
        s_bfe_u32 s{sT1}, s2, {(1 << 16) | (int(OPT["tx4"]) + 1)}
        s_or_b32 s{sTt}, s{sTt}, s{sT1}""")
    elif OPT.get("txb"):
        a(f"""s_bfe_u32 s{sTt}, s2, {(1 << 16) | int(OPT["txb"])}
        s_lshl_b32 s{sTt}, s{sTt}, 1""")
    elif OPT["txor"] == "1":
        a(f"s_and_b32 s{sTt}, s2, 2")
    else:
        a(f"s_mov_b32 s{sTt}, 0")
    a(f"""s_cmp_ge_u32 s{sW8}, 4
    s_cbranch_scc0 {K}_compute""")
    helper(a, K)
    a(f"{K}_compute:")
    compute(a, K)

FA = 32
def final_addr(a):
    a(f"""s_lshl_b32 s{sT3}, s{sW8}, 6
    v_add_u32 v1, s{sT3}, v0
    s_mul_i32 s{sT0}, s{sP3T}, {32*1152}
    s_mul_i32 s{sT1}, s{sP3C}, 288
    s_add_u32 s{sT0}, s{sT0}, s{sT1}""")
    for r in range(2):
        if r: a("v_add_u32 v1, 512, v1")
        a(f"""v_mul_u32_u24 v{FA+6}, 3641, v1
        v_lshrrev_b32 v{FA+6}, 16, v{FA+6}
        v_mul_u32_u24 v{FA+7}, 18, v{FA+6}
        v_sub_u32 v{FA+7}, v1, v{FA+7}
        v_mul_u32_u24 v{FA+r}, {RS}, v{FA+6}
        v_lshl_add_u32 v{FA+r}, v{FA+7}, 5, v{FA+r}
        v_add_u32 v{FA+4+r}, {4*PLANE}, v{FA+r}
        v_mul_u32_u24 v{FA+2+r}, 1152, v{FA+6}
        v_lshl_add_u32 v{FA+2+r}, v{FA+7}, 4, v{FA+2+r}""")
def final_reduce(a, K, SVr):
    def reads(r):
        b = 48 + 32 * r
        for w in range(4):
            for hf in range(2):
                if w < 3: a(f"ds_read_b128 {vr(b+8*w+4*hf,4)}, v{FA+r} offset:{w*PLANE + 16*hf}")
                else: a(f"ds_read_b128 {vr(b+8*w+4*hf,4)}, v{FA+4+r} offset:{16*hf}")
    def finish(r, extra):
        b = 48 + 32 * r
        a(f"s_waitcnt lgkmcnt({4+extra})")
        for i in range(0, 8, 2): a(f"v_pk_add_f32 {vr(b+i,2)}, {vr(b+i,2)}, {vr(b+8+i,2)}")
        a(f"s_waitcnt lgkmcnt({extra})")
        for i in range(0, 8, 2): a(f"v_pk_add_f32 {vr(b+16+i,2)}, {vr(b+16+i,2)}, {vr(b+24+i,2)}")
        for i in range(0, 8, 2): a(f"v_pk_add_f32 {vr(b+i,2)}, {vr(b+i,2)}, {vr(b+16+i,2)}")
        for i in range(4): a(f"v_cvt_pk_bf16_f32 v{b+8+i}, v{b+2*i}, v{b+2*i+1}")
        a(f"buffer_store_dwordx4 {vr(b+8,4)}, v{FA+2+r}, s[{sOut}:{sOut+3}], s{sT0} offen")
    def fin():
        if OPT["stamp"]:
            a("s_waitcnt vmcnt(0)")
            stamp(a, 15, SVr)
            for k in range(6): a(f"v_writelane_b32 v{SVr}, s{96+k}, {20+k}")
            a(f"s_sub_u32 s80, 60000, s{sSpin}\nv_writelane_b32 v{SVr}, s80, 26")
            stamp_out(a, SVr)
    a(f"""s_cmp_eq_u32 s{sW8}, 0
    s_waitcnt lgkmcnt(0)
    s_barrier""")
    reads(0)
    a(f"s_cbranch_scc1 {K}_fin0")
    finish(0, 0)
    fin()
    a(f"""s_endpgm
    {K}_fin0:""")
    reads(1)
    finish(0, 8)
    finish(1, 0)
    fin()

def poll(a, lbl, ld, cond, slp):
    a(f"""s_mov_b32 s{sSpin}, 40000
    {lbl}:
    {ld}
    s_waitcnt vmcnt(0)""")
    cond()
    a(f"""s_cbranch_scc1 {lbl}_go
    s_sub_u32 s{sSpin}, s{sSpin}, 1
    s_cmp_eq_u32 s{sSpin}, 0
    s_cbranch_scc1 {lbl}_go
    s_sleep {slp}
    s_branch {lbl}
    {lbl}_go:""")

CL = [5, 6, 7]
def wo_lds_base(w): return (w >> 1) * RING + (w & 1) * 27648

def helper(a, K):
    RX = int(OPT["rx"])
    stamp(a, 0, SV)
    a(f"s_setprio {OPT.get('hprio', 2)}")
    vXs, vWs = [24, 25], [26, 27]
    vL16, vGr, vGw = 7, 8, 9
    t0, t1, t2, t3 = 10, 11, 12, 13
    vGv = 14
    WM = [sum(1 << L for L in range(64) if ((L & 15) ^ (((L >> 4) | (hi << 2)) << 1)) != 15) for hi in range(2)]
    sM0, sM1 = sEx, 64
    a(f"""v_lshrrev_b32 v{t0}, 4, v0
    v_lshlrev_b32 v{t1}, 1, v{t0}
    v_and_b32 v{t2}, 15, v0
    v_xor_b32 v{t1}, v{t1}, v{t2}
    s_mov_b32 s{sT0}, {((1<<4)|(1<<9)|(1<<14)) << 3}
    v_mul_u32_u24 v{t0}, 3456, v{t0}""")
    for hi in range(2):
        if hi: a(f"v_xor_b32 v{t1}, 8, v{t1}")
        a(f"""v_mul_u32_u24 v{t2}, 52, v{t1}
        v_lshrrev_b32 v{t2}, 8, v{t2}
        v_mul_u32_u24 v{t2}, {1152-80}, v{t2}
        v_lshl_add_u32 v{t2}, v{t1}, 4, v{t2}
        v_lshrrev_b32 v{t3}, v{t1}, s{sT0}
        v_and_b32 v{t3}, 8, v{t3}
        v_sub_u32 v{t2}, v{t2}, v{t3}
        v_add_u32 v{vWs[hi]}, v{t0}, v{t2}""")
    a(f"""v_lshlrev_b32 v{vL16}, 4, v0
    s_mul_i32 s{sT0}, s{sWv}, {16*3456}
    s_and_b32 s{sT1}, s{sPr}, 15
    s_mul_i32 s{sT1}, s{sT1}, 72
    s_add_u32 s{sWsrc}, s{sT0}, s{sT1}
    s_mul_i32 s{sWk}, s{sRot}, {64*3456}
    s_add_u32 s{sWcnt}, s{sWsrc}, s{sWk}
    s_lshl_b32 s{sWm0}, s{sWv}, 12
    s_lshl_b32 s{sT2}, s{sWv}, 11
    s_add_u32 s{sT2}, s{sT2}, {L_GT}
    s_mov_b32 s{sM0}, {WM[0] & 0xffffffff}
    s_mov_b32 s{sM0+1}, {WM[0] >> 32}
    s_mov_b32 s{sM1}, {WM[1] & 0xffffffff}
    s_mov_b32 s{sM1+1}, {WM[1] >> 32}""")
    def wdma2(hi):
        m = (sM0, sM1)[hi]
        a(f"""s_add_u32 m0, s{sWm0}, {L_WR + hi*2048}
        s_add_u32 s{sT0}, s{sWcnt}, {hi*8*3456}
        s_add_u32 s{sT1}, s{sWcnt}, {hi*8*3456 + 4*3456 - 1024}
        s_mov_b64 exec, s[{m}:{m+1}]
        buffer_load_dwordx4 v{vWs[hi]}, s[{sW}:{sW+3}], s{sT0} offen lds
        buffer_load_dwordx4 v{vWs[hi]}, s[{sW}:{sW+3}], s{sT1} offen offset:1024 lds
        s_mov_b64 exec, -1""")
    def wnext():
        a(f"""s_add_u32 s{sWk}, s{sWk}, {64*3456}
        s_cmp_ge_u32 s{sWk}, {576*3456}
        s_cselect_b32 s{sWk}, 0, s{sWk}
        s_add_u32 s{sWcnt}, s{sWsrc}, s{sWk}
        s_add_u32 s{sWm0}, s{sWm0}, {WSL}
        s_sub_u32 s{sT0}, s{sWm0}, {RW*WSL}
        s_cmp_ge_u32 s{sWm0}, {RW*WSL}
        s_cselect_b32 s{sWm0}, s{sT0}, s{sWm0}""")
    order = []
    a(f"""s_mov_b32 m0, s{sT2}
    s_nop 0
    buffer_load_dwordx4 v{vL16}, s[{sG}:{sG+3}], 0 offen lds
    s_mov_b64 exec, 0xff
    buffer_load_dwordx4 v{vL16}, s[{sG}:{sG+3}], 0 offen offset:1024 lds
    s_mov_b64 exec, -1""")
    order += ["G"] * 2
    wdma2(0); wdma2(1)
    order += ["W0"] * 4
    wnext()
    a(f"""v_lshrrev_b32 v{t0}, 3, v0
    v_mul_u32_u24 v{t0}, 1152, v{t0}
    v_and_b32 v{t1}, 7, v0
    v_lshrrev_b32 v{t2}, 4, v0
    v_xor_b32 v{t1}, v{t1}, v{t2}
    v_lshlrev_b32 v{t1}, 4, v{t1}
    v_xor_b32 v{t2}, 64, v{t1}
    v_add_u32 v{vXs[0]}, v{t0}, v{t1}
    v_add_u32 v{vXs[1]}, v{t0}, v{t2}
    v_add_u32 v{vXs[1]}, {8*1152-1024}, v{vXs[1]}
    s_lshl_b32 s{sXb}, s{sE}, 4
    s_lshl_b32 s{sT0}, s{sHH}, 3
    s_add_u32 s{sXb}, s{sXb}, s{sT0}
    s_add_u32 s{sXb}, s{sXb}, s{sTH}
    s_mul_i32 s{sXb}, s{sXb}, {16*1152}
    s_lshl_b32 s{sKo}, s{sRot}, 7
    s_lshl_b32 s{sRing}, s{sWv}, 11
    s_add_u32 s{sRing}, s{sRing}, {L_XR}
    s_add_u32 s{sRef}, s{sXb}, s{sKo}
    s_mov_b32 s{sXm0}, s{sRing}""")
    sTo = [56, 57, 58, 59]
    for tt in range(4):
        a(f"""s_xor_b32 s{sTo[tt]}, s{sTt}, {tt}
        s_mul_i32 s{sTo[tt]}, s{sTo[tt]}, {32*1152}""")
    xstate = [0]
    def xnext():
        a(f"""s_add_u32 s{sKo}, s{sKo}, 128
        s_cmp_ge_u32 s{sKo}, 1152
        s_cselect_b32 s{sKo}, 0, s{sKo}
        s_add_u32 s{sRef}, s{sXb}, s{sKo}""")
    def xdma(j):
        tt = j & 3
        if tt == 0 and j: xnext()
        a(f"""s_mov_b32 m0, s{sXm0}
        s_add_u32 s{sT0}, s{sRef}, s{sTo[tt]}
        buffer_load_dwordx4 v{vXs[0]}, s[{sX}:{sX+3}], s{sT0} offen lds
        buffer_load_dwordx4 v{vXs[1]}, s[{sX}:{sX+3}], s{sT0} offen offset:1024 lds
        s_add_u32 s{sXm0}, s{sXm0}, 8192
        s_cmp_ge_u32 s{sXm0}, {L_XR + RX*8192}
        s_cselect_b32 s{sXm0}, s{sRing}, s{sXm0}""")
    xdma(0); xdma(1)
    order += ["X0"] * 2 + ["X1"] * 2
    stamp(a, 16, SV)
    srd(a, sWo, 60, 61, 576 * 1152)
    a(f"""s_lshl_b32 s{sT0}, s{sWv}, 5
    s_add_u32 s{sT0}, s{sT0}, s{sT2}
    v_lshl_add_u32 v{vGr}, v0, 1, s{sT0}
    v_and_b32 v{t1}, 3, v0
    v_lshlrev_b32 v{t1}, 1, v{t1}
    v_and_b32 v{t2}, 8, v0
    v_or_b32 v{t1}, v{t1}, v{t2}
    v_xor_b32 v{t1}, 15, v{t1}
    v_lshlrev_b32 v{t1}, 4, v{t1}
    v_lshl_add_u32 v{t1}, v0, 8, v{t1}
    s_lshl_b32 s{sGk}, s{sRot}, 7
    v_mov_b32 v{t0}, {L_SYNC}
    v_mov_b32 v20, 0
    v_mov_b32 v21, 0
    v_mov_b32 v22, 0
    v_mov_b32 v23, 0
    ds_write_b128 v{t0}, v[20:23]
    ds_write_b128 v{t0}, v[20:23] offset:16
    ds_write_b128 v{t0}, v[20:23] offset:32""")
    def gate(slotreg):
        a(f"""v_add_u32 v{t0}, s{sGk}, v{vGr}
        s_mov_b64 exec, 0xffff
        ds_read_u16 v{vGv}, v{t0}
        v_add_u32 v{t0}, s{slotreg}, v{t1}
        s_add_u32 s{sGk}, s{sGk}, 128
        s_cmp_ge_u32 s{sGk}, 1152
        s_cselect_b32 s{sGk}, 0, s{sGk}
        s_waitcnt lgkmcnt(0)
        ds_write2_b32 v{t0}, v{vGv}, v{vGv} offset0:0 offset1:1
        s_mov_b64 exec, -1""")
    a(f"""s_sub_u32 s{sT3}, s{sWm0}, {WSL}
    s_waitcnt vmcnt(8)""")
    stamp(a, 17, SV)
    gate(sT3); gate(sWm0)
    vWos, vWos2, vPub, vC100, vPk, vA4, vSn = 28, 29, 30, 31, [76, 77, 78], 79, 80
    vP, vPa, vSy, vOne, vFa = 20, 17, 18, 19, 16
    vOm, vOt, vWm, vWt, vRd = [2, 252], 3, 4, 5, 6
    vVa3, vSy3 = [248, 253], 251
    HWB, HAC, HOF = 8, 188, 228
    u0, u1, u2, u3 = 84, 85, 86, 87
    a(f"""v_mul_u32_u24 v{u0}, 57, v0
    v_lshrrev_b32 v{u0}, 10, v{u0}
    v_mul_u32_u24 v{u1}, 18, v{u0}
    v_sub_u32 v{u1}, v0, v{u1}
    v_lshlrev_b32 v{u1}, 4, v{u1}
    s_and_b32 s{sT0}, s{sE}, 1
    s_lshl_b32 s{sT0}, s{sT0}, 1
    s_mul_i32 s{sT1}, s{sWv}, 3
    s_add_u32 s{sT0}, s{sT0}, s{sT1}
    v_add_u32 v{u0}, s{sT0}, v{u0}
    v_mul_u32_u24 v{vWos}, 1152, v{u0}
    v_add_u32 v{vWos}, v{vWos}, v{u1}
    v_cmp_le_u32 vcc, 6, v{u0}
    v_add_u32 v{u2}, {12*1152}, v{vWos}
    v_subrev_u32 v{u3}, {6*1152}, v{vWos}
    v_cndmask_b32 v{vWos2}, v{u2}, v{u3}, vcc
    s_mul_i32 s{sT0}, s{sHH}, {RING}
    s_mul_i32 s{sT1}, s{sTH}, 5120
    s_add_u32 s{sT0}, s{sT0}, s{sT1}
    v_add_u32 v{vPub}, s{sT0}, v{vL16}
    s_lshl_b32 s{sT0}, s{sPr}, 2
    v_mov_b32 v{vPa}, s{sT0}
    s_lshl_b32 s{sT0}, s{sPr}, 12
    s_lshl_b32 s{sT3}, s{sHH}, 7
    s_add_u32 s{sT0}, s{sT0}, s{sT3}
    s_add_u32 s{sT0}, s{sT0}, {WS_F}
    v_and_b32 v{vFa}, 1, v0
    v_lshl_add_u32 v{vFa}, v{vFa}, 2, s{sT0}
    v_lshrrev_b32 v{u0}, 1, v0
    v_lshl_add_u32 v{vFa}, v{u0}, 8, v{vFa}
    v_mov_b32 v{vSy}, {L_SYNC}
    v_mov_b32 v{vOne}, 1
    v_mov_b32 v{vC100}, 0x100
    v_lshlrev_b32 v{vA4}, 2, v0
    v_bfe_u32 v{u0}, v0, 2, 3
    v_mul_u32_u24 v{u0}, 288, v{u0}
    v_and_b32 v{u1}, 3, v0
    v_lshlrev_b32 v{u1}, 3, v{u1}
    v_add_u32 v{u1}, {L_WO}, v{u1}
    v_and_b32 v{u2}, 32, v0
    v_add3_u32 v{vPk[1]}, v{u0}, v{u1}, v{u2}
    s_lshl_b32 s{sT0}, s{sWv}, 6
    v_add_u32 v{vPk[0]}, s{sT0}, v{vPk[1]}
    v_bfe_u32 v{u0}, v0, 2, 2
    v_mul_u32_u24 v{u0}, 288, v{u0}
    v_lshrrev_b32 v{u2}, 4, v0
    v_lshlrev_b32 v{u2}, 5, v{u2}
    v_add3_u32 v{u0}, v{u0}, v{u1}, v{u2}
    s_lshl_b32 s{sT0}, s{sWv}, 7
    v_add_u32 v{vPk[2]}, s{sT0}, v{u0}""")
    for i in range(4): a(f"v_mov_b32 v{vSn+i}, {SENT}")
    p3_scal(a)
    p3_addr_w(a, vWm, vWt, u0, u1, u2)
    p3_addr_o(a, vOm, vOt, vRd, vVa3, vSy3, u0, u1, u2)
    p3_hint_addr(a, HOF)
    for i in range(40): a(f"v_mov_b32 v{HAC+i}, 0")
    a("""s_waitcnt vmcnt(2) lgkmcnt(0)
    s_barrier""")
    stamp(a, 1, SV)
    xdma(2)
    wdma2(0); wdma2(1)
    wnext()
    order += ["X2"] * 2 + ["W1"] * 4
    for j in range(3, RX - 1):
        xdma(j); order += [f"X{j}"] * 2
    stamp(a, 18, SV)
    a(f"""s_mov_b32 s{sIt}, 0
    v_add_u32 v{t0}, s{sGk}, v{vGr}
    {K}_hl:""")
    for tt in (0, 2):
        a(f"""s_waitcnt vmcnt(@W{tt}@) lgkmcnt(0)
        s_barrier""")
        if OPT.get("prof"):
            a(f"""s_memtime s[82:83]
            s_lshl_b32 m0, s{sIt}, 1
            s_add_u32 m0, m0, {2 + (tt >> 1)}
            s_waitcnt lgkmcnt(0)
            v_writelane_b32 v{SV-8}, s82, m0""")
        if not OPT.get("noh"):
            def thr(k):
                if OPT.get("thr"):
                    a(f"""s_bitcmp1_b32 {STRAD}, s{sPr}
                    s_cbranch_scc1 {K}_th{tt}{k}
                    s_waitcnt vmcnt({OPT["thr"]})
                    {K}_th{tt}{k}:""")
            if tt == 0:
                a(f"ds_read_u16 v{vGv}, v{t0}")
            else:
                a(f"""s_mov_b64 exec, 0xffff
                ds_write2_b32 v{t2}, v{vGv}, v{vGv} offset0:0 offset1:1""")
            wdma2(tt >> 1)
            thr(0)
            xdma(tt + RX - 1)
            thr(1)
            xdma(tt + RX)
            if tt == 0:
                a(f"""v_add_u32 v{t2}, s{sWm0}, v{t1}
                s_add_u32 s{sGk}, s{sGk}, 128
                s_cmp_ge_u32 s{sGk}, 1152
                s_cselect_b32 s{sGk}, 0, s{sGk}
                v_add_u32 v{t0}, s{sGk}, v{vGr}""")
    wnext()
    a(f"""s_add_u32 s{sIt}, s{sIt}, 1
    s_cmp_lt_u32 s{sIt}, 7
    s_cbranch_scc1 {K}_hl""")
    need = {0: 99, 2: 99}
    for j in range(0, 36, 2):
        req = [f"X{min(j+2,35)}"]
        if j % 4 == 2 and j // 4 + 1 <= 8: req.append(f"W{j//4+1}")
        last = max(i for i, o in enumerate(order) if o in req)
        n_ = len(order) - 1 - last
        if j < 28:
            need[j % 4] = min(need[j % 4], n_)
            order += [f"W{j//4+2}"] * 2 + [f"X{j+RX-1}"] * 2 + [f"X{j+RX}"] * 2
        else:
            a(f"""s_waitcnt vmcnt({n_}) lgkmcnt(0)
            s_barrier""")
            for jj in (j + RX - 1, j + RX):
                if jj <= 35:
                    xdma(jj); order += [f"X{jj}"] * 2
    for i in (0, 2): a.l = [x.replace(f"@W{i}@", str(need[i])) for x in a.l]
    stamp(a, 2, SV)
    if OPT.get("prof"):
        a(f"""v_readlane_b32 s80, v{SV+1}, 0
        v_readlane_b32 s81, v{SV+1}, 1
        v_readlane_b32 s82, v{SV+1}, 2
        s_nop 3
        v_writelane_b32 v{SV-8}, s80, 0
        v_writelane_b32 v{SV-8}, s81, 1
        v_writelane_b32 v{SV-8}, s82, 16
        s_lshl_b32 s80, s2, 3
        s_add_u32 s80, s80, s{sW8}
        s_lshl_b32 s80, s80, 8
        s_add_u32 s80, s80, {WS_STAMP + 0x80000}
        v_lshlrev_b32 v1, 2, v0
        buffer_store_dword v{SV-8}, v1, s[{sWS}:{sWS+3}], s80 offen""")
    sPH, sPC = sWsrc, sWm0
    sQ = sGk
    a(f"""s_lshl_b32 s{sPH}, s{sPr}, 1
    s_and_b32 s{sT0}, s{sE}, 1
    s_add_u32 s{sPH}, s{sPH}, s{sT0}
    s_lshr_b32 s{sPC}, s{sE}, 1
    s_and_b32 s{sT0}, s{sPH}, 31
    s_mul_i32 s{sT0}, s{sT0}, {18*1152}
    s_mul_i32 s{sT1}, s{sPC}, 288
    s_add_u32 s{sT0}, s{sT0}, s{sT1}
    s_mul_i32 s{sT1}, s{sWv}, 864
    s_add_u32 m0, s{sT1}, {L_WO}
    s_mov_b32 exec_hi, 0x003fffff
    buffer_load_dwordx4 v{vWos}, s[{sWo}:{sWo+3}], s{sT0} offen lds
    s_add_u32 m0, s{sT1}, {L_WO + 4*864}
    s_nop 0
    buffer_load_dwordx4 v{vWos2}, s[{sWo}:{sWo+3}], s{sT0} offen lds
    s_mov_b64 exec, 1
    buffer_load_dword v{vP+1}, v{vPa}, s[{sD}:{sD+3}], 0 offen sc1
    s_mov_b64 exec, -1
    s_mul_i32 s{sRing}, s{sHH}, {RING}
    s_mul_i32 s{sT2}, s{sTH}, 5120
    s_mul_i32 s{sT1}, s{sE}, {2*BLK}
    s_add_u32 s{sT1}, s{sT1}, s{sKVg}
    s_add_u32 s{sT1}, s{sT1}, s{sT2}
    s_mov_b32 s{sQ}, s{sTH}
    s_cmp_eq_u32 s{sTH}, 1
    s_cselect_b32 s{sM0}, 0xffff, -1
    s_cselect_b32 s{sM0+1}, 0, -1
    s_barrier""")
    t0 = vPub
    stamp(a, 3, SV)
    for i in range(5): a(f"ds_read_b128 {vr(32+4*i,4)}, v{t0} offset:{1024*i}")
    a(f"s_mov_b32 s{sXb}, s{sT1}")
    def publish(ph):
        for i in range(5 * ph, 5 * ph + 5):
            if i % 5 == 4: a(f"""s_add_u32 s{sXb}, s{sXb}, 4096
            s_mov_b64 exec, s[{sM0}:{sM0+1}]""")
            if ph == 0: a(f"s_waitcnt lgkmcnt({4-i})")
            a(f"buffer_store_dwordx4 {vr(32+4*i,4)}, v{vL16}, s[{sWS}:{sWS+3}], s{sXb} offen offset:{1024*((i%5)%4)} sc1")
            if i % 5 == 4: a(f"""s_mov_b64 exec, -1
            s_add_u32 s{sXb}, s{sXb}, {BLK-4096}""")
    publish(0)
    a("s_barrier")
    for i in range(5, 10): a(f"ds_read_b128 {vr(32+4*i,4)}, v{t0} offset:{BLK + 1024*(i-5)}")
    def arrive(word, vm=0):
        a(f"""s_mov_b64 exec, 1
        s_waitcnt vmcnt({vm})
        ds_add_rtn_u32 v{vP}, v{vSy}, v{vOne} offset:{4*word}
        s_waitcnt lgkmcnt(0)
        v_readfirstlane_b32 s{sT1}, v{vP}
        s_mov_b64 exec, -1
        s_cmp_eq_u32 s{sT1}, 3""")
    def lds_wait(lbl, word):
        a(f"""s_mov_b32 s{sSpin}, 400000
        {lbl}:
        ds_read_b32 v{vP}, v{vSy} offset:{4*word}
        s_waitcnt lgkmcnt(0)
        v_readfirstlane_b32 s{sT1}, v{vP}
        s_cmp_lg_u32 s{sT1}, 0
        s_cbranch_scc1 {lbl}_go
        s_sub_u32 s{sSpin}, s{sSpin}, 1
        s_cmp_eq_u32 s{sSpin}, 0
        s_cbranch_scc1 {lbl}_go
        s_sleep 6
        s_branch {lbl}
        {lbl}_go:""")
    def flag(off, vm):
        a(f"""s_lshl_b32 s{sT0}, s{sE}, 8
        s_lshl_b32 s{sT1}, s{sTH}, 2
        s_add_u32 s{sT0}, s{sT0}, s{sT1}
        s_mov_b64 exec, 1
        s_waitcnt vmcnt({vm})
        buffer_store_dword v{vOne}, v{vFa}, s[{sWS}:{sWS+3}], s{sT0} offen offset:{off} sc1
        s_mov_b64 exec, -1""")
    flag(0, 0)
    stamp(a, 4, SV)
    def rst_ok(r):
        a(f"""v_readfirstlane_b32 s{sT0}, v{r}
        s_and_b32 s{sT0}, s{sT0}, 0xff
        s_cmp_ge_u32 s{sT0}, 8""")
    def kv_ready():
        a(f"""v_cmp_eq_u32 vcc, 1, v{vP}
        s_nop 1
        s_cmp_eq_u32 vcc_lo, 0xffff""")
    a("s_mov_b64 exec, 1")
    rst_ok(vP + 1)
    a(f"s_cbranch_scc1 {K}_pl0_go")
    poll(a, f"{K}_pl0", f"buffer_load_dword v{vP}, v{vPa}, s[{sD}:{sD+3}], 0 offen sc1", lambda: rst_ok(vP), 8)
    a(f"""s_add_u32 s{sT2}, s{sTH}, 1
    s_xor_b32 s{sT2}, s{sT2}, s{sE}
    s_lshl_b32 s{sT2}, s{sT2}, 8
    s_mov_b64 exec, 3
    s_mov_b32 s{sSpin}, 40000
    buffer_load_dword v{vP}, v{vFa}, s[{sWS}:{sWS+3}], s{sT2} offen sc1
    s_sleep {OPT.get("fslp", 4)}
    buffer_load_dword v{vP+1}, v{vFa}, s[{sWS}:{sWS+3}], s{sT2} offen sc1
    s_sleep {OPT.get("fslp", 4)}
    {K}_pl1:""")
    for r_ in range(3):
        a(f"""buffer_load_dword v{vP+(r_+2)%3}, v{vFa}, s[{sWS}:{sWS+3}], s{sT2} offen sc1
        s_waitcnt vmcnt(2)
        v_cmp_eq_u32 vcc, 1, v{vP+r_}
        s_nop 1
        s_cmp_eq_u32 vcc_lo, 3
        s_cbranch_scc1 {K}_kgo""")
    a(f"""s_sub_u32 s{sSpin}, s{sSpin}, 1
    s_cmp_lg_u32 s{sSpin}, 0
    s_cbranch_scc1 {K}_pl1
    {K}_kgo:
    s_mov_b64 exec, -1""")
    stamp(a, 5, SV)
    def ldblock():
        a(f"s_call_b64 s[{sRet}:{sRet+1}], {K}_ldblk")
    ldblock()
    a("s_waitcnt lgkmcnt(0)")
    publish(1)
    a("s_waitcnt vmcnt(5)")
    stamp(a, 6, SV)
    a("s_barrier")
    flag(2048, 0)
    a("s_mov_b64 exec, 0xffff")
    poll(a, f"{K}_pl1a", f"buffer_load_dword v{vP}, v{vFa}, s[{sWS}:{sWS+3}], 0 offen sc1", kv_ready, 2)
    a("s_mov_b64 exec, -1")
    ldblock(); ldblock()
    a("s_waitcnt vmcnt(0)")
    stamp(a, 7, SV)
    a("s_barrier")
    a("s_mov_b64 exec, 0xffff")
    poll(a, f"{K}_pl1b", f"buffer_load_dword v{vP}, v{vFa}, s[{sWS}:{sWS+3}], 0 offen offset:2048 sc1", kv_ready, 2)
    a("s_mov_b64 exec, -1")
    ldblock(); ldblock()
    a(f"""ds_read_b64_tr_b16 {vr(64,2)}, v{vPk[0]}
    ds_read_b64_tr_b16 {vr(66,2)}, v{vPk[0]} offset:2304
    ds_read_b64_tr_b16 {vr(68,2)}, v{vPk[1]} offset:256
    ds_read_b64_tr_b16 {vr(70,2)}, v{vPk[1]} offset:{256+2304}
    ds_read_b64_tr_b16 {vr(72,2)}, v{vPk[2]} offset:{16*288-128}
    s_lshl_b32 s{sT0}, s{sPC}, 6
    s_add_u32 s{sT0}, s{sT0}, s{sPH}
    s_mul_i32 s{sT0}, s{sT0}, 4608
    s_add_u32 s{sT0}, s{sT0}, {WS_WOM}
    s_lshl_b32 s{sT1}, s{sWv}, 10
    s_add_u32 s{sT1}, s{sT1}, s{sT0}
    s_lshl_b32 s{sT2}, s{sPC}, 4
    s_lshr_b32 s{sT3}, s{sPH}, 2
    s_add_u32 s{sT2}, s{sT2}, s{sT3}
    s_mul_i32 s{sT2}, s{sT2}, 2304
    s_and_b32 s{sT3}, s{sPH}, 3
    s_lshl_b32 s{sT3}, s{sT3}, 2
    s_add_u32 s{sT2}, s{sT2}, s{sT3}
    s_lshl_b32 s{sT3}, s{sWv}, 10
    s_add_u32 s{sT2}, s{sT2}, s{sT3}
    s_add_u32 s{sT2}, s{sT2}, {WS_WOT - 1024}
    s_waitcnt lgkmcnt(0)
    buffer_store_dwordx4 {vr(64,4)}, v{vL16}, s[{sWS}:{sWS+3}], s{sT1} offen sc1
    s_cmp_eq_u32 s{sWv}, 0
    s_cbranch_scc0 {K}_wo_tail
    s_mov_b32 exec_hi, 0
    s_add_u32 s{sT3}, s{sT0}, 4096
    buffer_store_dwordx4 {vr(68,4)}, v{vL16}, s[{sWS}:{sWS+3}], s{sT3} offen sc1
    s_branch {K}_wo_done
    {K}_wo_tail:
    s_cmp_eq_u32 s{sWv}, 3
    s_cselect_b32 exec_lo, 0xffff, -1
    s_cselect_b32 exec_hi, 0, -1
    buffer_store_dword v72, v{vL16}, s[{sWS}:{sWS+3}], s{sT2} offen sc1
    {K}_wo_done:
    s_mov_b64 exec, -1""")
    a(f"""s_lshl_b32 s{sT1}, s{sE}, 1
    s_add_u32 s{sT1}, s{sT1}, s{sTH}
    s_lshl_b32 s{sT1}, s{sT1}, 8
    s_add_u32 s{sT1}, s{sT1}, s{sBH}
    s_mul_i32 s{sT1}, s{sT1}, 1152
    s_add_u32 s{sT1}, s{sT1}, {WS_O}""")
    for x in range(4):
        a(f"""buffer_store_dwordx4 {vr(vSn,4)}, v{vL16}, s[{sWS}:{sWS+3}], s{sT1} offen sc1
        s_mov_b64 exec, 0xff
        buffer_store_dwordx4 {vr(vSn,4)}, v{vL16}, s[{sWS}:{sWS+3}], s{sT1} offen offset:1024 sc1
        s_mov_b64 exec, -1
        s_add_u32 s{sT1}, s{sT1}, {64*1152}""")
    arrive(1)
    a(f"""s_cbranch_scc0 {K}_sg2
    s_mov_b64 exec, 1
    buffer_atomic_add v{vC100}, v{vPa}, s[{sD}:{sD+3}], 0 offen
    s_mov_b64 exec, -1
    {K}_sg2:""")
    a("s_barrier")
    ldblock(); ldblock()
    stamp(a, 12, SV)
    a(f"""s_cmp_eq_u32 s{sWv}, 0
    s_cbranch_scc0 {K}_gw
    s_mov_b32 exec_hi, 0""")
    def all_init():
        a(f"""v_bfe_u32 v{vP}, v{vP}, 8, 8
        v_cmp_le_u32 vcc, 8, v{vP}
        s_nop 1
        s_cmp_eq_u32 vcc_lo, -1""")
    poll(a, f"{K}_pl2", f"buffer_load_dword v{vP}, v{vA4}, s[{sD}:{sD+3}], 0 offen sc1", all_init, 32)
    a(f"""ds_write_b32 v{vSy}, v{vOne} offset:12
    s_mov_b64 exec, -1
    s_branch {K}_ggo
    {K}_gw:""")
    lds_wait(f"{K}_lw2", 3)
    a(f"{K}_ggo:")
    HC = [0, 1, 2, 3, 4]
    hreg = lambda s, ct: HWB + 4 * (5 * s + ct)
    p3_wo_loads(a, HC, hreg, vWm, vWt)
    a("s_waitcnt vmcnt(45)")
    stamp(a, 8, SV)
    a("s_barrier")
    if not OPT.get('x_nowarm'): p3_wo_loads(a, [8], lambda s, ct: HOF + 4 * (s % 4), vWm, vWt)
    a(f"""s_mul_i32 s{sT0}, s{sTH}, 27648
    s_add_u32 s{sT0}, s{sT0}, s{sRing}
    s_barrier""")
    for s in range(9 if not OPT.get('x_nostage') else 0):
        for i, ct in enumerate(CL):
            n = 3 * s + i
            if s < 8:
                a(f"""s_add_u32 m0, s{sT0}, {1024*n}
                s_add_u32 s{sT3}, s{sGW[s>>1]}, {2*(s&1)*4608 + 512*ct}
                buffer_load_dwordx4 v{vWm}, s[{sWS}:{sWS+3}], s{sT3} offen sc1 lds""")
            else:
                a(f"""s_add_u32 m0, s{sT0}, {1024*n}
                s_add_u32 s{sT3}, s{sWtb}, {256*ct}
                buffer_load_dwordx4 v{vWt}, s[{sWS}:{sWS+3}], s{sT3} offen sc1 lds""")
    a(f"""s_mul_i32 s{sT0}, s{sP3T}, {32*1152}
    buffer_load_dword v1, v{vL16}, s[{sOut}:{sOut+3}], s{sT0} offen
    s_waitcnt vmcnt(0)""")
    stamp(a, 9, SV)
    a("s_barrier")
    stamp(a, 10, SV)
    p3_helper(a, HC, hreg, HAC, HOF, vOm, vOt, vRd, vL16, vVa3, vSy3, int(OPT.get("hslp", 1)))
    stamp(a, 11, SV)
    if OPT["stamp"]: a(f"v_mov_b32 v30, v{SV}\nv_mov_b32 v31, v{SV+1}")
    a(f"s_branch {K}_final")
    a(f"""{K}_ldblk:
    s_add_u32 s{sQ}, s{sQ}, 2
    s_cmp_ge_u32 s{sQ}, 9
    s_cselect_b32 s{sT0}, 0, 7
    s_cselect_b32 s{sT2}, 1, 0
    s_add_u32 s{sT0}, s{sT0}, s{sQ}
    s_and_b32 s{sT0}, s{sT0}, 7
    s_xor_b32 s{sT0}, s{sT0}, s{sE}
    s_lshl_b32 s{sT0}, s{sT0}, 1
    s_add_u32 s{sT0}, s{sT0}, s{sT2}
    s_mul_i32 s{sT1}, s{sT0}, {BLK}
    s_add_u32 s{sT1}, s{sT1}, s{sKVg}
    s_and_b32 s{sT0}, s{sQ}, 7
    s_mul_i32 s{sT0}, s{sT0}, {BLK}
    s_add_u32 s{sT0}, s{sT0}, s{sRing}""")
    for i in range(10):
        if i % 4 == 0:
            a(f"""s_add_u32 m0, s{sT0}, {1024*i}
            s_add_u32 s{sT2}, s{sT1}, {1024*i}""")
        if i == 9: a("s_mov_b64 exec, 0xffff")
        a(f"buffer_load_dwordx4 v{vL16}, s[{sWS}:{sWS+3}], s{sT2} offen offset:{1024*(i%4)} sc1 lds")
    a(f"""s_mov_b64 exec, -1
    s_setpc_b64 s[{sRet}:{sRet+1}]""")

def compute(a, K):
    RX = int(OPT["rx"])
    stamp(a, 0, 30)
    vXr = [2, 3, 20, 21]
    vWc = [4, 5, 9, 1]
    t0, t1, t2, t3, t4, t5 = 64, 65, 66, 67, 68, 69
    WF = 32
    XF = [96, 112]
    ACC = 128
    def reset_flags():
        a(f"""s_cmp_eq_u32 s{sWv}, 0
        s_cselect_b32 s{sCnt}, {OPT.get("rstit", 4)}, 100
        s_cbranch_scc0 {K}_norst
        s_lshl_b32 s{sT0}, s{sPr}, 12
        s_lshl_b32 s{sT1}, s{sE}, 8
        s_add_u32 s{sT0}, s{sT0}, s{sT1}
        s_add_u32 s{sT0}, s{sT0}, {WS_F}
        v_lshlrev_b32 v75, 7, v0
        v_mov_b32 v76, 0
        v_mov_b32 v77, 0
        s_mov_b64 exec, 3
        buffer_store_dwordx2 v[76:77], v75, s[{sWS}:{sWS+3}], s{sT0} offen sc1
        buffer_store_dwordx2 v[76:77], v75, s[{sWS}:{sWS+3}], s{sT0} offen offset:2048 sc1""")
        if OPT.get("touch", "1") == "1":
            a(f"""s_mov_b64 exec, 1
            buffer_load_dword v78, v75, s[{sWS}:{sWS+3}], s{sKVg} offen
            s_add_u32 s{sT0}, s{sKVg}, {2*KVH-128}
            buffer_load_dword v79, v75, s[{sWS}:{sWS+3}], s{sT0} offen""")
        a(f"""s_mov_b64 exec, -1
        {K}_norst:""")
    a(f"v_mov_b32 v{ACC}, 0")
    if OPT.get("rstpos", "late") == "start": reset_flags()
    a(f"""v_and_b32 v{t0}, 15, v0
    v_lshrrev_b32 v{t1}, 4, v0
    v_bfe_u32 v{t2}, v0, 1, 3
    v_xor_b32 v{t2}, v{t2}, v{t1}
    v_lshlrev_b32 v{t2}, 4, v{t2}
    v_lshlrev_b32 v{t3}, 7, v{t0}
    s_lshl_b32 s{sT0}, s{sTH}, 12
    s_lshl_b32 s{sT1}, s{sHH}, 11
    s_add_u32 s{sT0}, s{sT0}, s{sT1}
    s_add_u32 s{sT0}, s{sT0}, {L_XR}
    v_add_u32 v{t3}, s{sT0}, v{t3}
    v_add_u32 v{vXr[0]}, v{t3}, v{t2}
    v_xor_b32 v{t2}, 64, v{t2}
    v_add_u32 v{vXr[1]}, v{t3}, v{t2}
    v_xor_b32 v{vXr[2]}, 2048, v{vXr[0]}
    v_xor_b32 v{vXr[3]}, 2048, v{vXr[1]}
    v_bfe_u32 v{t2}, v0, 2, 2
    v_lshl_add_u32 v{t2}, v{t1}, 3, v{t2}
    v_lshlrev_b32 v{t2}, 8, v{t2}
    v_bfe_u32 v{t4}, v0, 2, 3
    v_lshlrev_b32 v{t4}, 5, v{t4}
    v_and_b32 v{t3}, 3, v0
    v_lshlrev_b32 v{t3}, 3, v{t3}
    s_mul_i32 s{sT1}, s{sHH}, 40
    s_mov_b32 s{sT0}, {192 | (112 << 8) | (32 << 16) | (240 << 24)}
    v_lshrrev_b32 v{t5}, v{t3}, s{sT0}
    v_and_b32 v{t5}, 0xff, v{t5}
    v_xor_b32 v{t5}, v{t5}, v{t4}
    v_add_u32 v{vWc[3]}, v{t2}, v{t5}
    v_add_u32 v{t3}, s{sT1}, v{t3}
    v_lshrrev_b32 v{t5}, 3, v{t3}
    v_and_b32 v{t5}, 8, v{t5}
    v_add_u32 v{t3}, v{t3}, v{t5}""")
    for ct, off in enumerate((80, 0, 160)):
        a(f"""v_add_u32 v{t5}, {off}, v{t3}
        v_xor_b32 v{t5}, v{t5}, v{t4}
        v_add_u32 v{vWc[ct]}, v{t2}, v{t5}""")
    for i in range(1, 128):
        if i % 32 < 28: a(f"v_mov_b32 v{ACC+i}, 0")
    vKa, vTa, vVa, vIdx = 6, 7, 8, 10
    vKw, vQw, vVw, vMul, vSq, vSqh = 11, 12, 13, 24, 25, 19
    vSt, vStt, vWm3, vWt, vCp, vOnes, vQr = 14, 15, 16, 17, 18, 22, 23
    vM0, vDs, vDt, vDe, vDh = 70, 71, 72, 73, 74
    MA = lambda tt, i: ACC + 32 * tt + 28 + i
    sBlk, sScr = sXb, sKo
    a(f"""s_mul_i32 s{sRing}, s{sHH}, {RING}
    s_mul_i32 s{sBlk}, s{sTH}, {BLK}
    s_add_u32 s{sBlk}, s{sBlk}, s{sRing}
    s_mul_i32 s{sScr}, s{sWv}, 5120
    s_add_u32 s{sScr}, s{sScr}, {L_SCR}
    v_lshrrev_b32 v{t2}, 2, v{t0}
    v_and_b32 v{t3}, 3, v0
    v_lshl_add_u32 v{t4}, v{t2}, 3, v{t3}
    v_lshrrev_b32 v{t5}, 5, v0
    v_lshlrev_b32 v{t5}, 9, v{t5}
    v_and_b32 v{vQw}, 16, v0
    v_lshrrev_b32 v{vQw}, 1, v{vQw}
    v_add_u32 v{t5}, v{t5}, v{vQw}
    v_lshl_add_u32 v{vKw}, v{t4}, 4, v{t5}
    s_lshl_b32 s{sT0}, s{sTH}, 11
    s_add_u32 s{sT0}, s{sT0}, s{sRing}
    v_add_u32 v{vKw}, s{sT0}, v{vKw}
    v_lshl_add_u32 v{vQw}, v{t0}, 4, v{t5}
    v_add_u32 v{vQw}, s{sScr}, v{vQw}
    v_mul_u32_u24 v{vVw}, 304, v{t1}
    v_lshl_add_u32 v{vVw}, v{t0}, 4, v{vVw}
    s_mul_i32 s{sT0}, s{sTH}, 2432
    s_add_u32 s{sT0}, s{sT0}, s{sRing}
    v_add_u32 v{vVw}, s{sT0}, v{vVw}""")
    a(f"""s_mul_i32 s{sT2}, s{sTH}, 2432
    s_mul_i32 s{sT3}, s{sTH}, 5120
    v_mul_u32_u24 v{vM0}, 304, v{t2}
    v_lshl_add_u32 v{vM0}, v{t3}, 1, v{vM0}
    s_add_u32 s{sT0}, s{sT2}, {4608+256}
    v_add_u32 v{vM0}, s{sT0}, v{vM0}
    s_lshl_b32 s{sT0}, s{sTH}, 3
    s_add_u32 s{sT0}, s{sT0}, 4096
    s_add_u32 s{sT1}, s{sT3}, {L_SCR+4096-1024}
    v_lshlrev_b32 v{t5}, 9, v{t1}
    v_add_u32 v{t5}, s{sT1}, v{t5}
    v_mov_b32 v{vDh}, s{sT0}
    v_cmp_eq_u32 vcc, 1, v{t1}
    v_mov_b32 v{vDs}, 64
    v_mov_b32 v{vDt}, 4
    v_cndmask_b32 v{t5}, v{t5}, v{vDh}, vcc
    v_lshl_add_u32 v{t5}, v{t4}, 4, v{t5}
    v_cmp_eq_u32 vcc, 0, v{t1}
    v_mov_b32 v{vDe}, 2
    v_mov_b32 v{t3}, 1216
    v_cndmask_b32 v{vM0}, v{t5}, v{vM0}, vcc
    v_cndmask_b32 v{vDs}, v{vDs}, 8, vcc
    v_cndmask_b32 v{vDt}, v{vDt}, v{t3}, vcc
    v_cndmask_b32 v{vDe}, v{vDe}, 16, vcc
    v_cmp_gt_u32 vcc, 2, v{t1}
    v_mov_b32 v{vDh}, {2*5120}
    v_mov_b32 v{t3}, {RING}
    v_cndmask_b32 v{vDh}, v{vDh}, v{t3}, vcc
    v_mov_b32 v{t5}, 8
    v_mov_b32 v{t3}, {BLK}
    v_cndmask_b32 v{t5}, v{t5}, v{t3}, vcc
    v_mul_u32_u24 v{t3}, s{sHH}, v{vDs}
    v_add_u32 v{MA(0,0)}, v{vM0}, v{t3}
    v_sub_u32 v{t3}, v{vDs}, v{t3}
    v_add3_u32 v{MA(0,2)}, v{vM0}, v{t3}, v{vDh}
    v_add_u32 v{MA(0,1)}, v{MA(0,0)}, v{vDe}
    v_add_u32 v{MA(0,3)}, v{MA(0,2)}, v{vDe}""")
    for i in range(4):
        a(f"""v_add_u32 v{MA(1,i)}, v{MA(0,i)}, v{vDt}
        v_add_u32 v{MA(2,i)}, v{MA(0,i)}, v{t5}
        v_add_u32 v{MA(3,i)}, v{MA(1,i)}, v{t5}""")
    a(f"""v_cmp_eq_u32 vcc, 2, v{t1}
    v_mov_b32 v{vMul}, 1.0
    v_mov_b32 v{t2}, {f32(CSCALE)}
    v_cndmask_b32 v{vMul}, v{vMul}, v{t2}, vcc""")
    a(f"""v_and_b32 v{t2}, 16, v0
    v_lshrrev_b32 v{t2}, 2, v{t2}
    v_add_u32 v{t2}, v{t2}, v{t4}
    v_lshlrev_b32 v{vSq}, 4, v{t2}
    s_add_u32 s{sT1}, s{sScr}, 4096
    v_add_u32 v{vSq}, s{sT1}, v{vSq}
    v_and_b32 v{t0}, 31, v0
    v_lshrrev_b32 v{t1}, 5, v0
    v_mul_u32_u24 v{t3}, 304, v{t1}
    v_lshl_add_u32 v{t3}, v{t0}, 4, v{t3}
    v_add_u32 v{t3}, s{sRing}, v{t3}
    v_cmp_gt_u32 vcc, 19, v{t0}
    v_mov_b32 v{vVa}, {LDS_BYTES}
    v_lshl_add_u32 v{vKa}, v0, 4, s{sRing}
    v_cndmask_b32 v{vVa}, v{vVa}, v{t3}, vcc
    v_lshl_add_u32 v{vTa}, v{t0}, 4, s{sRing}
    v_mov_b32 v{vIdx}, 0xdddddddd
    v_lshl_add_u32 v{vSqh}, v{t1}, 2, v{vSq}
    s_mov_b32 s{sWsrc}, 0
    s_mov_b32 s{sXm0}, 0
    v_mul_u32_u24 v{vOnes}, 304, v0
    v_add_u32 v{vOnes}, s{sBlk}, v{vOnes}
    v_lshl_add_u32 v{vQr}, v0, 4, s{sScr}
    s_mul_i32 s{sT0}, s{sTH}, 27648
    s_add_u32 s{sT0}, s{sT0}, s{sRing}
    v_lshl_add_u32 v{vCp}, v0, 4, s{sT0}
    s_lshl_b32 s{sT0}, s{sHH}, 4
    v_xor_b32 v{t2}, s{sT0}, v0
    v_lshlrev_b32 v{vSt}, 4, v{t2}
    s_and_b32 s{sT0}, s{sTt}, 1
    v_xor_b32 v{vStt}, s{sT0}, v{t1}
    v_mul_u32_u24 v{vStt}, {64*1152}, v{vStt}
    v_and_b32 v{t2}, 31, v{t2}
    v_lshl_add_u32 v{vStt}, v{t2}, 2, v{vStt}
    s_lshl_b32 s{sT1}, s{sE}, 1
    s_add_u32 s{sT1}, s{sT1}, s{sTH}
    s_lshl_b32 s{sT1}, s{sT1}, 8
    s_add_u32 s{sT1}, s{sT1}, s{sBH}
    s_mul_i32 s{sT1}, s{sT1}, 1152
    s_add_u32 s{sRef}, s{sT1}, {WS_O}
    s_cmp_ge_u32 s{sPr}, 16
    s_mov_b32 s60, {f32(-LOG2E)}
    s_cselect_b32 s60, {f32(LOG2E)}, s60
    s_mov_b32 s61, {f32(2.0**-40)}
    s_mov_b32 s64, {f32(2.0**40) if not OPT['force_fb'] else f32(2.0**-39)}
    s_mov_b32 s65, {f32(CSCALE)}""")
    for x in range(4):
        a(f"""s_xor_b32 s{56+x}, s{sTt}, {x}
        s_mul_i32 s{56+x}, s{56+x}, {64*1152}
        s_add_u32 s{56+x}, s{56+x}, s{sRef}""")
    a("""s_min_u32 s4, s56, s57
    s_min_u32 s5, s58, s59""")
    p3_scal(a)
    p3_addr_w(a, vWm3, vWt, t0, t1, t2)
    coff = (48, 0, 96, 0)
    def wfrag(k2):
        r = []
        for ct in range(4):
            for hf in range(2):
                r.append(f"ds_read_b64_tr_b16 {vr(WF+16*k2+4*ct+2*hf,2)}, v{vWc[ct]} offset:{L_WR + (32*k2+4*hf)*256}")
        return r
    def xread(buf):
        r = []
        for k2 in range(2):
            for s in range(2):
                r.append(f"ds_read_b128 {vr(XF[buf]+8*k2+4*s,4)}, v{vXr[2*s+k2]}")
        return r
    xadv = [f"s_add_u32 s{sXm0}, s{sXm0}, 1", f"s_cmp_eq_u32 s{sXm0}, {RX}", f"s_cselect_b32 s{sXm0}, 0, s{sXm0}",
            f"s_cselect_b32 s{sT1}, s{sWk}, s{sWcnt}",
            ] + [f"v_add_u32 v{c}, s{sT1}, v{c}" for c in vXr]
    wadv = [f"s_add_u32 s{sWsrc}, s{sWsrc}, 1", f"s_cmp_eq_u32 s{sWsrc}, {RW}", f"s_cselect_b32 s{sWsrc}, 0, s{sWsrc}",
            f"s_cselect_b32 s{sT2}, s{sWm0}, s{sGk}",
            ] + [f"v_add_u32 v{c}, s{sT2}, v{c}" for c in vWc]
    if OPT.get('noadv'):
        xadv = [''] * 8; wadv = [''] * 8
    a(f"""s_mov_b32 s{sWk}, {(-(RX-1)*8192) & 0xffffffff}
    s_mov_b32 s{sWcnt}, 8192
    s_mov_b32 s{sWm0}, {(-(RW-1)*WSL) & 0xffffffff}
    s_mov_b32 s{sGk}, {WSL}""")
    if OPT.get("rstpos", "late") == "late": reset_flags()
    if OPT.get("pf9", "1") == "1":
        a(f"""s_lshr_b32 s{sT0}, s2, 5
        s_bfe_u32 s{sT1}, s2, {(2 << 16) | 3}
        s_cmp_eq_u32 s{sWv}, 0
        s_cbranch_scc1 {K}_pfx
        s_cmp_eq_u32 s{sWv}, 1
        s_cbranch_scc0 {K}_pfw
        s_lshl_b32 s{sT2}, s{sT1}, 1
        s_sub_u32 s{sT2}, s{sT2}, 1
        s_cselect_b32 s{sT2}, 8, s{sT2}
        s_lshl_b32 s{sT2}, s{sT2}, 7
        s_lshl_b32 s{sT3}, s{sE}, 3
        s_add_u32 s{sT3}, s{sT3}, s{sT0}
        s_mul_i32 s{sT3}, s{sT3}, {32*1152}
        s_add_u32 s{sT2}, s{sT2}, s{sT3}
        v_mul_u32_u24 v75, 1152, v0
        s_mov_b32 exec_hi, 0
        buffer_load_dword v76, v75, s[{sX}:{sX+3}], s{sT2} offen
        s_branch {K}_pfd
        {K}_pfw:
        s_sub_u32 s{sT2}, s{sT0}, 1
        s_cselect_b32 s{sT2}, 8, s{sT2}
        s_lshl_b32 s{sT2}, s{sT2}, 2
        s_add_u32 s{sT2}, s{sT2}, s{sT1}
        s_mul_i32 s{sT2}, s{sT2}, {16*3456}
        s_and_b32 s{sT3}, s{sPr}, 15
        s_mul_i32 s{sT3}, s{sT3}, 72
        s_add_u32 s{sT2}, s{sT2}, s{sT3}
        s_mul_i32 s{sT3}, s{sTH}, 68
        s_add_u32 s{sT2}, s{sT2}, s{sT3}
        v_mul_u32_u24 v75, 1152, v0
        s_mov_b32 exec_hi, 0xffff
        buffer_load_dword v76, v75, s[{sW}:{sW+3}], s{sT2} offen
        {K}_pfd:
        s_mov_b64 exec, -1
        {K}_pfx:""")
    a("s_barrier")
    stamp(a, 1, 30)
    if OPT.get("rstpos", "late") == "afterp": reset_flags()
    for m in xread(0) + xadv + wfrag(0) + wfrag(1): a(m)
    QM, QT = 32, 48
    KF, V0, V1, KT = [80, 84], [88, 92], [96, 100], [56, 60]
    vGl = 26
    TP = 108
    def epi(tt):
        tp = (64, 80)[tt % 2]
        r = []
        for s in range(2):
            b = ACC + 32 * tt + 16 * s
            k_, q_ = tp + 2 * s, tp + 4 + 2 * s
            r += f"""v_cvt_pk_bf16_f32 v{k_}, v{b}, v{b+1}
            v_cvt_pk_bf16_f32 v{k_+1}, v{b+2}, v{b+3}
            v_mul_f32 v{b+4}, s65, v{b+4}
            v_mul_f32 v{b+5}, s65, v{b+5}
            v_mul_f32 v{b+6}, s65, v{b+6}
            v_mul_f32 v{b+7}, s65, v{b+7}
            ds_write_b64 v{vKw}, {vr(k_,2)} offset:{(tt>>1)*BLK + (tt&1)*1024 + s*64}
            v_cvt_pk_bf16_f32 v{q_}, v{b+4}, v{b+5}
            v_cvt_pk_bf16_f32 v{q_+1}, v{b+6}, v{b+7}
            v_cvt_pk_bf16_f32 v{tp+8+2*s}, v{b+8}, v{b+9}
            v_cvt_pk_bf16_f32 v{tp+9+2*s}, v{b+10}, v{b+11}
            ds_write_b64 v{vQw}, {vr(q_,2)} offset:{tt*1024 + s*256}""".split("\n")
        b = ACC + 32 * tt
        r += f"""ds_write_b128 v{vVw}, {vr(tp+8,4)} offset:{4608 + (tt>>1)*BLK + (tt&1)*1216}
        v_mul_f32 v{b+12}, v{vMul}, v{b+12}
        v_mul_f32 v{b+13}, v{vMul}, v{b+13}
        v_mul_f32 v{b+14}, v{vMul}, v{b+14}
        v_mul_f32 v{b+15}, v{vMul}, v{b+15}
        v_cvt_pk_bf16_f32 v{tp+12}, v{b+12}, v{b+13}
        v_cvt_pk_bf16_f32 v{tp+13}, v{b+14}, v{b+15}
        ds_write_b16 v{MA(tt,0)}, v{tp+12}
        ds_write_b16_d16_hi v{MA(tt,1)}, v{tp+12}
        ds_write_b16 v{MA(tt,2)}, v{tp+13}
        ds_write_b16_d16_hi v{MA(tt,3)}, v{tp+13}""".split("\n")
        return r
    NM = 14
    def chunk(last):
        for tt in range(4):
            cur = XF[tt & 1]
            mf = []
            for k2 in range(2):
                for ct in range(4):
                    for s in range(2 if ct < 3 else 1):
                        d = ACC + 32 * tt + 16 * s + 4 * ct
                        w_, x_ = vr(WF + 16 * k2 + 4 * ct, 4), vr(cur + 8 * k2 + 4 * s, 4)
                        A_, B_ = (x_, w_) if ct == 2 else (w_, x_)
                        mf.append(f"v_mfma_f32_16x16x32_bf16 {vr(d,4)}, {A_}, {B_}, {vr(d,4)}")
            fill = {i: [] for i in range(-1, NM)}
            xr = xread((tt + 1) & 1)
            if tt == 0:
                fill[-1].append("s_waitcnt lgkmcnt(8)")
                for i in range(4): fill[i].append(xr[i])
                fill[6].append("s_waitcnt lgkmcnt(4)")
                for i in range(8): fill[(4, 5, 7, 8, 9, 10, 11, 12)[i]].append(xadv[i])
                if last:
                    for i in range(4): fill[i].append(f"v_mov_b32 v{92+i}, 0x3f803f80")
                    fill[13] += ["s_mov_b64 exec, 0xffff", f"ds_write_b128 v{vOnes}, v[92:95] offset:{4608+288}", "s_mov_b64 exec, -1"]
            elif last:
                if tt < 3:
                    for i in range(4): fill[i // 2].append(xr[i])
                    if tt == 1:
                        for i in range(8): fill[2 + i // 3].append(xadv[i])
                e = epi(tt - 1)
                st = (0, 5, 2, 1)[tt]
                per = -(-len(e) // (NM - st))
                for i, m in enumerate(e): fill[st + i // per].append(m)
            elif tt == 3:
                for i in range(4): fill[-1 + (i + 1) // 2].append(xr[i])
                w0, w1 = wfrag(0), wfrag(1)
                lastuse = (1, 3, 5, 6)
                for ct in range(4):
                    fill[lastuse[ct]] += [w0[2 * ct]]; fill[lastuse[ct] + 1] += [w0[2 * ct + 1]]
                    fill[7 + lastuse[ct]] += [w1[2 * ct]]; fill[min(NM - 1, 8 + lastuse[ct])] += [w1[2 * ct + 1]]
                for i in range(8): fill[(2, 3, 4, 5, 7, 8, 9, 10)[i]].append(xadv[i])
                fill[11].append(f"s_sub_u32 s{sIt}, s{sIt}, 1")
            else:
                for i in range(4): fill[i].append(xr[i])
                for i in range(8): fill[4 + i].append(xadv[i])
                if tt == 1:
                    for i in range(4): fill[10 + i].append(wadv[i])
                if tt == 2:
                    for i in range(4): fill[10 + i].append(wadv[4 + i])
            if tt % 2 == 0: a("s_barrier")
            for m in fill[-1]: a(m)
            for i in range(NM):
                if not OPT.get("nomf"): a(mf[i])
                for m in fill[i]: a(m)
            if last:
                if tt == 0: a("s_waitcnt lgkmcnt(1)")
                elif tt == 1: a("s_waitcnt lgkmcnt(9)")
                elif tt == 2: a("s_waitcnt lgkmcnt(0)\ns_barrier")
            elif tt == 3:
                a(f"""s_waitcnt lgkmcnt(15)
                s_cmp_eq_u32 s{sIt}, s{sCnt}
                s_cbranch_scc1 {K}_rst
                {K}_rst_ret:
                s_cmp_lg_u32 s{sIt}, 0""")
            else:
                a("s_waitcnt lgkmcnt(0)")
    a(f"""s_mov_b32 s{sIt}, 8
    s_waitcnt lgkmcnt(0)
    {K}_p1:""")
    chunk(False)
    a(f"s_cbranch_scc1 {K}_p1")
    a("s_waitcnt vmcnt(0)")
    chunk(True)
    stamp(a, 2, 30)
    a("s_nop 1")
    for m in epi(3): a(m)
    S = [128, 144, 160, 176]
    O = [192, 208, 224, 240]
    zo = [f"v_mov_b32 v{O[x]+i}, 0" for x in range(4) for i in range(11)]
    zq = [f"v_mov_b32 v{QT+4*j+i}, 0" for j in range(2) for i in (1, 2)]
    zs = [f"v_mov_b32 v{S[3]+8+i}, 0" for i in range(8)] + [f"v_mov_b32 v{V1[1]+i}, 0" for i in range(4)]
    for m in zo[:22]: a(m)
    a("s_waitcnt lgkmcnt(0)")
    for x in range(4): a(f"ds_read_b128 {vr(QM+4*x,4)}, v{vQr} offset:{1024*x}")
    a("s_barrier")
    stamp(a, 3, 30)
    NB = int(OPT["nb"])
    T2F = OPT.get("t2f", "0") == "1"
    def ldK(t, buf): return f"ds_read_b128 {vr(KF[buf],4)}, v{vKa} offset:{((t//4)%NB)*BLK + (t%4)*1024}"
    def ldV(t, half, buf): return f"ds_read_b128 {vr((V0,V1)[half][buf],4)}, v{vVa} offset:{((t//4)%NB)*BLK + 4608 + (t%4)*1216 + 608*half}"
    def ldT(b=0): return f"ds_read_b128 {vr(KT[b%2],4)}, v{vTa} offset:{(b%NB)*BLK + 4096}"
    def QKM(t, x, s, c="0"): return f"v_mfma_f32_32x32x16_bf16 {vr(s,16)}, {vr(KF[t%2],4)}, {vr(QM+4*x,4)}, {c}"
    def QKT(t, x, s): return f"v_mfma_f32_32x32x4_2b_bf16 {vr(s,32)}, {vr(KT[(t//4)%2]+(t&2),2)}, {vr(QT+2*x+2*(t&1),2)}, {vr(s,32) if not T2F else 0}"
    def PV(half, t, x, s): return f"v_smfmac_f32_32x32x32_bf16 {vr(O[x],16)}, {vr((V0,V1)[half][t%2],4)}, {vr(s+8*half,8)}, v{vIdx}"
    a(ldK(0, 0))
    a(f"ds_read2_b32 {vr(TP,2)}, v{vSqh} offset0:0 offset1:2")
    a(ldT()); a(ldV(0, 0, 0)); a(ldV(0, 1, 0))
    a(f"ds_read_b128 {vr(TP+4,4)}, v{vSq} offset:512")
    HOOKS = [1, 3, 7, 11, 13, 15]
    assert NB % 2 == 0
    for m in zq + zs: a(m)
    a(f"""s_mov_b32 s{sIt}, 0
    s_mov_b32 s{sWk}, {NB*BLK}
    s_mov_b32 s{sWcnt}, {(NB*BLK - RING) & 0xffffffff}
    s_waitcnt lgkmcnt(4)""")
    if not T2F:
        a(QKM(0, 0, S[0]))
        a(f"""v_mov_b32 v{QT}, v{TP}
    v_mov_b32 v{QT+3}, v{TP}
    v_mov_b32 v{QT+4}, v{TP+1}
    v_mov_b32 v{QT+7}, v{TP+1}""")
        a(QKM(0, 1, S[1]))
        for m in zo[22:27]: a(m)
        a(QKM(0, 2, S[2]))
        for m in zo[27:32]: a(m)
        a("s_waitcnt lgkmcnt(3)")
        a(QKT(0, 0, S[0]))
        for m in zo[32:]: a(m)
        a("s_nop 6")
        a("s_waitcnt lgkmcnt(0)")
    else:
        a(f"""v_mov_b32 v{QT}, v{TP}
        v_mov_b32 v{QT+3}, v{TP}
        v_mov_b32 v{QT+4}, v{TP+1}
        v_mov_b32 v{QT+7}, v{TP+1}
        s_waitcnt lgkmcnt(3)""")
        a(QKT(0, 0, S[0]))
        for m in zo[22:40]: a(m)
        a(QKM(0, 0, S[0], vr(S[0], 16)))
        for m in zo[40:]: a(m)
        a(QKM(0, 1, S[1], vr(S[1], 16)))
        a("s_nop 5")
        a("s_waitcnt lgkmcnt(0)")
    if OPT.get("cprio"): a(f"s_setprio {OPT['cprio']}")
    hookblks = []
    a(".p2align 6")
    a(f"{K}_att:")
    pos = tuple(int(z) for z in OPT.get("pos", "2.5.10.14.22.26.30" if not T2F else "2.5.13.18.21.26.30").split("."))
    NIT = 16 // NB
    SB = lambda u: S[u % 4]
    for u in range(0, 16 * NB, 2):
        t, x = divmod(u, 4)
        blk, ub = divmod(u, 16)
        ins = {i: [] for i in range(33)}
        ins[pos[0]].append(PV(1, *divmod(u - 1, 4), SB(u - 1)))
        if not T2F:
            ins[pos[1]].append(QKM(*divmod(u + 3, 4), SB(u + 3)))
            ins[pos[2]].append(PV(0, t, x, SB(u)))
            ins[pos[3]].append(QKT(*divmod(u + 2, 4), SB(u + 2)))
            ins[pos[4]].append(PV(1, t, x, SB(u)))
            ins[pos[5]].append(PV(0, t, x + 1, SB(u + 1)))
            ins[pos[6]].append(QKM(*divmod(u + 4, 4), SB(u + 4)))
        else:
            ins[pos[1]].append(QKT(*divmod(u + 2, 4), SB(u + 2)))
            ins[pos[2]].append(PV(0, t, x, SB(u)))
            ins[pos[3]].append(PV(1, t, x, SB(u)))
            ins[pos[4]].append(QKM(*divmod(u + 2, 4), SB(u + 2), vr(SB(u + 2), 16)))
            ins[pos[5]].append(PV(0, t, x + 1, SB(u + 1)))
            ins[pos[6]].append(QKM(*divmod(u + 3, 4), SB(u + 3), vr(SB(u + 3), 16)))
        if x == 0:
            ins[pos[0]].append(ldV(t + 1, 1, (t + 1) % 2))
            ins[pos[1]].append(ldK(t + 1, (t + 1) % 2))
            ins[pos[2]].append(ldV(t + 1, 0, (t + 1) % 2))
            if ub == 12: ins[pos[3]].append(ldT(blk + 1))
            ins[pos[5]].append("s_waitcnt lgkmcnt(0)")
        if ub == 10:
            if blk == NB - 1:
                ins[pos[0]].append(f"s_cmp_eq_u32 s{sIt}, {NIT//2 - 1}")
                ins[pos[1]].append(f"s_cselect_b32 s{sT0}, s{sWcnt}, s{sWk}")
                ins[pos[2]].append(f"v_add_u32 v{vKa}, s{sT0}, v{vKa}")
                ins[pos[3]].append(f"v_add_u32 v{vTa}, s{sT0}, v{vTa}")
                ins[pos[4]].append(f"v_add_u32 v{vVa}, s{sT0}, v{vVa}")
            its = [it for it in range(NIT) if it * NB + blk in HOOKS]
            if len(its) == NIT and (not OPT["stamp"] or OPT.get("light")):
                ins[pos[6]].append("s_barrier")
            elif its:
                ins[pos[6]] += [f"s_bitcmp1_b32 {sum(1 << i for i in its)}, s{sIt}", f"s_cbranch_scc1 {K}_hook{blk}", f"{K}_hook_ret{blk}:"]
                hookblks.append(blk)
        if u == 16 * NB - 2:
            ins[pos[5]].append(f"s_add_u32 s{sIt}, s{sIt}, 1")
            ins[pos[6]].append(f"s_cmp_lt_u32 s{sIt}, {NIT}")
        for i in range(32):
            for m in ins[i]: a(m)
            a(f"v_exp_f32 v{SB(u)+i}, v{SB(u)+i}")
    if OPT.get("light"):
        a(f"""s_memtime s[82:83]
        s_memrealtime s[80:81]
        s_add_u32 m0, s{sIt}, 15
        s_waitcnt lgkmcnt(0)
        v_writelane_b32 v30, s80, m0
        v_writelane_b32 v31, s82, m0
        s_cmp_lt_u32 s{sIt}, {NIT}""")
    a(f"s_cbranch_scc1 {K}_att")
    a("s_nop 1")
    a(PV(1, 3, 3, S[3]))
    stamp(a, 8, 30)
    CC = [5, 6, 7, 8]
    R8 = [64, 68, 72, 76, 104, 108, 112, 116, 120]
    RL = list(range(32, 64, 4)) + list(range(80, 104, 4)) + [124] + list(range(128, 176, 4))
    creg = lambda s, ct: R8[s] if ct == 8 else RL[3 * s + ct - 5]
    a('s_nop 8')
    l_ = [O[x] + 10 for x in range(4)]
    tq = [2, 3, 4, 5]
    a(f"""v_add_f32 v2, v{l_[0]}, v{l_[1]}
    v_min3_f32 v3, v{l_[0]}, v{l_[1]}, v{l_[2]}
    v_add_f32 v2, v2, v{l_[2]}
    s_waitcnt lgkmcnt(0)
    v_add_f32 v2, v2, v{l_[3]}
    v_min_f32 v3, v3, v{l_[3]}
    v_cmp_ge_f32 s[{sEx}:{sEx+1}], s64, v2
    v_cmp_le_f32 vcc, s61, v3
    s_nop 1
    s_and_b32 vcc_lo, vcc_lo, s{sEx}
    s_cmp_eq_u32 vcc_lo, -1
    s_cbranch_scc0 {K}_fbchk
    {K}_fbdone:""")
    cp = [f"ds_read_b128 {vr(creg(s_,ct),4)}, v{vCp} offset:{1024*(3*s_+i)}" for s_ in range(9) for i, ct in enumerate(CL)]
    for x in range(4): a(f"v_mov_b32 v{tq[x]}, v{O[x]+10}")
    a(cp.pop(0))
    for x in range(4): a(f"v_permlane32_swap_b32 v{O[x]+10}, v{tq[x]}")
    a(cp.pop(0))
    for x in range(4): a(f"v_mul_f32 v{tq[x]}, v{O[x]+10}, v{vGl+x}")
    for x in range(4): a(f"v_rcp_f32 v{tq[x]}, v{tq[x]}")
    a(cp.pop(0))
    for x in range(4):
        o = O[x]
        sel = "op_sel_hi:[1,0]" if x % 2 == 0 else "op_sel:[0,1]"
        for i in range(0, 10, 2): a(f"v_pk_mul_f32 {vr(o+i,2)}, {vr(o+i,2)}, {vr(tq[x & 2],2)} {sel}")
        for i in range(4): a(f"v_cvt_pk_bf16_f32 v{o+12+i}, v{o+2*i}, v{o+2*i+1}")
        a(f"""v_cvt_pk_bf16_f32 v{o+11}, v{o+8}, v{o+9}
        buffer_store_dwordx4 {vr(o+12,4)}, v{vSt}, s[{sWS}:{sWS+3}], s{56+x} offen sc1""")
        if x % 2 == 1:
            a(cp.pop(0))
            a(f"""v_permlane32_swap_b32 v{O[x-1]+11}, v{o+11}
            buffer_store_dword v{O[x-1]+11}, v{vStt}, s[{sWS}:{sWS+3}], s{4+(x>>1)} offen offset:1024 sc1""")
    for m in cp: a(m)
    stamp(a, 9, 30)
    a(f"""v_mov_b32 v6, {L_SYNC + 20}
    v_mov_b32 v7, 1
    s_setprio {OPT.get("p3prio", 2)}
    s_mov_b64 exec, 1
    s_waitcnt lgkmcnt(0)
    ds_add_u32 v6, v7
    s_mov_b64 exec, -1""")
    vOm, vOt, vRd = [2, 8], 3, 4
    p3_addr_o(a, vOm, vOt, vRd, [9, 10], 5, 11, 12, 13)
    for i in range(32): a(f"v_mov_b32 v{224+i}, 0")
    stamp(a, 10, 30)
    if OPT.get("drain"):
        a("s_waitcnt vmcnt(0)")
        stamp(a, 12, 30)
    p3_comp(a, CC, creg, 224, 176, vOm, vOt, vRd, 5, [9, 10])
    stamp(a, 11, 30)
    a(f"{K}_final:")
    final_reduce(a, K, 30)
    a(f"{K}_end:")
    a("s_endpgm")
    a(f"""{K}_rst:
    s_lshl_b32 s{sT0}, s{sPr}, 2
    v_mov_b32 v28, s{sT0}
    v_mov_b32 v29, 1
    s_mov_b64 exec, 1
    s_waitcnt vmcnt(0)
    buffer_atomic_add v29, v28, s[{sD}:{sD+3}], 0 offen
    s_mov_b64 exec, -1
    s_branch {K}_rst_ret""")
    for blk in hookblks:
        a(f"{K}_hook{blk}:")
        if 1 % NB == blk:
            a(f"""s_cmp_eq_u32 s{sIt}, {1 // NB}
            s_cbranch_scc0 {K}_hkg
            v_lshlrev_b32 v{vGl}, 16, v{TP+4}
            v_lshlrev_b32 v{vGl+1}, 16, v{TP+5}
            v_lshlrev_b32 v{vGl+2}, 16, v{TP+6}
            v_lshlrev_b32 v{vGl+3}, 16, v{TP+7}""")
            for x in range(4): a(f"v_mul_f32 v{vGl+x}, s60, v{vGl+x}")
            for x in range(4): a(f"v_exp_f32 v{vGl+x}, v{vGl+x}")
            a("s_nop 0")
            for x in range(4): a(f"v_add_f32 v{vGl+x}, 1.0, v{vGl+x}")
            for x in range(4):
                for i in range(11, 16): a(f"v_mov_b32 v{O[x]+i}, 0")
            a(f"{K}_hkg:")
        if OPT["stamp"]:
            for hb, i_ in ((1, 4), (3, 6)):
                if hb % NB == blk:
                    a(f"s_cmp_eq_u32 s{sIt}, {hb // NB}\ns_cbranch_scc0 {K}_hk{hb}")
                    stamp(a, i_, 30); a("s_barrier"); stamp(a, i_ + 1, 30); a(f"s_branch {K}_hook_ret{blk}")
                    a(f"{K}_hk{hb}:")
        if 13 % NB == blk:
            a(f"""s_cmp_eq_u32 s{sIt}, {13 // NB}
            s_cbranch_scc0 {K}_hkb{blk}""")
            if not OPT.get('x_no8'): p3_wo_loads(a, [8], creg, vWm3, vWt)
            a(f"{K}_hkb{blk}:")
        a(f"""s_barrier
        s_branch {K}_hook_ret{blk}""")
    FQ = S[3]
    a(f"{K}_fbchk:")
    for x in range(4):
        a(f"""v_cmp_le_f32 vcc, s61, v{O[x]+10}
        v_cmp_ge_f32 s[{sEx}:{sEx+1}], s64, v{O[x]+10}
        s_nop 1
        s_and_b32 vcc_lo, vcc_lo, s{sEx}
        s_cmp_eq_u32 vcc_lo, -1
        s_cbranch_scc0 {K}_fb{x}
        {K}_fbret{x}:""")
    a(f"s_branch {K}_fbdone")
    for x in range(4):
        a(f"{K}_fb{x}:")
        for i in range(4): a(f"v_mov_b32 v{FQ+i}, v{QM+4*x+i}")
        for i in range(4): a(f"v_mov_b32 v{FQ+4+i}, 0")
        a(f"""s_mov_b32 {'exec_hi' if x % 2 == 0 else 'exec_lo'}, 0
        v_mov_b32 v{FQ+4}, v{QT+4*(x>>1)}
        v_mov_b32 v{FQ+7}, v{QT+4*(x>>1)}
        s_mov_b64 exec, -1""")
        a(f"s_call_b64 s[{sRet}:{sRet+1}], {K}_slow")
        for i in range(16): a(f"v_mov_b32 v{O[x]+i}, v{S[2]+i}")
        a(f"s_branch {K}_fbret{x}")
    a(f"{K}_slow:")
    vb, vc, vm = 11, 12, 13
    sA, sB = sWsrc, sWm0
    t0 = 9
    a(f"""v_lshlrev_b32 v{t0}, 4, v0
    v_and_b32 v{vm}, 31, v0
    v_lshlrev_b32 v{vb}, 4, v{vm}
    v_lshrrev_b32 v{vc}, 5, v0
    v_mul_u32_u24 v{vc}, 304, v{vc}
    v_lshl_add_u32 v{vc}, v{vm}, 4, v{vc}
    v_cmp_lt_u32 vcc, 18, v{vm}
    v_mov_b32 v{vm}, 0x40000000
    s_nop 1
    v_cndmask_b32 v{vc}, v{vc}, v{vm}, vcc""")
    def slow_qk(t, c):
        a(f"""v_mfma_f32_32x32x16_bf16 {vr(S[0],16)}, {vr(KF[0],4)}, {vr(FQ,4)}, {c}
        v_mfma_f32_32x32x8_bf16 {vr(S[0],16)}, {vr(KT[0]+(t&2),2)}, {vr(FQ+4+2*(t&1),2)}, {vr(S[0],16)}
        s_nop 15""")
    def slow_next(lbl):
        a(f"""s_add_u32 s{sA}, s{sA}, {BLK}
        s_sub_u32 s{sIt}, s{sIt}, 1
        s_cmp_lg_u32 s{sIt}, 0
        s_cbranch_scc1 {lbl}""")
    a(f"""v_mov_b32 v{vm}, 0xff800000
    s_mov_b32 s{sA}, s{sKVg}
    s_mov_b32 s{sIt}, 16
    {K}_sl1:
    s_add_u32 s{sB}, s{sA}, 4096
    buffer_load_dwordx4 {vr(KT[0],4)}, v{vb}, s[{sWS}:{sWS+3}], s{sB} offen sc1""")
    for t in range(4):
        a(f"""buffer_load_dwordx4 {vr(KF[0],4)}, v{t0}, s[{sWS}:{sWS+3}], s{sA} offen offset:{1024*t} sc1
        s_waitcnt vmcnt(0)""")
        slow_qk(t, "0")
        for i in range(8): a(f"v_max3_f32 v{vm}, v{S[0]+2*i}, v{S[0]+2*i+1}, v{vm}")
    slow_next(f"{K}_sl1")
    a(f"""v_mov_b32 v{S[0]}, v{vm}
    s_nop 1
    v_permlane32_swap_b32 v{vm}, v{S[0]}
    s_nop 1
    v_max_f32 v{vm}, v{vm}, v{S[0]}""")
    for i in range(16):
        a(f"v_sub_f32 v{S[1]+i}, 0, v{vm}")
        a(f"v_mov_b32 v{S[2]+i}, 0")
    a(f"""s_mov_b32 s{sA}, s{sKVg}
    s_mov_b32 s{sIt}, 16
    {K}_sl2:
    s_add_u32 s{sB}, s{sA}, 4096
    buffer_load_dwordx4 {vr(KT[0],4)}, v{vb}, s[{sWS}:{sWS+3}], s{sB} offen sc1""")
    for t in range(4):
        a(f"""buffer_load_dwordx4 {vr(KF[0],4)}, v{t0}, s[{sWS}:{sWS+3}], s{sA} offen offset:{1024*t} sc1
        s_add_u32 s{sB}, s{sA}, {4608+1216*t}
        buffer_load_dwordx4 {vr(V0[0],4)}, v{vc}, s[{sWS}:{sWS+3}], s{sB} offen sc1
        buffer_load_dwordx4 {vr(V1[0],4)}, v{vc}, s[{sWS}:{sWS+3}], s{sB} offen offset:608 sc1
        s_waitcnt vmcnt(0)""")
        slow_qk(t, vr(S[1], 16))
        for i in range(16): a(f"v_exp_f32 v{S[0]+i}, v{S[0]+i}")
        a(f"""s_nop 3
        v_smfmac_f32_32x32x32_bf16 {vr(S[2],16)}, {vr(V0[0],4)}, {vr(S[0],8)}, v{vIdx}
        v_smfmac_f32_32x32x32_bf16 {vr(S[2],16)}, {vr(V1[0],4)}, {vr(S[0]+8,8)}, v{vIdx}
        s_nop 7""")
    slow_next(f"{K}_sl2")
    a(f"""s_nop 15
    s_setpc_b64 s[{sRet}:{sRet+1}]""")

def main(out):
    ka = f"{NAME}_kernel"
    a = Asm(); kernel(a)
    t = f"""; gated mix of two MHA blocks: one fused kernel (QKV projection, attention, output projection); generated by gen/gen27.py
; @launch grid=(256,1,1) block=(512,1,1) lds={LDS_BYTES}
.amdgcn_target "amdgcn-amd-amdhsa--gfx950"
.text
.globl {ka}
.p2align 8
.type {ka},@function
{ka}:
{a.text()}.section .rodata,"a"
.p2align 6
.amdhsa_kernel {ka}
  .amdhsa_next_free_vgpr 256
  .amdhsa_next_free_sgpr 102
  .amdhsa_accum_offset 256
  .amdhsa_group_segment_fixed_size 0
  .amdhsa_kernarg_size 80
  .amdhsa_user_sgpr_count 2
  .amdhsa_user_sgpr_kernarg_segment_ptr 1
  .amdhsa_system_sgpr_workgroup_id_x 1
.end_amdhsa_kernel
"""
    open(out, "w").write(t)

if __name__ == "__main__":
    for kv in sys.argv[2:]:
        k, v = kv.split("=")
        OPT[k] = {"True": True, "False": False}.get(v, v)
    main(sys.argv[1])
```

```python
import sys, struct

NAME = "gated_mix__mha_block__mha_block__prompt"
def f32(x): return "0x%08x" % struct.unpack("<I", struct.pack("<f", x))[0]
CSCALE = (18 ** -0.5) * 1.4426950408889634
LOG2E = 1.4426950408889634

BLK = 9472
KVH = 16 * BLK
RING = 8 * BLK
WS_O = 0x0A00000
WS_WOM = 0x0F00000
WS_WOT = 0x1080000
WS_F = 0x10C0000
WS_STAMP = 0x1100000
WS_SIZE = 0x1200000
SENT = 0xffffffff
L_WR = 0
WSL = 16384
RW = 3
L_XR = 98304
L_SCR = 49152
L_GT = 155648
L_SYNC = L_GT + 3 * 2048 + 1536
L_WO = 151552
LDS_BYTES = 163840
RS = 592
STRAD = sum(1 << p for p in range(32) if (72 * (p & 15)) % 128 > 56)
L_OA = 6 * BLK
L_OB = 94720
PLANE = 32 * RS

class Asm:
    def __init__(self): self.l = []
    def __call__(self, s):
        for x in s.strip("\n").split("\n"):
            x = x.strip()
            if not x: continue
            self.l.append(x if x.endswith(":") else "    " + x)
    def text(self): return "\n".join(self.l) + "\n"

def vr(a, n): return f"v[{a}:{a+n-1}]"
OPT = dict(force_fb=False, stamp=False, rx="6", txor="1", nb="4", cprio="3")

def srd(a, d, lo, hi, size):
    a(f"""s_mov_b32 s{d}, s{lo}
    s_and_b32 s{d+1}, s{hi}, 0xffff
    s_mov_b32 s{d+2}, {size}
    s_mov_b32 s{d+3}, 0x00020000""")

sX, sW, sWo, sG, sD, sWS, sOut = 8, 12, 16, 20, 24, 28, 84
sWv, sPr, sE, sHd, sRot = 32, 33, 34, 35, 36
sT0, sT1, sT2, sT3 = 37, 38, 39, 40
sRef, sCnt, sKo, sXb, sRing, sIt, sKVg, sSpin, sW8 = 41, 42, 43, 44, 45, 46, 47, 48, 49
sRet, sEx = 50, 52
sWsrc, sWm0, sWk, sWcnt, sXm0, sGk, sTt, sBH = 54, 55, 62, 63, 76, 77, 78, 79
sP3T, sP3C, sOb, sWmb, sWtb, sHH, sTH, sOtb = 88, 89, 90, 91, 92, 93, 94, 95
SV = 254
sLA, sLB = 74, 75
sGO = [66, 67, 68, 69]
sGW = [70, 71, 72, 73]

def stamp(a, idx, vreg):
    if not OPT["stamp"]: return
    a(f"""s_memrealtime s[80:81]
    s_memtime s[82:83]
    s_waitcnt lgkmcnt(0)
    v_writelane_b32 v{vreg}, s80, {idx}
    v_writelane_b32 v{vreg+1}, s82, {idx}""")
def sstamp(a, k):
    if not OPT["stamp"]: return
    a(f"""s_memrealtime s[80:81]
    s_waitcnt lgkmcnt(0)
    s_mov_b32 s{96+k}, s80""")
def stamp_out(a, vreg, vt=1, mask=None):
    if not OPT["stamp"]: return
    a(f"""s_lshl_b32 s80, s2, 3
    s_add_u32 s80, s80, s{sW8}
    s_lshl_b32 s80, s80, 8
    s_add_u32 s80, s80, {WS_STAMP}
    v_lshlrev_b32 v{vt}, 3, v0
    s_mov_b32 exec_hi, 0""")
    if mask is not None: a(f"s_mov_b32 exec_lo, {mask}")
    a(f"""buffer_store_dwordx2 v[{vreg}:{vreg+1}], v{vt}, s[{sWS}:{sWS+3}], s80 offen
    s_mov_b64 exec, -1""")

def p3_addr_w(a, vWm, vWt, t0, t1, t2):
    a(f"""v_and_b32 v{t0}, 15, v0
    v_lshrrev_b32 v{t1}, 5, v0
    v_bfe_u32 v{t2}, v0, 4, 1
    v_mul_u32_u24 v{vWm}, 4608, v{t1}
    v_lshl_add_u32 v{vWm}, v{t2}, 8, v{vWm}
    v_lshl_add_u32 v{vWm}, v{t0}, 4, v{vWm}
    v_lshrrev_b32 v{t1}, 4, v0
    v_add_u32 v{t2}, s{sP3C}, v{t1}
    v_and_b32 v{t2}, 3, v{t2}
    v_mul_u32_u24 v{vWt}, {4*2304}, v{t2}
    v_lshl_add_u32 v{vWt}, v{t0}, 4, v{vWt}""")
def p3_addr_o(a, vOm, vOt, vRd, vVa, vSy, t0, t1, t2):
    a(f"""v_and_b32 v{t0}, 15, v0
    v_lshrrev_b32 v{t1}, 5, v0
    v_bfe_u32 v{t2}, v0, 4, 1
    v_mul_u32_u24 v{vOm[0]}, 1152, v{t1}
    v_lshl_add_u32 v{vOm[0]}, v{t2}, 9, v{vOm[0]}
    v_lshl_add_u32 v{vOm[0]}, v{t0}, 4, v{vOm[0]}
    v_add_u32 v{vOm[1]}, s{sLB}, v{vOm[0]}
    v_add_u32 v{vOm[0]}, s{sLA}, v{vOm[0]}
    s_sub_u32 s{sT3}, s{sLB}, s{sLA}
    v_mul_lo_u32 v{vOt}, s{sT3}, v{t1}
    v_add_u32 v{vOt}, s{sLA}, v{vOt}
    v_mul_u32_u24 v{t2}, 4608, v{t2}
    v_add_u32 v{vOt}, v{vOt}, v{t2}
    v_lshl_add_u32 v{vOt}, v{t0}, 2, v{vOt}
    v_lshrrev_b32 v{t1}, 4, v0
    v_mul_u32_u24 v{vRd}, {RS}, v{t0}
    v_lshl_add_u32 v{vRd}, v{t1}, 4, v{vRd}
    s_cmp_eq_u32 s{sWv}, 3
    s_cselect_b32 s{sT3}, 4, s{sWv}
    s_mul_i32 s{sT3}, s{sT3}, {PLANE}
    v_add_u32 v{vRd}, s{sT3}, v{vRd}
    v_mul_u32_u24 v{vVa[0]}, 1152, v{t1}
    v_lshl_add_u32 v{vVa[0]}, v{t0}, 3, v{vVa[0]}
    v_add_u32 v{vVa[0]}, 1024, v{vVa[0]}
    v_add_u32 v{vVa[1]}, s{sLB}, v{vVa[0]}
    v_add_u32 v{vVa[0]}, s{sLA}, v{vVa[0]}
    s_lshl_b32 s{sT3}, s{sWv}, 2
    s_add_u32 s{sT3}, s{sT3}, {L_SYNC + 32}
    v_mov_b32 v{vSy}, s{sT3}""")
def p3_scal(a):
    a(f"""s_and_b32 s{sP3T}, s2, 7
    s_lshr_b32 s{sT0}, s2, 5
    s_lshl_b32 s{sT0}, s{sT0}, 3
    s_add_u32 s{sP3T}, s{sP3T}, s{sT0}
    s_lshr_b32 s{sP3C}, s2, 3
    s_and_b32 s{sP3C}, s{sP3C}, 3
    s_lshl_b32 s{sOb}, s{sP3T}, 6
    s_lshl_b32 s{sT3}, s{sWv}, 2
    s_add_u32 s{sOb}, s{sOb}, s{sT3}
    s_mul_i32 s{sOb}, s{sOb}, 1152
    s_add_u32 s{sOb}, s{sOb}, {WS_O}
    s_lshl_b32 s{sWmb}, s{sP3C}, 6
    s_add_u32 s{sWmb}, s{sWmb}, s{sT3}
    s_mul_i32 s{sWmb}, s{sWmb}, 4608
    s_add_u32 s{sWmb}, s{sWmb}, {WS_WOM}
    s_lshl_b32 s{sWtb}, s{sP3C}, 4
    s_add_u32 s{sWtb}, s{sWtb}, s{sWv}
    s_mul_i32 s{sWtb}, s{sWtb}, 2304
    s_add_u32 s{sWtb}, s{sWtb}, {WS_WOT}
    s_mul_i32 s{sLA}, s{sHH}, {RING}
    s_mul_i32 s{sT3}, s{sTH}, 9216
    s_add_u32 s{sLA}, s{sLA}, s{sT3}
    s_add_u32 s{sLA}, s{sLA}, {L_OA}
    s_mul_i32 s{sLB}, s{sWv}, 9216
    s_add_u32 s{sLB}, s{sLB}, {L_OB}""")
    for g in range(4):
        a(f"""s_add_u32 s{sT3}, s{sP3C}, {g}
        s_and_b32 s{sT3}, s{sT3}, 3
        s_mul_i32 s{sGO[g]}, s{sT3}, {16*1152}
        s_add_u32 s{sGO[g]}, s{sGO[g]}, s{sOb}
        s_mul_i32 s{sGW[g]}, s{sT3}, {16*4608}
        s_add_u32 s{sGW[g]}, s{sGW[g]}, s{sWmb}""")
def p3_wo_loads(a, cts, reg, vWm, vWt, steps=range(9)):
    for s in range(8):
        if s not in steps: continue
        a(f"s_add_u32 s{sT3}, s{sGW[s>>1]}, {2*(s&1)*4608 + 512*cts[0]}")
        for i, ct in enumerate(cts):
            a(f"buffer_load_dwordx4 {vr(reg(s,ct),4)}, v{vWm}, s[{sWS}:{sWS+3}], s{sT3} offen offset:{512*i} sc1")
    for ct in (cts if 8 in steps else []):
        a(f"buffer_load_dwordx4 {vr(reg(8,ct),4)}, v{vWt}, s[{sWS}:{sWS+3}], s{sWtb} offen offset:{256*ct} sc1")
def p3_oread(a, g, OF, vOm):
    for k in range(2):
        for th in range(2):
            a(f"ds_read_b128 {vr(OF+8*k+4*th,4)}, v{vOm[g>>1]} offset:{4608*(g&1) + 2304*k + 256*th}")
def p3_mf(a, cts, reg, AC, st, o):
    for i, ct in enumerate(cts):
        for th in range(2):
            d = AC + 8 * i + 4 * th
            a(f"v_mfma_f32_16x16x32_bf16 {vr(d,4)}, {vr(reg(st,ct),4)}, {vr(o+4*th,4)}, {vr(d,4)}")
def p3_tail(a, cts, reg, AC, OF, vOt, vRd):
    for th in range(2):
        for i in range(4):
            a(f"ds_read_b32 v{OF+4*th+i}, v{vOt} offset:{1152*i + 1024 + 64*th}")
    final_addr(a)
    a("s_waitcnt lgkmcnt(0)")
    p3_mf(a, cts, reg, AC, 8, OF)
    sstamp(a, 5)
    a("s_nop 7")
    for i, ct in enumerate(cts):
        for th in range(2):
            a(f"ds_write_b128 v{vRd}, {vr(AC+8*i+4*th,4)} offset:{16*th*RS + 64*ct}")
def p3_hint_addr(a, OF):
    vHa, vE4 = OF + 21, OF + 22
    a(f"""v_and_b32 v1, 3, v0
    v_mul_u32_u24 v{vHa}, 1152, v1
    v_bfe_u32 v1, v0, 2, 2
    v_add_u32 v1, s{sP3C}, v1
    v_and_b32 v1, 3, v1
    v_mul_u32_u24 v1, {16*1152}, v1
    v_add_u32 v{vHa}, v{vHa}, v1
    v_mov_b32 v{vE4}, {L_SYNC + 20}""")
def p3_helper(a, cts, reg, AC, OF, vOm, vOt, vRd, vL16, vVa, vSy, slp):
    L = "h3"
    sDone = sCnt
    def dma(g):
        lb = (sLA, sLB)[g >> 1]
        a(f"""s_add_u32 m0, s{lb}, {4608*(g&1)}
        s_add_u32 s{sT3}, s{sGO[g]}, 4096""")
        for i in range(4):
            a(f"buffer_load_dwordx4 v{vL16}, s[{sWS}:{sWS+3}], s{sGO[g]} offen offset:{1024*i} sc1 lds")
        a(f"""s_add_u32 m0, s{lb}, {4608*(g&1) + 4096}
        s_mov_b32 exec_hi, 0
        buffer_load_dwordx4 v{vL16}, s[{sWS}:{sWS+3}], s{sT3} offen sc1 lds
        s_mov_b64 exec, -1""")
    sFly, sLand, sTry, sBlk_ = sWk, sWcnt, sKo, sXb
    vH, vHa, vE4 = OF + 18, OF + 21, OF + 22
    a(f"""s_mov_b32 s{sSpin}, 60000
    s_mov_b32 s{sIt}, {SENT}
    s_mov_b32 s{sDone}, 0
    s_mov_b32 s{sFly}, 0
    s_mov_b32 s{sLand}, 0
    s_mov_b32 s{sBlk_}, 12
    {L}_round:
    s_mov_b64 exec, 0xffff
    buffer_load_dword v{vH}, v{vHa}, s[{sWS}:{sWS+3}], s{sOb} offen offset:1024 sc1
    s_mov_b64 exec, -1
    ds_read_b32 v1, v{vE4}
    s_cmp_eq_u32 s{sFly}, 0
    s_cbranch_scc1 {L}_nofly
    s_or_b32 s{sLand}, s{sLand}, s{sFly}
    s_waitcnt vmcnt(1)
    v_mov_b32 v{vH+1}, s{sLand}
    ds_write_b32 v{vSy}, v{vH+1}
    {L}_nofly:
    s_mov_b32 s{sTry}, s{sFly}
    s_waitcnt lgkmcnt(0)
    v_readfirstlane_b32 s{sT0}, v1
    s_cmp_ge_u32 s{sT0}, 4
    s_cselect_b32 s{sBlk_}, 0, s{sBlk_}
    s_or_b32 s{sT1}, s{sDone}, s{sTry}
    s_cmp_eq_u32 s{sT1}, 15
    s_mov_b32 s{sFly}, 0
    s_cbranch_scc1 {L}_work""")
    if int(OPT.get("spec", 0)):
        a(f"""s_bcnt1_i32_b32 s{sT0}, s{sT1}
        s_mov_b32 vcc_lo, -1
        s_cmp_ge_u32 s{sT0}, {4 - int(OPT["spec"])}
        s_cselect_b32 s{sT0}, s{sBlk_}, 1
        s_cmp_eq_u32 s{sT0}, 0
        s_cbranch_scc1 {L}_spec""")
    a(f"""s_or_b32 s{sT1}, s{sT1}, s{sBlk_}
    s_waitcnt vmcnt(0)
    v_cmp_ne_u32 vcc, s{sIt}, v{vH}
    {L}_spec:""")
    for g in range(4):
        a(f"""s_bitcmp1_b32 s{sT1}, {g}
        s_cbranch_scc1 {L}_l{g}
        s_bfe_u32 s{sT0}, vcc_lo, {(4 << 16) | (4 * g)}
        s_cmp_eq_u32 s{sT0}, 15
        s_cbranch_scc0 {L}_l{g}
        s_bitset1_b32 s{sFly}, {g}""")
        dma(g)
        a(f"{L}_l{g}:")
    a(f"{L}_work:")
    for g in range(4):
        a(f"""s_bitcmp1_b32 s{sTry}, {g}
        s_cbranch_scc0 {L}_n{g}""")
        p3_check(a, g, OF, vOm, vVa)
        a(f"""s_cbranch_vccnz {L}_n{g}
        s_bitset1_b32 s{sDone}, {g}""")
        stamp(a, 27 + g, SV)
        p3_mf(a, cts, reg, AC, 2 * g, OF)
        p3_mf(a, cts, reg, AC, 2 * g + 1, OF + 8)
        a(f"{L}_n{g}:")
    a(f"""s_cmp_eq_u32 s{sDone}, 15
    s_cbranch_scc1 {L}_done
    s_sub_u32 s{sSpin}, s{sSpin}, 1
    s_cmp_lt_i32 s{sSpin}, 0
    s_cbranch_scc1 {L}_done
    s_or_b32 s{sT0}, s{sFly}, s{sTry}
    s_cbranch_scc1 {L}_round
    s_sleep {slp}
    s_branch {L}_round
    {L}_done:
    s_waitcnt vmcnt(0)""")
    p3_tail(a, cts, reg, AC, OF, vOt, vRd)
def p3_check(a, g, OF, vOm, vVa):
    p3_oread(a, g, OF, vOm)
    a(f"""ds_read_b64 {vr(OF+16,2)}, v{vVa[g>>1]} offset:{4608*(g&1)}
    s_waitcnt lgkmcnt(3)
    v_max3_u32 v1, v{OF}, v{OF+1}, v{OF+2}
    v_max3_u32 v1, v{OF+3}, v{OF+4}, v1
    v_max3_u32 v1, v{OF+5}, v{OF+6}, v1
    s_waitcnt lgkmcnt(0)
    v_max3_u32 v1, v{OF+7}, v{OF+8}, v1
    v_max3_u32 v1, v{OF+9}, v{OF+10}, v1
    v_max3_u32 v1, v{OF+11}, v{OF+12}, v1
    v_max3_u32 v1, v{OF+13}, v{OF+14}, v1
    v_max3_u32 v1, v{OF+15}, v{OF+16}, v1
    v_max_u32 v1, v{OF+17}, v1
    v_cmp_eq_u32 vcc, s{sIt}, v1
    s_nop 1""")
def p3_comp(a, cts, reg, AC, OF, vOm, vOt, vRd, vSy, vVa):
    L = "c3"
    sDone = sCnt
    a(f"""s_mov_b32 s{sSpin}, 400000
    s_mov_b32 s{sIt}, {SENT}
    s_mov_b32 s{sDone}, 0
    s_waitcnt vmcnt(6)
    {L}_round:
    ds_read_b32 v1, v{vSy}
    s_waitcnt lgkmcnt(0)
    v_readfirstlane_b32 s{sT0}, v1
    s_andn2_b32 s{sT0}, s{sT0}, s{sDone}""")
    for g in range(4):
        a(f"""s_bitcmp1_b32 s{sT0}, {g}
        s_cbranch_scc0 {L}_n{g}""")
        p3_check(a, g, OF, vOm, vVa)
        a(f"""s_cbranch_vccnz {L}_n{g}
        s_bitset1_b32 s{sDone}, {g}""")
        p3_mf(a, cts, reg, AC, 2 * g, OF)
        p3_mf(a, cts, reg, AC, 2 * g + 1, OF + 8)
        a(f"{L}_n{g}:")
    a(f"""s_cmp_eq_u32 s{sDone}, 15
    s_cbranch_scc1 {L}_done
    s_sub_u32 s{sSpin}, s{sSpin}, 1
    s_cmp_lt_i32 s{sSpin}, 0
    s_cbranch_scc0 {L}_round
    {L}_done:""")
    p3_tail(a, cts, reg, AC, OF, vOt, vRd)

def kernel(a):
    K = "k"
    if OPT["stamp"]: a("s_memrealtime s[96:97]")
    a(f"""
    s_cmp_ge_u32 s2, 256
    s_cbranch_scc1 {K}_end
    s_load_dwordx4 s[56:59], s[0:1], 0
    s_load_dwordx2 s[60:61], s[0:1], 16
    s_load_dwordx4 s[64:67], s[0:1], 32
    s_load_dwordx4 s[68:71], s[0:1], 48
    s_load_dwordx4 s[72:75], s[0:1], 64
    v_lshrrev_b32 v1, 6, v0
    v_and_b32 v0, 63, v0
    s_lshr_b32 s{sT0}, s2, 3
    v_readfirstlane_b32 s{sW8}, v1
    s_and_b32 s{sT1}, s{sT0}, 3
    s_lshr_b32 s{sT2}, s{sT0}, 2
    s_and_b32 s{sE}, s2, 1
    s_lshl_b32 s{sE}, s{sE}, 2
    s_add_u32 s{sE}, s{sE}, s{sT1}
    s_and_b32 s{sPr}, s2, 6
    s_lshl_b32 s{sPr}, s{sPr}, 2
    s_add_u32 s{sPr}, s{sPr}, s{sT2}
    s_lshl_b32 s{sRot}, s{sT1}, 1
    s_add_u32 s{sRot}, s{sRot}, s{sT2}
    s_sub_u32 s{sT1}, s{sRot}, 9
    s_cmp_ge_u32 s{sRot}, 9
    s_cselect_b32 s{sRot}, s{sT1}, s{sRot}""")
    if OPT.get("rf"):
        ra, sa, rb, rx_, ry = [int(z) for z in OPT["rf"].split(".")]
        a(f"""s_lshr_b32 s{sRot}, s2, {5 + sa}
        s_mul_i32 s{sRot}, s{sRot}, {ra}
        s_bfe_u32 s{sT1}, s2, {(2 << 16) | 3}
        s_mul_i32 s{sT1}, s{sT1}, {rb}
        s_add_u32 s{sRot}, s{sRot}, s{sT1}
        s_bfe_u32 s{sT1}, s2, {(2 << 16) | 1}
        s_mul_i32 s{sT1}, s{sT1}, {rx_}
        s_add_u32 s{sRot}, s{sRot}, s{sT1}
        s_and_b32 s{sT1}, s2, 1
        s_mul_i32 s{sT1}, s{sT1}, {ry}
        s_add_u32 s{sRot}, s{sRot}, s{sT1}
        s_mul_i32 s{sT1}, s{sRot}, 7282
        s_lshr_b32 s{sT1}, s{sT1}, 16
        s_mul_i32 s{sT1}, s{sT1}, 9
        s_sub_u32 s{sRot}, s{sRot}, s{sT1}""")
    if OPT.get("rotmap"):
        tab = sum(int(ch) << (4 * i) for i, ch in enumerate(OPT["rotmap"]))
        a(f"""s_mov_b32 s52, {tab & 0xffffffff}
        s_mov_b32 s53, {tab >> 32}
        s_lshl_b32 s{sRot}, s{sRot}, 2
        s_lshr_b64 s[52:53], s[52:53], s{sRot}
        s_and_b32 s{sRot}, s52, 15""")
    a(f"""s_and_b32 s{sWv}, s{sW8}, 3
    s_lshr_b32 s{sHH}, s{sWv}, 1
    s_and_b32 s{sTH}, s{sWv}, 1
    s_lshl_b32 s{sBH}, s{sPr}, 1
    s_add_u32 s{sBH}, s{sBH}, s{sHH}
    s_mul_i32 s{sKVg}, s{sBH}, {KVH}
    s_waitcnt lgkmcnt(0)
    s_cmp_ge_u32 s{sPr}, 16
    s_cselect_b32 s58, s64, s58
    s_cselect_b32 s59, s65, s59
    s_cselect_b32 s60, s66, s60
    s_cselect_b32 s61, s67, s61""")
    srd(a, sW, 58, 59, 576 * 3456)
    srd(a, sX, 56, 57, 2048 * 1152)
    srd(a, sG, 68, 69, 1152)
    srd(a, sWS, 74, 75, WS_SIZE)
    srd(a, sOut, 70, 71, 2048 * 1152)
    srd(a, sD, 72, 73, 256)
    if OPT.get("tx4"):
        a(f"""s_bfe_u32 s{sTt}, s2, {(1 << 16) | int(OPT["tx4"])}
        s_lshl_b32 s{sTt}, s{sTt}, 1
        s_bfe_u32 s{sT1}, s2, {(1 << 16) | (int(OPT["tx4"]) + 1)}
        s_or_b32 s{sTt}, s{sTt}, s{sT1}""")
    elif OPT.get("txb"):
        a(f"""s_bfe_u32 s{sTt}, s2, {(1 << 16) | int(OPT["txb"])}
        s_lshl_b32 s{sTt}, s{sTt}, 1""")
    elif OPT["txor"] == "1":
        a(f"s_and_b32 s{sTt}, s2, 2")
    else:
        a(f"s_mov_b32 s{sTt}, 0")
    a(f"""s_cmp_ge_u32 s{sW8}, 4
    s_cbranch_scc0 {K}_compute""")
    helper(a, K)
    a(f"{K}_compute:")
    compute(a, K)

FA = 32
def final_addr(a):
    a(f"""s_lshl_b32 s{sT3}, s{sW8}, 6
    v_add_u32 v1, s{sT3}, v0
    s_mul_i32 s{sT0}, s{sP3T}, {32*1152}
    s_mul_i32 s{sT1}, s{sP3C}, 288
    s_add_u32 s{sT0}, s{sT0}, s{sT1}""")
    for r in range(2):
        if r: a("v_add_u32 v1, 512, v1")
        a(f"""v_mul_u32_u24 v{FA+6}, 3641, v1
        v_lshrrev_b32 v{FA+6}, 16, v{FA+6}
        v_mul_u32_u24 v{FA+7}, 18, v{FA+6}
        v_sub_u32 v{FA+7}, v1, v{FA+7}
        v_mul_u32_u24 v{FA+r}, {RS}, v{FA+6}
        v_lshl_add_u32 v{FA+r}, v{FA+7}, 5, v{FA+r}
        v_add_u32 v{FA+4+r}, {4*PLANE}, v{FA+r}
        v_mul_u32_u24 v{FA+2+r}, 1152, v{FA+6}
        v_lshl_add_u32 v{FA+2+r}, v{FA+7}, 4, v{FA+2+r}""")
def final_reduce(a, K, SVr):
    def reads(r):
        b = 48 + 32 * r
        for w in range(4):
            for hf in range(2):
                if w < 3: a(f"ds_read_b128 {vr(b+8*w+4*hf,4)}, v{FA+r} offset:{w*PLANE + 16*hf}")
                else: a(f"ds_read_b128 {vr(b+8*w+4*hf,4)}, v{FA+4+r} offset:{16*hf}")
    def finish(r, extra):
        b = 48 + 32 * r
        a(f"s_waitcnt lgkmcnt({4+extra})")
        for i in range(0, 8, 2): a(f"v_pk_add_f32 {vr(b+i,2)}, {vr(b+i,2)}, {vr(b+8+i,2)}")
        a(f"s_waitcnt lgkmcnt({extra})")
        for i in range(0, 8, 2): a(f"v_pk_add_f32 {vr(b+16+i,2)}, {vr(b+16+i,2)}, {vr(b+24+i,2)}")
        for i in range(0, 8, 2): a(f"v_pk_add_f32 {vr(b+i,2)}, {vr(b+i,2)}, {vr(b+16+i,2)}")
        for i in range(4): a(f"v_cvt_pk_bf16_f32 v{b+8+i}, v{b+2*i}, v{b+2*i+1}")
        a(f"buffer_store_dwordx4 {vr(b+8,4)}, v{FA+2+r}, s[{sOut}:{sOut+3}], s{sT0} offen")
    def fin():
        if OPT["stamp"]:
            a("s_waitcnt vmcnt(0)")
            stamp(a, 15, SVr)
            for k in range(6): a(f"v_writelane_b32 v{SVr}, s{96+k}, {20+k}")
            a(f"s_sub_u32 s80, 60000, s{sSpin}\nv_writelane_b32 v{SVr}, s80, 26")
            stamp_out(a, SVr)
            if OPT.get("amp"):
                i_, j_ = OPT["amp"].split(",")
                fin.n = getattr(fin, "n", 0) + 1
                a(f"""s_cmp_ge_u32 s{sW8}, 4
                s_cbranch_scc1 k_ampx{fin.n}
                v_readlane_b32 s82, v{SVr}, {i_}
                v_readlane_b32 s83, v{SVr}, {j_}
                s_memrealtime s[80:81]
                s_waitcnt lgkmcnt(0)
                s_sub_u32 s82, s83, s82
                s_lshl_b32 s82, s82, 2
                s_min_u32 s82, s82, 40000
                s_mov_b32 s83, s80
                k_amp{fin.n}:
                s_memrealtime s[80:81]
                s_waitcnt lgkmcnt(0)
                s_sub_u32 s80, s80, s83
                s_cmp_lt_u32 s80, s82
                s_cbranch_scc1 k_amp{fin.n}
                k_ampx{fin.n}:""")
    a(f"""s_cmp_eq_u32 s{sW8}, 0
    s_waitcnt lgkmcnt(0)
    s_barrier""")
    reads(0)
    a(f"s_cbranch_scc1 {K}_fin0")
    finish(0, 0)
    fin()
    a(f"""s_endpgm
    {K}_fin0:""")
    reads(1)
    finish(0, 8)
    finish(1, 0)
    fin()

def poll(a, lbl, ld, cond, slp):
    a(f"""s_mov_b32 s{sSpin}, 40000
    {lbl}:
    {ld}
    s_waitcnt vmcnt(0)""")
    cond()
    a(f"""s_cbranch_scc1 {lbl}_go
    s_sub_u32 s{sSpin}, s{sSpin}, 1
    s_cmp_eq_u32 s{sSpin}, 0
    s_cbranch_scc1 {lbl}_go
    s_sleep {slp}
    s_branch {lbl}
    {lbl}_go:""")

CL = [5, 6, 7]
def wo_lds_base(w): return (w >> 1) * RING + (w & 1) * 27648

def helper(a, K):
    RX = int(OPT["rx"])
    stamp(a, 0, SV)
    a(f"s_setprio {OPT.get('hprio', 2)}")
    vXs, vWs = [24, 25], [26, 27]
    vL16, vGr, vGw = 7, 8, 9
    t0, t1, t2, t3 = 10, 11, 12, 13
    vGv = 14
    WM = [sum(1 << L for L in range(64) if ((L & 15) ^ (((L >> 4) | (hi << 2)) << 1)) != 15) for hi in range(2)]
    sM0, sM1 = sEx, 64
    a(f"""v_lshrrev_b32 v{t0}, 4, v0
    v_lshlrev_b32 v{t1}, 1, v{t0}
    v_and_b32 v{t2}, 15, v0
    v_xor_b32 v{t1}, v{t1}, v{t2}
    s_mov_b32 s{sT0}, {((1<<4)|(1<<9)|(1<<14)) << 3}
    v_mul_u32_u24 v{t0}, 3456, v{t0}""")
    for hi in range(2):
        if hi: a(f"v_xor_b32 v{t1}, 8, v{t1}")
        a(f"""v_mul_u32_u24 v{t2}, 52, v{t1}
        v_lshrrev_b32 v{t2}, 8, v{t2}
        v_mul_u32_u24 v{t2}, {1152-80}, v{t2}
        v_lshl_add_u32 v{t2}, v{t1}, 4, v{t2}
        v_lshrrev_b32 v{t3}, v{t1}, s{sT0}
        v_and_b32 v{t3}, 8, v{t3}
        v_sub_u32 v{t2}, v{t2}, v{t3}
        v_add_u32 v{vWs[hi]}, v{t0}, v{t2}""")
    a(f"""v_lshlrev_b32 v{vL16}, 4, v0
    s_mul_i32 s{sT0}, s{sWv}, {16*3456}
    s_and_b32 s{sT1}, s{sPr}, 15
    s_mul_i32 s{sT1}, s{sT1}, 72
    s_add_u32 s{sWsrc}, s{sT0}, s{sT1}
    s_mul_i32 s{sWk}, s{sRot}, {64*3456}
    s_add_u32 s{sWcnt}, s{sWsrc}, s{sWk}
    s_lshl_b32 s{sWm0}, s{sWv}, 12
    s_lshl_b32 s{sT2}, s{sWv}, 11
    s_add_u32 s{sT2}, s{sT2}, {L_GT}
    s_mov_b32 s{sM0}, {WM[0] & 0xffffffff}
    s_mov_b32 s{sM0+1}, {WM[0] >> 32}
    s_mov_b32 s{sM1}, {WM[1] & 0xffffffff}
    s_mov_b32 s{sM1+1}, {WM[1] >> 32}""")
    def wdma2(hi):
        m = (sM0, sM1)[hi]
        a(f"""s_add_u32 m0, s{sWm0}, {L_WR + hi*2048}
        s_add_u32 s{sT0}, s{sWcnt}, {hi*8*3456}
        s_add_u32 s{sT1}, s{sWcnt}, {hi*8*3456 + 4*3456 - 1024}
        s_mov_b64 exec, s[{m}:{m+1}]
        buffer_load_dwordx4 v{vWs[hi]}, s[{sW}:{sW+3}], s{sT0} offen lds
        buffer_load_dwordx4 v{vWs[hi]}, s[{sW}:{sW+3}], s{sT1} offen offset:1024 lds
        s_mov_b64 exec, -1""")
    def wnext():
        a(f"""s_add_u32 s{sWk}, s{sWk}, {64*3456}
        s_cmp_ge_u32 s{sWk}, {576*3456}
        s_cselect_b32 s{sWk}, 0, s{sWk}
        s_add_u32 s{sWcnt}, s{sWsrc}, s{sWk}
        s_add_u32 s{sWm0}, s{sWm0}, {WSL}
        s_sub_u32 s{sT0}, s{sWm0}, {RW*WSL}
        s_cmp_ge_u32 s{sWm0}, {RW*WSL}
        s_cselect_b32 s{sWm0}, s{sT0}, s{sWm0}""")
    order = []
    a(f"""s_mov_b32 m0, s{sT2}
    s_nop 0
    buffer_load_dwordx4 v{vL16}, s[{sG}:{sG+3}], 0 offen lds
    s_mov_b64 exec, 0xff
    buffer_load_dwordx4 v{vL16}, s[{sG}:{sG+3}], 0 offen offset:1024 lds
    s_mov_b64 exec, -1""")
    order += ["G"] * 2
    wdma2(0); wdma2(1)
    order += ["W0"] * 4
    wnext()
    a(f"""v_lshrrev_b32 v{t0}, 3, v0
    v_mul_u32_u24 v{t0}, 1152, v{t0}
    v_and_b32 v{t1}, 7, v0
    v_lshrrev_b32 v{t2}, 4, v0
    v_xor_b32 v{t1}, v{t1}, v{t2}
    v_lshlrev_b32 v{t1}, 4, v{t1}
    v_xor_b32 v{t2}, 64, v{t1}
    v_add_u32 v{vXs[0]}, v{t0}, v{t1}
    v_add_u32 v{vXs[1]}, v{t0}, v{t2}
    v_add_u32 v{vXs[1]}, {8*1152-1024}, v{vXs[1]}
    s_lshl_b32 s{sXb}, s{sE}, 4
    s_lshl_b32 s{sT0}, s{sHH}, 3
    s_add_u32 s{sXb}, s{sXb}, s{sT0}
    s_add_u32 s{sXb}, s{sXb}, s{sTH}
    s_mul_i32 s{sXb}, s{sXb}, {16*1152}
    s_lshl_b32 s{sKo}, s{sRot}, 7
    s_lshl_b32 s{sRing}, s{sWv}, 11
    s_add_u32 s{sRing}, s{sRing}, {L_XR}
    s_add_u32 s{sRef}, s{sXb}, s{sKo}
    s_mov_b32 s{sXm0}, s{sRing}""")
    sTo = [56, 57, 58, 59]
    for tt in range(4):
        a(f"""s_xor_b32 s{sTo[tt]}, s{sTt}, {tt}
        s_mul_i32 s{sTo[tt]}, s{sTo[tt]}, {32*1152}""")
    xstate = [0]
    def xnext():
        a(f"""s_add_u32 s{sKo}, s{sKo}, 128
        s_cmp_ge_u32 s{sKo}, 1152
        s_cselect_b32 s{sKo}, 0, s{sKo}
        s_add_u32 s{sRef}, s{sXb}, s{sKo}""")
    def xdma(j):
        tt = j & 3
        if tt == 0 and j: xnext()
        a(f"""s_mov_b32 m0, s{sXm0}
        s_add_u32 s{sT0}, s{sRef}, s{sTo[tt]}
        buffer_load_dwordx4 v{vXs[0]}, s[{sX}:{sX+3}], s{sT0} offen lds
        buffer_load_dwordx4 v{vXs[1]}, s[{sX}:{sX+3}], s{sT0} offen offset:1024 lds
        s_add_u32 s{sXm0}, s{sXm0}, 8192
        s_cmp_ge_u32 s{sXm0}, {L_XR + RX*8192}
        s_cselect_b32 s{sXm0}, s{sRing}, s{sXm0}""")
    xdma(0); xdma(1)
    order += ["X0"] * 2 + ["X1"] * 2
    stamp(a, 16, SV)
    srd(a, sWo, 60, 61, 576 * 1152)
    a(f"""s_lshl_b32 s{sT0}, s{sWv}, 5
    s_add_u32 s{sT0}, s{sT0}, s{sT2}
    v_lshl_add_u32 v{vGr}, v0, 1, s{sT0}
    v_and_b32 v{t1}, 3, v0
    v_lshlrev_b32 v{t1}, 1, v{t1}
    v_and_b32 v{t2}, 8, v0
    v_or_b32 v{t1}, v{t1}, v{t2}
    v_xor_b32 v{t1}, 15, v{t1}
    v_lshlrev_b32 v{t1}, 4, v{t1}
    v_lshl_add_u32 v{t1}, v0, 8, v{t1}
    s_lshl_b32 s{sGk}, s{sRot}, 7
    v_mov_b32 v{t0}, {L_SYNC}
    v_mov_b32 v20, 0
    v_mov_b32 v21, 0
    v_mov_b32 v22, 0
    v_mov_b32 v23, 0
    ds_write_b128 v{t0}, v[20:23]
    ds_write_b128 v{t0}, v[20:23] offset:16
    ds_write_b128 v{t0}, v[20:23] offset:32""")
    def gate(slotreg):
        a(f"""v_add_u32 v{t0}, s{sGk}, v{vGr}
        s_mov_b64 exec, 0xffff
        ds_read_u16 v{vGv}, v{t0}
        v_add_u32 v{t0}, s{slotreg}, v{t1}
        s_add_u32 s{sGk}, s{sGk}, 128
        s_cmp_ge_u32 s{sGk}, 1152
        s_cselect_b32 s{sGk}, 0, s{sGk}
        s_waitcnt lgkmcnt(0)
        ds_write2_b32 v{t0}, v{vGv}, v{vGv} offset0:0 offset1:1
        s_mov_b64 exec, -1""")
    a(f"""s_sub_u32 s{sT3}, s{sWm0}, {WSL}
    s_waitcnt vmcnt(8)""")
    stamp(a, 17, SV)
    gate(sT3); gate(sWm0)
    vWos, vWos2, vPub, vC100, vPk, vA4, vSn = 28, 29, 30, 31, [76, 77, 78], 79, 80
    vP, vPa, vSy, vOne, vFa = 20, 17, 18, 19, 16
    vOm, vOt, vWm, vWt, vRd = [2, 252], 3, 4, 5, 6
    vVa3, vSy3 = [248, 253], 251
    HWB, HAC, HOF = 8, 188, 228
    u0, u1, u2, u3 = 84, 85, 86, 87
    a(f"""v_mul_u32_u24 v{u0}, 57, v0
    v_lshrrev_b32 v{u0}, 10, v{u0}
    v_mul_u32_u24 v{u1}, 18, v{u0}
    v_sub_u32 v{u1}, v0, v{u1}
    v_lshlrev_b32 v{u1}, 4, v{u1}
    s_and_b32 s{sT0}, s{sE}, 1
    s_lshl_b32 s{sT0}, s{sT0}, 1
    s_mul_i32 s{sT1}, s{sWv}, 3
    s_add_u32 s{sT0}, s{sT0}, s{sT1}
    v_add_u32 v{u0}, s{sT0}, v{u0}
    v_mul_u32_u24 v{vWos}, 1152, v{u0}
    v_add_u32 v{vWos}, v{vWos}, v{u1}
    v_cmp_le_u32 vcc, 6, v{u0}
    v_add_u32 v{u2}, {12*1152}, v{vWos}
    v_subrev_u32 v{u3}, {6*1152}, v{vWos}
    v_cndmask_b32 v{vWos2}, v{u2}, v{u3}, vcc
    s_mul_i32 s{sT0}, s{sHH}, {RING}
    s_mul_i32 s{sT1}, s{sTH}, 5120
    s_add_u32 s{sT0}, s{sT0}, s{sT1}
    v_add_u32 v{vPub}, s{sT0}, v{vL16}
    s_lshl_b32 s{sT0}, s{sPr}, 2
    v_mov_b32 v{vPa}, s{sT0}
    s_lshl_b32 s{sT0}, s{sPr}, 12
    s_lshl_b32 s{sT3}, s{sHH}, 7
    s_add_u32 s{sT0}, s{sT0}, s{sT3}
    s_add_u32 s{sT0}, s{sT0}, {WS_F}
    v_and_b32 v{vFa}, 1, v0
    v_lshl_add_u32 v{vFa}, v{vFa}, 2, s{sT0}
    v_lshrrev_b32 v{u0}, 1, v0
    v_lshl_add_u32 v{vFa}, v{u0}, 8, v{vFa}
    v_mov_b32 v{vSy}, {L_SYNC}
    v_mov_b32 v{vOne}, 1
    v_mov_b32 v{vC100}, 0x100
    v_lshlrev_b32 v{vA4}, 2, v0
    v_bfe_u32 v{u0}, v0, 2, 3
    v_mul_u32_u24 v{u0}, 288, v{u0}
    v_and_b32 v{u1}, 3, v0
    v_lshlrev_b32 v{u1}, 3, v{u1}
    v_add_u32 v{u1}, {L_WO}, v{u1}
    v_and_b32 v{u2}, 32, v0
    v_add3_u32 v{vPk[1]}, v{u0}, v{u1}, v{u2}
    s_lshl_b32 s{sT0}, s{sWv}, 6
    v_add_u32 v{vPk[0]}, s{sT0}, v{vPk[1]}
    v_bfe_u32 v{u0}, v0, 2, 2
    v_mul_u32_u24 v{u0}, 288, v{u0}
    v_lshrrev_b32 v{u2}, 4, v0
    v_lshlrev_b32 v{u2}, 5, v{u2}
    v_add3_u32 v{u0}, v{u0}, v{u1}, v{u2}
    s_lshl_b32 s{sT0}, s{sWv}, 7
    v_add_u32 v{vPk[2]}, s{sT0}, v{u0}""")
    for i in range(4): a(f"v_mov_b32 v{vSn+i}, {SENT}")
    p3_scal(a)
    p3_addr_w(a, vWm, vWt, u0, u1, u2)
    p3_addr_o(a, vOm, vOt, vRd, vVa3, vSy3, u0, u1, u2)
    p3_hint_addr(a, HOF)
    for i in range(40): a(f"v_mov_b32 v{HAC+i}, 0")
    a("""s_waitcnt vmcnt(2) lgkmcnt(0)
    s_barrier""")
    stamp(a, 1, SV)
    xdma(2)
    wdma2(0); wdma2(1)
    wnext()
    order += ["X2"] * 2 + ["W1"] * 4
    for j in range(3, RX - 1):
        xdma(j); order += [f"X{j}"] * 2
    stamp(a, 18, SV)
    a(f"""s_mov_b32 s{sIt}, 0
    v_add_u32 v{t0}, s{sGk}, v{vGr}
    {K}_hl:""")
    for tt in (0, 2):
        a(f"""s_waitcnt vmcnt(@W{tt}@) lgkmcnt(0)
        s_barrier""")
        if OPT.get("prof"):
            a(f"""s_memtime s[82:83]
            s_lshl_b32 m0, s{sIt}, 1
            s_add_u32 m0, m0, {2 + (tt >> 1)}
            s_waitcnt lgkmcnt(0)
            v_writelane_b32 v{SV-8}, s82, m0""")
        if not OPT.get("noh"):
            def thr(k):
                if OPT.get("thr"):
                    a(f"""s_bitcmp1_b32 {STRAD}, s{sPr}
                    s_cbranch_scc1 {K}_th{tt}{k}
                    s_waitcnt vmcnt({OPT["thr"]})
                    {K}_th{tt}{k}:""")
            if tt == 0:
                a(f"ds_read_u16 v{vGv}, v{t0}")
            else:
                a(f"""s_mov_b64 exec, 0xffff
                ds_write2_b32 v{t2}, v{vGv}, v{vGv} offset0:0 offset1:1""")
            wdma2(tt >> 1)
            thr(0)
            xdma(tt + RX - 1)
            thr(1)
            xdma(tt + RX)
            if tt == 0:
                a(f"""v_add_u32 v{t2}, s{sWm0}, v{t1}
                s_add_u32 s{sGk}, s{sGk}, 128
                s_cmp_ge_u32 s{sGk}, 1152
                s_cselect_b32 s{sGk}, 0, s{sGk}
                v_add_u32 v{t0}, s{sGk}, v{vGr}""")
    wnext()
    a(f"""s_add_u32 s{sIt}, s{sIt}, 1
    s_cmp_lt_u32 s{sIt}, 7
    s_cbranch_scc1 {K}_hl""")
    need = {0: 99, 2: 99}
    for j in range(0, 36, 2):
        req = [f"X{min(j+2,35)}"]
        if j % 4 == 2 and j // 4 + 1 <= 8: req.append(f"W{j//4+1}")
        last = max(i for i, o in enumerate(order) if o in req)
        n_ = len(order) - 1 - last
        if j < 28:
            need[j % 4] = min(need[j % 4], n_)
            order += [f"W{j//4+2}"] * 2 + [f"X{j+RX-1}"] * 2 + [f"X{j+RX}"] * 2
        else:
            a(f"""s_waitcnt vmcnt({n_}) lgkmcnt(0)
            s_barrier""")
            for jj in (j + RX - 1, j + RX):
                if jj <= 35:
                    xdma(jj); order += [f"X{jj}"] * 2
    for i in (0, 2): a.l = [x.replace(f"@W{i}@", str(need[i])) for x in a.l]
    stamp(a, 2, SV)
    if OPT.get("prof"):
        a(f"""v_readlane_b32 s80, v{SV+1}, 0
        v_readlane_b32 s81, v{SV+1}, 1
        v_readlane_b32 s82, v{SV+1}, 2
        s_nop 3
        v_writelane_b32 v{SV-8}, s80, 0
        v_writelane_b32 v{SV-8}, s81, 1
        v_writelane_b32 v{SV-8}, s82, 16
        s_lshl_b32 s80, s2, 3
        s_add_u32 s80, s80, s{sW8}
        s_lshl_b32 s80, s80, 8
        s_add_u32 s80, s80, {WS_STAMP + 0x80000}
        v_lshlrev_b32 v1, 2, v0
        buffer_store_dword v{SV-8}, v1, s[{sWS}:{sWS+3}], s80 offen""")
    sPH, sPC = sWsrc, sWm0
    sQ = sGk
    a(f"""s_lshl_b32 s{sPH}, s{sPr}, 1
    s_and_b32 s{sT0}, s{sE}, 1
    s_add_u32 s{sPH}, s{sPH}, s{sT0}
    s_lshr_b32 s{sPC}, s{sE}, 1
    s_and_b32 s{sT0}, s{sPH}, 31
    s_mul_i32 s{sT0}, s{sT0}, {18*1152}
    s_mul_i32 s{sT1}, s{sPC}, 288
    s_add_u32 s{sT0}, s{sT0}, s{sT1}
    s_mul_i32 s{sT1}, s{sWv}, 864
    s_add_u32 m0, s{sT1}, {L_WO}
    s_mov_b32 exec_hi, 0x003fffff
    buffer_load_dwordx4 v{vWos}, s[{sWo}:{sWo+3}], s{sT0} offen lds
    s_add_u32 m0, s{sT1}, {L_WO + 4*864}
    s_nop 0
    buffer_load_dwordx4 v{vWos2}, s[{sWo}:{sWo+3}], s{sT0} offen lds
    s_mov_b64 exec, 1
    buffer_load_dword v{vP+1}, v{vPa}, s[{sD}:{sD+3}], 0 offen sc1
    s_mov_b64 exec, -1
    s_mul_i32 s{sRing}, s{sHH}, {RING}
    s_mul_i32 s{sT2}, s{sTH}, 5120
    s_mul_i32 s{sT1}, s{sE}, {2*BLK}
    s_add_u32 s{sT1}, s{sT1}, s{sKVg}
    s_add_u32 s{sT1}, s{sT1}, s{sT2}
    s_mov_b32 s{sQ}, s{sTH}
    s_cmp_eq_u32 s{sTH}, 1
    s_cselect_b32 s{sM0}, 0xffff, -1
    s_cselect_b32 s{sM0+1}, 0, -1
    s_barrier""")
    t0 = vPub
    stamp(a, 3, SV)
    for i in range(5): a(f"ds_read_b128 {vr(32+4*i,4)}, v{t0} offset:{1024*i}")
    a(f"s_mov_b32 s{sXb}, s{sT1}")
    def publish(ph):
        for i in range(5 * ph, 5 * ph + 5):
            if i % 5 == 4: a(f"""s_add_u32 s{sXb}, s{sXb}, 4096
            s_mov_b64 exec, s[{sM0}:{sM0+1}]""")
            if ph == 0: a(f"s_waitcnt lgkmcnt({4-i})")
            a(f"buffer_store_dwordx4 {vr(32+4*i,4)}, v{vL16}, s[{sWS}:{sWS+3}], s{sXb} offen offset:{1024*((i%5)%4)} sc1")
            if i % 5 == 4: a(f"""s_mov_b64 exec, -1
            s_add_u32 s{sXb}, s{sXb}, {BLK-4096}""")
    publish(0)
    a("s_barrier")
    for i in range(5, 10): a(f"ds_read_b128 {vr(32+4*i,4)}, v{t0} offset:{BLK + 1024*(i-5)}")
    def arrive(word, vm=0):
        a(f"""s_mov_b64 exec, 1
        s_waitcnt vmcnt({vm})
        ds_add_rtn_u32 v{vP}, v{vSy}, v{vOne} offset:{4*word}
        s_waitcnt lgkmcnt(0)
        v_readfirstlane_b32 s{sT1}, v{vP}
        s_mov_b64 exec, -1
        s_cmp_eq_u32 s{sT1}, 3""")
    def lds_wait(lbl, word):
        a(f"""s_mov_b32 s{sSpin}, 400000
        {lbl}:
        ds_read_b32 v{vP}, v{vSy} offset:{4*word}
        s_waitcnt lgkmcnt(0)
        v_readfirstlane_b32 s{sT1}, v{vP}
        s_cmp_lg_u32 s{sT1}, 0
        s_cbranch_scc1 {lbl}_go
        s_sub_u32 s{sSpin}, s{sSpin}, 1
        s_cmp_eq_u32 s{sSpin}, 0
        s_cbranch_scc1 {lbl}_go
        s_sleep 6
        s_branch {lbl}
        {lbl}_go:""")
    def flag(off, vm):
        a(f"""s_lshl_b32 s{sT0}, s{sE}, 8
        s_lshl_b32 s{sT1}, s{sTH}, 2
        s_add_u32 s{sT0}, s{sT0}, s{sT1}
        s_mov_b64 exec, 1
        s_waitcnt vmcnt({vm})
        buffer_store_dword v{vOne}, v{vFa}, s[{sWS}:{sWS+3}], s{sT0} offen offset:{off} sc1
        s_mov_b64 exec, -1""")
    flag(0, 0)
    stamp(a, 4, SV)
    def rst_ok(r):
        a(f"""v_readfirstlane_b32 s{sT0}, v{r}
        s_and_b32 s{sT0}, s{sT0}, 0xff
        s_cmp_ge_u32 s{sT0}, 8""")
    def kv_ready():
        a(f"""v_cmp_eq_u32 vcc, 1, v{vP}
        s_nop 1
        s_cmp_eq_u32 vcc_lo, 0xffff""")
    a("s_mov_b64 exec, 1")
    rst_ok(vP + 1)
    a(f"s_cbranch_scc1 {K}_pl0_go")
    poll(a, f"{K}_pl0", f"buffer_load_dword v{vP}, v{vPa}, s[{sD}:{sD+3}], 0 offen sc1", lambda: rst_ok(vP), 8)
    a(f"""s_add_u32 s{sT2}, s{sTH}, 1
    s_xor_b32 s{sT2}, s{sT2}, s{sE}
    s_lshl_b32 s{sT2}, s{sT2}, 8
    s_mov_b64 exec, 3
    s_mov_b32 s{sSpin}, 40000
    buffer_load_dword v{vP}, v{vFa}, s[{sWS}:{sWS+3}], s{sT2} offen sc1
    s_sleep {OPT.get("fslp", 4)}
    buffer_load_dword v{vP+1}, v{vFa}, s[{sWS}:{sWS+3}], s{sT2} offen sc1
    s_sleep {OPT.get("fslp", 4)}
    {K}_pl1:""")
    for r_ in range(3):
        a(f"""buffer_load_dword v{vP+(r_+2)%3}, v{vFa}, s[{sWS}:{sWS+3}], s{sT2} offen sc1
        s_waitcnt vmcnt(2)
        v_cmp_eq_u32 vcc, 1, v{vP+r_}
        s_nop 1
        s_cmp_eq_u32 vcc_lo, 3
        s_cbranch_scc1 {K}_kgo""")
    a(f"""s_sub_u32 s{sSpin}, s{sSpin}, 1
    s_cmp_lg_u32 s{sSpin}, 0
    s_cbranch_scc1 {K}_pl1
    {K}_kgo:
    s_mov_b64 exec, -1""")
    stamp(a, 5, SV)
    def ldblock():
        a(f"s_call_b64 s[{sRet}:{sRet+1}], {K}_ldblk")
    ldblock()
    a("s_waitcnt lgkmcnt(0)")
    publish(1)
    a("s_waitcnt vmcnt(5)")
    stamp(a, 6, SV)
    a("s_barrier")
    flag(2048, 0)
    a("s_mov_b64 exec, 0xffff")
    poll(a, f"{K}_pl1a", f"buffer_load_dword v{vP}, v{vFa}, s[{sWS}:{sWS+3}], 0 offen sc1", kv_ready, 2)
    a("s_mov_b64 exec, -1")
    ldblock(); ldblock()
    a("s_waitcnt vmcnt(0)")
    stamp(a, 7, SV)
    a("s_barrier")
    a("s_mov_b64 exec, 0xffff")
    poll(a, f"{K}_pl1b", f"buffer_load_dword v{vP}, v{vFa}, s[{sWS}:{sWS+3}], 0 offen offset:2048 sc1", kv_ready, 2)
    a("s_mov_b64 exec, -1")
    ldblock(); ldblock()
    a(f"""ds_read_b64_tr_b16 {vr(64,2)}, v{vPk[0]}
    ds_read_b64_tr_b16 {vr(66,2)}, v{vPk[0]} offset:2304
    ds_read_b64_tr_b16 {vr(68,2)}, v{vPk[1]} offset:256
    ds_read_b64_tr_b16 {vr(70,2)}, v{vPk[1]} offset:{256+2304}
    ds_read_b64_tr_b16 {vr(72,2)}, v{vPk[2]} offset:{16*288-128}
    s_lshl_b32 s{sT0}, s{sPC}, 6
    s_add_u32 s{sT0}, s{sT0}, s{sPH}
    s_mul_i32 s{sT0}, s{sT0}, 4608
    s_add_u32 s{sT0}, s{sT0}, {WS_WOM}
    s_lshl_b32 s{sT1}, s{sWv}, 10
    s_add_u32 s{sT1}, s{sT1}, s{sT0}
    s_lshl_b32 s{sT2}, s{sPC}, 4
    s_lshr_b32 s{sT3}, s{sPH}, 2
    s_add_u32 s{sT2}, s{sT2}, s{sT3}
    s_mul_i32 s{sT2}, s{sT2}, 2304
    s_and_b32 s{sT3}, s{sPH}, 3
    s_lshl_b32 s{sT3}, s{sT3}, 2
    s_add_u32 s{sT2}, s{sT2}, s{sT3}
    s_lshl_b32 s{sT3}, s{sWv}, 10
    s_add_u32 s{sT2}, s{sT2}, s{sT3}
    s_add_u32 s{sT2}, s{sT2}, {WS_WOT - 1024}
    s_waitcnt lgkmcnt(0)
    buffer_store_dwordx4 {vr(64,4)}, v{vL16}, s[{sWS}:{sWS+3}], s{sT1} offen sc1
    s_cmp_eq_u32 s{sWv}, 0
    s_cbranch_scc0 {K}_wo_tail
    s_mov_b32 exec_hi, 0
    s_add_u32 s{sT3}, s{sT0}, 4096
    buffer_store_dwordx4 {vr(68,4)}, v{vL16}, s[{sWS}:{sWS+3}], s{sT3} offen sc1
    s_branch {K}_wo_done
    {K}_wo_tail:
    s_cmp_eq_u32 s{sWv}, 3
    s_cselect_b32 exec_lo, 0xffff, -1
    s_cselect_b32 exec_hi, 0, -1
    buffer_store_dword v72, v{vL16}, s[{sWS}:{sWS+3}], s{sT2} offen sc1
    {K}_wo_done:
    s_mov_b64 exec, -1""")
    a(f"""s_lshl_b32 s{sT1}, s{sE}, 1
    s_add_u32 s{sT1}, s{sT1}, s{sTH}
    s_lshl_b32 s{sT1}, s{sT1}, 8
    s_add_u32 s{sT1}, s{sT1}, s{sBH}
    s_mul_i32 s{sT1}, s{sT1}, 1152
    s_add_u32 s{sT1}, s{sT1}, {WS_O}""")
    for x in range(4):
        a(f"""buffer_store_dwordx4 {vr(vSn,4)}, v{vL16}, s[{sWS}:{sWS+3}], s{sT1} offen sc1
        s_mov_b64 exec, 0xff
        buffer_store_dwordx4 {vr(vSn,4)}, v{vL16}, s[{sWS}:{sWS+3}], s{sT1} offen offset:1024 sc1
        s_mov_b64 exec, -1
        s_add_u32 s{sT1}, s{sT1}, {64*1152}""")
    arrive(1)
    a(f"""s_cbranch_scc0 {K}_sg2
    s_mov_b64 exec, 1
    buffer_atomic_add v{vC100}, v{vPa}, s[{sD}:{sD+3}], 0 offen
    s_mov_b64 exec, -1
    {K}_sg2:""")
    a("s_barrier")
    ldblock(); ldblock()
    stamp(a, 12, SV)
    a(f"""s_cmp_eq_u32 s{sWv}, 0
    s_cbranch_scc0 {K}_gw
    s_mov_b32 exec_hi, 0""")
    def all_init():
        a(f"""v_bfe_u32 v{vP}, v{vP}, 8, 8
        v_cmp_le_u32 vcc, 8, v{vP}
        s_nop 1
        s_cmp_eq_u32 vcc_lo, -1""")
    poll(a, f"{K}_pl2", f"buffer_load_dword v{vP}, v{vA4}, s[{sD}:{sD+3}], 0 offen sc1", all_init, 32)
    a(f"""ds_write_b32 v{vSy}, v{vOne} offset:12
    s_mov_b64 exec, -1
    s_branch {K}_ggo
    {K}_gw:""")
    lds_wait(f"{K}_lw2", 3)
    a(f"{K}_ggo:")
    HC = [0, 1, 2, 3, 4]
    hreg = lambda s, ct: HWB + 4 * (5 * s + ct)
    p3_wo_loads(a, HC, hreg, vWm, vWt)
    a("s_waitcnt vmcnt(45)")
    stamp(a, 8, SV)
    a("s_barrier")
    if not OPT.get('x_nowarm'): p3_wo_loads(a, [8], lambda s, ct: HOF + 4 * (s % 4), vWm, vWt)
    a(f"""s_mul_i32 s{sT0}, s{sTH}, 27648
    s_add_u32 s{sT0}, s{sT0}, s{sRing}
    s_barrier""")
    for s in range(9 if not OPT.get('x_nostage') else 0):
        for i, ct in enumerate(CL):
            n = 3 * s + i
            if s < 8:
                a(f"""s_add_u32 m0, s{sT0}, {1024*n}
                s_add_u32 s{sT3}, s{sGW[s>>1]}, {2*(s&1)*4608 + 512*ct}
                buffer_load_dwordx4 v{vWm}, s[{sWS}:{sWS+3}], s{sT3} offen sc1 lds""")
            else:
                a(f"""s_add_u32 m0, s{sT0}, {1024*n}
                s_add_u32 s{sT3}, s{sWtb}, {256*ct}
                buffer_load_dwordx4 v{vWt}, s[{sWS}:{sWS+3}], s{sT3} offen sc1 lds""")
    a(f"""s_mul_i32 s{sT0}, s{sP3T}, {32*1152}
    buffer_load_dword v1, v{vL16}, s[{sOut}:{sOut+3}], s{sT0} offen
    s_waitcnt vmcnt(0)""")
    stamp(a, 9, SV)
    a("s_barrier")
    stamp(a, 10, SV)
    p3_helper(a, HC, hreg, HAC, HOF, vOm, vOt, vRd, vL16, vVa3, vSy3, int(OPT.get("hslp", 1)))
    stamp(a, 11, SV)
    if OPT["stamp"]: a(f"v_mov_b32 v30, v{SV}\nv_mov_b32 v31, v{SV+1}")
    a(f"s_branch {K}_final")
    a(f"""{K}_ldblk:
    s_add_u32 s{sQ}, s{sQ}, 2
    s_cmp_ge_u32 s{sQ}, 9
    s_cselect_b32 s{sT0}, 0, 7
    s_cselect_b32 s{sT2}, 1, 0
    s_add_u32 s{sT0}, s{sT0}, s{sQ}
    s_and_b32 s{sT0}, s{sT0}, 7
    s_xor_b32 s{sT0}, s{sT0}, s{sE}
    s_lshl_b32 s{sT0}, s{sT0}, 1
    s_add_u32 s{sT0}, s{sT0}, s{sT2}
    s_mul_i32 s{sT1}, s{sT0}, {BLK}
    s_add_u32 s{sT1}, s{sT1}, s{sKVg}
    s_and_b32 s{sT0}, s{sQ}, 7
    s_mul_i32 s{sT0}, s{sT0}, {BLK}
    s_add_u32 s{sT0}, s{sT0}, s{sRing}""")
    for i in range(10):
        if i % 4 == 0:
            a(f"""s_add_u32 m0, s{sT0}, {1024*i}
            s_add_u32 s{sT2}, s{sT1}, {1024*i}""")
        if i == 9: a("s_mov_b64 exec, 0xffff")
        a(f"buffer_load_dwordx4 v{vL16}, s[{sWS}:{sWS+3}], s{sT2} offen offset:{1024*(i%4)} sc1 lds")
    a(f"""s_mov_b64 exec, -1
    s_setpc_b64 s[{sRet}:{sRet+1}]""")

def compute(a, K):
    RX = int(OPT["rx"])
    stamp(a, 0, 30)
    vXr = [2, 3, 20, 21]
    vWc = [4, 5, 9, 1]
    t0, t1, t2, t3, t4, t5 = 64, 65, 66, 67, 68, 69
    WF = 32
    XF = [96, 112]
    ACC = 128
    def reset_flags():
        a(f"""s_cmp_eq_u32 s{sWv}, 0
        s_cselect_b32 s{sCnt}, {OPT.get("rstit", 4)}, 100
        s_cbranch_scc0 {K}_norst
        s_lshl_b32 s{sT0}, s{sPr}, 12
        s_lshl_b32 s{sT1}, s{sE}, 8
        s_add_u32 s{sT0}, s{sT0}, s{sT1}
        s_add_u32 s{sT0}, s{sT0}, {WS_F}
        v_lshlrev_b32 v75, 7, v0
        v_mov_b32 v76, 0
        v_mov_b32 v77, 0
        s_mov_b64 exec, 3
        buffer_store_dwordx2 v[76:77], v75, s[{sWS}:{sWS+3}], s{sT0} offen sc1
        buffer_store_dwordx2 v[76:77], v75, s[{sWS}:{sWS+3}], s{sT0} offen offset:2048 sc1""")
        if OPT.get("touch", "1") == "1":
            a(f"""s_mov_b64 exec, 1
            buffer_load_dword v78, v75, s[{sWS}:{sWS+3}], s{sKVg} offen
            s_add_u32 s{sT0}, s{sKVg}, {2*KVH-128}
            buffer_load_dword v79, v75, s[{sWS}:{sWS+3}], s{sT0} offen""")
        a(f"""s_mov_b64 exec, -1
        {K}_norst:""")
    a(f"v_mov_b32 v{ACC}, 0")
    if OPT.get("rstpos", "late") == "start": reset_flags()
    a(f"""v_and_b32 v{t0}, 15, v0
    v_lshrrev_b32 v{t1}, 4, v0
    v_bfe_u32 v{t2}, v0, 1, 3
    v_xor_b32 v{t2}, v{t2}, v{t1}
    v_lshlrev_b32 v{t2}, 4, v{t2}
    v_lshlrev_b32 v{t3}, 7, v{t0}
    s_lshl_b32 s{sT0}, s{sTH}, 12
    s_lshl_b32 s{sT1}, s{sHH}, 11
    s_add_u32 s{sT0}, s{sT0}, s{sT1}
    s_add_u32 s{sT0}, s{sT0}, {L_XR}
    v_add_u32 v{t3}, s{sT0}, v{t3}
    v_add_u32 v{vXr[0]}, v{t3}, v{t2}
    v_xor_b32 v{t2}, 64, v{t2}
    v_add_u32 v{vXr[1]}, v{t3}, v{t2}
    v_xor_b32 v{vXr[2]}, 2048, v{vXr[0]}
    v_xor_b32 v{vXr[3]}, 2048, v{vXr[1]}
    v_bfe_u32 v{t2}, v0, 2, 2
    v_lshl_add_u32 v{t2}, v{t1}, 3, v{t2}
    v_lshlrev_b32 v{t2}, 8, v{t2}
    v_bfe_u32 v{t4}, v0, 2, 3
    v_lshlrev_b32 v{t4}, 5, v{t4}
    v_and_b32 v{t3}, 3, v0
    v_lshlrev_b32 v{t3}, 3, v{t3}
    s_mul_i32 s{sT1}, s{sHH}, 40
    s_mov_b32 s{sT0}, {192 | (112 << 8) | (32 << 16) | (240 << 24)}
    v_lshrrev_b32 v{t5}, v{t3}, s{sT0}
    v_and_b32 v{t5}, 0xff, v{t5}
    v_xor_b32 v{t5}, v{t5}, v{t4}
    v_add_u32 v{vWc[3]}, v{t2}, v{t5}
    v_add_u32 v{t3}, s{sT1}, v{t3}
    v_lshrrev_b32 v{t5}, 3, v{t3}
    v_and_b32 v{t5}, 8, v{t5}
    v_add_u32 v{t3}, v{t3}, v{t5}""")
    for ct, off in enumerate((80, 0, 160)):
        a(f"""v_add_u32 v{t5}, {off}, v{t3}
        v_xor_b32 v{t5}, v{t5}, v{t4}
        v_add_u32 v{vWc[ct]}, v{t2}, v{t5}""")
    for i in range(1, 128):
        if i % 32 < 28: a(f"v_mov_b32 v{ACC+i}, 0")
    vKa, vTa, vVa, vIdx = 6, 7, 8, 10
    vKw, vQw, vVw, vMul, vSq, vSqh = 11, 12, 13, 24, 25, 19
    vSt, vStt, vWm3, vWt, vCp, vOnes, vQr = 14, 15, 16, 17, 18, 22, 23
    vM0, vDs, vDt, vDe, vDh = 70, 71, 72, 73, 74
    MA = lambda tt, i: ACC + 32 * tt + 28 + i
    sBlk, sScr = sXb, sKo
    a(f"""s_mul_i32 s{sRing}, s{sHH}, {RING}
    s_mul_i32 s{sBlk}, s{sTH}, {BLK}
    s_add_u32 s{sBlk}, s{sBlk}, s{sRing}
    s_mul_i32 s{sScr}, s{sWv}, 5120
    s_add_u32 s{sScr}, s{sScr}, {L_SCR}
    v_lshrrev_b32 v{t2}, 2, v{t0}
    v_and_b32 v{t3}, 3, v0
    v_lshl_add_u32 v{t4}, v{t2}, 3, v{t3}
    v_lshrrev_b32 v{t5}, 5, v0
    v_lshlrev_b32 v{t5}, 9, v{t5}
    v_and_b32 v{vQw}, 16, v0
    v_lshrrev_b32 v{vQw}, 1, v{vQw}
    v_add_u32 v{t5}, v{t5}, v{vQw}
    v_lshl_add_u32 v{vKw}, v{t4}, 4, v{t5}
    s_lshl_b32 s{sT0}, s{sTH}, 11
    s_add_u32 s{sT0}, s{sT0}, s{sRing}
    v_add_u32 v{vKw}, s{sT0}, v{vKw}
    v_lshl_add_u32 v{vQw}, v{t0}, 4, v{t5}
    v_add_u32 v{vQw}, s{sScr}, v{vQw}
    v_mul_u32_u24 v{vVw}, 304, v{t1}
    v_lshl_add_u32 v{vVw}, v{t0}, 4, v{vVw}
    s_mul_i32 s{sT0}, s{sTH}, 2432
    s_add_u32 s{sT0}, s{sT0}, s{sRing}
    v_add_u32 v{vVw}, s{sT0}, v{vVw}""")
    a(f"""s_mul_i32 s{sT2}, s{sTH}, 2432
    s_mul_i32 s{sT3}, s{sTH}, 5120
    v_mul_u32_u24 v{vM0}, 304, v{t2}
    v_lshl_add_u32 v{vM0}, v{t3}, 1, v{vM0}
    s_add_u32 s{sT0}, s{sT2}, {4608+256}
    v_add_u32 v{vM0}, s{sT0}, v{vM0}
    s_lshl_b32 s{sT0}, s{sTH}, 3
    s_add_u32 s{sT0}, s{sT0}, 4096
    s_add_u32 s{sT1}, s{sT3}, {L_SCR+4096-1024}
    v_lshlrev_b32 v{t5}, 9, v{t1}
    v_add_u32 v{t5}, s{sT1}, v{t5}
    v_mov_b32 v{vDh}, s{sT0}
    v_cmp_eq_u32 vcc, 1, v{t1}
    v_mov_b32 v{vDs}, 64
    v_mov_b32 v{vDt}, 4
    v_cndmask_b32 v{t5}, v{t5}, v{vDh}, vcc
    v_lshl_add_u32 v{t5}, v{t4}, 4, v{t5}
    v_cmp_eq_u32 vcc, 0, v{t1}
    v_mov_b32 v{vDe}, 2
    v_mov_b32 v{t3}, 1216
    v_cndmask_b32 v{vM0}, v{t5}, v{vM0}, vcc
    v_cndmask_b32 v{vDs}, v{vDs}, 8, vcc
    v_cndmask_b32 v{vDt}, v{vDt}, v{t3}, vcc
    v_cndmask_b32 v{vDe}, v{vDe}, 16, vcc
    v_cmp_gt_u32 vcc, 2, v{t1}
    v_mov_b32 v{vDh}, {2*5120}
    v_mov_b32 v{t3}, {RING}
    v_cndmask_b32 v{vDh}, v{vDh}, v{t3}, vcc
    v_mov_b32 v{t5}, 8
    v_mov_b32 v{t3}, {BLK}
    v_cndmask_b32 v{t5}, v{t5}, v{t3}, vcc
    v_mul_u32_u24 v{t3}, s{sHH}, v{vDs}
    v_add_u32 v{MA(0,0)}, v{vM0}, v{t3}
    v_sub_u32 v{t3}, v{vDs}, v{t3}
    v_add3_u32 v{MA(0,2)}, v{vM0}, v{t3}, v{vDh}
    v_add_u32 v{MA(0,1)}, v{MA(0,0)}, v{vDe}
    v_add_u32 v{MA(0,3)}, v{MA(0,2)}, v{vDe}""")
    for i in range(4):
        a(f"""v_add_u32 v{MA(1,i)}, v{MA(0,i)}, v{vDt}
        v_add_u32 v{MA(2,i)}, v{MA(0,i)}, v{t5}
        v_add_u32 v{MA(3,i)}, v{MA(1,i)}, v{t5}""")
    a(f"""v_cmp_eq_u32 vcc, 2, v{t1}
    v_mov_b32 v{vMul}, 1.0
    v_mov_b32 v{t2}, {f32(CSCALE)}
    v_cndmask_b32 v{vMul}, v{vMul}, v{t2}, vcc""")
    a(f"""v_and_b32 v{t2}, 16, v0
    v_lshrrev_b32 v{t2}, 2, v{t2}
    v_add_u32 v{t2}, v{t2}, v{t4}
    v_lshlrev_b32 v{vSq}, 4, v{t2}
    s_add_u32 s{sT1}, s{sScr}, 4096
    v_add_u32 v{vSq}, s{sT1}, v{vSq}
    v_and_b32 v{t0}, 31, v0
    v_lshrrev_b32 v{t1}, 5, v0
    v_mul_u32_u24 v{t3}, 304, v{t1}
    v_lshl_add_u32 v{t3}, v{t0}, 4, v{t3}
    v_add_u32 v{t3}, s{sRing}, v{t3}
    v_cmp_gt_u32 vcc, 19, v{t0}
    v_mov_b32 v{vVa}, {LDS_BYTES}
    v_lshl_add_u32 v{vKa}, v0, 4, s{sRing}
    v_cndmask_b32 v{vVa}, v{vVa}, v{t3}, vcc
    v_lshl_add_u32 v{vTa}, v{t0}, 4, s{sRing}
    v_mov_b32 v{vIdx}, 0xdddddddd
    v_lshl_add_u32 v{vSqh}, v{t1}, 2, v{vSq}
    s_mov_b32 s{sWsrc}, 0
    s_mov_b32 s{sXm0}, 0
    v_mul_u32_u24 v{vOnes}, 304, v0
    v_add_u32 v{vOnes}, s{sBlk}, v{vOnes}
    v_lshl_add_u32 v{vQr}, v0, 4, s{sScr}
    s_mul_i32 s{sT0}, s{sTH}, 27648
    s_add_u32 s{sT0}, s{sT0}, s{sRing}
    v_lshl_add_u32 v{vCp}, v0, 4, s{sT0}
    s_lshl_b32 s{sT0}, s{sHH}, 4
    v_xor_b32 v{t2}, s{sT0}, v0
    v_lshlrev_b32 v{vSt}, 4, v{t2}
    s_and_b32 s{sT0}, s{sTt}, 1
    v_xor_b32 v{vStt}, s{sT0}, v{t1}
    v_mul_u32_u24 v{vStt}, {64*1152}, v{vStt}
    v_and_b32 v{t2}, 31, v{t2}
    v_lshl_add_u32 v{vStt}, v{t2}, 2, v{vStt}
    s_lshl_b32 s{sT1}, s{sE}, 1
    s_add_u32 s{sT1}, s{sT1}, s{sTH}
    s_lshl_b32 s{sT1}, s{sT1}, 8
    s_add_u32 s{sT1}, s{sT1}, s{sBH}
    s_mul_i32 s{sT1}, s{sT1}, 1152
    s_add_u32 s{sRef}, s{sT1}, {WS_O}
    s_cmp_ge_u32 s{sPr}, 16
    s_mov_b32 s60, {f32(-LOG2E)}
    s_cselect_b32 s60, {f32(LOG2E)}, s60
    s_mov_b32 s61, {f32(2.0**-40)}
    s_mov_b32 s64, {f32(2.0**40) if not OPT['force_fb'] else f32(2.0**-39)}
    s_mov_b32 s65, {f32(CSCALE)}""")
    for x in range(4):
        a(f"""s_xor_b32 s{56+x}, s{sTt}, {x}
        s_mul_i32 s{56+x}, s{56+x}, {64*1152}
        s_add_u32 s{56+x}, s{56+x}, s{sRef}""")
    a("""s_min_u32 s4, s56, s57
    s_min_u32 s5, s58, s59""")
    p3_scal(a)
    p3_addr_w(a, vWm3, vWt, t0, t1, t2)
    coff = (48, 0, 96, 0)
    def wfrag(k2):
        r = []
        for ct in range(4):
            for hf in range(2):
                r.append(f"ds_read_b64_tr_b16 {vr(WF+16*k2+4*ct+2*hf,2)}, v{vWc[ct]} offset:{L_WR + (32*k2+4*hf)*256}")
        return r
    def xread(buf):
        r = []
        for k2 in range(2):
            for s in range(2):
                r.append(f"ds_read_b128 {vr(XF[buf]+8*k2+4*s,4)}, v{vXr[2*s+k2]}")
        return r
    xadv = [f"s_add_u32 s{sXm0}, s{sXm0}, 1", f"s_cmp_eq_u32 s{sXm0}, {RX}", f"s_cselect_b32 s{sXm0}, 0, s{sXm0}",
            f"s_cselect_b32 s{sT1}, s{sWk}, s{sWcnt}",
            ] + [f"v_add_u32 v{c}, s{sT1}, v{c}" for c in vXr]
    wadv = [f"s_add_u32 s{sWsrc}, s{sWsrc}, 1", f"s_cmp_eq_u32 s{sWsrc}, {RW}", f"s_cselect_b32 s{sWsrc}, 0, s{sWsrc}",
            f"s_cselect_b32 s{sT2}, s{sWm0}, s{sGk}",
            ] + [f"v_add_u32 v{c}, s{sT2}, v{c}" for c in vWc]
    if OPT.get('noadv'):
        xadv = [''] * 8; wadv = [''] * 8
    a(f"""s_mov_b32 s{sWk}, {(-(RX-1)*8192) & 0xffffffff}
    s_mov_b32 s{sWcnt}, 8192
    s_mov_b32 s{sWm0}, {(-(RW-1)*WSL) & 0xffffffff}
    s_mov_b32 s{sGk}, {WSL}""")
    if OPT.get("rstpos", "late") == "late": reset_flags()
    if OPT.get("pf9", "1") == "1":
        a(f"""s_lshr_b32 s{sT0}, s2, 5
        s_bfe_u32 s{sT1}, s2, {(2 << 16) | 3}
        s_cmp_eq_u32 s{sWv}, 0
        s_cbranch_scc1 {K}_pfx
        s_cmp_eq_u32 s{sWv}, 1
        s_cbranch_scc0 {K}_pfw
        s_lshl_b32 s{sT2}, s{sT1}, 1
        s_sub_u32 s{sT2}, s{sT2}, 1
        s_cselect_b32 s{sT2}, 8, s{sT2}
        s_lshl_b32 s{sT2}, s{sT2}, 7
        s_lshl_b32 s{sT3}, s{sE}, 3
        s_add_u32 s{sT3}, s{sT3}, s{sT0}
        s_mul_i32 s{sT3}, s{sT3}, {32*1152}
        s_add_u32 s{sT2}, s{sT2}, s{sT3}
        v_mul_u32_u24 v75, 1152, v0
        s_mov_b32 exec_hi, 0
        buffer_load_dword v76, v75, s[{sX}:{sX+3}], s{sT2} offen
        s_branch {K}_pfd
        {K}_pfw:
        s_sub_u32 s{sT2}, s{sT0}, 1
        s_cselect_b32 s{sT2}, 8, s{sT2}
        s_lshl_b32 s{sT2}, s{sT2}, 2
        s_add_u32 s{sT2}, s{sT2}, s{sT1}
        s_mul_i32 s{sT2}, s{sT2}, {16*3456}
        s_and_b32 s{sT3}, s{sPr}, 15
        s_mul_i32 s{sT3}, s{sT3}, 72
        s_add_u32 s{sT2}, s{sT2}, s{sT3}
        s_mul_i32 s{sT3}, s{sTH}, 68
        s_add_u32 s{sT2}, s{sT2}, s{sT3}
        v_mul_u32_u24 v75, 1152, v0
        s_mov_b32 exec_hi, 0xffff
        buffer_load_dword v76, v75, s[{sW}:{sW+3}], s{sT2} offen
        {K}_pfd:
        s_mov_b64 exec, -1
        {K}_pfx:""")
    a("s_barrier")
    stamp(a, 1, 30)
    if OPT.get("rstpos", "late") == "afterp": reset_flags()
    for m in xread(0) + xadv + wfrag(0) + wfrag(1): a(m)
    QM, QT = 32, 48
    KF, V0, V1, KT = [80, 84], [88, 92], [96, 100], [56, 60]
    vGl = 26
    TP = 108
    def epi(tt):
        tp = (64, 80)[tt % 2]
        r = []
        for s in range(2):
            b = ACC + 32 * tt + 16 * s
            k_, q_ = tp + 2 * s, tp + 4 + 2 * s
            r += f"""v_cvt_pk_bf16_f32 v{k_}, v{b}, v{b+1}
            v_cvt_pk_bf16_f32 v{k_+1}, v{b+2}, v{b+3}
            v_mul_f32 v{b+4}, s65, v{b+4}
            v_mul_f32 v{b+5}, s65, v{b+5}
            v_mul_f32 v{b+6}, s65, v{b+6}
            v_mul_f32 v{b+7}, s65, v{b+7}
            ds_write_b64 v{vKw}, {vr(k_,2)} offset:{(tt>>1)*BLK + (tt&1)*1024 + s*64}
            v_cvt_pk_bf16_f32 v{q_}, v{b+4}, v{b+5}
            v_cvt_pk_bf16_f32 v{q_+1}, v{b+6}, v{b+7}
            v_cvt_pk_bf16_f32 v{tp+8+2*s}, v{b+8}, v{b+9}
            v_cvt_pk_bf16_f32 v{tp+9+2*s}, v{b+10}, v{b+11}
            ds_write_b64 v{vQw}, {vr(q_,2)} offset:{tt*1024 + s*256}""".split("\n")
        b = ACC + 32 * tt
        r += f"""ds_write_b128 v{vVw}, {vr(tp+8,4)} offset:{4608 + (tt>>1)*BLK + (tt&1)*1216}
        v_mul_f32 v{b+12}, v{vMul}, v{b+12}
        v_mul_f32 v{b+13}, v{vMul}, v{b+13}
        v_mul_f32 v{b+14}, v{vMul}, v{b+14}
        v_mul_f32 v{b+15}, v{vMul}, v{b+15}
        v_cvt_pk_bf16_f32 v{tp+12}, v{b+12}, v{b+13}
        v_cvt_pk_bf16_f32 v{tp+13}, v{b+14}, v{b+15}
        ds_write_b16 v{MA(tt,0)}, v{tp+12}
        ds_write_b16_d16_hi v{MA(tt,1)}, v{tp+12}
        ds_write_b16 v{MA(tt,2)}, v{tp+13}
        ds_write_b16_d16_hi v{MA(tt,3)}, v{tp+13}""".split("\n")
        return r
    NM = 14
    def chunk(last):
        for tt in range(4):
            cur = XF[tt & 1]
            mf = []
            for k2 in range(2):
                for ct in range(4):
                    for s in range(2 if ct < 3 else 1):
                        d = ACC + 32 * tt + 16 * s + 4 * ct
                        w_, x_ = vr(WF + 16 * k2 + 4 * ct, 4), vr(cur + 8 * k2 + 4 * s, 4)
                        A_, B_ = (x_, w_) if ct == 2 else (w_, x_)
                        mf.append(f"v_mfma_f32_16x16x32_bf16 {vr(d,4)}, {A_}, {B_}, {vr(d,4)}")
            fill = {i: [] for i in range(-1, NM)}
            xr = xread((tt + 1) & 1)
            if tt == 0:
                fill[-1].append("s_waitcnt lgkmcnt(8)")
                for i in range(4): fill[i].append(xr[i])
                fill[6].append("s_waitcnt lgkmcnt(4)")
                for i in range(8): fill[(4, 5, 7, 8, 9, 10, 11, 12)[i]].append(xadv[i])
                if last:
                    for i in range(4): fill[i].append(f"v_mov_b32 v{92+i}, 0x3f803f80")
                    fill[13] += ["s_mov_b64 exec, 0xffff", f"ds_write_b128 v{vOnes}, v[92:95] offset:{4608+288}", "s_mov_b64 exec, -1"]
            elif last:
                if tt < 3:
                    for i in range(4): fill[i // 2].append(xr[i])
                    if tt == 1:
                        for i in range(8): fill[2 + i // 3].append(xadv[i])
                e = epi(tt - 1)
                st = (0, 5, 2, 1)[tt]
                per = -(-len(e) // (NM - st))
                for i, m in enumerate(e): fill[st + i // per].append(m)
            elif tt == 3:
                for i in range(4): fill[-1 + (i + 1) // 2].append(xr[i])
                w0, w1 = wfrag(0), wfrag(1)
                lastuse = (1, 3, 5, 6)
                for ct in range(4):
                    fill[lastuse[ct]] += [w0[2 * ct]]; fill[lastuse[ct] + 1] += [w0[2 * ct + 1]]
                    fill[7 + lastuse[ct]] += [w1[2 * ct]]; fill[min(NM - 1, 8 + lastuse[ct])] += [w1[2 * ct + 1]]
                for i in range(8): fill[(2, 3, 4, 5, 7, 8, 9, 10)[i]].append(xadv[i])
                fill[11].append(f"s_sub_u32 s{sIt}, s{sIt}, 1")
            else:
                for i in range(4): fill[i].append(xr[i])
                for i in range(8): fill[4 + i].append(xadv[i])
                if tt == 1:
                    for i in range(4): fill[10 + i].append(wadv[i])
                if tt == 2:
                    for i in range(4): fill[10 + i].append(wadv[4 + i])
            if tt % 2 == 0: a("s_barrier")
            for m in fill[-1]: a(m)
            for i in range(NM):
                if not OPT.get("nomf"): a(mf[i])
                for m in fill[i]: a(m)
            if last:
                if tt == 0: a("s_waitcnt lgkmcnt(1)")
                elif tt == 1: a("s_waitcnt lgkmcnt(9)")
                elif tt == 2: a("s_waitcnt lgkmcnt(0)\ns_barrier")
            elif tt == 3:
                a(f"""s_waitcnt lgkmcnt(15)
                s_cmp_eq_u32 s{sIt}, s{sCnt}
                s_cbranch_scc1 {K}_rst
                {K}_rst_ret:
                s_cmp_lg_u32 s{sIt}, 0""")
            else:
                a("s_waitcnt lgkmcnt(0)")
    a(f"""s_mov_b32 s{sIt}, 8
    s_waitcnt lgkmcnt(0)
    {K}_p1:""")
    chunk(False)
    a(f"s_cbranch_scc1 {K}_p1")
    a("s_waitcnt vmcnt(0)")
    chunk(True)
    stamp(a, 2, 30)
    a("s_nop 1")
    for m in epi(3): a(m)
    S = [128, 144, 160, 176]
    O = [192, 208, 224, 240]
    zo = [f"v_mov_b32 v{O[x]+i}, 0" for x in range(4) for i in range(11)]
    zq = [f"v_mov_b32 v{QT+4*j+i}, 0" for j in range(2) for i in (1, 2)]
    zs = [f"v_mov_b32 v{S[3]+8+i}, 0" for i in range(8)] + [f"v_mov_b32 v{V1[1]+i}, 0" for i in range(4)]
    for m in zo[:22]: a(m)
    a("s_waitcnt lgkmcnt(0)")
    for x in range(4): a(f"ds_read_b128 {vr(QM+4*x,4)}, v{vQr} offset:{1024*x}")
    a("s_barrier")
    stamp(a, 3, 30)
    NB = int(OPT["nb"])
    T2F = OPT.get("t2f", "0") == "1"
    def ldK(t, buf): return f"ds_read_b128 {vr(KF[buf],4)}, v{vKa} offset:{((t//4)%NB)*BLK + (t%4)*1024}"
    def ldV(t, half, buf): return f"ds_read_b128 {vr((V0,V1)[half][buf],4)}, v{vVa} offset:{((t//4)%NB)*BLK + 4608 + (t%4)*1216 + 608*half}"
    def ldT(b=0): return f"ds_read_b128 {vr(KT[b%2],4)}, v{vTa} offset:{(b%NB)*BLK + 4096}"
    def QKM(t, x, s, c="0"): return f"v_mfma_f32_32x32x16_bf16 {vr(s,16)}, {vr(KF[t%2],4)}, {vr(QM+4*x,4)}, {c}"
    def QKT(t, x, s): return f"v_mfma_f32_32x32x4_2b_bf16 {vr(s,32)}, {vr(KT[(t//4)%2]+(t&2),2)}, {vr(QT+2*x+2*(t&1),2)}, {vr(s,32) if not T2F else 0}"
    def PV(half, t, x, s): return f"v_smfmac_f32_32x32x32_bf16 {vr(O[x],16)}, {vr((V0,V1)[half][t%2],4)}, {vr(s+8*half,8)}, v{vIdx}"
    a(ldK(0, 0))
    a(f"ds_read2_b32 {vr(TP,2)}, v{vSqh} offset0:0 offset1:2")
    a(ldT()); a(ldV(0, 0, 0)); a(ldV(0, 1, 0))
    a(f"ds_read_b128 {vr(TP+4,4)}, v{vSq} offset:512")
    HOOKS = [1, 3, 7, 11, 13, 15]
    assert NB % 2 == 0
    for m in zq + zs: a(m)
    a(f"""s_mov_b32 s{sIt}, 0
    s_mov_b32 s{sWk}, {NB*BLK}
    s_mov_b32 s{sWcnt}, {(NB*BLK - RING) & 0xffffffff}
    s_waitcnt lgkmcnt(4)""")
    if not T2F:
        a(QKM(0, 0, S[0]))
        a(f"""v_mov_b32 v{QT}, v{TP}
    v_mov_b32 v{QT+3}, v{TP}
    v_mov_b32 v{QT+4}, v{TP+1}
    v_mov_b32 v{QT+7}, v{TP+1}""")
        a(QKM(0, 1, S[1]))
        for m in zo[22:27]: a(m)
        a(QKM(0, 2, S[2]))
        for m in zo[27:32]: a(m)
        a("s_waitcnt lgkmcnt(3)")
        a(QKT(0, 0, S[0]))
        for m in zo[32:]: a(m)
        a("s_nop 6")
        a("s_waitcnt lgkmcnt(0)")
    else:
        a(f"""v_mov_b32 v{QT}, v{TP}
        v_mov_b32 v{QT+3}, v{TP}
        v_mov_b32 v{QT+4}, v{TP+1}
        v_mov_b32 v{QT+7}, v{TP+1}
        s_waitcnt lgkmcnt(3)""")
        a(QKT(0, 0, S[0]))
        for m in zo[22:40]: a(m)
        a(QKM(0, 0, S[0], vr(S[0], 16)))
        for m in zo[40:]: a(m)
        a(QKM(0, 1, S[1], vr(S[1], 16)))
        a("s_nop 5")
        a("s_waitcnt lgkmcnt(0)")
    if OPT.get("cprio"): a(f"s_setprio {OPT['cprio']}")
    hookblks = []
    a(".p2align 6")
    a(f"{K}_att:")
    pos = tuple(int(z) for z in OPT.get("pos", "2.5.10.14.22.26.30" if not T2F else "2.5.13.18.21.26.30").split("."))
    NIT = 16 // NB
    SB = lambda u: S[u % 4]
    for u in range(0, 16 * NB, 2):
        t, x = divmod(u, 4)
        blk, ub = divmod(u, 16)
        ins = {i: [] for i in range(33)}
        ins[pos[0]].append(PV(1, *divmod(u - 1, 4), SB(u - 1)))
        if not T2F:
            ins[pos[1]].append(QKM(*divmod(u + 3, 4), SB(u + 3)))
            ins[pos[2]].append(PV(0, t, x, SB(u)))
            ins[pos[3]].append(QKT(*divmod(u + 2, 4), SB(u + 2)))
            ins[pos[4]].append(PV(1, t, x, SB(u)))
            ins[pos[5]].append(PV(0, t, x + 1, SB(u + 1)))
            ins[pos[6]].append(QKM(*divmod(u + 4, 4), SB(u + 4)))
        else:
            ins[pos[1]].append(QKT(*divmod(u + 2, 4), SB(u + 2)))
            ins[pos[2]].append(PV(0, t, x, SB(u)))
            ins[pos[3]].append(PV(1, t, x, SB(u)))
            ins[pos[4]].append(QKM(*divmod(u + 2, 4), SB(u + 2), vr(SB(u + 2), 16)))
            ins[pos[5]].append(PV(0, t, x + 1, SB(u + 1)))
            ins[pos[6]].append(QKM(*divmod(u + 3, 4), SB(u + 3), vr(SB(u + 3), 16)))
        if x == 0:
            ins[pos[0]].append(ldV(t + 1, 1, (t + 1) % 2))
            ins[pos[1]].append(ldK(t + 1, (t + 1) % 2))
            ins[pos[2]].append(ldV(t + 1, 0, (t + 1) % 2))
            if ub == 12: ins[pos[3]].append(ldT(blk + 1))
            ins[pos[5]].append("s_waitcnt lgkmcnt(0)")
        if ub == 10:
            if blk == NB - 1:
                ins[pos[0]].append(f"s_cmp_eq_u32 s{sIt}, {NIT//2 - 1}")
                ins[pos[1]].append(f"s_cselect_b32 s{sT0}, s{sWcnt}, s{sWk}")
                ins[pos[2]].append(f"v_add_u32 v{vKa}, s{sT0}, v{vKa}")
                ins[pos[3]].append(f"v_add_u32 v{vTa}, s{sT0}, v{vTa}")
                ins[pos[4]].append(f"v_add_u32 v{vVa}, s{sT0}, v{vVa}")
            its = [it for it in range(NIT) if it * NB + blk in HOOKS]
            if len(its) == NIT and (not OPT["stamp"] or OPT.get("light")):
                ins[pos[6]].append("s_barrier")
            elif its:
                ins[pos[6]] += [f"s_bitcmp1_b32 {sum(1 << i for i in its)}, s{sIt}", f"s_cbranch_scc1 {K}_hook{blk}", f"{K}_hook_ret{blk}:"]
                hookblks.append(blk)
        if u == 16 * NB - 2:
            ins[pos[5]].append(f"s_add_u32 s{sIt}, s{sIt}, 1")
            ins[pos[6]].append(f"s_cmp_lt_u32 s{sIt}, {NIT}")
        for i in range(32):
            for m in ins[i]: a(m)
            a(f"v_exp_f32 v{SB(u)+i}, v{SB(u)+i}")
    if OPT.get("light"):
        a(f"""s_memtime s[82:83]
        s_memrealtime s[80:81]
        s_add_u32 m0, s{sIt}, 15
        s_waitcnt lgkmcnt(0)
        v_writelane_b32 v30, s80, m0
        v_writelane_b32 v31, s82, m0
        s_cmp_lt_u32 s{sIt}, {NIT}""")
    a(f"s_cbranch_scc1 {K}_att")
    a("s_nop 1")
    a(PV(1, 3, 3, S[3]))
    stamp(a, 8, 30)
    CC = [5, 6, 7, 8]
    R8 = [64, 68, 72, 76, 104, 108, 112, 116, 120]
    RL = list(range(32, 64, 4)) + list(range(80, 104, 4)) + [124] + list(range(128, 176, 4))
    creg = lambda s, ct: R8[s] if ct == 8 else RL[3 * s + ct - 5]
    a('s_nop 8')
    l_ = [O[x] + 10 for x in range(4)]
    tq = [2, 3, 4, 5]
    a(f"""v_add_f32 v2, v{l_[0]}, v{l_[1]}
    v_min3_f32 v3, v{l_[0]}, v{l_[1]}, v{l_[2]}
    v_add_f32 v2, v2, v{l_[2]}
    s_waitcnt lgkmcnt(0)
    v_add_f32 v2, v2, v{l_[3]}
    v_min_f32 v3, v3, v{l_[3]}
    v_cmp_ge_f32 s[{sEx}:{sEx+1}], s64, v2
    v_cmp_le_f32 vcc, s61, v3
    s_nop 1
    s_and_b32 vcc_lo, vcc_lo, s{sEx}
    s_cmp_eq_u32 vcc_lo, -1
    s_cbranch_scc0 {K}_fbchk
    {K}_fbdone:""")
    cp = [f"ds_read_b128 {vr(creg(s_,ct),4)}, v{vCp} offset:{1024*(3*s_+i)}" for s_ in range(9) for i, ct in enumerate(CL)]
    for x in range(4): a(f"v_mov_b32 v{tq[x]}, v{O[x]+10}")
    a(cp.pop(0))
    for x in range(4): a(f"v_permlane32_swap_b32 v{O[x]+10}, v{tq[x]}")
    a(cp.pop(0))
    for x in range(4): a(f"v_mul_f32 v{tq[x]}, v{O[x]+10}, v{vGl+x}")
    for x in range(4): a(f"v_rcp_f32 v{tq[x]}, v{tq[x]}")
    a(cp.pop(0))
    for x in range(4):
        o = O[x]
        sel = "op_sel_hi:[1,0]" if x % 2 == 0 else "op_sel:[0,1]"
        for i in range(0, 10, 2): a(f"v_pk_mul_f32 {vr(o+i,2)}, {vr(o+i,2)}, {vr(tq[x & 2],2)} {sel}")
        for i in range(4): a(f"v_cvt_pk_bf16_f32 v{o+12+i}, v{o+2*i}, v{o+2*i+1}")
        a(f"""v_cvt_pk_bf16_f32 v{o+11}, v{o+8}, v{o+9}
        buffer_store_dwordx4 {vr(o+12,4)}, v{vSt}, s[{sWS}:{sWS+3}], s{56+x} offen sc1""")
        if x % 2 == 1:
            a(cp.pop(0))
            a(f"""v_permlane32_swap_b32 v{O[x-1]+11}, v{o+11}
            buffer_store_dword v{O[x-1]+11}, v{vStt}, s[{sWS}:{sWS+3}], s{4+(x>>1)} offen offset:1024 sc1""")
    for m in cp: a(m)
    stamp(a, 9, 30)
    a(f"""v_mov_b32 v6, {L_SYNC + 20}
    v_mov_b32 v7, 1
    s_setprio {OPT.get("p3prio", 2)}
    s_mov_b64 exec, 1
    s_waitcnt lgkmcnt(0)
    ds_add_u32 v6, v7
    s_mov_b64 exec, -1""")
    vOm, vOt, vRd = [2, 8], 3, 4
    p3_addr_o(a, vOm, vOt, vRd, [9, 10], 5, 11, 12, 13)
    for i in range(32): a(f"v_mov_b32 v{224+i}, 0")
    stamp(a, 10, 30)
    if OPT.get("drain"):
        a("s_waitcnt vmcnt(0)")
        stamp(a, 12, 30)
    p3_comp(a, CC, creg, 224, 176, vOm, vOt, vRd, 5, [9, 10])
    stamp(a, 11, 30)
    a(f"{K}_final:")
    final_reduce(a, K, 30)
    a(f"{K}_end:")
    a("s_endpgm")
    a(f"""{K}_rst:
    s_lshl_b32 s{sT0}, s{sPr}, 2
    v_mov_b32 v28, s{sT0}
    v_mov_b32 v29, 1
    s_mov_b64 exec, 1
    s_waitcnt vmcnt(0)
    buffer_atomic_add v29, v28, s[{sD}:{sD+3}], 0 offen
    s_mov_b64 exec, -1
    s_branch {K}_rst_ret""")
    for blk in hookblks:
        a(f"{K}_hook{blk}:")
        if 1 % NB == blk:
            a(f"""s_cmp_eq_u32 s{sIt}, {1 // NB}
            s_cbranch_scc0 {K}_hkg
            v_lshlrev_b32 v{vGl}, 16, v{TP+4}
            v_lshlrev_b32 v{vGl+1}, 16, v{TP+5}
            v_lshlrev_b32 v{vGl+2}, 16, v{TP+6}
            v_lshlrev_b32 v{vGl+3}, 16, v{TP+7}""")
            for x in range(4): a(f"v_mul_f32 v{vGl+x}, s60, v{vGl+x}")
            for x in range(4): a(f"v_exp_f32 v{vGl+x}, v{vGl+x}")
            a("s_nop 0")
            for x in range(4): a(f"v_add_f32 v{vGl+x}, 1.0, v{vGl+x}")
            for x in range(4):
                for i in range(11, 16): a(f"v_mov_b32 v{O[x]+i}, 0")
            a(f"{K}_hkg:")
        if OPT["stamp"]:
            for hb, i_ in ((1, 4), (3, 6)):
                if hb % NB == blk:
                    a(f"s_cmp_eq_u32 s{sIt}, {hb // NB}\ns_cbranch_scc0 {K}_hk{hb}")
                    stamp(a, i_, 30); a("s_barrier"); stamp(a, i_ + 1, 30); a(f"s_branch {K}_hook_ret{blk}")
                    a(f"{K}_hk{hb}:")
        if 13 % NB == blk:
            a(f"""s_cmp_eq_u32 s{sIt}, {13 // NB}
            s_cbranch_scc0 {K}_hkb{blk}""")
            if not OPT.get('x_no8'): p3_wo_loads(a, [8], creg, vWm3, vWt)
            a(f"{K}_hkb{blk}:")
        a(f"""s_barrier
        s_branch {K}_hook_ret{blk}""")
    FQ = S[3]
    a(f"{K}_fbchk:")
    for x in range(4):
        a(f"""v_cmp_le_f32 vcc, s61, v{O[x]+10}
        v_cmp_ge_f32 s[{sEx}:{sEx+1}], s64, v{O[x]+10}
        s_nop 1
        s_and_b32 vcc_lo, vcc_lo, s{sEx}
        s_cmp_eq_u32 vcc_lo, -1
        s_cbranch_scc0 {K}_fb{x}
        {K}_fbret{x}:""")
    a(f"s_branch {K}_fbdone")
    for x in range(4):
        a(f"{K}_fb{x}:")
        for i in range(4): a(f"v_mov_b32 v{FQ+i}, v{QM+4*x+i}")
        for i in range(4): a(f"v_mov_b32 v{FQ+4+i}, 0")
        a(f"""s_mov_b32 {'exec_hi' if x % 2 == 0 else 'exec_lo'}, 0
        v_mov_b32 v{FQ+4}, v{QT+4*(x>>1)}
        v_mov_b32 v{FQ+7}, v{QT+4*(x>>1)}
        s_mov_b64 exec, -1""")
        a(f"s_call_b64 s[{sRet}:{sRet+1}], {K}_slow")
        for i in range(16): a(f"v_mov_b32 v{O[x]+i}, v{S[2]+i}")
        a(f"s_branch {K}_fbret{x}")
    a(f"{K}_slow:")
    vb, vc, vm = 11, 12, 13
    sA, sB = sWsrc, sWm0
    t0 = 9
    a(f"""v_lshlrev_b32 v{t0}, 4, v0
    v_and_b32 v{vm}, 31, v0
    v_lshlrev_b32 v{vb}, 4, v{vm}
    v_lshrrev_b32 v{vc}, 5, v0
    v_mul_u32_u24 v{vc}, 304, v{vc}
    v_lshl_add_u32 v{vc}, v{vm}, 4, v{vc}
    v_cmp_lt_u32 vcc, 18, v{vm}
    v_mov_b32 v{vm}, 0x40000000
    s_nop 1
    v_cndmask_b32 v{vc}, v{vc}, v{vm}, vcc""")
    def slow_qk(t, c):
        a(f"""v_mfma_f32_32x32x16_bf16 {vr(S[0],16)}, {vr(KF[0],4)}, {vr(FQ,4)}, {c}
        v_mfma_f32_32x32x8_bf16 {vr(S[0],16)}, {vr(KT[0]+(t&2),2)}, {vr(FQ+4+2*(t&1),2)}, {vr(S[0],16)}
        s_nop 15""")
    def slow_next(lbl):
        a(f"""s_add_u32 s{sA}, s{sA}, {BLK}
        s_sub_u32 s{sIt}, s{sIt}, 1
        s_cmp_lg_u32 s{sIt}, 0
        s_cbranch_scc1 {lbl}""")
    a(f"""v_mov_b32 v{vm}, 0xff800000
    s_mov_b32 s{sA}, s{sKVg}
    s_mov_b32 s{sIt}, 16
    {K}_sl1:
    s_add_u32 s{sB}, s{sA}, 4096
    buffer_load_dwordx4 {vr(KT[0],4)}, v{vb}, s[{sWS}:{sWS+3}], s{sB} offen sc1""")
    for t in range(4):
        a(f"""buffer_load_dwordx4 {vr(KF[0],4)}, v{t0}, s[{sWS}:{sWS+3}], s{sA} offen offset:{1024*t} sc1
        s_waitcnt vmcnt(0)""")
        slow_qk(t, "0")
        for i in range(8): a(f"v_max3_f32 v{vm}, v{S[0]+2*i}, v{S[0]+2*i+1}, v{vm}")
    slow_next(f"{K}_sl1")
    a(f"""v_mov_b32 v{S[0]}, v{vm}
    s_nop 1
    v_permlane32_swap_b32 v{vm}, v{S[0]}
    s_nop 1
    v_max_f32 v{vm}, v{vm}, v{S[0]}""")
    for i in range(16):
        a(f"v_sub_f32 v{S[1]+i}, 0, v{vm}")
        a(f"v_mov_b32 v{S[2]+i}, 0")
    a(f"""s_mov_b32 s{sA}, s{sKVg}
    s_mov_b32 s{sIt}, 16
    {K}_sl2:
    s_add_u32 s{sB}, s{sA}, 4096
    buffer_load_dwordx4 {vr(KT[0],4)}, v{vb}, s[{sWS}:{sWS+3}], s{sB} offen sc1""")
    for t in range(4):
        a(f"""buffer_load_dwordx4 {vr(KF[0],4)}, v{t0}, s[{sWS}:{sWS+3}], s{sA} offen offset:{1024*t} sc1
        s_add_u32 s{sB}, s{sA}, {4608+1216*t}
        buffer_load_dwordx4 {vr(V0[0],4)}, v{vc}, s[{sWS}:{sWS+3}], s{sB} offen sc1
        buffer_load_dwordx4 {vr(V1[0],4)}, v{vc}, s[{sWS}:{sWS+3}], s{sB} offen offset:608 sc1
        s_waitcnt vmcnt(0)""")
        slow_qk(t, vr(S[1], 16))
        for i in range(16): a(f"v_exp_f32 v{S[0]+i}, v{S[0]+i}")
        a(f"""s_nop 3
        v_smfmac_f32_32x32x32_bf16 {vr(S[2],16)}, {vr(V0[0],4)}, {vr(S[0],8)}, v{vIdx}
        v_smfmac_f32_32x32x32_bf16 {vr(S[2],16)}, {vr(V1[0],4)}, {vr(S[0]+8,8)}, v{vIdx}
        s_nop 7""")
    slow_next(f"{K}_sl2")
    a(f"""s_nop 15
    s_setpc_b64 s[{sRet}:{sRet+1}]""")

def main(out):
    ka = f"{NAME}_kernel"
    a = Asm(); kernel(a)
    t = f"""; gated mix of two MHA blocks: one fused kernel (QKV projection, attention, output projection); generated by gen/gen27.py
; @launch grid=(256,1,1) block=(512,1,1) lds={LDS_BYTES}
.amdgcn_target "amdgcn-amd-amdhsa--gfx950"
.text
.globl {ka}
.p2align 8
.type {ka},@function
{ka}:
{a.text()}.section .rodata,"a"
.p2align 6
.amdhsa_kernel {ka}
  .amdhsa_next_free_vgpr 256
  .amdhsa_next_free_sgpr 102
  .amdhsa_accum_offset 256
  .amdhsa_group_segment_fixed_size 0
  .amdhsa_kernarg_size 80
  .amdhsa_user_sgpr_count 2
  .amdhsa_user_sgpr_kernarg_segment_ptr 1
  .amdhsa_system_sgpr_workgroup_id_x 1
.end_amdhsa_kernel
"""
    open(out, "w").write(t)

if __name__ == "__main__":
    for kv in sys.argv[2:]:
        k, v = kv.split("=")
        OPT[k] = {"True": True, "False": False}.get(v, v)
    main(sys.argv[1])
```

```python
import sys, struct

NAME = "gated_mix__mha_block__mha_block__prompt"
def f32(x): return "0x%08x" % struct.unpack("<I", struct.pack("<f", x))[0]
CSCALE = (18 ** -0.5) * 1.4426950408889634
LOG2E = 1.4426950408889634

BLK = 9472
KVH = 16 * BLK
RING = 8 * BLK
WS_O = 0x0A00000
WS_WOM = 0x0F00000
WS_WOT = 0x1080000
WS_F = 0x10C0000
WS_STAMP = 0x1100000
WS_SIZE = 0x1200000
SENT = 0xffffffff
L_WR = 0
WSL = 16384
RW = 3
L_XR = 98304
L_SCR = 49152
L_GT = 155648
L_SYNC = L_GT + 3 * 2048 + 1536
L_WO = 151552
LDS_BYTES = 163840
RS = 592
STRAD = sum(1 << p for p in range(32) if (72 * (p & 15)) % 128 > 56)
L_OA = 6 * BLK
L_OB = 94720
PLANE = 32 * RS

class Asm:
    def __init__(self): self.l = []
    def __call__(self, s):
        for x in s.strip("\n").split("\n"):
            x = x.strip()
            if not x: continue
            self.l.append(x if x.endswith(":") else "    " + x)
    def text(self): return "\n".join(self.l) + "\n"

def vr(a, n): return f"v[{a}:{a+n-1}]"
OPT = dict(force_fb=False, stamp=False, rx="7", txor="1", nb="4", cprio="3", pf9="0", rf="1.2.2.2.1", tx4="5")

def srd(a, d, lo, hi, size):
    a(f"""s_mov_b32 s{d}, s{lo}
    s_and_b32 s{d+1}, s{hi}, 0xffff
    s_mov_b32 s{d+2}, {size}
    s_mov_b32 s{d+3}, 0x00020000""")

sX, sW, sWo, sG, sD, sWS, sOut = 8, 12, 16, 20, 24, 28, 84
sWv, sPr, sE, sHd, sRot = 32, 33, 34, 35, 36
sT0, sT1, sT2, sT3 = 37, 38, 39, 40
sRef, sCnt, sKo, sXb, sRing, sIt, sKVg, sSpin, sW8 = 41, 42, 43, 44, 45, 46, 47, 48, 49
sRet, sEx = 50, 52
sWsrc, sWm0, sWk, sWcnt, sXm0, sGk, sTt, sBH = 54, 55, 62, 63, 76, 77, 78, 79
sP3T, sP3C, sOb, sWmb, sWtb, sHH, sTH, sOtb = 88, 89, 90, 91, 92, 93, 94, 95
SV = 254
sLA, sLB = 74, 75
sGO = [66, 67, 68, 69]
sGW = [70, 71, 72, 73]

def stamp(a, idx, vreg):
    if not OPT["stamp"]: return
    a(f"""s_memrealtime s[80:81]
    s_memtime s[82:83]
    s_waitcnt lgkmcnt(0)
    v_writelane_b32 v{vreg}, s80, {idx}
    v_writelane_b32 v{vreg+1}, s82, {idx}""")
def sstamp(a, k):
    if not OPT["stamp"]: return
    a(f"""s_memrealtime s[80:81]
    s_waitcnt lgkmcnt(0)
    s_mov_b32 s{96+k}, s80""")
def stamp_out(a, vreg, vt=1, mask=None):
    if not OPT["stamp"]: return
    a(f"""s_lshl_b32 s80, s2, 3
    s_add_u32 s80, s80, s{sW8}
    s_lshl_b32 s80, s80, 8
    s_add_u32 s80, s80, {WS_STAMP}
    v_lshlrev_b32 v{vt}, 3, v0
    s_mov_b32 exec_hi, 0""")
    if mask is not None: a(f"s_mov_b32 exec_lo, {mask}")
    a(f"""buffer_store_dwordx2 v[{vreg}:{vreg+1}], v{vt}, s[{sWS}:{sWS+3}], s80 offen
    s_mov_b64 exec, -1""")

def p3_addr_w(a, vWm, vWt, t0, t1, t2):
    a(f"""v_and_b32 v{t0}, 15, v0
    v_lshrrev_b32 v{t1}, 5, v0
    v_bfe_u32 v{t2}, v0, 4, 1
    v_mul_u32_u24 v{vWm}, 4608, v{t1}
    v_lshl_add_u32 v{vWm}, v{t2}, 8, v{vWm}
    v_lshl_add_u32 v{vWm}, v{t0}, 4, v{vWm}
    v_lshrrev_b32 v{t1}, 4, v0
    v_add_u32 v{t2}, s{sP3C}, v{t1}
    v_and_b32 v{t2}, 3, v{t2}
    v_mul_u32_u24 v{vWt}, {4*2304}, v{t2}
    v_lshl_add_u32 v{vWt}, v{t0}, 4, v{vWt}""")
def p3_addr_o(a, vOm, vOt, vRd, vVa, vSy, t0, t1, t2):
    a(f"""v_and_b32 v{t0}, 15, v0
    v_lshrrev_b32 v{t1}, 5, v0
    v_bfe_u32 v{t2}, v0, 4, 1
    v_mul_u32_u24 v{vOm[0]}, 1152, v{t1}
    v_lshl_add_u32 v{vOm[0]}, v{t2}, 9, v{vOm[0]}
    v_lshl_add_u32 v{vOm[0]}, v{t0}, 4, v{vOm[0]}
    v_add_u32 v{vOm[1]}, s{sLB}, v{vOm[0]}
    v_add_u32 v{vOm[0]}, s{sLA}, v{vOm[0]}
    s_sub_u32 s{sT3}, s{sLB}, s{sLA}
    v_mul_lo_u32 v{vOt}, s{sT3}, v{t1}
    v_add_u32 v{vOt}, s{sLA}, v{vOt}
    v_mul_u32_u24 v{t2}, 4608, v{t2}
    v_add_u32 v{vOt}, v{vOt}, v{t2}
    v_lshl_add_u32 v{vOt}, v{t0}, 2, v{vOt}
    v_lshrrev_b32 v{t1}, 4, v0
    v_mul_u32_u24 v{vRd}, {RS}, v{t0}
    v_lshl_add_u32 v{vRd}, v{t1}, 4, v{vRd}
    s_cmp_eq_u32 s{sWv}, 3
    s_cselect_b32 s{sT3}, 4, s{sWv}
    s_mul_i32 s{sT3}, s{sT3}, {PLANE}
    v_add_u32 v{vRd}, s{sT3}, v{vRd}
    v_mul_u32_u24 v{vVa[0]}, 1152, v{t1}
    v_lshl_add_u32 v{vVa[0]}, v{t0}, 3, v{vVa[0]}
    v_add_u32 v{vVa[0]}, 1024, v{vVa[0]}
    v_add_u32 v{vVa[1]}, s{sLB}, v{vVa[0]}
    v_add_u32 v{vVa[0]}, s{sLA}, v{vVa[0]}
    s_lshl_b32 s{sT3}, s{sWv}, 2
    s_add_u32 s{sT3}, s{sT3}, {L_SYNC + 32}
    v_mov_b32 v{vSy}, s{sT3}""")
def p3_scal(a):
    a(f"""s_and_b32 s{sP3T}, s2, 7
    s_lshr_b32 s{sT0}, s2, 5
    s_lshl_b32 s{sT0}, s{sT0}, 3
    s_add_u32 s{sP3T}, s{sP3T}, s{sT0}
    s_lshr_b32 s{sP3C}, s2, 3
    s_and_b32 s{sP3C}, s{sP3C}, 3
    s_lshl_b32 s{sOb}, s{sP3T}, 6
    s_lshl_b32 s{sT3}, s{sWv}, 2
    s_add_u32 s{sOb}, s{sOb}, s{sT3}
    s_mul_i32 s{sOb}, s{sOb}, 1152
    s_add_u32 s{sOb}, s{sOb}, {WS_O}
    s_lshl_b32 s{sWmb}, s{sP3C}, 6
    s_add_u32 s{sWmb}, s{sWmb}, s{sT3}
    s_mul_i32 s{sWmb}, s{sWmb}, 4608
    s_add_u32 s{sWmb}, s{sWmb}, {WS_WOM}
    s_lshl_b32 s{sWtb}, s{sP3C}, 4
    s_add_u32 s{sWtb}, s{sWtb}, s{sWv}
    s_mul_i32 s{sWtb}, s{sWtb}, 2304
    s_add_u32 s{sWtb}, s{sWtb}, {WS_WOT}
    s_mul_i32 s{sLA}, s{sHH}, {RING}
    s_mul_i32 s{sT3}, s{sTH}, 9216
    s_add_u32 s{sLA}, s{sLA}, s{sT3}
    s_add_u32 s{sLA}, s{sLA}, {L_OA}
    s_mul_i32 s{sLB}, s{sWv}, 9216
    s_add_u32 s{sLB}, s{sLB}, {L_OB}""")
    for g in range(4):
        a(f"""s_add_u32 s{sT3}, s{sP3C}, {g}
        s_and_b32 s{sT3}, s{sT3}, 3
        s_mul_i32 s{sGO[g]}, s{sT3}, {16*1152}
        s_add_u32 s{sGO[g]}, s{sGO[g]}, s{sOb}
        s_mul_i32 s{sGW[g]}, s{sT3}, {16*4608}
        s_add_u32 s{sGW[g]}, s{sGW[g]}, s{sWmb}""")
def p3_wo_loads(a, cts, reg, vWm, vWt, steps=range(9)):
    for s in range(8):
        if s not in steps: continue
        a(f"s_add_u32 s{sT3}, s{sGW[s>>1]}, {2*(s&1)*4608 + 512*cts[0]}")
        for i, ct in enumerate(cts):
            a(f"buffer_load_dwordx4 {vr(reg(s,ct),4)}, v{vWm}, s[{sWS}:{sWS+3}], s{sT3} offen offset:{512*i} sc1")
    for ct in (cts if 8 in steps else []):
        a(f"buffer_load_dwordx4 {vr(reg(8,ct),4)}, v{vWt}, s[{sWS}:{sWS+3}], s{sWtb} offen offset:{256*ct} sc1")
def p3_oread(a, g, OF, vOm):
    for k in range(2):
        for th in range(2):
            a(f"ds_read_b128 {vr(OF+8*k+4*th,4)}, v{vOm[g>>1]} offset:{4608*(g&1) + 2304*k + 256*th}")
def p3_mf(a, cts, reg, AC, st, o):
    for i, ct in enumerate(cts):
        for th in range(2):
            d = AC + 8 * i + 4 * th
            a(f"v_mfma_f32_16x16x32_bf16 {vr(d,4)}, {vr(reg(st,ct),4)}, {vr(o+4*th,4)}, {vr(d,4)}")
def p3_tail(a, cts, reg, AC, OF, vOt, vRd):
    for th in range(2):
        for i in range(4):
            a(f"ds_read_b32 v{OF+4*th+i}, v{vOt} offset:{1152*i + 1024 + 64*th}")
    final_addr(a)
    a("s_waitcnt lgkmcnt(0)")
    p3_mf(a, cts, reg, AC, 8, OF)
    sstamp(a, 5)
    a("s_nop 7")
    for i, ct in enumerate(cts):
        for th in range(2):
            a(f"ds_write_b128 v{vRd}, {vr(AC+8*i+4*th,4)} offset:{16*th*RS + 64*ct}")
def p3_hint_addr(a, OF):
    vHa, vE4 = OF + 21, OF + 22
    a(f"""v_and_b32 v1, 3, v0
    v_mul_u32_u24 v{vHa}, 1152, v1
    v_bfe_u32 v1, v0, 2, 2
    v_add_u32 v1, s{sP3C}, v1
    v_and_b32 v1, 3, v1
    v_mul_u32_u24 v1, {16*1152}, v1
    v_add_u32 v{vHa}, v{vHa}, v1
    v_mov_b32 v{vE4}, {L_SYNC + 20}""")
def p3_helper(a, cts, reg, AC, OF, vOm, vOt, vRd, vL16, vVa, vSy, slp):
    L = "h3"
    sDone = sCnt
    def dma(g):
        lb = (sLA, sLB)[g >> 1]
        a(f"""s_add_u32 m0, s{lb}, {4608*(g&1)}
        s_add_u32 s{sT3}, s{sGO[g]}, 4096""")
        for i in range(4):
            a(f"buffer_load_dwordx4 v{vL16}, s[{sWS}:{sWS+3}], s{sGO[g]} offen offset:{1024*i} sc1 lds")
        a(f"""s_add_u32 m0, s{lb}, {4608*(g&1) + 4096}
        s_mov_b32 exec_hi, 0
        buffer_load_dwordx4 v{vL16}, s[{sWS}:{sWS+3}], s{sT3} offen sc1 lds
        s_mov_b64 exec, -1""")
    sFly, sLand, sTry, sBlk_ = sWk, sWcnt, sKo, sXb
    vH, vHa, vE4 = OF + 18, OF + 21, OF + 22
    a(f"""s_mov_b32 s{sSpin}, 60000
    s_mov_b32 s{sIt}, {SENT}
    s_mov_b32 s{sDone}, 0
    s_mov_b32 s{sFly}, 0
    s_mov_b32 s{sLand}, 0
    s_mov_b32 s{sBlk_}, 12
    {L}_round:
    s_mov_b64 exec, 0xffff
    buffer_load_dword v{vH}, v{vHa}, s[{sWS}:{sWS+3}], s{sOb} offen offset:1024 sc1
    s_mov_b64 exec, -1
    ds_read_b32 v1, v{vE4}
    s_cmp_eq_u32 s{sFly}, 0
    s_cbranch_scc1 {L}_nofly
    s_or_b32 s{sLand}, s{sLand}, s{sFly}
    s_waitcnt vmcnt(1)
    v_mov_b32 v{vH+1}, s{sLand}
    ds_write_b32 v{vSy}, v{vH+1}
    {L}_nofly:
    s_mov_b32 s{sTry}, s{sFly}
    s_waitcnt lgkmcnt(0)
    v_readfirstlane_b32 s{sT0}, v1
    s_cmp_ge_u32 s{sT0}, 4
    s_cselect_b32 s{sBlk_}, 0, s{sBlk_}
    s_or_b32 s{sT1}, s{sDone}, s{sTry}
    s_cmp_eq_u32 s{sT1}, 15
    s_mov_b32 s{sFly}, 0
    s_cbranch_scc1 {L}_work""")
    if int(OPT.get("spec", 0)):
        a(f"""s_bcnt1_i32_b32 s{sT0}, s{sT1}
        s_mov_b32 vcc_lo, -1
        s_cmp_ge_u32 s{sT0}, {4 - int(OPT["spec"])}
        s_cselect_b32 s{sT0}, s{sBlk_}, 1
        s_cmp_eq_u32 s{sT0}, 0
        s_cbranch_scc1 {L}_spec""")
    a(f"""s_or_b32 s{sT1}, s{sT1}, s{sBlk_}
    s_waitcnt vmcnt(0)
    v_cmp_ne_u32 vcc, s{sIt}, v{vH}
    {L}_spec:""")
    for g in range(4):
        a(f"""s_bitcmp1_b32 s{sT1}, {g}
        s_cbranch_scc1 {L}_l{g}
        s_bfe_u32 s{sT0}, vcc_lo, {(4 << 16) | (4 * g)}
        s_cmp_eq_u32 s{sT0}, 15
        s_cbranch_scc0 {L}_l{g}
        s_bitset1_b32 s{sFly}, {g}""")
        dma(g)
        a(f"{L}_l{g}:")
    a(f"{L}_work:")
    for g in range(4):
        a(f"""s_bitcmp1_b32 s{sTry}, {g}
        s_cbranch_scc0 {L}_n{g}""")
        p3_check(a, g, OF, vOm, vVa)
        a(f"""s_cbranch_vccnz {L}_n{g}
        s_bitset1_b32 s{sDone}, {g}""")
        stamp(a, 27 + g, SV)
        p3_mf(a, cts, reg, AC, 2 * g, OF)
        p3_mf(a, cts, reg, AC, 2 * g + 1, OF + 8)
        a(f"{L}_n{g}:")
    a(f"""s_cmp_eq_u32 s{sDone}, 15
    s_cbranch_scc1 {L}_done
    s_sub_u32 s{sSpin}, s{sSpin}, 1
    s_cmp_lt_i32 s{sSpin}, 0
    s_cbranch_scc1 {L}_done
    s_or_b32 s{sT0}, s{sFly}, s{sTry}
    s_cbranch_scc1 {L}_round
    s_sleep {slp}
    s_branch {L}_round
    {L}_done:
    s_waitcnt vmcnt(0)""")
    p3_tail(a, cts, reg, AC, OF, vOt, vRd)
def p3_check(a, g, OF, vOm, vVa):
    p3_oread(a, g, OF, vOm)
    a(f"""ds_read_b64 {vr(OF+16,2)}, v{vVa[g>>1]} offset:{4608*(g&1)}
    s_waitcnt lgkmcnt(3)
    v_max3_u32 v1, v{OF}, v{OF+1}, v{OF+2}
    v_max3_u32 v1, v{OF+3}, v{OF+4}, v1
    v_max3_u32 v1, v{OF+5}, v{OF+6}, v1
    s_waitcnt lgkmcnt(0)
    v_max3_u32 v1, v{OF+7}, v{OF+8}, v1
    v_max3_u32 v1, v{OF+9}, v{OF+10}, v1
    v_max3_u32 v1, v{OF+11}, v{OF+12}, v1
    v_max3_u32 v1, v{OF+13}, v{OF+14}, v1
    v_max3_u32 v1, v{OF+15}, v{OF+16}, v1
    v_max_u32 v1, v{OF+17}, v1
    v_cmp_eq_u32 vcc, s{sIt}, v1
    s_nop 1""")
def p3_comp(a, cts, reg, AC, OF, vOm, vOt, vRd, vSy, vVa):
    L = "c3"
    sDone = sCnt
    a(f"""s_mov_b32 s{sSpin}, 400000
    s_mov_b32 s{sIt}, {SENT}
    s_mov_b32 s{sDone}, 0
    s_waitcnt vmcnt(6)
    {L}_round:
    ds_read_b32 v1, v{vSy}
    s_waitcnt lgkmcnt(0)
    v_readfirstlane_b32 s{sT0}, v1
    s_andn2_b32 s{sT0}, s{sT0}, s{sDone}""")
    for g in range(4):
        a(f"""s_bitcmp1_b32 s{sT0}, {g}
        s_cbranch_scc0 {L}_n{g}""")
        p3_check(a, g, OF, vOm, vVa)
        a(f"""s_cbranch_vccnz {L}_n{g}
        s_bitset1_b32 s{sDone}, {g}""")
        p3_mf(a, cts, reg, AC, 2 * g, OF)
        p3_mf(a, cts, reg, AC, 2 * g + 1, OF + 8)
        a(f"{L}_n{g}:")
    a(f"""s_cmp_eq_u32 s{sDone}, 15
    s_cbranch_scc1 {L}_done
    s_sub_u32 s{sSpin}, s{sSpin}, 1
    s_cmp_lt_i32 s{sSpin}, 0
    s_cbranch_scc0 {L}_round
    {L}_done:""")
    p3_tail(a, cts, reg, AC, OF, vOt, vRd)

def srd_tail(a, d, size):
    a(f"""s_mov_b32 s{d+2}, {size}
    s_mov_b32 s{d+3}, 0x00020000""")
def kernel(a):
    K = "k"
    if OPT["stamp"]: a("s_memrealtime s[96:97]")
    a(f"""
    s_cmp_ge_u32 s2, 256
    s_cbranch_scc1 {K}_end
    s_load_dwordx2 s[{sX}:{sX+1}], s[0:1], 0
    s_bfe_u32 s{sT0}, s2, {(1 << 16) | 2}
    s_mul_i32 s{sT0}, s{sT0}, 24
    s_add_u32 s{sT1}, s{sT0}, 8
    s_add_u32 s{sT0}, s{sT0}, 16
    s_load_dwordx2 s[{sW}:{sW+1}], s[0:1], s{sT1}
    s_load_dwordx2 s[{sG}:{sG+1}], s[0:1], 48
    s_load_dwordx2 s[{sWS}:{sWS+1}], s[0:1], 72
    s_load_dwordx2 s[{sD}:{sD+1}], s[0:1], 64
    s_load_dwordx2 s[{sOut}:{sOut+1}], s[0:1], 56
    s_load_dwordx2 s[{sWo}:{sWo+1}], s[0:1], s{sT0}
    v_lshrrev_b32 v1, 6, v0
    v_and_b32 v0, 63, v0
    s_bfe_u32 s{sT1}, s2, {(2 << 16) | 3}
    v_readfirstlane_b32 s{sW8}, v1
    s_lshr_b32 s{sT2}, s2, 5
    s_and_b32 s{sE}, s2, 1
    s_lshl_b32 s{sE}, s{sE}, 2
    s_add_u32 s{sE}, s{sE}, s{sT1}
    s_and_b32 s{sPr}, s2, 6
    s_lshl_b32 s{sPr}, s{sPr}, 2
    s_add_u32 s{sPr}, s{sPr}, s{sT2}
    s_and_b32 s{sWv}, s{sW8}, 3
    s_lshr_b32 s{sHH}, s{sWv}, 1
    s_and_b32 s{sTH}, s{sWv}, 1
    s_bfe_u32 s{sTt}, s2, {(1 << 16) | 5}
    s_lshl_b32 s{sTt}, s{sTt}, 1
    s_bfe_u32 s{sT2}, s2, {(1 << 16) | 6}
    s_or_b32 s{sTt}, s{sTt}, s{sT2}
    s_cmp_ge_u32 s{sW8}, 4
    s_cbranch_scc0 {K}_compute""")
    helper(a, K)
    a(f"{K}_compute:")
    compute(a, K)
def common_late(a):
    srd_tail(a, sWS, WS_SIZE)
    srd_tail(a, sOut, 2048 * 1152)
    srd_tail(a, sD, 256)
    srd_tail(a, sWo, 576 * 1152)
    a(f"""s_lshl_b32 s{sBH}, s{sPr}, 1
    s_add_u32 s{sBH}, s{sBH}, s{sHH}
    s_mul_i32 s{sKVg}, s{sBH}, {KVH}""")

FA = 32
def final_addr(a):
    a(f"""s_lshl_b32 s{sT3}, s{sW8}, 6
    v_add_u32 v1, s{sT3}, v0
    s_mul_i32 s{sT0}, s{sP3T}, {32*1152}
    s_mul_i32 s{sT1}, s{sP3C}, 288
    s_add_u32 s{sT0}, s{sT0}, s{sT1}""")
    for r in range(2):
        if r: a("v_add_u32 v1, 512, v1")
        a(f"""v_mul_u32_u24 v{FA+6}, 3641, v1
        v_lshrrev_b32 v{FA+6}, 16, v{FA+6}
        v_mul_u32_u24 v{FA+7}, 18, v{FA+6}
        v_sub_u32 v{FA+7}, v1, v{FA+7}
        v_mul_u32_u24 v{FA+r}, {RS}, v{FA+6}
        v_lshl_add_u32 v{FA+r}, v{FA+7}, 5, v{FA+r}
        v_add_u32 v{FA+4+r}, {4*PLANE}, v{FA+r}
        v_mul_u32_u24 v{FA+2+r}, 1152, v{FA+6}
        v_lshl_add_u32 v{FA+2+r}, v{FA+7}, 4, v{FA+2+r}""")
def final_reduce(a, K, SVr):
    def reads(r):
        b = 48 + 32 * r
        for w in range(4):
            for hf in range(2):
                if w < 3: a(f"ds_read_b128 {vr(b+8*w+4*hf,4)}, v{FA+r} offset:{w*PLANE + 16*hf}")
                else: a(f"ds_read_b128 {vr(b+8*w+4*hf,4)}, v{FA+4+r} offset:{16*hf}")
    def finish(r, extra):
        b = 48 + 32 * r
        a(f"s_waitcnt lgkmcnt({4+extra})")
        for i in range(0, 8, 2): a(f"v_pk_add_f32 {vr(b+i,2)}, {vr(b+i,2)}, {vr(b+8+i,2)}")
        a(f"s_waitcnt lgkmcnt({extra})")
        for i in range(0, 8, 2): a(f"v_pk_add_f32 {vr(b+16+i,2)}, {vr(b+16+i,2)}, {vr(b+24+i,2)}")
        for i in range(0, 8, 2): a(f"v_pk_add_f32 {vr(b+i,2)}, {vr(b+i,2)}, {vr(b+16+i,2)}")
        for i in range(4): a(f"v_cvt_pk_bf16_f32 v{b+8+i}, v{b+2*i}, v{b+2*i+1}")
        a(f"buffer_store_dwordx4 {vr(b+8,4)}, v{FA+2+r}, s[{sOut}:{sOut+3}], s{sT0} offen")
    def fin():
        if OPT["stamp"]:
            a("s_waitcnt vmcnt(0)")
            stamp(a, 15, SVr)
            for k in range(6): a(f"v_writelane_b32 v{SVr}, s{96+k}, {20+k}")
            a(f"s_sub_u32 s80, 60000, s{sSpin}\nv_writelane_b32 v{SVr}, s80, 26")
            stamp_out(a, SVr)
    a(f"""s_cmp_eq_u32 s{sW8}, 0
    s_waitcnt lgkmcnt(0)
    s_barrier""")
    reads(0)
    a(f"s_cbranch_scc1 {K}_fin0")
    finish(0, 0)
    fin()
    a(f"""s_endpgm
    {K}_fin0:""")
    reads(1)
    finish(0, 8)
    finish(1, 0)
    fin()

def poll(a, lbl, ld, cond, slp):
    a(f"""s_mov_b32 s{sSpin}, 40000
    {lbl}:
    {ld}
    s_waitcnt vmcnt(0)""")
    cond()
    a(f"""s_cbranch_scc1 {lbl}_go
    s_sub_u32 s{sSpin}, s{sSpin}, 1
    s_cmp_eq_u32 s{sSpin}, 0
    s_cbranch_scc1 {lbl}_go
    s_sleep {slp}
    s_branch {lbl}
    {lbl}_go:""")

CL = [5, 6, 7]
def wo_lds_base(w): return (w >> 1) * RING + (w & 1) * 27648

def helper(a, K):
    RX = int(OPT["rx"])
    a(f"s_setprio {OPT.get('hprio', 2)}")
    vXs, vWs = [24, 25], [26, 27]
    vL16, vGr, vGw = 7, 8, 9
    t0, t1, t2, t3 = 10, 11, 12, 13
    vGv = 14
    WM = [sum(1 << L for L in range(64) if ((L & 15) ^ (((L >> 4) | (hi << 2)) << 1)) != 15) for hi in range(2)]
    sM0, sM1 = sEx, 64
    a(f"""s_lshr_b32 s{sRot}, s2, 7
    s_lshl_b32 s{sT1}, s{sT1}, 1
    s_add_u32 s{sRot}, s{sRot}, s{sT1}
    s_and_b32 s{sT1}, s2, 7
    s_add_u32 s{sRot}, s{sRot}, s{sT1}
    s_sub_u32 s{sT1}, s{sRot}, 9
    s_cselect_b32 s{sRot}, s{sRot}, s{sT1}""")
    order = []
    a(f"""v_lshrrev_b32 v{t0}, 3, v0
    v_mul_u32_u24 v{t0}, 1152, v{t0}
    v_and_b32 v{t1}, 7, v0
    v_lshrrev_b32 v{t2}, 4, v0
    v_xor_b32 v{t1}, v{t1}, v{t2}
    v_lshlrev_b32 v{t1}, 4, v{t1}
    v_xor_b32 v{t2}, 64, v{t1}
    v_add_u32 v{vXs[0]}, v{t0}, v{t1}
    v_add_u32 v{vXs[1]}, v{t0}, v{t2}
    v_add_u32 v{vXs[1]}, {8*1152-1024}, v{vXs[1]}
    s_lshl_b32 s{sXb}, s{sE}, 4
    s_lshl_b32 s{sT0}, s{sHH}, 3
    s_add_u32 s{sXb}, s{sXb}, s{sT0}
    s_add_u32 s{sXb}, s{sXb}, s{sTH}
    s_mul_i32 s{sXb}, s{sXb}, {16*1152}
    s_lshl_b32 s{sKo}, s{sRot}, 7
    s_lshl_b32 s{sRing}, s{sWv}, 11
    s_add_u32 s{sRing}, s{sRing}, {L_XR}
    s_add_u32 s{sRef}, s{sXb}, s{sKo}
    s_mov_b32 s{sXm0}, s{sRing}""")
    sTo = [56, 57, 58, 59]
    for tt in range(4):
        a(f"""s_xor_b32 s{sTo[tt]}, s{sTt}, {tt}
        s_mul_i32 s{sTo[tt]}, s{sTo[tt]}, {32*1152}""")
    xstate = [0]
    def xnext():
        a(f"""s_add_u32 s{sKo}, s{sKo}, 128
        s_cmp_ge_u32 s{sKo}, 1152
        s_cselect_b32 s{sKo}, 0, s{sKo}
        s_add_u32 s{sRef}, s{sXb}, s{sKo}""")
    def xdma(j):
        tt = j & 3
        if tt == 0 and j: xnext()
        a(f"""s_mov_b32 m0, s{sXm0}
        s_add_u32 s{sT0}, s{sRef}, s{sTo[tt]}
        buffer_load_dwordx4 v{vXs[0]}, s[{sX}:{sX+3}], s{sT0} offen lds
        buffer_load_dwordx4 v{vXs[1]}, s[{sX}:{sX+3}], s{sT0} offen offset:1024 lds
        s_add_u32 s{sXm0}, s{sXm0}, 8192
        s_cmp_ge_u32 s{sXm0}, {L_XR + RX*8192}
        s_cselect_b32 s{sXm0}, s{sRing}, s{sXm0}""")
    srd_tail(a, sX, 2048 * 1152)
    srd_tail(a, sW, 576 * 3456)
    srd_tail(a, sG, 1152)
    a("s_waitcnt lgkmcnt(0)")
    stamp(a, 0, SV)
    xdma(0)
    order += ["X0"] * 2
    a(f"""v_lshrrev_b32 v{t0}, 4, v0
    v_lshlrev_b32 v{t1}, 1, v{t0}
    v_and_b32 v{t2}, 15, v0
    v_xor_b32 v{t1}, v{t1}, v{t2}
    s_mov_b32 s{sT0}, {((1<<4)|(1<<9)|(1<<14)) << 3}
    v_mul_u32_u24 v{t0}, 3456, v{t0}""")
    for hi in range(2):
        if hi: a(f"v_xor_b32 v{t1}, 8, v{t1}")
        a(f"""v_mul_u32_u24 v{t2}, 52, v{t1}
        v_lshrrev_b32 v{t2}, 8, v{t2}
        v_mul_u32_u24 v{t2}, {1152-80}, v{t2}
        v_lshl_add_u32 v{t2}, v{t1}, 4, v{t2}
        v_lshrrev_b32 v{t3}, v{t1}, s{sT0}
        v_and_b32 v{t3}, 8, v{t3}
        v_sub_u32 v{t2}, v{t2}, v{t3}
        v_add_u32 v{vWs[hi]}, v{t0}, v{t2}""")
    a(f"""v_lshlrev_b32 v{vL16}, 4, v0
    s_mul_i32 s{sT0}, s{sWv}, {16*3456}
    s_and_b32 s{sT1}, s{sPr}, 15
    s_mul_i32 s{sT1}, s{sT1}, 72
    s_add_u32 s{sWsrc}, s{sT0}, s{sT1}
    s_mul_i32 s{sWk}, s{sRot}, {64*3456}
    s_add_u32 s{sWcnt}, s{sWsrc}, s{sWk}
    s_lshl_b32 s{sWm0}, s{sWv}, 12
    s_lshl_b32 s{sT2}, s{sWv}, 11
    s_add_u32 s{sT2}, s{sT2}, {L_GT}
    s_mov_b32 s{sM0}, {WM[0] & 0xffffffff}
    s_mov_b32 s{sM0+1}, {WM[0] >> 32}
    s_mov_b32 s{sM1}, {WM[1] & 0xffffffff}
    s_mov_b32 s{sM1+1}, {WM[1] >> 32}""")
    def wdma2(hi):
        m = (sM0, sM1)[hi]
        a(f"""s_add_u32 m0, s{sWm0}, {L_WR + hi*2048}
        s_add_u32 s{sT0}, s{sWcnt}, {hi*8*3456}
        s_add_u32 s{sT1}, s{sWcnt}, {hi*8*3456 + 4*3456 - 1024}
        s_mov_b64 exec, s[{m}:{m+1}]
        buffer_load_dwordx4 v{vWs[hi]}, s[{sW}:{sW+3}], s{sT0} offen lds
        buffer_load_dwordx4 v{vWs[hi]}, s[{sW}:{sW+3}], s{sT1} offen offset:1024 lds
        s_mov_b64 exec, -1""")
    def wnext():
        a(f"""s_add_u32 s{sWk}, s{sWk}, {64*3456}
        s_cmp_ge_u32 s{sWk}, {576*3456}
        s_cselect_b32 s{sWk}, 0, s{sWk}
        s_add_u32 s{sWcnt}, s{sWsrc}, s{sWk}
        s_add_u32 s{sWm0}, s{sWm0}, {WSL}
        s_sub_u32 s{sT0}, s{sWm0}, {RW*WSL}
        s_cmp_ge_u32 s{sWm0}, {RW*WSL}
        s_cselect_b32 s{sWm0}, s{sT0}, s{sWm0}""")
    a(f"""s_mov_b32 m0, s{sT2}
    s_nop 0
    buffer_load_dwordx4 v{vL16}, s[{sG}:{sG+3}], 0 offen lds
    s_mov_b64 exec, 0xff
    buffer_load_dwordx4 v{vL16}, s[{sG}:{sG+3}], 0 offen offset:1024 lds
    s_mov_b64 exec, -1""")
    order += ["G"] * 2
    wdma2(0); wdma2(1)
    order += ["W0"] * 4
    wnext()
    xdma(1)
    order += ["X1"] * 2
    stamp(a, 16, SV)
    common_late(a)
    a(f"""s_lshl_b32 s{sT0}, s{sWv}, 5
    s_add_u32 s{sT0}, s{sT0}, s{sT2}
    v_lshl_add_u32 v{vGr}, v0, 1, s{sT0}
    v_and_b32 v{t1}, 3, v0
    v_lshlrev_b32 v{t1}, 1, v{t1}
    v_and_b32 v{t2}, 8, v0
    v_or_b32 v{t1}, v{t1}, v{t2}
    v_xor_b32 v{t1}, 15, v{t1}
    v_lshlrev_b32 v{t1}, 4, v{t1}
    v_lshl_add_u32 v{t1}, v0, 8, v{t1}
    s_lshl_b32 s{sGk}, s{sRot}, 7
    v_mov_b32 v{t0}, {L_SYNC}
    v_mov_b32 v20, 0
    v_mov_b32 v21, 0
    v_mov_b32 v22, 0
    v_mov_b32 v23, 0
    ds_write_b128 v{t0}, v[20:23]
    ds_write_b128 v{t0}, v[20:23] offset:16
    ds_write_b128 v{t0}, v[20:23] offset:32""")
    def gate(slotreg):
        a(f"""v_add_u32 v{t0}, s{sGk}, v{vGr}
        s_mov_b64 exec, 0xffff
        ds_read_u16 v{vGv}, v{t0}
        v_add_u32 v{t0}, s{slotreg}, v{t1}
        s_add_u32 s{sGk}, s{sGk}, 128
        s_cmp_ge_u32 s{sGk}, 1152
        s_cselect_b32 s{sGk}, 0, s{sGk}
        s_waitcnt lgkmcnt(0)
        ds_write2_b32 v{t0}, v{vGv}, v{vGv} offset0:0 offset1:1
        s_mov_b64 exec, -1""")
    vWos, vWos2, vPub, vC100, vPk, vA4, vSn = 28, 29, 30, 31, [76, 77, 78], 79, 80
    vP, vPa, vSy, vOne, vFa = 20, 17, 18, 19, 16
    vOm, vOt, vWm, vWt, vRd = [2, 252], 3, 4, 5, 6
    vVa3, vSy3 = [248, 253], 251
    HWB, HAC, HOF = 8, 188, 228
    u0, u1, u2, u3 = 84, 85, 86, 87
    a(f"""v_mul_u32_u24 v{u0}, 57, v0
    v_lshrrev_b32 v{u0}, 10, v{u0}
    v_mul_u32_u24 v{u1}, 18, v{u0}
    v_sub_u32 v{u1}, v0, v{u1}
    v_lshlrev_b32 v{u1}, 4, v{u1}
    s_and_b32 s{sT0}, s{sE}, 1
    s_lshl_b32 s{sT0}, s{sT0}, 1
    s_mul_i32 s{sT1}, s{sWv}, 3
    s_add_u32 s{sT0}, s{sT0}, s{sT1}
    v_add_u32 v{u0}, s{sT0}, v{u0}
    v_mul_u32_u24 v{vWos}, 1152, v{u0}
    v_add_u32 v{vWos}, v{vWos}, v{u1}
    v_cmp_le_u32 vcc, 6, v{u0}
    v_add_u32 v{u2}, {12*1152}, v{vWos}
    v_subrev_u32 v{u3}, {6*1152}, v{vWos}
    v_cndmask_b32 v{vWos2}, v{u2}, v{u3}, vcc
    s_mul_i32 s{sT0}, s{sHH}, {RING}
    s_mul_i32 s{sT1}, s{sTH}, 5120
    s_add_u32 s{sT0}, s{sT0}, s{sT1}
    v_add_u32 v{vPub}, s{sT0}, v{vL16}
    s_lshl_b32 s{sT0}, s{sPr}, 2
    v_mov_b32 v{vPa}, s{sT0}
    s_lshl_b32 s{sT0}, s{sPr}, 12
    s_lshl_b32 s{sT3}, s{sHH}, 7
    s_add_u32 s{sT0}, s{sT0}, s{sT3}
    s_add_u32 s{sT0}, s{sT0}, {WS_F}
    v_and_b32 v{vFa}, 1, v0
    v_lshl_add_u32 v{vFa}, v{vFa}, 2, s{sT0}
    v_lshrrev_b32 v{u0}, 1, v0
    v_lshl_add_u32 v{vFa}, v{u0}, 8, v{vFa}
    v_mov_b32 v{vSy}, {L_SYNC}
    v_mov_b32 v{vOne}, 1
    v_mov_b32 v{vC100}, 0x100
    v_lshlrev_b32 v{vA4}, 2, v0
    v_bfe_u32 v{u0}, v0, 2, 3
    v_mul_u32_u24 v{u0}, 288, v{u0}
    v_and_b32 v{u1}, 3, v0
    v_lshlrev_b32 v{u1}, 3, v{u1}
    v_add_u32 v{u1}, {L_WO}, v{u1}
    v_and_b32 v{u2}, 32, v0
    v_add3_u32 v{vPk[1]}, v{u0}, v{u1}, v{u2}
    s_lshl_b32 s{sT0}, s{sWv}, 6
    v_add_u32 v{vPk[0]}, s{sT0}, v{vPk[1]}
    v_bfe_u32 v{u0}, v0, 2, 2
    v_mul_u32_u24 v{u0}, 288, v{u0}
    v_lshrrev_b32 v{u2}, 4, v0
    v_lshlrev_b32 v{u2}, 5, v{u2}
    v_add3_u32 v{u0}, v{u0}, v{u1}, v{u2}
    s_lshl_b32 s{sT0}, s{sWv}, 7
    v_add_u32 v{vPk[2]}, s{sT0}, v{u0}""")
    for i in range(4): a(f"v_mov_b32 v{vSn+i}, {SENT}")
    p3_scal(a)
    p3_addr_w(a, vWm, vWt, u0, u1, u2)
    p3_addr_o(a, vOm, vOt, vRd, vVa3, vSy3, u0, u1, u2)
    p3_hint_addr(a, HOF)
    for i in range(40): a(f"v_mov_b32 v{HAC+i}, 0")
    a(f"""s_sub_u32 s{sT3}, s{sWm0}, {WSL}
    s_waitcnt vmcnt(6)""")
    stamp(a, 17, SV)
    gate(sT3); gate(sWm0)
    a("""s_waitcnt vmcnt(2) lgkmcnt(0)
    s_barrier""")
    stamp(a, 1, SV)
    xdma(2)
    wdma2(0); wdma2(1)
    wnext()
    order += ["X2"] * 2 + ["W1"] * 4
    for j in range(3, RX - 1):
        xdma(j); order += [f"X{j}"] * 2
    stamp(a, 18, SV)
    a(f"""s_mov_b32 s{sIt}, 0
    v_add_u32 v{t0}, s{sGk}, v{vGr}
    {K}_hl:""")
    for tt in (0, 2):
        a(f"""s_waitcnt vmcnt(@W{tt}@) lgkmcnt(0)
        s_barrier""")
        if OPT.get("prof"):
            a(f"""s_memtime s[82:83]
            s_lshl_b32 m0, s{sIt}, 1
            s_add_u32 m0, m0, {2 + (tt >> 1)}
            s_waitcnt lgkmcnt(0)
            v_writelane_b32 v{SV-8}, s82, m0""")
        if not OPT.get("noh"):
            def thr(k):
                if OPT.get("thr"):
                    a(f"""s_bitcmp1_b32 {STRAD}, s{sPr}
                    s_cbranch_scc1 {K}_th{tt}{k}
                    s_waitcnt vmcnt({OPT["thr"]})
                    {K}_th{tt}{k}:""")
            if tt == 0:
                a(f"ds_read_u16 v{vGv}, v{t0}")
            else:
                a(f"""s_mov_b64 exec, 0xffff
                ds_write2_b32 v{t2}, v{vGv}, v{vGv} offset0:0 offset1:1""")
            wdma2(tt >> 1)
            thr(0)
            xdma(tt + RX - 1)
            thr(1)
            xdma(tt + RX)
            if tt == 0:
                a(f"""v_add_u32 v{t2}, s{sWm0}, v{t1}
                s_add_u32 s{sGk}, s{sGk}, 128
                s_cmp_ge_u32 s{sGk}, 1152
                s_cselect_b32 s{sGk}, 0, s{sGk}
                v_add_u32 v{t0}, s{sGk}, v{vGr}""")
    wnext()
    a(f"""s_add_u32 s{sIt}, s{sIt}, 1
    s_cmp_lt_u32 s{sIt}, 7
    s_cbranch_scc1 {K}_hl""")
    need = {0: 99, 2: 99}
    for j in range(0, 36, 2):
        req = [f"X{min(j+2,35)}"]
        if j % 4 == 2 and j // 4 + 1 <= 8: req.append(f"W{j//4+1}")
        last = max(i for i, o in enumerate(order) if o in req)
        n_ = len(order) - 1 - last
        if j < 28:
            need[j % 4] = min(need[j % 4], n_)
            order += [f"W{j//4+2}"] * 2 + [f"X{j+RX-1}"] * 2 + [f"X{j+RX}"] * 2
        else:
            a(f"""s_waitcnt vmcnt({n_}) lgkmcnt(0)
            s_barrier""")
            for jj in (j + RX - 1, j + RX):
                if jj <= 35:
                    xdma(jj); order += [f"X{jj}"] * 2
    for i in (0, 2): a.l = [x.replace(f"@W{i}@", str(need[i])) for x in a.l]
    stamp(a, 2, SV)
    if OPT.get("prof"):
        a(f"""v_readlane_b32 s80, v{SV+1}, 0
        v_readlane_b32 s81, v{SV+1}, 1
        v_readlane_b32 s82, v{SV+1}, 2
        s_nop 3
        v_writelane_b32 v{SV-8}, s80, 0
        v_writelane_b32 v{SV-8}, s81, 1
        v_writelane_b32 v{SV-8}, s82, 16
        s_lshl_b32 s80, s2, 3
        s_add_u32 s80, s80, s{sW8}
        s_lshl_b32 s80, s80, 8
        s_add_u32 s80, s80, {WS_STAMP + 0x80000}
        v_lshlrev_b32 v1, 2, v0
        buffer_store_dword v{SV-8}, v1, s[{sWS}:{sWS+3}], s80 offen""")
    sPH, sPC = sWsrc, sWm0
    sQ = sGk
    a(f"""s_lshl_b32 s{sPH}, s{sPr}, 1
    s_and_b32 s{sT0}, s{sE}, 1
    s_add_u32 s{sPH}, s{sPH}, s{sT0}
    s_lshr_b32 s{sPC}, s{sE}, 1
    s_and_b32 s{sT0}, s{sPH}, 31
    s_mul_i32 s{sT0}, s{sT0}, {18*1152}
    s_mul_i32 s{sT1}, s{sPC}, 288
    s_add_u32 s{sT0}, s{sT0}, s{sT1}
    s_mul_i32 s{sT1}, s{sWv}, 864
    s_add_u32 m0, s{sT1}, {L_WO}
    s_mov_b32 exec_hi, 0x003fffff
    buffer_load_dwordx4 v{vWos}, s[{sWo}:{sWo+3}], s{sT0} offen lds
    s_add_u32 m0, s{sT1}, {L_WO + 4*864}
    s_nop 0
    buffer_load_dwordx4 v{vWos2}, s[{sWo}:{sWo+3}], s{sT0} offen lds
    s_mov_b64 exec, 1
    buffer_load_dword v{vP+1}, v{vPa}, s[{sD}:{sD+3}], 0 offen sc1
    s_mov_b64 exec, -1
    s_mul_i32 s{sRing}, s{sHH}, {RING}
    s_mul_i32 s{sT2}, s{sTH}, 5120
    s_mul_i32 s{sT1}, s{sE}, {2*BLK}
    s_add_u32 s{sT1}, s{sT1}, s{sKVg}
    s_add_u32 s{sT1}, s{sT1}, s{sT2}
    s_mov_b32 s{sQ}, s{sTH}
    s_cmp_eq_u32 s{sTH}, 1
    s_cselect_b32 s{sM0}, 0xffff, -1
    s_cselect_b32 s{sM0+1}, 0, -1
    s_barrier""")
    t0 = vPub
    stamp(a, 3, SV)
    for i in range(5): a(f"ds_read_b128 {vr(32+4*i,4)}, v{t0} offset:{1024*i}")
    a(f"s_mov_b32 s{sXb}, s{sT1}")
    def publish(ph):
        for i in range(5 * ph, 5 * ph + 5):
            if i % 5 == 4: a(f"""s_add_u32 s{sXb}, s{sXb}, 4096
            s_mov_b64 exec, s[{sM0}:{sM0+1}]""")
            if ph == 0: a(f"s_waitcnt lgkmcnt({4-i})")
            a(f"buffer_store_dwordx4 {vr(32+4*i,4)}, v{vL16}, s[{sWS}:{sWS+3}], s{sXb} offen offset:{1024*((i%5)%4)} sc1")
            if i % 5 == 4: a(f"""s_mov_b64 exec, -1
            s_add_u32 s{sXb}, s{sXb}, {BLK-4096}""")
    publish(0)
    a("s_barrier")
    for i in range(5, 10): a(f"ds_read_b128 {vr(32+4*i,4)}, v{t0} offset:{BLK + 1024*(i-5)}")
    def arrive(word, vm=0):
        a(f"""s_mov_b64 exec, 1
        s_waitcnt vmcnt({vm})
        ds_add_rtn_u32 v{vP}, v{vSy}, v{vOne} offset:{4*word}
        s_waitcnt lgkmcnt(0)
        v_readfirstlane_b32 s{sT1}, v{vP}
        s_mov_b64 exec, -1
        s_cmp_eq_u32 s{sT1}, 3""")
    def lds_wait(lbl, word):
        a(f"""s_mov_b32 s{sSpin}, 400000
        {lbl}:
        ds_read_b32 v{vP}, v{vSy} offset:{4*word}
        s_waitcnt lgkmcnt(0)
        v_readfirstlane_b32 s{sT1}, v{vP}
        s_cmp_lg_u32 s{sT1}, 0
        s_cbranch_scc1 {lbl}_go
        s_sub_u32 s{sSpin}, s{sSpin}, 1
        s_cmp_eq_u32 s{sSpin}, 0
        s_cbranch_scc1 {lbl}_go
        s_sleep 6
        s_branch {lbl}
        {lbl}_go:""")
    def flag(off, vm):
        a(f"""s_lshl_b32 s{sT0}, s{sE}, 8
        s_lshl_b32 s{sT1}, s{sTH}, 2
        s_add_u32 s{sT0}, s{sT0}, s{sT1}
        s_mov_b64 exec, 1
        s_waitcnt vmcnt({vm})
        buffer_store_dword v{vOne}, v{vFa}, s[{sWS}:{sWS+3}], s{sT0} offen offset:{off} sc1
        s_mov_b64 exec, -1""")
    flag(0, 0)
    stamp(a, 4, SV)
    def rst_ok(r):
        a(f"""v_readfirstlane_b32 s{sT0}, v{r}
        s_and_b32 s{sT0}, s{sT0}, 0xff
        s_cmp_ge_u32 s{sT0}, 8""")
    def kv_ready():
        a(f"""v_cmp_eq_u32 vcc, 1, v{vP}
        s_nop 1
        s_cmp_eq_u32 vcc_lo, 0xffff""")
    a("s_mov_b64 exec, 1")
    rst_ok(vP + 1)
    a(f"s_cbranch_scc1 {K}_pl0_go")
    poll(a, f"{K}_pl0", f"buffer_load_dword v{vP}, v{vPa}, s[{sD}:{sD+3}], 0 offen sc1", lambda: rst_ok(vP), 8)
    a(f"""s_add_u32 s{sT2}, s{sTH}, 1
    s_xor_b32 s{sT2}, s{sT2}, s{sE}
    s_lshl_b32 s{sT2}, s{sT2}, 8
    s_mov_b64 exec, 3
    s_mov_b32 s{sSpin}, 40000
    buffer_load_dword v{vP}, v{vFa}, s[{sWS}:{sWS+3}], s{sT2} offen sc1
    s_sleep {OPT.get("fslp", 4)}
    buffer_load_dword v{vP+1}, v{vFa}, s[{sWS}:{sWS+3}], s{sT2} offen sc1
    s_sleep {OPT.get("fslp", 4)}
    {K}_pl1:""")
    for r_ in range(3):
        a(f"""buffer_load_dword v{vP+(r_+2)%3}, v{vFa}, s[{sWS}:{sWS+3}], s{sT2} offen sc1
        s_waitcnt vmcnt(2)
        v_cmp_eq_u32 vcc, 1, v{vP+r_}
        s_nop 1
        s_cmp_eq_u32 vcc_lo, 3
        s_cbranch_scc1 {K}_kgo""")
    a(f"""s_sub_u32 s{sSpin}, s{sSpin}, 1
    s_cmp_lg_u32 s{sSpin}, 0
    s_cbranch_scc1 {K}_pl1
    {K}_kgo:
    s_mov_b64 exec, -1""")
    stamp(a, 5, SV)
    def ldblock():
        a(f"s_call_b64 s[{sRet}:{sRet+1}], {K}_ldblk")
    ldblock()
    a("s_waitcnt lgkmcnt(0)")
    publish(1)
    a("s_waitcnt vmcnt(5)")
    stamp(a, 6, SV)
    a("s_barrier")
    flag(2048, 0)
    a("s_mov_b64 exec, 0xffff")
    poll(a, f"{K}_pl1a", f"buffer_load_dword v{vP}, v{vFa}, s[{sWS}:{sWS+3}], 0 offen sc1", kv_ready, 2)
    a("s_mov_b64 exec, -1")
    ldblock(); ldblock()
    a("s_waitcnt vmcnt(0)")
    stamp(a, 7, SV)
    a("s_barrier")
    a("s_mov_b64 exec, 0xffff")
    poll(a, f"{K}_pl1b", f"buffer_load_dword v{vP}, v{vFa}, s[{sWS}:{sWS+3}], 0 offen offset:2048 sc1", kv_ready, 2)
    a("s_mov_b64 exec, -1")
    ldblock(); ldblock()
    a(f"""ds_read_b64_tr_b16 {vr(64,2)}, v{vPk[0]}
    ds_read_b64_tr_b16 {vr(66,2)}, v{vPk[0]} offset:2304
    ds_read_b64_tr_b16 {vr(68,2)}, v{vPk[1]} offset:256
    ds_read_b64_tr_b16 {vr(70,2)}, v{vPk[1]} offset:{256+2304}
    ds_read_b64_tr_b16 {vr(72,2)}, v{vPk[2]} offset:{16*288-128}
    s_lshl_b32 s{sT0}, s{sPC}, 6
    s_add_u32 s{sT0}, s{sT0}, s{sPH}
    s_mul_i32 s{sT0}, s{sT0}, 4608
    s_add_u32 s{sT0}, s{sT0}, {WS_WOM}
    s_lshl_b32 s{sT1}, s{sWv}, 10
    s_add_u32 s{sT1}, s{sT1}, s{sT0}
    s_lshl_b32 s{sT2}, s{sPC}, 4
    s_lshr_b32 s{sT3}, s{sPH}, 2
    s_add_u32 s{sT2}, s{sT2}, s{sT3}
    s_mul_i32 s{sT2}, s{sT2}, 2304
    s_and_b32 s{sT3}, s{sPH}, 3
    s_lshl_b32 s{sT3}, s{sT3}, 2
    s_add_u32 s{sT2}, s{sT2}, s{sT3}
    s_lshl_b32 s{sT3}, s{sWv}, 10
    s_add_u32 s{sT2}, s{sT2}, s{sT3}
    s_add_u32 s{sT2}, s{sT2}, {WS_WOT - 1024}
    s_waitcnt lgkmcnt(0)
    buffer_store_dwordx4 {vr(64,4)}, v{vL16}, s[{sWS}:{sWS+3}], s{sT1} offen sc1
    s_cmp_eq_u32 s{sWv}, 0
    s_cbranch_scc0 {K}_wo_tail
    s_mov_b32 exec_hi, 0
    s_add_u32 s{sT3}, s{sT0}, 4096
    buffer_store_dwordx4 {vr(68,4)}, v{vL16}, s[{sWS}:{sWS+3}], s{sT3} offen sc1
    s_branch {K}_wo_done
    {K}_wo_tail:
    s_cmp_eq_u32 s{sWv}, 3
    s_cselect_b32 exec_lo, 0xffff, -1
    s_cselect_b32 exec_hi, 0, -1
    buffer_store_dword v72, v{vL16}, s[{sWS}:{sWS+3}], s{sT2} offen sc1
    {K}_wo_done:
    s_mov_b64 exec, -1""")
    a(f"""s_lshl_b32 s{sT1}, s{sE}, 1
    s_add_u32 s{sT1}, s{sT1}, s{sTH}
    s_lshl_b32 s{sT1}, s{sT1}, 8
    s_add_u32 s{sT1}, s{sT1}, s{sBH}
    s_mul_i32 s{sT1}, s{sT1}, 1152
    s_add_u32 s{sT1}, s{sT1}, {WS_O}""")
    for x in range(4):
        a(f"""buffer_store_dwordx4 {vr(vSn,4)}, v{vL16}, s[{sWS}:{sWS+3}], s{sT1} offen sc1
        s_mov_b64 exec, 0xff
        buffer_store_dwordx4 {vr(vSn,4)}, v{vL16}, s[{sWS}:{sWS+3}], s{sT1} offen offset:1024 sc1
        s_mov_b64 exec, -1
        s_add_u32 s{sT1}, s{sT1}, {64*1152}""")
    arrive(1)
    a(f"""s_cbranch_scc0 {K}_sg2
    s_mov_b64 exec, 1
    buffer_atomic_add v{vC100}, v{vPa}, s[{sD}:{sD+3}], 0 offen
    s_mov_b64 exec, -1
    {K}_sg2:""")
    a("s_barrier")
    ldblock(); ldblock()
    stamp(a, 12, SV)
    a(f"""s_cmp_eq_u32 s{sWv}, 0
    s_cbranch_scc0 {K}_gw
    s_mov_b32 exec_hi, 0""")
    def all_init():
        a(f"""v_bfe_u32 v{vP}, v{vP}, 8, 8
        v_cmp_le_u32 vcc, 8, v{vP}
        s_nop 1
        s_cmp_eq_u32 vcc_lo, -1""")
    poll(a, f"{K}_pl2", f"buffer_load_dword v{vP}, v{vA4}, s[{sD}:{sD+3}], 0 offen sc1", all_init, 32)
    a(f"""ds_write_b32 v{vSy}, v{vOne} offset:12
    s_mov_b64 exec, -1
    s_branch {K}_ggo
    {K}_gw:""")
    lds_wait(f"{K}_lw2", 3)
    a(f"{K}_ggo:")
    HC = [0, 1, 2, 3, 4]
    hreg = lambda s, ct: HWB + 4 * (5 * s + ct)
    p3_wo_loads(a, HC, hreg, vWm, vWt)
    a("s_waitcnt vmcnt(45)")
    stamp(a, 8, SV)
    a("s_barrier")
    if not OPT.get('x_nowarm'): p3_wo_loads(a, [8], lambda s, ct: HOF + 4 * (s % 4), vWm, vWt)
    a(f"""s_mul_i32 s{sT0}, s{sTH}, 27648
    s_add_u32 s{sT0}, s{sT0}, s{sRing}
    s_barrier""")
    for s in range(9 if not OPT.get('x_nostage') else 0):
        for i, ct in enumerate(CL):
            n = 3 * s + i
            if s < 8:
                a(f"""s_add_u32 m0, s{sT0}, {1024*n}
                s_add_u32 s{sT3}, s{sGW[s>>1]}, {2*(s&1)*4608 + 512*ct}
                buffer_load_dwordx4 v{vWm}, s[{sWS}:{sWS+3}], s{sT3} offen sc1 lds""")
            else:
                a(f"""s_add_u32 m0, s{sT0}, {1024*n}
                s_add_u32 s{sT3}, s{sWtb}, {256*ct}
                buffer_load_dwordx4 v{vWt}, s[{sWS}:{sWS+3}], s{sT3} offen sc1 lds""")
    a(f"""s_mul_i32 s{sT0}, s{sP3T}, {32*1152}
    buffer_load_dword v1, v{vL16}, s[{sOut}:{sOut+3}], s{sT0} offen
    s_waitcnt vmcnt(0)""")
    stamp(a, 9, SV)
    a("s_barrier")
    stamp(a, 10, SV)
    p3_helper(a, HC, hreg, HAC, HOF, vOm, vOt, vRd, vL16, vVa3, vSy3, int(OPT.get("hslp", 1)))
    stamp(a, 11, SV)
    if OPT["stamp"]: a(f"v_mov_b32 v30, v{SV}\nv_mov_b32 v31, v{SV+1}")
    a(f"s_branch {K}_final")
    a(f"""{K}_ldblk:
    s_add_u32 s{sQ}, s{sQ}, 2
    s_cmp_ge_u32 s{sQ}, 9
    s_cselect_b32 s{sT0}, 0, 7
    s_cselect_b32 s{sT2}, 1, 0
    s_add_u32 s{sT0}, s{sT0}, s{sQ}
    s_and_b32 s{sT0}, s{sT0}, 7
    s_xor_b32 s{sT0}, s{sT0}, s{sE}
    s_lshl_b32 s{sT0}, s{sT0}, 1
    s_add_u32 s{sT0}, s{sT0}, s{sT2}
    s_mul_i32 s{sT1}, s{sT0}, {BLK}
    s_add_u32 s{sT1}, s{sT1}, s{sKVg}
    s_and_b32 s{sT0}, s{sQ}, 7
    s_mul_i32 s{sT0}, s{sT0}, {BLK}
    s_add_u32 s{sT0}, s{sT0}, s{sRing}""")
    for i in range(10):
        if i % 4 == 0:
            a(f"""s_add_u32 m0, s{sT0}, {1024*i}
            s_add_u32 s{sT2}, s{sT1}, {1024*i}""")
        if i == 9: a("s_mov_b64 exec, 0xffff")
        a(f"buffer_load_dwordx4 v{vL16}, s[{sWS}:{sWS+3}], s{sT2} offen offset:{1024*(i%4)} sc1 lds")
    a(f"""s_mov_b64 exec, -1
    s_setpc_b64 s[{sRet}:{sRet+1}]""")

def compute(a, K):
    RX = int(OPT["rx"])
    common_late(a)
    a("s_waitcnt lgkmcnt(0)")
    stamp(a, 0, 30)
    vXr = [2, 3, 20, 21]
    vWc = [4, 5, 9, 1]
    t0, t1, t2, t3, t4, t5 = 64, 65, 66, 67, 68, 69
    WF = 32
    XF = [96, 112]
    ACC = 128
    def reset_flags():
        a(f"""s_cmp_eq_u32 s{sWv}, 0
        s_cselect_b32 s{sCnt}, {OPT.get("rstit", 4)}, 100
        s_cbranch_scc0 {K}_norst
        s_lshl_b32 s{sT0}, s{sPr}, 12
        s_lshl_b32 s{sT1}, s{sE}, 8
        s_add_u32 s{sT0}, s{sT0}, s{sT1}
        s_add_u32 s{sT0}, s{sT0}, {WS_F}
        v_lshlrev_b32 v75, 7, v0
        v_mov_b32 v76, 0
        v_mov_b32 v77, 0
        s_mov_b64 exec, 3
        buffer_store_dwordx2 v[76:77], v75, s[{sWS}:{sWS+3}], s{sT0} offen sc1
        buffer_store_dwordx2 v[76:77], v75, s[{sWS}:{sWS+3}], s{sT0} offen offset:2048 sc1""")
        if OPT.get("touch", "1") == "1":
            a(f"""s_mov_b64 exec, 1
            buffer_load_dword v78, v75, s[{sWS}:{sWS+3}], s{sKVg} offen
            s_add_u32 s{sT0}, s{sKVg}, {2*KVH-128}
            buffer_load_dword v79, v75, s[{sWS}:{sWS+3}], s{sT0} offen""")
        a(f"""s_mov_b64 exec, -1
        {K}_norst:""")
    a(f"v_mov_b32 v{ACC}, 0")
    if OPT.get("rstpos", "late") == "start": reset_flags()
    a(f"""v_and_b32 v{t0}, 15, v0
    v_lshrrev_b32 v{t1}, 4, v0
    v_bfe_u32 v{t2}, v0, 1, 3
    v_xor_b32 v{t2}, v{t2}, v{t1}
    v_lshlrev_b32 v{t2}, 4, v{t2}
    v_lshlrev_b32 v{t3}, 7, v{t0}
    s_lshl_b32 s{sT0}, s{sTH}, 12
    s_lshl_b32 s{sT1}, s{sHH}, 11
    s_add_u32 s{sT0}, s{sT0}, s{sT1}
    s_add_u32 s{sT0}, s{sT0}, {L_XR}
    v_add_u32 v{t3}, s{sT0}, v{t3}
    v_add_u32 v{vXr[0]}, v{t3}, v{t2}
    v_xor_b32 v{t2}, 64, v{t2}
    v_add_u32 v{vXr[1]}, v{t3}, v{t2}
    v_xor_b32 v{vXr[2]}, 2048, v{vXr[0]}
    v_xor_b32 v{vXr[3]}, 2048, v{vXr[1]}
    v_bfe_u32 v{t2}, v0, 2, 2
    v_lshl_add_u32 v{t2}, v{t1}, 3, v{t2}
    v_lshlrev_b32 v{t2}, 8, v{t2}
    v_bfe_u32 v{t4}, v0, 2, 3
    v_lshlrev_b32 v{t4}, 5, v{t4}
    v_and_b32 v{t3}, 3, v0
    v_lshlrev_b32 v{t3}, 3, v{t3}
    s_mul_i32 s{sT1}, s{sHH}, 40
    s_mov_b32 s{sT0}, {192 | (112 << 8) | (32 << 16) | (240 << 24)}
    v_lshrrev_b32 v{t5}, v{t3}, s{sT0}
    v_and_b32 v{t5}, 0xff, v{t5}
    v_xor_b32 v{t5}, v{t5}, v{t4}
    v_add_u32 v{vWc[3]}, v{t2}, v{t5}
    v_add_u32 v{t3}, s{sT1}, v{t3}
    v_lshrrev_b32 v{t5}, 3, v{t3}
    v_and_b32 v{t5}, 8, v{t5}
    v_add_u32 v{t3}, v{t3}, v{t5}""")
    for ct, off in enumerate((80, 0, 160)):
        a(f"""v_add_u32 v{t5}, {off}, v{t3}
        v_xor_b32 v{t5}, v{t5}, v{t4}
        v_add_u32 v{vWc[ct]}, v{t2}, v{t5}""")
    for i in range(1, 128):
        if i % 32 < 28: a(f"v_mov_b32 v{ACC+i}, 0")
    vKa, vTa, vVa, vIdx = 6, 7, 8, 10
    vKw, vQw, vVw, vMul, vSq, vSqh = 11, 12, 13, 24, 25, 19
    vSt, vStt, vWm3, vWt, vCp, vOnes, vQr = 14, 15, 16, 17, 18, 22, 23
    vM0, vDs, vDt, vDe, vDh = 70, 71, 72, 73, 74
    MA = lambda tt, i: ACC + 32 * tt + 28 + i
    sBlk, sScr = sXb, sKo
    a(f"""s_mul_i32 s{sRing}, s{sHH}, {RING}
    s_mul_i32 s{sBlk}, s{sTH}, {BLK}
    s_add_u32 s{sBlk}, s{sBlk}, s{sRing}
    s_mul_i32 s{sScr}, s{sWv}, 5120
    s_add_u32 s{sScr}, s{sScr}, {L_SCR}
    v_lshrrev_b32 v{t2}, 2, v{t0}
    v_and_b32 v{t3}, 3, v0
    v_lshl_add_u32 v{t4}, v{t2}, 3, v{t3}
    v_lshrrev_b32 v{t5}, 5, v0
    v_lshlrev_b32 v{t5}, 9, v{t5}
    v_and_b32 v{vQw}, 16, v0
    v_lshrrev_b32 v{vQw}, 1, v{vQw}
    v_add_u32 v{t5}, v{t5}, v{vQw}
    v_lshl_add_u32 v{vKw}, v{t4}, 4, v{t5}
    s_lshl_b32 s{sT0}, s{sTH}, 11
    s_add_u32 s{sT0}, s{sT0}, s{sRing}
    v_add_u32 v{vKw}, s{sT0}, v{vKw}
    v_lshl_add_u32 v{vQw}, v{t0}, 4, v{t5}
    v_add_u32 v{vQw}, s{sScr}, v{vQw}
    v_mul_u32_u24 v{vVw}, 304, v{t1}
    v_lshl_add_u32 v{vVw}, v{t0}, 4, v{vVw}
    s_mul_i32 s{sT0}, s{sTH}, 2432
    s_add_u32 s{sT0}, s{sT0}, s{sRing}
    v_add_u32 v{vVw}, s{sT0}, v{vVw}""")
    a(f"""s_mul_i32 s{sT2}, s{sTH}, 2432
    s_mul_i32 s{sT3}, s{sTH}, 5120
    v_mul_u32_u24 v{vM0}, 304, v{t2}
    v_lshl_add_u32 v{vM0}, v{t3}, 1, v{vM0}
    s_add_u32 s{sT0}, s{sT2}, {4608+256}
    v_add_u32 v{vM0}, s{sT0}, v{vM0}
    s_lshl_b32 s{sT0}, s{sTH}, 3
    s_add_u32 s{sT0}, s{sT0}, 4096
    s_add_u32 s{sT1}, s{sT3}, {L_SCR+4096-1024}
    v_lshlrev_b32 v{t5}, 9, v{t1}
    v_add_u32 v{t5}, s{sT1}, v{t5}
    v_mov_b32 v{vDh}, s{sT0}
    v_cmp_eq_u32 vcc, 1, v{t1}
    v_mov_b32 v{vDs}, 64
    v_mov_b32 v{vDt}, 4
    v_cndmask_b32 v{t5}, v{t5}, v{vDh}, vcc
    v_lshl_add_u32 v{t5}, v{t4}, 4, v{t5}
    v_cmp_eq_u32 vcc, 0, v{t1}
    v_mov_b32 v{vDe}, 2
    v_mov_b32 v{t3}, 1216
    v_cndmask_b32 v{vM0}, v{t5}, v{vM0}, vcc
    v_cndmask_b32 v{vDs}, v{vDs}, 8, vcc
    v_cndmask_b32 v{vDt}, v{vDt}, v{t3}, vcc
    v_cndmask_b32 v{vDe}, v{vDe}, 16, vcc
    v_cmp_gt_u32 vcc, 2, v{t1}
    v_mov_b32 v{vDh}, {2*5120}
    v_mov_b32 v{t3}, {RING}
    v_cndmask_b32 v{vDh}, v{vDh}, v{t3}, vcc
    v_mov_b32 v{t5}, 8
    v_mov_b32 v{t3}, {BLK}
    v_cndmask_b32 v{t5}, v{t5}, v{t3}, vcc
    v_mul_u32_u24 v{t3}, s{sHH}, v{vDs}
    v_add_u32 v{MA(0,0)}, v{vM0}, v{t3}
    v_sub_u32 v{t3}, v{vDs}, v{t3}
    v_add3_u32 v{MA(0,2)}, v{vM0}, v{t3}, v{vDh}
    v_add_u32 v{MA(0,1)}, v{MA(0,0)}, v{vDe}
    v_add_u32 v{MA(0,3)}, v{MA(0,2)}, v{vDe}""")
    for i in range(4):
        a(f"""v_add_u32 v{MA(1,i)}, v{MA(0,i)}, v{vDt}
        v_add_u32 v{MA(2,i)}, v{MA(0,i)}, v{t5}
        v_add_u32 v{MA(3,i)}, v{MA(1,i)}, v{t5}""")
    a(f"""v_cmp_eq_u32 vcc, 2, v{t1}
    v_mov_b32 v{vMul}, 1.0
    v_mov_b32 v{t2}, {f32(CSCALE)}
    v_cndmask_b32 v{vMul}, v{vMul}, v{t2}, vcc""")
    a(f"""v_and_b32 v{t2}, 16, v0
    v_lshrrev_b32 v{t2}, 2, v{t2}
    v_add_u32 v{t2}, v{t2}, v{t4}
    v_lshlrev_b32 v{vSq}, 4, v{t2}
    s_add_u32 s{sT1}, s{sScr}, 4096
    v_add_u32 v{vSq}, s{sT1}, v{vSq}
    v_and_b32 v{t0}, 31, v0
    v_lshrrev_b32 v{t1}, 5, v0
    v_mul_u32_u24 v{t3}, 304, v{t1}
    v_lshl_add_u32 v{t3}, v{t0}, 4, v{t3}
    v_add_u32 v{t3}, s{sRing}, v{t3}
    v_cmp_gt_u32 vcc, 19, v{t0}
    v_mov_b32 v{vVa}, {LDS_BYTES}
    v_lshl_add_u32 v{vKa}, v0, 4, s{sRing}
    v_cndmask_b32 v{vVa}, v{vVa}, v{t3}, vcc
    v_lshl_add_u32 v{vTa}, v{t0}, 4, s{sRing}
    v_mov_b32 v{vIdx}, 0xdddddddd
    v_lshl_add_u32 v{vSqh}, v{t1}, 2, v{vSq}
    s_mov_b32 s{sWsrc}, 0
    s_mov_b32 s{sXm0}, 0
    v_mul_u32_u24 v{vOnes}, 304, v0
    v_add_u32 v{vOnes}, s{sBlk}, v{vOnes}
    v_lshl_add_u32 v{vQr}, v0, 4, s{sScr}
    s_mul_i32 s{sT0}, s{sTH}, 27648
    s_add_u32 s{sT0}, s{sT0}, s{sRing}
    v_lshl_add_u32 v{vCp}, v0, 4, s{sT0}
    s_lshl_b32 s{sT0}, s{sHH}, 4
    v_xor_b32 v{t2}, s{sT0}, v0
    v_lshlrev_b32 v{vSt}, 4, v{t2}
    s_and_b32 s{sT0}, s{sTt}, 1
    v_xor_b32 v{vStt}, s{sT0}, v{t1}
    v_mul_u32_u24 v{vStt}, {64*1152}, v{vStt}
    v_and_b32 v{t2}, 31, v{t2}
    v_lshl_add_u32 v{vStt}, v{t2}, 2, v{vStt}
    s_lshl_b32 s{sT1}, s{sE}, 1
    s_add_u32 s{sT1}, s{sT1}, s{sTH}
    s_lshl_b32 s{sT1}, s{sT1}, 8
    s_add_u32 s{sT1}, s{sT1}, s{sBH}
    s_mul_i32 s{sT1}, s{sT1}, 1152
    s_add_u32 s{sRef}, s{sT1}, {WS_O}
    s_cmp_ge_u32 s{sPr}, 16
    s_mov_b32 s60, {f32(-LOG2E)}
    s_cselect_b32 s60, {f32(LOG2E)}, s60
    s_mov_b32 s61, {f32(2.0**-40)}
    s_mov_b32 s64, {f32(2.0**40) if not OPT['force_fb'] else f32(2.0**-39)}
    s_mov_b32 s65, {f32(CSCALE)}""")
    for x in range(4):
        a(f"""s_xor_b32 s{56+x}, s{sTt}, {x}
        s_mul_i32 s{56+x}, s{56+x}, {64*1152}
        s_add_u32 s{56+x}, s{56+x}, s{sRef}""")
    a("""s_min_u32 s4, s56, s57
    s_min_u32 s5, s58, s59""")
    p3_scal(a)
    p3_addr_w(a, vWm3, vWt, t0, t1, t2)
    coff = (48, 0, 96, 0)
    def wfrag(k2):
        r = []
        for ct in range(4):
            for hf in range(2):
                r.append(f"ds_read_b64_tr_b16 {vr(WF+16*k2+4*ct+2*hf,2)}, v{vWc[ct]} offset:{L_WR + (32*k2+4*hf)*256}")
        return r
    def xread(buf):
        r = []
        for k2 in range(2):
            for s in range(2):
                r.append(f"ds_read_b128 {vr(XF[buf]+8*k2+4*s,4)}, v{vXr[2*s+k2]}")
        return r
    xadv = [f"s_add_u32 s{sXm0}, s{sXm0}, 1", f"s_cmp_eq_u32 s{sXm0}, {RX}", f"s_cselect_b32 s{sXm0}, 0, s{sXm0}",
            f"s_cselect_b32 s{sT1}, s{sWk}, s{sWcnt}",
            ] + [f"v_add_u32 v{c}, s{sT1}, v{c}" for c in vXr]
    wadv = [f"s_add_u32 s{sWsrc}, s{sWsrc}, 1", f"s_cmp_eq_u32 s{sWsrc}, {RW}", f"s_cselect_b32 s{sWsrc}, 0, s{sWsrc}",
            f"s_cselect_b32 s{sT2}, s{sWm0}, s{sGk}",
            ] + [f"v_add_u32 v{c}, s{sT2}, v{c}" for c in vWc]
    if OPT.get('noadv'):
        xadv = [''] * 8; wadv = [''] * 8
    a(f"""s_mov_b32 s{sWk}, {(-(RX-1)*8192) & 0xffffffff}
    s_mov_b32 s{sWcnt}, 8192
    s_mov_b32 s{sWm0}, {(-(RW-1)*WSL) & 0xffffffff}
    s_mov_b32 s{sGk}, {WSL}""")
    if OPT.get("rstpos", "late") == "late": reset_flags()
    if OPT.get("pf9", "1") == "1":
        a(f"""s_lshr_b32 s{sT0}, s2, 5
        s_bfe_u32 s{sT1}, s2, {(2 << 16) | 3}
        s_cmp_eq_u32 s{sWv}, 0
        s_cbranch_scc1 {K}_pfx
        s_cmp_eq_u32 s{sWv}, 1
        s_cbranch_scc0 {K}_pfw
        s_lshl_b32 s{sT2}, s{sT1}, 1
        s_sub_u32 s{sT2}, s{sT2}, 1
        s_cselect_b32 s{sT2}, 8, s{sT2}
        s_lshl_b32 s{sT2}, s{sT2}, 7
        s_lshl_b32 s{sT3}, s{sE}, 3
        s_add_u32 s{sT3}, s{sT3}, s{sT0}
        s_mul_i32 s{sT3}, s{sT3}, {32*1152}
        s_add_u32 s{sT2}, s{sT2}, s{sT3}
        v_mul_u32_u24 v75, 1152, v0
        s_mov_b32 exec_hi, 0
        buffer_load_dword v76, v75, s[{sX}:{sX+3}], s{sT2} offen
        s_branch {K}_pfd
        {K}_pfw:
        s_sub_u32 s{sT2}, s{sT0}, 1
        s_cselect_b32 s{sT2}, 8, s{sT2}
        s_lshl_b32 s{sT2}, s{sT2}, 2
        s_add_u32 s{sT2}, s{sT2}, s{sT1}
        s_mul_i32 s{sT2}, s{sT2}, {16*3456}
        s_and_b32 s{sT3}, s{sPr}, 15
        s_mul_i32 s{sT3}, s{sT3}, 72
        s_add_u32 s{sT2}, s{sT2}, s{sT3}
        s_mul_i32 s{sT3}, s{sTH}, 68
        s_add_u32 s{sT2}, s{sT2}, s{sT3}
        v_mul_u32_u24 v75, 1152, v0
        s_mov_b32 exec_hi, 0xffff
        buffer_load_dword v76, v75, s[{sW}:{sW+3}], s{sT2} offen
        {K}_pfd:
        s_mov_b64 exec, -1
        {K}_pfx:""")
    a("s_barrier")
    stamp(a, 1, 30)
    if OPT.get("rstpos", "late") == "afterp": reset_flags()
    for m in xread(0) + xadv + wfrag(0) + wfrag(1): a(m)
    QM, QT = 32, 48
    KF, V0, V1, KT = [80, 84], [88, 92], [96, 100], [56, 60]
    vGl = 26
    TP = 108
    def epi(tt):
        tp = (64, 80)[tt % 2]
        r = []
        for s in range(2):
            b = ACC + 32 * tt + 16 * s
            k_, q_ = tp + 2 * s, tp + 4 + 2 * s
            r += f"""v_cvt_pk_bf16_f32 v{k_}, v{b}, v{b+1}
            v_cvt_pk_bf16_f32 v{k_+1}, v{b+2}, v{b+3}
            v_mul_f32 v{b+4}, s65, v{b+4}
            v_mul_f32 v{b+5}, s65, v{b+5}
            v_mul_f32 v{b+6}, s65, v{b+6}
            v_mul_f32 v{b+7}, s65, v{b+7}
            ds_write_b64 v{vKw}, {vr(k_,2)} offset:{(tt>>1)*BLK + (tt&1)*1024 + s*64}
            v_cvt_pk_bf16_f32 v{q_}, v{b+4}, v{b+5}
            v_cvt_pk_bf16_f32 v{q_+1}, v{b+6}, v{b+7}
            v_cvt_pk_bf16_f32 v{tp+8+2*s}, v{b+8}, v{b+9}
            v_cvt_pk_bf16_f32 v{tp+9+2*s}, v{b+10}, v{b+11}
            ds_write_b64 v{vQw}, {vr(q_,2)} offset:{tt*1024 + s*256}""".split("\n")
        b = ACC + 32 * tt
        r += f"""ds_write_b128 v{vVw}, {vr(tp+8,4)} offset:{4608 + (tt>>1)*BLK + (tt&1)*1216}
        v_mul_f32 v{b+12}, v{vMul}, v{b+12}
        v_mul_f32 v{b+13}, v{vMul}, v{b+13}
        v_mul_f32 v{b+14}, v{vMul}, v{b+14}
        v_mul_f32 v{b+15}, v{vMul}, v{b+15}
        v_cvt_pk_bf16_f32 v{tp+12}, v{b+12}, v{b+13}
        v_cvt_pk_bf16_f32 v{tp+13}, v{b+14}, v{b+15}
        ds_write_b16 v{MA(tt,0)}, v{tp+12}
        ds_write_b16_d16_hi v{MA(tt,1)}, v{tp+12}
        ds_write_b16 v{MA(tt,2)}, v{tp+13}
        ds_write_b16_d16_hi v{MA(tt,3)}, v{tp+13}""".split("\n")
        return r
    NM = 14
    def chunk(last):
        for tt in range(4):
            cur = XF[tt & 1]
            mf = []
            for k2 in range(2):
                for ct in range(4):
                    for s in range(2 if ct < 3 else 1):
                        d = ACC + 32 * tt + 16 * s + 4 * ct
                        w_, x_ = vr(WF + 16 * k2 + 4 * ct, 4), vr(cur + 8 * k2 + 4 * s, 4)
                        A_, B_ = (x_, w_) if ct == 2 else (w_, x_)
                        mf.append(f"v_mfma_f32_16x16x32_bf16 {vr(d,4)}, {A_}, {B_}, {vr(d,4)}")
            fill = {i: [] for i in range(-1, NM)}
            xr = xread((tt + 1) & 1)
            if tt == 0:
                fill[-1].append("s_waitcnt lgkmcnt(8)")
                for i in range(4): fill[i].append(xr[i])
                fill[6].append("s_waitcnt lgkmcnt(4)")
                for i in range(8): fill[(4, 5, 7, 8, 9, 10, 11, 12)[i]].append(xadv[i])
                if last:
                    for i in range(4): fill[i].append(f"v_mov_b32 v{92+i}, 0x3f803f80")
                    fill[13] += ["s_mov_b64 exec, 0xffff", f"ds_write_b128 v{vOnes}, v[92:95] offset:{4608+288}", "s_mov_b64 exec, -1"]
            elif last:
                if tt < 3:
                    for i in range(4): fill[i // 2].append(xr[i])
                    if tt == 1:
                        for i in range(8): fill[2 + i // 3].append(xadv[i])
                e = epi(tt - 1)
                st = (0, 5, 2, 1)[tt]
                per = -(-len(e) // (NM - st))
                for i, m in enumerate(e): fill[st + i // per].append(m)
            elif tt == 3:
                for i in range(4): fill[-1 + (i + 1) // 2].append(xr[i])
                w0, w1 = wfrag(0), wfrag(1)
                lastuse = (1, 3, 5, 6)
                for ct in range(4):
                    fill[lastuse[ct]] += [w0[2 * ct]]; fill[lastuse[ct] + 1] += [w0[2 * ct + 1]]
                    fill[7 + lastuse[ct]] += [w1[2 * ct]]; fill[min(NM - 1, 8 + lastuse[ct])] += [w1[2 * ct + 1]]
                for i in range(8): fill[(2, 3, 4, 5, 7, 8, 9, 10)[i]].append(xadv[i])
                fill[11].append(f"s_sub_u32 s{sIt}, s{sIt}, 1")
            else:
                for i in range(4): fill[i].append(xr[i])
                for i in range(8): fill[4 + i].append(xadv[i])
                if tt == 1:
                    for i in range(4): fill[10 + i].append(wadv[i])
                if tt == 2:
                    for i in range(4): fill[10 + i].append(wadv[4 + i])
            if tt % 2 == 0: a("s_barrier")
            for m in fill[-1]: a(m)
            for i in range(NM):
                if not OPT.get("nomf"): a(mf[i])
                for m in fill[i]: a(m)
            if last:
                if tt == 0: a("s_waitcnt lgkmcnt(1)")
                elif tt == 1: a("s_waitcnt lgkmcnt(9)")
                elif tt == 2: a("s_waitcnt lgkmcnt(0)\ns_barrier")
            elif tt == 3:
                a(f"""s_waitcnt lgkmcnt(15)
                s_cmp_eq_u32 s{sIt}, s{sCnt}
                s_cbranch_scc1 {K}_rst
                {K}_rst_ret:
                s_cmp_lg_u32 s{sIt}, 0""")
            else:
                a("s_waitcnt lgkmcnt(0)")
    a(f"""s_mov_b32 s{sIt}, 8
    s_waitcnt lgkmcnt(0)
    {K}_p1:""")
    chunk(False)
    a(f"s_cbranch_scc1 {K}_p1")
    a("s_waitcnt vmcnt(0)")
    chunk(True)
    stamp(a, 2, 30)
    a("s_nop 1")
    for m in epi(3): a(m)
    S = [128, 144, 160, 176]
    O = [192, 208, 224, 240]
    zo = [f"v_mov_b32 v{O[x]+i}, 0" for x in range(4) for i in range(11)]
    zq = [f"v_mov_b32 v{QT+4*j+i}, 0" for j in range(2) for i in (1, 2)]
    zs = [f"v_mov_b32 v{S[3]+8+i}, 0" for i in range(8)] + [f"v_mov_b32 v{V1[1]+i}, 0" for i in range(4)]
    for m in zo[:22]: a(m)
    a("s_waitcnt lgkmcnt(0)")
    for x in range(4): a(f"ds_read_b128 {vr(QM+4*x,4)}, v{vQr} offset:{1024*x}")
    a("s_barrier")
    stamp(a, 3, 30)
    NB = int(OPT["nb"])
    T2F = OPT.get("t2f", "0") == "1"
    def ldK(t, buf): return f"ds_read_b128 {vr(KF[buf],4)}, v{vKa} offset:{((t//4)%NB)*BLK + (t%4)*1024}"
    def ldV(t, half, buf): return f"ds_read_b128 {vr((V0,V1)[half][buf],4)}, v{vVa} offset:{((t//4)%NB)*BLK + 4608 + (t%4)*1216 + 608*half}"
    def ldT(b=0): return f"ds_read_b128 {vr(KT[b%2],4)}, v{vTa} offset:{(b%NB)*BLK + 4096}"
    def QKM(t, x, s, c="0"): return f"v_mfma_f32_32x32x16_bf16 {vr(s,16)}, {vr(KF[t%2],4)}, {vr(QM+4*x,4)}, {c}"
    def QKT(t, x, s): return f"v_mfma_f32_32x32x4_2b_bf16 {vr(s,32)}, {vr(KT[(t//4)%2]+(t&2),2)}, {vr(QT+2*x+2*(t&1),2)}, {vr(s,32) if not T2F else 0}"
    def PV(half, t, x, s): return f"v_smfmac_f32_32x32x32_bf16 {vr(O[x],16)}, {vr((V0,V1)[half][t%2],4)}, {vr(s+8*half,8)}, v{vIdx}"
    a(ldK(0, 0))
    a(f"ds_read2_b32 {vr(TP,2)}, v{vSqh} offset0:0 offset1:2")
    a(ldT()); a(ldV(0, 0, 0)); a(ldV(0, 1, 0))
    a(f"ds_read_b128 {vr(TP+4,4)}, v{vSq} offset:512")
    HOOKS = [1, 3, 7, 11, 13, 15]
    assert NB % 2 == 0
    for m in zq + zs: a(m)
    a(f"""s_mov_b32 s{sIt}, 0
    s_mov_b32 s{sWk}, {NB*BLK}
    s_mov_b32 s{sWcnt}, {(NB*BLK - RING) & 0xffffffff}
    s_waitcnt lgkmcnt(4)""")
    if not T2F:
        a(QKM(0, 0, S[0]))
        a(f"""v_mov_b32 v{QT}, v{TP}
    v_mov_b32 v{QT+3}, v{TP}
    v_mov_b32 v{QT+4}, v{TP+1}
    v_mov_b32 v{QT+7}, v{TP+1}""")
        a(QKM(0, 1, S[1]))
        for m in zo[22:27]: a(m)
        a(QKM(0, 2, S[2]))
        for m in zo[27:32]: a(m)
        a("s_waitcnt lgkmcnt(3)")
        a(QKT(0, 0, S[0]))
        for m in zo[32:]: a(m)
        a("s_nop 6")
        a("s_waitcnt lgkmcnt(0)")
    else:
        a(f"""v_mov_b32 v{QT}, v{TP}
        v_mov_b32 v{QT+3}, v{TP}
        v_mov_b32 v{QT+4}, v{TP+1}
        v_mov_b32 v{QT+7}, v{TP+1}
        s_waitcnt lgkmcnt(3)""")
        a(QKT(0, 0, S[0]))
        for m in zo[22:40]: a(m)
        a(QKM(0, 0, S[0], vr(S[0], 16)))
        for m in zo[40:]: a(m)
        a(QKM(0, 1, S[1], vr(S[1], 16)))
        a("s_nop 5")
        a("s_waitcnt lgkmcnt(0)")
    if OPT.get("cprio"): a(f"s_setprio {OPT['cprio']}")
    hookblks = []
    a(".p2align 6")
    a(f"{K}_att:")
    pos = tuple(int(z) for z in OPT.get("pos", "2.5.10.14.22.26.30" if not T2F else "2.5.13.18.21.26.30").split("."))
    NIT = 16 // NB
    SB = lambda u: S[u % 4]
    for u in range(0, 16 * NB, 2):
        t, x = divmod(u, 4)
        blk, ub = divmod(u, 16)
        ins = {i: [] for i in range(33)}
        ins[pos[0]].append(PV(1, *divmod(u - 1, 4), SB(u - 1)))
        if not T2F:
            ins[pos[1]].append(QKM(*divmod(u + 3, 4), SB(u + 3)))
            ins[pos[2]].append(PV(0, t, x, SB(u)))
            ins[pos[3]].append(QKT(*divmod(u + 2, 4), SB(u + 2)))
            ins[pos[4]].append(PV(1, t, x, SB(u)))
            ins[pos[5]].append(PV(0, t, x + 1, SB(u + 1)))
            ins[pos[6]].append(QKM(*divmod(u + 4, 4), SB(u + 4)))
        else:
            ins[pos[1]].append(QKT(*divmod(u + 2, 4), SB(u + 2)))
            ins[pos[2]].append(PV(0, t, x, SB(u)))
            ins[pos[3]].append(PV(1, t, x, SB(u)))
            ins[pos[4]].append(QKM(*divmod(u + 2, 4), SB(u + 2), vr(SB(u + 2), 16)))
            ins[pos[5]].append(PV(0, t, x + 1, SB(u + 1)))
            ins[pos[6]].append(QKM(*divmod(u + 3, 4), SB(u + 3), vr(SB(u + 3), 16)))
        if x == 0:
            ins[pos[0]].append(ldV(t + 1, 1, (t + 1) % 2))
            ins[pos[1]].append(ldK(t + 1, (t + 1) % 2))
            ins[pos[2]].append(ldV(t + 1, 0, (t + 1) % 2))
            if ub == 12: ins[pos[3]].append(ldT(blk + 1))
            ins[pos[5]].append("s_waitcnt lgkmcnt(0)")
        if ub == 10:
            if blk == NB - 1:
                ins[pos[0]].append(f"s_cmp_eq_u32 s{sIt}, {NIT//2 - 1}")
                ins[pos[1]].append(f"s_cselect_b32 s{sT0}, s{sWcnt}, s{sWk}")
                ins[pos[2]].append(f"v_add_u32 v{vKa}, s{sT0}, v{vKa}")
                ins[pos[3]].append(f"v_add_u32 v{vTa}, s{sT0}, v{vTa}")
                ins[pos[4]].append(f"v_add_u32 v{vVa}, s{sT0}, v{vVa}")
            its = [it for it in range(NIT) if it * NB + blk in HOOKS]
            if len(its) == NIT and (not OPT["stamp"] or OPT.get("light")):
                ins[pos[6]].append("s_barrier")
            elif its:
                ins[pos[6]] += [f"s_bitcmp1_b32 {sum(1 << i for i in its)}, s{sIt}", f"s_cbranch_scc1 {K}_hook{blk}", f"{K}_hook_ret{blk}:"]
                hookblks.append(blk)
        if u == 16 * NB - 2:
            ins[pos[5]].append(f"s_add_u32 s{sIt}, s{sIt}, 1")
            ins[pos[6]].append(f"s_cmp_lt_u32 s{sIt}, {NIT}")
        for i in range(32):
            for m in ins[i]: a(m)
            a(f"v_exp_f32 v{SB(u)+i}, v{SB(u)+i}")
    if OPT.get("light"):
        a(f"""s_memtime s[82:83]
        s_memrealtime s[80:81]
        s_add_u32 m0, s{sIt}, 15
        s_waitcnt lgkmcnt(0)
        v_writelane_b32 v30, s80, m0
        v_writelane_b32 v31, s82, m0
        s_cmp_lt_u32 s{sIt}, {NIT}""")
    a(f"s_cbranch_scc1 {K}_att")
    a("s_nop 1")
    a(PV(1, 3, 3, S[3]))
    stamp(a, 8, 30)
    CC = [5, 6, 7, 8]
    R8 = [64, 68, 72, 76, 104, 108, 112, 116, 120]
    RL = list(range(32, 64, 4)) + list(range(80, 104, 4)) + [124] + list(range(128, 176, 4))
    creg = lambda s, ct: R8[s] if ct == 8 else RL[3 * s + ct - 5]
    a('s_nop 8')
    l_ = [O[x] + 10 for x in range(4)]
    tq = [2, 3, 4, 5]
    a(f"""v_add_f32 v2, v{l_[0]}, v{l_[1]}
    v_min3_f32 v3, v{l_[0]}, v{l_[1]}, v{l_[2]}
    v_add_f32 v2, v2, v{l_[2]}
    s_waitcnt lgkmcnt(0)
    v_add_f32 v2, v2, v{l_[3]}
    v_min_f32 v3, v3, v{l_[3]}
    v_cmp_ge_f32 s[{sEx}:{sEx+1}], s64, v2
    v_cmp_le_f32 vcc, s61, v3
    s_nop 1
    s_and_b32 vcc_lo, vcc_lo, s{sEx}
    s_cmp_eq_u32 vcc_lo, -1
    s_cbranch_scc0 {K}_fbchk
    {K}_fbdone:""")
    cp = [f"ds_read_b128 {vr(creg(s_,ct),4)}, v{vCp} offset:{1024*(3*s_+i)}" for s_ in range(9) for i, ct in enumerate(CL)]
    for x in range(4): a(f"v_mov_b32 v{tq[x]}, v{O[x]+10}")
    a(cp.pop(0))
    for x in range(4): a(f"v_permlane32_swap_b32 v{O[x]+10}, v{tq[x]}")
    a(cp.pop(0))
    for x in range(4): a(f"v_mul_f32 v{tq[x]}, v{O[x]+10}, v{vGl+x}")
    for x in range(4): a(f"v_rcp_f32 v{tq[x]}, v{tq[x]}")
    a(cp.pop(0))
    for x in range(4):
        o = O[x]
        sel = "op_sel_hi:[1,0]" if x % 2 == 0 else "op_sel:[0,1]"
        for i in range(0, 10, 2): a(f"v_pk_mul_f32 {vr(o+i,2)}, {vr(o+i,2)}, {vr(tq[x & 2],2)} {sel}")
        for i in range(4): a(f"v_cvt_pk_bf16_f32 v{o+12+i}, v{o+2*i}, v{o+2*i+1}")
        a(f"""v_cvt_pk_bf16_f32 v{o+11}, v{o+8}, v{o+9}
        buffer_store_dwordx4 {vr(o+12,4)}, v{vSt}, s[{sWS}:{sWS+3}], s{56+x} offen sc1""")
        if x % 2 == 1:
            a(cp.pop(0))
            a(f"""v_permlane32_swap_b32 v{O[x-1]+11}, v{o+11}
            buffer_store_dword v{O[x-1]+11}, v{vStt}, s[{sWS}:{sWS+3}], s{4+(x>>1)} offen offset:1024 sc1""")
    for m in cp: a(m)
    stamp(a, 9, 30)
    a(f"""v_mov_b32 v6, {L_SYNC + 20}
    v_mov_b32 v7, 1
    s_setprio {OPT.get("p3prio", 2)}
    s_mov_b64 exec, 1
    s_waitcnt lgkmcnt(0)
    ds_add_u32 v6, v7
    s_mov_b64 exec, -1""")
    vOm, vOt, vRd = [2, 8], 3, 4
    p3_addr_o(a, vOm, vOt, vRd, [9, 10], 5, 11, 12, 13)
    for i in range(32): a(f"v_mov_b32 v{224+i}, 0")
    stamp(a, 10, 30)
    if OPT.get("drain"):
        a("s_waitcnt vmcnt(0)")
        stamp(a, 12, 30)
    p3_comp(a, CC, creg, 224, 176, vOm, vOt, vRd, 5, [9, 10])
    stamp(a, 11, 30)
    a(f"{K}_final:")
    final_reduce(a, K, 30)
    a(f"{K}_end:")
    a("s_endpgm")
    a(f"""{K}_rst:
    s_lshl_b32 s{sT0}, s{sPr}, 2
    v_mov_b32 v28, s{sT0}
    v_mov_b32 v29, 1
    s_mov_b64 exec, 1
    s_waitcnt vmcnt(0)
    buffer_atomic_add v29, v28, s[{sD}:{sD+3}], 0 offen
    s_mov_b64 exec, -1
    s_branch {K}_rst_ret""")
    for blk in hookblks:
        a(f"{K}_hook{blk}:")
        if 1 % NB == blk:
            a(f"""s_cmp_eq_u32 s{sIt}, {1 // NB}
            s_cbranch_scc0 {K}_hkg
            v_lshlrev_b32 v{vGl}, 16, v{TP+4}
            v_lshlrev_b32 v{vGl+1}, 16, v{TP+5}
            v_lshlrev_b32 v{vGl+2}, 16, v{TP+6}
            v_lshlrev_b32 v{vGl+3}, 16, v{TP+7}""")
            for x in range(4): a(f"v_mul_f32 v{vGl+x}, s60, v{vGl+x}")
            for x in range(4): a(f"v_exp_f32 v{vGl+x}, v{vGl+x}")
            a("s_nop 0")
            for x in range(4): a(f"v_add_f32 v{vGl+x}, 1.0, v{vGl+x}")
            for x in range(4):
                for i in range(11, 16): a(f"v_mov_b32 v{O[x]+i}, 0")
            a(f"{K}_hkg:")
        if OPT["stamp"]:
            for hb, i_ in ((1, 4), (3, 6)):
                if hb % NB == blk:
                    a(f"s_cmp_eq_u32 s{sIt}, {hb // NB}\ns_cbranch_scc0 {K}_hk{hb}")
                    stamp(a, i_, 30); a("s_barrier"); stamp(a, i_ + 1, 30); a(f"s_branch {K}_hook_ret{blk}")
                    a(f"{K}_hk{hb}:")
        if 13 % NB == blk:
            a(f"""s_cmp_eq_u32 s{sIt}, {13 // NB}
            s_cbranch_scc0 {K}_hkb{blk}""")
            if not OPT.get('x_no8'): p3_wo_loads(a, [8], creg, vWm3, vWt)
            a(f"{K}_hkb{blk}:")
        a(f"""s_barrier
        s_branch {K}_hook_ret{blk}""")
    FQ = S[3]
    a(f"{K}_fbchk:")
    for x in range(4):
        a(f"""v_cmp_le_f32 vcc, s61, v{O[x]+10}
        v_cmp_ge_f32 s[{sEx}:{sEx+1}], s64, v{O[x]+10}
        s_nop 1
        s_and_b32 vcc_lo, vcc_lo, s{sEx}
        s_cmp_eq_u32 vcc_lo, -1
        s_cbranch_scc0 {K}_fb{x}
        {K}_fbret{x}:""")
    a(f"s_branch {K}_fbdone")
    for x in range(4):
        a(f"{K}_fb{x}:")
        for i in range(4): a(f"v_mov_b32 v{FQ+i}, v{QM+4*x+i}")
        for i in range(4): a(f"v_mov_b32 v{FQ+4+i}, 0")
        a(f"""s_mov_b32 {'exec_hi' if x % 2 == 0 else 'exec_lo'}, 0
        v_mov_b32 v{FQ+4}, v{QT+4*(x>>1)}
        v_mov_b32 v{FQ+7}, v{QT+4*(x>>1)}
        s_mov_b64 exec, -1""")
        a(f"s_call_b64 s[{sRet}:{sRet+1}], {K}_slow")
        for i in range(16): a(f"v_mov_b32 v{O[x]+i}, v{S[2]+i}")
        a(f"s_branch {K}_fbret{x}")
    a(f"{K}_slow:")
    vb, vc, vm = 11, 12, 13
    sA, sB = sWsrc, sWm0
    t0 = 9
    a(f"""v_lshlrev_b32 v{t0}, 4, v0
    v_and_b32 v{vm}, 31, v0
    v_lshlrev_b32 v{vb}, 4, v{vm}
    v_lshrrev_b32 v{vc}, 5, v0
    v_mul_u32_u24 v{vc}, 304, v{vc}
    v_lshl_add_u32 v{vc}, v{vm}, 4, v{vc}
    v_cmp_lt_u32 vcc, 18, v{vm}
    v_mov_b32 v{vm}, 0x40000000
    s_nop 1
    v_cndmask_b32 v{vc}, v{vc}, v{vm}, vcc""")
    def slow_qk(t, c):
        a(f"""v_mfma_f32_32x32x16_bf16 {vr(S[0],16)}, {vr(KF[0],4)}, {vr(FQ,4)}, {c}
        v_mfma_f32_32x32x8_bf16 {vr(S[0],16)}, {vr(KT[0]+(t&2),2)}, {vr(FQ+4+2*(t&1),2)}, {vr(S[0],16)}
        s_nop 15""")
    def slow_next(lbl):
        a(f"""s_add_u32 s{sA}, s{sA}, {BLK}
        s_sub_u32 s{sIt}, s{sIt}, 1
        s_cmp_lg_u32 s{sIt}, 0
        s_cbranch_scc1 {lbl}""")
    a(f"""v_mov_b32 v{vm}, 0xff800000
    s_mov_b32 s{sA}, s{sKVg}
    s_mov_b32 s{sIt}, 16
    {K}_sl1:
    s_add_u32 s{sB}, s{sA}, 4096
    buffer_load_dwordx4 {vr(KT[0],4)}, v{vb}, s[{sWS}:{sWS+3}], s{sB} offen sc1""")
    for t in range(4):
        a(f"""buffer_load_dwordx4 {vr(KF[0],4)}, v{t0}, s[{sWS}:{sWS+3}], s{sA} offen offset:{1024*t} sc1
        s_waitcnt vmcnt(0)""")
        slow_qk(t, "0")
        for i in range(8): a(f"v_max3_f32 v{vm}, v{S[0]+2*i}, v{S[0]+2*i+1}, v{vm}")
    slow_next(f"{K}_sl1")
    a(f"""v_mov_b32 v{S[0]}, v{vm}
    s_nop 1
    v_permlane32_swap_b32 v{vm}, v{S[0]}
    s_nop 1
    v_max_f32 v{vm}, v{vm}, v{S[0]}""")
    for i in range(16):
        a(f"v_sub_f32 v{S[1]+i}, 0, v{vm}")
        a(f"v_mov_b32 v{S[2]+i}, 0")
    a(f"""s_mov_b32 s{sA}, s{sKVg}
    s_mov_b32 s{sIt}, 16
    {K}_sl2:
    s_add_u32 s{sB}, s{sA}, 4096
    buffer_load_dwordx4 {vr(KT[0],4)}, v{vb}, s[{sWS}:{sWS+3}], s{sB} offen sc1""")
    for t in range(4):
        a(f"""buffer_load_dwordx4 {vr(KF[0],4)}, v{t0}, s[{sWS}:{sWS+3}], s{sA} offen offset:{1024*t} sc1
        s_add_u32 s{sB}, s{sA}, {4608+1216*t}
        buffer_load_dwordx4 {vr(V0[0],4)}, v{vc}, s[{sWS}:{sWS+3}], s{sB} offen sc1
        buffer_load_dwordx4 {vr(V1[0],4)}, v{vc}, s[{sWS}:{sWS+3}], s{sB} offen offset:608 sc1
        s_waitcnt vmcnt(0)""")
        slow_qk(t, vr(S[1], 16))
        for i in range(16): a(f"v_exp_f32 v{S[0]+i}, v{S[0]+i}")
        a(f"""s_nop 3
        v_smfmac_f32_32x32x32_bf16 {vr(S[2],16)}, {vr(V0[0],4)}, {vr(S[0],8)}, v{vIdx}
        v_smfmac_f32_32x32x32_bf16 {vr(S[2],16)}, {vr(V1[0],4)}, {vr(S[0]+8,8)}, v{vIdx}
        s_nop 7""")
    slow_next(f"{K}_sl2")
    a(f"""s_nop 15
    s_setpc_b64 s[{sRet}:{sRet+1}]""")

def main(out):
    ka = f"{NAME}_kernel"
    a = Asm(); kernel(a)
    t = f"""; gated mix of two MHA blocks: one fused kernel (QKV projection, attention, output projection); generated by gen/gen35.py
; @launch grid=(256,1,1) block=(512,1,1) lds={LDS_BYTES}
.amdgcn_target "amdgcn-amd-amdhsa--gfx950"
.text
.globl {ka}
.p2align 8
.type {ka},@function
{ka}:
{a.text()}.section .rodata,"a"
.p2align 6
.amdhsa_kernel {ka}
  .amdhsa_next_free_vgpr 256
  .amdhsa_next_free_sgpr 102
  .amdhsa_accum_offset 256
  .amdhsa_group_segment_fixed_size 0
  .amdhsa_kernarg_size 80
  .amdhsa_user_sgpr_count 2
  .amdhsa_user_sgpr_kernarg_segment_ptr 1
  .amdhsa_system_sgpr_workgroup_id_x 1
.end_amdhsa_kernel
"""
    open(out, "w").write(t)

if __name__ == "__main__":
    for kv in sys.argv[2:]:
        k, v = kv.split("=")
        OPT[k] = {"True": True, "False": False}.get(v, v)
    main(sys.argv[1])
```

```python
import sys, struct

NAME = "gated_mix__mha_block__mha_block__prompt"
def f32(x): return "0x%08x" % struct.unpack("<I", struct.pack("<f", x))[0]
CSCALE = (18 ** -0.5) * 1.4426950408889634
LOG2E = 1.4426950408889634

BLK = 9472
KVH = 16 * BLK
RING = 8 * BLK
WS_O = 0x0A00000
WS_WOM = 0x0F00000
WS_WOT = 0x1080000
WS_F = 0x10C0000
WS_STAMP = 0x1100000
WS_SIZE = 0x1200000
SENT = 0xffffffff
L_WR = 0
WSL = 16384
RW = 3
L_XR = 98304
L_SCR = 49152
L_GT = 155648
L_SYNC = L_GT + 3 * 2048 + 1536
L_WO = 151552
LDS_BYTES = 163840
RS = 592
STRAD = sum(1 << p for p in range(32) if (72 * (p & 15)) % 128 > 56)
L_OA = 6 * BLK
L_OB = 94720
PLANE = 32 * RS

class Asm:
    def __init__(self): self.l = []
    def __call__(self, s):
        for x in s.strip("\n").split("\n"):
            x = x.strip()
            if not x: continue
            self.l.append(x if x.endswith(":") else "    " + x)
    def text(self): return "\n".join(self.l) + "\n"

def vr(a, n): return f"v[{a}:{a+n-1}]"
OPT = dict(force_fb=False, stamp=False, rx="7", txor="1", nb="4", cprio="3", pf9="0", rf="1.2.2.2.1", tx4="5")

def srd(a, d, lo, hi, size):
    a(f"""s_mov_b32 s{d}, s{lo}
    s_and_b32 s{d+1}, s{hi}, 0xffff
    s_mov_b32 s{d+2}, {size}
    s_mov_b32 s{d+3}, 0x00020000""")

sX, sW, sWo, sG, sD, sWS, sOut = 8, 12, 16, 20, 24, 28, 84
sWv, sPr, sE, sHd, sRot = 32, 33, 34, 35, 36
sT0, sT1, sT2, sT3 = 37, 38, 39, 40
sRef, sCnt, sKo, sXb, sRing, sIt, sKVg, sSpin, sW8 = 41, 42, 43, 44, 45, 46, 47, 48, 49
sRet, sEx = 50, 52
sWsrc, sWm0, sWk, sWcnt, sXm0, sGk, sTt, sBH = 54, 55, 62, 63, 76, 77, 78, 79
sP3T, sP3C, sOb, sWmb, sWtb, sHH, sTH, sOtb = 88, 89, 90, 91, 92, 93, 94, 95
SV = 254
sLA, sLB = 74, 75
sGO = [66, 67, 68, 69]
sGW = [70, 71, 72, 73]

def stamp(a, idx, vreg):
    if not OPT["stamp"]: return
    a(f"""s_memrealtime s[80:81]
    s_memtime s[82:83]
    s_waitcnt lgkmcnt(0)
    v_writelane_b32 v{vreg}, s80, {idx}
    v_writelane_b32 v{vreg+1}, s82, {idx}""")
def sstamp(a, k):
    if not OPT["stamp"]: return
    a(f"""s_memrealtime s[80:81]
    s_waitcnt lgkmcnt(0)
    s_mov_b32 s{96+k}, s80""")
def stamp_out(a, vreg, vt=1, mask=None):
    if not OPT["stamp"]: return
    a(f"""s_lshl_b32 s80, s2, 3
    s_add_u32 s80, s80, s{sW8}
    s_lshl_b32 s80, s80, 8
    s_add_u32 s80, s80, {WS_STAMP}
    v_lshlrev_b32 v{vt}, 3, v0
    s_mov_b32 exec_hi, 0""")
    if mask is not None: a(f"s_mov_b32 exec_lo, {mask}")
    a(f"""buffer_store_dwordx2 v[{vreg}:{vreg+1}], v{vt}, s[{sWS}:{sWS+3}], s80 offen
    s_mov_b64 exec, -1""")

def p3_addr_w(a, vWm, vWt, t0, t1, t2):
    a(f"""v_and_b32 v{t0}, 15, v0
    v_lshrrev_b32 v{t1}, 5, v0
    v_bfe_u32 v{t2}, v0, 4, 1
    v_mul_u32_u24 v{vWm}, 4608, v{t1}
    v_lshl_add_u32 v{vWm}, v{t2}, 8, v{vWm}
    v_lshl_add_u32 v{vWm}, v{t0}, 4, v{vWm}
    v_lshrrev_b32 v{t1}, 4, v0
    v_add_u32 v{t2}, s{sP3C}, v{t1}
    v_and_b32 v{t2}, 3, v{t2}
    v_mul_u32_u24 v{vWt}, {4*2304}, v{t2}
    v_lshl_add_u32 v{vWt}, v{t0}, 4, v{vWt}""")
def p3_addr_o(a, vOm, vOt, vRd, vVa, vSy, t0, t1, t2):
    a(f"""v_and_b32 v{t0}, 15, v0
    v_lshrrev_b32 v{t1}, 5, v0
    v_bfe_u32 v{t2}, v0, 4, 1
    v_mul_u32_u24 v{vOm[0]}, 1152, v{t1}
    v_lshl_add_u32 v{vOm[0]}, v{t2}, 9, v{vOm[0]}
    v_lshl_add_u32 v{vOm[0]}, v{t0}, 4, v{vOm[0]}
    v_add_u32 v{vOm[1]}, s{sLB}, v{vOm[0]}
    v_add_u32 v{vOm[0]}, s{sLA}, v{vOm[0]}
    s_sub_u32 s{sT3}, s{sLB}, s{sLA}
    v_mul_lo_u32 v{vOt}, s{sT3}, v{t1}
    v_add_u32 v{vOt}, s{sLA}, v{vOt}
    v_mul_u32_u24 v{t2}, 4608, v{t2}
    v_add_u32 v{vOt}, v{vOt}, v{t2}
    v_lshl_add_u32 v{vOt}, v{t0}, 2, v{vOt}
    v_lshrrev_b32 v{t1}, 4, v0
    v_mul_u32_u24 v{vRd}, {RS}, v{t0}
    v_lshl_add_u32 v{vRd}, v{t1}, 4, v{vRd}
    s_cmp_eq_u32 s{sWv}, 3
    s_cselect_b32 s{sT3}, 4, s{sWv}
    s_mul_i32 s{sT3}, s{sT3}, {PLANE}
    v_add_u32 v{vRd}, s{sT3}, v{vRd}
    v_mul_u32_u24 v{vVa[0]}, 1152, v{t1}
    v_lshl_add_u32 v{vVa[0]}, v{t0}, 3, v{vVa[0]}
    v_add_u32 v{vVa[0]}, 1024, v{vVa[0]}
    v_add_u32 v{vVa[1]}, s{sLB}, v{vVa[0]}
    v_add_u32 v{vVa[0]}, s{sLA}, v{vVa[0]}
    s_lshl_b32 s{sT3}, s{sWv}, 2
    s_add_u32 s{sT3}, s{sT3}, {L_SYNC + 32}
    v_mov_b32 v{vSy}, s{sT3}""")
def p3_scal(a):
    a(f"""s_and_b32 s{sP3T}, s2, 7
    s_lshr_b32 s{sT0}, s2, 5
    s_lshl_b32 s{sT0}, s{sT0}, 3
    s_add_u32 s{sP3T}, s{sP3T}, s{sT0}
    s_lshr_b32 s{sP3C}, s2, 3
    s_and_b32 s{sP3C}, s{sP3C}, 3
    s_lshl_b32 s{sOb}, s{sP3T}, 6
    s_lshl_b32 s{sT3}, s{sWv}, 2
    s_add_u32 s{sOb}, s{sOb}, s{sT3}
    s_mul_i32 s{sOb}, s{sOb}, 1152
    s_add_u32 s{sOb}, s{sOb}, {WS_O}
    s_lshl_b32 s{sWmb}, s{sP3C}, 6
    s_add_u32 s{sWmb}, s{sWmb}, s{sT3}
    s_mul_i32 s{sWmb}, s{sWmb}, 4608
    s_add_u32 s{sWmb}, s{sWmb}, {WS_WOM}
    s_lshl_b32 s{sWtb}, s{sP3C}, 4
    s_add_u32 s{sWtb}, s{sWtb}, s{sWv}
    s_mul_i32 s{sWtb}, s{sWtb}, 2304
    s_add_u32 s{sWtb}, s{sWtb}, {WS_WOT}
    s_mul_i32 s{sLA}, s{sHH}, {RING}
    s_mul_i32 s{sT3}, s{sTH}, 9216
    s_add_u32 s{sLA}, s{sLA}, s{sT3}
    s_add_u32 s{sLA}, s{sLA}, {L_OA}
    s_mul_i32 s{sLB}, s{sWv}, 9216
    s_add_u32 s{sLB}, s{sLB}, {L_OB}""")
    for g in range(4):
        a(f"""s_add_u32 s{sT3}, s{sP3C}, {g}
        s_and_b32 s{sT3}, s{sT3}, 3
        s_mul_i32 s{sGO[g]}, s{sT3}, {16*1152}
        s_add_u32 s{sGO[g]}, s{sGO[g]}, s{sOb}
        s_mul_i32 s{sGW[g]}, s{sT3}, {16*4608}
        s_add_u32 s{sGW[g]}, s{sGW[g]}, s{sWmb}""")
def p3_wo_loads(a, cts, reg, vWm, vWt, steps=range(9)):
    for s in range(8):
        if s not in steps: continue
        a(f"s_add_u32 s{sT3}, s{sGW[s>>1]}, {2*(s&1)*4608 + 512*cts[0]}")
        for i, ct in enumerate(cts):
            a(f"buffer_load_dwordx4 {vr(reg(s,ct),4)}, v{vWm}, s[{sWS}:{sWS+3}], s{sT3} offen offset:{512*i} sc1")
    for ct in (cts if 8 in steps else []):
        a(f"buffer_load_dwordx4 {vr(reg(8,ct),4)}, v{vWt}, s[{sWS}:{sWS+3}], s{sWtb} offen offset:{256*ct} sc1")
def p3_oread(a, g, OF, vOm):
    for k in range(2):
        for th in range(2):
            a(f"ds_read_b128 {vr(OF+8*k+4*th,4)}, v{vOm[g>>1]} offset:{4608*(g&1) + 2304*k + 256*th}")
def p3_mf(a, cts, reg, AC, st, o):
    for i, ct in enumerate(cts):
        for th in range(2):
            d = AC + 8 * i + 4 * th
            a(f"v_mfma_f32_16x16x32_bf16 {vr(d,4)}, {vr(reg(st,ct),4)}, {vr(o+4*th,4)}, {vr(d,4)}")
def p3_tail(a, cts, reg, AC, OF, vOt, vRd):
    for th in range(2):
        for i in range(4):
            a(f"ds_read_b32 v{OF+4*th+i}, v{vOt} offset:{1152*i + 1024 + 64*th}")
    final_addr(a)
    a("s_waitcnt lgkmcnt(0)")
    p3_mf(a, cts, reg, AC, 8, OF)
    sstamp(a, 5)
    a("s_nop 7")
    for i, ct in enumerate(cts):
        for th in range(2):
            a(f"ds_write_b128 v{vRd}, {vr(AC+8*i+4*th,4)} offset:{16*th*RS + 64*ct}")
def p3_hint_addr(a, OF):
    vHa, vE4 = OF + 21, OF + 22
    a(f"""v_and_b32 v1, 3, v0
    v_mul_u32_u24 v{vHa}, 1152, v1
    v_bfe_u32 v1, v0, 2, 2
    v_add_u32 v1, s{sP3C}, v1
    v_and_b32 v1, 3, v1
    v_mul_u32_u24 v1, {16*1152}, v1
    v_add_u32 v{vHa}, v{vHa}, v1
    v_mov_b32 v{vE4}, {L_SYNC + 20}""")
def p3_helper(a, cts, reg, AC, OF, vOm, vOt, vRd, vL16, vVa, vSy, slp):
    L = "h3"
    sDone = sCnt
    def dma(g):
        lb = (sLA, sLB)[g >> 1]
        a(f"""s_add_u32 m0, s{lb}, {4608*(g&1)}
        s_add_u32 s{sT3}, s{sGO[g]}, 4096""")
        for i in range(4):
            a(f"buffer_load_dwordx4 v{vL16}, s[{sWS}:{sWS+3}], s{sGO[g]} offen offset:{1024*i} sc1 lds")
        a(f"""s_add_u32 m0, s{lb}, {4608*(g&1) + 4096}
        s_mov_b32 exec_hi, 0
        buffer_load_dwordx4 v{vL16}, s[{sWS}:{sWS+3}], s{sT3} offen sc1 lds
        s_mov_b64 exec, -1""")
    sFly, sLand, sTry, sBlk_ = sWk, sWcnt, sKo, sXb
    vH, vHa, vE4 = OF + 18, OF + 21, OF + 22
    a(f"""s_mov_b32 s{sSpin}, 60000
    s_mov_b32 s{sIt}, {SENT}
    s_mov_b32 s{sDone}, 0
    s_mov_b32 s{sFly}, 0
    s_mov_b32 s{sLand}, 0
    s_mov_b32 s{sBlk_}, 12
    {L}_round:
    s_mov_b64 exec, 0xffff
    buffer_load_dword v{vH}, v{vHa}, s[{sWS}:{sWS+3}], s{sOb} offen offset:1024 sc1
    s_mov_b64 exec, -1
    ds_read_b32 v1, v{vE4}
    s_cmp_eq_u32 s{sFly}, 0
    s_cbranch_scc1 {L}_nofly
    s_or_b32 s{sLand}, s{sLand}, s{sFly}
    s_waitcnt vmcnt(1)
    v_mov_b32 v{vH+1}, s{sLand}
    ds_write_b32 v{vSy}, v{vH+1}
    {L}_nofly:
    s_mov_b32 s{sTry}, s{sFly}
    s_waitcnt lgkmcnt(0)
    v_readfirstlane_b32 s{sT0}, v1
    s_cmp_ge_u32 s{sT0}, 4
    s_cselect_b32 s{sBlk_}, 0, s{sBlk_}
    s_or_b32 s{sT1}, s{sDone}, s{sTry}
    s_cmp_eq_u32 s{sT1}, 15
    s_mov_b32 s{sFly}, 0
    s_cbranch_scc1 {L}_work""")
    if int(OPT.get("spec", 0)):
        a(f"""s_bcnt1_i32_b32 s{sT0}, s{sT1}
        s_mov_b32 vcc_lo, -1
        s_cmp_ge_u32 s{sT0}, {4 - int(OPT["spec"])}
        s_cselect_b32 s{sT0}, s{sBlk_}, 1
        s_cmp_eq_u32 s{sT0}, 0
        s_cbranch_scc1 {L}_spec""")
    a(f"""s_or_b32 s{sT1}, s{sT1}, s{sBlk_}
    s_waitcnt vmcnt(0)
    v_cmp_ne_u32 vcc, s{sIt}, v{vH}
    {L}_spec:""")
    for g in range(4):
        a(f"""s_bitcmp1_b32 s{sT1}, {g}
        s_cbranch_scc1 {L}_l{g}
        s_bfe_u32 s{sT0}, vcc_lo, {(4 << 16) | (4 * g)}
        s_cmp_eq_u32 s{sT0}, 15
        s_cbranch_scc0 {L}_l{g}
        s_bitset1_b32 s{sFly}, {g}""")
        dma(g)
        a(f"{L}_l{g}:")
    a(f"{L}_work:")
    for g in range(4):
        a(f"""s_bitcmp1_b32 s{sTry}, {g}
        s_cbranch_scc0 {L}_n{g}""")
        p3_check(a, g, OF, vOm, vVa)
        a(f"""s_cbranch_vccnz {L}_n{g}
        s_bitset1_b32 s{sDone}, {g}""")
        stamp(a, 27 + g, SV)
        p3_mf(a, cts, reg, AC, 2 * g, OF)
        p3_mf(a, cts, reg, AC, 2 * g + 1, OF + 8)
        a(f"{L}_n{g}:")
    a(f"""s_cmp_eq_u32 s{sDone}, 15
    s_cbranch_scc1 {L}_done
    s_sub_u32 s{sSpin}, s{sSpin}, 1
    s_cmp_lt_i32 s{sSpin}, 0
    s_cbranch_scc1 {L}_done
    s_or_b32 s{sT0}, s{sFly}, s{sTry}
    s_cbranch_scc1 {L}_round
    s_sleep {slp}
    s_branch {L}_round
    {L}_done:
    s_waitcnt vmcnt(0)""")
    p3_tail(a, cts, reg, AC, OF, vOt, vRd)
def p3_check(a, g, OF, vOm, vVa):
    p3_oread(a, g, OF, vOm)
    a(f"""ds_read_b64 {vr(OF+16,2)}, v{vVa[g>>1]} offset:{4608*(g&1)}
    s_waitcnt lgkmcnt(3)
    v_max3_u32 v1, v{OF}, v{OF+1}, v{OF+2}
    v_max3_u32 v1, v{OF+3}, v{OF+4}, v1
    v_max3_u32 v1, v{OF+5}, v{OF+6}, v1
    s_waitcnt lgkmcnt(0)
    v_max3_u32 v1, v{OF+7}, v{OF+8}, v1
    v_max3_u32 v1, v{OF+9}, v{OF+10}, v1
    v_max3_u32 v1, v{OF+11}, v{OF+12}, v1
    v_max3_u32 v1, v{OF+13}, v{OF+14}, v1
    v_max3_u32 v1, v{OF+15}, v{OF+16}, v1
    v_max_u32 v1, v{OF+17}, v1
    v_cmp_eq_u32 vcc, s{sIt}, v1
    s_nop 1""")
def p3_comp(a, cts, reg, AC, OF, vOm, vOt, vRd, vSy, vVa):
    L = "c3"
    sDone = sCnt
    a(f"""s_mov_b32 s{sSpin}, 400000
    s_mov_b32 s{sIt}, {SENT}
    s_mov_b32 s{sDone}, 0
    s_waitcnt vmcnt(6)
    {L}_round:
    ds_read_b32 v1, v{vSy}
    s_waitcnt lgkmcnt(0)
    v_readfirstlane_b32 s{sT0}, v1
    s_andn2_b32 s{sT0}, s{sT0}, s{sDone}""")
    for g in range(4):
        a(f"""s_bitcmp1_b32 s{sT0}, {g}
        s_cbranch_scc0 {L}_n{g}""")
        p3_check(a, g, OF, vOm, vVa)
        a(f"""s_cbranch_vccnz {L}_n{g}
        s_bitset1_b32 s{sDone}, {g}""")
        p3_mf(a, cts, reg, AC, 2 * g, OF)
        p3_mf(a, cts, reg, AC, 2 * g + 1, OF + 8)
        a(f"{L}_n{g}:")
    a(f"""s_cmp_eq_u32 s{sDone}, 15
    s_cbranch_scc1 {L}_done
    s_sub_u32 s{sSpin}, s{sSpin}, 1
    s_cmp_lt_i32 s{sSpin}, 0
    s_cbranch_scc0 {L}_round
    {L}_done:""")
    p3_tail(a, cts, reg, AC, OF, vOt, vRd)

def srd_tail(a, d, size):
    a(f"""s_mov_b32 s{d+2}, {size}
    s_mov_b32 s{d+3}, 0x00020000""")
def kernel(a):
    K = "k"
    if OPT["stamp"]: a("s_memrealtime s[96:97]")
    a(f"""
    s_cmp_ge_u32 s2, 256
    s_cbranch_scc1 {K}_end
    s_load_dwordx2 s[{sX}:{sX+1}], s[0:1], 0
    s_bfe_u32 s{sT0}, s2, {(1 << 16) | 2}
    s_mul_i32 s{sT0}, s{sT0}, 24
    s_add_u32 s{sT1}, s{sT0}, 8
    s_add_u32 s{sT0}, s{sT0}, 16
    s_load_dwordx2 s[{sW}:{sW+1}], s[0:1], s{sT1}
    s_load_dwordx2 s[{sG}:{sG+1}], s[0:1], 48
    s_load_dwordx2 s[{sWS}:{sWS+1}], s[0:1], 72
    s_load_dwordx2 s[{sD}:{sD+1}], s[0:1], 64
    s_load_dwordx2 s[{sOut}:{sOut+1}], s[0:1], 56
    s_load_dwordx2 s[{sWo}:{sWo+1}], s[0:1], s{sT0}
    v_lshrrev_b32 v1, 6, v0
    v_and_b32 v0, 63, v0
    s_bfe_u32 s{sT1}, s2, {(2 << 16) | 3}
    v_readfirstlane_b32 s{sW8}, v1
    s_lshr_b32 s{sT2}, s2, 5
    s_and_b32 s{sE}, s2, 1
    s_lshl_b32 s{sE}, s{sE}, 2
    s_add_u32 s{sE}, s{sE}, s{sT1}
    s_and_b32 s{sPr}, s2, 6
    s_lshl_b32 s{sPr}, s{sPr}, 2
    s_add_u32 s{sPr}, s{sPr}, s{sT2}
    s_and_b32 s{sWv}, s{sW8}, 3
    s_lshr_b32 s{sHH}, s{sWv}, 1
    s_and_b32 s{sTH}, s{sWv}, 1
    s_bfe_u32 s{sTt}, s2, {(1 << 16) | 5}
    s_lshl_b32 s{sTt}, s{sTt}, 1
    s_bfe_u32 s{sT2}, s2, {(1 << 16) | 6}
    s_or_b32 s{sTt}, s{sTt}, s{sT2}
    s_cmp_ge_u32 s{sW8}, 4
    s_cbranch_scc0 {K}_compute""")
    helper(a, K)
    a(f"{K}_compute:")
    compute(a, K)
def common_late(a):
    srd_tail(a, sWS, WS_SIZE)
    srd_tail(a, sOut, 2048 * 1152)
    srd_tail(a, sD, 256)
    srd_tail(a, sWo, 576 * 1152)
    a(f"""s_lshl_b32 s{sBH}, s{sPr}, 1
    s_add_u32 s{sBH}, s{sBH}, s{sHH}
    s_mul_i32 s{sKVg}, s{sBH}, {KVH}""")

FA = 32
def final_addr(a):
    a(f"""s_lshl_b32 s{sT3}, s{sW8}, 6
    v_add_u32 v1, s{sT3}, v0
    s_mul_i32 s{sT0}, s{sP3T}, {32*1152}
    s_mul_i32 s{sT1}, s{sP3C}, 288
    s_add_u32 s{sT0}, s{sT0}, s{sT1}""")
    for r in range(2):
        if r: a("v_add_u32 v1, 512, v1")
        a(f"""v_mul_u32_u24 v{FA+6}, 3641, v1
        v_lshrrev_b32 v{FA+6}, 16, v{FA+6}
        v_mul_u32_u24 v{FA+7}, 18, v{FA+6}
        v_sub_u32 v{FA+7}, v1, v{FA+7}
        v_mul_u32_u24 v{FA+r}, {RS}, v{FA+6}
        v_lshl_add_u32 v{FA+r}, v{FA+7}, 5, v{FA+r}
        v_add_u32 v{FA+4+r}, {4*PLANE}, v{FA+r}
        v_mul_u32_u24 v{FA+2+r}, 1152, v{FA+6}
        v_lshl_add_u32 v{FA+2+r}, v{FA+7}, 4, v{FA+2+r}""")
def final_reduce(a, K, SVr):
    def reads(r):
        b = 48 + 32 * r
        for w in range(4):
            for hf in range(2):
                if w < 3: a(f"ds_read_b128 {vr(b+8*w+4*hf,4)}, v{FA+r} offset:{w*PLANE + 16*hf}")
                else: a(f"ds_read_b128 {vr(b+8*w+4*hf,4)}, v{FA+4+r} offset:{16*hf}")
    def finish(r, extra):
        b = 48 + 32 * r
        a(f"s_waitcnt lgkmcnt({4+extra})")
        for i in range(0, 8, 2): a(f"v_pk_add_f32 {vr(b+i,2)}, {vr(b+i,2)}, {vr(b+8+i,2)}")
        a(f"s_waitcnt lgkmcnt({extra})")
        for i in range(0, 8, 2): a(f"v_pk_add_f32 {vr(b+16+i,2)}, {vr(b+16+i,2)}, {vr(b+24+i,2)}")
        for i in range(0, 8, 2): a(f"v_pk_add_f32 {vr(b+i,2)}, {vr(b+i,2)}, {vr(b+16+i,2)}")
        for i in range(4): a(f"v_cvt_pk_bf16_f32 v{b+8+i}, v{b+2*i}, v{b+2*i+1}")
        a(f"buffer_store_dwordx4 {vr(b+8,4)}, v{FA+2+r}, s[{sOut}:{sOut+3}], s{sT0} offen")
    def fin():
        if OPT["stamp"]:
            a("s_waitcnt vmcnt(0)")
            stamp(a, 15, SVr)
            for k in range(6): a(f"v_writelane_b32 v{SVr}, s{96+k}, {20+k}")
            a(f"s_sub_u32 s80, 60000, s{sSpin}\nv_writelane_b32 v{SVr}, s80, 26")
            stamp_out(a, SVr)
            if OPT.get("amp"):
                i_, j_ = OPT["amp"].split(",")
                fin.n = getattr(fin, "n", 0) + 1
                a(f"""s_cmp_ge_u32 s{sW8}, 4
                s_cbranch_scc1 k_ampx{fin.n}
                v_readlane_b32 s82, v{SVr}, {i_}
                v_readlane_b32 s83, v{SVr}, {j_}
                s_memrealtime s[80:81]
                s_waitcnt lgkmcnt(0)
                s_sub_u32 s82, s83, s82
                s_lshl_b32 s82, s82, 2
                s_min_u32 s82, s82, 40000
                s_mov_b32 s83, s80
                k_amp{fin.n}:
                s_memrealtime s[80:81]
                s_waitcnt lgkmcnt(0)
                s_sub_u32 s80, s80, s83
                s_cmp_lt_u32 s80, s82
                s_cbranch_scc1 k_amp{fin.n}
                k_ampx{fin.n}:""")
    a(f"""s_cmp_eq_u32 s{sW8}, 0
    s_waitcnt lgkmcnt(0)
    s_barrier""")
    reads(0)
    a(f"s_cbranch_scc1 {K}_fin0")
    finish(0, 0)
    fin()
    a(f"""s_endpgm
    {K}_fin0:""")
    reads(1)
    finish(0, 8)
    finish(1, 0)
    fin()

def poll(a, lbl, ld, cond, slp):
    a(f"""s_mov_b32 s{sSpin}, 40000
    {lbl}:
    {ld}
    s_waitcnt vmcnt(0)""")
    cond()
    a(f"""s_cbranch_scc1 {lbl}_go
    s_sub_u32 s{sSpin}, s{sSpin}, 1
    s_cmp_eq_u32 s{sSpin}, 0
    s_cbranch_scc1 {lbl}_go
    s_sleep {slp}
    s_branch {lbl}
    {lbl}_go:""")

CL = [5, 6, 7]
def wo_lds_base(w): return (w >> 1) * RING + (w & 1) * 27648

def helper(a, K):
    RX = int(OPT["rx"])
    a(f"s_setprio {OPT.get('hprio', 2)}")
    vXs, vWs = [24, 25], [26, 27]
    vL16, vGr, vGw = 7, 8, 9
    t0, t1, t2, t3 = 10, 11, 12, 13
    vGv = 14
    WM = [sum(1 << L for L in range(64) if ((L & 15) ^ (((L >> 4) | (hi << 2)) << 1)) != 15) for hi in range(2)]
    sM0, sM1 = sEx, 64
    a(f"""s_lshr_b32 s{sRot}, s2, 7
    s_lshl_b32 s{sT1}, s{sT1}, 1
    s_add_u32 s{sRot}, s{sRot}, s{sT1}
    s_and_b32 s{sT1}, s2, 7
    s_add_u32 s{sRot}, s{sRot}, s{sT1}
    s_sub_u32 s{sT1}, s{sRot}, 9
    s_cselect_b32 s{sRot}, s{sRot}, s{sT1}""")
    order = []
    a(f"""v_lshrrev_b32 v{t0}, 3, v0
    v_mul_u32_u24 v{t0}, 1152, v{t0}
    v_and_b32 v{t1}, 7, v0
    v_lshrrev_b32 v{t2}, 4, v0
    v_xor_b32 v{t1}, v{t1}, v{t2}
    v_lshlrev_b32 v{t1}, 4, v{t1}
    v_xor_b32 v{t2}, 64, v{t1}
    v_add_u32 v{vXs[0]}, v{t0}, v{t1}
    v_add_u32 v{vXs[1]}, v{t0}, v{t2}
    v_add_u32 v{vXs[1]}, {8*1152-1024}, v{vXs[1]}
    s_lshl_b32 s{sXb}, s{sE}, 4
    s_lshl_b32 s{sT0}, s{sHH}, 3
    s_add_u32 s{sXb}, s{sXb}, s{sT0}
    s_add_u32 s{sXb}, s{sXb}, s{sTH}
    s_mul_i32 s{sXb}, s{sXb}, {16*1152}
    s_lshl_b32 s{sKo}, s{sRot}, 7
    s_lshl_b32 s{sRing}, s{sWv}, 11
    s_add_u32 s{sRing}, s{sRing}, {L_XR}
    s_add_u32 s{sRef}, s{sXb}, s{sKo}
    s_mov_b32 s{sXm0}, s{sRing}""")
    sTo = [56, 57, 58, 59]
    for tt in range(4):
        a(f"""s_xor_b32 s{sTo[tt]}, s{sTt}, {tt}
        s_mul_i32 s{sTo[tt]}, s{sTo[tt]}, {32*1152}""")
    xstate = [0]
    def xnext():
        a(f"""s_add_u32 s{sKo}, s{sKo}, 128
        s_cmp_ge_u32 s{sKo}, 1152
        s_cselect_b32 s{sKo}, 0, s{sKo}
        s_add_u32 s{sRef}, s{sXb}, s{sKo}""")
    def xdma(j):
        tt = j & 3
        if tt == 0 and j: xnext()
        a(f"""s_mov_b32 m0, s{sXm0}
        s_add_u32 s{sT0}, s{sRef}, s{sTo[tt]}
        buffer_load_dwordx4 v{vXs[0]}, s[{sX}:{sX+3}], s{sT0} offen lds
        buffer_load_dwordx4 v{vXs[1]}, s[{sX}:{sX+3}], s{sT0} offen offset:1024 lds
        s_add_u32 s{sXm0}, s{sXm0}, 8192
        s_cmp_ge_u32 s{sXm0}, {L_XR + RX*8192}
        s_cselect_b32 s{sXm0}, s{sRing}, s{sXm0}""")
    srd_tail(a, sX, 2048 * 1152)
    srd_tail(a, sW, 576 * 3456)
    srd_tail(a, sG, 1152)
    a("s_waitcnt lgkmcnt(0)")
    stamp(a, 0, SV)
    xdma(0)
    order += ["X0"] * 2
    a(f"""v_lshrrev_b32 v{t0}, 4, v0
    v_lshlrev_b32 v{t1}, 1, v{t0}
    v_and_b32 v{t2}, 15, v0
    v_xor_b32 v{t1}, v{t1}, v{t2}
    s_mov_b32 s{sT0}, {((1<<4)|(1<<9)|(1<<14)) << 3}
    v_mul_u32_u24 v{t0}, 3456, v{t0}""")
    for hi in range(2):
        if hi: a(f"v_xor_b32 v{t1}, 8, v{t1}")
        a(f"""v_mul_u32_u24 v{t2}, 52, v{t1}
        v_lshrrev_b32 v{t2}, 8, v{t2}
        v_mul_u32_u24 v{t2}, {1152-80}, v{t2}
        v_lshl_add_u32 v{t2}, v{t1}, 4, v{t2}
        v_lshrrev_b32 v{t3}, v{t1}, s{sT0}
        v_and_b32 v{t3}, 8, v{t3}
        v_sub_u32 v{t2}, v{t2}, v{t3}
        v_add_u32 v{vWs[hi]}, v{t0}, v{t2}""")
    a(f"""v_lshlrev_b32 v{vL16}, 4, v0
    s_mul_i32 s{sT0}, s{sWv}, {16*3456}
    s_and_b32 s{sT1}, s{sPr}, 15
    s_mul_i32 s{sT1}, s{sT1}, 72
    s_add_u32 s{sWsrc}, s{sT0}, s{sT1}
    s_mul_i32 s{sWk}, s{sRot}, {64*3456}
    s_add_u32 s{sWcnt}, s{sWsrc}, s{sWk}
    s_lshl_b32 s{sWm0}, s{sWv}, 12
    s_lshl_b32 s{sT2}, s{sWv}, 11
    s_add_u32 s{sT2}, s{sT2}, {L_GT}
    s_mov_b32 s{sM0}, {WM[0] & 0xffffffff}
    s_mov_b32 s{sM0+1}, {WM[0] >> 32}
    s_mov_b32 s{sM1}, {WM[1] & 0xffffffff}
    s_mov_b32 s{sM1+1}, {WM[1] >> 32}""")
    def wdma2(hi):
        m = (sM0, sM1)[hi]
        a(f"""s_add_u32 m0, s{sWm0}, {L_WR + hi*2048}
        s_add_u32 s{sT0}, s{sWcnt}, {hi*8*3456}
        s_add_u32 s{sT1}, s{sWcnt}, {hi*8*3456 + 4*3456 - 1024}
        s_mov_b64 exec, s[{m}:{m+1}]
        buffer_load_dwordx4 v{vWs[hi]}, s[{sW}:{sW+3}], s{sT0} offen lds
        buffer_load_dwordx4 v{vWs[hi]}, s[{sW}:{sW+3}], s{sT1} offen offset:1024 lds
        s_mov_b64 exec, -1""")
    def wnext():
        a(f"""s_add_u32 s{sWk}, s{sWk}, {64*3456}
        s_cmp_ge_u32 s{sWk}, {576*3456}
        s_cselect_b32 s{sWk}, 0, s{sWk}
        s_add_u32 s{sWcnt}, s{sWsrc}, s{sWk}
        s_add_u32 s{sWm0}, s{sWm0}, {WSL}
        s_sub_u32 s{sT0}, s{sWm0}, {RW*WSL}
        s_cmp_ge_u32 s{sWm0}, {RW*WSL}
        s_cselect_b32 s{sWm0}, s{sT0}, s{sWm0}""")
    a(f"""s_mov_b32 m0, s{sT2}
    s_nop 0
    buffer_load_dwordx4 v{vL16}, s[{sG}:{sG+3}], 0 offen lds
    s_mov_b64 exec, 0xff
    buffer_load_dwordx4 v{vL16}, s[{sG}:{sG+3}], 0 offen offset:1024 lds
    s_mov_b64 exec, -1""")
    order += ["G"] * 2
    wdma2(0); wdma2(1)
    order += ["W0"] * 4
    wnext()
    xdma(1)
    order += ["X1"] * 2
    EARLY = OPT.get("early", "0") == "1"
    def second_batch():
        nonlocal order
        xdma(2)
        wdma2(0); wdma2(1)
        wnext()
        order += ["X2"] * 2 + ["W1"] * 4
        for j in range(3, RX - 1):
            xdma(j); order += [f"X{j}"] * 2
    a(f"s_mov_b32 s{sCnt}, s{sWm0}")
    if EARLY: second_batch()
    nb2 = len(order) - 10
    stamp(a, 16, SV)
    common_late(a)
    a(f"""s_lshl_b32 s{sT0}, s{sWv}, 5
    s_add_u32 s{sT0}, s{sT0}, s{sT2}
    v_lshl_add_u32 v{vGr}, v0, 1, s{sT0}
    v_and_b32 v{t1}, 3, v0
    v_lshlrev_b32 v{t1}, 1, v{t1}
    v_and_b32 v{t2}, 8, v0
    v_or_b32 v{t1}, v{t1}, v{t2}
    v_xor_b32 v{t1}, 15, v{t1}
    v_lshlrev_b32 v{t1}, 4, v{t1}
    v_lshl_add_u32 v{t1}, v0, 8, v{t1}
    s_lshl_b32 s{sGk}, s{sRot}, 7
    v_mov_b32 v{t0}, {L_SYNC}
    v_mov_b32 v20, 0
    v_mov_b32 v21, 0
    v_mov_b32 v22, 0
    v_mov_b32 v23, 0
    ds_write_b128 v{t0}, v[20:23]
    ds_write_b128 v{t0}, v[20:23] offset:16
    ds_write_b128 v{t0}, v[20:23] offset:32""")
    def gate(slotreg):
        a(f"""v_add_u32 v{t0}, s{sGk}, v{vGr}
        s_mov_b64 exec, 0xffff
        ds_read_u16 v{vGv}, v{t0}
        v_add_u32 v{t0}, s{slotreg}, v{t1}
        s_add_u32 s{sGk}, s{sGk}, 128
        s_cmp_ge_u32 s{sGk}, 1152
        s_cselect_b32 s{sGk}, 0, s{sGk}
        s_waitcnt lgkmcnt(0)
        ds_write2_b32 v{t0}, v{vGv}, v{vGv} offset0:0 offset1:1
        s_mov_b64 exec, -1""")
    vWos, vWos2, vPub, vC100, vPk, vA4, vSn = 28, 29, 30, 31, [76, 77, 78], 79, 80
    vP, vPa, vSy, vOne, vFa = 20, 17, 18, 19, 16
    vOm, vOt, vWm, vWt, vRd = [2, 252], 3, 4, 5, 6
    vVa3, vSy3 = [248, 253], 251
    HWB, HAC, HOF = 8, 188, 228
    u0, u1, u2, u3 = 84, 85, 86, 87
    def setup1():
        a(f"""v_mul_u32_u24 v{u0}, 57, v0
        v_lshrrev_b32 v{u0}, 10, v{u0}
        v_mul_u32_u24 v{u1}, 18, v{u0}
        v_sub_u32 v{u1}, v0, v{u1}
        v_lshlrev_b32 v{u1}, 4, v{u1}
        s_and_b32 s{sT0}, s{sE}, 1
        s_lshl_b32 s{sT0}, s{sT0}, 1
        s_mul_i32 s{sT1}, s{sWv}, 3
        s_add_u32 s{sT0}, s{sT0}, s{sT1}
        v_add_u32 v{u0}, s{sT0}, v{u0}
        v_mul_u32_u24 v{vWos}, 1152, v{u0}
        v_add_u32 v{vWos}, v{vWos}, v{u1}
        v_cmp_le_u32 vcc, 6, v{u0}
        v_add_u32 v{u2}, {12*1152}, v{vWos}
        v_subrev_u32 v{u3}, {6*1152}, v{vWos}
        v_cndmask_b32 v{vWos2}, v{u2}, v{u3}, vcc
        s_mul_i32 s{sT0}, s{sHH}, {RING}
        s_mul_i32 s{sT1}, s{sTH}, 5120
        s_add_u32 s{sT0}, s{sT0}, s{sT1}
        v_add_u32 v{vPub}, s{sT0}, v{vL16}
        s_lshl_b32 s{sT0}, s{sPr}, 2
        v_mov_b32 v{vPa}, s{sT0}
        s_lshl_b32 s{sT0}, s{sPr}, 12
        s_lshl_b32 s{sT3}, s{sHH}, 7
        s_add_u32 s{sT0}, s{sT0}, s{sT3}
        s_add_u32 s{sT0}, s{sT0}, {WS_F}
        v_and_b32 v{vFa}, 1, v0
        v_lshl_add_u32 v{vFa}, v{vFa}, 2, s{sT0}
        v_lshrrev_b32 v{u0}, 1, v0
        v_lshl_add_u32 v{vFa}, v{u0}, 8, v{vFa}
        v_mov_b32 v{vSy}, {L_SYNC}
        v_mov_b32 v{vOne}, 1
        v_mov_b32 v{vC100}, 0x100
        v_lshlrev_b32 v{vA4}, 2, v0
        v_bfe_u32 v{u0}, v0, 2, 3
        v_mul_u32_u24 v{u0}, 288, v{u0}
        v_and_b32 v{u1}, 3, v0
        v_lshlrev_b32 v{u1}, 3, v{u1}
        v_add_u32 v{u1}, {L_WO}, v{u1}
        v_and_b32 v{u2}, 32, v0
        v_add3_u32 v{vPk[1]}, v{u0}, v{u1}, v{u2}
        s_lshl_b32 s{sT0}, s{sWv}, 6
        v_add_u32 v{vPk[0]}, s{sT0}, v{vPk[1]}
        v_bfe_u32 v{u0}, v0, 2, 2
        v_mul_u32_u24 v{u0}, 288, v{u0}
        v_lshrrev_b32 v{u2}, 4, v0
        v_lshlrev_b32 v{u2}, 5, v{u2}
        v_add3_u32 v{u0}, v{u0}, v{u1}, v{u2}
        s_lshl_b32 s{sT0}, s{sWv}, 7
        v_add_u32 v{vPk[2]}, s{sT0}, v{u0}""")
        for i in range(4): a(f"v_mov_b32 v{vSn+i}, {SENT}")
    def setup2():
        p3_scal(a)
        p3_addr_w(a, vWm, vWt, u0, u1, u2)
        p3_addr_o(a, vOm, vOt, vRd, vVa3, vSy3, u0, u1, u2)
        p3_hint_addr(a, HOF)
        for i in range(40): a(f"v_mov_b32 v{HAC+i}, 0")
    SP = OPT.get('setup', 'head')
    if SP == 'head': setup1(); setup2()
    a(f"""s_sub_u32 s{sT3}, s{sCnt}, {WSL}
    s_waitcnt vmcnt({6 + nb2})""")
    stamp(a, 17, SV)
    gate(sT3); gate(sCnt)
    a(f"""s_waitcnt vmcnt({2 + nb2}) lgkmcnt(0)
    s_barrier""")
    stamp(a, 1, SV)
    if not EARLY: second_batch()
    stamp(a, 18, SV)
    a(f"""s_mov_b32 s{sIt}, 0
    v_add_u32 v{t0}, s{sGk}, v{vGr}
    {K}_hl:""")
    for tt in (0, 2):
        a(f"""s_waitcnt vmcnt(@W{tt}@) lgkmcnt(0)
        s_barrier""")
        if OPT.get("prof"):
            a(f"""s_memtime s[82:83]
            s_lshl_b32 m0, s{sIt}, 1
            s_add_u32 m0, m0, {2 + (tt >> 1)}
            s_waitcnt lgkmcnt(0)
            v_writelane_b32 v{SV-8}, s82, m0""")
        if not OPT.get("noh"):
            def thr(k):
                if OPT.get("thr"):
                    a(f"""s_bitcmp1_b32 {STRAD}, s{sPr}
                    s_cbranch_scc1 {K}_th{tt}{k}
                    s_waitcnt vmcnt({OPT["thr"]})
                    {K}_th{tt}{k}:""")
            if tt == 0:
                a(f"ds_read_u16 v{vGv}, v{t0}")
            else:
                a(f"""s_mov_b64 exec, 0xffff
                ds_write2_b32 v{t2}, v{vGv}, v{vGv} offset0:0 offset1:1""")
            wdma2(tt >> 1)
            thr(0)
            xdma(tt + RX - 1)
            thr(1)
            xdma(tt + RX)
            if tt == 0:
                a(f"""v_add_u32 v{t2}, s{sWm0}, v{t1}
                s_add_u32 s{sGk}, s{sGk}, 128
                s_cmp_ge_u32 s{sGk}, 1152
                s_cselect_b32 s{sGk}, 0, s{sGk}
                v_add_u32 v{t0}, s{sGk}, v{vGr}""")
    wnext()
    a(f"""s_add_u32 s{sIt}, s{sIt}, 1
    s_cmp_lt_u32 s{sIt}, 7
    s_cbranch_scc1 {K}_hl""")
    need = {0: 99, 2: 99}
    for j in range(0, 36, 2):
        req = [f"X{min(j+2,35)}"]
        if j % 4 == 2 and j // 4 + 1 <= 8: req.append(f"W{j//4+1}")
        last = max(i for i, o in enumerate(order) if o in req)
        n_ = len(order) - 1 - last
        if j < 28:
            need[j % 4] = min(need[j % 4], n_)
            order += [f"W{j//4+2}"] * 2 + [f"X{j+RX-1}"] * 2 + [f"X{j+RX}"] * 2
        else:
            a(f"""s_waitcnt vmcnt({n_}) lgkmcnt(0)
            s_barrier""")
            for jj in (j + RX - 1, j + RX):
                if jj <= 35:
                    xdma(jj); order += [f"X{jj}"] * 2
            if SP == 'tail' and j == 28: setup1()
            if SP == 'tail' and j == 30: setup2()
    for i in (0, 2): a.l = [x.replace(f"@W{i}@", str(need[i])) for x in a.l]
    stamp(a, 2, SV)
    if OPT.get("prof"):
        a(f"""v_readlane_b32 s80, v{SV+1}, 0
        v_readlane_b32 s81, v{SV+1}, 1
        v_readlane_b32 s82, v{SV+1}, 2
        s_nop 3
        v_writelane_b32 v{SV-8}, s80, 0
        v_writelane_b32 v{SV-8}, s81, 1
        v_writelane_b32 v{SV-8}, s82, 16
        s_lshl_b32 s80, s2, 3
        s_add_u32 s80, s80, s{sW8}
        s_lshl_b32 s80, s80, 8
        s_add_u32 s80, s80, {WS_STAMP + 0x80000}
        v_lshlrev_b32 v1, 2, v0
        buffer_store_dword v{SV-8}, v1, s[{sWS}:{sWS+3}], s80 offen""")
    sPH, sPC = sWsrc, sWm0
    sQ = sGk
    a(f"""s_lshl_b32 s{sPH}, s{sPr}, 1
    s_and_b32 s{sT0}, s{sE}, 1
    s_add_u32 s{sPH}, s{sPH}, s{sT0}
    s_lshr_b32 s{sPC}, s{sE}, 1
    s_and_b32 s{sT0}, s{sPH}, 31
    s_mul_i32 s{sT0}, s{sT0}, {18*1152}
    s_mul_i32 s{sT1}, s{sPC}, 288
    s_add_u32 s{sT0}, s{sT0}, s{sT1}
    s_mul_i32 s{sT1}, s{sWv}, 864
    s_add_u32 m0, s{sT1}, {L_WO}
    s_mov_b32 exec_hi, 0x003fffff
    buffer_load_dwordx4 v{vWos}, s[{sWo}:{sWo+3}], s{sT0} offen lds
    s_add_u32 m0, s{sT1}, {L_WO + 4*864}
    s_nop 0
    buffer_load_dwordx4 v{vWos2}, s[{sWo}:{sWo+3}], s{sT0} offen lds
    s_mov_b64 exec, 1
    buffer_load_dword v{vP+1}, v{vPa}, s[{sD}:{sD+3}], 0 offen sc1
    s_mov_b64 exec, -1
    s_mul_i32 s{sRing}, s{sHH}, {RING}
    s_mul_i32 s{sT2}, s{sTH}, 5120
    s_mul_i32 s{sT1}, s{sE}, {2*BLK}
    s_add_u32 s{sT1}, s{sT1}, s{sKVg}
    s_add_u32 s{sT1}, s{sT1}, s{sT2}
    s_mov_b32 s{sQ}, s{sTH}
    s_cmp_eq_u32 s{sTH}, 1
    s_cselect_b32 s{sM0}, 0xffff, -1
    s_cselect_b32 s{sM0+1}, 0, -1
    s_barrier""")
    t0 = vPub
    stamp(a, 3, SV)
    for i in range(5): a(f"ds_read_b128 {vr(32+4*i,4)}, v{t0} offset:{1024*i}")
    a(f"s_mov_b32 s{sXb}, s{sT1}")
    def publish(ph):
        for i in range(5 * ph, 5 * ph + 5):
            if i % 5 == 4: a(f"""s_add_u32 s{sXb}, s{sXb}, 4096
            s_mov_b64 exec, s[{sM0}:{sM0+1}]""")
            if ph == 0: a(f"s_waitcnt lgkmcnt({4-i})")
            a(f"buffer_store_dwordx4 {vr(32+4*i,4)}, v{vL16}, s[{sWS}:{sWS+3}], s{sXb} offen offset:{1024*((i%5)%4)} sc1")
            if i % 5 == 4: a(f"""s_mov_b64 exec, -1
            s_add_u32 s{sXb}, s{sXb}, {BLK-4096}""")
    publish(0)
    a("s_barrier")
    for i in range(5, 10): a(f"ds_read_b128 {vr(32+4*i,4)}, v{t0} offset:{BLK + 1024*(i-5)}")
    def arrive(word, vm=0):
        a(f"""s_mov_b64 exec, 1
        s_waitcnt vmcnt({vm})
        ds_add_rtn_u32 v{vP}, v{vSy}, v{vOne} offset:{4*word}
        s_waitcnt lgkmcnt(0)
        v_readfirstlane_b32 s{sT1}, v{vP}
        s_mov_b64 exec, -1
        s_cmp_eq_u32 s{sT1}, 3""")
    def lds_wait(lbl, word):
        a(f"""s_mov_b32 s{sSpin}, 400000
        {lbl}:
        ds_read_b32 v{vP}, v{vSy} offset:{4*word}
        s_waitcnt lgkmcnt(0)
        v_readfirstlane_b32 s{sT1}, v{vP}
        s_cmp_lg_u32 s{sT1}, 0
        s_cbranch_scc1 {lbl}_go
        s_sub_u32 s{sSpin}, s{sSpin}, 1
        s_cmp_eq_u32 s{sSpin}, 0
        s_cbranch_scc1 {lbl}_go
        s_sleep 6
        s_branch {lbl}
        {lbl}_go:""")
    def flag(off, vm):
        a(f"""s_lshl_b32 s{sT0}, s{sE}, 8
        s_lshl_b32 s{sT1}, s{sTH}, 2
        s_add_u32 s{sT0}, s{sT0}, s{sT1}
        s_mov_b64 exec, 1
        s_waitcnt vmcnt({vm})
        buffer_store_dword v{vOne}, v{vFa}, s[{sWS}:{sWS+3}], s{sT0} offen offset:{off} sc1
        s_mov_b64 exec, -1""")
    flag(0, 0)
    stamp(a, 4, SV)
    def rst_ok(r):
        a(f"""v_readfirstlane_b32 s{sT0}, v{r}
        s_and_b32 s{sT0}, s{sT0}, 0xff
        s_cmp_ge_u32 s{sT0}, 8""")
    def kv_ready():
        a(f"""v_cmp_eq_u32 vcc, 1, v{vP}
        s_nop 1
        s_cmp_eq_u32 vcc_lo, 0xffff""")
    a("s_mov_b64 exec, 1")
    rst_ok(vP + 1)
    a(f"s_cbranch_scc1 {K}_pl0_go")
    poll(a, f"{K}_pl0", f"buffer_load_dword v{vP}, v{vPa}, s[{sD}:{sD+3}], 0 offen sc1", lambda: rst_ok(vP), 8)
    a(f"""s_add_u32 s{sT2}, s{sTH}, 1
    s_xor_b32 s{sT2}, s{sT2}, s{sE}
    s_lshl_b32 s{sT2}, s{sT2}, 8
    s_mov_b64 exec, 3
    s_mov_b32 s{sSpin}, 40000
    buffer_load_dword v{vP}, v{vFa}, s[{sWS}:{sWS+3}], s{sT2} offen sc1
    s_sleep {OPT.get("fslp", 4)}
    buffer_load_dword v{vP+1}, v{vFa}, s[{sWS}:{sWS+3}], s{sT2} offen sc1
    s_sleep {OPT.get("fslp", 4)}
    {K}_pl1:""")
    for r_ in range(3):
        a(f"""buffer_load_dword v{vP+(r_+2)%3}, v{vFa}, s[{sWS}:{sWS+3}], s{sT2} offen sc1
        s_waitcnt vmcnt(2)
        v_cmp_eq_u32 vcc, 1, v{vP+r_}
        s_nop 1
        s_cmp_eq_u32 vcc_lo, 3
        s_cbranch_scc1 {K}_kgo""")
    a(f"""s_sub_u32 s{sSpin}, s{sSpin}, 1
    s_cmp_lg_u32 s{sSpin}, 0
    s_cbranch_scc1 {K}_pl1
    {K}_kgo:
    s_mov_b64 exec, -1""")
    stamp(a, 5, SV)
    def ldblock():
        a(f"s_call_b64 s[{sRet}:{sRet+1}], {K}_ldblk")
    ldblock()
    a("s_waitcnt lgkmcnt(0)")
    publish(1)
    a("s_waitcnt vmcnt(5)")
    stamp(a, 6, SV)
    a("s_barrier")
    flag(2048, 0)
    a("s_mov_b64 exec, 0xffff")
    poll(a, f"{K}_pl1a", f"buffer_load_dword v{vP}, v{vFa}, s[{sWS}:{sWS+3}], 0 offen sc1", kv_ready, 2)
    a("s_mov_b64 exec, -1")
    ldblock(); ldblock()
    a("s_waitcnt vmcnt(0)")
    stamp(a, 7, SV)
    a("s_barrier")
    a("s_mov_b64 exec, 0xffff")
    poll(a, f"{K}_pl1b", f"buffer_load_dword v{vP}, v{vFa}, s[{sWS}:{sWS+3}], 0 offen offset:2048 sc1", kv_ready, 2)
    a("s_mov_b64 exec, -1")
    ldblock(); ldblock()
    a(f"""ds_read_b64_tr_b16 {vr(64,2)}, v{vPk[0]}
    ds_read_b64_tr_b16 {vr(66,2)}, v{vPk[0]} offset:2304
    ds_read_b64_tr_b16 {vr(68,2)}, v{vPk[1]} offset:256
    ds_read_b64_tr_b16 {vr(70,2)}, v{vPk[1]} offset:{256+2304}
    ds_read_b64_tr_b16 {vr(72,2)}, v{vPk[2]} offset:{16*288-128}
    s_lshl_b32 s{sT0}, s{sPC}, 6
    s_add_u32 s{sT0}, s{sT0}, s{sPH}
    s_mul_i32 s{sT0}, s{sT0}, 4608
    s_add_u32 s{sT0}, s{sT0}, {WS_WOM}
    s_lshl_b32 s{sT1}, s{sWv}, 10
    s_add_u32 s{sT1}, s{sT1}, s{sT0}
    s_lshl_b32 s{sT2}, s{sPC}, 4
    s_lshr_b32 s{sT3}, s{sPH}, 2
    s_add_u32 s{sT2}, s{sT2}, s{sT3}
    s_mul_i32 s{sT2}, s{sT2}, 2304
    s_and_b32 s{sT3}, s{sPH}, 3
    s_lshl_b32 s{sT3}, s{sT3}, 2
    s_add_u32 s{sT2}, s{sT2}, s{sT3}
    s_lshl_b32 s{sT3}, s{sWv}, 10
    s_add_u32 s{sT2}, s{sT2}, s{sT3}
    s_add_u32 s{sT2}, s{sT2}, {WS_WOT - 1024}
    s_waitcnt lgkmcnt(0)
    buffer_store_dwordx4 {vr(64,4)}, v{vL16}, s[{sWS}:{sWS+3}], s{sT1} offen sc1
    s_cmp_eq_u32 s{sWv}, 0
    s_cbranch_scc0 {K}_wo_tail
    s_mov_b32 exec_hi, 0
    s_add_u32 s{sT3}, s{sT0}, 4096
    buffer_store_dwordx4 {vr(68,4)}, v{vL16}, s[{sWS}:{sWS+3}], s{sT3} offen sc1
    s_branch {K}_wo_done
    {K}_wo_tail:
    s_cmp_eq_u32 s{sWv}, 3
    s_cselect_b32 exec_lo, 0xffff, -1
    s_cselect_b32 exec_hi, 0, -1
    buffer_store_dword v72, v{vL16}, s[{sWS}:{sWS+3}], s{sT2} offen sc1
    {K}_wo_done:
    s_mov_b64 exec, -1""")
    a(f"""s_lshl_b32 s{sT1}, s{sE}, 1
    s_add_u32 s{sT1}, s{sT1}, s{sTH}
    s_lshl_b32 s{sT1}, s{sT1}, 8
    s_add_u32 s{sT1}, s{sT1}, s{sBH}
    s_mul_i32 s{sT1}, s{sT1}, 1152
    s_add_u32 s{sT1}, s{sT1}, {WS_O}""")
    for x in range(4):
        a(f"""buffer_store_dwordx4 {vr(vSn,4)}, v{vL16}, s[{sWS}:{sWS+3}], s{sT1} offen sc1
        s_mov_b64 exec, 0xff
        buffer_store_dwordx4 {vr(vSn,4)}, v{vL16}, s[{sWS}:{sWS+3}], s{sT1} offen offset:1024 sc1
        s_mov_b64 exec, -1
        s_add_u32 s{sT1}, s{sT1}, {64*1152}""")
    arrive(1)
    a(f"""s_cbranch_scc0 {K}_sg2
    s_mov_b64 exec, 1
    buffer_atomic_add v{vC100}, v{vPa}, s[{sD}:{sD+3}], 0 offen
    s_mov_b64 exec, -1
    {K}_sg2:""")
    a("s_barrier")
    ldblock(); ldblock()
    stamp(a, 12, SV)
    a(f"""s_cmp_eq_u32 s{sWv}, 0
    s_cbranch_scc0 {K}_gw
    s_mov_b32 exec_hi, 0""")
    def all_init():
        a(f"""v_bfe_u32 v{vP}, v{vP}, 8, 8
        v_cmp_le_u32 vcc, 8, v{vP}
        s_nop 1
        s_cmp_eq_u32 vcc_lo, -1""")
    poll(a, f"{K}_pl2", f"buffer_load_dword v{vP}, v{vA4}, s[{sD}:{sD+3}], 0 offen sc1", all_init, 32)
    a(f"""ds_write_b32 v{vSy}, v{vOne} offset:12
    s_mov_b64 exec, -1
    s_branch {K}_ggo
    {K}_gw:""")
    lds_wait(f"{K}_lw2", 3)
    a(f"{K}_ggo:")
    HC = [0, 1, 2, 3, 4]
    hreg = lambda s, ct: HWB + 4 * (5 * s + ct)
    p3_wo_loads(a, HC, hreg, vWm, vWt)
    a("s_waitcnt vmcnt(45)")
    stamp(a, 8, SV)
    a("s_barrier")
    if not OPT.get('x_nowarm'): p3_wo_loads(a, [8], lambda s, ct: HOF + 4 * (s % 4), vWm, vWt)
    a(f"""s_mul_i32 s{sT0}, s{sTH}, 27648
    s_add_u32 s{sT0}, s{sT0}, s{sRing}
    s_barrier""")
    for s in range(9 if not OPT.get('x_nostage') else 0):
        for i, ct in enumerate(CL):
            n = 3 * s + i
            if s < 8:
                a(f"""s_add_u32 m0, s{sT0}, {1024*n}
                s_add_u32 s{sT3}, s{sGW[s>>1]}, {2*(s&1)*4608 + 512*ct}
                buffer_load_dwordx4 v{vWm}, s[{sWS}:{sWS+3}], s{sT3} offen sc1 lds""")
            else:
                a(f"""s_add_u32 m0, s{sT0}, {1024*n}
                s_add_u32 s{sT3}, s{sWtb}, {256*ct}
                buffer_load_dwordx4 v{vWt}, s[{sWS}:{sWS+3}], s{sT3} offen sc1 lds""")
    a(f"""s_mul_i32 s{sT0}, s{sP3T}, {32*1152}
    buffer_load_dword v1, v{vL16}, s[{sOut}:{sOut+3}], s{sT0} offen
    s_waitcnt vmcnt(0)""")
    stamp(a, 9, SV)
    a("s_barrier")
    stamp(a, 10, SV)
    p3_helper(a, HC, hreg, HAC, HOF, vOm, vOt, vRd, vL16, vVa3, vSy3, int(OPT.get("hslp", 1)))
    stamp(a, 11, SV)
    if OPT["stamp"]: a(f"v_mov_b32 v30, v{SV}\nv_mov_b32 v31, v{SV+1}")
    a(f"s_branch {K}_final")
    a(f"""{K}_ldblk:
    s_add_u32 s{sQ}, s{sQ}, 2
    s_cmp_ge_u32 s{sQ}, 9
    s_cselect_b32 s{sT0}, 0, 7
    s_cselect_b32 s{sT2}, 1, 0
    s_add_u32 s{sT0}, s{sT0}, s{sQ}
    s_and_b32 s{sT0}, s{sT0}, 7
    s_xor_b32 s{sT0}, s{sT0}, s{sE}
    s_lshl_b32 s{sT0}, s{sT0}, 1
    s_add_u32 s{sT0}, s{sT0}, s{sT2}
    s_mul_i32 s{sT1}, s{sT0}, {BLK}
    s_add_u32 s{sT1}, s{sT1}, s{sKVg}
    s_and_b32 s{sT0}, s{sQ}, 7
    s_mul_i32 s{sT0}, s{sT0}, {BLK}
    s_add_u32 s{sT0}, s{sT0}, s{sRing}""")
    for i in range(10):
        if i % 4 == 0:
            a(f"""s_add_u32 m0, s{sT0}, {1024*i}
            s_add_u32 s{sT2}, s{sT1}, {1024*i}""")
        if i == 9: a("s_mov_b64 exec, 0xffff")
        a(f"buffer_load_dwordx4 v{vL16}, s[{sWS}:{sWS+3}], s{sT2} offen offset:{1024*(i%4)} sc1 lds")
    a(f"""s_mov_b64 exec, -1
    s_setpc_b64 s[{sRet}:{sRet+1}]""")

def compute(a, K):
    RX = int(OPT["rx"])
    common_late(a)
    a("s_waitcnt lgkmcnt(0)")
    stamp(a, 0, 30)
    vXr = [2, 3, 20, 21]
    vWc = [4, 5, 9, 1]
    t0, t1, t2, t3, t4, t5 = 64, 65, 66, 67, 68, 69
    WF = 32
    XF = [96, 112]
    ACC = 128
    def reset_flags():
        a(f"""s_cmp_eq_u32 s{sWv}, 0
        s_cselect_b32 s{sCnt}, {OPT.get("rstit", 4)}, 100
        s_cbranch_scc0 {K}_norst
        s_lshl_b32 s{sT0}, s{sPr}, 12
        s_lshl_b32 s{sT1}, s{sE}, 8
        s_add_u32 s{sT0}, s{sT0}, s{sT1}
        s_add_u32 s{sT0}, s{sT0}, {WS_F}
        v_lshlrev_b32 v75, 7, v0
        v_mov_b32 v76, 0
        v_mov_b32 v77, 0
        s_mov_b64 exec, 3
        buffer_store_dwordx2 v[76:77], v75, s[{sWS}:{sWS+3}], s{sT0} offen sc1
        buffer_store_dwordx2 v[76:77], v75, s[{sWS}:{sWS+3}], s{sT0} offen offset:2048 sc1""")
        if OPT.get("touch", "1") == "1":
            a(f"""s_mov_b64 exec, 1
            buffer_load_dword v78, v75, s[{sWS}:{sWS+3}], s{sKVg} offen
            s_add_u32 s{sT0}, s{sKVg}, {2*KVH-128}
            buffer_load_dword v79, v75, s[{sWS}:{sWS+3}], s{sT0} offen""")
        a(f"""s_mov_b64 exec, -1
        {K}_norst:""")
    a(f"v_mov_b32 v{ACC}, 0")
    if OPT.get("rstpos", "late") == "start": reset_flags()
    a(f"""v_and_b32 v{t0}, 15, v0
    v_lshrrev_b32 v{t1}, 4, v0
    v_bfe_u32 v{t2}, v0, 1, 3
    v_xor_b32 v{t2}, v{t2}, v{t1}
    v_lshlrev_b32 v{t2}, 4, v{t2}
    v_lshlrev_b32 v{t3}, 7, v{t0}
    s_lshl_b32 s{sT0}, s{sTH}, 12
    s_lshl_b32 s{sT1}, s{sHH}, 11
    s_add_u32 s{sT0}, s{sT0}, s{sT1}
    s_add_u32 s{sT0}, s{sT0}, {L_XR}
    v_add_u32 v{t3}, s{sT0}, v{t3}
    v_add_u32 v{vXr[0]}, v{t3}, v{t2}
    v_xor_b32 v{t2}, 64, v{t2}
    v_add_u32 v{vXr[1]}, v{t3}, v{t2}
    v_xor_b32 v{vXr[2]}, 2048, v{vXr[0]}
    v_xor_b32 v{vXr[3]}, 2048, v{vXr[1]}
    v_bfe_u32 v{t2}, v0, 2, 2
    v_lshl_add_u32 v{t2}, v{t1}, 3, v{t2}
    v_lshlrev_b32 v{t2}, 8, v{t2}
    v_bfe_u32 v{t4}, v0, 2, 3
    v_lshlrev_b32 v{t4}, 5, v{t4}
    v_and_b32 v{t3}, 3, v0
    v_lshlrev_b32 v{t3}, 3, v{t3}
    s_mul_i32 s{sT1}, s{sHH}, 40
    s_mov_b32 s{sT0}, {192 | (112 << 8) | (32 << 16) | (240 << 24)}
    v_lshrrev_b32 v{t5}, v{t3}, s{sT0}
    v_and_b32 v{t5}, 0xff, v{t5}
    v_xor_b32 v{t5}, v{t5}, v{t4}
    v_add_u32 v{vWc[3]}, v{t2}, v{t5}
    v_add_u32 v{t3}, s{sT1}, v{t3}
    v_lshrrev_b32 v{t5}, 3, v{t3}
    v_and_b32 v{t5}, 8, v{t5}
    v_add_u32 v{t3}, v{t3}, v{t5}""")
    for ct, off in enumerate((80, 0, 160)):
        a(f"""v_add_u32 v{t5}, {off}, v{t3}
        v_xor_b32 v{t5}, v{t5}, v{t4}
        v_add_u32 v{vWc[ct]}, v{t2}, v{t5}""")
    for i in range(1, 128):
        if i % 32 < 28: a(f"v_mov_b32 v{ACC+i}, 0")
    vKa, vTa, vVa, vIdx = 6, 7, 8, 10
    vKw, vQw, vVw, vMul, vSq, vSqh = 11, 12, 13, 24, 25, 19
    vSt, vStt, vWm3, vWt, vCp, vOnes, vQr = 14, 15, 16, 17, 18, 22, 23
    vM0, vDs, vDt, vDe, vDh = 70, 71, 72, 73, 74
    MA = lambda tt, i: ACC + 32 * tt + 28 + i
    sBlk, sScr = sXb, sKo
    a(f"""s_mul_i32 s{sRing}, s{sHH}, {RING}
    s_mul_i32 s{sBlk}, s{sTH}, {BLK}
    s_add_u32 s{sBlk}, s{sBlk}, s{sRing}
    s_mul_i32 s{sScr}, s{sWv}, 5120
    s_add_u32 s{sScr}, s{sScr}, {L_SCR}
    v_lshrrev_b32 v{t2}, 2, v{t0}
    v_and_b32 v{t3}, 3, v0
    v_lshl_add_u32 v{t4}, v{t2}, 3, v{t3}
    v_lshrrev_b32 v{t5}, 5, v0
    v_lshlrev_b32 v{t5}, 9, v{t5}
    v_and_b32 v{vQw}, 16, v0
    v_lshrrev_b32 v{vQw}, 1, v{vQw}
    v_add_u32 v{t5}, v{t5}, v{vQw}
    v_lshl_add_u32 v{vKw}, v{t4}, 4, v{t5}
    s_lshl_b32 s{sT0}, s{sTH}, 11
    s_add_u32 s{sT0}, s{sT0}, s{sRing}
    v_add_u32 v{vKw}, s{sT0}, v{vKw}
    v_lshl_add_u32 v{vQw}, v{t0}, 4, v{t5}
    v_add_u32 v{vQw}, s{sScr}, v{vQw}
    v_mul_u32_u24 v{vVw}, 304, v{t1}
    v_lshl_add_u32 v{vVw}, v{t0}, 4, v{vVw}
    s_mul_i32 s{sT0}, s{sTH}, 2432
    s_add_u32 s{sT0}, s{sT0}, s{sRing}
    v_add_u32 v{vVw}, s{sT0}, v{vVw}""")
    a(f"""s_mul_i32 s{sT2}, s{sTH}, 2432
    s_mul_i32 s{sT3}, s{sTH}, 5120
    v_mul_u32_u24 v{vM0}, 304, v{t2}
    v_lshl_add_u32 v{vM0}, v{t3}, 1, v{vM0}
    s_add_u32 s{sT0}, s{sT2}, {4608+256}
    v_add_u32 v{vM0}, s{sT0}, v{vM0}
    s_lshl_b32 s{sT0}, s{sTH}, 3
    s_add_u32 s{sT0}, s{sT0}, 4096
    s_add_u32 s{sT1}, s{sT3}, {L_SCR+4096-1024}
    v_lshlrev_b32 v{t5}, 9, v{t1}
    v_add_u32 v{t5}, s{sT1}, v{t5}
    v_mov_b32 v{vDh}, s{sT0}
    v_cmp_eq_u32 vcc, 1, v{t1}
    v_mov_b32 v{vDs}, 64
    v_mov_b32 v{vDt}, 4
    v_cndmask_b32 v{t5}, v{t5}, v{vDh}, vcc
    v_lshl_add_u32 v{t5}, v{t4}, 4, v{t5}
    v_cmp_eq_u32 vcc, 0, v{t1}
    v_mov_b32 v{vDe}, 2
    v_mov_b32 v{t3}, 1216
    v_cndmask_b32 v{vM0}, v{t5}, v{vM0}, vcc
    v_cndmask_b32 v{vDs}, v{vDs}, 8, vcc
    v_cndmask_b32 v{vDt}, v{vDt}, v{t3}, vcc
    v_cndmask_b32 v{vDe}, v{vDe}, 16, vcc
    v_cmp_gt_u32 vcc, 2, v{t1}
    v_mov_b32 v{vDh}, {2*5120}
    v_mov_b32 v{t3}, {RING}
    v_cndmask_b32 v{vDh}, v{vDh}, v{t3}, vcc
    v_mov_b32 v{t5}, 8
    v_mov_b32 v{t3}, {BLK}
    v_cndmask_b32 v{t5}, v{t5}, v{t3}, vcc
    v_mul_u32_u24 v{t3}, s{sHH}, v{vDs}
    v_add_u32 v{MA(0,0)}, v{vM0}, v{t3}
    v_sub_u32 v{t3}, v{vDs}, v{t3}
    v_add3_u32 v{MA(0,2)}, v{vM0}, v{t3}, v{vDh}
    v_add_u32 v{MA(0,1)}, v{MA(0,0)}, v{vDe}
    v_add_u32 v{MA(0,3)}, v{MA(0,2)}, v{vDe}""")
    for i in range(4):
        a(f"""v_add_u32 v{MA(1,i)}, v{MA(0,i)}, v{vDt}
        v_add_u32 v{MA(2,i)}, v{MA(0,i)}, v{t5}
        v_add_u32 v{MA(3,i)}, v{MA(1,i)}, v{t5}""")
    a(f"""v_cmp_eq_u32 vcc, 2, v{t1}
    v_mov_b32 v{vMul}, 1.0
    v_mov_b32 v{t2}, {f32(CSCALE)}
    v_cndmask_b32 v{vMul}, v{vMul}, v{t2}, vcc""")
    a(f"""v_and_b32 v{t2}, 16, v0
    v_lshrrev_b32 v{t2}, 2, v{t2}
    v_add_u32 v{t2}, v{t2}, v{t4}
    v_lshlrev_b32 v{vSq}, 4, v{t2}
    s_add_u32 s{sT1}, s{sScr}, 4096
    v_add_u32 v{vSq}, s{sT1}, v{vSq}
    v_and_b32 v{t0}, 31, v0
    v_lshrrev_b32 v{t1}, 5, v0
    v_mul_u32_u24 v{t3}, 304, v{t1}
    v_lshl_add_u32 v{t3}, v{t0}, 4, v{t3}
    v_add_u32 v{t3}, s{sRing}, v{t3}
    v_cmp_gt_u32 vcc, 19, v{t0}
    v_mov_b32 v{vVa}, {LDS_BYTES}
    v_lshl_add_u32 v{vKa}, v0, 4, s{sRing}
    v_cndmask_b32 v{vVa}, v{vVa}, v{t3}, vcc
    v_lshl_add_u32 v{vTa}, v{t0}, 4, s{sRing}
    v_mov_b32 v{vIdx}, 0xdddddddd
    v_lshl_add_u32 v{vSqh}, v{t1}, 2, v{vSq}
    s_mov_b32 s{sWsrc}, 0
    s_mov_b32 s{sXm0}, 0
    v_mul_u32_u24 v{vOnes}, 304, v0
    v_add_u32 v{vOnes}, s{sBlk}, v{vOnes}
    v_lshl_add_u32 v{vQr}, v0, 4, s{sScr}
    s_mul_i32 s{sT0}, s{sTH}, 27648
    s_add_u32 s{sT0}, s{sT0}, s{sRing}
    v_lshl_add_u32 v{vCp}, v0, 4, s{sT0}
    s_lshl_b32 s{sT0}, s{sHH}, 4
    v_xor_b32 v{t2}, s{sT0}, v0
    v_lshlrev_b32 v{vSt}, 4, v{t2}
    s_and_b32 s{sT0}, s{sTt}, 1
    v_xor_b32 v{vStt}, s{sT0}, v{t1}
    v_mul_u32_u24 v{vStt}, {64*1152}, v{vStt}
    v_and_b32 v{t2}, 31, v{t2}
    v_lshl_add_u32 v{vStt}, v{t2}, 2, v{vStt}
    s_lshl_b32 s{sT1}, s{sE}, 1
    s_add_u32 s{sT1}, s{sT1}, s{sTH}
    s_lshl_b32 s{sT1}, s{sT1}, 8
    s_add_u32 s{sT1}, s{sT1}, s{sBH}
    s_mul_i32 s{sT1}, s{sT1}, 1152
    s_add_u32 s{sRef}, s{sT1}, {WS_O}
    s_cmp_ge_u32 s{sPr}, 16
    s_mov_b32 s60, {f32(-LOG2E)}
    s_cselect_b32 s60, {f32(LOG2E)}, s60
    s_mov_b32 s61, {f32(2.0**-40)}
    s_mov_b32 s64, {f32(2.0**40) if not OPT['force_fb'] else f32(2.0**-39)}
    s_mov_b32 s65, {f32(CSCALE)}""")
    for x in range(4):
        a(f"""s_xor_b32 s{56+x}, s{sTt}, {x}
        s_mul_i32 s{56+x}, s{56+x}, {64*1152}
        s_add_u32 s{56+x}, s{56+x}, s{sRef}""")
    a("""s_min_u32 s4, s56, s57
    s_min_u32 s5, s58, s59""")
    p3_scal(a)
    p3_addr_w(a, vWm3, vWt, t0, t1, t2)
    coff = (48, 0, 96, 0)
    def wfrag(k2):
        r = []
        for ct in range(4):
            for hf in range(2):
                r.append(f"ds_read_b64_tr_b16 {vr(WF+16*k2+4*ct+2*hf,2)}, v{vWc[ct]} offset:{L_WR + (32*k2+4*hf)*256}")
        return r
    def xread(buf):
        r = []
        for k2 in range(2):
            for s in range(2):
                r.append(f"ds_read_b128 {vr(XF[buf]+8*k2+4*s,4)}, v{vXr[2*s+k2]}")
        return r
    xadv = [f"s_add_u32 s{sXm0}, s{sXm0}, 1", f"s_cmp_eq_u32 s{sXm0}, {RX}", f"s_cselect_b32 s{sXm0}, 0, s{sXm0}",
            f"s_cselect_b32 s{sT1}, s{sWk}, s{sWcnt}",
            ] + [f"v_add_u32 v{c}, s{sT1}, v{c}" for c in vXr]
    wadv = [f"s_add_u32 s{sWsrc}, s{sWsrc}, 1", f"s_cmp_eq_u32 s{sWsrc}, {RW}", f"s_cselect_b32 s{sWsrc}, 0, s{sWsrc}",
            f"s_cselect_b32 s{sT2}, s{sWm0}, s{sGk}",
            ] + [f"v_add_u32 v{c}, s{sT2}, v{c}" for c in vWc]
    if OPT.get('noadv'):
        xadv = [''] * 8; wadv = [''] * 8
    a(f"""s_mov_b32 s{sWk}, {(-(RX-1)*8192) & 0xffffffff}
    s_mov_b32 s{sWcnt}, 8192
    s_mov_b32 s{sWm0}, {(-(RW-1)*WSL) & 0xffffffff}
    s_mov_b32 s{sGk}, {WSL}""")
    if OPT.get("rstpos", "late") == "late": reset_flags()
    if OPT.get("pf9", "1") == "1":
        a(f"""s_lshr_b32 s{sT0}, s2, 5
        s_bfe_u32 s{sT1}, s2, {(2 << 16) | 3}
        s_cmp_eq_u32 s{sWv}, 0
        s_cbranch_scc1 {K}_pfx
        s_cmp_eq_u32 s{sWv}, 1
        s_cbranch_scc0 {K}_pfw
        s_lshl_b32 s{sT2}, s{sT1}, 1
        s_sub_u32 s{sT2}, s{sT2}, 1
        s_cselect_b32 s{sT2}, 8, s{sT2}
        s_lshl_b32 s{sT2}, s{sT2}, 7
        s_lshl_b32 s{sT3}, s{sE}, 3
        s_add_u32 s{sT3}, s{sT3}, s{sT0}
        s_mul_i32 s{sT3}, s{sT3}, {32*1152}
        s_add_u32 s{sT2}, s{sT2}, s{sT3}
        v_mul_u32_u24 v75, 1152, v0
        s_mov_b32 exec_hi, 0
        buffer_load_dword v76, v75, s[{sX}:{sX+3}], s{sT2} offen
        s_branch {K}_pfd
        {K}_pfw:
        s_sub_u32 s{sT2}, s{sT0}, 1
        s_cselect_b32 s{sT2}, 8, s{sT2}
        s_lshl_b32 s{sT2}, s{sT2}, 2
        s_add_u32 s{sT2}, s{sT2}, s{sT1}
        s_mul_i32 s{sT2}, s{sT2}, {16*3456}
        s_and_b32 s{sT3}, s{sPr}, 15
        s_mul_i32 s{sT3}, s{sT3}, 72
        s_add_u32 s{sT2}, s{sT2}, s{sT3}
        s_mul_i32 s{sT3}, s{sTH}, 68
        s_add_u32 s{sT2}, s{sT2}, s{sT3}
        v_mul_u32_u24 v75, 1152, v0
        s_mov_b32 exec_hi, 0xffff
        buffer_load_dword v76, v75, s[{sW}:{sW+3}], s{sT2} offen
        {K}_pfd:
        s_mov_b64 exec, -1
        {K}_pfx:""")
    a("s_barrier")
    stamp(a, 1, 30)
    if OPT.get("rstpos", "late") == "afterp": reset_flags()
    for m in xread(0) + xadv + wfrag(0) + wfrag(1): a(m)
    QM, QT = 32, 48
    KF, V0, V1, KT = [80, 84], [88, 92], [96, 100], [56, 60]
    vGl = 26
    TP = 108
    def epi(tt):
        tp = (64, 80)[tt % 2]
        r = []
        for s in range(2):
            b = ACC + 32 * tt + 16 * s
            k_, q_ = tp + 2 * s, tp + 4 + 2 * s
            r += f"""v_cvt_pk_bf16_f32 v{k_}, v{b}, v{b+1}
            v_cvt_pk_bf16_f32 v{k_+1}, v{b+2}, v{b+3}
            v_mul_f32 v{b+4}, s65, v{b+4}
            v_mul_f32 v{b+5}, s65, v{b+5}
            v_mul_f32 v{b+6}, s65, v{b+6}
            v_mul_f32 v{b+7}, s65, v{b+7}
            ds_write_b64 v{vKw}, {vr(k_,2)} offset:{(tt>>1)*BLK + (tt&1)*1024 + s*64}
            v_cvt_pk_bf16_f32 v{q_}, v{b+4}, v{b+5}
            v_cvt_pk_bf16_f32 v{q_+1}, v{b+6}, v{b+7}
            v_cvt_pk_bf16_f32 v{tp+8+2*s}, v{b+8}, v{b+9}
            v_cvt_pk_bf16_f32 v{tp+9+2*s}, v{b+10}, v{b+11}
            ds_write_b64 v{vQw}, {vr(q_,2)} offset:{tt*1024 + s*256}""".split("\n")
        b = ACC + 32 * tt
        r += f"""ds_write_b128 v{vVw}, {vr(tp+8,4)} offset:{4608 + (tt>>1)*BLK + (tt&1)*1216}
        v_mul_f32 v{b+12}, v{vMul}, v{b+12}
        v_mul_f32 v{b+13}, v{vMul}, v{b+13}
        v_mul_f32 v{b+14}, v{vMul}, v{b+14}
        v_mul_f32 v{b+15}, v{vMul}, v{b+15}
        v_cvt_pk_bf16_f32 v{tp+12}, v{b+12}, v{b+13}
        v_cvt_pk_bf16_f32 v{tp+13}, v{b+14}, v{b+15}
        ds_write_b16 v{MA(tt,0)}, v{tp+12}
        ds_write_b16_d16_hi v{MA(tt,1)}, v{tp+12}
        ds_write_b16 v{MA(tt,2)}, v{tp+13}
        ds_write_b16_d16_hi v{MA(tt,3)}, v{tp+13}""".split("\n")
        return r
    NM = 14
    def chunk(last):
        for tt in range(4):
            cur = XF[tt & 1]
            mf = []
            for k2 in range(2):
                for ct in range(4):
                    for s in range(2 if ct < 3 else 1):
                        d = ACC + 32 * tt + 16 * s + 4 * ct
                        w_, x_ = vr(WF + 16 * k2 + 4 * ct, 4), vr(cur + 8 * k2 + 4 * s, 4)
                        A_, B_ = (x_, w_) if ct == 2 else (w_, x_)
                        mf.append(f"v_mfma_f32_16x16x32_bf16 {vr(d,4)}, {A_}, {B_}, {vr(d,4)}")
            fill = {i: [] for i in range(-1, NM)}
            xr = xread((tt + 1) & 1)
            if tt == 0:
                fill[-1].append("s_waitcnt lgkmcnt(8)")
                for i in range(4): fill[i].append(xr[i])
                fill[6].append("s_waitcnt lgkmcnt(4)")
                for i in range(8): fill[(4, 5, 7, 8, 9, 10, 11, 12)[i]].append(xadv[i])
                if last:
                    for i in range(4): fill[i].append(f"v_mov_b32 v{92+i}, 0x3f803f80")
                    fill[13] += ["s_mov_b64 exec, 0xffff", f"ds_write_b128 v{vOnes}, v[92:95] offset:{4608+288}", "s_mov_b64 exec, -1"]
            elif last:
                if tt < 3:
                    for i in range(4): fill[i // 2].append(xr[i])
                    if tt == 1:
                        for i in range(8): fill[2 + i // 3].append(xadv[i])
                e = epi(tt - 1)
                st = (0, 5, 2, 1)[tt]
                per = -(-len(e) // (NM - st))
                for i, m in enumerate(e): fill[st + i // per].append(m)
            elif tt == 3:
                for i in range(4): fill[-1 + (i + 1) // 2].append(xr[i])
                w0, w1 = wfrag(0), wfrag(1)
                lastuse = (1, 3, 5, 6)
                for ct in range(4):
                    fill[lastuse[ct]] += [w0[2 * ct]]; fill[lastuse[ct] + 1] += [w0[2 * ct + 1]]
                    fill[7 + lastuse[ct]] += [w1[2 * ct]]; fill[min(NM - 1, 8 + lastuse[ct])] += [w1[2 * ct + 1]]
                for i in range(8): fill[(2, 3, 4, 5, 7, 8, 9, 10)[i]].append(xadv[i])
                fill[11].append(f"s_sub_u32 s{sIt}, s{sIt}, 1")
            else:
                for i in range(4): fill[i].append(xr[i])
                for i in range(8): fill[4 + i].append(xadv[i])
                if tt == 1:
                    for i in range(4): fill[10 + i].append(wadv[i])
                if tt == 2:
                    for i in range(4): fill[10 + i].append(wadv[4 + i])
            if tt % 2 == 0: a("s_barrier")
            for m in fill[-1]: a(m)
            for i in range(NM):
                if not OPT.get("nomf"): a(mf[i])
                for m in fill[i]: a(m)
            if last:
                if tt == 0: a("s_waitcnt lgkmcnt(1)")
                elif tt == 1: a("s_waitcnt lgkmcnt(9)")
                elif tt == 2: a("s_waitcnt lgkmcnt(0)\ns_barrier")
            elif tt == 3:
                a(f"""s_waitcnt lgkmcnt(15)
                s_cmp_eq_u32 s{sIt}, s{sCnt}
                s_cbranch_scc1 {K}_rst
                {K}_rst_ret:
                s_cmp_lg_u32 s{sIt}, 0""")
            else:
                a("s_waitcnt lgkmcnt(0)")
    a(f"""s_mov_b32 s{sIt}, 8
    s_waitcnt lgkmcnt(0)
    {K}_p1:""")
    chunk(False)
    a(f"s_cbranch_scc1 {K}_p1")
    a("s_waitcnt vmcnt(0)")
    chunk(True)
    stamp(a, 2, 30)
    a("s_nop 1")
    for m in epi(3): a(m)
    S = [128, 144, 160, 176]
    O = [192, 208, 224, 240]
    zo = [f"v_mov_b32 v{O[x]+i}, 0" for x in range(4) for i in range(11)]
    zq = [f"v_mov_b32 v{QT+4*j+i}, 0" for j in range(2) for i in (1, 2)]
    zs = [f"v_mov_b32 v{S[3]+8+i}, 0" for i in range(8)] + [f"v_mov_b32 v{V1[1]+i}, 0" for i in range(4)]
    for m in zo[:22]: a(m)
    a("s_waitcnt lgkmcnt(0)")
    for x in range(4): a(f"ds_read_b128 {vr(QM+4*x,4)}, v{vQr} offset:{1024*x}")
    a("s_barrier")
    stamp(a, 3, 30)
    NB = int(OPT["nb"])
    T2F = OPT.get("t2f", "0") == "1"
    def ldK(t, buf): return f"ds_read_b128 {vr(KF[buf],4)}, v{vKa} offset:{((t//4)%NB)*BLK + (t%4)*1024}"
    def ldV(t, half, buf): return f"ds_read_b128 {vr((V0,V1)[half][buf],4)}, v{vVa} offset:{((t//4)%NB)*BLK + 4608 + (t%4)*1216 + 608*half}"
    def ldT(b=0): return f"ds_read_b128 {vr(KT[b%2],4)}, v{vTa} offset:{(b%NB)*BLK + 4096}"
    def QKM(t, x, s, c="0"): return f"v_mfma_f32_32x32x16_bf16 {vr(s,16)}, {vr(KF[t%2],4)}, {vr(QM+4*x,4)}, {c}"
    def QKT(t, x, s): return f"v_mfma_f32_32x32x4_2b_bf16 {vr(s,32)}, {vr(KT[(t//4)%2]+(t&2),2)}, {vr(QT+2*x+2*(t&1),2)}, {vr(s,32) if not T2F else 0}"
    def PV(half, t, x, s): return f"v_smfmac_f32_32x32x32_bf16 {vr(O[x],16)}, {vr((V0,V1)[half][t%2],4)}, {vr(s+8*half,8)}, v{vIdx}"
    a(ldK(0, 0))
    a(f"ds_read2_b32 {vr(TP,2)}, v{vSqh} offset0:0 offset1:2")
    a(ldT()); a(ldV(0, 0, 0)); a(ldV(0, 1, 0))
    a(f"ds_read_b128 {vr(TP+4,4)}, v{vSq} offset:512")
    HOOKS = [1, 3, 7, 11, 13, 15]
    assert NB % 2 == 0
    for m in zq + zs: a(m)
    a(f"""s_mov_b32 s{sIt}, 0
    s_mov_b32 s{sWk}, {NB*BLK}
    s_mov_b32 s{sWcnt}, {(NB*BLK - RING) & 0xffffffff}
    s_waitcnt lgkmcnt(4)""")
    if not T2F:
        a(QKM(0, 0, S[0]))
        a(f"""v_mov_b32 v{QT}, v{TP}
    v_mov_b32 v{QT+3}, v{TP}
    v_mov_b32 v{QT+4}, v{TP+1}
    v_mov_b32 v{QT+7}, v{TP+1}""")
        a(QKM(0, 1, S[1]))
        for m in zo[22:27]: a(m)
        a(QKM(0, 2, S[2]))
        for m in zo[27:32]: a(m)
        a("s_waitcnt lgkmcnt(3)")
        a(QKT(0, 0, S[0]))
        for m in zo[32:]: a(m)
        a("s_nop 6")
        a("s_waitcnt lgkmcnt(0)")
    else:
        a(f"""v_mov_b32 v{QT}, v{TP}
        v_mov_b32 v{QT+3}, v{TP}
        v_mov_b32 v{QT+4}, v{TP+1}
        v_mov_b32 v{QT+7}, v{TP+1}
        s_waitcnt lgkmcnt(3)""")
        a(QKT(0, 0, S[0]))
        for m in zo[22:40]: a(m)
        a(QKM(0, 0, S[0], vr(S[0], 16)))
        for m in zo[40:]: a(m)
        a(QKM(0, 1, S[1], vr(S[1], 16)))
        a("s_nop 5")
        a("s_waitcnt lgkmcnt(0)")
    if OPT.get("cprio"): a(f"s_setprio {OPT['cprio']}")
    hookblks = []
    a(".p2align 6")
    a(f"{K}_att:")
    pos = tuple(int(z) for z in OPT.get("pos", "2.5.10.14.22.26.30" if not T2F else "2.5.13.18.21.26.30").split("."))
    NIT = 16 // NB
    SB = lambda u: S[u % 4]
    for u in range(0, 16 * NB, 2):
        t, x = divmod(u, 4)
        blk, ub = divmod(u, 16)
        ins = {i: [] for i in range(33)}
        ins[pos[0]].append(PV(1, *divmod(u - 1, 4), SB(u - 1)))
        if not T2F:
            ins[pos[1]].append(QKM(*divmod(u + 3, 4), SB(u + 3)))
            ins[pos[2]].append(PV(0, t, x, SB(u)))
            ins[pos[3]].append(QKT(*divmod(u + 2, 4), SB(u + 2)))
            ins[pos[4]].append(PV(1, t, x, SB(u)))
            ins[pos[5]].append(PV(0, t, x + 1, SB(u + 1)))
            ins[pos[6]].append(QKM(*divmod(u + 4, 4), SB(u + 4)))
        else:
            ins[pos[1]].append(QKT(*divmod(u + 2, 4), SB(u + 2)))
            ins[pos[2]].append(PV(0, t, x, SB(u)))
            ins[pos[3]].append(PV(1, t, x, SB(u)))
            ins[pos[4]].append(QKM(*divmod(u + 2, 4), SB(u + 2), vr(SB(u + 2), 16)))
            ins[pos[5]].append(PV(0, t, x + 1, SB(u + 1)))
            ins[pos[6]].append(QKM(*divmod(u + 3, 4), SB(u + 3), vr(SB(u + 3), 16)))
        if x == 0:
            ins[pos[0]].append(ldV(t + 1, 1, (t + 1) % 2))
            ins[pos[1]].append(ldK(t + 1, (t + 1) % 2))
            ins[pos[2]].append(ldV(t + 1, 0, (t + 1) % 2))
            if ub == 12: ins[pos[3]].append(ldT(blk + 1))
            ins[pos[5]].append("s_waitcnt lgkmcnt(0)")
        if ub == 10:
            if blk == NB - 1:
                ins[pos[0]].append(f"s_cmp_eq_u32 s{sIt}, {NIT//2 - 1}")
                ins[pos[1]].append(f"s_cselect_b32 s{sT0}, s{sWcnt}, s{sWk}")
                ins[pos[2]].append(f"v_add_u32 v{vKa}, s{sT0}, v{vKa}")
                ins[pos[3]].append(f"v_add_u32 v{vTa}, s{sT0}, v{vTa}")
                ins[pos[4]].append(f"v_add_u32 v{vVa}, s{sT0}, v{vVa}")
            its = [it for it in range(NIT) if it * NB + blk in HOOKS]
            if len(its) == NIT and (not OPT["stamp"] or OPT.get("light")):
                ins[pos[6]].append("s_barrier")
            elif its:
                ins[pos[6]] += [f"s_bitcmp1_b32 {sum(1 << i for i in its)}, s{sIt}", f"s_cbranch_scc1 {K}_hook{blk}", f"{K}_hook_ret{blk}:"]
                hookblks.append(blk)
        if u == 16 * NB - 2:
            ins[pos[5]].append(f"s_add_u32 s{sIt}, s{sIt}, 1")
            ins[pos[6]].append(f"s_cmp_lt_u32 s{sIt}, {NIT}")
        for i in range(32):
            for m in ins[i]: a(m)
            a(f"v_exp_f32 v{SB(u)+i}, v{SB(u)+i}")
    if OPT.get("light"):
        a(f"""s_memtime s[82:83]
        s_memrealtime s[80:81]
        s_add_u32 m0, s{sIt}, 15
        s_waitcnt lgkmcnt(0)
        v_writelane_b32 v30, s80, m0
        v_writelane_b32 v31, s82, m0
        s_cmp_lt_u32 s{sIt}, {NIT}""")
    a(f"s_cbranch_scc1 {K}_att")
    a("s_nop 1")
    a(PV(1, 3, 3, S[3]))
    stamp(a, 8, 30)
    CC = [5, 6, 7, 8]
    R8 = [64, 68, 72, 76, 104, 108, 112, 116, 120]
    RL = list(range(32, 64, 4)) + list(range(80, 104, 4)) + [124] + list(range(128, 176, 4))
    creg = lambda s, ct: R8[s] if ct == 8 else RL[3 * s + ct - 5]
    a('s_nop 8')
    l_ = [O[x] + 10 for x in range(4)]
    tq = [2, 3, 4, 5]
    a(f"""v_add_f32 v2, v{l_[0]}, v{l_[1]}
    v_min3_f32 v3, v{l_[0]}, v{l_[1]}, v{l_[2]}
    v_add_f32 v2, v2, v{l_[2]}
    s_waitcnt lgkmcnt(0)
    v_add_f32 v2, v2, v{l_[3]}
    v_min_f32 v3, v3, v{l_[3]}
    v_cmp_ge_f32 s[{sEx}:{sEx+1}], s64, v2
    v_cmp_le_f32 vcc, s61, v3
    s_nop 1
    s_and_b32 vcc_lo, vcc_lo, s{sEx}
    s_cmp_eq_u32 vcc_lo, -1
    s_cbranch_scc0 {K}_fbchk
    {K}_fbdone:""")
    cp = [f"ds_read_b128 {vr(creg(s_,ct),4)}, v{vCp} offset:{1024*(3*s_+i)}" for s_ in range(9) for i, ct in enumerate(CL)]
    for x in range(4): a(f"v_mov_b32 v{tq[x]}, v{O[x]+10}")
    a(cp.pop(0))
    for x in range(4): a(f"v_permlane32_swap_b32 v{O[x]+10}, v{tq[x]}")
    a(cp.pop(0))
    for x in range(4): a(f"v_mul_f32 v{tq[x]}, v{O[x]+10}, v{vGl+x}")
    for x in range(4): a(f"v_rcp_f32 v{tq[x]}, v{tq[x]}")
    a(cp.pop(0))
    for x in range(4):
        o = O[x]
        sel = "op_sel_hi:[1,0]" if x % 2 == 0 else "op_sel:[0,1]"
        for i in range(0, 10, 2): a(f"v_pk_mul_f32 {vr(o+i,2)}, {vr(o+i,2)}, {vr(tq[x & 2],2)} {sel}")
        for i in range(4): a(f"v_cvt_pk_bf16_f32 v{o+12+i}, v{o+2*i}, v{o+2*i+1}")
        a(f"""v_cvt_pk_bf16_f32 v{o+11}, v{o+8}, v{o+9}
        buffer_store_dwordx4 {vr(o+12,4)}, v{vSt}, s[{sWS}:{sWS+3}], s{56+x} offen sc1""")
        if x % 2 == 1:
            a(cp.pop(0))
            a(f"""v_permlane32_swap_b32 v{O[x-1]+11}, v{o+11}
            buffer_store_dword v{O[x-1]+11}, v{vStt}, s[{sWS}:{sWS+3}], s{4+(x>>1)} offen offset:1024 sc1""")
    for m in cp: a(m)
    stamp(a, 9, 30)
    a(f"""v_mov_b32 v6, {L_SYNC + 20}
    v_mov_b32 v7, 1
    s_setprio {OPT.get("p3prio", 2)}
    s_mov_b64 exec, 1
    s_waitcnt lgkmcnt(0)
    ds_add_u32 v6, v7
    s_mov_b64 exec, -1""")
    vOm, vOt, vRd = [2, 8], 3, 4
    p3_addr_o(a, vOm, vOt, vRd, [9, 10], 5, 11, 12, 13)
    for i in range(32): a(f"v_mov_b32 v{224+i}, 0")
    stamp(a, 10, 30)
    if OPT.get("drain"):
        a("s_waitcnt vmcnt(0)")
        stamp(a, 12, 30)
    p3_comp(a, CC, creg, 224, 176, vOm, vOt, vRd, 5, [9, 10])
    stamp(a, 11, 30)
    a(f"{K}_final:")
    final_reduce(a, K, 30)
    a(f"{K}_end:")
    a("s_endpgm")
    a(f"""{K}_rst:
    s_lshl_b32 s{sT0}, s{sPr}, 2
    v_mov_b32 v28, s{sT0}
    v_mov_b32 v29, 1
    s_mov_b64 exec, 1
    s_waitcnt vmcnt(0)
    buffer_atomic_add v29, v28, s[{sD}:{sD+3}], 0 offen
    s_mov_b64 exec, -1
    s_branch {K}_rst_ret""")
    for blk in hookblks:
        a(f"{K}_hook{blk}:")
        if 1 % NB == blk:
            a(f"""s_cmp_eq_u32 s{sIt}, {1 // NB}
            s_cbranch_scc0 {K}_hkg
            v_lshlrev_b32 v{vGl}, 16, v{TP+4}
            v_lshlrev_b32 v{vGl+1}, 16, v{TP+5}
            v_lshlrev_b32 v{vGl+2}, 16, v{TP+6}
            v_lshlrev_b32 v{vGl+3}, 16, v{TP+7}""")
            for x in range(4): a(f"v_mul_f32 v{vGl+x}, s60, v{vGl+x}")
            for x in range(4): a(f"v_exp_f32 v{vGl+x}, v{vGl+x}")
            a("s_nop 0")
            for x in range(4): a(f"v_add_f32 v{vGl+x}, 1.0, v{vGl+x}")
            for x in range(4):
                for i in range(11, 16): a(f"v_mov_b32 v{O[x]+i}, 0")
            a(f"{K}_hkg:")
        if OPT["stamp"]:
            for hb, i_ in ((1, 4), (3, 6)):
                if hb % NB == blk:
                    a(f"s_cmp_eq_u32 s{sIt}, {hb // NB}\ns_cbranch_scc0 {K}_hk{hb}")
                    stamp(a, i_, 30); a("s_barrier"); stamp(a, i_ + 1, 30); a(f"s_branch {K}_hook_ret{blk}")
                    a(f"{K}_hk{hb}:")
        if 13 % NB == blk:
            a(f"""s_cmp_eq_u32 s{sIt}, {13 // NB}
            s_cbranch_scc0 {K}_hkb{blk}""")
            if not OPT.get('x_no8'): p3_wo_loads(a, [8], creg, vWm3, vWt)
            a(f"{K}_hkb{blk}:")
        a(f"""s_barrier
        s_branch {K}_hook_ret{blk}""")
    FQ = S[3]
    a(f"{K}_fbchk:")
    for x in range(4):
        a(f"""v_cmp_le_f32 vcc, s61, v{O[x]+10}
        v_cmp_ge_f32 s[{sEx}:{sEx+1}], s64, v{O[x]+10}
        s_nop 1
        s_and_b32 vcc_lo, vcc_lo, s{sEx}
        s_cmp_eq_u32 vcc_lo, -1
        s_cbranch_scc0 {K}_fb{x}
        {K}_fbret{x}:""")
    a(f"s_branch {K}_fbdone")
    for x in range(4):
        a(f"{K}_fb{x}:")
        for i in range(4): a(f"v_mov_b32 v{FQ+i}, v{QM+4*x+i}")
        for i in range(4): a(f"v_mov_b32 v{FQ+4+i}, 0")
        a(f"""s_mov_b32 {'exec_hi' if x % 2 == 0 else 'exec_lo'}, 0
        v_mov_b32 v{FQ+4}, v{QT+4*(x>>1)}
        v_mov_b32 v{FQ+7}, v{QT+4*(x>>1)}
        s_mov_b64 exec, -1""")
        a(f"s_call_b64 s[{sRet}:{sRet+1}], {K}_slow")
        for i in range(16): a(f"v_mov_b32 v{O[x]+i}, v{S[2]+i}")
        a(f"s_branch {K}_fbret{x}")
    a(f"{K}_slow:")
    vb, vc, vm = 11, 12, 13
    sA, sB = sWsrc, sWm0
    t0 = 9
    a(f"""v_lshlrev_b32 v{t0}, 4, v0
    v_and_b32 v{vm}, 31, v0
    v_lshlrev_b32 v{vb}, 4, v{vm}
    v_lshrrev_b32 v{vc}, 5, v0
    v_mul_u32_u24 v{vc}, 304, v{vc}
    v_lshl_add_u32 v{vc}, v{vm}, 4, v{vc}
    v_cmp_lt_u32 vcc, 18, v{vm}
    v_mov_b32 v{vm}, 0x40000000
    s_nop 1
    v_cndmask_b32 v{vc}, v{vc}, v{vm}, vcc""")
    def slow_qk(t, c):
        a(f"""v_mfma_f32_32x32x16_bf16 {vr(S[0],16)}, {vr(KF[0],4)}, {vr(FQ,4)}, {c}
        v_mfma_f32_32x32x8_bf16 {vr(S[0],16)}, {vr(KT[0]+(t&2),2)}, {vr(FQ+4+2*(t&1),2)}, {vr(S[0],16)}
        s_nop 15""")
    def slow_next(lbl):
        a(f"""s_add_u32 s{sA}, s{sA}, {BLK}
        s_sub_u32 s{sIt}, s{sIt}, 1
        s_cmp_lg_u32 s{sIt}, 0
        s_cbranch_scc1 {lbl}""")
    a(f"""v_mov_b32 v{vm}, 0xff800000
    s_mov_b32 s{sA}, s{sKVg}
    s_mov_b32 s{sIt}, 16
    {K}_sl1:
    s_add_u32 s{sB}, s{sA}, 4096
    buffer_load_dwordx4 {vr(KT[0],4)}, v{vb}, s[{sWS}:{sWS+3}], s{sB} offen sc1""")
    for t in range(4):
        a(f"""buffer_load_dwordx4 {vr(KF[0],4)}, v{t0}, s[{sWS}:{sWS+3}], s{sA} offen offset:{1024*t} sc1
        s_waitcnt vmcnt(0)""")
        slow_qk(t, "0")
        for i in range(8): a(f"v_max3_f32 v{vm}, v{S[0]+2*i}, v{S[0]+2*i+1}, v{vm}")
    slow_next(f"{K}_sl1")
    a(f"""v_mov_b32 v{S[0]}, v{vm}
    s_nop 1
    v_permlane32_swap_b32 v{vm}, v{S[0]}
    s_nop 1
    v_max_f32 v{vm}, v{vm}, v{S[0]}""")
    for i in range(16):
        a(f"v_sub_f32 v{S[1]+i}, 0, v{vm}")
        a(f"v_mov_b32 v{S[2]+i}, 0")
    a(f"""s_mov_b32 s{sA}, s{sKVg}
    s_mov_b32 s{sIt}, 16
    {K}_sl2:
    s_add_u32 s{sB}, s{sA}, 4096
    buffer_load_dwordx4 {vr(KT[0],4)}, v{vb}, s[{sWS}:{sWS+3}], s{sB} offen sc1""")
    for t in range(4):
        a(f"""buffer_load_dwordx4 {vr(KF[0],4)}, v{t0}, s[{sWS}:{sWS+3}], s{sA} offen offset:{1024*t} sc1
        s_add_u32 s{sB}, s{sA}, {4608+1216*t}
        buffer_load_dwordx4 {vr(V0[0],4)}, v{vc}, s[{sWS}:{sWS+3}], s{sB} offen sc1
        buffer_load_dwordx4 {vr(V1[0],4)}, v{vc}, s[{sWS}:{sWS+3}], s{sB} offen offset:608 sc1
        s_waitcnt vmcnt(0)""")
        slow_qk(t, vr(S[1], 16))
        for i in range(16): a(f"v_exp_f32 v{S[0]+i}, v{S[0]+i}")
        a(f"""s_nop 3
        v_smfmac_f32_32x32x32_bf16 {vr(S[2],16)}, {vr(V0[0],4)}, {vr(S[0],8)}, v{vIdx}
        v_smfmac_f32_32x32x32_bf16 {vr(S[2],16)}, {vr(V1[0],4)}, {vr(S[0]+8,8)}, v{vIdx}
        s_nop 7""")
    slow_next(f"{K}_sl2")
    a(f"""s_nop 15
    s_setpc_b64 s[{sRet}:{sRet+1}]""")

def main(out):
    ka = f"{NAME}_kernel"
    a = Asm(); kernel(a)
    t = f"""; gated mix of two MHA blocks: one fused kernel (QKV projection, attention, output projection); generated by gen/gen36.py
; @launch grid=(256,1,1) block=(512,1,1) lds={LDS_BYTES}
.amdgcn_target "amdgcn-amd-amdhsa--gfx950"
.text
.globl {ka}
.p2align 8
.type {ka},@function
{ka}:
{a.text()}.section .rodata,"a"
.p2align 6
.amdhsa_kernel {ka}
  .amdhsa_next_free_vgpr 256
  .amdhsa_next_free_sgpr 102
  .amdhsa_accum_offset 256
  .amdhsa_group_segment_fixed_size 0
  .amdhsa_kernarg_size 80
  .amdhsa_user_sgpr_count 2
  .amdhsa_user_sgpr_kernarg_segment_ptr 1
  .amdhsa_system_sgpr_workgroup_id_x 1
.end_amdhsa_kernel
"""
    open(out, "w").write(t)

if __name__ == "__main__":
    for kv in sys.argv[2:]:
        k, v = kv.split("=")
        OPT[k] = {"True": True, "False": False}.get(v, v)
    main(sys.argv[1])
```

```python
import sys, struct

NAME = "gated_mix__mha_block__mha_block__prompt"
def f32(x): return "0x%08x" % struct.unpack("<I", struct.pack("<f", x))[0]
CSCALE = (18 ** -0.5) * 1.4426950408889634
LOG2E = 1.4426950408889634

BLK = 9472
KVH = 16 * BLK
RING = 8 * BLK
WS_O = 0x0A00000
WS_WOM = 0x0F00000
WS_WOT = 0x1080000
WS_F = 0x10C0000
WS_STAMP = 0x1100000
WS_SIZE = 0x1200000
SENT = 0xffffffff
L_WR = 0
WSL = 16384
RW = 3
L_XR = 98304
L_SCR = 49152
L_GT = 155648
L_SYNC = L_GT + 3 * 2048 + 1536
L_WO = 151552
LDS_BYTES = 163840
RS = 592
STRAD = sum(1 << p for p in range(32) if (72 * (p & 15)) % 128 > 56)
L_OA = 6 * BLK
L_OB = 94720
PLANE = 32 * RS

class Asm:
    def __init__(self): self.l = []
    def __call__(self, s):
        for x in s.strip("\n").split("\n"):
            x = x.strip()
            if not x: continue
            self.l.append(x if x.endswith(":") else "    " + x)
    def text(self): return "\n".join(self.l) + "\n"

def vr(a, n): return f"v[{a}:{a+n-1}]"
OPT = dict(force_fb=False, stamp=False, rx="7", txor="1", nb="4", cprio="3", pf9="0", rf="1.2.2.2.1", tx4="5")

def srd(a, d, lo, hi, size):
    a(f"""s_mov_b32 s{d}, s{lo}
    s_and_b32 s{d+1}, s{hi}, 0xffff
    s_mov_b32 s{d+2}, {size}
    s_mov_b32 s{d+3}, 0x00020000""")

sX, sW, sWo, sG, sD, sWS, sOut = 8, 12, 16, 20, 24, 28, 84
sWv, sPr, sE, sHd, sRot = 32, 33, 34, 35, 36
sT0, sT1, sT2, sT3 = 37, 38, 39, 40
sRef, sCnt, sKo, sXb, sRing, sIt, sKVg, sSpin, sW8 = 41, 42, 43, 44, 45, 46, 47, 48, 49
sRet, sEx = 50, 52
sWsrc, sWm0, sWk, sWcnt, sXm0, sGk, sTt, sBH = 54, 55, 62, 63, 76, 77, 78, 79
sP3T, sP3C, sOb, sWmb, sWtb, sHH, sTH, sOtb = 88, 89, 90, 91, 92, 93, 94, 95
SV = 254
sLA, sLB = 74, 75
sGO = [66, 67, 68, 69]
sGW = [70, 71, 72, 73]

def stamp(a, idx, vreg):
    if not OPT["stamp"]: return
    a(f"""s_memrealtime s[80:81]
    s_memtime s[82:83]
    s_waitcnt lgkmcnt(0)
    v_writelane_b32 v{vreg}, s80, {idx}
    v_writelane_b32 v{vreg+1}, s82, {idx}""")
def sstamp(a, k):
    if not OPT["stamp"]: return
    a(f"""s_memrealtime s[80:81]
    s_waitcnt lgkmcnt(0)
    s_mov_b32 s{96+k}, s80""")
def stamp_out(a, vreg, vt=1, mask=None):
    if not OPT["stamp"]: return
    a(f"""s_lshl_b32 s80, s2, 3
    s_add_u32 s80, s80, s{sW8}
    s_lshl_b32 s80, s80, 8
    s_add_u32 s80, s80, {WS_STAMP}
    v_lshlrev_b32 v{vt}, 3, v0
    s_mov_b32 exec_hi, 0""")
    if mask is not None: a(f"s_mov_b32 exec_lo, {mask}")
    a(f"""buffer_store_dwordx2 v[{vreg}:{vreg+1}], v{vt}, s[{sWS}:{sWS+3}], s80 offen
    s_mov_b64 exec, -1""")

def p3_addr_w(a, vWm, vWt, t0, t1, t2):
    a(f"""v_and_b32 v{t0}, 15, v0
    v_lshrrev_b32 v{t1}, 5, v0
    v_bfe_u32 v{t2}, v0, 4, 1
    v_mul_u32_u24 v{vWm}, 4608, v{t1}
    v_lshl_add_u32 v{vWm}, v{t2}, 8, v{vWm}
    v_lshl_add_u32 v{vWm}, v{t0}, 4, v{vWm}
    v_lshrrev_b32 v{t1}, 4, v0
    v_add_u32 v{t2}, s{sP3C}, v{t1}
    v_and_b32 v{t2}, 3, v{t2}
    v_mul_u32_u24 v{vWt}, {4*2304}, v{t2}
    v_lshl_add_u32 v{vWt}, v{t0}, 4, v{vWt}""")
def p3_addr_o(a, vOm, vOt, vRd, vVa, vSy, t0, t1, t2):
    a(f"""v_and_b32 v{t0}, 15, v0
    v_lshrrev_b32 v{t1}, 5, v0
    v_bfe_u32 v{t2}, v0, 4, 1
    v_mul_u32_u24 v{vOm[0]}, 1152, v{t1}
    v_lshl_add_u32 v{vOm[0]}, v{t2}, 9, v{vOm[0]}
    v_lshl_add_u32 v{vOm[0]}, v{t0}, 4, v{vOm[0]}
    v_add_u32 v{vOm[1]}, s{sLB}, v{vOm[0]}
    v_add_u32 v{vOm[0]}, s{sLA}, v{vOm[0]}
    s_sub_u32 s{sT3}, s{sLB}, s{sLA}
    v_mul_lo_u32 v{vOt}, s{sT3}, v{t1}
    v_add_u32 v{vOt}, s{sLA}, v{vOt}
    v_mul_u32_u24 v{t2}, 4608, v{t2}
    v_add_u32 v{vOt}, v{vOt}, v{t2}
    v_lshl_add_u32 v{vOt}, v{t0}, 2, v{vOt}
    v_lshrrev_b32 v{t1}, 4, v0
    v_mul_u32_u24 v{vRd}, {RS}, v{t0}
    v_lshl_add_u32 v{vRd}, v{t1}, 4, v{vRd}
    s_cmp_eq_u32 s{sWv}, 3
    s_cselect_b32 s{sT3}, 4, s{sWv}
    s_mul_i32 s{sT3}, s{sT3}, {PLANE}
    v_add_u32 v{vRd}, s{sT3}, v{vRd}
    v_mul_u32_u24 v{vVa[0]}, 1152, v{t1}
    v_lshl_add_u32 v{vVa[0]}, v{t0}, 3, v{vVa[0]}
    v_add_u32 v{vVa[0]}, 1024, v{vVa[0]}
    v_add_u32 v{vVa[1]}, s{sLB}, v{vVa[0]}
    v_add_u32 v{vVa[0]}, s{sLA}, v{vVa[0]}
    s_lshl_b32 s{sT3}, s{sWv}, 2
    s_add_u32 s{sT3}, s{sT3}, {L_SYNC + 32}
    v_mov_b32 v{vSy}, s{sT3}""")
def p3_scal(a):
    a(f"""s_and_b32 s{sP3T}, s2, 7
    s_lshr_b32 s{sT0}, s2, 5
    s_lshl_b32 s{sT0}, s{sT0}, 3
    s_add_u32 s{sP3T}, s{sP3T}, s{sT0}
    s_lshr_b32 s{sP3C}, s2, 3
    s_and_b32 s{sP3C}, s{sP3C}, 3
    s_lshl_b32 s{sOb}, s{sP3T}, 6
    s_lshl_b32 s{sT3}, s{sWv}, 2
    s_add_u32 s{sOb}, s{sOb}, s{sT3}
    s_mul_i32 s{sOb}, s{sOb}, 1152
    s_add_u32 s{sOb}, s{sOb}, {WS_O}
    s_lshl_b32 s{sWmb}, s{sP3C}, 6
    s_add_u32 s{sWmb}, s{sWmb}, s{sT3}
    s_mul_i32 s{sWmb}, s{sWmb}, 4608
    s_add_u32 s{sWmb}, s{sWmb}, {WS_WOM}
    s_lshl_b32 s{sWtb}, s{sP3C}, 4
    s_add_u32 s{sWtb}, s{sWtb}, s{sWv}
    s_mul_i32 s{sWtb}, s{sWtb}, 2304
    s_add_u32 s{sWtb}, s{sWtb}, {WS_WOT}
    s_mul_i32 s{sLA}, s{sHH}, {RING}
    s_mul_i32 s{sT3}, s{sTH}, 9216
    s_add_u32 s{sLA}, s{sLA}, s{sT3}
    s_add_u32 s{sLA}, s{sLA}, {L_OA}
    s_mul_i32 s{sLB}, s{sWv}, 9216
    s_add_u32 s{sLB}, s{sLB}, {L_OB}""")
    for g in range(4):
        a(f"""s_add_u32 s{sT3}, s{sP3C}, {g}
        s_and_b32 s{sT3}, s{sT3}, 3
        s_mul_i32 s{sGO[g]}, s{sT3}, {16*1152}
        s_add_u32 s{sGO[g]}, s{sGO[g]}, s{sOb}
        s_mul_i32 s{sGW[g]}, s{sT3}, {16*4608}
        s_add_u32 s{sGW[g]}, s{sGW[g]}, s{sWmb}""")
def p3_wo_loads(a, cts, reg, vWm, vWt, steps=range(9)):
    for s in range(8):
        if s not in steps: continue
        a(f"s_add_u32 s{sT3}, s{sGW[s>>1]}, {2*(s&1)*4608 + 512*cts[0]}")
        for i, ct in enumerate(cts):
            a(f"buffer_load_dwordx4 {vr(reg(s,ct),4)}, v{vWm}, s[{sWS}:{sWS+3}], s{sT3} offen offset:{512*i} sc1")
    for ct in (cts if 8 in steps else []):
        a(f"buffer_load_dwordx4 {vr(reg(8,ct),4)}, v{vWt}, s[{sWS}:{sWS+3}], s{sWtb} offen offset:{256*ct} sc1")
def p3_oread(a, g, OF, vOm):
    for k in range(2):
        for th in range(2):
            a(f"ds_read_b128 {vr(OF+8*k+4*th,4)}, v{vOm[g>>1]} offset:{4608*(g&1) + 2304*k + 256*th}")
def p3_mf(a, cts, reg, AC, st, o):
    for i, ct in enumerate(cts):
        for th in range(2):
            d = AC + 8 * i + 4 * th
            a(f"v_mfma_f32_16x16x32_bf16 {vr(d,4)}, {vr(reg(st,ct),4)}, {vr(o+4*th,4)}, {vr(d,4)}")
def p3_tail(a, cts, reg, AC, OF, vOt, vRd):
    for th in range(2):
        for i in range(4):
            a(f"ds_read_b32 v{OF+4*th+i}, v{vOt} offset:{1152*i + 1024 + 64*th}")
    final_addr(a)
    a("s_waitcnt lgkmcnt(0)")
    p3_mf(a, cts, reg, AC, 8, OF)
    sstamp(a, 5)
    a("s_nop 7")
    for i, ct in enumerate(cts):
        for th in range(2):
            a(f"ds_write_b128 v{vRd}, {vr(AC+8*i+4*th,4)} offset:{16*th*RS + 64*ct}")
def p3_hint_addr(a, OF):
    vHa, vE4 = OF + 21, OF + 22
    a(f"""v_and_b32 v1, 3, v0
    v_mul_u32_u24 v{vHa}, 1152, v1
    v_bfe_u32 v1, v0, 2, 2
    v_add_u32 v1, s{sP3C}, v1
    v_and_b32 v1, 3, v1
    v_mul_u32_u24 v1, {16*1152}, v1
    v_add_u32 v{vHa}, v{vHa}, v1
    v_mov_b32 v{vE4}, {L_SYNC + 20}""")
def p3_helper(a, cts, reg, AC, OF, vOm, vOt, vRd, vL16, vVa, vSy, slp):
    L = "h3"
    sDone = sCnt
    def dma(g):
        lb = (sLA, sLB)[g >> 1]
        a(f"""s_add_u32 m0, s{lb}, {4608*(g&1)}
        s_add_u32 s{sT3}, s{sGO[g]}, 4096""")
        for i in range(4):
            a(f"buffer_load_dwordx4 v{vL16}, s[{sWS}:{sWS+3}], s{sGO[g]} offen offset:{1024*i} sc1 lds")
        a(f"""s_add_u32 m0, s{lb}, {4608*(g&1) + 4096}
        s_mov_b32 exec_hi, 0
        buffer_load_dwordx4 v{vL16}, s[{sWS}:{sWS+3}], s{sT3} offen sc1 lds
        s_mov_b64 exec, -1""")
    sFly, sLand, sTry, sBlk_ = sWk, sWcnt, sKo, sXb
    vH, vHa, vE4 = OF + 18, OF + 21, OF + 22
    a(f"""s_mov_b32 s{sSpin}, 60000
    s_mov_b32 s{sIt}, {SENT}
    s_mov_b32 s{sDone}, 0
    s_mov_b32 s{sFly}, 0
    s_mov_b32 s{sLand}, 0
    s_mov_b32 s{sBlk_}, 12
    {L}_round:
    s_mov_b64 exec, 0xffff
    buffer_load_dword v{vH}, v{vHa}, s[{sWS}:{sWS+3}], s{sOb} offen offset:1024 sc1
    s_mov_b64 exec, -1
    ds_read_b32 v1, v{vE4}
    s_cmp_eq_u32 s{sFly}, 0
    s_cbranch_scc1 {L}_nofly
    s_or_b32 s{sLand}, s{sLand}, s{sFly}
    s_waitcnt vmcnt(1)
    v_mov_b32 v{vH+1}, s{sLand}
    ds_write_b32 v{vSy}, v{vH+1}
    {L}_nofly:
    s_mov_b32 s{sTry}, s{sFly}
    s_waitcnt lgkmcnt(0)
    v_readfirstlane_b32 s{sT0}, v1
    s_cmp_ge_u32 s{sT0}, 4
    s_cselect_b32 s{sBlk_}, 0, s{sBlk_}
    s_or_b32 s{sT1}, s{sDone}, s{sTry}
    s_cmp_eq_u32 s{sT1}, 15
    s_mov_b32 s{sFly}, 0
    s_cbranch_scc1 {L}_work""")
    if int(OPT.get("spec", 0)):
        a(f"""s_bcnt1_i32_b32 s{sT0}, s{sT1}
        s_mov_b32 vcc_lo, -1
        s_cmp_ge_u32 s{sT0}, {4 - int(OPT["spec"])}
        s_cselect_b32 s{sT0}, s{sBlk_}, 1
        s_cmp_eq_u32 s{sT0}, 0
        s_cbranch_scc1 {L}_spec""")
    a(f"""s_or_b32 s{sT1}, s{sT1}, s{sBlk_}
    s_waitcnt vmcnt(0)
    v_cmp_ne_u32 vcc, s{sIt}, v{vH}
    {L}_spec:""")
    for g in range(4):
        a(f"""s_bitcmp1_b32 s{sT1}, {g}
        s_cbranch_scc1 {L}_l{g}
        s_bfe_u32 s{sT0}, vcc_lo, {(4 << 16) | (4 * g)}
        s_cmp_eq_u32 s{sT0}, 15
        s_cbranch_scc0 {L}_l{g}
        s_bitset1_b32 s{sFly}, {g}""")
        dma(g)
        a(f"{L}_l{g}:")
    a(f"{L}_work:")
    for g in range(4):
        a(f"""s_bitcmp1_b32 s{sTry}, {g}
        s_cbranch_scc0 {L}_n{g}""")
        p3_check(a, g, OF, vOm, vVa)
        a(f"""s_cbranch_vccnz {L}_n{g}
        s_bitset1_b32 s{sDone}, {g}""")
        stamp(a, 27 + g, SV)
        p3_mf(a, cts, reg, AC, 2 * g, OF)
        p3_mf(a, cts, reg, AC, 2 * g + 1, OF + 8)
        a(f"{L}_n{g}:")
    a(f"""s_cmp_eq_u32 s{sDone}, 15
    s_cbranch_scc1 {L}_done
    s_sub_u32 s{sSpin}, s{sSpin}, 1
    s_cmp_lt_i32 s{sSpin}, 0
    s_cbranch_scc1 {L}_done
    s_or_b32 s{sT0}, s{sFly}, s{sTry}
    s_cbranch_scc1 {L}_round
    s_sleep {slp}
    s_branch {L}_round
    {L}_done:
    s_waitcnt vmcnt(0)""")
    p3_tail(a, cts, reg, AC, OF, vOt, vRd)
def p3_check(a, g, OF, vOm, vVa):
    p3_oread(a, g, OF, vOm)
    a(f"""ds_read_b64 {vr(OF+16,2)}, v{vVa[g>>1]} offset:{4608*(g&1)}
    s_waitcnt lgkmcnt(3)
    v_max3_u32 v1, v{OF}, v{OF+1}, v{OF+2}
    v_max3_u32 v1, v{OF+3}, v{OF+4}, v1
    v_max3_u32 v1, v{OF+5}, v{OF+6}, v1
    s_waitcnt lgkmcnt(0)
    v_max3_u32 v1, v{OF+7}, v{OF+8}, v1
    v_max3_u32 v1, v{OF+9}, v{OF+10}, v1
    v_max3_u32 v1, v{OF+11}, v{OF+12}, v1
    v_max3_u32 v1, v{OF+13}, v{OF+14}, v1
    v_max3_u32 v1, v{OF+15}, v{OF+16}, v1
    v_max_u32 v1, v{OF+17}, v1
    v_cmp_eq_u32 vcc, s{sIt}, v1
    s_nop 1""")
def p3_comp(a, cts, reg, AC, OF, vOm, vOt, vRd, vSy, vVa):
    L = "c3"
    sDone = sCnt
    a(f"""s_mov_b32 s{sSpin}, 400000
    s_mov_b32 s{sIt}, {SENT}
    s_mov_b32 s{sDone}, 0
    s_waitcnt vmcnt(6)
    {L}_round:
    ds_read_b32 v1, v{vSy}
    s_waitcnt lgkmcnt(0)
    v_readfirstlane_b32 s{sT0}, v1
    s_andn2_b32 s{sT0}, s{sT0}, s{sDone}""")
    for g in range(4):
        a(f"""s_bitcmp1_b32 s{sT0}, {g}
        s_cbranch_scc0 {L}_n{g}""")
        p3_check(a, g, OF, vOm, vVa)
        a(f"""s_cbranch_vccnz {L}_n{g}
        s_bitset1_b32 s{sDone}, {g}""")
        p3_mf(a, cts, reg, AC, 2 * g, OF)
        p3_mf(a, cts, reg, AC, 2 * g + 1, OF + 8)
        a(f"{L}_n{g}:")
    a(f"""s_cmp_eq_u32 s{sDone}, 15
    s_cbranch_scc1 {L}_done
    s_sub_u32 s{sSpin}, s{sSpin}, 1
    s_cmp_lt_i32 s{sSpin}, 0
    s_cbranch_scc0 {L}_round
    {L}_done:""")
    p3_tail(a, cts, reg, AC, OF, vOt, vRd)

def srd_tail(a, d, size):
    a(f"""s_mov_b32 s{d+2}, {size}
    s_mov_b32 s{d+3}, 0x00020000""")
def kernel(a):
    K = "k"
    if OPT["stamp"]: a("s_memrealtime s[96:97]")
    a(f"""
    s_cmp_ge_u32 s2, 256
    s_cbranch_scc1 {K}_end
    s_load_dwordx2 s[{sX}:{sX+1}], s[0:1], 0
    s_bfe_u32 s{sT0}, s2, {(1 << 16) | 2}
    s_mul_i32 s{sT0}, s{sT0}, 24
    s_add_u32 s{sT1}, s{sT0}, 8
    s_add_u32 s{sT0}, s{sT0}, 16
    s_load_dwordx2 s[{sW}:{sW+1}], s[0:1], s{sT1}
    s_load_dwordx2 s[{sG}:{sG+1}], s[0:1], 48
    s_load_dwordx2 s[{sWS}:{sWS+1}], s[0:1], 72
    s_load_dwordx2 s[{sD}:{sD+1}], s[0:1], 64
    s_load_dwordx2 s[{sOut}:{sOut+1}], s[0:1], 56
    s_load_dwordx2 s[{sWo}:{sWo+1}], s[0:1], s{sT0}
    v_lshrrev_b32 v1, 6, v0
    v_and_b32 v0, 63, v0
    s_bfe_u32 s{sT1}, s2, {(2 << 16) | 3}
    v_readfirstlane_b32 s{sW8}, v1
    s_lshr_b32 s{sT2}, s2, 5
    s_and_b32 s{sE}, s2, 1
    s_lshl_b32 s{sE}, s{sE}, 2
    s_add_u32 s{sE}, s{sE}, s{sT1}
    s_and_b32 s{sPr}, s2, 6
    s_lshl_b32 s{sPr}, s{sPr}, 2
    s_add_u32 s{sPr}, s{sPr}, s{sT2}
    s_and_b32 s{sWv}, s{sW8}, 3
    s_lshr_b32 s{sHH}, s{sWv}, 1
    s_and_b32 s{sTH}, s{sWv}, 1
    s_bfe_u32 s{sTt}, s2, {(1 << 16) | 5}
    s_lshl_b32 s{sTt}, s{sTt}, 1
    s_bfe_u32 s{sT2}, s2, {(1 << 16) | 6}
    s_or_b32 s{sTt}, s{sTt}, s{sT2}
    s_cmp_ge_u32 s{sW8}, 4
    s_cbranch_scc0 {K}_compute""")
    helper(a, K)
    a(f"{K}_compute:")
    compute(a, K)
def common_late(a):
    srd_tail(a, sWS, WS_SIZE)
    srd_tail(a, sOut, 2048 * 1152)
    srd_tail(a, sD, 256)
    srd_tail(a, sWo, 576 * 1152)
    a(f"""s_lshl_b32 s{sBH}, s{sPr}, 1
    s_add_u32 s{sBH}, s{sBH}, s{sHH}
    s_mul_i32 s{sKVg}, s{sBH}, {KVH}""")

FA = 32
def final_addr(a):
    a(f"""s_lshl_b32 s{sT3}, s{sW8}, 6
    v_add_u32 v1, s{sT3}, v0
    s_mul_i32 s{sT0}, s{sP3T}, {32*1152}
    s_mul_i32 s{sT1}, s{sP3C}, 288
    s_add_u32 s{sT0}, s{sT0}, s{sT1}""")
    for r in range(2):
        if r: a("v_add_u32 v1, 512, v1")
        a(f"""v_mul_u32_u24 v{FA+6}, 3641, v1
        v_lshrrev_b32 v{FA+6}, 16, v{FA+6}
        v_mul_u32_u24 v{FA+7}, 18, v{FA+6}
        v_sub_u32 v{FA+7}, v1, v{FA+7}
        v_mul_u32_u24 v{FA+r}, {RS}, v{FA+6}
        v_lshl_add_u32 v{FA+r}, v{FA+7}, 5, v{FA+r}
        v_add_u32 v{FA+4+r}, {4*PLANE}, v{FA+r}
        v_mul_u32_u24 v{FA+2+r}, 1152, v{FA+6}
        v_lshl_add_u32 v{FA+2+r}, v{FA+7}, 4, v{FA+2+r}""")
def final_reduce(a, K, SVr):
    def reads(r):
        b = 48 + 32 * r
        for w in range(4):
            for hf in range(2):
                if w < 3: a(f"ds_read_b128 {vr(b+8*w+4*hf,4)}, v{FA+r} offset:{w*PLANE + 16*hf}")
                else: a(f"ds_read_b128 {vr(b+8*w+4*hf,4)}, v{FA+4+r} offset:{16*hf}")
    def finish(r, extra):
        b = 48 + 32 * r
        a(f"s_waitcnt lgkmcnt({4+extra})")
        for i in range(0, 8, 2): a(f"v_pk_add_f32 {vr(b+i,2)}, {vr(b+i,2)}, {vr(b+8+i,2)}")
        a(f"s_waitcnt lgkmcnt({extra})")
        for i in range(0, 8, 2): a(f"v_pk_add_f32 {vr(b+16+i,2)}, {vr(b+16+i,2)}, {vr(b+24+i,2)}")
        for i in range(0, 8, 2): a(f"v_pk_add_f32 {vr(b+i,2)}, {vr(b+i,2)}, {vr(b+16+i,2)}")
        for i in range(4): a(f"v_cvt_pk_bf16_f32 v{b+8+i}, v{b+2*i}, v{b+2*i+1}")
        a(f"buffer_store_dwordx4 {vr(b+8,4)}, v{FA+2+r}, s[{sOut}:{sOut+3}], s{sT0} offen")
    def fin():
        if OPT["stamp"]:
            a("s_waitcnt vmcnt(0)")
            stamp(a, 15, SVr)
            for k in range(6): a(f"v_writelane_b32 v{SVr}, s{96+k}, {20+k}")
            a(f"s_sub_u32 s80, 60000, s{sSpin}\nv_writelane_b32 v{SVr}, s80, 26")
            stamp_out(a, SVr)
    a(f"""s_cmp_eq_u32 s{sW8}, 0
    s_waitcnt lgkmcnt(0)
    s_barrier""")
    reads(0)
    a(f"s_cbranch_scc1 {K}_fin0")
    finish(0, 0)
    fin()
    a(f"""s_endpgm
    {K}_fin0:""")
    reads(1)
    finish(0, 8)
    finish(1, 0)
    fin()

def poll(a, lbl, ld, cond, slp):
    a(f"""s_mov_b32 s{sSpin}, 40000
    {lbl}:
    {ld}
    s_waitcnt vmcnt(0)""")
    cond()
    a(f"""s_cbranch_scc1 {lbl}_go
    s_sub_u32 s{sSpin}, s{sSpin}, 1
    s_cmp_eq_u32 s{sSpin}, 0
    s_cbranch_scc1 {lbl}_go
    s_sleep {slp}
    s_branch {lbl}
    {lbl}_go:""")

CL = [5, 6, 7]
def wo_lds_base(w): return (w >> 1) * RING + (w & 1) * 27648

def helper(a, K):
    RX = int(OPT["rx"])
    a(f"s_setprio {OPT.get('hprio', 2)}")
    vXs, vWs = [24, 25], [26, 27]
    vL16, vGr, vGw = 7, 8, 9
    t0, t1, t2, t3 = 10, 11, 12, 13
    vGv = 14
    WM = [sum(1 << L for L in range(64) if ((L & 15) ^ (((L >> 4) | (hi << 2)) << 1)) != 15) for hi in range(2)]
    sM0, sM1 = sEx, 64
    a(f"""s_lshr_b32 s{sRot}, s2, 7
    s_lshl_b32 s{sT1}, s{sT1}, 1
    s_add_u32 s{sRot}, s{sRot}, s{sT1}
    s_and_b32 s{sT1}, s2, 7
    s_add_u32 s{sRot}, s{sRot}, s{sT1}
    s_sub_u32 s{sT1}, s{sRot}, 9
    s_cselect_b32 s{sRot}, s{sRot}, s{sT1}""")
    order = []
    a(f"""v_lshrrev_b32 v{t0}, 3, v0
    v_mul_u32_u24 v{t0}, 1152, v{t0}
    v_and_b32 v{t1}, 7, v0
    v_lshrrev_b32 v{t2}, 4, v0
    v_xor_b32 v{t1}, v{t1}, v{t2}
    v_lshlrev_b32 v{t1}, 4, v{t1}
    v_xor_b32 v{t2}, 64, v{t1}
    v_add_u32 v{vXs[0]}, v{t0}, v{t1}
    v_add_u32 v{vXs[1]}, v{t0}, v{t2}
    v_add_u32 v{vXs[1]}, {8*1152-1024}, v{vXs[1]}
    s_lshl_b32 s{sXb}, s{sE}, 4
    s_lshl_b32 s{sT0}, s{sHH}, 3
    s_add_u32 s{sXb}, s{sXb}, s{sT0}
    s_add_u32 s{sXb}, s{sXb}, s{sTH}
    s_mul_i32 s{sXb}, s{sXb}, {16*1152}
    s_lshl_b32 s{sKo}, s{sRot}, 7
    s_lshl_b32 s{sRing}, s{sWv}, 11
    s_add_u32 s{sRing}, s{sRing}, {L_XR}
    s_add_u32 s{sRef}, s{sXb}, s{sKo}
    s_mov_b32 s{sXm0}, s{sRing}""")
    sTo = [56, 57, 58, 59]
    for tt in range(4):
        a(f"""s_xor_b32 s{sTo[tt]}, s{sTt}, {tt}
        s_mul_i32 s{sTo[tt]}, s{sTo[tt]}, {32*1152}""")
    xstate = [0]
    def xnext():
        a(f"""s_add_u32 s{sKo}, s{sKo}, 128
        s_cmp_ge_u32 s{sKo}, 1152
        s_cselect_b32 s{sKo}, 0, s{sKo}
        s_add_u32 s{sRef}, s{sXb}, s{sKo}""")
    def xdma(j):
        tt = j & 3
        if tt == 0 and j: xnext()
        a(f"""s_mov_b32 m0, s{sXm0}
        s_add_u32 s{sT0}, s{sRef}, s{sTo[tt]}
        buffer_load_dwordx4 v{vXs[0]}, s[{sX}:{sX+3}], s{sT0} offen lds
        buffer_load_dwordx4 v{vXs[1]}, s[{sX}:{sX+3}], s{sT0} offen offset:1024 lds
        s_add_u32 s{sXm0}, s{sXm0}, 8192
        s_cmp_ge_u32 s{sXm0}, {L_XR + RX*8192}
        s_cselect_b32 s{sXm0}, s{sRing}, s{sXm0}""")
    srd_tail(a, sX, 2048 * 1152)
    srd_tail(a, sW, 576 * 3456)
    srd_tail(a, sG, 1152)
    a("s_waitcnt lgkmcnt(0)")
    stamp(a, 0, SV)
    xdma(0)
    order += ["X0"] * 2
    a(f"""v_lshrrev_b32 v{t0}, 4, v0
    v_lshlrev_b32 v{t1}, 1, v{t0}
    v_and_b32 v{t2}, 15, v0
    v_xor_b32 v{t1}, v{t1}, v{t2}
    s_mov_b32 s{sT0}, {((1<<4)|(1<<9)|(1<<14)) << 3}
    v_mul_u32_u24 v{t0}, 3456, v{t0}""")
    for hi in range(2):
        if hi: a(f"v_xor_b32 v{t1}, 8, v{t1}")
        a(f"""v_mul_u32_u24 v{t2}, 52, v{t1}
        v_lshrrev_b32 v{t2}, 8, v{t2}
        v_mul_u32_u24 v{t2}, {1152-80}, v{t2}
        v_lshl_add_u32 v{t2}, v{t1}, 4, v{t2}
        v_lshrrev_b32 v{t3}, v{t1}, s{sT0}
        v_and_b32 v{t3}, 8, v{t3}
        v_sub_u32 v{t2}, v{t2}, v{t3}
        v_add_u32 v{vWs[hi]}, v{t0}, v{t2}""")
    a(f"""v_lshlrev_b32 v{vL16}, 4, v0
    s_mul_i32 s{sT0}, s{sWv}, {16*3456}
    s_and_b32 s{sT1}, s{sPr}, 15
    s_mul_i32 s{sT1}, s{sT1}, 72
    s_add_u32 s{sWsrc}, s{sT0}, s{sT1}
    s_mul_i32 s{sWk}, s{sRot}, {64*3456}
    s_add_u32 s{sWcnt}, s{sWsrc}, s{sWk}
    s_lshl_b32 s{sWm0}, s{sWv}, 12
    s_lshl_b32 s{sT2}, s{sWv}, 11
    s_add_u32 s{sT2}, s{sT2}, {L_GT}
    s_mov_b32 s{sM0}, {WM[0] & 0xffffffff}
    s_mov_b32 s{sM0+1}, {WM[0] >> 32}
    s_mov_b32 s{sM1}, {WM[1] & 0xffffffff}
    s_mov_b32 s{sM1+1}, {WM[1] >> 32}""")
    def wdma2(hi):
        m = (sM0, sM1)[hi]
        a(f"""s_add_u32 m0, s{sWm0}, {L_WR + hi*2048}
        s_add_u32 s{sT0}, s{sWcnt}, {hi*8*3456}
        s_add_u32 s{sT1}, s{sWcnt}, {hi*8*3456 + 4*3456 - 1024}
        s_mov_b64 exec, s[{m}:{m+1}]
        buffer_load_dwordx4 v{vWs[hi]}, s[{sW}:{sW+3}], s{sT0} offen lds
        buffer_load_dwordx4 v{vWs[hi]}, s[{sW}:{sW+3}], s{sT1} offen offset:1024 lds
        s_mov_b64 exec, -1""")
    def wnext():
        a(f"""s_add_u32 s{sWk}, s{sWk}, {64*3456}
        s_cmp_ge_u32 s{sWk}, {576*3456}
        s_cselect_b32 s{sWk}, 0, s{sWk}
        s_add_u32 s{sWcnt}, s{sWsrc}, s{sWk}
        s_add_u32 s{sWm0}, s{sWm0}, {WSL}
        s_sub_u32 s{sT0}, s{sWm0}, {RW*WSL}
        s_cmp_ge_u32 s{sWm0}, {RW*WSL}
        s_cselect_b32 s{sWm0}, s{sT0}, s{sWm0}""")
    a(f"""s_mov_b32 m0, s{sT2}
    s_nop 0
    buffer_load_dwordx4 v{vL16}, s[{sG}:{sG+3}], 0 offen lds
    s_mov_b64 exec, 0xff
    buffer_load_dwordx4 v{vL16}, s[{sG}:{sG+3}], 0 offen offset:1024 lds
    s_mov_b64 exec, -1""")
    order += ["G"] * 2
    wdma2(0); wdma2(1)
    order += ["W0"] * 4
    wnext()
    xdma(1)
    order += ["X1"] * 2
    EARLY = OPT.get("early", "0") == "1"
    def second_batch():
        nonlocal order
        xdma(2)
        wdma2(0); wdma2(1)
        wnext()
        order += ["X2"] * 2 + ["W1"] * 4
        for j in range(3, RX - 1):
            xdma(j); order += [f"X{j}"] * 2
    a(f"s_mov_b32 s{sCnt}, s{sWm0}")
    if EARLY: second_batch()
    nb2 = len(order) - 10
    stamp(a, 16, SV)
    common_late(a)
    a(f"""s_lshl_b32 s{sT0}, s{sWv}, 5
    s_add_u32 s{sT0}, s{sT0}, s{sT2}
    v_lshl_add_u32 v{vGr}, v0, 1, s{sT0}
    v_and_b32 v{t1}, 3, v0
    v_lshlrev_b32 v{t1}, 1, v{t1}
    v_and_b32 v{t2}, 8, v0
    v_or_b32 v{t1}, v{t1}, v{t2}
    v_xor_b32 v{t1}, 15, v{t1}
    v_lshlrev_b32 v{t1}, 4, v{t1}
    v_lshl_add_u32 v{t1}, v0, 8, v{t1}
    s_lshl_b32 s{sGk}, s{sRot}, 7
    v_mov_b32 v{t0}, {L_SYNC}
    v_mov_b32 v20, 0
    v_mov_b32 v21, 0
    v_mov_b32 v22, 0
    v_mov_b32 v23, 0
    ds_write_b128 v{t0}, v[20:23]
    ds_write_b128 v{t0}, v[20:23] offset:16
    ds_write_b128 v{t0}, v[20:23] offset:32""")
    def gate(slotreg):
        a(f"""v_add_u32 v{t0}, s{sGk}, v{vGr}
        s_mov_b64 exec, 0xffff
        ds_read_u16 v{vGv}, v{t0}
        v_add_u32 v{t0}, s{slotreg}, v{t1}
        s_add_u32 s{sGk}, s{sGk}, 128
        s_cmp_ge_u32 s{sGk}, 1152
        s_cselect_b32 s{sGk}, 0, s{sGk}
        s_waitcnt lgkmcnt(0)
        ds_write2_b32 v{t0}, v{vGv}, v{vGv} offset0:0 offset1:1
        s_mov_b64 exec, -1""")
    vWos, vWos2, vPub, vC100, vPk, vA4, vSn = 28, 29, 30, 31, [76, 77, 78], 79, 80
    vP, vPa, vSy, vOne, vFa = 20, 17, 18, 19, 16
    vOm, vOt, vWm, vWt, vRd = [2, 252], 3, 4, 5, 6
    vVa3, vSy3 = [248, 253], 251
    HWB, HAC, HOF = 8, 188, 228
    u0, u1, u2, u3 = 84, 85, 86, 87
    def setup1():
        a(f"""v_mul_u32_u24 v{u0}, 57, v0
        v_lshrrev_b32 v{u0}, 10, v{u0}
        v_mul_u32_u24 v{u1}, 18, v{u0}
        v_sub_u32 v{u1}, v0, v{u1}
        v_lshlrev_b32 v{u1}, 4, v{u1}
        s_and_b32 s{sT0}, s{sE}, 1
        s_lshl_b32 s{sT0}, s{sT0}, 1
        s_mul_i32 s{sT1}, s{sWv}, 3
        s_add_u32 s{sT0}, s{sT0}, s{sT1}
        v_add_u32 v{u0}, s{sT0}, v{u0}
        v_mul_u32_u24 v{vWos}, 1152, v{u0}
        v_add_u32 v{vWos}, v{vWos}, v{u1}
        v_cmp_le_u32 vcc, 6, v{u0}
        v_add_u32 v{u2}, {12*1152}, v{vWos}
        v_subrev_u32 v{u3}, {6*1152}, v{vWos}
        v_cndmask_b32 v{vWos2}, v{u2}, v{u3}, vcc
        s_mul_i32 s{sT0}, s{sHH}, {RING}
        s_mul_i32 s{sT1}, s{sTH}, 5120
        s_add_u32 s{sT0}, s{sT0}, s{sT1}
        v_add_u32 v{vPub}, s{sT0}, v{vL16}
        s_lshl_b32 s{sT0}, s{sPr}, 2
        v_mov_b32 v{vPa}, s{sT0}
        s_lshl_b32 s{sT0}, s{sPr}, 12
        s_lshl_b32 s{sT3}, s{sHH}, 7
        s_add_u32 s{sT0}, s{sT0}, s{sT3}
        s_add_u32 s{sT0}, s{sT0}, {WS_F}
        v_and_b32 v{vFa}, 1, v0
        v_lshl_add_u32 v{vFa}, v{vFa}, 2, s{sT0}
        v_lshrrev_b32 v{u0}, 1, v0
        v_lshl_add_u32 v{vFa}, v{u0}, 8, v{vFa}
        v_mov_b32 v{vSy}, {L_SYNC}
        v_mov_b32 v{vOne}, 1
        v_mov_b32 v{vC100}, 0x100
        v_lshlrev_b32 v{vA4}, 2, v0
        v_bfe_u32 v{u0}, v0, 2, 3
        v_mul_u32_u24 v{u0}, 288, v{u0}
        v_and_b32 v{u1}, 3, v0
        v_lshlrev_b32 v{u1}, 3, v{u1}
        v_add_u32 v{u1}, {L_WO}, v{u1}
        v_and_b32 v{u2}, 32, v0
        v_add3_u32 v{vPk[1]}, v{u0}, v{u1}, v{u2}
        s_lshl_b32 s{sT0}, s{sWv}, 6
        v_add_u32 v{vPk[0]}, s{sT0}, v{vPk[1]}
        v_bfe_u32 v{u0}, v0, 2, 2
        v_mul_u32_u24 v{u0}, 288, v{u0}
        v_lshrrev_b32 v{u2}, 4, v0
        v_lshlrev_b32 v{u2}, 5, v{u2}
        v_add3_u32 v{u0}, v{u0}, v{u1}, v{u2}
        s_lshl_b32 s{sT0}, s{sWv}, 7
        v_add_u32 v{vPk[2]}, s{sT0}, v{u0}""")
        for i in range(4): a(f"v_mov_b32 v{vSn+i}, {SENT}")
    def setup2():
        p3_scal(a)
        p3_addr_w(a, vWm, vWt, u0, u1, u2)
        p3_addr_o(a, vOm, vOt, vRd, vVa3, vSy3, u0, u1, u2)
        p3_hint_addr(a, HOF)
        for i in range(40): a(f"v_mov_b32 v{HAC+i}, 0")
    SP = OPT.get('setup', 'head')
    if SP == 'head': setup1(); setup2()
    a(f"""s_sub_u32 s{sT3}, s{sCnt}, {WSL}
    s_waitcnt vmcnt({6 + nb2})""")
    stamp(a, 17, SV)
    gate(sT3); gate(sCnt)
    a(f"""s_waitcnt vmcnt({2 + nb2}) lgkmcnt(0)
    s_barrier""")
    stamp(a, 1, SV)
    if not EARLY: second_batch()
    stamp(a, 18, SV)
    a(f"""s_mov_b32 s{sIt}, 0
    v_add_u32 v{t0}, s{sGk}, v{vGr}
    {K}_hl:""")
    for tt in (0, 2):
        a(f"""s_waitcnt vmcnt(@W{tt}@) lgkmcnt(0)
        s_barrier""")
        if OPT.get("prof"):
            a(f"""s_memtime s[82:83]
            s_lshl_b32 m0, s{sIt}, 1
            s_add_u32 m0, m0, {2 + (tt >> 1)}
            s_waitcnt lgkmcnt(0)
            v_writelane_b32 v{SV-8}, s82, m0""")
        if not OPT.get("noh"):
            def thr(k):
                if OPT.get("thr"):
                    a(f"""s_bitcmp1_b32 {STRAD}, s{sPr}
                    s_cbranch_scc1 {K}_th{tt}{k}
                    s_waitcnt vmcnt({OPT["thr"]})
                    {K}_th{tt}{k}:""")
            if tt == 0:
                a(f"ds_read_u16 v{vGv}, v{t0}")
            else:
                a(f"""s_mov_b64 exec, 0xffff
                ds_write2_b32 v{t2}, v{vGv}, v{vGv} offset0:0 offset1:1""")
            wdma2(tt >> 1)
            thr(0)
            xdma(tt + RX - 1)
            thr(1)
            xdma(tt + RX)
            if tt == 0:
                a(f"""v_add_u32 v{t2}, s{sWm0}, v{t1}
                s_add_u32 s{sGk}, s{sGk}, 128
                s_cmp_ge_u32 s{sGk}, 1152
                s_cselect_b32 s{sGk}, 0, s{sGk}
                v_add_u32 v{t0}, s{sGk}, v{vGr}""")
    wnext()
    a(f"""s_add_u32 s{sIt}, s{sIt}, 1
    s_cmp_lt_u32 s{sIt}, 7
    s_cbranch_scc1 {K}_hl""")
    need = {0: 99, 2: 99}
    for j in range(0, 36, 2):
        req = [f"X{min(j+2,35)}"]
        if j % 4 == 2 and j // 4 + 1 <= 8: req.append(f"W{j//4+1}")
        last = max(i for i, o in enumerate(order) if o in req)
        n_ = len(order) - 1 - last
        if j < 28:
            need[j % 4] = min(need[j % 4], n_)
            order += [f"W{j//4+2}"] * 2 + [f"X{j+RX-1}"] * 2 + [f"X{j+RX}"] * 2
        else:
            a(f"""s_waitcnt vmcnt({n_}) lgkmcnt(0)
            s_barrier""")
            for jj in (j + RX - 1, j + RX):
                if jj <= 35:
                    xdma(jj); order += [f"X{jj}"] * 2
            if SP == 'tail' and j == 28: setup1()
            if SP == 'tail' and j == 30: setup2()
    for i in (0, 2): a.l = [x.replace(f"@W{i}@", str(need[i])) for x in a.l]
    stamp(a, 2, SV)
    if OPT.get("prof"):
        a(f"""v_readlane_b32 s80, v{SV+1}, 0
        v_readlane_b32 s81, v{SV+1}, 1
        v_readlane_b32 s82, v{SV+1}, 2
        s_nop 3
        v_writelane_b32 v{SV-8}, s80, 0
        v_writelane_b32 v{SV-8}, s81, 1
        v_writelane_b32 v{SV-8}, s82, 16
        s_lshl_b32 s80, s2, 3
        s_add_u32 s80, s80, s{sW8}
        s_lshl_b32 s80, s80, 8
        s_add_u32 s80, s80, {WS_STAMP + 0x80000}
        v_lshlrev_b32 v1, 2, v0
        buffer_store_dword v{SV-8}, v1, s[{sWS}:{sWS+3}], s80 offen""")
    sPH, sPC = sWsrc, sWm0
    sQ = sGk
    a(f"""s_lshl_b32 s{sPH}, s{sPr}, 1
    s_and_b32 s{sT0}, s{sE}, 1
    s_add_u32 s{sPH}, s{sPH}, s{sT0}
    s_lshr_b32 s{sPC}, s{sE}, 1
    s_and_b32 s{sT0}, s{sPH}, 31
    s_mul_i32 s{sT0}, s{sT0}, {18*1152}
    s_mul_i32 s{sT1}, s{sPC}, 288
    s_add_u32 s{sT0}, s{sT0}, s{sT1}
    s_mul_i32 s{sT1}, s{sWv}, 864
    s_add_u32 m0, s{sT1}, {L_WO}
    s_mov_b32 exec_hi, 0x003fffff
    buffer_load_dwordx4 v{vWos}, s[{sWo}:{sWo+3}], s{sT0} offen lds
    s_add_u32 m0, s{sT1}, {L_WO + 4*864}
    s_nop 0
    buffer_load_dwordx4 v{vWos2}, s[{sWo}:{sWo+3}], s{sT0} offen lds
    s_mov_b64 exec, 1
    buffer_load_dword v{vP+1}, v{vPa}, s[{sD}:{sD+3}], 0 offen sc1
    s_mov_b64 exec, -1
    s_mul_i32 s{sRing}, s{sHH}, {RING}
    s_mul_i32 s{sT2}, s{sTH}, 5120
    s_mul_i32 s{sT1}, s{sE}, {2*BLK}
    s_add_u32 s{sT1}, s{sT1}, s{sKVg}
    s_add_u32 s{sT1}, s{sT1}, s{sT2}
    s_mov_b32 s{sQ}, s{sTH}
    s_cmp_eq_u32 s{sTH}, 1
    s_cselect_b32 s{sM0}, 0xffff, -1
    s_cselect_b32 s{sM0+1}, 0, -1
    s_barrier""")
    t0 = vPub
    stamp(a, 3, SV)
    for i in range(5): a(f"ds_read_b128 {vr(32+4*i,4)}, v{t0} offset:{1024*i}")
    a(f"s_mov_b32 s{sXb}, s{sT1}")
    def publish(ph):
        for i in range(5 * ph, 5 * ph + 5):
            if i % 5 == 4: a(f"""s_add_u32 s{sXb}, s{sXb}, 4096
            s_mov_b64 exec, s[{sM0}:{sM0+1}]""")
            if ph == 0: a(f"s_waitcnt lgkmcnt({4-i})")
            a(f"buffer_store_dwordx4 {vr(32+4*i,4)}, v{vL16}, s[{sWS}:{sWS+3}], s{sXb} offen offset:{1024*((i%5)%4)} sc1")
            if i % 5 == 4: a(f"""s_mov_b64 exec, -1
            s_add_u32 s{sXb}, s{sXb}, {BLK-4096}""")
    publish(0)
    a("s_barrier")
    for i in range(5, 10): a(f"ds_read_b128 {vr(32+4*i,4)}, v{t0} offset:{BLK + 1024*(i-5)}")
    def arrive(word, vm=0):
        a(f"""s_mov_b64 exec, 1
        s_waitcnt vmcnt({vm})
        ds_add_rtn_u32 v{vP}, v{vSy}, v{vOne} offset:{4*word}
        s_waitcnt lgkmcnt(0)
        v_readfirstlane_b32 s{sT1}, v{vP}
        s_mov_b64 exec, -1
        s_cmp_eq_u32 s{sT1}, 3""")
    def lds_wait(lbl, word):
        a(f"""s_mov_b32 s{sSpin}, 400000
        {lbl}:
        ds_read_b32 v{vP}, v{vSy} offset:{4*word}
        s_waitcnt lgkmcnt(0)
        v_readfirstlane_b32 s{sT1}, v{vP}
        s_cmp_lg_u32 s{sT1}, 0
        s_cbranch_scc1 {lbl}_go
        s_sub_u32 s{sSpin}, s{sSpin}, 1
        s_cmp_eq_u32 s{sSpin}, 0
        s_cbranch_scc1 {lbl}_go
        s_sleep 6
        s_branch {lbl}
        {lbl}_go:""")
    def flag(off, vm):
        a(f"""s_lshl_b32 s{sT0}, s{sE}, 8
        s_lshl_b32 s{sT1}, s{sTH}, 2
        s_add_u32 s{sT0}, s{sT0}, s{sT1}
        s_mov_b64 exec, 1
        s_waitcnt vmcnt({vm})
        buffer_store_dword v{vOne}, v{vFa}, s[{sWS}:{sWS+3}], s{sT0} offen offset:{off} sc1
        s_mov_b64 exec, -1""")
    flag(0, 0)
    stamp(a, 4, SV)
    def rst_ok(r):
        a(f"""v_readfirstlane_b32 s{sT0}, v{r}
        s_and_b32 s{sT0}, s{sT0}, 0xff
        s_cmp_ge_u32 s{sT0}, 8""")
    def kv_ready():
        a(f"""v_cmp_eq_u32 vcc, 1, v{vP}
        s_nop 1
        s_cmp_eq_u32 vcc_lo, 0xffff""")
    a("s_mov_b64 exec, 1")
    rst_ok(vP + 1)
    a(f"s_cbranch_scc1 {K}_pl0_go")
    poll(a, f"{K}_pl0", f"buffer_load_dword v{vP}, v{vPa}, s[{sD}:{sD+3}], 0 offen sc1", lambda: rst_ok(vP), 8)
    a(f"""s_add_u32 s{sT2}, s{sTH}, 1
    s_xor_b32 s{sT2}, s{sT2}, s{sE}
    s_lshl_b32 s{sT2}, s{sT2}, 8
    s_mov_b64 exec, 3
    s_mov_b32 s{sSpin}, 40000
    buffer_load_dword v{vP}, v{vFa}, s[{sWS}:{sWS+3}], s{sT2} offen sc1
    s_sleep {OPT.get("fslp", 4)}
    buffer_load_dword v{vP+1}, v{vFa}, s[{sWS}:{sWS+3}], s{sT2} offen sc1
    s_sleep {OPT.get("fslp", 4)}
    {K}_pl1:""")
    for r_ in range(3):
        a(f"""buffer_load_dword v{vP+(r_+2)%3}, v{vFa}, s[{sWS}:{sWS+3}], s{sT2} offen sc1
        s_waitcnt vmcnt(2)
        v_cmp_eq_u32 vcc, 1, v{vP+r_}
        s_nop 1
        s_cmp_eq_u32 vcc_lo, 3
        s_cbranch_scc1 {K}_kgo""")
    a(f"""s_sub_u32 s{sSpin}, s{sSpin}, 1
    s_cmp_lg_u32 s{sSpin}, 0
    s_cbranch_scc1 {K}_pl1
    {K}_kgo:
    s_mov_b64 exec, -1""")
    stamp(a, 5, SV)
    def ldblock():
        a(f"s_call_b64 s[{sRet}:{sRet+1}], {K}_ldblk")
    ldblock()
    a("s_waitcnt lgkmcnt(0)")
    publish(1)
    a("s_waitcnt vmcnt(5)")
    stamp(a, 6, SV)
    a("s_barrier")
    flag(2048, 0)
    a("s_mov_b64 exec, 0xffff")
    poll(a, f"{K}_pl1a", f"buffer_load_dword v{vP}, v{vFa}, s[{sWS}:{sWS+3}], 0 offen sc1", kv_ready, 2)
    a("s_mov_b64 exec, -1")
    ldblock(); ldblock()
    a("s_waitcnt vmcnt(0)")
    stamp(a, 7, SV)
    a("s_barrier")
    a("s_mov_b64 exec, 0xffff")
    poll(a, f"{K}_pl1b", f"buffer_load_dword v{vP}, v{vFa}, s[{sWS}:{sWS+3}], 0 offen offset:2048 sc1", kv_ready, 2)
    a("s_mov_b64 exec, -1")
    ldblock(); ldblock()
    a(f"""ds_read_b64_tr_b16 {vr(64,2)}, v{vPk[0]}
    ds_read_b64_tr_b16 {vr(66,2)}, v{vPk[0]} offset:2304
    ds_read_b64_tr_b16 {vr(68,2)}, v{vPk[1]} offset:256
    ds_read_b64_tr_b16 {vr(70,2)}, v{vPk[1]} offset:{256+2304}
    ds_read_b64_tr_b16 {vr(72,2)}, v{vPk[2]} offset:{16*288-128}
    s_lshl_b32 s{sT0}, s{sPC}, 6
    s_add_u32 s{sT0}, s{sT0}, s{sPH}
    s_mul_i32 s{sT0}, s{sT0}, 4608
    s_add_u32 s{sT0}, s{sT0}, {WS_WOM}
    s_lshl_b32 s{sT1}, s{sWv}, 10
    s_add_u32 s{sT1}, s{sT1}, s{sT0}
    s_lshl_b32 s{sT2}, s{sPC}, 4
    s_lshr_b32 s{sT3}, s{sPH}, 2
    s_add_u32 s{sT2}, s{sT2}, s{sT3}
    s_mul_i32 s{sT2}, s{sT2}, 2304
    s_and_b32 s{sT3}, s{sPH}, 3
    s_lshl_b32 s{sT3}, s{sT3}, 2
    s_add_u32 s{sT2}, s{sT2}, s{sT3}
    s_lshl_b32 s{sT3}, s{sWv}, 10
    s_add_u32 s{sT2}, s{sT2}, s{sT3}
    s_add_u32 s{sT2}, s{sT2}, {WS_WOT - 1024}
    s_waitcnt lgkmcnt(0)
    buffer_store_dwordx4 {vr(64,4)}, v{vL16}, s[{sWS}:{sWS+3}], s{sT1} offen sc1
    s_cmp_eq_u32 s{sWv}, 0
    s_cbranch_scc0 {K}_wo_tail
    s_mov_b32 exec_hi, 0
    s_add_u32 s{sT3}, s{sT0}, 4096
    buffer_store_dwordx4 {vr(68,4)}, v{vL16}, s[{sWS}:{sWS+3}], s{sT3} offen sc1
    s_branch {K}_wo_done
    {K}_wo_tail:
    s_cmp_eq_u32 s{sWv}, 3
    s_cselect_b32 exec_lo, 0xffff, -1
    s_cselect_b32 exec_hi, 0, -1
    buffer_store_dword v72, v{vL16}, s[{sWS}:{sWS+3}], s{sT2} offen sc1
    {K}_wo_done:
    s_mov_b64 exec, -1""")
    a(f"""s_lshl_b32 s{sT1}, s{sE}, 1
    s_add_u32 s{sT1}, s{sT1}, s{sTH}
    s_lshl_b32 s{sT1}, s{sT1}, 8
    s_add_u32 s{sT1}, s{sT1}, s{sBH}
    s_mul_i32 s{sT1}, s{sT1}, 1152
    s_add_u32 s{sT1}, s{sT1}, {WS_O}""")
    for x in range(4):
        a(f"""buffer_store_dwordx4 {vr(vSn,4)}, v{vL16}, s[{sWS}:{sWS+3}], s{sT1} offen sc1
        s_mov_b64 exec, 0xff
        buffer_store_dwordx4 {vr(vSn,4)}, v{vL16}, s[{sWS}:{sWS+3}], s{sT1} offen offset:1024 sc1
        s_mov_b64 exec, -1
        s_add_u32 s{sT1}, s{sT1}, {64*1152}""")
    arrive(1)
    a(f"""s_cbranch_scc0 {K}_sg2
    s_mov_b64 exec, 1
    buffer_atomic_add v{vC100}, v{vPa}, s[{sD}:{sD+3}], 0 offen
    s_mov_b64 exec, -1
    {K}_sg2:""")
    a("s_barrier")
    ldblock(); ldblock()
    stamp(a, 12, SV)
    a(f"""s_cmp_eq_u32 s{sWv}, 0
    s_cbranch_scc0 {K}_gw
    s_mov_b32 exec_hi, 0""")
    def all_init():
        a(f"""v_bfe_u32 v{vP}, v{vP}, 8, 8
        v_cmp_le_u32 vcc, 8, v{vP}
        s_nop 1
        s_cmp_eq_u32 vcc_lo, -1""")
    poll(a, f"{K}_pl2", f"buffer_load_dword v{vP}, v{vA4}, s[{sD}:{sD+3}], 0 offen sc1", all_init, 32)
    a(f"""ds_write_b32 v{vSy}, v{vOne} offset:12
    s_mov_b64 exec, -1
    s_branch {K}_ggo
    {K}_gw:""")
    lds_wait(f"{K}_lw2", 3)
    a(f"{K}_ggo:")
    HC = [0, 1, 2, 3, 4]
    hreg = lambda s, ct: HWB + 4 * (5 * s + ct)
    p3_wo_loads(a, HC, hreg, vWm, vWt)
    a("s_waitcnt vmcnt(45)")
    stamp(a, 8, SV)
    a("s_barrier")
    if not OPT.get('x_nowarm'): p3_wo_loads(a, [8], lambda s, ct: HOF + 4 * (s % 4), vWm, vWt)
    a(f"""s_mul_i32 s{sT0}, s{sTH}, 27648
    s_add_u32 s{sT0}, s{sT0}, s{sRing}
    s_barrier""")
    for s in range(9 if not OPT.get('x_nostage') else 0):
        for i, ct in enumerate(CL):
            n = 3 * s + i
            if s < 8:
                a(f"""s_add_u32 m0, s{sT0}, {1024*n}
                s_add_u32 s{sT3}, s{sGW[s>>1]}, {2*(s&1)*4608 + 512*ct}
                buffer_load_dwordx4 v{vWm}, s[{sWS}:{sWS+3}], s{sT3} offen sc1 lds""")
            else:
                a(f"""s_add_u32 m0, s{sT0}, {1024*n}
                s_add_u32 s{sT3}, s{sWtb}, {256*ct}
                buffer_load_dwordx4 v{vWt}, s[{sWS}:{sWS+3}], s{sT3} offen sc1 lds""")
    a(f"""s_mul_i32 s{sT0}, s{sP3T}, {32*1152}
    buffer_load_dword v1, v{vL16}, s[{sOut}:{sOut+3}], s{sT0} offen
    s_waitcnt vmcnt(0)""")
    stamp(a, 9, SV)
    a("s_barrier")
    stamp(a, 10, SV)
    p3_helper(a, HC, hreg, HAC, HOF, vOm, vOt, vRd, vL16, vVa3, vSy3, int(OPT.get("hslp", 1)))
    stamp(a, 11, SV)
    if OPT["stamp"]: a(f"v_mov_b32 v30, v{SV}\nv_mov_b32 v31, v{SV+1}")
    a(f"s_branch {K}_final")
    a(f"""{K}_ldblk:
    s_add_u32 s{sQ}, s{sQ}, 2
    s_cmp_ge_u32 s{sQ}, 9
    s_cselect_b32 s{sT0}, 0, 7
    s_cselect_b32 s{sT2}, 1, 0
    s_add_u32 s{sT0}, s{sT0}, s{sQ}
    s_and_b32 s{sT0}, s{sT0}, 7
    s_xor_b32 s{sT0}, s{sT0}, s{sE}
    s_lshl_b32 s{sT0}, s{sT0}, 1
    s_add_u32 s{sT0}, s{sT0}, s{sT2}
    s_mul_i32 s{sT1}, s{sT0}, {BLK}
    s_add_u32 s{sT1}, s{sT1}, s{sKVg}
    s_and_b32 s{sT0}, s{sQ}, 7
    s_mul_i32 s{sT0}, s{sT0}, {BLK}
    s_add_u32 s{sT0}, s{sT0}, s{sRing}""")
    for i in range(10):
        if i % 4 == 0:
            a(f"""s_add_u32 m0, s{sT0}, {1024*i}
            s_add_u32 s{sT2}, s{sT1}, {1024*i}""")
        if i == 9: a("s_mov_b64 exec, 0xffff")
        a(f"buffer_load_dwordx4 v{vL16}, s[{sWS}:{sWS+3}], s{sT2} offen offset:{1024*(i%4)} sc1 lds")
    a(f"""s_mov_b64 exec, -1
    s_setpc_b64 s[{sRet}:{sRet+1}]""")

def compute(a, K):
    RX = int(OPT["rx"])
    common_late(a)
    a("s_waitcnt lgkmcnt(0)")
    stamp(a, 0, 30)
    vXr = [2, 3, 20, 21]
    vWc = [4, 5, 9, 1]
    t0, t1, t2, t3, t4, t5 = 64, 65, 66, 67, 68, 69
    WF = 32
    XF = [96, 112]
    ACC = 128
    def reset_flags():
        a(f"""s_cmp_eq_u32 s{sWv}, 0
        s_cselect_b32 s{sCnt}, {OPT.get("rstit", 4)}, 100
        s_cbranch_scc0 {K}_norst
        s_lshl_b32 s{sT0}, s{sPr}, 12
        s_lshl_b32 s{sT1}, s{sE}, 8
        s_add_u32 s{sT0}, s{sT0}, s{sT1}
        s_add_u32 s{sT0}, s{sT0}, {WS_F}
        v_lshlrev_b32 v75, 7, v0
        v_mov_b32 v76, 0
        v_mov_b32 v77, 0
        s_mov_b64 exec, 3
        buffer_store_dwordx2 v[76:77], v75, s[{sWS}:{sWS+3}], s{sT0} offen sc1
        buffer_store_dwordx2 v[76:77], v75, s[{sWS}:{sWS+3}], s{sT0} offen offset:2048 sc1""")
        if OPT.get("touch", "1") == "1":
            a(f"""s_mov_b64 exec, 1
            buffer_load_dword v78, v75, s[{sWS}:{sWS+3}], s{sKVg} offen
            s_add_u32 s{sT0}, s{sKVg}, {2*KVH-128}
            buffer_load_dword v79, v75, s[{sWS}:{sWS+3}], s{sT0} offen""")
        a(f"""s_mov_b64 exec, -1
        {K}_norst:""")
    a(f"v_mov_b32 v{ACC}, 0")
    if OPT.get("rstpos", "late") == "start": reset_flags()
    a(f"""v_and_b32 v{t0}, 15, v0
    v_lshrrev_b32 v{t1}, 4, v0
    v_bfe_u32 v{t2}, v0, 1, 3
    v_xor_b32 v{t2}, v{t2}, v{t1}
    v_lshlrev_b32 v{t2}, 4, v{t2}
    v_lshlrev_b32 v{t3}, 7, v{t0}
    s_lshl_b32 s{sT0}, s{sTH}, 12
    s_lshl_b32 s{sT1}, s{sHH}, 11
    s_add_u32 s{sT0}, s{sT0}, s{sT1}
    s_add_u32 s{sT0}, s{sT0}, {L_XR}
    v_add_u32 v{t3}, s{sT0}, v{t3}
    v_add_u32 v{vXr[0]}, v{t3}, v{t2}
    v_xor_b32 v{t2}, 64, v{t2}
    v_add_u32 v{vXr[1]}, v{t3}, v{t2}
    v_xor_b32 v{vXr[2]}, 2048, v{vXr[0]}
    v_xor_b32 v{vXr[3]}, 2048, v{vXr[1]}
    v_bfe_u32 v{t2}, v0, 2, 2
    v_lshl_add_u32 v{t2}, v{t1}, 3, v{t2}
    v_lshlrev_b32 v{t2}, 8, v{t2}
    v_bfe_u32 v{t4}, v0, 2, 3
    v_lshlrev_b32 v{t4}, 5, v{t4}
    v_and_b32 v{t3}, 3, v0
    v_lshlrev_b32 v{t3}, 3, v{t3}
    s_mul_i32 s{sT1}, s{sHH}, 40
    s_mov_b32 s{sT0}, {192 | (112 << 8) | (32 << 16) | (240 << 24)}
    v_lshrrev_b32 v{t5}, v{t3}, s{sT0}
    v_and_b32 v{t5}, 0xff, v{t5}
    v_xor_b32 v{t5}, v{t5}, v{t4}
    v_add_u32 v{vWc[3]}, v{t2}, v{t5}
    v_add_u32 v{t3}, s{sT1}, v{t3}
    v_lshrrev_b32 v{t5}, 3, v{t3}
    v_and_b32 v{t5}, 8, v{t5}
    v_add_u32 v{t3}, v{t3}, v{t5}""")
    for ct, off in enumerate((80, 0, 160)):
        a(f"""v_add_u32 v{t5}, {off}, v{t3}
        v_xor_b32 v{t5}, v{t5}, v{t4}
        v_add_u32 v{vWc[ct]}, v{t2}, v{t5}""")
    for i in range(1, 128):
        if i % 32 < 28: a(f"v_mov_b32 v{ACC+i}, 0")
    vKa, vTa, vVa, vIdx = 6, 7, 8, 10
    vKw, vQw, vVw, vMul, vSq, vSqh = 11, 12, 13, 24, 25, 19
    vSt, vStt, vWm3, vWt, vCp, vOnes, vQr = 14, 15, 16, 17, 18, 22, 23
    vM0, vDs, vDt, vDe, vDh = 70, 71, 72, 73, 74
    MA = lambda tt, i: ACC + 32 * tt + 28 + i
    sBlk, sScr = sXb, sKo
    a(f"""s_mul_i32 s{sRing}, s{sHH}, {RING}
    s_mul_i32 s{sBlk}, s{sTH}, {BLK}
    s_add_u32 s{sBlk}, s{sBlk}, s{sRing}
    s_mul_i32 s{sScr}, s{sWv}, 5120
    s_add_u32 s{sScr}, s{sScr}, {L_SCR}
    v_lshrrev_b32 v{t2}, 2, v{t0}
    v_and_b32 v{t3}, 3, v0
    v_lshl_add_u32 v{t4}, v{t2}, 3, v{t3}
    v_lshrrev_b32 v{t5}, 5, v0
    v_lshlrev_b32 v{t5}, 9, v{t5}
    v_and_b32 v{vQw}, 16, v0
    v_lshrrev_b32 v{vQw}, 1, v{vQw}
    v_add_u32 v{t5}, v{t5}, v{vQw}
    v_lshl_add_u32 v{vKw}, v{t4}, 4, v{t5}
    s_lshl_b32 s{sT0}, s{sTH}, 11
    s_add_u32 s{sT0}, s{sT0}, s{sRing}
    v_add_u32 v{vKw}, s{sT0}, v{vKw}
    v_lshl_add_u32 v{vQw}, v{t0}, 4, v{t5}
    v_add_u32 v{vQw}, s{sScr}, v{vQw}
    v_mul_u32_u24 v{vVw}, 304, v{t1}
    v_lshl_add_u32 v{vVw}, v{t0}, 4, v{vVw}
    s_mul_i32 s{sT0}, s{sTH}, 2432
    s_add_u32 s{sT0}, s{sT0}, s{sRing}
    v_add_u32 v{vVw}, s{sT0}, v{vVw}""")
    a(f"""s_mul_i32 s{sT2}, s{sTH}, 2432
    s_mul_i32 s{sT3}, s{sTH}, 5120
    v_mul_u32_u24 v{vM0}, 304, v{t2}
    v_lshl_add_u32 v{vM0}, v{t3}, 1, v{vM0}
    s_add_u32 s{sT0}, s{sT2}, {4608+256}
    v_add_u32 v{vM0}, s{sT0}, v{vM0}
    s_lshl_b32 s{sT0}, s{sTH}, 3
    s_add_u32 s{sT0}, s{sT0}, 4096
    s_add_u32 s{sT1}, s{sT3}, {L_SCR+4096-1024}
    v_lshlrev_b32 v{t5}, 9, v{t1}
    v_add_u32 v{t5}, s{sT1}, v{t5}
    v_mov_b32 v{vDh}, s{sT0}
    v_cmp_eq_u32 vcc, 1, v{t1}
    v_mov_b32 v{vDs}, 64
    v_mov_b32 v{vDt}, 4
    v_cndmask_b32 v{t5}, v{t5}, v{vDh}, vcc
    v_lshl_add_u32 v{t5}, v{t4}, 4, v{t5}
    v_cmp_eq_u32 vcc, 0, v{t1}
    v_mov_b32 v{vDe}, 2
    v_mov_b32 v{t3}, 1216
    v_cndmask_b32 v{vM0}, v{t5}, v{vM0}, vcc
    v_cndmask_b32 v{vDs}, v{vDs}, 8, vcc
    v_cndmask_b32 v{vDt}, v{vDt}, v{t3}, vcc
    v_cndmask_b32 v{vDe}, v{vDe}, 16, vcc
    v_cmp_gt_u32 vcc, 2, v{t1}
    v_mov_b32 v{vDh}, {2*5120}
    v_mov_b32 v{t3}, {RING}
    v_cndmask_b32 v{vDh}, v{vDh}, v{t3}, vcc
    v_mov_b32 v{t5}, 8
    v_mov_b32 v{t3}, {BLK}
    v_cndmask_b32 v{t5}, v{t5}, v{t3}, vcc
    v_mul_u32_u24 v{t3}, s{sHH}, v{vDs}
    v_add_u32 v{MA(0,0)}, v{vM0}, v{t3}
    v_sub_u32 v{t3}, v{vDs}, v{t3}
    v_add3_u32 v{MA(0,2)}, v{vM0}, v{t3}, v{vDh}
    v_add_u32 v{MA(0,1)}, v{MA(0,0)}, v{vDe}
    v_add_u32 v{MA(0,3)}, v{MA(0,2)}, v{vDe}""")
    for i in range(4):
        a(f"""v_add_u32 v{MA(1,i)}, v{MA(0,i)}, v{vDt}
        v_add_u32 v{MA(2,i)}, v{MA(0,i)}, v{t5}
        v_add_u32 v{MA(3,i)}, v{MA(1,i)}, v{t5}""")
    a(f"""v_cmp_eq_u32 vcc, 2, v{t1}
    v_mov_b32 v{vMul}, 1.0
    v_mov_b32 v{t2}, {f32(CSCALE)}
    v_cndmask_b32 v{vMul}, v{vMul}, v{t2}, vcc""")
    a(f"""v_and_b32 v{t2}, 16, v0
    v_lshrrev_b32 v{t2}, 2, v{t2}
    v_add_u32 v{t2}, v{t2}, v{t4}
    v_lshlrev_b32 v{vSq}, 4, v{t2}
    s_add_u32 s{sT1}, s{sScr}, 4096
    v_add_u32 v{vSq}, s{sT1}, v{vSq}
    v_and_b32 v{t0}, 31, v0
    v_lshrrev_b32 v{t1}, 5, v0
    v_mul_u32_u24 v{t3}, 304, v{t1}
    v_lshl_add_u32 v{t3}, v{t0}, 4, v{t3}
    v_add_u32 v{t3}, s{sRing}, v{t3}
    v_cmp_gt_u32 vcc, 19, v{t0}
    v_mov_b32 v{vVa}, {LDS_BYTES}
    v_lshl_add_u32 v{vKa}, v0, 4, s{sRing}
    v_cndmask_b32 v{vVa}, v{vVa}, v{t3}, vcc
    v_lshl_add_u32 v{vTa}, v{t0}, 4, s{sRing}
    v_mov_b32 v{vIdx}, 0xdddddddd
    v_lshl_add_u32 v{vSqh}, v{t1}, 2, v{vSq}
    s_mov_b32 s{sWsrc}, 0
    s_mov_b32 s{sXm0}, 0
    v_mul_u32_u24 v{vOnes}, 304, v0
    v_add_u32 v{vOnes}, s{sBlk}, v{vOnes}
    v_lshl_add_u32 v{vQr}, v0, 4, s{sScr}
    s_mul_i32 s{sT0}, s{sTH}, 27648
    s_add_u32 s{sT0}, s{sT0}, s{sRing}
    v_lshl_add_u32 v{vCp}, v0, 4, s{sT0}
    s_lshl_b32 s{sT0}, s{sHH}, 4
    v_xor_b32 v{t2}, s{sT0}, v0
    v_lshlrev_b32 v{vSt}, 4, v{t2}
    s_and_b32 s{sT0}, s{sTt}, 1
    v_xor_b32 v{vStt}, s{sT0}, v{t1}
    v_mul_u32_u24 v{vStt}, {64*1152}, v{vStt}
    v_and_b32 v{t2}, 31, v{t2}
    v_lshl_add_u32 v{vStt}, v{t2}, 2, v{vStt}
    s_lshl_b32 s{sT1}, s{sE}, 1
    s_add_u32 s{sT1}, s{sT1}, s{sTH}
    s_lshl_b32 s{sT1}, s{sT1}, 8
    s_add_u32 s{sT1}, s{sT1}, s{sBH}
    s_mul_i32 s{sT1}, s{sT1}, 1152
    s_add_u32 s{sRef}, s{sT1}, {WS_O}
    s_cmp_ge_u32 s{sPr}, 16
    s_mov_b32 s60, {f32(-LOG2E)}
    s_cselect_b32 s60, {f32(LOG2E)}, s60
    s_mov_b32 s61, {f32(2.0**-40)}
    s_mov_b32 s64, {f32(2.0**40) if not OPT['force_fb'] else f32(2.0**-39)}
    s_mov_b32 s65, {f32(CSCALE)}""")
    for x in range(4):
        a(f"""s_xor_b32 s{56+x}, s{sTt}, {x}
        s_mul_i32 s{56+x}, s{56+x}, {64*1152}
        s_add_u32 s{56+x}, s{56+x}, s{sRef}""")
    a("""s_min_u32 s4, s56, s57
    s_min_u32 s5, s58, s59""")
    p3_scal(a)
    p3_addr_w(a, vWm3, vWt, t0, t1, t2)
    coff = (48, 0, 96, 0)
    def wfrag(k2):
        r = []
        for ct in range(4):
            for hf in range(2):
                r.append(f"ds_read_b64_tr_b16 {vr(WF+16*k2+4*ct+2*hf,2)}, v{vWc[ct]} offset:{L_WR + (32*k2+4*hf)*256}")
        return r
    def xread(buf):
        r = []
        for k2 in range(2):
            for s in range(2):
                r.append(f"ds_read_b128 {vr(XF[buf]+8*k2+4*s,4)}, v{vXr[2*s+k2]}")
        return r
    xadv = [f"s_add_u32 s{sXm0}, s{sXm0}, 1", f"s_cmp_eq_u32 s{sXm0}, {RX}", f"s_cselect_b32 s{sXm0}, 0, s{sXm0}",
            f"s_cselect_b32 s{sT1}, s{sWk}, s{sWcnt}",
            ] + [f"v_add_u32 v{c}, s{sT1}, v{c}" for c in vXr]
    wadv = [f"s_add_u32 s{sWsrc}, s{sWsrc}, 1", f"s_cmp_eq_u32 s{sWsrc}, {RW}", f"s_cselect_b32 s{sWsrc}, 0, s{sWsrc}",
            f"s_cselect_b32 s{sT2}, s{sWm0}, s{sGk}",
            ] + [f"v_add_u32 v{c}, s{sT2}, v{c}" for c in vWc]
    if OPT.get('noadv'):
        xadv = [''] * 8; wadv = [''] * 8
    a(f"""s_mov_b32 s{sWk}, {(-(RX-1)*8192) & 0xffffffff}
    s_mov_b32 s{sWcnt}, 8192
    s_mov_b32 s{sWm0}, {(-(RW-1)*WSL) & 0xffffffff}
    s_mov_b32 s{sGk}, {WSL}""")
    if OPT.get("rstpos", "late") == "late": reset_flags()
    if OPT.get("pf9", "1") == "1":
        a(f"""s_lshr_b32 s{sT0}, s2, 5
        s_bfe_u32 s{sT1}, s2, {(2 << 16) | 3}
        s_cmp_eq_u32 s{sWv}, 0
        s_cbranch_scc1 {K}_pfx
        s_cmp_eq_u32 s{sWv}, 1
        s_cbranch_scc0 {K}_pfw
        s_lshl_b32 s{sT2}, s{sT1}, 1
        s_sub_u32 s{sT2}, s{sT2}, 1
        s_cselect_b32 s{sT2}, 8, s{sT2}
        s_lshl_b32 s{sT2}, s{sT2}, 7
        s_lshl_b32 s{sT3}, s{sE}, 3
        s_add_u32 s{sT3}, s{sT3}, s{sT0}
        s_mul_i32 s{sT3}, s{sT3}, {32*1152}
        s_add_u32 s{sT2}, s{sT2}, s{sT3}
        v_mul_u32_u24 v75, 1152, v0
        s_mov_b32 exec_hi, 0
        buffer_load_dword v76, v75, s[{sX}:{sX+3}], s{sT2} offen
        s_branch {K}_pfd
        {K}_pfw:
        s_sub_u32 s{sT2}, s{sT0}, 1
        s_cselect_b32 s{sT2}, 8, s{sT2}
        s_lshl_b32 s{sT2}, s{sT2}, 2
        s_add_u32 s{sT2}, s{sT2}, s{sT1}
        s_mul_i32 s{sT2}, s{sT2}, {16*3456}
        s_and_b32 s{sT3}, s{sPr}, 15
        s_mul_i32 s{sT3}, s{sT3}, 72
        s_add_u32 s{sT2}, s{sT2}, s{sT3}
        s_mul_i32 s{sT3}, s{sTH}, 68
        s_add_u32 s{sT2}, s{sT2}, s{sT3}
        v_mul_u32_u24 v75, 1152, v0
        s_mov_b32 exec_hi, 0xffff
        buffer_load_dword v76, v75, s[{sW}:{sW+3}], s{sT2} offen
        {K}_pfd:
        s_mov_b64 exec, -1
        {K}_pfx:""")
    a("s_barrier")
    stamp(a, 1, 30)
    if OPT.get("rstpos", "late") == "afterp": reset_flags()
    for m in xread(0) + xadv + wfrag(0) + wfrag(1): a(m)
    QM, QT = 32, 48
    KF, V0, V1, KT = [80, 84], [88, 92], [96, 100], [56, 60]
    vGl = 26
    TP = 108
    def epi(tt):
        tp = (64, 80)[tt % 2]
        r = []
        for s in range(2):
            b = ACC + 32 * tt + 16 * s
            k_, q_ = tp + 2 * s, tp + 4 + 2 * s
            r += f"""v_cvt_pk_bf16_f32 v{k_}, v{b}, v{b+1}
            v_cvt_pk_bf16_f32 v{k_+1}, v{b+2}, v{b+3}
            v_mul_f32 v{b+4}, s65, v{b+4}
            v_mul_f32 v{b+5}, s65, v{b+5}
            v_mul_f32 v{b+6}, s65, v{b+6}
            v_mul_f32 v{b+7}, s65, v{b+7}
            ds_write_b64 v{vKw}, {vr(k_,2)} offset:{(tt>>1)*BLK + (tt&1)*1024 + s*64}
            v_cvt_pk_bf16_f32 v{q_}, v{b+4}, v{b+5}
            v_cvt_pk_bf16_f32 v{q_+1}, v{b+6}, v{b+7}
            v_cvt_pk_bf16_f32 v{tp+8+2*s}, v{b+8}, v{b+9}
            v_cvt_pk_bf16_f32 v{tp+9+2*s}, v{b+10}, v{b+11}
            ds_write_b64 v{vQw}, {vr(q_,2)} offset:{tt*1024 + s*256}""".split("\n")
        b = ACC + 32 * tt
        r += f"""ds_write_b128 v{vVw}, {vr(tp+8,4)} offset:{4608 + (tt>>1)*BLK + (tt&1)*1216}
        v_mul_f32 v{b+12}, v{vMul}, v{b+12}
        v_mul_f32 v{b+13}, v{vMul}, v{b+13}
        v_mul_f32 v{b+14}, v{vMul}, v{b+14}
        v_mul_f32 v{b+15}, v{vMul}, v{b+15}
        v_cvt_pk_bf16_f32 v{tp+12}, v{b+12}, v{b+13}
        v_cvt_pk_bf16_f32 v{tp+13}, v{b+14}, v{b+15}
        ds_write_b16 v{MA(tt,0)}, v{tp+12}
        ds_write_b16_d16_hi v{MA(tt,1)}, v{tp+12}
        ds_write_b16 v{MA(tt,2)}, v{tp+13}
        ds_write_b16_d16_hi v{MA(tt,3)}, v{tp+13}""".split("\n")
        return r
    NM = 14
    def chunk(last):
        for tt in range(4):
            cur = XF[tt & 1]
            mf = []
            for k2 in range(2):
                for ct in range(4):
                    for s in range(2 if ct < 3 else 1):
                        d = ACC + 32 * tt + 16 * s + 4 * ct
                        w_, x_ = vr(WF + 16 * k2 + 4 * ct, 4), vr(cur + 8 * k2 + 4 * s, 4)
                        A_, B_ = (x_, w_) if ct == 2 else (w_, x_)
                        mf.append(f"v_mfma_f32_16x16x32_bf16 {vr(d,4)}, {A_}, {B_}, {vr(d,4)}")
            fill = {i: [] for i in range(-1, NM)}
            xr = xread((tt + 1) & 1)
            if tt == 0:
                fill[-1].append("s_waitcnt lgkmcnt(8)")
                for i in range(4): fill[i].append(xr[i])
                fill[6].append("s_waitcnt lgkmcnt(4)")
                for i in range(8): fill[(4, 5, 7, 8, 9, 10, 11, 12)[i]].append(xadv[i])
                if last:
                    for i in range(4): fill[i].append(f"v_mov_b32 v{92+i}, 0x3f803f80")
                    fill[13] += ["s_mov_b64 exec, 0xffff", f"ds_write_b128 v{vOnes}, v[92:95] offset:{4608+288}", "s_mov_b64 exec, -1"]
            elif last:
                if tt < 3:
                    for i in range(4): fill[i // 2].append(xr[i])
                    if tt == 1:
                        for i in range(8): fill[2 + i // 3].append(xadv[i])
                e = epi(tt - 1)
                st = (0, 5, 2, 1)[tt]
                per = -(-len(e) // (NM - st))
                for i, m in enumerate(e): fill[st + i // per].append(m)
            elif tt == 3:
                for i in range(4): fill[-1 + (i + 1) // 2].append(xr[i])
                w0, w1 = wfrag(0), wfrag(1)
                lastuse = (1, 3, 5, 6)
                for ct in range(4):
                    fill[lastuse[ct]] += [w0[2 * ct]]; fill[lastuse[ct] + 1] += [w0[2 * ct + 1]]
                    fill[7 + lastuse[ct]] += [w1[2 * ct]]; fill[min(NM - 1, 8 + lastuse[ct])] += [w1[2 * ct + 1]]
                for i in range(8): fill[(2, 3, 4, 5, 7, 8, 9, 10)[i]].append(xadv[i])
                fill[11].append(f"s_sub_u32 s{sIt}, s{sIt}, 1")
            else:
                for i in range(4): fill[i].append(xr[i])
                for i in range(8): fill[4 + i].append(xadv[i])
                if tt == 1:
                    for i in range(4): fill[10 + i].append(wadv[i])
                if tt == 2:
                    for i in range(4): fill[10 + i].append(wadv[4 + i])
            if tt % 2 == 0: a("s_barrier")
            for m in fill[-1]: a(m)
            for i in range(NM):
                if not OPT.get("nomf"): a(mf[i])
                for m in fill[i]: a(m)
            if last:
                if tt == 0: a("s_waitcnt lgkmcnt(1)")
                elif tt == 1: a("s_waitcnt lgkmcnt(9)")
                elif tt == 2: a("s_waitcnt lgkmcnt(0)\ns_barrier")
            elif tt == 3:
                a(f"""s_waitcnt lgkmcnt(15)
                s_cmp_eq_u32 s{sIt}, s{sCnt}
                s_cbranch_scc1 {K}_rst
                {K}_rst_ret:
                s_cmp_lg_u32 s{sIt}, 0""")
            else:
                a("s_waitcnt lgkmcnt(0)")
    a(f"""s_mov_b32 s{sIt}, 8
    s_waitcnt lgkmcnt(0)
    {K}_p1:""")
    chunk(False)
    a(f"s_cbranch_scc1 {K}_p1")
    a("s_waitcnt vmcnt(0)")
    chunk(True)
    stamp(a, 2, 30)
    a("s_nop 1")
    for m in epi(3): a(m)
    S = [128, 144, 160, 176]
    O = [192, 208, 224, 240]
    zo = [f"v_mov_b32 v{O[x]+i}, 0" for x in range(4) for i in range(11)]
    zq = [f"v_mov_b32 v{QT+4*j+i}, 0" for j in range(2) for i in (1, 2)]
    zs = [f"v_mov_b32 v{S[3]+8+i}, 0" for i in range(8)] + [f"v_mov_b32 v{V1[1]+i}, 0" for i in range(4)]
    for m in zo[:22]: a(m)
    a("s_waitcnt lgkmcnt(0)")
    for x in range(4): a(f"ds_read_b128 {vr(QM+4*x,4)}, v{vQr} offset:{1024*x}")
    a("s_barrier")
    stamp(a, 3, 30)
    NB = int(OPT["nb"])
    T2F = OPT.get("t2f", "0") == "1"
    def ldK(t, buf): return f"ds_read_b128 {vr(KF[buf],4)}, v{vKa} offset:{((t//4)%NB)*BLK + (t%4)*1024}"
    def ldV(t, half, buf): return f"ds_read_b128 {vr((V0,V1)[half][buf],4)}, v{vVa} offset:{((t//4)%NB)*BLK + 4608 + (t%4)*1216 + 608*half}"
    def ldT(b=0): return f"ds_read_b128 {vr(KT[b%2],4)}, v{vTa} offset:{(b%NB)*BLK + 4096}"
    def QKM(t, x, s, c="0"): return f"v_mfma_f32_32x32x16_bf16 {vr(s,16)}, {vr(KF[t%2],4)}, {vr(QM+4*x,4)}, {c}"
    def QKT(t, x, s): return f"v_mfma_f32_32x32x4_2b_bf16 {vr(s,32)}, {vr(KT[(t//4)%2]+(t&2),2)}, {vr(QT+2*x+2*(t&1),2)}, {vr(s,32) if not T2F else 0}"
    def PV(half, t, x, s): return f"v_smfmac_f32_32x32x32_bf16 {vr(O[x],16)}, {vr((V0,V1)[half][t%2],4)}, {vr(s+8*half,8)}, v{vIdx}"
    a(ldK(0, 0))
    a(f"ds_read2_b32 {vr(TP,2)}, v{vSqh} offset0:0 offset1:2")
    a(ldT()); a(ldV(0, 0, 0)); a(ldV(0, 1, 0))
    a(f"ds_read_b128 {vr(TP+4,4)}, v{vSq} offset:512")
    HOOKS = [1, 3, 7, 11, 13, 15]
    assert NB % 2 == 0
    for m in zq + zs: a(m)
    a(f"""s_mov_b32 s{sIt}, 0
    s_mov_b32 s{sWk}, {NB*BLK}
    s_mov_b32 s{sWcnt}, {(NB*BLK - RING) & 0xffffffff}
    s_waitcnt lgkmcnt(4)""")
    if not T2F:
        a(QKM(0, 0, S[0]))
        a(f"""v_mov_b32 v{QT}, v{TP}
    v_mov_b32 v{QT+3}, v{TP}
    v_mov_b32 v{QT+4}, v{TP+1}
    v_mov_b32 v{QT+7}, v{TP+1}""")
        a(QKM(0, 1, S[1]))
        for m in zo[22:27]: a(m)
        a(QKM(0, 2, S[2]))
        for m in zo[27:32]: a(m)
        a("s_waitcnt lgkmcnt(3)")
        a(QKT(0, 0, S[0]))
        for m in zo[32:]: a(m)
        a("s_nop 6")
        a("s_waitcnt lgkmcnt(0)")
    else:
        a(f"""v_mov_b32 v{QT}, v{TP}
        v_mov_b32 v{QT+3}, v{TP}
        v_mov_b32 v{QT+4}, v{TP+1}
        v_mov_b32 v{QT+7}, v{TP+1}
        s_waitcnt lgkmcnt(3)""")
        a(QKT(0, 0, S[0]))
        for m in zo[22:40]: a(m)
        a(QKM(0, 0, S[0], vr(S[0], 16)))
        for m in zo[40:]: a(m)
        a(QKM(0, 1, S[1], vr(S[1], 16)))
        a("s_nop 5")
        a("s_waitcnt lgkmcnt(0)")
    if OPT.get("cprio"): a(f"s_setprio {OPT['cprio']}")
    hookblks = []
    a(".p2align 6")
    a(f"{K}_att:")
    pos = tuple(int(z) for z in OPT.get("pos", "2.5.10.14.22.26.30" if not T2F else "2.5.13.18.21.26.30").split("."))
    NIT = 16 // NB
    SB = lambda u: S[u % 4]
    for u in range(0, 16 * NB, 2):
        t, x = divmod(u, 4)
        blk, ub = divmod(u, 16)
        ins = {i: [] for i in range(33)}
        ins[pos[0]].append(PV(1, *divmod(u - 1, 4), SB(u - 1)))
        if not T2F:
            ins[pos[1]].append(QKM(*divmod(u + 3, 4), SB(u + 3)))
            ins[pos[2]].append(PV(0, t, x, SB(u)))
            ins[pos[3]].append(QKT(*divmod(u + 2, 4), SB(u + 2)))
            ins[pos[4]].append(PV(1, t, x, SB(u)))
            ins[pos[5]].append(PV(0, t, x + 1, SB(u + 1)))
            ins[pos[6]].append(QKM(*divmod(u + 4, 4), SB(u + 4)))
        else:
            ins[pos[1]].append(QKT(*divmod(u + 2, 4), SB(u + 2)))
            ins[pos[2]].append(PV(0, t, x, SB(u)))
            ins[pos[3]].append(PV(1, t, x, SB(u)))
            ins[pos[4]].append(QKM(*divmod(u + 2, 4), SB(u + 2), vr(SB(u + 2), 16)))
            ins[pos[5]].append(PV(0, t, x + 1, SB(u + 1)))
            ins[pos[6]].append(QKM(*divmod(u + 3, 4), SB(u + 3), vr(SB(u + 3), 16)))
        if x == 0:
            ins[pos[0]].append(ldV(t + 1, 1, (t + 1) % 2))
            ins[pos[1]].append(ldK(t + 1, (t + 1) % 2))
            ins[pos[2]].append(ldV(t + 1, 0, (t + 1) % 2))
            if ub == 12: ins[pos[3]].append(ldT(blk + 1))
            ins[pos[5]].append("s_waitcnt lgkmcnt(0)")
        if ub == 10:
            if blk == NB - 1:
                ins[pos[0]].append(f"s_cmp_eq_u32 s{sIt}, {NIT//2 - 1}")
                ins[pos[1]].append(f"s_cselect_b32 s{sT0}, s{sWcnt}, s{sWk}")
                ins[pos[2]].append(f"v_add_u32 v{vKa}, s{sT0}, v{vKa}")
                ins[pos[3]].append(f"v_add_u32 v{vTa}, s{sT0}, v{vTa}")
                ins[pos[4]].append(f"v_add_u32 v{vVa}, s{sT0}, v{vVa}")
            its = [it for it in range(NIT) if it * NB + blk in HOOKS]
            if len(its) == NIT and (not OPT["stamp"] or OPT.get("light")):
                ins[pos[6]].append("s_barrier")
            elif its:
                ins[pos[6]] += [f"s_bitcmp1_b32 {sum(1 << i for i in its)}, s{sIt}", f"s_cbranch_scc1 {K}_hook{blk}", f"{K}_hook_ret{blk}:"]
                hookblks.append(blk)
        if u == 16 * NB - 2:
            ins[pos[5]].append(f"s_add_u32 s{sIt}, s{sIt}, 1")
            ins[pos[6]].append(f"s_cmp_lt_u32 s{sIt}, {NIT}")
        for i in range(32):
            for m in ins[i]: a(m)
            a(f"v_exp_f32 v{SB(u)+i}, v{SB(u)+i}")
    if OPT.get("light"):
        a(f"""s_memtime s[82:83]
        s_memrealtime s[80:81]
        s_add_u32 m0, s{sIt}, 15
        s_waitcnt lgkmcnt(0)
        v_writelane_b32 v30, s80, m0
        v_writelane_b32 v31, s82, m0
        s_cmp_lt_u32 s{sIt}, {NIT}""")
    a(f"s_cbranch_scc1 {K}_att")
    a("s_nop 1")
    a(PV(1, 3, 3, S[3]))
    stamp(a, 8, 30)
    CC = [5, 6, 7, 8]
    R8 = [64, 68, 72, 76, 104, 108, 112, 116, 120]
    RL = list(range(32, 64, 4)) + list(range(80, 104, 4)) + [124] + list(range(128, 176, 4))
    creg = lambda s, ct: R8[s] if ct == 8 else RL[3 * s + ct - 5]
    a('s_nop 8')
    l_ = [O[x] + 10 for x in range(4)]
    tq = [2, 3, 4, 5]
    a(f"""v_add_f32 v2, v{l_[0]}, v{l_[1]}
    v_min3_f32 v3, v{l_[0]}, v{l_[1]}, v{l_[2]}
    v_add_f32 v2, v2, v{l_[2]}
    s_waitcnt lgkmcnt(0)
    v_add_f32 v2, v2, v{l_[3]}
    v_min_f32 v3, v3, v{l_[3]}
    v_cmp_ge_f32 s[{sEx}:{sEx+1}], s64, v2
    v_cmp_le_f32 vcc, s61, v3
    s_nop 1
    s_and_b32 vcc_lo, vcc_lo, s{sEx}
    s_cmp_eq_u32 vcc_lo, -1
    s_cbranch_scc0 {K}_fbchk
    {K}_fbdone:""")
    cp = [f"ds_read_b128 {vr(creg(s_,ct),4)}, v{vCp} offset:{1024*(3*s_+i)}" for s_ in range(9) for i, ct in enumerate(CL)]
    for x in range(4): a(f"v_mov_b32 v{tq[x]}, v{O[x]+10}")
    a(cp.pop(0))
    for x in range(4): a(f"v_permlane32_swap_b32 v{O[x]+10}, v{tq[x]}")
    a(cp.pop(0))
    for x in range(4): a(f"v_mul_f32 v{tq[x]}, v{O[x]+10}, v{vGl+x}")
    for x in range(4): a(f"v_rcp_f32 v{tq[x]}, v{tq[x]}")
    a(cp.pop(0))
    for x in range(4):
        o = O[x]
        sel = "op_sel_hi:[1,0]" if x % 2 == 0 else "op_sel:[0,1]"
        for i in range(0, 10, 2): a(f"v_pk_mul_f32 {vr(o+i,2)}, {vr(o+i,2)}, {vr(tq[x & 2],2)} {sel}")
        for i in range(4): a(f"v_cvt_pk_bf16_f32 v{o+12+i}, v{o+2*i}, v{o+2*i+1}")
        a(f"""v_cvt_pk_bf16_f32 v{o+11}, v{o+8}, v{o+9}
        buffer_store_dwordx4 {vr(o+12,4)}, v{vSt}, s[{sWS}:{sWS+3}], s{56+x} offen sc1""")
        if x % 2 == 1:
            a(cp.pop(0))
            a(f"""v_permlane32_swap_b32 v{O[x-1]+11}, v{o+11}
            buffer_store_dword v{O[x-1]+11}, v{vStt}, s[{sWS}:{sWS+3}], s{4+(x>>1)} offen offset:1024 sc1""")
    for m in cp: a(m)
    stamp(a, 9, 30)
    a(f"""v_mov_b32 v6, {L_SYNC + 20}
    v_mov_b32 v7, 1
    s_setprio {OPT.get("p3prio", 2)}
    s_mov_b64 exec, 1
    s_waitcnt lgkmcnt(0)
    ds_add_u32 v6, v7
    s_mov_b64 exec, -1""")
    vOm, vOt, vRd = [2, 8], 3, 4
    p3_addr_o(a, vOm, vOt, vRd, [9, 10], 5, 11, 12, 13)
    for i in range(32): a(f"v_mov_b32 v{224+i}, 0")
    stamp(a, 10, 30)
    if OPT.get("drain"):
        a("s_waitcnt vmcnt(0)")
        stamp(a, 12, 30)
    p3_comp(a, CC, creg, 224, 176, vOm, vOt, vRd, 5, [9, 10])
    stamp(a, 11, 30)
    a(f"{K}_final:")
    final_reduce(a, K, 30)
    a(f"{K}_end:")
    a("s_endpgm")
    a(f"""{K}_rst:
    s_lshl_b32 s{sT0}, s{sPr}, 2
    v_mov_b32 v28, s{sT0}
    v_mov_b32 v29, 1
    s_mov_b64 exec, 1
    s_waitcnt vmcnt(0)
    buffer_atomic_add v29, v28, s[{sD}:{sD+3}], 0 offen
    s_mov_b64 exec, -1
    s_branch {K}_rst_ret""")
    for blk in hookblks:
        a(f"{K}_hook{blk}:")
        if 1 % NB == blk:
            a(f"""s_cmp_eq_u32 s{sIt}, {1 // NB}
            s_cbranch_scc0 {K}_hkg
            v_lshlrev_b32 v{vGl}, 16, v{TP+4}
            v_lshlrev_b32 v{vGl+1}, 16, v{TP+5}
            v_lshlrev_b32 v{vGl+2}, 16, v{TP+6}
            v_lshlrev_b32 v{vGl+3}, 16, v{TP+7}""")
            for x in range(4): a(f"v_mul_f32 v{vGl+x}, s60, v{vGl+x}")
            for x in range(4): a(f"v_exp_f32 v{vGl+x}, v{vGl+x}")
            a("s_nop 0")
            for x in range(4): a(f"v_add_f32 v{vGl+x}, 1.0, v{vGl+x}")
            for x in range(4):
                for i in range(11, 16): a(f"v_mov_b32 v{O[x]+i}, 0")
            a(f"{K}_hkg:")
        if OPT["stamp"]:
            for hb, i_ in ((1, 4), (3, 6)):
                if hb % NB == blk:
                    a(f"s_cmp_eq_u32 s{sIt}, {hb // NB}\ns_cbranch_scc0 {K}_hk{hb}")
                    stamp(a, i_, 30); a("s_barrier"); stamp(a, i_ + 1, 30); a(f"s_branch {K}_hook_ret{blk}")
                    a(f"{K}_hk{hb}:")
        if 13 % NB == blk:
            a(f"""s_cmp_eq_u32 s{sIt}, {13 // NB}
            s_cbranch_scc0 {K}_hkb{blk}""")
            if not OPT.get('x_no8'): p3_wo_loads(a, [8], creg, vWm3, vWt)
            a(f"{K}_hkb{blk}:")
        a(f"""s_barrier
        s_branch {K}_hook_ret{blk}""")
    FQ = S[3]
    a(f"{K}_fbchk:")
    for x in range(4):
        a(f"""v_cmp_le_f32 vcc, s61, v{O[x]+10}
        v_cmp_ge_f32 s[{sEx}:{sEx+1}], s64, v{O[x]+10}
        s_nop 1
        s_and_b32 vcc_lo, vcc_lo, s{sEx}
        s_cmp_eq_u32 vcc_lo, -1
        s_cbranch_scc0 {K}_fb{x}
        {K}_fbret{x}:""")
    a(f"s_branch {K}_fbdone")
    for x in range(4):
        a(f"{K}_fb{x}:")
        for i in range(4): a(f"v_mov_b32 v{FQ+i}, v{QM+4*x+i}")
        for i in range(4): a(f"v_mov_b32 v{FQ+4+i}, 0")
        a(f"""s_mov_b32 {'exec_hi' if x % 2 == 0 else 'exec_lo'}, 0
        v_mov_b32 v{FQ+4}, v{QT+4*(x>>1)}
        v_mov_b32 v{FQ+7}, v{QT+4*(x>>1)}
        s_mov_b64 exec, -1""")
        a(f"s_call_b64 s[{sRet}:{sRet+1}], {K}_slow")
        for i in range(16): a(f"v_mov_b32 v{O[x]+i}, v{S[2]+i}")
        a(f"s_branch {K}_fbret{x}")
    a(f"{K}_slow:")
    vb, vc, vm = 11, 12, 13
    sA, sB = sWsrc, sWm0
    t0 = 9
    a(f"""v_lshlrev_b32 v{t0}, 4, v0
    v_and_b32 v{vm}, 31, v0
    v_lshlrev_b32 v{vb}, 4, v{vm}
    v_lshrrev_b32 v{vc}, 5, v0
    v_mul_u32_u24 v{vc}, 304, v{vc}
    v_lshl_add_u32 v{vc}, v{vm}, 4, v{vc}
    v_cmp_lt_u32 vcc, 18, v{vm}
    v_mov_b32 v{vm}, 0x40000000
    s_nop 1
    v_cndmask_b32 v{vc}, v{vc}, v{vm}, vcc""")
    def slow_qk(t, c):
        a(f"""v_mfma_f32_32x32x16_bf16 {vr(S[0],16)}, {vr(KF[0],4)}, {vr(FQ,4)}, {c}
        v_mfma_f32_32x32x8_bf16 {vr(S[0],16)}, {vr(KT[0]+(t&2),2)}, {vr(FQ+4+2*(t&1),2)}, {vr(S[0],16)}
        s_nop 15""")
    def slow_next(lbl):
        a(f"""s_add_u32 s{sA}, s{sA}, {BLK}
        s_sub_u32 s{sIt}, s{sIt}, 1
        s_cmp_lg_u32 s{sIt}, 0
        s_cbranch_scc1 {lbl}""")
    a(f"""v_mov_b32 v{vm}, 0xff800000
    s_mov_b32 s{sA}, s{sKVg}
    s_mov_b32 s{sIt}, 16
    {K}_sl1:
    s_add_u32 s{sB}, s{sA}, 4096
    buffer_load_dwordx4 {vr(KT[0],4)}, v{vb}, s[{sWS}:{sWS+3}], s{sB} offen sc1""")
    for t in range(4):
        a(f"""buffer_load_dwordx4 {vr(KF[0],4)}, v{t0}, s[{sWS}:{sWS+3}], s{sA} offen offset:{1024*t} sc1
        s_waitcnt vmcnt(0)""")
        slow_qk(t, "0")
        for i in range(8): a(f"v_max3_f32 v{vm}, v{S[0]+2*i}, v{S[0]+2*i+1}, v{vm}")
    slow_next(f"{K}_sl1")
    a(f"""v_mov_b32 v{S[0]}, v{vm}
    s_nop 1
    v_permlane32_swap_b32 v{vm}, v{S[0]}
    s_nop 1
    v_max_f32 v{vm}, v{vm}, v{S[0]}""")
    for i in range(16):
        a(f"v_sub_f32 v{S[1]+i}, 0, v{vm}")
        a(f"v_mov_b32 v{S[2]+i}, 0")
    a(f"""s_mov_b32 s{sA}, s{sKVg}
    s_mov_b32 s{sIt}, 16
    {K}_sl2:
    s_add_u32 s{sB}, s{sA}, 4096
    buffer_load_dwordx4 {vr(KT[0],4)}, v{vb}, s[{sWS}:{sWS+3}], s{sB} offen sc1""")
    for t in range(4):
        a(f"""buffer_load_dwordx4 {vr(KF[0],4)}, v{t0}, s[{sWS}:{sWS+3}], s{sA} offen offset:{1024*t} sc1
        s_add_u32 s{sB}, s{sA}, {4608+1216*t}
        buffer_load_dwordx4 {vr(V0[0],4)}, v{vc}, s[{sWS}:{sWS+3}], s{sB} offen sc1
        buffer_load_dwordx4 {vr(V1[0],4)}, v{vc}, s[{sWS}:{sWS+3}], s{sB} offen offset:608 sc1
        s_waitcnt vmcnt(0)""")
        slow_qk(t, vr(S[1], 16))
        for i in range(16): a(f"v_exp_f32 v{S[0]+i}, v{S[0]+i}")
        a(f"""s_nop 3
        v_smfmac_f32_32x32x32_bf16 {vr(S[2],16)}, {vr(V0[0],4)}, {vr(S[0],8)}, v{vIdx}
        v_smfmac_f32_32x32x32_bf16 {vr(S[2],16)}, {vr(V1[0],4)}, {vr(S[0]+8,8)}, v{vIdx}
        s_nop 7""")
    slow_next(f"{K}_sl2")
    a(f"""s_nop 15
    s_setpc_b64 s[{sRet}:{sRet+1}]""")

def main(out):
    ka = f"{NAME}_kernel"
    a = Asm(); kernel(a)
    t = f"""; gated mix of two MHA blocks: one fused kernel (QKV projection, attention, output projection); generated by gen/gen36.py
; @launch grid=(256,1,1) block=(512,1,1) lds={LDS_BYTES}
.amdgcn_target "amdgcn-amd-amdhsa--gfx950"
.text
.globl {ka}
.p2align 8
.type {ka},@function
{ka}:
{a.text()}.section .rodata,"a"
.p2align 6
.amdhsa_kernel {ka}
  .amdhsa_next_free_vgpr 256
  .amdhsa_next_free_sgpr 102
  .amdhsa_accum_offset 256
  .amdhsa_group_segment_fixed_size 0
  .amdhsa_kernarg_size 80
  .amdhsa_user_sgpr_count 2
  .amdhsa_user_sgpr_kernarg_segment_ptr 1
  .amdhsa_system_sgpr_workgroup_id_x 1
.end_amdhsa_kernel
"""
    open(out, "w").write(t)

if __name__ == "__main__":
    for kv in sys.argv[2:]:
        k, v = kv.split("=")
        OPT[k] = {"True": True, "False": False}.get(v, v)
    main(sys.argv[1])
```

```python
import sys, struct

NAME = "gated_mix__mha_block__mha_block__prompt"
def f32(x): return "0x%08x" % struct.unpack("<I", struct.pack("<f", x))[0]
CSCALE = (18 ** -0.5) * 1.4426950408889634
LOG2E = 1.4426950408889634

BLK = 9472
KVH = 16 * BLK
RING = 8 * BLK
WS_O = 0x0A00000
WS_WOM = 0x0F00000
WS_WOT = 0x1080000
WS_F = 0x10C0000
WS_STAMP = 0x1100000
WS_SIZE = 0x1200000
SENT = 0xffffffff
L_WR = 0
WSL = 16384
RW = 3
L_XR = 98304
L_SCR = 49152
L_GT = 155648
L_SYNC = L_GT + 3 * 2048 + 1536
L_WO = 151552
LDS_BYTES = 163840
RS = 592
STRAD = sum(1 << p for p in range(32) if (72 * (p & 15)) % 128 > 56)
L_OA = 6 * BLK
L_OB = 94720
PLANE = 32 * RS

class Asm:
    def __init__(self): self.l = []
    def __call__(self, s):
        for x in s.strip("\n").split("\n"):
            x = x.strip()
            if not x: continue
            self.l.append(x if x.endswith(":") or x.startswith(";") else "    " + x)
    def text(self): return "\n".join(self.l) + "\n"

def vr(a, n): return f"v[{a}:{a+n-1}]"
OPT = dict(force_fb=False, stamp=False, rx="7", txor="1", nb="4", cprio="3", pf9="0", rf="1.2.2.2.1", tx4="5")

def srd(a, d, lo, hi, size):
    a(f"""s_mov_b32 s{d}, s{lo}
    s_and_b32 s{d+1}, s{hi}, 0xffff
    s_mov_b32 s{d+2}, {size}
    s_mov_b32 s{d+3}, 0x00020000""")

sX, sW, sWo, sG, sD, sWS, sOut = 8, 12, 16, 20, 24, 28, 84
sWv, sPr, sE, sHd, sRot = 32, 33, 34, 35, 36
sT0, sT1, sT2, sT3 = 37, 38, 39, 40
sRef, sCnt, sKo, sXb, sRing, sIt, sKVg, sSpin, sW8 = 41, 42, 43, 44, 45, 46, 47, 48, 49
sRet, sEx = 50, 52
sWsrc, sWm0, sWk, sWcnt, sXm0, sGk, sTt, sBH = 54, 55, 62, 63, 76, 77, 78, 79
sP3T, sP3C, sOb, sWmb, sWtb, sHH, sTH, sOtb = 88, 89, 90, 91, 92, 93, 94, 95
SV = 254
sLA, sLB = 74, 75
sGO = [66, 67, 68, 69]
sGW = [70, 71, 72, 73]

def stamp(a, idx, vreg):
    if not OPT["stamp"]: return
    a(f"""s_memrealtime s[80:81]
    s_memtime s[82:83]
    s_waitcnt lgkmcnt(0)
    v_writelane_b32 v{vreg}, s80, {idx}
    v_writelane_b32 v{vreg+1}, s82, {idx}""")
def sstamp(a, k):
    if not OPT["stamp"]: return
    a(f"""s_memrealtime s[80:81]
    s_waitcnt lgkmcnt(0)
    s_mov_b32 s{96+k}, s80""")
def stamp_out(a, vreg, vt=1, mask=None):
    if not OPT["stamp"]: return
    a(f"""s_lshl_b32 s80, s2, 3
    s_add_u32 s80, s80, s{sW8}
    s_lshl_b32 s80, s80, 8
    s_add_u32 s80, s80, {WS_STAMP}
    v_lshlrev_b32 v{vt}, 3, v0
    s_mov_b32 exec_hi, 0""")
    if mask is not None: a(f"s_mov_b32 exec_lo, {mask}")
    a(f"""buffer_store_dwordx2 v[{vreg}:{vreg+1}], v{vt}, s[{sWS}:{sWS+3}], s80 offen
    s_mov_b64 exec, -1""")

def p3_addr_w(a, vWm, vWt, t0, t1, t2):
    a(f"""v_and_b32 v{t0}, 15, v0
    v_lshrrev_b32 v{t1}, 5, v0
    v_bfe_u32 v{t2}, v0, 4, 1
    v_mul_u32_u24 v{vWm}, 4608, v{t1}
    v_lshl_add_u32 v{vWm}, v{t2}, 8, v{vWm}
    v_lshl_add_u32 v{vWm}, v{t0}, 4, v{vWm}
    v_lshrrev_b32 v{t1}, 4, v0
    v_add_u32 v{t2}, s{sP3C}, v{t1}
    v_and_b32 v{t2}, 3, v{t2}
    v_mul_u32_u24 v{vWt}, {4*2304}, v{t2}
    v_lshl_add_u32 v{vWt}, v{t0}, 4, v{vWt}""")
def p3_addr_o(a, vOm, vOt, vRd, vVa, vSy, t0, t1, t2):
    a(f"""v_and_b32 v{t0}, 15, v0
    v_lshrrev_b32 v{t1}, 5, v0
    v_bfe_u32 v{t2}, v0, 4, 1
    v_mul_u32_u24 v{vOm[0]}, 1152, v{t1}
    v_lshl_add_u32 v{vOm[0]}, v{t2}, 9, v{vOm[0]}
    v_lshl_add_u32 v{vOm[0]}, v{t0}, 4, v{vOm[0]}
    v_add_u32 v{vOm[1]}, s{sLB}, v{vOm[0]}
    v_add_u32 v{vOm[0]}, s{sLA}, v{vOm[0]}
    s_sub_u32 s{sT3}, s{sLB}, s{sLA}
    v_mul_lo_u32 v{vOt}, s{sT3}, v{t1}
    v_add_u32 v{vOt}, s{sLA}, v{vOt}
    v_mul_u32_u24 v{t2}, 4608, v{t2}
    v_add_u32 v{vOt}, v{vOt}, v{t2}
    v_lshl_add_u32 v{vOt}, v{t0}, 2, v{vOt}
    v_lshrrev_b32 v{t1}, 4, v0
    v_mul_u32_u24 v{vRd}, {RS}, v{t0}
    v_lshl_add_u32 v{vRd}, v{t1}, 4, v{vRd}
    s_cmp_eq_u32 s{sWv}, 3
    s_cselect_b32 s{sT3}, 4, s{sWv}
    s_mul_i32 s{sT3}, s{sT3}, {PLANE}
    v_add_u32 v{vRd}, s{sT3}, v{vRd}
    v_mul_u32_u24 v{vVa[0]}, 1152, v{t1}
    v_lshl_add_u32 v{vVa[0]}, v{t0}, 3, v{vVa[0]}
    v_add_u32 v{vVa[0]}, 1024, v{vVa[0]}
    v_add_u32 v{vVa[1]}, s{sLB}, v{vVa[0]}
    v_add_u32 v{vVa[0]}, s{sLA}, v{vVa[0]}
    s_lshl_b32 s{sT3}, s{sWv}, 2
    s_add_u32 s{sT3}, s{sT3}, {L_SYNC + 32}
    v_mov_b32 v{vSy}, s{sT3}""")
def p3_scal(a):
    a(f"""s_and_b32 s{sP3T}, s2, 7
    s_lshr_b32 s{sT0}, s2, 5
    s_lshl_b32 s{sT0}, s{sT0}, 3
    s_add_u32 s{sP3T}, s{sP3T}, s{sT0}
    s_lshr_b32 s{sP3C}, s2, 3
    s_and_b32 s{sP3C}, s{sP3C}, 3
    s_lshl_b32 s{sOb}, s{sP3T}, 6
    s_lshl_b32 s{sT3}, s{sWv}, 2
    s_add_u32 s{sOb}, s{sOb}, s{sT3}
    s_mul_i32 s{sOb}, s{sOb}, 1152
    s_add_u32 s{sOb}, s{sOb}, {WS_O}
    s_lshl_b32 s{sWmb}, s{sP3C}, 6
    s_add_u32 s{sWmb}, s{sWmb}, s{sT3}
    s_mul_i32 s{sWmb}, s{sWmb}, 4608
    s_add_u32 s{sWmb}, s{sWmb}, {WS_WOM}
    s_lshl_b32 s{sWtb}, s{sP3C}, 4
    s_add_u32 s{sWtb}, s{sWtb}, s{sWv}
    s_mul_i32 s{sWtb}, s{sWtb}, 2304
    s_add_u32 s{sWtb}, s{sWtb}, {WS_WOT}
    s_mul_i32 s{sLA}, s{sHH}, {RING}
    s_mul_i32 s{sT3}, s{sTH}, 9216
    s_add_u32 s{sLA}, s{sLA}, s{sT3}
    s_add_u32 s{sLA}, s{sLA}, {L_OA}
    s_mul_i32 s{sLB}, s{sWv}, 9216
    s_add_u32 s{sLB}, s{sLB}, {L_OB}""")
    for g in range(4):
        a(f"""s_add_u32 s{sT3}, s{sP3C}, {g}
        s_and_b32 s{sT3}, s{sT3}, 3
        s_mul_i32 s{sGO[g]}, s{sT3}, {16*1152}
        s_add_u32 s{sGO[g]}, s{sGO[g]}, s{sOb}
        s_mul_i32 s{sGW[g]}, s{sT3}, {16*4608}
        s_add_u32 s{sGW[g]}, s{sGW[g]}, s{sWmb}""")
def p3_wo_loads(a, cts, reg, vWm, vWt, steps=range(9)):
    for s in range(8):
        if s not in steps: continue
        a(f"s_add_u32 s{sT3}, s{sGW[s>>1]}, {2*(s&1)*4608 + 512*cts[0]}")
        for i, ct in enumerate(cts):
            a(f"buffer_load_dwordx4 {vr(reg(s,ct),4)}, v{vWm}, s[{sWS}:{sWS+3}], s{sT3} offen offset:{512*i} sc1")
    for ct in (cts if 8 in steps else []):
        a(f"buffer_load_dwordx4 {vr(reg(8,ct),4)}, v{vWt}, s[{sWS}:{sWS+3}], s{sWtb} offen offset:{256*ct} sc1")
def p3_oread(a, g, OF, vOm):
    for k in range(2):
        for th in range(2):
            a(f"ds_read_b128 {vr(OF+8*k+4*th,4)}, v{vOm[g>>1]} offset:{4608*(g&1) + 2304*k + 256*th}")
def p3_mf(a, cts, reg, AC, st, o):
    for i, ct in enumerate(cts):
        for th in range(2):
            d = AC + 8 * i + 4 * th
            a(f"v_mfma_f32_16x16x32_bf16 {vr(d,4)}, {vr(reg(st,ct),4)}, {vr(o+4*th,4)}, {vr(d,4)}")
def p3_tail(a, cts, reg, AC, OF, vOt, vRd):
    for th in range(2):
        for i in range(4):
            a(f"ds_read_b32 v{OF+4*th+i}, v{vOt} offset:{1152*i + 1024 + 64*th}")
    final_addr(a)
    a("s_waitcnt lgkmcnt(0)")
    p3_mf(a, cts, reg, AC, 8, OF)
    sstamp(a, 5)
    a("s_nop 7")
    for i, ct in enumerate(cts):
        for th in range(2):
            a(f"ds_write_b128 v{vRd}, {vr(AC+8*i+4*th,4)} offset:{16*th*RS + 64*ct}")
def p3_hint_addr(a, OF):
    vHa, vE4 = OF + 21, OF + 22
    a(f"""v_and_b32 v1, 3, v0
    v_mul_u32_u24 v{vHa}, 1152, v1
    v_bfe_u32 v1, v0, 2, 2
    v_add_u32 v1, s{sP3C}, v1
    v_and_b32 v1, 3, v1
    v_mul_u32_u24 v1, {16*1152}, v1
    v_add_u32 v{vHa}, v{vHa}, v1
    v_mov_b32 v{vE4}, {L_SYNC + 20}""")
def p3_helper(a, cts, reg, AC, OF, vOm, vOt, vRd, vL16, vVa, vSy, slp):
    L = "h3"
    sDone = sCnt
    def dma(g):
        lb = (sLA, sLB)[g >> 1]
        a(f"""s_add_u32 m0, s{lb}, {4608*(g&1)}
        s_add_u32 s{sT3}, s{sGO[g]}, 4096""")
        for i in range(4):
            a(f"buffer_load_dwordx4 v{vL16}, s[{sWS}:{sWS+3}], s{sGO[g]} offen offset:{1024*i} sc1 lds")
        a(f"""s_add_u32 m0, s{lb}, {4608*(g&1) + 4096}
        s_mov_b32 exec_hi, 0
        buffer_load_dwordx4 v{vL16}, s[{sWS}:{sWS+3}], s{sT3} offen sc1 lds
        s_mov_b64 exec, -1""")
    sFly, sLand, sTry, sBlk_ = sWk, sWcnt, sKo, sXb
    vH, vHa, vE4 = OF + 18, OF + 21, OF + 22
    a(f"""s_mov_b32 s{sSpin}, 60000
    s_mov_b32 s{sIt}, {SENT}
    s_mov_b32 s{sDone}, 0
    s_mov_b32 s{sFly}, 0
    s_mov_b32 s{sLand}, 0
    s_mov_b32 s{sBlk_}, 12
    {L}_round:
    s_mov_b64 exec, 0xffff
    buffer_load_dword v{vH}, v{vHa}, s[{sWS}:{sWS+3}], s{sOb} offen offset:1024 sc1
    s_mov_b64 exec, -1
    ds_read_b32 v1, v{vE4}
    s_cmp_eq_u32 s{sFly}, 0
    s_cbranch_scc1 {L}_nofly
    s_or_b32 s{sLand}, s{sLand}, s{sFly}
    s_waitcnt vmcnt(1)
    v_mov_b32 v{vH+1}, s{sLand}
    ds_write_b32 v{vSy}, v{vH+1}
    {L}_nofly:
    s_mov_b32 s{sTry}, s{sFly}
    s_waitcnt lgkmcnt(0)
    v_readfirstlane_b32 s{sT0}, v1
    s_cmp_ge_u32 s{sT0}, 4
    s_cselect_b32 s{sBlk_}, 0, s{sBlk_}
    s_or_b32 s{sT1}, s{sDone}, s{sTry}
    s_cmp_eq_u32 s{sT1}, 15
    s_mov_b32 s{sFly}, 0
    s_cbranch_scc1 {L}_work""")
    if int(OPT.get("spec", 0)):
        a(f"""s_bcnt1_i32_b32 s{sT0}, s{sT1}
        s_mov_b32 vcc_lo, -1
        s_cmp_ge_u32 s{sT0}, {4 - int(OPT["spec"])}
        s_cselect_b32 s{sT0}, s{sBlk_}, 1
        s_cmp_eq_u32 s{sT0}, 0
        s_cbranch_scc1 {L}_spec""")
    a(f"""s_or_b32 s{sT1}, s{sT1}, s{sBlk_}
    s_waitcnt vmcnt(0)
    v_cmp_ne_u32 vcc, s{sIt}, v{vH}
    {L}_spec:""")
    for g in range(4):
        a(f"""s_bitcmp1_b32 s{sT1}, {g}
        s_cbranch_scc1 {L}_l{g}
        s_bfe_u32 s{sT0}, vcc_lo, {(4 << 16) | (4 * g)}
        s_cmp_eq_u32 s{sT0}, 15
        s_cbranch_scc0 {L}_l{g}
        s_bitset1_b32 s{sFly}, {g}""")
        dma(g)
        a(f"{L}_l{g}:")
    a(f"{L}_work:")
    for g in range(4):
        a(f"""s_bitcmp1_b32 s{sTry}, {g}
        s_cbranch_scc0 {L}_n{g}""")
        p3_check(a, g, OF, vOm, vVa)
        a(f"""s_cbranch_vccnz {L}_n{g}
        s_bitset1_b32 s{sDone}, {g}""")
        stamp(a, 27 + g, SV)
        p3_mf(a, cts, reg, AC, 2 * g, OF)
        p3_mf(a, cts, reg, AC, 2 * g + 1, OF + 8)
        a(f"{L}_n{g}:")
    a(f"""s_cmp_eq_u32 s{sDone}, 15
    s_cbranch_scc1 {L}_done
    s_sub_u32 s{sSpin}, s{sSpin}, 1
    s_cmp_lt_i32 s{sSpin}, 0
    s_cbranch_scc1 {L}_done
    s_or_b32 s{sT0}, s{sFly}, s{sTry}
    s_cbranch_scc1 {L}_round
    s_sleep {slp}
    s_branch {L}_round
    {L}_done:
    s_waitcnt vmcnt(0)""")
    p3_tail(a, cts, reg, AC, OF, vOt, vRd)
def p3_check(a, g, OF, vOm, vVa):
    p3_oread(a, g, OF, vOm)
    a(f"""ds_read_b64 {vr(OF+16,2)}, v{vVa[g>>1]} offset:{4608*(g&1)}
    s_waitcnt lgkmcnt(3)
    v_max3_u32 v1, v{OF}, v{OF+1}, v{OF+2}
    v_max3_u32 v1, v{OF+3}, v{OF+4}, v1
    v_max3_u32 v1, v{OF+5}, v{OF+6}, v1
    s_waitcnt lgkmcnt(0)
    v_max3_u32 v1, v{OF+7}, v{OF+8}, v1
    v_max3_u32 v1, v{OF+9}, v{OF+10}, v1
    v_max3_u32 v1, v{OF+11}, v{OF+12}, v1
    v_max3_u32 v1, v{OF+13}, v{OF+14}, v1
    v_max3_u32 v1, v{OF+15}, v{OF+16}, v1
    v_max_u32 v1, v{OF+17}, v1
    v_cmp_eq_u32 vcc, s{sIt}, v1
    s_nop 1""")
def p3_comp(a, cts, reg, AC, OF, vOm, vOt, vRd, vSy, vVa):
    L = "c3"
    sDone = sCnt
    a(f"""s_mov_b32 s{sSpin}, 400000
    s_mov_b32 s{sIt}, {SENT}
    s_mov_b32 s{sDone}, 0
    s_waitcnt vmcnt(6)
    {L}_round:
    ds_read_b32 v1, v{vSy}
    s_waitcnt lgkmcnt(0)
    v_readfirstlane_b32 s{sT0}, v1
    s_andn2_b32 s{sT0}, s{sT0}, s{sDone}""")
    for g in range(4):
        a(f"""s_bitcmp1_b32 s{sT0}, {g}
        s_cbranch_scc0 {L}_n{g}""")
        p3_check(a, g, OF, vOm, vVa)
        a(f"""s_cbranch_vccnz {L}_n{g}
        s_bitset1_b32 s{sDone}, {g}""")
        p3_mf(a, cts, reg, AC, 2 * g, OF)
        p3_mf(a, cts, reg, AC, 2 * g + 1, OF + 8)
        a(f"{L}_n{g}:")
    a(f"""s_cmp_eq_u32 s{sDone}, 15
    s_cbranch_scc1 {L}_done
    s_sub_u32 s{sSpin}, s{sSpin}, 1
    s_cmp_lt_i32 s{sSpin}, 0
    s_cbranch_scc0 {L}_round
    {L}_done:""")
    p3_tail(a, cts, reg, AC, OF, vOt, vRd)

def srd_tail(a, d, size):
    a(f"""s_mov_b32 s{d+2}, {size}
    s_mov_b32 s{d+3}, 0x00020000""")
def kernel(a):
    K = "k"
    if OPT["stamp"]: a("s_memrealtime s[96:97]")
    a(f"""
    s_cmp_ge_u32 s2, 256
    s_cbranch_scc1 {K}_end
    s_load_dwordx2 s[{sX}:{sX+1}], s[0:1], 0
    s_bfe_u32 s{sT0}, s2, {(1 << 16) | 2}
    s_mul_i32 s{sT0}, s{sT0}, 24
    s_add_u32 s{sT1}, s{sT0}, 8
    s_add_u32 s{sT0}, s{sT0}, 16
    s_load_dwordx2 s[{sW}:{sW+1}], s[0:1], s{sT1}
    s_load_dwordx2 s[{sG}:{sG+1}], s[0:1], 48
    s_load_dwordx2 s[{sWS}:{sWS+1}], s[0:1], 72
    s_load_dwordx2 s[{sD}:{sD+1}], s[0:1], 64
    s_load_dwordx2 s[{sOut}:{sOut+1}], s[0:1], 56
    s_load_dwordx2 s[{sWo}:{sWo+1}], s[0:1], s{sT0}
    v_lshrrev_b32 v1, 6, v0
    v_and_b32 v0, 63, v0
    s_bfe_u32 s{sT1}, s2, {(2 << 16) | 3}
    v_readfirstlane_b32 s{sW8}, v1
    s_lshr_b32 s{sT2}, s2, 5
    s_and_b32 s{sE}, s2, 1
    s_lshl_b32 s{sE}, s{sE}, 2
    s_add_u32 s{sE}, s{sE}, s{sT1}
    s_and_b32 s{sPr}, s2, 6
    s_lshl_b32 s{sPr}, s{sPr}, 2
    s_add_u32 s{sPr}, s{sPr}, s{sT2}
    s_and_b32 s{sWv}, s{sW8}, 3
    s_lshr_b32 s{sHH}, s{sWv}, 1
    s_and_b32 s{sTH}, s{sWv}, 1
    s_bfe_u32 s{sTt}, s2, {(1 << 16) | 5}
    s_lshl_b32 s{sTt}, s{sTt}, 1
    s_bfe_u32 s{sT2}, s2, {(1 << 16) | 6}
    s_or_b32 s{sTt}, s{sTt}, s{sT2}
    s_cmp_ge_u32 s{sW8}, 4
    s_cbranch_scc0 {K}_compute""")
    helper(a, K)
    a(f"{K}_compute:")
    compute(a, K)
def common_late(a):
    srd_tail(a, sWS, WS_SIZE)
    srd_tail(a, sOut, 2048 * 1152)
    srd_tail(a, sD, 256)
    srd_tail(a, sWo, 576 * 1152)
    a(f"""s_lshl_b32 s{sBH}, s{sPr}, 1
    s_add_u32 s{sBH}, s{sBH}, s{sHH}
    s_mul_i32 s{sKVg}, s{sBH}, {KVH}""")

FA = 32
def final_addr(a):
    a(f"""s_lshl_b32 s{sT3}, s{sW8}, 6
    v_add_u32 v1, s{sT3}, v0
    s_mul_i32 s{sT0}, s{sP3T}, {32*1152}
    s_mul_i32 s{sT1}, s{sP3C}, 288
    s_add_u32 s{sT0}, s{sT0}, s{sT1}""")
    for r in range(2):
        if r: a("v_add_u32 v1, 512, v1")
        a(f"""v_mul_u32_u24 v{FA+6}, 3641, v1
        v_lshrrev_b32 v{FA+6}, 16, v{FA+6}
        v_mul_u32_u24 v{FA+7}, 18, v{FA+6}
        v_sub_u32 v{FA+7}, v1, v{FA+7}
        v_mul_u32_u24 v{FA+r}, {RS}, v{FA+6}
        v_lshl_add_u32 v{FA+r}, v{FA+7}, 5, v{FA+r}
        v_add_u32 v{FA+4+r}, {4*PLANE}, v{FA+r}
        v_mul_u32_u24 v{FA+2+r}, 1152, v{FA+6}
        v_lshl_add_u32 v{FA+2+r}, v{FA+7}, 4, v{FA+2+r}""")
def final_reduce(a, K, SVr):
    def reads(r):
        b = 48 + 32 * r
        for w in range(4):
            for hf in range(2):
                if w < 3: a(f"ds_read_b128 {vr(b+8*w+4*hf,4)}, v{FA+r} offset:{w*PLANE + 16*hf}")
                else: a(f"ds_read_b128 {vr(b+8*w+4*hf,4)}, v{FA+4+r} offset:{16*hf}")
    def finish(r, extra):
        b = 48 + 32 * r
        a(f"s_waitcnt lgkmcnt({4+extra})")
        for i in range(0, 8, 2): a(f"v_pk_add_f32 {vr(b+i,2)}, {vr(b+i,2)}, {vr(b+8+i,2)}")
        a(f"s_waitcnt lgkmcnt({extra})")
        for i in range(0, 8, 2): a(f"v_pk_add_f32 {vr(b+16+i,2)}, {vr(b+16+i,2)}, {vr(b+24+i,2)}")
        for i in range(0, 8, 2): a(f"v_pk_add_f32 {vr(b+i,2)}, {vr(b+i,2)}, {vr(b+16+i,2)}")
        for i in range(4): a(f"v_cvt_pk_bf16_f32 v{b+8+i}, v{b+2*i}, v{b+2*i+1}")
        a(f"buffer_store_dwordx4 {vr(b+8,4)}, v{FA+2+r}, s[{sOut}:{sOut+3}], s{sT0} offen")
    def fin():
        if OPT["stamp"]:
            a("s_waitcnt vmcnt(0)")
            stamp(a, 15, SVr)
            for k in range(6): a(f"v_writelane_b32 v{SVr}, s{96+k}, {20+k}")
            a(f"s_sub_u32 s80, 60000, s{sSpin}\nv_writelane_b32 v{SVr}, s80, 26")
            stamp_out(a, SVr)
    a(f"""s_cmp_eq_u32 s{sW8}, 0
    s_waitcnt lgkmcnt(0)
    s_barrier""")
    reads(0)
    a(f"s_cbranch_scc1 {K}_fin0")
    finish(0, 0)
    fin()
    a(f"""s_endpgm
    {K}_fin0:""")
    reads(1)
    finish(0, 8)
    finish(1, 0)
    fin()

def poll(a, lbl, ld, cond, slp):
    a(f"""s_mov_b32 s{sSpin}, 40000
    {lbl}:
    {ld}
    s_waitcnt vmcnt(0)""")
    cond()
    a(f"""s_cbranch_scc1 {lbl}_go
    s_sub_u32 s{sSpin}, s{sSpin}, 1
    s_cmp_eq_u32 s{sSpin}, 0
    s_cbranch_scc1 {lbl}_go
    s_sleep {slp}
    s_branch {lbl}
    {lbl}_go:""")

CL = [5, 6, 7]
def wo_lds_base(w): return (w >> 1) * RING + (w & 1) * 27648

def helper(a, K):
    a("; ===== helper waves =====")
    RX = int(OPT["rx"])
    a(f"s_setprio {OPT.get('hprio', 2)}")
    vXs, vWs = [24, 25], [26, 27]
    vL16, vGr, vGw = 7, 8, 9
    t0, t1, t2, t3 = 10, 11, 12, 13
    vGv = 14
    WM = [sum(1 << L for L in range(64) if ((L & 15) ^ (((L >> 4) | (hi << 2)) << 1)) != 15) for hi in range(2)]
    sM0, sM1 = sEx, 64
    a(f"""s_lshr_b32 s{sRot}, s2, 7
    s_lshl_b32 s{sT1}, s{sT1}, 1
    s_add_u32 s{sRot}, s{sRot}, s{sT1}
    s_and_b32 s{sT1}, s2, 7
    s_add_u32 s{sRot}, s{sRot}, s{sT1}
    s_sub_u32 s{sT1}, s{sRot}, 9
    s_cselect_b32 s{sRot}, s{sRot}, s{sT1}""")
    order = []
    a(f"""v_lshrrev_b32 v{t0}, 3, v0
    v_mul_u32_u24 v{t0}, 1152, v{t0}
    v_and_b32 v{t1}, 7, v0
    v_lshrrev_b32 v{t2}, 4, v0
    v_xor_b32 v{t1}, v{t1}, v{t2}
    v_lshlrev_b32 v{t1}, 4, v{t1}
    v_xor_b32 v{t2}, 64, v{t1}
    v_add_u32 v{vXs[0]}, v{t0}, v{t1}
    v_add_u32 v{vXs[1]}, v{t0}, v{t2}
    v_add_u32 v{vXs[1]}, {8*1152-1024}, v{vXs[1]}
    s_lshl_b32 s{sXb}, s{sE}, 4
    s_lshl_b32 s{sT0}, s{sHH}, 3
    s_add_u32 s{sXb}, s{sXb}, s{sT0}
    s_add_u32 s{sXb}, s{sXb}, s{sTH}
    s_mul_i32 s{sXb}, s{sXb}, {16*1152}
    s_lshl_b32 s{sKo}, s{sRot}, 7
    s_lshl_b32 s{sRing}, s{sWv}, 11
    s_add_u32 s{sRing}, s{sRing}, {L_XR}
    s_add_u32 s{sRef}, s{sXb}, s{sKo}
    s_mov_b32 s{sXm0}, s{sRing}""")
    sTo = [56, 57, 58, 59]
    for tt in range(4):
        a(f"""s_xor_b32 s{sTo[tt]}, s{sTt}, {tt}
        s_mul_i32 s{sTo[tt]}, s{sTo[tt]}, {32*1152}""")
    xstate = [0]
    def xnext():
        a(f"""s_add_u32 s{sKo}, s{sKo}, 128
        s_cmp_ge_u32 s{sKo}, 1152
        s_cselect_b32 s{sKo}, 0, s{sKo}
        s_add_u32 s{sRef}, s{sXb}, s{sKo}""")
    def xdma(j):
        tt = j & 3
        if tt == 0 and j: xnext()
        a(f"""s_mov_b32 m0, s{sXm0}
        s_add_u32 s{sT0}, s{sRef}, s{sTo[tt]}
        buffer_load_dwordx4 v{vXs[0]}, s[{sX}:{sX+3}], s{sT0} offen lds
        buffer_load_dwordx4 v{vXs[1]}, s[{sX}:{sX+3}], s{sT0} offen offset:1024 lds
        s_add_u32 s{sXm0}, s{sXm0}, 8192
        s_cmp_ge_u32 s{sXm0}, {L_XR + RX*8192}
        s_cselect_b32 s{sXm0}, s{sRing}, s{sXm0}""")
    srd_tail(a, sX, 2048 * 1152)
    srd_tail(a, sW, 576 * 3456)
    srd_tail(a, sG, 1152)
    a("s_waitcnt lgkmcnt(0)")
    stamp(a, 0, SV)
    xdma(0)
    order += ["X0"] * 2
    a(f"""v_lshrrev_b32 v{t0}, 4, v0
    v_lshlrev_b32 v{t1}, 1, v{t0}
    v_and_b32 v{t2}, 15, v0
    v_xor_b32 v{t1}, v{t1}, v{t2}
    s_mov_b32 s{sT0}, {((1<<4)|(1<<9)|(1<<14)) << 3}
    v_mul_u32_u24 v{t0}, 3456, v{t0}""")
    for hi in range(2):
        if hi: a(f"v_xor_b32 v{t1}, 8, v{t1}")
        a(f"""v_mul_u32_u24 v{t2}, 52, v{t1}
        v_lshrrev_b32 v{t2}, 8, v{t2}
        v_mul_u32_u24 v{t2}, {1152-80}, v{t2}
        v_lshl_add_u32 v{t2}, v{t1}, 4, v{t2}
        v_lshrrev_b32 v{t3}, v{t1}, s{sT0}
        v_and_b32 v{t3}, 8, v{t3}
        v_sub_u32 v{t2}, v{t2}, v{t3}
        v_add_u32 v{vWs[hi]}, v{t0}, v{t2}""")
    a(f"""v_lshlrev_b32 v{vL16}, 4, v0
    s_mul_i32 s{sT0}, s{sWv}, {16*3456}
    s_and_b32 s{sT1}, s{sPr}, 15
    s_mul_i32 s{sT1}, s{sT1}, 72
    s_add_u32 s{sWsrc}, s{sT0}, s{sT1}
    s_mul_i32 s{sWk}, s{sRot}, {64*3456}
    s_add_u32 s{sWcnt}, s{sWsrc}, s{sWk}
    s_lshl_b32 s{sWm0}, s{sWv}, 12
    s_lshl_b32 s{sT2}, s{sWv}, 11
    s_add_u32 s{sT2}, s{sT2}, {L_GT}
    s_mov_b32 s{sM0}, {WM[0] & 0xffffffff}
    s_mov_b32 s{sM0+1}, {WM[0] >> 32}
    s_mov_b32 s{sM1}, {WM[1] & 0xffffffff}
    s_mov_b32 s{sM1+1}, {WM[1] >> 32}""")
    def wdma2(hi):
        m = (sM0, sM1)[hi]
        a(f"""s_add_u32 m0, s{sWm0}, {L_WR + hi*2048}
        s_add_u32 s{sT0}, s{sWcnt}, {hi*8*3456}
        s_add_u32 s{sT1}, s{sWcnt}, {hi*8*3456 + 4*3456 - 1024}
        s_mov_b64 exec, s[{m}:{m+1}]
        buffer_load_dwordx4 v{vWs[hi]}, s[{sW}:{sW+3}], s{sT0} offen lds
        buffer_load_dwordx4 v{vWs[hi]}, s[{sW}:{sW+3}], s{sT1} offen offset:1024 lds
        s_mov_b64 exec, -1""")
    def wnext():
        a(f"""s_add_u32 s{sWk}, s{sWk}, {64*3456}
        s_cmp_ge_u32 s{sWk}, {576*3456}
        s_cselect_b32 s{sWk}, 0, s{sWk}
        s_add_u32 s{sWcnt}, s{sWsrc}, s{sWk}
        s_add_u32 s{sWm0}, s{sWm0}, {WSL}
        s_sub_u32 s{sT0}, s{sWm0}, {RW*WSL}
        s_cmp_ge_u32 s{sWm0}, {RW*WSL}
        s_cselect_b32 s{sWm0}, s{sT0}, s{sWm0}""")
    a(f"""s_mov_b32 m0, s{sT2}
    s_nop 0
    buffer_load_dwordx4 v{vL16}, s[{sG}:{sG+3}], 0 offen lds
    s_mov_b64 exec, 0xff
    buffer_load_dwordx4 v{vL16}, s[{sG}:{sG+3}], 0 offen offset:1024 lds
    s_mov_b64 exec, -1""")
    order += ["G"] * 2
    wdma2(0); wdma2(1)
    order += ["W0"] * 4
    wnext()
    xdma(1)
    order += ["X1"] * 2
    EARLY = OPT.get("early", "0") == "1"
    def second_batch():
        nonlocal order
        xdma(2)
        wdma2(0); wdma2(1)
        wnext()
        order += ["X2"] * 2 + ["W1"] * 4
        for j in range(3, RX - 1):
            xdma(j); order += [f"X{j}"] * 2
    a(f"s_mov_b32 s{sCnt}, s{sWm0}")
    if EARLY: second_batch()
    nb2 = len(order) - 10
    stamp(a, 16, SV)
    common_late(a)
    a(f"""s_lshl_b32 s{sT0}, s{sWv}, 5
    s_add_u32 s{sT0}, s{sT0}, s{sT2}
    v_lshl_add_u32 v{vGr}, v0, 1, s{sT0}
    v_and_b32 v{t1}, 3, v0
    v_lshlrev_b32 v{t1}, 1, v{t1}
    v_and_b32 v{t2}, 8, v0
    v_or_b32 v{t1}, v{t1}, v{t2}
    v_xor_b32 v{t1}, 15, v{t1}
    v_lshlrev_b32 v{t1}, 4, v{t1}
    v_lshl_add_u32 v{t1}, v0, 8, v{t1}
    s_lshl_b32 s{sGk}, s{sRot}, 7
    v_mov_b32 v{t0}, {L_SYNC}
    v_mov_b32 v20, 0
    v_mov_b32 v21, 0
    v_mov_b32 v22, 0
    v_mov_b32 v23, 0
    ds_write_b128 v{t0}, v[20:23]
    ds_write_b128 v{t0}, v[20:23] offset:16
    ds_write_b128 v{t0}, v[20:23] offset:32""")
    def gate(slotreg):
        a(f"""v_add_u32 v{t0}, s{sGk}, v{vGr}
        s_mov_b64 exec, 0xffff
        ds_read_u16 v{vGv}, v{t0}
        v_add_u32 v{t0}, s{slotreg}, v{t1}
        s_add_u32 s{sGk}, s{sGk}, 128
        s_cmp_ge_u32 s{sGk}, 1152
        s_cselect_b32 s{sGk}, 0, s{sGk}
        s_waitcnt lgkmcnt(0)
        ds_write2_b32 v{t0}, v{vGv}, v{vGv} offset0:0 offset1:1
        s_mov_b64 exec, -1""")
    vWos, vWos2, vPub, vC100, vPk, vA4, vSn = 28, 29, 30, 31, [76, 77, 78], 79, 80
    vP, vPa, vSy, vOne, vFa = 20, 17, 18, 19, 16
    vOm, vOt, vWm, vWt, vRd = [2, 252], 3, 4, 5, 6
    vVa3, vSy3 = [248, 253], 251
    HWB, HAC, HOF = 8, 188, 228
    u0, u1, u2, u3 = 84, 85, 86, 87
    def setup1():
        a(f"""v_mul_u32_u24 v{u0}, 57, v0
        v_lshrrev_b32 v{u0}, 10, v{u0}
        v_mul_u32_u24 v{u1}, 18, v{u0}
        v_sub_u32 v{u1}, v0, v{u1}
        v_lshlrev_b32 v{u1}, 4, v{u1}
        s_and_b32 s{sT0}, s{sE}, 1
        s_lshl_b32 s{sT0}, s{sT0}, 1
        s_mul_i32 s{sT1}, s{sWv}, 3
        s_add_u32 s{sT0}, s{sT0}, s{sT1}
        v_add_u32 v{u0}, s{sT0}, v{u0}
        v_mul_u32_u24 v{vWos}, 1152, v{u0}
        v_add_u32 v{vWos}, v{vWos}, v{u1}
        v_cmp_le_u32 vcc, 6, v{u0}
        v_add_u32 v{u2}, {12*1152}, v{vWos}
        v_subrev_u32 v{u3}, {6*1152}, v{vWos}
        v_cndmask_b32 v{vWos2}, v{u2}, v{u3}, vcc
        s_mul_i32 s{sT0}, s{sHH}, {RING}
        s_mul_i32 s{sT1}, s{sTH}, 5120
        s_add_u32 s{sT0}, s{sT0}, s{sT1}
        v_add_u32 v{vPub}, s{sT0}, v{vL16}
        s_lshl_b32 s{sT0}, s{sPr}, 2
        v_mov_b32 v{vPa}, s{sT0}
        s_lshl_b32 s{sT0}, s{sPr}, 12
        s_lshl_b32 s{sT3}, s{sHH}, 7
        s_add_u32 s{sT0}, s{sT0}, s{sT3}
        s_add_u32 s{sT0}, s{sT0}, {WS_F}
        v_and_b32 v{vFa}, 1, v0
        v_lshl_add_u32 v{vFa}, v{vFa}, 2, s{sT0}
        v_lshrrev_b32 v{u0}, 1, v0
        v_lshl_add_u32 v{vFa}, v{u0}, 8, v{vFa}
        v_mov_b32 v{vSy}, {L_SYNC}
        v_mov_b32 v{vOne}, 1
        v_mov_b32 v{vC100}, 0x100
        v_lshlrev_b32 v{vA4}, 2, v0
        v_bfe_u32 v{u0}, v0, 2, 3
        v_mul_u32_u24 v{u0}, 288, v{u0}
        v_and_b32 v{u1}, 3, v0
        v_lshlrev_b32 v{u1}, 3, v{u1}
        v_add_u32 v{u1}, {L_WO}, v{u1}
        v_and_b32 v{u2}, 32, v0
        v_add3_u32 v{vPk[1]}, v{u0}, v{u1}, v{u2}
        s_lshl_b32 s{sT0}, s{sWv}, 6
        v_add_u32 v{vPk[0]}, s{sT0}, v{vPk[1]}
        v_bfe_u32 v{u0}, v0, 2, 2
        v_mul_u32_u24 v{u0}, 288, v{u0}
        v_lshrrev_b32 v{u2}, 4, v0
        v_lshlrev_b32 v{u2}, 5, v{u2}
        v_add3_u32 v{u0}, v{u0}, v{u1}, v{u2}
        s_lshl_b32 s{sT0}, s{sWv}, 7
        v_add_u32 v{vPk[2]}, s{sT0}, v{u0}""")
        for i in range(4): a(f"v_mov_b32 v{vSn+i}, {SENT}")
    def setup2():
        p3_scal(a)
        p3_addr_w(a, vWm, vWt, u0, u1, u2)
        p3_addr_o(a, vOm, vOt, vRd, vVa3, vSy3, u0, u1, u2)
        p3_hint_addr(a, HOF)
        for i in range(40): a(f"v_mov_b32 v{HAC+i}, 0")
    SP = OPT.get('setup', 'head')
    if SP == 'head': setup1(); setup2()
    a(f"""s_sub_u32 s{sT3}, s{sCnt}, {WSL}
    s_waitcnt vmcnt({6 + nb2})""")
    stamp(a, 17, SV)
    gate(sT3); gate(sCnt)
    a(f"""s_waitcnt vmcnt({2 + nb2}) lgkmcnt(0)
    s_barrier""")
    stamp(a, 1, SV)
    if not EARLY: second_batch()
    stamp(a, 18, SV)
    a(f"""s_mov_b32 s{sIt}, 0
    v_add_u32 v{t0}, s{sGk}, v{vGr}
    {K}_hl:""")
    for tt in (0, 2):
        a(f"""s_waitcnt vmcnt(@W{tt}@) lgkmcnt(0)
        s_barrier""")
        if OPT.get("prof"):
            a(f"""s_memtime s[82:83]
            s_lshl_b32 m0, s{sIt}, 1
            s_add_u32 m0, m0, {2 + (tt >> 1)}
            s_waitcnt lgkmcnt(0)
            v_writelane_b32 v{SV-8}, s82, m0""")
        if not OPT.get("noh"):
            def thr(k):
                if OPT.get("thr"):
                    a(f"""s_bitcmp1_b32 {STRAD}, s{sPr}
                    s_cbranch_scc1 {K}_th{tt}{k}
                    s_waitcnt vmcnt({OPT["thr"]})
                    {K}_th{tt}{k}:""")
            if tt == 0:
                a(f"ds_read_u16 v{vGv}, v{t0}")
            else:
                a(f"""s_mov_b64 exec, 0xffff
                ds_write2_b32 v{t2}, v{vGv}, v{vGv} offset0:0 offset1:1""")
            wdma2(tt >> 1)
            thr(0)
            xdma(tt + RX - 1)
            thr(1)
            xdma(tt + RX)
            if tt == 0:
                a(f"""v_add_u32 v{t2}, s{sWm0}, v{t1}
                s_add_u32 s{sGk}, s{sGk}, 128
                s_cmp_ge_u32 s{sGk}, 1152
                s_cselect_b32 s{sGk}, 0, s{sGk}
                v_add_u32 v{t0}, s{sGk}, v{vGr}""")
    wnext()
    a(f"""s_add_u32 s{sIt}, s{sIt}, 1
    s_cmp_lt_u32 s{sIt}, 7
    s_cbranch_scc1 {K}_hl""")
    need = {0: 99, 2: 99}
    for j in range(0, 36, 2):
        req = [f"X{min(j+2,35)}"]
        if j % 4 == 2 and j // 4 + 1 <= 8: req.append(f"W{j//4+1}")
        last = max(i for i, o in enumerate(order) if o in req)
        n_ = len(order) - 1 - last
        if j < 28:
            need[j % 4] = min(need[j % 4], n_)
            order += [f"W{j//4+2}"] * 2 + [f"X{j+RX-1}"] * 2 + [f"X{j+RX}"] * 2
        else:
            a(f"""s_waitcnt vmcnt({n_}) lgkmcnt(0)
            s_barrier""")
            for jj in (j + RX - 1, j + RX):
                if jj <= 35:
                    xdma(jj); order += [f"X{jj}"] * 2
            if SP == 'tail' and j == 28: setup1()
            if SP == 'tail' and j == 30: setup2()
    for i in (0, 2): a.l = [x.replace(f"@W{i}@", str(need[i])) for x in a.l]
    stamp(a, 2, SV)
    if OPT.get("prof"):
        a(f"""v_readlane_b32 s80, v{SV+1}, 0
        v_readlane_b32 s81, v{SV+1}, 1
        v_readlane_b32 s82, v{SV+1}, 2
        s_nop 3
        v_writelane_b32 v{SV-8}, s80, 0
        v_writelane_b32 v{SV-8}, s81, 1
        v_writelane_b32 v{SV-8}, s82, 16
        s_lshl_b32 s80, s2, 3
        s_add_u32 s80, s80, s{sW8}
        s_lshl_b32 s80, s80, 8
        s_add_u32 s80, s80, {WS_STAMP + 0x80000}
        v_lshlrev_b32 v1, 2, v0
        buffer_store_dword v{SV-8}, v1, s[{sWS}:{sWS+3}], s80 offen""")
    sPH, sPC = sWsrc, sWm0
    sQ = sGk
    a(f"""s_lshl_b32 s{sPH}, s{sPr}, 1
    s_and_b32 s{sT0}, s{sE}, 1
    s_add_u32 s{sPH}, s{sPH}, s{sT0}
    s_lshr_b32 s{sPC}, s{sE}, 1
    s_and_b32 s{sT0}, s{sPH}, 31
    s_mul_i32 s{sT0}, s{sT0}, {18*1152}
    s_mul_i32 s{sT1}, s{sPC}, 288
    s_add_u32 s{sT0}, s{sT0}, s{sT1}
    s_mul_i32 s{sT1}, s{sWv}, 864
    s_add_u32 m0, s{sT1}, {L_WO}
    s_mov_b32 exec_hi, 0x003fffff
    buffer_load_dwordx4 v{vWos}, s[{sWo}:{sWo+3}], s{sT0} offen lds
    s_add_u32 m0, s{sT1}, {L_WO + 4*864}
    s_nop 0
    buffer_load_dwordx4 v{vWos2}, s[{sWo}:{sWo+3}], s{sT0} offen lds
    s_mov_b64 exec, 1
    buffer_load_dword v{vP+1}, v{vPa}, s[{sD}:{sD+3}], 0 offen sc1
    s_mov_b64 exec, -1
    s_mul_i32 s{sRing}, s{sHH}, {RING}
    s_mul_i32 s{sT2}, s{sTH}, 5120
    s_mul_i32 s{sT1}, s{sE}, {2*BLK}
    s_add_u32 s{sT1}, s{sT1}, s{sKVg}
    s_add_u32 s{sT1}, s{sT1}, s{sT2}
    s_mov_b32 s{sQ}, s{sTH}
    s_cmp_eq_u32 s{sTH}, 1
    s_cselect_b32 s{sM0}, 0xffff, -1
    s_cselect_b32 s{sM0+1}, 0, -1
    s_barrier""")
    t0 = vPub
    stamp(a, 3, SV)
    for i in range(5): a(f"ds_read_b128 {vr(32+4*i,4)}, v{t0} offset:{1024*i}")
    a(f"s_mov_b32 s{sXb}, s{sT1}")
    def publish(ph):
        for i in range(5 * ph, 5 * ph + 5):
            if i % 5 == 4: a(f"""s_add_u32 s{sXb}, s{sXb}, 4096
            s_mov_b64 exec, s[{sM0}:{sM0+1}]""")
            if ph == 0: a(f"s_waitcnt lgkmcnt({4-i})")
            a(f"buffer_store_dwordx4 {vr(32+4*i,4)}, v{vL16}, s[{sWS}:{sWS+3}], s{sXb} offen offset:{1024*((i%5)%4)} sc1")
            if i % 5 == 4: a(f"""s_mov_b64 exec, -1
            s_add_u32 s{sXb}, s{sXb}, {BLK-4096}""")
    publish(0)
    a("s_barrier")
    for i in range(5, 10): a(f"ds_read_b128 {vr(32+4*i,4)}, v{t0} offset:{BLK + 1024*(i-5)}")
    def arrive(word, vm=0):
        a(f"""s_mov_b64 exec, 1
        s_waitcnt vmcnt({vm})
        ds_add_rtn_u32 v{vP}, v{vSy}, v{vOne} offset:{4*word}
        s_waitcnt lgkmcnt(0)
        v_readfirstlane_b32 s{sT1}, v{vP}
        s_mov_b64 exec, -1
        s_cmp_eq_u32 s{sT1}, 3""")
    def lds_wait(lbl, word):
        a(f"""s_mov_b32 s{sSpin}, 400000
        {lbl}:
        ds_read_b32 v{vP}, v{vSy} offset:{4*word}
        s_waitcnt lgkmcnt(0)
        v_readfirstlane_b32 s{sT1}, v{vP}
        s_cmp_lg_u32 s{sT1}, 0
        s_cbranch_scc1 {lbl}_go
        s_sub_u32 s{sSpin}, s{sSpin}, 1
        s_cmp_eq_u32 s{sSpin}, 0
        s_cbranch_scc1 {lbl}_go
        s_sleep 6
        s_branch {lbl}
        {lbl}_go:""")
    def flag(off, vm):
        a(f"""s_lshl_b32 s{sT0}, s{sE}, 8
        s_lshl_b32 s{sT1}, s{sTH}, 2
        s_add_u32 s{sT0}, s{sT0}, s{sT1}
        s_mov_b64 exec, 1
        s_waitcnt vmcnt({vm})
        buffer_store_dword v{vOne}, v{vFa}, s[{sWS}:{sWS+3}], s{sT0} offen offset:{off} sc1
        s_mov_b64 exec, -1""")
    flag(0, 0)
    stamp(a, 4, SV)
    def rst_ok(r):
        a(f"""v_readfirstlane_b32 s{sT0}, v{r}
        s_and_b32 s{sT0}, s{sT0}, 0xff
        s_cmp_ge_u32 s{sT0}, 8""")
    def kv_ready():
        a(f"""v_cmp_eq_u32 vcc, 1, v{vP}
        s_nop 1
        s_cmp_eq_u32 vcc_lo, 0xffff""")
    a("s_mov_b64 exec, 1")
    rst_ok(vP + 1)
    a(f"s_cbranch_scc1 {K}_pl0_go")
    poll(a, f"{K}_pl0", f"buffer_load_dword v{vP}, v{vPa}, s[{sD}:{sD+3}], 0 offen sc1", lambda: rst_ok(vP), 8)
    a(f"""s_add_u32 s{sT2}, s{sTH}, 1
    s_xor_b32 s{sT2}, s{sT2}, s{sE}
    s_lshl_b32 s{sT2}, s{sT2}, 8
    s_mov_b64 exec, 3
    s_mov_b32 s{sSpin}, 40000
    buffer_load_dword v{vP}, v{vFa}, s[{sWS}:{sWS+3}], s{sT2} offen sc1
    s_sleep {OPT.get("fslp", 4)}
    buffer_load_dword v{vP+1}, v{vFa}, s[{sWS}:{sWS+3}], s{sT2} offen sc1
    s_sleep {OPT.get("fslp", 4)}
    {K}_pl1:""")
    for r_ in range(3):
        a(f"""buffer_load_dword v{vP+(r_+2)%3}, v{vFa}, s[{sWS}:{sWS+3}], s{sT2} offen sc1
        s_waitcnt vmcnt(2)
        v_cmp_eq_u32 vcc, 1, v{vP+r_}
        s_nop 1
        s_cmp_eq_u32 vcc_lo, 3
        s_cbranch_scc1 {K}_kgo""")
    a(f"""s_sub_u32 s{sSpin}, s{sSpin}, 1
    s_cmp_lg_u32 s{sSpin}, 0
    s_cbranch_scc1 {K}_pl1
    {K}_kgo:
    s_mov_b64 exec, -1""")
    stamp(a, 5, SV)
    def ldblock():
        a(f"s_call_b64 s[{sRet}:{sRet+1}], {K}_ldblk")
    ldblock()
    a("s_waitcnt lgkmcnt(0)")
    publish(1)
    a("s_waitcnt vmcnt(5)")
    stamp(a, 6, SV)
    a("s_barrier")
    flag(2048, 0)
    a("s_mov_b64 exec, 0xffff")
    poll(a, f"{K}_pl1a", f"buffer_load_dword v{vP}, v{vFa}, s[{sWS}:{sWS+3}], 0 offen sc1", kv_ready, 2)
    a("s_mov_b64 exec, -1")
    ldblock(); ldblock()
    a("s_waitcnt vmcnt(0)")
    stamp(a, 7, SV)
    a("s_barrier")
    a("s_mov_b64 exec, 0xffff")
    poll(a, f"{K}_pl1b", f"buffer_load_dword v{vP}, v{vFa}, s[{sWS}:{sWS+3}], 0 offen offset:2048 sc1", kv_ready, 2)
    a("s_mov_b64 exec, -1")
    ldblock(); ldblock()
    a(f"""ds_read_b64_tr_b16 {vr(64,2)}, v{vPk[0]}
    ds_read_b64_tr_b16 {vr(66,2)}, v{vPk[0]} offset:2304
    ds_read_b64_tr_b16 {vr(68,2)}, v{vPk[1]} offset:256
    ds_read_b64_tr_b16 {vr(70,2)}, v{vPk[1]} offset:{256+2304}
    ds_read_b64_tr_b16 {vr(72,2)}, v{vPk[2]} offset:{16*288-128}
    s_lshl_b32 s{sT0}, s{sPC}, 6
    s_add_u32 s{sT0}, s{sT0}, s{sPH}
    s_mul_i32 s{sT0}, s{sT0}, 4608
    s_add_u32 s{sT0}, s{sT0}, {WS_WOM}
    s_lshl_b32 s{sT1}, s{sWv}, 10
    s_add_u32 s{sT1}, s{sT1}, s{sT0}
    s_lshl_b32 s{sT2}, s{sPC}, 4
    s_lshr_b32 s{sT3}, s{sPH}, 2
    s_add_u32 s{sT2}, s{sT2}, s{sT3}
    s_mul_i32 s{sT2}, s{sT2}, 2304
    s_and_b32 s{sT3}, s{sPH}, 3
    s_lshl_b32 s{sT3}, s{sT3}, 2
    s_add_u32 s{sT2}, s{sT2}, s{sT3}
    s_lshl_b32 s{sT3}, s{sWv}, 10
    s_add_u32 s{sT2}, s{sT2}, s{sT3}
    s_add_u32 s{sT2}, s{sT2}, {WS_WOT - 1024}
    s_waitcnt lgkmcnt(0)
    buffer_store_dwordx4 {vr(64,4)}, v{vL16}, s[{sWS}:{sWS+3}], s{sT1} offen sc1
    s_cmp_eq_u32 s{sWv}, 0
    s_cbranch_scc0 {K}_wo_tail
    s_mov_b32 exec_hi, 0
    s_add_u32 s{sT3}, s{sT0}, 4096
    buffer_store_dwordx4 {vr(68,4)}, v{vL16}, s[{sWS}:{sWS+3}], s{sT3} offen sc1
    s_branch {K}_wo_done
    {K}_wo_tail:
    s_cmp_eq_u32 s{sWv}, 3
    s_cselect_b32 exec_lo, 0xffff, -1
    s_cselect_b32 exec_hi, 0, -1
    buffer_store_dword v72, v{vL16}, s[{sWS}:{sWS+3}], s{sT2} offen sc1
    {K}_wo_done:
    s_mov_b64 exec, -1""")
    a(f"""s_lshl_b32 s{sT1}, s{sE}, 1
    s_add_u32 s{sT1}, s{sT1}, s{sTH}
    s_lshl_b32 s{sT1}, s{sT1}, 8
    s_add_u32 s{sT1}, s{sT1}, s{sBH}
    s_mul_i32 s{sT1}, s{sT1}, 1152
    s_add_u32 s{sT1}, s{sT1}, {WS_O}""")
    for x in range(4):
        a(f"""buffer_store_dwordx4 {vr(vSn,4)}, v{vL16}, s[{sWS}:{sWS+3}], s{sT1} offen sc1
        s_mov_b64 exec, 0xff
        buffer_store_dwordx4 {vr(vSn,4)}, v{vL16}, s[{sWS}:{sWS+3}], s{sT1} offen offset:1024 sc1
        s_mov_b64 exec, -1
        s_add_u32 s{sT1}, s{sT1}, {64*1152}""")
    arrive(1)
    a(f"""s_cbranch_scc0 {K}_sg2
    s_mov_b64 exec, 1
    buffer_atomic_add v{vC100}, v{vPa}, s[{sD}:{sD+3}], 0 offen
    s_mov_b64 exec, -1
    {K}_sg2:""")
    a("s_barrier")
    ldblock(); ldblock()
    stamp(a, 12, SV)
    a(f"""s_cmp_eq_u32 s{sWv}, 0
    s_cbranch_scc0 {K}_gw
    s_mov_b32 exec_hi, 0""")
    def all_init():
        a(f"""v_bfe_u32 v{vP}, v{vP}, 8, 8
        v_cmp_le_u32 vcc, 8, v{vP}
        s_nop 1
        s_cmp_eq_u32 vcc_lo, -1""")
    poll(a, f"{K}_pl2", f"buffer_load_dword v{vP}, v{vA4}, s[{sD}:{sD+3}], 0 offen sc1", all_init, 32)
    a(f"""ds_write_b32 v{vSy}, v{vOne} offset:12
    s_mov_b64 exec, -1
    s_branch {K}_ggo
    {K}_gw:""")
    lds_wait(f"{K}_lw2", 3)
    a(f"{K}_ggo:")
    HC = [0, 1, 2, 3, 4]
    hreg = lambda s, ct: HWB + 4 * (5 * s + ct)
    p3_wo_loads(a, HC, hreg, vWm, vWt)
    a("s_waitcnt vmcnt(45)")
    stamp(a, 8, SV)
    a("s_barrier")
    if not OPT.get('x_nowarm'): p3_wo_loads(a, [8], lambda s, ct: HOF + 4 * (s % 4), vWm, vWt)
    a(f"""s_mul_i32 s{sT0}, s{sTH}, 27648
    s_add_u32 s{sT0}, s{sT0}, s{sRing}
    s_barrier""")
    for s in range(9 if not OPT.get('x_nostage') else 0):
        for i, ct in enumerate(CL):
            n = 3 * s + i
            if s < 8:
                a(f"""s_add_u32 m0, s{sT0}, {1024*n}
                s_add_u32 s{sT3}, s{sGW[s>>1]}, {2*(s&1)*4608 + 512*ct}
                buffer_load_dwordx4 v{vWm}, s[{sWS}:{sWS+3}], s{sT3} offen sc1 lds""")
            else:
                a(f"""s_add_u32 m0, s{sT0}, {1024*n}
                s_add_u32 s{sT3}, s{sWtb}, {256*ct}
                buffer_load_dwordx4 v{vWt}, s[{sWS}:{sWS+3}], s{sT3} offen sc1 lds""")
    a(f"""s_mul_i32 s{sT0}, s{sP3T}, {32*1152}
    buffer_load_dword v1, v{vL16}, s[{sOut}:{sOut+3}], s{sT0} offen
    s_waitcnt vmcnt(0)""")
    stamp(a, 9, SV)
    a("s_barrier")
    stamp(a, 10, SV)
    p3_helper(a, HC, hreg, HAC, HOF, vOm, vOt, vRd, vL16, vVa3, vSy3, int(OPT.get("hslp", 1)))
    stamp(a, 11, SV)
    if OPT["stamp"]: a(f"v_mov_b32 v30, v{SV}\nv_mov_b32 v31, v{SV+1}")
    a(f"s_branch {K}_final")
    a(f"""{K}_ldblk:
    s_add_u32 s{sQ}, s{sQ}, 2
    s_cmp_ge_u32 s{sQ}, 9
    s_cselect_b32 s{sT0}, 0, 7
    s_cselect_b32 s{sT2}, 1, 0
    s_add_u32 s{sT0}, s{sT0}, s{sQ}
    s_and_b32 s{sT0}, s{sT0}, 7
    s_xor_b32 s{sT0}, s{sT0}, s{sE}
    s_lshl_b32 s{sT0}, s{sT0}, 1
    s_add_u32 s{sT0}, s{sT0}, s{sT2}
    s_mul_i32 s{sT1}, s{sT0}, {BLK}
    s_add_u32 s{sT1}, s{sT1}, s{sKVg}
    s_and_b32 s{sT0}, s{sQ}, 7
    s_mul_i32 s{sT0}, s{sT0}, {BLK}
    s_add_u32 s{sT0}, s{sT0}, s{sRing}""")
    for i in range(10):
        if i % 4 == 0:
            a(f"""s_add_u32 m0, s{sT0}, {1024*i}
            s_add_u32 s{sT2}, s{sT1}, {1024*i}""")
        if i == 9: a("s_mov_b64 exec, 0xffff")
        a(f"buffer_load_dwordx4 v{vL16}, s[{sWS}:{sWS+3}], s{sT2} offen offset:{1024*(i%4)} sc1 lds")
    a(f"""s_mov_b64 exec, -1
    s_setpc_b64 s[{sRet}:{sRet+1}]""")

def compute(a, K):
    RX = int(OPT["rx"])
    common_late(a)
    a("s_waitcnt lgkmcnt(0)")
    stamp(a, 0, 30)
    vXr = [2, 3, 20, 21]
    vWc = [4, 5, 9, 1]
    t0, t1, t2, t3, t4, t5 = 64, 65, 66, 67, 68, 69
    WF = 32
    XF = [96, 112]
    ACC = 128
    def reset_flags():
        a(f"""s_cmp_eq_u32 s{sWv}, 0
        s_cselect_b32 s{sCnt}, {OPT.get("rstit", 4)}, 100
        s_cbranch_scc0 {K}_norst
        s_lshl_b32 s{sT0}, s{sPr}, 12
        s_lshl_b32 s{sT1}, s{sE}, 8
        s_add_u32 s{sT0}, s{sT0}, s{sT1}
        s_add_u32 s{sT0}, s{sT0}, {WS_F}
        v_lshlrev_b32 v75, 7, v0
        v_mov_b32 v76, 0
        v_mov_b32 v77, 0
        s_mov_b64 exec, 3
        buffer_store_dwordx2 v[76:77], v75, s[{sWS}:{sWS+3}], s{sT0} offen sc1
        buffer_store_dwordx2 v[76:77], v75, s[{sWS}:{sWS+3}], s{sT0} offen offset:2048 sc1""")
        if OPT.get("touch", "1") == "1":
            a(f"""s_mov_b64 exec, 1
            buffer_load_dword v78, v75, s[{sWS}:{sWS+3}], s{sKVg} offen
            s_add_u32 s{sT0}, s{sKVg}, {2*KVH-128}
            buffer_load_dword v79, v75, s[{sWS}:{sWS+3}], s{sT0} offen""")
        a(f"""s_mov_b64 exec, -1
        {K}_norst:""")
    a(f"v_mov_b32 v{ACC}, 0")
    if OPT.get("rstpos", "late") == "start": reset_flags()
    a(f"""v_and_b32 v{t0}, 15, v0
    v_lshrrev_b32 v{t1}, 4, v0
    v_bfe_u32 v{t2}, v0, 1, 3
    v_xor_b32 v{t2}, v{t2}, v{t1}
    v_lshlrev_b32 v{t2}, 4, v{t2}
    v_lshlrev_b32 v{t3}, 7, v{t0}
    s_lshl_b32 s{sT0}, s{sTH}, 12
    s_lshl_b32 s{sT1}, s{sHH}, 11
    s_add_u32 s{sT0}, s{sT0}, s{sT1}
    s_add_u32 s{sT0}, s{sT0}, {L_XR}
    v_add_u32 v{t3}, s{sT0}, v{t3}
    v_add_u32 v{vXr[0]}, v{t3}, v{t2}
    v_xor_b32 v{t2}, 64, v{t2}
    v_add_u32 v{vXr[1]}, v{t3}, v{t2}
    v_xor_b32 v{vXr[2]}, 2048, v{vXr[0]}
    v_xor_b32 v{vXr[3]}, 2048, v{vXr[1]}
    v_bfe_u32 v{t2}, v0, 2, 2
    v_lshl_add_u32 v{t2}, v{t1}, 3, v{t2}
    v_lshlrev_b32 v{t2}, 8, v{t2}
    v_bfe_u32 v{t4}, v0, 2, 3
    v_lshlrev_b32 v{t4}, 5, v{t4}
    v_and_b32 v{t3}, 3, v0
    v_lshlrev_b32 v{t3}, 3, v{t3}
    s_mul_i32 s{sT1}, s{sHH}, 40
    s_mov_b32 s{sT0}, {192 | (112 << 8) | (32 << 16) | (240 << 24)}
    v_lshrrev_b32 v{t5}, v{t3}, s{sT0}
    v_and_b32 v{t5}, 0xff, v{t5}
    v_xor_b32 v{t5}, v{t5}, v{t4}
    v_add_u32 v{vWc[3]}, v{t2}, v{t5}
    v_add_u32 v{t3}, s{sT1}, v{t3}
    v_lshrrev_b32 v{t5}, 3, v{t3}
    v_and_b32 v{t5}, 8, v{t5}
    v_add_u32 v{t3}, v{t3}, v{t5}""")
    for ct, off in enumerate((80, 0, 160)):
        a(f"""v_add_u32 v{t5}, {off}, v{t3}
        v_xor_b32 v{t5}, v{t5}, v{t4}
        v_add_u32 v{vWc[ct]}, v{t2}, v{t5}""")
    for i in range(1, 128):
        if i % 32 < 28: a(f"v_mov_b32 v{ACC+i}, 0")
    vKa, vTa, vVa, vIdx = 6, 7, 8, 10
    vKw, vQw, vVw, vMul, vSq, vSqh = 11, 12, 13, 24, 25, 19
    vSt, vStt, vWm3, vWt, vCp, vOnes, vQr = 14, 15, 16, 17, 18, 22, 23
    vM0, vDs, vDt, vDe, vDh = 70, 71, 72, 73, 74
    MA = lambda tt, i: ACC + 32 * tt + 28 + i
    sBlk, sScr = sXb, sKo
    a(f"""s_mul_i32 s{sRing}, s{sHH}, {RING}
    s_mul_i32 s{sBlk}, s{sTH}, {BLK}
    s_add_u32 s{sBlk}, s{sBlk}, s{sRing}
    s_mul_i32 s{sScr}, s{sWv}, 5120
    s_add_u32 s{sScr}, s{sScr}, {L_SCR}
    v_lshrrev_b32 v{t2}, 2, v{t0}
    v_and_b32 v{t3}, 3, v0
    v_lshl_add_u32 v{t4}, v{t2}, 3, v{t3}
    v_lshrrev_b32 v{t5}, 5, v0
    v_lshlrev_b32 v{t5}, 9, v{t5}
    v_and_b32 v{vQw}, 16, v0
    v_lshrrev_b32 v{vQw}, 1, v{vQw}
    v_add_u32 v{t5}, v{t5}, v{vQw}
    v_lshl_add_u32 v{vKw}, v{t4}, 4, v{t5}
    s_lshl_b32 s{sT0}, s{sTH}, 11
    s_add_u32 s{sT0}, s{sT0}, s{sRing}
    v_add_u32 v{vKw}, s{sT0}, v{vKw}
    v_lshl_add_u32 v{vQw}, v{t0}, 4, v{t5}
    v_add_u32 v{vQw}, s{sScr}, v{vQw}
    v_mul_u32_u24 v{vVw}, 304, v{t1}
    v_lshl_add_u32 v{vVw}, v{t0}, 4, v{vVw}
    s_mul_i32 s{sT0}, s{sTH}, 2432
    s_add_u32 s{sT0}, s{sT0}, s{sRing}
    v_add_u32 v{vVw}, s{sT0}, v{vVw}""")
    a(f"""s_mul_i32 s{sT2}, s{sTH}, 2432
    s_mul_i32 s{sT3}, s{sTH}, 5120
    v_mul_u32_u24 v{vM0}, 304, v{t2}
    v_lshl_add_u32 v{vM0}, v{t3}, 1, v{vM0}
    s_add_u32 s{sT0}, s{sT2}, {4608+256}
    v_add_u32 v{vM0}, s{sT0}, v{vM0}
    s_lshl_b32 s{sT0}, s{sTH}, 3
    s_add_u32 s{sT0}, s{sT0}, 4096
    s_add_u32 s{sT1}, s{sT3}, {L_SCR+4096-1024}
    v_lshlrev_b32 v{t5}, 9, v{t1}
    v_add_u32 v{t5}, s{sT1}, v{t5}
    v_mov_b32 v{vDh}, s{sT0}
    v_cmp_eq_u32 vcc, 1, v{t1}
    v_mov_b32 v{vDs}, 64
    v_mov_b32 v{vDt}, 4
    v_cndmask_b32 v{t5}, v{t5}, v{vDh}, vcc
    v_lshl_add_u32 v{t5}, v{t4}, 4, v{t5}
    v_cmp_eq_u32 vcc, 0, v{t1}
    v_mov_b32 v{vDe}, 2
    v_mov_b32 v{t3}, 1216
    v_cndmask_b32 v{vM0}, v{t5}, v{vM0}, vcc
    v_cndmask_b32 v{vDs}, v{vDs}, 8, vcc
    v_cndmask_b32 v{vDt}, v{vDt}, v{t3}, vcc
    v_cndmask_b32 v{vDe}, v{vDe}, 16, vcc
    v_cmp_gt_u32 vcc, 2, v{t1}
    v_mov_b32 v{vDh}, {2*5120}
    v_mov_b32 v{t3}, {RING}
    v_cndmask_b32 v{vDh}, v{vDh}, v{t3}, vcc
    v_mov_b32 v{t5}, 8
    v_mov_b32 v{t3}, {BLK}
    v_cndmask_b32 v{t5}, v{t5}, v{t3}, vcc
    v_mul_u32_u24 v{t3}, s{sHH}, v{vDs}
    v_add_u32 v{MA(0,0)}, v{vM0}, v{t3}
    v_sub_u32 v{t3}, v{vDs}, v{t3}
    v_add3_u32 v{MA(0,2)}, v{vM0}, v{t3}, v{vDh}
    v_add_u32 v{MA(0,1)}, v{MA(0,0)}, v{vDe}
    v_add_u32 v{MA(0,3)}, v{MA(0,2)}, v{vDe}""")
    for i in range(4):
        a(f"""v_add_u32 v{MA(1,i)}, v{MA(0,i)}, v{vDt}
        v_add_u32 v{MA(2,i)}, v{MA(0,i)}, v{t5}
        v_add_u32 v{MA(3,i)}, v{MA(1,i)}, v{t5}""")
    a(f"""v_cmp_eq_u32 vcc, 2, v{t1}
    v_mov_b32 v{vMul}, 1.0
    v_mov_b32 v{t2}, {f32(CSCALE)}
    v_cndmask_b32 v{vMul}, v{vMul}, v{t2}, vcc""")
    a(f"""v_and_b32 v{t2}, 16, v0
    v_lshrrev_b32 v{t2}, 2, v{t2}
    v_add_u32 v{t2}, v{t2}, v{t4}
    v_lshlrev_b32 v{vSq}, 4, v{t2}
    s_add_u32 s{sT1}, s{sScr}, 4096
    v_add_u32 v{vSq}, s{sT1}, v{vSq}
    v_and_b32 v{t0}, 31, v0
    v_lshrrev_b32 v{t1}, 5, v0
    v_mul_u32_u24 v{t3}, 304, v{t1}
    v_lshl_add_u32 v{t3}, v{t0}, 4, v{t3}
    v_add_u32 v{t3}, s{sRing}, v{t3}
    v_cmp_gt_u32 vcc, 19, v{t0}
    v_mov_b32 v{vVa}, {LDS_BYTES}
    v_lshl_add_u32 v{vKa}, v0, 4, s{sRing}
    v_cndmask_b32 v{vVa}, v{vVa}, v{t3}, vcc
    v_lshl_add_u32 v{vTa}, v{t0}, 4, s{sRing}
    v_mov_b32 v{vIdx}, 0xdddddddd
    v_lshl_add_u32 v{vSqh}, v{t1}, 2, v{vSq}
    s_mov_b32 s{sWsrc}, 0
    s_mov_b32 s{sXm0}, 0
    v_mul_u32_u24 v{vOnes}, 304, v0
    v_add_u32 v{vOnes}, s{sBlk}, v{vOnes}
    v_lshl_add_u32 v{vQr}, v0, 4, s{sScr}
    s_mul_i32 s{sT0}, s{sTH}, 27648
    s_add_u32 s{sT0}, s{sT0}, s{sRing}
    v_lshl_add_u32 v{vCp}, v0, 4, s{sT0}
    s_lshl_b32 s{sT0}, s{sHH}, 4
    v_xor_b32 v{t2}, s{sT0}, v0
    v_lshlrev_b32 v{vSt}, 4, v{t2}
    s_and_b32 s{sT0}, s{sTt}, 1
    v_xor_b32 v{vStt}, s{sT0}, v{t1}
    v_mul_u32_u24 v{vStt}, {64*1152}, v{vStt}
    v_and_b32 v{t2}, 31, v{t2}
    v_lshl_add_u32 v{vStt}, v{t2}, 2, v{vStt}
    s_lshl_b32 s{sT1}, s{sE}, 1
    s_add_u32 s{sT1}, s{sT1}, s{sTH}
    s_lshl_b32 s{sT1}, s{sT1}, 8
    s_add_u32 s{sT1}, s{sT1}, s{sBH}
    s_mul_i32 s{sT1}, s{sT1}, 1152
    s_add_u32 s{sRef}, s{sT1}, {WS_O}
    s_cmp_ge_u32 s{sPr}, 16
    s_mov_b32 s60, {f32(-LOG2E)}
    s_cselect_b32 s60, {f32(LOG2E)}, s60
    s_mov_b32 s61, {f32(2.0**-40)}
    s_mov_b32 s64, {f32(2.0**40) if not OPT['force_fb'] else f32(2.0**-39)}
    s_mov_b32 s65, {f32(CSCALE)}""")
    for x in range(4):
        a(f"""s_xor_b32 s{56+x}, s{sTt}, {x}
        s_mul_i32 s{56+x}, s{56+x}, {64*1152}
        s_add_u32 s{56+x}, s{56+x}, s{sRef}""")
    a("""s_min_u32 s4, s56, s57
    s_min_u32 s5, s58, s59""")
    p3_scal(a)
    p3_addr_w(a, vWm3, vWt, t0, t1, t2)
    coff = (48, 0, 96, 0)
    def wfrag(k2):
        r = []
        for ct in range(4):
            for hf in range(2):
                r.append(f"ds_read_b64_tr_b16 {vr(WF+16*k2+4*ct+2*hf,2)}, v{vWc[ct]} offset:{L_WR + (32*k2+4*hf)*256}")
        return r
    def xread(buf):
        r = []
        for k2 in range(2):
            for s in range(2):
                r.append(f"ds_read_b128 {vr(XF[buf]+8*k2+4*s,4)}, v{vXr[2*s+k2]}")
        return r
    xadv = [f"s_add_u32 s{sXm0}, s{sXm0}, 1", f"s_cmp_eq_u32 s{sXm0}, {RX}", f"s_cselect_b32 s{sXm0}, 0, s{sXm0}",
            f"s_cselect_b32 s{sT1}, s{sWk}, s{sWcnt}",
            ] + [f"v_add_u32 v{c}, s{sT1}, v{c}" for c in vXr]
    wadv = [f"s_add_u32 s{sWsrc}, s{sWsrc}, 1", f"s_cmp_eq_u32 s{sWsrc}, {RW}", f"s_cselect_b32 s{sWsrc}, 0, s{sWsrc}",
            f"s_cselect_b32 s{sT2}, s{sWm0}, s{sGk}",
            ] + [f"v_add_u32 v{c}, s{sT2}, v{c}" for c in vWc]
    if OPT.get('noadv'):
        xadv = [''] * 8; wadv = [''] * 8
    a(f"""s_mov_b32 s{sWk}, {(-(RX-1)*8192) & 0xffffffff}
    s_mov_b32 s{sWcnt}, 8192
    s_mov_b32 s{sWm0}, {(-(RW-1)*WSL) & 0xffffffff}
    s_mov_b32 s{sGk}, {WSL}""")
    if OPT.get("rstpos", "late") == "late": reset_flags()
    if OPT.get("pf9", "1") == "1":
        a(f"""s_lshr_b32 s{sT0}, s2, 5
        s_bfe_u32 s{sT1}, s2, {(2 << 16) | 3}
        s_cmp_eq_u32 s{sWv}, 0
        s_cbranch_scc1 {K}_pfx
        s_cmp_eq_u32 s{sWv}, 1
        s_cbranch_scc0 {K}_pfw
        s_lshl_b32 s{sT2}, s{sT1}, 1
        s_sub_u32 s{sT2}, s{sT2}, 1
        s_cselect_b32 s{sT2}, 8, s{sT2}
        s_lshl_b32 s{sT2}, s{sT2}, 7
        s_lshl_b32 s{sT3}, s{sE}, 3
        s_add_u32 s{sT3}, s{sT3}, s{sT0}
        s_mul_i32 s{sT3}, s{sT3}, {32*1152}
        s_add_u32 s{sT2}, s{sT2}, s{sT3}
        v_mul_u32_u24 v75, 1152, v0
        s_mov_b32 exec_hi, 0
        buffer_load_dword v76, v75, s[{sX}:{sX+3}], s{sT2} offen
        s_branch {K}_pfd
        {K}_pfw:
        s_sub_u32 s{sT2}, s{sT0}, 1
        s_cselect_b32 s{sT2}, 8, s{sT2}
        s_lshl_b32 s{sT2}, s{sT2}, 2
        s_add_u32 s{sT2}, s{sT2}, s{sT1}
        s_mul_i32 s{sT2}, s{sT2}, {16*3456}
        s_and_b32 s{sT3}, s{sPr}, 15
        s_mul_i32 s{sT3}, s{sT3}, 72
        s_add_u32 s{sT2}, s{sT2}, s{sT3}
        s_mul_i32 s{sT3}, s{sTH}, 68
        s_add_u32 s{sT2}, s{sT2}, s{sT3}
        v_mul_u32_u24 v75, 1152, v0
        s_mov_b32 exec_hi, 0xffff
        buffer_load_dword v76, v75, s[{sW}:{sW+3}], s{sT2} offen
        {K}_pfd:
        s_mov_b64 exec, -1
        {K}_pfx:""")
    a("s_barrier")
    stamp(a, 1, 30)
    if OPT.get("rstpos", "late") == "afterp": reset_flags()
    for m in xread(0) + xadv + wfrag(0) + wfrag(1): a(m)
    QM, QT = 32, 48
    KF, V0, V1, KT = [80, 84], [88, 92], [96, 100], [56, 60]
    vGl = 26
    TP = 108
    def epi(tt):
        tp = (64, 80)[tt % 2]
        r = []
        for s in range(2):
            b = ACC + 32 * tt + 16 * s
            k_, q_ = tp + 2 * s, tp + 4 + 2 * s
            r += f"""v_cvt_pk_bf16_f32 v{k_}, v{b}, v{b+1}
            v_cvt_pk_bf16_f32 v{k_+1}, v{b+2}, v{b+3}
            v_mul_f32 v{b+4}, s65, v{b+4}
            v_mul_f32 v{b+5}, s65, v{b+5}
            v_mul_f32 v{b+6}, s65, v{b+6}
            v_mul_f32 v{b+7}, s65, v{b+7}
            ds_write_b64 v{vKw}, {vr(k_,2)} offset:{(tt>>1)*BLK + (tt&1)*1024 + s*64}
            v_cvt_pk_bf16_f32 v{q_}, v{b+4}, v{b+5}
            v_cvt_pk_bf16_f32 v{q_+1}, v{b+6}, v{b+7}
            v_cvt_pk_bf16_f32 v{tp+8+2*s}, v{b+8}, v{b+9}
            v_cvt_pk_bf16_f32 v{tp+9+2*s}, v{b+10}, v{b+11}
            ds_write_b64 v{vQw}, {vr(q_,2)} offset:{tt*1024 + s*256}""".split("\n")
        b = ACC + 32 * tt
        r += f"""ds_write_b128 v{vVw}, {vr(tp+8,4)} offset:{4608 + (tt>>1)*BLK + (tt&1)*1216}
        v_mul_f32 v{b+12}, v{vMul}, v{b+12}
        v_mul_f32 v{b+13}, v{vMul}, v{b+13}
        v_mul_f32 v{b+14}, v{vMul}, v{b+14}
        v_mul_f32 v{b+15}, v{vMul}, v{b+15}
        v_cvt_pk_bf16_f32 v{tp+12}, v{b+12}, v{b+13}
        v_cvt_pk_bf16_f32 v{tp+13}, v{b+14}, v{b+15}
        ds_write_b16 v{MA(tt,0)}, v{tp+12}
        ds_write_b16_d16_hi v{MA(tt,1)}, v{tp+12}
        ds_write_b16 v{MA(tt,2)}, v{tp+13}
        ds_write_b16_d16_hi v{MA(tt,3)}, v{tp+13}""".split("\n")
        return r
    NM = 14
    def chunk(last):
        for tt in range(4):
            cur = XF[tt & 1]
            mf = []
            for k2 in range(2):
                for ct in range(4):
                    for s in range(2 if ct < 3 else 1):
                        d = ACC + 32 * tt + 16 * s + 4 * ct
                        w_, x_ = vr(WF + 16 * k2 + 4 * ct, 4), vr(cur + 8 * k2 + 4 * s, 4)
                        A_, B_ = (x_, w_) if ct == 2 else (w_, x_)
                        mf.append(f"v_mfma_f32_16x16x32_bf16 {vr(d,4)}, {A_}, {B_}, {vr(d,4)}")
            fill = {i: [] for i in range(-1, NM)}
            xr = xread((tt + 1) & 1)
            if tt == 0:
                fill[-1].append("s_waitcnt lgkmcnt(8)")
                for i in range(4): fill[i].append(xr[i])
                fill[6].append("s_waitcnt lgkmcnt(4)")
                for i in range(8): fill[(4, 5, 7, 8, 9, 10, 11, 12)[i]].append(xadv[i])
                if last:
                    for i in range(4): fill[i].append(f"v_mov_b32 v{92+i}, 0x3f803f80")
                    fill[13] += ["s_mov_b64 exec, 0xffff", f"ds_write_b128 v{vOnes}, v[92:95] offset:{4608+288}", "s_mov_b64 exec, -1"]
            elif last:
                if tt < 3:
                    for i in range(4): fill[i // 2].append(xr[i])
                    if tt == 1:
                        for i in range(8): fill[2 + i // 3].append(xadv[i])
                e = epi(tt - 1)
                st = (0, 5, 2, 1)[tt]
                per = -(-len(e) // (NM - st))
                for i, m in enumerate(e): fill[st + i // per].append(m)
            elif tt == 3:
                for i in range(4): fill[-1 + (i + 1) // 2].append(xr[i])
                w0, w1 = wfrag(0), wfrag(1)
                lastuse = (1, 3, 5, 6)
                for ct in range(4):
                    fill[lastuse[ct]] += [w0[2 * ct]]; fill[lastuse[ct] + 1] += [w0[2 * ct + 1]]
                    fill[7 + lastuse[ct]] += [w1[2 * ct]]; fill[min(NM - 1, 8 + lastuse[ct])] += [w1[2 * ct + 1]]
                for i in range(8): fill[(2, 3, 4, 5, 7, 8, 9, 10)[i]].append(xadv[i])
                fill[11].append(f"s_sub_u32 s{sIt}, s{sIt}, 1")
            else:
                for i in range(4): fill[i].append(xr[i])
                for i in range(8): fill[4 + i].append(xadv[i])
                if tt == 1:
                    for i in range(4): fill[10 + i].append(wadv[i])
                if tt == 2:
                    for i in range(4): fill[10 + i].append(wadv[4 + i])
            if tt % 2 == 0: a("s_barrier")
            for m in fill[-1]: a(m)
            for i in range(NM):
                if not OPT.get("nomf"): a(mf[i])
                for m in fill[i]: a(m)
            if last:
                if tt == 0: a("s_waitcnt lgkmcnt(1)")
                elif tt == 1: a("s_waitcnt lgkmcnt(9)")
                elif tt == 2: a("s_waitcnt lgkmcnt(0)\ns_barrier")
            elif tt == 3:
                a(f"""s_waitcnt lgkmcnt(15)
                s_cmp_eq_u32 s{sIt}, s{sCnt}
                s_cbranch_scc1 {K}_rst
                {K}_rst_ret:
                s_cmp_lg_u32 s{sIt}, 0""")
            else:
                a("s_waitcnt lgkmcnt(0)")
    a(f"""s_mov_b32 s{sIt}, 8
    s_waitcnt lgkmcnt(0)
    {K}_p1:""")
    chunk(False)
    a(f"s_cbranch_scc1 {K}_p1")
    a("s_waitcnt vmcnt(0)")
    chunk(True)
    stamp(a, 2, 30)
    a("s_nop 1")
    for m in epi(3): a(m)
    S = [128, 144, 160, 176]
    O = [192, 208, 224, 240]
    zo = [f"v_mov_b32 v{O[x]+i}, 0" for x in range(4) for i in range(11)]
    zq = [f"v_mov_b32 v{QT+4*j+i}, 0" for j in range(2) for i in (1, 2)]
    zs = [f"v_mov_b32 v{S[3]+8+i}, 0" for i in range(8)] + [f"v_mov_b32 v{V1[1]+i}, 0" for i in range(4)]
    for m in zo[:22]: a(m)
    a("s_waitcnt lgkmcnt(0)")
    for x in range(4): a(f"ds_read_b128 {vr(QM+4*x,4)}, v{vQr} offset:{1024*x}")
    a("s_barrier")
    stamp(a, 3, 30)
    NB = int(OPT["nb"])
    T2F = OPT.get("t2f", "0") == "1"
    def ldK(t, buf): return f"ds_read_b128 {vr(KF[buf],4)}, v{vKa} offset:{((t//4)%NB)*BLK + (t%4)*1024}"
    def ldV(t, half, buf): return f"ds_read_b128 {vr((V0,V1)[half][buf],4)}, v{vVa} offset:{((t//4)%NB)*BLK + 4608 + (t%4)*1216 + 608*half}"
    def ldT(b=0): return f"ds_read_b128 {vr(KT[b%2],4)}, v{vTa} offset:{(b%NB)*BLK + 4096}"
    def QKM(t, x, s, c="0"): return f"v_mfma_f32_32x32x16_bf16 {vr(s,16)}, {vr(KF[t%2],4)}, {vr(QM+4*x,4)}, {c}"
    def QKT(t, x, s): return f"v_mfma_f32_32x32x4_2b_bf16 {vr(s,32)}, {vr(KT[(t//4)%2]+(t&2),2)}, {vr(QT+2*x+2*(t&1),2)}, {vr(s,32) if not T2F else 0}"
    def PV(half, t, x, s): return f"v_smfmac_f32_32x32x32_bf16 {vr(O[x],16)}, {vr((V0,V1)[half][t%2],4)}, {vr(s+8*half,8)}, v{vIdx}"
    a(ldK(0, 0))
    a(f"ds_read2_b32 {vr(TP,2)}, v{vSqh} offset0:0 offset1:2")
    a(ldT()); a(ldV(0, 0, 0)); a(ldV(0, 1, 0))
    a(f"ds_read_b128 {vr(TP+4,4)}, v{vSq} offset:512")
    HOOKS = [1, 3, 7, 11, 13, 15]
    assert NB % 2 == 0
    for m in zq + zs: a(m)
    a(f"""s_mov_b32 s{sIt}, 0
    s_mov_b32 s{sWk}, {NB*BLK}
    s_mov_b32 s{sWcnt}, {(NB*BLK - RING) & 0xffffffff}
    s_waitcnt lgkmcnt(4)""")
    if not T2F:
        a(QKM(0, 0, S[0]))
        a(f"""v_mov_b32 v{QT}, v{TP}
    v_mov_b32 v{QT+3}, v{TP}
    v_mov_b32 v{QT+4}, v{TP+1}
    v_mov_b32 v{QT+7}, v{TP+1}""")
        a(QKM(0, 1, S[1]))
        for m in zo[22:27]: a(m)
        a(QKM(0, 2, S[2]))
        for m in zo[27:32]: a(m)
        a("s_waitcnt lgkmcnt(3)")
        a(QKT(0, 0, S[0]))
        for m in zo[32:]: a(m)
        a("s_nop 6")
        a("s_waitcnt lgkmcnt(0)")
    else:
        a(f"""v_mov_b32 v{QT}, v{TP}
        v_mov_b32 v{QT+3}, v{TP}
        v_mov_b32 v{QT+4}, v{TP+1}
        v_mov_b32 v{QT+7}, v{TP+1}
        s_waitcnt lgkmcnt(3)""")
        a(QKT(0, 0, S[0]))
        for m in zo[22:40]: a(m)
        a(QKM(0, 0, S[0], vr(S[0], 16)))
        for m in zo[40:]: a(m)
        a(QKM(0, 1, S[1], vr(S[1], 16)))
        a("s_nop 5")
        a("s_waitcnt lgkmcnt(0)")
    if OPT.get("cprio"): a(f"s_setprio {OPT['cprio']}")
    hookblks = []
    a(".p2align 6")
    a(f"{K}_att:")
    pos = tuple(int(z) for z in OPT.get("pos", "2.5.10.14.22.26.30" if not T2F else "2.5.13.18.21.26.30").split("."))
    NIT = 16 // NB
    SB = lambda u: S[u % 4]
    for u in range(0, 16 * NB, 2):
        t, x = divmod(u, 4)
        blk, ub = divmod(u, 16)
        ins = {i: [] for i in range(33)}
        ins[pos[0]].append(PV(1, *divmod(u - 1, 4), SB(u - 1)))
        if not T2F:
            ins[pos[1]].append(QKM(*divmod(u + 3, 4), SB(u + 3)))
            ins[pos[2]].append(PV(0, t, x, SB(u)))
            ins[pos[3]].append(QKT(*divmod(u + 2, 4), SB(u + 2)))
            ins[pos[4]].append(PV(1, t, x, SB(u)))
            ins[pos[5]].append(PV(0, t, x + 1, SB(u + 1)))
            ins[pos[6]].append(QKM(*divmod(u + 4, 4), SB(u + 4)))
        else:
            ins[pos[1]].append(QKT(*divmod(u + 2, 4), SB(u + 2)))
            ins[pos[2]].append(PV(0, t, x, SB(u)))
            ins[pos[3]].append(PV(1, t, x, SB(u)))
            ins[pos[4]].append(QKM(*divmod(u + 2, 4), SB(u + 2), vr(SB(u + 2), 16)))
            ins[pos[5]].append(PV(0, t, x + 1, SB(u + 1)))
            ins[pos[6]].append(QKM(*divmod(u + 3, 4), SB(u + 3), vr(SB(u + 3), 16)))
        if x == 0:
            ins[pos[0]].append(ldV(t + 1, 1, (t + 1) % 2))
            ins[pos[1]].append(ldK(t + 1, (t + 1) % 2))
            ins[pos[2]].append(ldV(t + 1, 0, (t + 1) % 2))
            if ub == 12: ins[pos[3]].append(ldT(blk + 1))
            ins[pos[5]].append("s_waitcnt lgkmcnt(0)")
        if ub == 10:
            if blk == NB - 1:
                ins[pos[0]].append(f"s_cmp_eq_u32 s{sIt}, {NIT//2 - 1}")
                ins[pos[1]].append(f"s_cselect_b32 s{sT0}, s{sWcnt}, s{sWk}")
                ins[pos[2]].append(f"v_add_u32 v{vKa}, s{sT0}, v{vKa}")
                ins[pos[3]].append(f"v_add_u32 v{vTa}, s{sT0}, v{vTa}")
                ins[pos[4]].append(f"v_add_u32 v{vVa}, s{sT0}, v{vVa}")
            its = [it for it in range(NIT) if it * NB + blk in HOOKS]
            if len(its) == NIT and (not OPT["stamp"] or OPT.get("light")):
                ins[pos[6]].append("s_barrier")
            elif its:
                ins[pos[6]] += [f"s_bitcmp1_b32 {sum(1 << i for i in its)}, s{sIt}", f"s_cbranch_scc1 {K}_hook{blk}", f"{K}_hook_ret{blk}:"]
                hookblks.append(blk)
        if u == 16 * NB - 2:
            ins[pos[5]].append(f"s_add_u32 s{sIt}, s{sIt}, 1")
            ins[pos[6]].append(f"s_cmp_lt_u32 s{sIt}, {NIT}")
        for i in range(32):
            for m in ins[i]: a(m)
            a(f"v_exp_f32 v{SB(u)+i}, v{SB(u)+i}")
    if OPT.get("light"):
        a(f"""s_memtime s[82:83]
        s_memrealtime s[80:81]
        s_add_u32 m0, s{sIt}, 15
        s_waitcnt lgkmcnt(0)
        v_writelane_b32 v30, s80, m0
        v_writelane_b32 v31, s82, m0
        s_cmp_lt_u32 s{sIt}, {NIT}""")
    a(f"s_cbranch_scc1 {K}_att")
    a("s_nop 1")
    a(PV(1, 3, 3, S[3]))
    stamp(a, 8, 30)
    CC = [5, 6, 7, 8]
    R8 = [64, 68, 72, 76, 104, 108, 112, 116, 120]
    RL = list(range(32, 64, 4)) + list(range(80, 104, 4)) + [124] + list(range(128, 176, 4))
    creg = lambda s, ct: R8[s] if ct == 8 else RL[3 * s + ct - 5]
    a('s_nop 8')
    l_ = [O[x] + 10 for x in range(4)]
    tq = [2, 3, 4, 5]
    a(f"""v_add_f32 v2, v{l_[0]}, v{l_[1]}
    v_min3_f32 v3, v{l_[0]}, v{l_[1]}, v{l_[2]}
    v_add_f32 v2, v2, v{l_[2]}
    s_waitcnt lgkmcnt(0)
    v_add_f32 v2, v2, v{l_[3]}
    v_min_f32 v3, v3, v{l_[3]}
    v_cmp_ge_f32 s[{sEx}:{sEx+1}], s64, v2
    v_cmp_le_f32 vcc, s61, v3
    s_nop 1
    s_and_b32 vcc_lo, vcc_lo, s{sEx}
    s_cmp_eq_u32 vcc_lo, -1
    s_cbranch_scc0 {K}_fbchk
    {K}_fbdone:""")
    cp = [f"ds_read_b128 {vr(creg(s_,ct),4)}, v{vCp} offset:{1024*(3*s_+i)}" for s_ in range(9) for i, ct in enumerate(CL)]
    for x in range(4): a(f"v_mov_b32 v{tq[x]}, v{O[x]+10}")
    a(cp.pop(0))
    for x in range(4): a(f"v_permlane32_swap_b32 v{O[x]+10}, v{tq[x]}")
    a(cp.pop(0))
    for x in range(4): a(f"v_mul_f32 v{tq[x]}, v{O[x]+10}, v{vGl+x}")
    for x in range(4): a(f"v_rcp_f32 v{tq[x]}, v{tq[x]}")
    a(cp.pop(0))
    for x in range(4):
        o = O[x]
        sel = "op_sel_hi:[1,0]" if x % 2 == 0 else "op_sel:[0,1]"
        for i in range(0, 10, 2): a(f"v_pk_mul_f32 {vr(o+i,2)}, {vr(o+i,2)}, {vr(tq[x & 2],2)} {sel}")
        for i in range(4): a(f"v_cvt_pk_bf16_f32 v{o+12+i}, v{o+2*i}, v{o+2*i+1}")
        a(f"""v_cvt_pk_bf16_f32 v{o+11}, v{o+8}, v{o+9}
        buffer_store_dwordx4 {vr(o+12,4)}, v{vSt}, s[{sWS}:{sWS+3}], s{56+x} offen sc1""")
        if x % 2 == 1:
            a(cp.pop(0))
            a(f"""v_permlane32_swap_b32 v{O[x-1]+11}, v{o+11}
            buffer_store_dword v{O[x-1]+11}, v{vStt}, s[{sWS}:{sWS+3}], s{4+(x>>1)} offen offset:1024 sc1""")
    for m in cp: a(m)
    stamp(a, 9, 30)
    a(f"""v_mov_b32 v6, {L_SYNC + 20}
    v_mov_b32 v7, 1
    s_setprio {OPT.get("p3prio", 2)}
    s_mov_b64 exec, 1
    s_waitcnt lgkmcnt(0)
    ds_add_u32 v6, v7
    s_mov_b64 exec, -1""")
    vOm, vOt, vRd = [2, 8], 3, 4
    p3_addr_o(a, vOm, vOt, vRd, [9, 10], 5, 11, 12, 13)
    for i in range(32): a(f"v_mov_b32 v{224+i}, 0")
    stamp(a, 10, 30)
    if OPT.get("drain"):
        a("s_waitcnt vmcnt(0)")
        stamp(a, 12, 30)
    p3_comp(a, CC, creg, 224, 176, vOm, vOt, vRd, 5, [9, 10])
    stamp(a, 11, 30)
    a(f"{K}_final:")
    final_reduce(a, K, 30)
    a(f"{K}_end:")
    a("s_endpgm")
    a(f"""{K}_rst:
    s_lshl_b32 s{sT0}, s{sPr}, 2
    v_mov_b32 v28, s{sT0}
    v_mov_b32 v29, 1
    s_mov_b64 exec, 1
    s_waitcnt vmcnt(0)
    buffer_atomic_add v29, v28, s[{sD}:{sD+3}], 0 offen
    s_mov_b64 exec, -1
    s_branch {K}_rst_ret""")
    for blk in hookblks:
        a(f"{K}_hook{blk}:")
        if 1 % NB == blk:
            a(f"""s_cmp_eq_u32 s{sIt}, {1 // NB}
            s_cbranch_scc0 {K}_hkg
            v_lshlrev_b32 v{vGl}, 16, v{TP+4}
            v_lshlrev_b32 v{vGl+1}, 16, v{TP+5}
            v_lshlrev_b32 v{vGl+2}, 16, v{TP+6}
            v_lshlrev_b32 v{vGl+3}, 16, v{TP+7}""")
            for x in range(4): a(f"v_mul_f32 v{vGl+x}, s60, v{vGl+x}")
            for x in range(4): a(f"v_exp_f32 v{vGl+x}, v{vGl+x}")
            a("s_nop 0")
            for x in range(4): a(f"v_add_f32 v{vGl+x}, 1.0, v{vGl+x}")
            for x in range(4):
                for i in range(11, 16): a(f"v_mov_b32 v{O[x]+i}, 0")
            a(f"{K}_hkg:")
        if OPT["stamp"]:
            for hb, i_ in ((1, 4), (3, 6)):
                if hb % NB == blk:
                    a(f"s_cmp_eq_u32 s{sIt}, {hb // NB}\ns_cbranch_scc0 {K}_hk{hb}")
                    stamp(a, i_, 30); a("s_barrier"); stamp(a, i_ + 1, 30); a(f"s_branch {K}_hook_ret{blk}")
                    a(f"{K}_hk{hb}:")
        if 13 % NB == blk:
            a(f"""s_cmp_eq_u32 s{sIt}, {13 // NB}
            s_cbranch_scc0 {K}_hkb{blk}""")
            if not OPT.get('x_no8'): p3_wo_loads(a, [8], creg, vWm3, vWt)
            a(f"{K}_hkb{blk}:")
        a(f"""s_barrier
        s_branch {K}_hook_ret{blk}""")
    FQ = S[3]
    a(f"{K}_fbchk:")
    for x in range(4):
        a(f"""v_cmp_le_f32 vcc, s61, v{O[x]+10}
        v_cmp_ge_f32 s[{sEx}:{sEx+1}], s64, v{O[x]+10}
        s_nop 1
        s_and_b32 vcc_lo, vcc_lo, s{sEx}
        s_cmp_eq_u32 vcc_lo, -1
        s_cbranch_scc0 {K}_fb{x}
        {K}_fbret{x}:""")
    a(f"s_branch {K}_fbdone")
    for x in range(4):
        a(f"{K}_fb{x}:")
        for i in range(4): a(f"v_mov_b32 v{FQ+i}, v{QM+4*x+i}")
        for i in range(4): a(f"v_mov_b32 v{FQ+4+i}, 0")
        a(f"""s_mov_b32 {'exec_hi' if x % 2 == 0 else 'exec_lo'}, 0
        v_mov_b32 v{FQ+4}, v{QT+4*(x>>1)}
        v_mov_b32 v{FQ+7}, v{QT+4*(x>>1)}
        s_mov_b64 exec, -1""")
        a(f"s_call_b64 s[{sRet}:{sRet+1}], {K}_slow")
        for i in range(16): a(f"v_mov_b32 v{O[x]+i}, v{S[2]+i}")
        a(f"s_branch {K}_fbret{x}")
    a(f"{K}_slow:")
    vb, vc, vm = 11, 12, 13
    sA, sB = sWsrc, sWm0
    t0 = 9
    a(f"""v_lshlrev_b32 v{t0}, 4, v0
    v_and_b32 v{vm}, 31, v0
    v_lshlrev_b32 v{vb}, 4, v{vm}
    v_lshrrev_b32 v{vc}, 5, v0
    v_mul_u32_u24 v{vc}, 304, v{vc}
    v_lshl_add_u32 v{vc}, v{vm}, 4, v{vc}
    v_cmp_lt_u32 vcc, 18, v{vm}
    v_mov_b32 v{vm}, 0x40000000
    s_nop 1
    v_cndmask_b32 v{vc}, v{vc}, v{vm}, vcc""")
    def slow_qk(t, c):
        a(f"""v_mfma_f32_32x32x16_bf16 {vr(S[0],16)}, {vr(KF[0],4)}, {vr(FQ,4)}, {c}
        v_mfma_f32_32x32x8_bf16 {vr(S[0],16)}, {vr(KT[0]+(t&2),2)}, {vr(FQ+4+2*(t&1),2)}, {vr(S[0],16)}
        s_nop 15""")
    def slow_next(lbl):
        a(f"""s_add_u32 s{sA}, s{sA}, {BLK}
        s_sub_u32 s{sIt}, s{sIt}, 1
        s_cmp_lg_u32 s{sIt}, 0
        s_cbranch_scc1 {lbl}""")
    a(f"""v_mov_b32 v{vm}, 0xff800000
    s_mov_b32 s{sA}, s{sKVg}
    s_mov_b32 s{sIt}, 16
    {K}_sl1:
    s_add_u32 s{sB}, s{sA}, 4096
    buffer_load_dwordx4 {vr(KT[0],4)}, v{vb}, s[{sWS}:{sWS+3}], s{sB} offen sc1""")
    for t in range(4):
        a(f"""buffer_load_dwordx4 {vr(KF[0],4)}, v{t0}, s[{sWS}:{sWS+3}], s{sA} offen offset:{1024*t} sc1
        s_waitcnt vmcnt(0)""")
        slow_qk(t, "0")
        for i in range(8): a(f"v_max3_f32 v{vm}, v{S[0]+2*i}, v{S[0]+2*i+1}, v{vm}")
    slow_next(f"{K}_sl1")
    a(f"""v_mov_b32 v{S[0]}, v{vm}
    s_nop 1
    v_permlane32_swap_b32 v{vm}, v{S[0]}
    s_nop 1
    v_max_f32 v{vm}, v{vm}, v{S[0]}""")
    for i in range(16):
        a(f"v_sub_f32 v{S[1]+i}, 0, v{vm}")
        a(f"v_mov_b32 v{S[2]+i}, 0")
    a(f"""s_mov_b32 s{sA}, s{sKVg}
    s_mov_b32 s{sIt}, 16
    {K}_sl2:
    s_add_u32 s{sB}, s{sA}, 4096
    buffer_load_dwordx4 {vr(KT[0],4)}, v{vb}, s[{sWS}:{sWS+3}], s{sB} offen sc1""")
    for t in range(4):
        a(f"""buffer_load_dwordx4 {vr(KF[0],4)}, v{t0}, s[{sWS}:{sWS+3}], s{sA} offen offset:{1024*t} sc1
        s_add_u32 s{sB}, s{sA}, {4608+1216*t}
        buffer_load_dwordx4 {vr(V0[0],4)}, v{vc}, s[{sWS}:{sWS+3}], s{sB} offen sc1
        buffer_load_dwordx4 {vr(V1[0],4)}, v{vc}, s[{sWS}:{sWS+3}], s{sB} offen offset:608 sc1
        s_waitcnt vmcnt(0)""")
        slow_qk(t, vr(S[1], 16))
        for i in range(16): a(f"v_exp_f32 v{S[0]+i}, v{S[0]+i}")
        a(f"""s_nop 3
        v_smfmac_f32_32x32x32_bf16 {vr(S[2],16)}, {vr(V0[0],4)}, {vr(S[0],8)}, v{vIdx}
        v_smfmac_f32_32x32x32_bf16 {vr(S[2],16)}, {vr(V1[0],4)}, {vr(S[0]+8,8)}, v{vIdx}
        s_nop 7""")
    slow_next(f"{K}_sl2")
    a(f"""s_nop 15
    s_setpc_b64 s[{sRet}:{sRet+1}]""")

def main(out):
    ka = f"{NAME}_kernel"
    a = Asm(); kernel(a)
    t = f"""; gated mix of two MHA blocks (both on A_x): one fused kernel, written with the generator gen/gen_final.py
; @launch grid=(256,1,1) block=(512,1,1) lds={LDS_BYTES}
;
; Workgroup = (pair of adjacent heads of one branch, 256 tokens); waves 0-3 compute, waves 4-7 load / hand off.
;     P = exp2(S), O^T/l accumulated by a sparse MFMA that reads the high halves of the f32 P registers;
.amdgcn_target "amdgcn-amd-amdhsa--gfx950"
.text
.globl {ka}
.p2align 8
.type {ka},@function
{ka}:
{a.text()}.section .rodata,"a"
.p2align 6
.amdhsa_kernel {ka}
  .amdhsa_next_free_vgpr 256
  .amdhsa_next_free_sgpr 102
  .amdhsa_accum_offset 256
  .amdhsa_group_segment_fixed_size 0
  .amdhsa_kernarg_size 80
  .amdhsa_user_sgpr_count 2
  .amdhsa_user_sgpr_kernarg_segment_ptr 1
  .amdhsa_system_sgpr_workgroup_id_x 1
.end_amdhsa_kernel
"""
    open(out, "w").write(t)

if __name__ == "__main__":
    for kv in sys.argv[2:]:
        k, v = kv.split("=")
        OPT[k] = {"True": True, "False": False}.get(v, v)
    main(sys.argv[1])
```

```python
import sys, struct

NAME = "gated_mix__mha_block__mha_block__prompt"
def f32(x): return "0x%08x" % struct.unpack("<I", struct.pack("<f", x))[0]
CSCALE = (18 ** -0.5) * 1.4426950408889634
LOG2E = 1.4426950408889634

BLK = 9472
KVH = 16 * BLK
RING = 8 * BLK
WS_O = 0x0A00000
WS_WOM = 0x0F00000
WS_WOT = 0x1080000
WS_F = 0x10C0000
WS_STAMP = 0x1100000
WS_SIZE = 0x1200000
SENT = 0xffffffff
L_WR = 0
WSL = 16384
RW = 3
L_XR = 98304
L_SCR = 49152
L_GT = 155648
L_SYNC = L_GT + 3 * 2048 + 1536
L_WO = 151552
LDS_BYTES = 163840
RS = 592
STRAD = sum(1 << p for p in range(32) if (72 * (p & 15)) % 128 > 56)
L_OA = 6 * BLK
L_OB = 94720
PLANE = 32 * RS

class Asm:
    def __init__(self): self.l = []
    def __call__(self, s):
        for x in s.strip("\n").split("\n"):
            x = x.strip()
            if not x: continue
            self.l.append(x if x.endswith(":") or x.startswith(";") else "    " + x)
    def text(self): return "\n".join(self.l) + "\n"

def vr(a, n): return f"v[{a}:{a+n-1}]"
OPT = dict(force_fb=False, stamp=False, rx="7", txor="1", nb="4", cprio="3", pf9="0", rf="1.2.2.2.1", tx4="5")

def srd(a, d, lo, hi, size):
    a(f"""s_mov_b32 s{d}, s{lo}
    s_and_b32 s{d+1}, s{hi}, 0xffff
    s_mov_b32 s{d+2}, {size}
    s_mov_b32 s{d+3}, 0x00020000""")

sX, sW, sWo, sG, sD, sWS, sOut = 8, 12, 16, 20, 24, 28, 84
sWv, sPr, sE, sHd, sRot = 32, 33, 34, 35, 36
sT0, sT1, sT2, sT3 = 37, 38, 39, 40
sRef, sCnt, sKo, sXb, sRing, sIt, sKVg, sSpin, sW8 = 41, 42, 43, 44, 45, 46, 47, 48, 49
sRet, sEx = 50, 52
sWsrc, sWm0, sWk, sWcnt, sXm0, sGk, sTt, sBH = 54, 55, 62, 63, 76, 77, 78, 79
sP3T, sP3C, sOb, sWmb, sWtb, sHH, sTH, sOtb = 88, 89, 90, 91, 92, 93, 94, 95
SV = 254
sLA, sLB = 74, 75
sGO = [66, 67, 68, 69]
sGW = [70, 71, 72, 73]

def stamp(a, idx, vreg):
    if not OPT["stamp"]: return
    a(f"""s_memrealtime s[80:81]
    s_memtime s[82:83]
    s_waitcnt lgkmcnt(0)
    v_writelane_b32 v{vreg}, s80, {idx}
    v_writelane_b32 v{vreg+1}, s82, {idx}""")
def sstamp(a, k):
    if not OPT["stamp"]: return
    a(f"""s_memrealtime s[80:81]
    s_waitcnt lgkmcnt(0)
    s_mov_b32 s{96+k}, s80""")
def stamp_out(a, vreg, vt=1, mask=None):
    if not OPT["stamp"]: return
    a(f"""s_lshl_b32 s80, s2, 3
    s_add_u32 s80, s80, s{sW8}
    s_lshl_b32 s80, s80, 8
    s_add_u32 s80, s80, {WS_STAMP}
    v_lshlrev_b32 v{vt}, 3, v0
    s_mov_b32 exec_hi, 0""")
    if mask is not None: a(f"s_mov_b32 exec_lo, {mask}")
    a(f"""buffer_store_dwordx2 v[{vreg}:{vreg+1}], v{vt}, s[{sWS}:{sWS+3}], s80 offen
    s_mov_b64 exec, -1""")

def p3_addr_w(a, vWm, vWt, t0, t1, t2):
    a(f"""v_and_b32 v{t0}, 15, v0
    v_lshrrev_b32 v{t1}, 5, v0
    v_bfe_u32 v{t2}, v0, 4, 1
    v_mul_u32_u24 v{vWm}, 4608, v{t1}
    v_lshl_add_u32 v{vWm}, v{t2}, 8, v{vWm}
    v_lshl_add_u32 v{vWm}, v{t0}, 4, v{vWm}
    v_lshrrev_b32 v{t1}, 4, v0
    v_add_u32 v{t2}, s{sP3C}, v{t1}
    v_and_b32 v{t2}, 3, v{t2}
    v_mul_u32_u24 v{vWt}, {4*2304}, v{t2}
    v_lshl_add_u32 v{vWt}, v{t0}, 4, v{vWt}""")
def p3_addr_o(a, vOm, vOt, vRd, vVa, vSy, t0, t1, t2):
    a(f"""v_and_b32 v{t0}, 15, v0
    v_lshrrev_b32 v{t1}, 5, v0
    v_bfe_u32 v{t2}, v0, 4, 1
    v_mul_u32_u24 v{vOm[0]}, 1152, v{t1}
    v_lshl_add_u32 v{vOm[0]}, v{t2}, 9, v{vOm[0]}
    v_lshl_add_u32 v{vOm[0]}, v{t0}, 4, v{vOm[0]}
    v_add_u32 v{vOm[1]}, s{sLB}, v{vOm[0]}
    v_add_u32 v{vOm[0]}, s{sLA}, v{vOm[0]}
    s_sub_u32 s{sT3}, s{sLB}, s{sLA}
    v_mul_lo_u32 v{vOt}, s{sT3}, v{t1}
    v_add_u32 v{vOt}, s{sLA}, v{vOt}
    v_mul_u32_u24 v{t2}, 4608, v{t2}
    v_add_u32 v{vOt}, v{vOt}, v{t2}
    v_lshl_add_u32 v{vOt}, v{t0}, 2, v{vOt}
    v_lshrrev_b32 v{t1}, 4, v0
    v_mul_u32_u24 v{vRd}, {RS}, v{t0}
    v_lshl_add_u32 v{vRd}, v{t1}, 4, v{vRd}
    s_cmp_eq_u32 s{sWv}, 3
    s_cselect_b32 s{sT3}, 4, s{sWv}
    s_mul_i32 s{sT3}, s{sT3}, {PLANE}
    v_add_u32 v{vRd}, s{sT3}, v{vRd}
    v_mul_u32_u24 v{vVa[0]}, 1152, v{t1}
    v_lshl_add_u32 v{vVa[0]}, v{t0}, 3, v{vVa[0]}
    v_add_u32 v{vVa[0]}, 1024, v{vVa[0]}
    v_add_u32 v{vVa[1]}, s{sLB}, v{vVa[0]}
    v_add_u32 v{vVa[0]}, s{sLA}, v{vVa[0]}
    s_lshl_b32 s{sT3}, s{sWv}, 2
    s_add_u32 s{sT3}, s{sT3}, {L_SYNC + 32}
    v_mov_b32 v{vSy}, s{sT3}""")
def p3_scal(a):
    a(f"""s_and_b32 s{sP3T}, s2, 7
    s_lshr_b32 s{sT0}, s2, 5
    s_lshl_b32 s{sT0}, s{sT0}, 3
    s_add_u32 s{sP3T}, s{sP3T}, s{sT0}
    s_lshr_b32 s{sP3C}, s2, 3
    s_and_b32 s{sP3C}, s{sP3C}, 3
    s_lshl_b32 s{sOb}, s{sP3T}, 6
    s_lshl_b32 s{sT3}, s{sWv}, 2
    s_add_u32 s{sOb}, s{sOb}, s{sT3}
    s_mul_i32 s{sOb}, s{sOb}, 1152
    s_add_u32 s{sOb}, s{sOb}, {WS_O}
    s_lshl_b32 s{sWmb}, s{sP3C}, 6
    s_add_u32 s{sWmb}, s{sWmb}, s{sT3}
    s_mul_i32 s{sWmb}, s{sWmb}, 4608
    s_add_u32 s{sWmb}, s{sWmb}, {WS_WOM}
    s_lshl_b32 s{sWtb}, s{sP3C}, 4
    s_add_u32 s{sWtb}, s{sWtb}, s{sWv}
    s_mul_i32 s{sWtb}, s{sWtb}, 2304
    s_add_u32 s{sWtb}, s{sWtb}, {WS_WOT}
    s_mul_i32 s{sLA}, s{sHH}, {RING}
    s_mul_i32 s{sT3}, s{sTH}, 9216
    s_add_u32 s{sLA}, s{sLA}, s{sT3}
    s_add_u32 s{sLA}, s{sLA}, {L_OA}
    s_mul_i32 s{sLB}, s{sWv}, 9216
    s_add_u32 s{sLB}, s{sLB}, {L_OB}""")
    for g in range(4):
        a(f"""s_add_u32 s{sT3}, s{sP3C}, {g}
        s_and_b32 s{sT3}, s{sT3}, 3
        s_mul_i32 s{sGO[g]}, s{sT3}, {16*1152}
        s_add_u32 s{sGO[g]}, s{sGO[g]}, s{sOb}
        s_mul_i32 s{sGW[g]}, s{sT3}, {16*4608}
        s_add_u32 s{sGW[g]}, s{sGW[g]}, s{sWmb}""")
def p3_wo_loads(a, cts, reg, vWm, vWt, steps=range(9)):
    for s in range(8):
        if s not in steps: continue
        a(f"s_add_u32 s{sT3}, s{sGW[s>>1]}, {2*(s&1)*4608 + 512*cts[0]}")
        for i, ct in enumerate(cts):
            a(f"buffer_load_dwordx4 {vr(reg(s,ct),4)}, v{vWm}, s[{sWS}:{sWS+3}], s{sT3} offen offset:{512*i} sc1")
    for ct in (cts if 8 in steps else []):
        a(f"buffer_load_dwordx4 {vr(reg(8,ct),4)}, v{vWt}, s[{sWS}:{sWS+3}], s{sWtb} offen offset:{256*ct} sc1")
def p3_oread(a, g, OF, vOm):
    for k in range(2):
        for th in range(2):
            a(f"ds_read_b128 {vr(OF+8*k+4*th,4)}, v{vOm[g>>1]} offset:{4608*(g&1) + 2304*k + 256*th}")
def p3_mf(a, cts, reg, AC, st, o):
    for i, ct in enumerate(cts):
        for th in range(2):
            d = AC + 8 * i + 4 * th
            a(f"v_mfma_f32_16x16x32_bf16 {vr(d,4)}, {vr(reg(st,ct),4)}, {vr(o+4*th,4)}, {vr(d,4)}")
def p3_tail(a, cts, reg, AC, OF, vOt, vRd):
    for th in range(2):
        for i in range(4):
            a(f"ds_read_b32 v{OF+4*th+i}, v{vOt} offset:{1152*i + 1024 + 64*th}")
    final_addr(a)
    a("s_waitcnt lgkmcnt(0)")
    p3_mf(a, cts, reg, AC, 8, OF)
    sstamp(a, 5)
    a("s_nop 7")
    for i, ct in enumerate(cts):
        for th in range(2):
            a(f"ds_write_b128 v{vRd}, {vr(AC+8*i+4*th,4)} offset:{16*th*RS + 64*ct}")
def p3_hint_addr(a, OF):
    vHa, vE4 = OF + 21, OF + 22
    if OPT.get("wide", "0") == "1":
        a(f"""v_and_b32 v1, 15, v0
        v_lshl_add_u32 v1, v1, 2, s{sP3C}
        v_lshlrev_b32 v{vHa}, 7, v1
        v_lshrrev_b32 v1, 4, v0""")
    else:
        a(f"""v_and_b32 v1, 3, v0
        v_mul_u32_u24 v{vHa}, 1152, v1
        v_add_u32 v{vHa}, 1024, v{vHa}
        v_bfe_u32 v1, v0, 2, 2""")
    a(f"""v_add_u32 v1, s{sP3C}, v1
    v_and_b32 v1, 3, v1
    v_mul_u32_u24 v1, {16*1152}, v1
    v_add_u32 v{vHa}, v{vHa}, v1
    v_mov_b32 v{vE4}, {L_SYNC + 20}""")
def p3_helper(a, cts, reg, AC, OF, vOm, vOt, vRd, vL16, vVa, vSy, slp):
    L = "h3"
    WIDE = OPT.get("wide", "0") == "1"
    sDone = sCnt
    def dma(g):
        lb = (sLA, sLB)[g >> 1]
        a(f"""s_add_u32 m0, s{lb}, {4608*(g&1)}
        s_add_u32 s{sT3}, s{sGO[g]}, 4096""")
        for i in range(4):
            a(f"buffer_load_dwordx4 v{vL16}, s[{sWS}:{sWS+3}], s{sGO[g]} offen offset:{1024*i} sc1 lds")
        a(f"""s_add_u32 m0, s{lb}, {4608*(g&1) + 4096}
        s_mov_b32 exec_hi, 0
        buffer_load_dwordx4 v{vL16}, s[{sWS}:{sWS+3}], s{sT3} offen sc1 lds
        s_mov_b64 exec, -1""")
    sFly, sLand, sTry, sBlk_ = sWk, sWcnt, sKo, sXb
    vH, vHa, vE4 = OF + 18, OF + 21, OF + 22
    a(f"""s_mov_b32 s{sSpin}, 60000
    s_mov_b32 s{sIt}, {SENT}
    s_mov_b32 s{sDone}, 0
    s_mov_b32 s{sFly}, 0
    s_mov_b32 s{sLand}, 0
    s_mov_b32 s{sBlk_}, 12
    {L}_round:
    s_mov_b32 exec_lo, {0x01ff01ff if WIDE else 0xffff}
    s_mov_b32 exec_hi, {0x01ff01ff if WIDE else 0}
    buffer_load_dword v{vH}, v{vHa}, s[{sWS}:{sWS+3}], s{sOb} offen sc1
    s_mov_b64 exec, -1
    ds_read_b32 v1, v{vE4}
    s_cmp_eq_u32 s{sFly}, 0
    s_cbranch_scc1 {L}_nofly
    s_or_b32 s{sLand}, s{sLand}, s{sFly}
    s_waitcnt vmcnt(1)
    v_mov_b32 v{vH+1}, s{sLand}
    ds_write_b32 v{vSy}, v{vH+1}
    {L}_nofly:
    s_mov_b32 s{sTry}, s{sFly}
    s_waitcnt lgkmcnt(0)
    v_readfirstlane_b32 s{sT0}, v1
    s_cmp_ge_u32 s{sT0}, 4
    s_cselect_b32 s{sBlk_}, 0, s{sBlk_}
    s_or_b32 s{sT1}, s{sDone}, s{sTry}
    s_cmp_eq_u32 s{sT1}, 15
    s_mov_b32 s{sFly}, 0
    s_cbranch_scc1 {L}_work""")
    if int(OPT.get("spec", 0)):
        a(f"""s_bcnt1_i32_b32 s{sT0}, s{sT1}
        s_mov_b32 vcc_lo, -1
        s_cmp_ge_u32 s{sT0}, {4 - int(OPT["spec"])}
        s_cselect_b32 s{sT0}, s{sBlk_}, 1
        s_cmp_eq_u32 s{sT0}, 0
        s_cbranch_scc1 {L}_spec""")
    a(f"""s_or_b32 s{sT1}, s{sT1}, s{sBlk_}
    s_waitcnt vmcnt(0)
    v_cmp_ne_u32 vcc, s{sIt}, v{vH}
    {L}_spec:""")
    for g in range(4):
        a(f"""s_bitcmp1_b32 s{sT1}, {g}
        s_cbranch_scc1 {L}_l{g}
        s_bfe_u32 s{sT0}, {("vcc_lo", "vcc_hi")[g >> 1] if WIDE else "vcc_lo"}, {((9 << 16) | (16 * (g & 1))) if WIDE else ((4 << 16) | (4 * g))}
        s_cmp_eq_u32 s{sT0}, {0x1ff if WIDE else 15}
        s_cbranch_scc0 {L}_l{g}
        s_bitset1_b32 s{sFly}, {g}""")
        dma(g)
        a(f"{L}_l{g}:")
    a(f"{L}_work:")
    for g in range(4):
        a(f"""s_bitcmp1_b32 s{sTry}, {g}
        s_cbranch_scc0 {L}_n{g}""")
        p3_check(a, g, OF, vOm, vVa)
        a(f"""s_cbranch_vccnz {L}_n{g}
        s_bitset1_b32 s{sDone}, {g}""")
        stamp(a, 27 + g, SV)
        p3_mf(a, cts, reg, AC, 2 * g, OF)
        p3_mf(a, cts, reg, AC, 2 * g + 1, OF + 8)
        a(f"{L}_n{g}:")
    a(f"""s_cmp_eq_u32 s{sDone}, 15
    s_cbranch_scc1 {L}_done
    s_sub_u32 s{sSpin}, s{sSpin}, 1
    s_cmp_lt_i32 s{sSpin}, 0
    s_cbranch_scc1 {L}_done
    s_or_b32 s{sT0}, s{sFly}, s{sTry}
    s_cbranch_scc1 {L}_round
    s_sleep {slp}
    s_branch {L}_round
    {L}_done:
    s_waitcnt vmcnt(0)""")
    p3_tail(a, cts, reg, AC, OF, vOt, vRd)
def p3_check(a, g, OF, vOm, vVa):
    p3_oread(a, g, OF, vOm)
    a(f"""ds_read_b64 {vr(OF+16,2)}, v{vVa[g>>1]} offset:{4608*(g&1)}
    s_waitcnt lgkmcnt(3)
    v_max3_u32 v1, v{OF}, v{OF+1}, v{OF+2}
    v_max3_u32 v1, v{OF+3}, v{OF+4}, v1
    v_max3_u32 v1, v{OF+5}, v{OF+6}, v1
    s_waitcnt lgkmcnt(0)
    v_max3_u32 v1, v{OF+7}, v{OF+8}, v1
    v_max3_u32 v1, v{OF+9}, v{OF+10}, v1
    v_max3_u32 v1, v{OF+11}, v{OF+12}, v1
    v_max3_u32 v1, v{OF+13}, v{OF+14}, v1
    v_max3_u32 v1, v{OF+15}, v{OF+16}, v1
    v_max_u32 v1, v{OF+17}, v1
    v_cmp_eq_u32 vcc, s{sIt}, v1
    s_nop 1""")
def p3_comp(a, cts, reg, AC, OF, vOm, vOt, vRd, vSy, vVa):
    L = "c3"
    sDone = sCnt
    a(f"""s_mov_b32 s{sSpin}, 400000
    s_mov_b32 s{sIt}, {SENT}
    s_mov_b32 s{sDone}, 0
    s_waitcnt vmcnt(6)
    {L}_round:
    ds_read_b32 v1, v{vSy}
    s_waitcnt lgkmcnt(0)
    v_readfirstlane_b32 s{sT0}, v1
    s_andn2_b32 s{sT0}, s{sT0}, s{sDone}""")
    for g in range(4):
        a(f"""s_bitcmp1_b32 s{sT0}, {g}
        s_cbranch_scc0 {L}_n{g}""")
        p3_check(a, g, OF, vOm, vVa)
        a(f"""s_cbranch_vccnz {L}_n{g}
        s_bitset1_b32 s{sDone}, {g}""")
        p3_mf(a, cts, reg, AC, 2 * g, OF)
        p3_mf(a, cts, reg, AC, 2 * g + 1, OF + 8)
        a(f"{L}_n{g}:")
    a(f"""s_cmp_eq_u32 s{sDone}, 15
    s_cbranch_scc1 {L}_done
    s_sub_u32 s{sSpin}, s{sSpin}, 1
    s_cmp_lt_i32 s{sSpin}, 0
    s_cbranch_scc0 {L}_round
    {L}_done:""")
    p3_tail(a, cts, reg, AC, OF, vOt, vRd)

def srd_tail(a, d, size):
    a(f"""s_mov_b32 s{d+2}, {size}
    s_mov_b32 s{d+3}, 0x00020000""")
def kernel(a):
    K = "k"
    if OPT["stamp"]: a("s_memrealtime s[96:97]")
    a(f"""
    s_cmp_ge_u32 s2, 256
    s_cbranch_scc1 {K}_end
    s_load_dwordx2 s[{sX}:{sX+1}], s[0:1], 0
    s_bfe_u32 s{sT0}, s2, {(1 << 16) | 2}
    s_mul_i32 s{sT0}, s{sT0}, 24
    s_add_u32 s{sT1}, s{sT0}, 8
    s_add_u32 s{sT0}, s{sT0}, 16
    s_load_dwordx2 s[{sW}:{sW+1}], s[0:1], s{sT1}
    s_load_dwordx2 s[{sG}:{sG+1}], s[0:1], 48
    s_load_dwordx2 s[{sWS}:{sWS+1}], s[0:1], 72
    s_load_dwordx2 s[{sD}:{sD+1}], s[0:1], 64
    s_load_dwordx2 s[{sOut}:{sOut+1}], s[0:1], 56
    s_load_dwordx2 s[{sWo}:{sWo+1}], s[0:1], s{sT0}
    v_lshrrev_b32 v1, 6, v0
    v_and_b32 v0, 63, v0
    s_bfe_u32 s{sT1}, s2, {(2 << 16) | 3}
    v_readfirstlane_b32 s{sW8}, v1
    s_lshr_b32 s{sT2}, s2, 5
    s_and_b32 s{sE}, s2, 1
    s_lshl_b32 s{sE}, s{sE}, 2
    s_add_u32 s{sE}, s{sE}, s{sT1}
    s_and_b32 s{sPr}, s2, 6
    s_lshl_b32 s{sPr}, s{sPr}, 2
    s_add_u32 s{sPr}, s{sPr}, s{sT2}
    s_and_b32 s{sWv}, s{sW8}, 3
    s_lshr_b32 s{sHH}, s{sWv}, 1
    s_and_b32 s{sTH}, s{sWv}, 1
    s_bfe_u32 s{sTt}, s2, {(1 << 16) | 5}
    s_lshl_b32 s{sTt}, s{sTt}, 1
    s_bfe_u32 s{sT2}, s2, {(1 << 16) | 6}
    s_or_b32 s{sTt}, s{sTt}, s{sT2}
    s_cmp_ge_u32 s{sW8}, 4
    s_cbranch_scc0 {K}_compute""")
    helper(a, K)
    a(f"{K}_compute:")
    compute(a, K)
def common_late(a):
    srd_tail(a, sWS, WS_SIZE)
    srd_tail(a, sOut, 2048 * 1152)
    srd_tail(a, sD, 256)
    srd_tail(a, sWo, 576 * 1152)
    a(f"""s_lshl_b32 s{sBH}, s{sPr}, 1
    s_add_u32 s{sBH}, s{sBH}, s{sHH}
    s_mul_i32 s{sKVg}, s{sBH}, {KVH}""")

FA = 32
def final_addr(a):
    a(f"""s_lshl_b32 s{sT3}, s{sW8}, 6
    v_add_u32 v1, s{sT3}, v0
    s_mul_i32 s{sT0}, s{sP3T}, {32*1152}
    s_mul_i32 s{sT1}, s{sP3C}, 288
    s_add_u32 s{sT0}, s{sT0}, s{sT1}""")
    for r in range(2):
        if r: a("v_add_u32 v1, 512, v1")
        a(f"""v_mul_u32_u24 v{FA+6}, 3641, v1
        v_lshrrev_b32 v{FA+6}, 16, v{FA+6}
        v_mul_u32_u24 v{FA+7}, 18, v{FA+6}
        v_sub_u32 v{FA+7}, v1, v{FA+7}
        v_mul_u32_u24 v{FA+r}, {RS}, v{FA+6}
        v_lshl_add_u32 v{FA+r}, v{FA+7}, 5, v{FA+r}
        v_add_u32 v{FA+4+r}, {4*PLANE}, v{FA+r}
        v_mul_u32_u24 v{FA+2+r}, 1152, v{FA+6}
        v_lshl_add_u32 v{FA+2+r}, v{FA+7}, 4, v{FA+2+r}""")
def final_reduce(a, K, SVr):
    def reads(r):
        b = 48 + 32 * r
        for w in range(4):
            for hf in range(2):
                if w < 3: a(f"ds_read_b128 {vr(b+8*w+4*hf,4)}, v{FA+r} offset:{w*PLANE + 16*hf}")
                else: a(f"ds_read_b128 {vr(b+8*w+4*hf,4)}, v{FA+4+r} offset:{16*hf}")
    def finish(r, extra):
        b = 48 + 32 * r
        a(f"s_waitcnt lgkmcnt({4+extra})")
        for i in range(0, 8, 2): a(f"v_pk_add_f32 {vr(b+i,2)}, {vr(b+i,2)}, {vr(b+8+i,2)}")
        a(f"s_waitcnt lgkmcnt({extra})")
        for i in range(0, 8, 2): a(f"v_pk_add_f32 {vr(b+16+i,2)}, {vr(b+16+i,2)}, {vr(b+24+i,2)}")
        for i in range(0, 8, 2): a(f"v_pk_add_f32 {vr(b+i,2)}, {vr(b+i,2)}, {vr(b+16+i,2)}")
        for i in range(4): a(f"v_cvt_pk_bf16_f32 v{b+8+i}, v{b+2*i}, v{b+2*i+1}")
        a(f"buffer_store_dwordx4 {vr(b+8,4)}, v{FA+2+r}, s[{sOut}:{sOut+3}], s{sT0} offen")
    def fin():
        if OPT["stamp"]:
            a("s_waitcnt vmcnt(0)")
            stamp(a, 15, SVr)
            for k in range(6): a(f"v_writelane_b32 v{SVr}, s{96+k}, {20+k}")
            a(f"s_sub_u32 s80, 60000, s{sSpin}\nv_writelane_b32 v{SVr}, s80, 26")
            stamp_out(a, SVr)
            if OPT.get("amp"):
                i_, j_ = OPT["amp"].split(",")
                fin.n = getattr(fin, "n", 0) + 1
                a(f"""s_cmp_ge_u32 s{sW8}, 4
                s_cbranch_scc1 k_ampx{fin.n}
                v_readlane_b32 s82, v{SVr}, {i_}
                v_readlane_b32 s83, v{SVr}, {j_}
                s_memrealtime s[80:81]
                s_waitcnt lgkmcnt(0)
                s_sub_u32 s82, s83, s82
                s_lshl_b32 s82, s82, 2
                s_min_u32 s82, s82, 40000
                s_mov_b32 s83, s80
                k_amp{fin.n}:
                s_memrealtime s[80:81]
                s_waitcnt lgkmcnt(0)
                s_sub_u32 s80, s80, s83
                s_cmp_lt_u32 s80, s82
                s_cbranch_scc1 k_amp{fin.n}
                k_ampx{fin.n}:""")
    a(f"""s_cmp_eq_u32 s{sW8}, 0
    s_waitcnt lgkmcnt(0)
    s_barrier""")
    reads(0)
    a(f"s_cbranch_scc1 {K}_fin0")
    finish(0, 0)
    fin()
    a(f"""s_endpgm
    {K}_fin0:""")
    reads(1)
    finish(0, 8)
    finish(1, 0)
    fin()

def poll(a, lbl, ld, cond, slp):
    a(f"""s_mov_b32 s{sSpin}, 40000
    {lbl}:
    {ld}
    s_waitcnt vmcnt(0)""")
    cond()
    a(f"""s_cbranch_scc1 {lbl}_go
    s_sub_u32 s{sSpin}, s{sSpin}, 1
    s_cmp_eq_u32 s{sSpin}, 0
    s_cbranch_scc1 {lbl}_go
    s_sleep {slp}
    s_branch {lbl}
    {lbl}_go:""")

CL = [5, 6, 7]
def wo_lds_base(w): return (w >> 1) * RING + (w & 1) * 27648

def helper(a, K):
    a("; ===== helper waves =====")
    RX = int(OPT["rx"])
    a(f"s_setprio {OPT.get('hprio', 2)}")
    vXs, vWs = [24, 25], [26, 27]
    vL16, vGr, vGw = 7, 8, 9
    t0, t1, t2, t3 = 10, 11, 12, 13
    vGv = 14
    WM = [sum(1 << L for L in range(64) if ((L & 15) ^ (((L >> 4) | (hi << 2)) << 1)) != 15) for hi in range(2)]
    sM0, sM1 = sEx, 64
    a(f"""s_lshr_b32 s{sRot}, s2, 7
    s_lshl_b32 s{sT1}, s{sT1}, 1
    s_add_u32 s{sRot}, s{sRot}, s{sT1}
    s_and_b32 s{sT1}, s2, 7
    s_add_u32 s{sRot}, s{sRot}, s{sT1}
    s_sub_u32 s{sT1}, s{sRot}, 9
    s_cselect_b32 s{sRot}, s{sRot}, s{sT1}""")
    order = []
    a(f"""v_lshrrev_b32 v{t0}, 3, v0
    v_mul_u32_u24 v{t0}, 1152, v{t0}
    v_and_b32 v{t1}, 7, v0
    v_lshrrev_b32 v{t2}, 4, v0
    v_xor_b32 v{t1}, v{t1}, v{t2}
    v_lshlrev_b32 v{t1}, 4, v{t1}
    v_xor_b32 v{t2}, 64, v{t1}
    v_add_u32 v{vXs[0]}, v{t0}, v{t1}
    v_add_u32 v{vXs[1]}, v{t0}, v{t2}
    v_add_u32 v{vXs[1]}, {8*1152-1024}, v{vXs[1]}
    s_lshl_b32 s{sXb}, s{sE}, 4
    s_lshl_b32 s{sT0}, s{sHH}, 3
    s_add_u32 s{sXb}, s{sXb}, s{sT0}
    s_add_u32 s{sXb}, s{sXb}, s{sTH}
    s_mul_i32 s{sXb}, s{sXb}, {16*1152}
    s_lshl_b32 s{sKo}, s{sRot}, 7
    s_lshl_b32 s{sRing}, s{sWv}, 11
    s_add_u32 s{sRing}, s{sRing}, {L_XR}
    s_add_u32 s{sRef}, s{sXb}, s{sKo}
    s_mov_b32 s{sXm0}, s{sRing}""")
    sTo = [56, 57, 58, 59]
    for tt in range(4):
        a(f"""s_xor_b32 s{sTo[tt]}, s{sTt}, {tt}
        s_mul_i32 s{sTo[tt]}, s{sTo[tt]}, {32*1152}""")
    xstate = [0]
    def xnext():
        a(f"""s_add_u32 s{sKo}, s{sKo}, 128
        s_cmp_ge_u32 s{sKo}, 1152
        s_cselect_b32 s{sKo}, 0, s{sKo}
        s_add_u32 s{sRef}, s{sXb}, s{sKo}""")
    def xdma(j):
        tt = j & 3
        if tt == 0 and j: xnext()
        a(f"""s_mov_b32 m0, s{sXm0}
        s_add_u32 s{sT0}, s{sRef}, s{sTo[tt]}
        buffer_load_dwordx4 v{vXs[0]}, s[{sX}:{sX+3}], s{sT0} offen {OPT.get('xf','')} lds
        buffer_load_dwordx4 v{vXs[1]}, s[{sX}:{sX+3}], s{sT0} offen offset:1024 {OPT.get('xf','')} lds
        s_add_u32 s{sXm0}, s{sXm0}, 8192
        s_cmp_ge_u32 s{sXm0}, {L_XR + RX*8192}
        s_cselect_b32 s{sXm0}, s{sRing}, s{sXm0}""")
    srd_tail(a, sX, 2048 * 1152)
    srd_tail(a, sW, 576 * 3456)
    srd_tail(a, sG, 1152)
    a("s_waitcnt lgkmcnt(0)")
    stamp(a, 0, SV)
    xdma(0)
    order += ["X0"] * 2
    a(f"""v_lshrrev_b32 v{t0}, 4, v0
    v_lshlrev_b32 v{t1}, 1, v{t0}
    v_and_b32 v{t2}, 15, v0
    v_xor_b32 v{t1}, v{t1}, v{t2}
    s_mov_b32 s{sT0}, {((1<<4)|(1<<9)|(1<<14)) << 3}
    v_mul_u32_u24 v{t0}, 3456, v{t0}""")
    for hi in range(2):
        if hi: a(f"v_xor_b32 v{t1}, 8, v{t1}")
        a(f"""v_mul_u32_u24 v{t2}, 52, v{t1}
        v_lshrrev_b32 v{t2}, 8, v{t2}
        v_mul_u32_u24 v{t2}, {1152-80}, v{t2}
        v_lshl_add_u32 v{t2}, v{t1}, 4, v{t2}
        v_lshrrev_b32 v{t3}, v{t1}, s{sT0}
        v_and_b32 v{t3}, 8, v{t3}
        v_sub_u32 v{t2}, v{t2}, v{t3}
        v_add_u32 v{vWs[hi]}, v{t0}, v{t2}""")
    a(f"""v_lshlrev_b32 v{vL16}, 4, v0
    s_mul_i32 s{sT0}, s{sWv}, {16*3456}
    s_and_b32 s{sT1}, s{sPr}, 15
    s_mul_i32 s{sT1}, s{sT1}, 72
    s_add_u32 s{sWsrc}, s{sT0}, s{sT1}
    s_mul_i32 s{sWk}, s{sRot}, {64*3456}
    s_add_u32 s{sWcnt}, s{sWsrc}, s{sWk}
    s_lshl_b32 s{sWm0}, s{sWv}, 12
    s_lshl_b32 s{sT2}, s{sWv}, 11
    s_add_u32 s{sT2}, s{sT2}, {L_GT}
    s_mov_b32 s{sM0}, {WM[0] & 0xffffffff}
    s_mov_b32 s{sM0+1}, {WM[0] >> 32}
    s_mov_b32 s{sM1}, {WM[1] & 0xffffffff}
    s_mov_b32 s{sM1+1}, {WM[1] >> 32}""")
    def wdma2(hi):
        m = (sM0, sM1)[hi]
        a(f"""s_add_u32 m0, s{sWm0}, {L_WR + hi*2048}
        s_add_u32 s{sT0}, s{sWcnt}, {hi*8*3456}
        s_add_u32 s{sT1}, s{sWcnt}, {hi*8*3456 + 4*3456 - 1024}
        s_mov_b64 exec, s[{m}:{m+1}]
        buffer_load_dwordx4 v{vWs[hi]}, s[{sW}:{sW+3}], s{sT0} offen {OPT.get('wf','')} lds
        buffer_load_dwordx4 v{vWs[hi]}, s[{sW}:{sW+3}], s{sT1} offen offset:1024 {OPT.get('wf','')} lds
        s_mov_b64 exec, -1""")
    def wnext():
        a(f"""s_add_u32 s{sWk}, s{sWk}, {64*3456}
        s_cmp_ge_u32 s{sWk}, {576*3456}
        s_cselect_b32 s{sWk}, 0, s{sWk}
        s_add_u32 s{sWcnt}, s{sWsrc}, s{sWk}
        s_add_u32 s{sWm0}, s{sWm0}, {WSL}
        s_sub_u32 s{sT0}, s{sWm0}, {RW*WSL}
        s_cmp_ge_u32 s{sWm0}, {RW*WSL}
        s_cselect_b32 s{sWm0}, s{sT0}, s{sWm0}""")
    a(f"""s_mov_b32 m0, s{sT2}
    s_nop 0
    buffer_load_dwordx4 v{vL16}, s[{sG}:{sG+3}], 0 offen lds
    s_mov_b64 exec, 0xff
    buffer_load_dwordx4 v{vL16}, s[{sG}:{sG+3}], 0 offen offset:1024 lds
    s_mov_b64 exec, -1""")
    order += ["G"] * 2
    wdma2(0); wdma2(1)
    order += ["W0"] * 4
    wnext()
    xdma(1)
    order += ["X1"] * 2
    EARLY = OPT.get("early", "0") == "1"
    def second_batch():
        nonlocal order
        xdma(2)
        wdma2(0); wdma2(1)
        wnext()
        order += ["X2"] * 2 + ["W1"] * 4
        for j in range(3, RX - 1):
            xdma(j); order += [f"X{j}"] * 2
    a(f"s_mov_b32 s{sCnt}, s{sWm0}")
    if EARLY: second_batch()
    nb2 = len(order) - 10
    stamp(a, 16, SV)
    common_late(a)
    a(f"""s_lshl_b32 s{sT0}, s{sWv}, 5
    s_add_u32 s{sT0}, s{sT0}, s{sT2}
    v_lshl_add_u32 v{vGr}, v0, 1, s{sT0}
    v_and_b32 v{t1}, 3, v0
    v_lshlrev_b32 v{t1}, 1, v{t1}
    v_and_b32 v{t2}, 8, v0
    v_or_b32 v{t1}, v{t1}, v{t2}
    v_xor_b32 v{t1}, 15, v{t1}
    v_lshlrev_b32 v{t1}, 4, v{t1}
    v_lshl_add_u32 v{t1}, v0, 8, v{t1}
    s_lshl_b32 s{sGk}, s{sRot}, 7
    v_mov_b32 v{t0}, {L_SYNC}
    v_mov_b32 v20, 0
    v_mov_b32 v21, 0
    v_mov_b32 v22, 0
    v_mov_b32 v23, 0
    ds_write_b128 v{t0}, v[20:23]
    ds_write_b128 v{t0}, v[20:23] offset:16
    ds_write_b128 v{t0}, v[20:23] offset:32""")
    def gate(slotreg):
        a(f"""v_add_u32 v{t0}, s{sGk}, v{vGr}
        s_mov_b64 exec, 0xffff
        ds_read_u16 v{vGv}, v{t0}
        v_add_u32 v{t0}, s{slotreg}, v{t1}
        s_add_u32 s{sGk}, s{sGk}, 128
        s_cmp_ge_u32 s{sGk}, 1152
        s_cselect_b32 s{sGk}, 0, s{sGk}
        s_waitcnt lgkmcnt(0)
        ds_write2_b32 v{t0}, v{vGv}, v{vGv} offset0:0 offset1:1
        s_mov_b64 exec, -1""")
    vWos, vWos2, vPub, vC100, vPk, vA4, vSn = 28, 29, 30, 31, [76, 77, 78], 79, 80
    vP, vPa, vSy, vOne, vFa = 20, 17, 18, 19, 16
    vOm, vOt, vWm, vWt, vRd = [2, 252], 3, 4, 5, 6
    vVa3, vSy3 = [248, 253], 251
    HWB, HAC, HOF = 8, 188, 228
    u0, u1, u2, u3 = 84, 85, 86, 87
    def setup1():
        a(f"""v_mul_u32_u24 v{u0}, 57, v0
        v_lshrrev_b32 v{u0}, 10, v{u0}
        v_mul_u32_u24 v{u1}, 18, v{u0}
        v_sub_u32 v{u1}, v0, v{u1}
        v_lshlrev_b32 v{u1}, 4, v{u1}
        s_and_b32 s{sT0}, s{sE}, 1
        s_lshl_b32 s{sT0}, s{sT0}, 1
        s_mul_i32 s{sT1}, s{sWv}, 3
        s_add_u32 s{sT0}, s{sT0}, s{sT1}
        v_add_u32 v{u0}, s{sT0}, v{u0}
        v_mul_u32_u24 v{vWos}, 1152, v{u0}
        v_add_u32 v{vWos}, v{vWos}, v{u1}
        v_cmp_le_u32 vcc, 6, v{u0}
        v_add_u32 v{u2}, {12*1152}, v{vWos}
        v_subrev_u32 v{u3}, {6*1152}, v{vWos}
        v_cndmask_b32 v{vWos2}, v{u2}, v{u3}, vcc
        s_mul_i32 s{sT0}, s{sHH}, {RING}
        s_mul_i32 s{sT1}, s{sTH}, 5120
        s_add_u32 s{sT0}, s{sT0}, s{sT1}
        v_add_u32 v{vPub}, s{sT0}, v{vL16}
        s_lshl_b32 s{sT0}, s{sPr}, 2
        v_mov_b32 v{vPa}, s{sT0}
        s_lshl_b32 s{sT0}, s{sPr}, 12
        s_lshl_b32 s{sT3}, s{sHH}, 7
        s_add_u32 s{sT0}, s{sT0}, s{sT3}
        s_add_u32 s{sT0}, s{sT0}, {WS_F}
        v_and_b32 v{vFa}, 1, v0
        v_lshl_add_u32 v{vFa}, v{vFa}, 2, s{sT0}
        v_lshrrev_b32 v{u0}, 1, v0
        v_lshl_add_u32 v{vFa}, v{u0}, 8, v{vFa}
        v_mov_b32 v{vSy}, {L_SYNC}
        v_mov_b32 v{vOne}, 1
        v_mov_b32 v{vC100}, 0x100
        v_lshlrev_b32 v{vA4}, 2, v0
        v_bfe_u32 v{u0}, v0, 2, 3
        v_mul_u32_u24 v{u0}, 288, v{u0}
        v_and_b32 v{u1}, 3, v0
        v_lshlrev_b32 v{u1}, 3, v{u1}
        v_add_u32 v{u1}, {L_WO}, v{u1}
        v_and_b32 v{u2}, 32, v0
        v_add3_u32 v{vPk[1]}, v{u0}, v{u1}, v{u2}
        s_lshl_b32 s{sT0}, s{sWv}, 6
        v_add_u32 v{vPk[0]}, s{sT0}, v{vPk[1]}
        v_bfe_u32 v{u0}, v0, 2, 2
        v_mul_u32_u24 v{u0}, 288, v{u0}
        v_lshrrev_b32 v{u2}, 4, v0
        v_lshlrev_b32 v{u2}, 5, v{u2}
        v_add3_u32 v{u0}, v{u0}, v{u1}, v{u2}
        s_lshl_b32 s{sT0}, s{sWv}, 7
        v_add_u32 v{vPk[2]}, s{sT0}, v{u0}""")
        for i in range(4): a(f"v_mov_b32 v{vSn+i}, {SENT}")
    def setup2():
        p3_scal(a)
        p3_addr_w(a, vWm, vWt, u0, u1, u2)
        p3_addr_o(a, vOm, vOt, vRd, vVa3, vSy3, u0, u1, u2)
        p3_hint_addr(a, HOF)
        for i in range(40): a(f"v_mov_b32 v{HAC+i}, 0")
    SP = OPT.get('setup', 'head')
    if SP == 'head': setup1(); setup2()
    a(f"""s_sub_u32 s{sT3}, s{sCnt}, {WSL}
    s_waitcnt vmcnt({6 + nb2})""")
    stamp(a, 17, SV)
    gate(sT3); gate(sCnt)
    a(f"""s_waitcnt vmcnt({2 + nb2}) lgkmcnt(0)
    s_barrier""")
    stamp(a, 1, SV)
    if not EARLY: second_batch()
    stamp(a, 18, SV)
    a(f"""s_mov_b32 s{sIt}, 0
    v_add_u32 v{t0}, s{sGk}, v{vGr}
    {K}_hl:""")
    for tt in (0, 2):
        a(f"""s_waitcnt vmcnt(@W{tt}@) lgkmcnt(0)
        s_barrier""")
        if OPT.get("prof"):
            a(f"""s_memtime s[82:83]
            s_lshl_b32 m0, s{sIt}, 1
            s_add_u32 m0, m0, {2 + (tt >> 1)}
            s_waitcnt lgkmcnt(0)
            v_writelane_b32 v{SV-8}, s82, m0""")
        if not OPT.get("noh"):
            def thr(k):
                if OPT.get("thr"):
                    a(f"""s_bitcmp1_b32 {STRAD}, s{sPr}
                    s_cbranch_scc1 {K}_th{tt}{k}
                    s_waitcnt vmcnt({OPT["thr"]})
                    {K}_th{tt}{k}:""")
            if tt == 0:
                a(f"ds_read_u16 v{vGv}, v{t0}")
            else:
                a(f"""s_mov_b64 exec, 0xffff
                ds_write2_b32 v{t2}, v{vGv}, v{vGv} offset0:0 offset1:1""")
            wdma2(tt >> 1)
            thr(0)
            xdma(tt + RX - 1)
            thr(1)
            xdma(tt + RX)
            if tt == 0:
                a(f"""v_add_u32 v{t2}, s{sWm0}, v{t1}
                s_add_u32 s{sGk}, s{sGk}, 128
                s_cmp_ge_u32 s{sGk}, 1152
                s_cselect_b32 s{sGk}, 0, s{sGk}
                v_add_u32 v{t0}, s{sGk}, v{vGr}""")
    wnext()
    a(f"""s_add_u32 s{sIt}, s{sIt}, 1
    s_cmp_lt_u32 s{sIt}, 7
    s_cbranch_scc1 {K}_hl""")
    need = {0: 99, 2: 99}
    for j in range(0, 36, 2):
        req = [f"X{min(j+2,35)}"]
        if j % 4 == 2 and j // 4 + 1 <= 8: req.append(f"W{j//4+1}")
        last = max(i for i, o in enumerate(order) if o in req)
        n_ = len(order) - 1 - last
        if j < 28:
            need[j % 4] = min(need[j % 4], n_)
            order += [f"W{j//4+2}"] * 2 + [f"X{j+RX-1}"] * 2 + [f"X{j+RX}"] * 2
        else:
            a(f"""s_waitcnt vmcnt({n_}) lgkmcnt(0)
            s_barrier""")
            for jj in (j + RX - 1, j + RX):
                if jj <= 35:
                    xdma(jj); order += [f"X{jj}"] * 2
            if SP == 'tail' and j == 28: setup1()
            if SP == 'tail' and j == 30: setup2()
    for i in (0, 2): a.l = [x.replace(f"@W{i}@", str(need[i])) for x in a.l]
    stamp(a, 2, SV)
    if OPT.get("prof"):
        a(f"""v_readlane_b32 s80, v{SV+1}, 0
        v_readlane_b32 s81, v{SV+1}, 1
        v_readlane_b32 s82, v{SV+1}, 2
        s_nop 3
        v_writelane_b32 v{SV-8}, s80, 0
        v_writelane_b32 v{SV-8}, s81, 1
        v_writelane_b32 v{SV-8}, s82, 16
        s_lshl_b32 s80, s2, 3
        s_add_u32 s80, s80, s{sW8}
        s_lshl_b32 s80, s80, 8
        s_add_u32 s80, s80, {WS_STAMP + 0x80000}
        v_lshlrev_b32 v1, 2, v0
        buffer_store_dword v{SV-8}, v1, s[{sWS}:{sWS+3}], s80 offen""")
    sPH, sPC = sWsrc, sWm0
    sQ = sGk
    a(f"""s_lshl_b32 s{sPH}, s{sPr}, 1
    s_and_b32 s{sT0}, s{sE}, 1
    s_add_u32 s{sPH}, s{sPH}, s{sT0}
    s_lshr_b32 s{sPC}, s{sE}, 1
    s_and_b32 s{sT0}, s{sPH}, 31
    s_mul_i32 s{sT0}, s{sT0}, {18*1152}
    s_mul_i32 s{sT1}, s{sPC}, 288
    s_add_u32 s{sT0}, s{sT0}, s{sT1}
    s_mul_i32 s{sT1}, s{sWv}, 864
    s_add_u32 m0, s{sT1}, {L_WO}
    s_mov_b32 exec_hi, 0x003fffff
    buffer_load_dwordx4 v{vWos}, s[{sWo}:{sWo+3}], s{sT0} offen lds
    s_add_u32 m0, s{sT1}, {L_WO + 4*864}
    s_nop 0
    buffer_load_dwordx4 v{vWos2}, s[{sWo}:{sWo+3}], s{sT0} offen lds
    s_mov_b64 exec, 1
    buffer_load_dword v{vP+1}, v{vPa}, s[{sD}:{sD+3}], 0 offen sc1
    s_mov_b64 exec, -1
    s_mul_i32 s{sRing}, s{sHH}, {RING}
    s_mul_i32 s{sT2}, s{sTH}, 5120
    s_mul_i32 s{sT1}, s{sE}, {2*BLK}
    s_add_u32 s{sT1}, s{sT1}, s{sKVg}
    s_add_u32 s{sT1}, s{sT1}, s{sT2}
    s_mov_b32 s{sQ}, s{sTH}
    s_cmp_eq_u32 s{sTH}, 1
    s_cselect_b32 s{sM0}, 0xffff, -1
    s_cselect_b32 s{sM0+1}, 0, -1
    s_barrier""")
    t0 = vPub
    stamp(a, 3, SV)
    for i in range(5): a(f"ds_read_b128 {vr(32+4*i,4)}, v{t0} offset:{1024*i}")
    a(f"s_mov_b32 s{sXb}, s{sT1}")
    def publish(ph):
        for i in range(5 * ph, 5 * ph + 5):
            if i % 5 == 4: a(f"""s_add_u32 s{sXb}, s{sXb}, 4096
            s_mov_b64 exec, s[{sM0}:{sM0+1}]""")
            if ph == 0: a(f"s_waitcnt lgkmcnt({4-i})")
            a(f"buffer_store_dwordx4 {vr(32+4*i,4)}, v{vL16}, s[{sWS}:{sWS+3}], s{sXb} offen offset:{1024*((i%5)%4)} sc1")
            if i % 5 == 4: a(f"""s_mov_b64 exec, -1
            s_add_u32 s{sXb}, s{sXb}, {BLK-4096}""")
    publish(0)
    a("s_barrier")
    for i in range(5, 10): a(f"ds_read_b128 {vr(32+4*i,4)}, v{t0} offset:{BLK + 1024*(i-5)}")
    def arrive(word, vm=0):
        a(f"""s_mov_b64 exec, 1
        s_waitcnt vmcnt({vm})
        ds_add_rtn_u32 v{vP}, v{vSy}, v{vOne} offset:{4*word}
        s_waitcnt lgkmcnt(0)
        v_readfirstlane_b32 s{sT1}, v{vP}
        s_mov_b64 exec, -1
        s_cmp_eq_u32 s{sT1}, 3""")
    def lds_wait(lbl, word):
        a(f"""s_mov_b32 s{sSpin}, 400000
        {lbl}:
        ds_read_b32 v{vP}, v{vSy} offset:{4*word}
        s_waitcnt lgkmcnt(0)
        v_readfirstlane_b32 s{sT1}, v{vP}
        s_cmp_lg_u32 s{sT1}, 0
        s_cbranch_scc1 {lbl}_go
        s_sub_u32 s{sSpin}, s{sSpin}, 1
        s_cmp_eq_u32 s{sSpin}, 0
        s_cbranch_scc1 {lbl}_go
        s_sleep 6
        s_branch {lbl}
        {lbl}_go:""")
    def flag(off, vm):
        a(f"""s_lshl_b32 s{sT0}, s{sE}, 8
        s_lshl_b32 s{sT1}, s{sTH}, 2
        s_add_u32 s{sT0}, s{sT0}, s{sT1}
        s_mov_b64 exec, 1
        s_waitcnt vmcnt({vm})
        buffer_store_dword v{vOne}, v{vFa}, s[{sWS}:{sWS+3}], s{sT0} offen offset:{off} sc1
        s_mov_b64 exec, -1""")
    flag(0, 0)
    stamp(a, 4, SV)
    def rst_ok(r):
        a(f"""v_readfirstlane_b32 s{sT0}, v{r}
        s_and_b32 s{sT0}, s{sT0}, 0xff
        s_cmp_ge_u32 s{sT0}, 8""")
    def kv_ready():
        a(f"""v_cmp_eq_u32 vcc, 1, v{vP}
        s_nop 1
        s_cmp_eq_u32 vcc_lo, 0xffff""")
    a("s_mov_b64 exec, 1")
    rst_ok(vP + 1)
    a(f"s_cbranch_scc1 {K}_pl0_go")
    poll(a, f"{K}_pl0", f"buffer_load_dword v{vP}, v{vPa}, s[{sD}:{sD+3}], 0 offen sc1", lambda: rst_ok(vP), 8)
    a(f"""s_add_u32 s{sT2}, s{sTH}, 1
    s_xor_b32 s{sT2}, s{sT2}, s{sE}
    s_lshl_b32 s{sT2}, s{sT2}, 8
    s_mov_b64 exec, 3""")
    def kv1_ready():
        a(f"""v_cmp_eq_u32 vcc, 1, v{vP}
        s_nop 1
        s_cmp_eq_u32 vcc_lo, 3""")
    poll(a, f"{K}_pl1", f"buffer_load_dword v{vP}, v{vFa}, s[{sWS}:{sWS+3}], s{sT2} offen sc1", kv1_ready, 1)
    a("s_mov_b64 exec, -1")
    stamp(a, 5, SV)
    def ldblock():
        a(f"s_call_b64 s[{sRet}:{sRet+1}], {K}_ldblk")
    ldblock()
    a("s_waitcnt lgkmcnt(0)")
    publish(1)
    a("s_waitcnt vmcnt(5)")
    stamp(a, 6, SV)
    a("s_barrier")
    flag(2048, 0)
    a("s_mov_b64 exec, 0xffff")
    poll(a, f"{K}_pl1a", f"buffer_load_dword v{vP}, v{vFa}, s[{sWS}:{sWS+3}], 0 offen sc1", kv_ready, 2)
    a("s_mov_b64 exec, -1")
    ldblock(); ldblock()
    a("s_waitcnt vmcnt(0)")
    stamp(a, 7, SV)
    a("s_barrier")
    a("s_mov_b64 exec, 0xffff")
    poll(a, f"{K}_pl1b", f"buffer_load_dword v{vP}, v{vFa}, s[{sWS}:{sWS+3}], 0 offen offset:2048 sc1", kv_ready, 2)
    a("s_mov_b64 exec, -1")
    ldblock(); ldblock()
    a(f"""ds_read_b64_tr_b16 {vr(64,2)}, v{vPk[0]}
    ds_read_b64_tr_b16 {vr(66,2)}, v{vPk[0]} offset:2304
    ds_read_b64_tr_b16 {vr(68,2)}, v{vPk[1]} offset:256
    ds_read_b64_tr_b16 {vr(70,2)}, v{vPk[1]} offset:{256+2304}
    ds_read_b64_tr_b16 {vr(72,2)}, v{vPk[2]} offset:{16*288-128}
    s_lshl_b32 s{sT0}, s{sPC}, 6
    s_add_u32 s{sT0}, s{sT0}, s{sPH}
    s_mul_i32 s{sT0}, s{sT0}, 4608
    s_add_u32 s{sT0}, s{sT0}, {WS_WOM}
    s_lshl_b32 s{sT1}, s{sWv}, 10
    s_add_u32 s{sT1}, s{sT1}, s{sT0}
    s_lshl_b32 s{sT2}, s{sPC}, 4
    s_lshr_b32 s{sT3}, s{sPH}, 2
    s_add_u32 s{sT2}, s{sT2}, s{sT3}
    s_mul_i32 s{sT2}, s{sT2}, 2304
    s_and_b32 s{sT3}, s{sPH}, 3
    s_lshl_b32 s{sT3}, s{sT3}, 2
    s_add_u32 s{sT2}, s{sT2}, s{sT3}
    s_lshl_b32 s{sT3}, s{sWv}, 10
    s_add_u32 s{sT2}, s{sT2}, s{sT3}
    s_add_u32 s{sT2}, s{sT2}, {WS_WOT - 1024}
    s_waitcnt lgkmcnt(0)
    buffer_store_dwordx4 {vr(64,4)}, v{vL16}, s[{sWS}:{sWS+3}], s{sT1} offen sc1
    s_cmp_eq_u32 s{sWv}, 0
    s_cbranch_scc0 {K}_wo_tail
    s_mov_b32 exec_hi, 0
    s_add_u32 s{sT3}, s{sT0}, 4096
    buffer_store_dwordx4 {vr(68,4)}, v{vL16}, s[{sWS}:{sWS+3}], s{sT3} offen sc1
    s_branch {K}_wo_done
    {K}_wo_tail:
    s_cmp_eq_u32 s{sWv}, 3
    s_cselect_b32 exec_lo, 0xffff, -1
    s_cselect_b32 exec_hi, 0, -1
    buffer_store_dword v72, v{vL16}, s[{sWS}:{sWS+3}], s{sT2} offen sc1
    {K}_wo_done:
    s_mov_b64 exec, -1""")
    a(f"""s_lshl_b32 s{sT1}, s{sE}, 1
    s_add_u32 s{sT1}, s{sT1}, s{sTH}
    s_lshl_b32 s{sT1}, s{sT1}, 8
    s_add_u32 s{sT1}, s{sT1}, s{sBH}
    s_mul_i32 s{sT1}, s{sT1}, 1152
    s_add_u32 s{sT1}, s{sT1}, {WS_O}""")
    for x in range(4):
        a(f"""buffer_store_dwordx4 {vr(vSn,4)}, v{vL16}, s[{sWS}:{sWS+3}], s{sT1} offen sc1
        s_mov_b64 exec, 0xff
        buffer_store_dwordx4 {vr(vSn,4)}, v{vL16}, s[{sWS}:{sWS+3}], s{sT1} offen offset:1024 sc1
        s_mov_b64 exec, -1
        s_add_u32 s{sT1}, s{sT1}, {64*1152}""")
    arrive(1)
    a(f"""s_cbranch_scc0 {K}_sg2
    s_mov_b64 exec, 1
    buffer_atomic_add v{vC100}, v{vPa}, s[{sD}:{sD+3}], 0 offen
    s_mov_b64 exec, -1
    {K}_sg2:""")
    a("s_barrier")
    ldblock(); ldblock()
    stamp(a, 12, SV)
    a(f"""s_cmp_eq_u32 s{sWv}, 0
    s_cbranch_scc0 {K}_gw
    s_mov_b32 exec_hi, 0""")
    def all_init():
        a(f"""v_bfe_u32 v{vP}, v{vP}, 8, 8
        v_cmp_le_u32 vcc, 8, v{vP}
        s_nop 1
        s_cmp_eq_u32 vcc_lo, -1""")
    poll(a, f"{K}_pl2", f"buffer_load_dword v{vP}, v{vA4}, s[{sD}:{sD+3}], 0 offen sc1", all_init, 32)
    a(f"""ds_write_b32 v{vSy}, v{vOne} offset:12
    s_mov_b64 exec, -1
    s_branch {K}_ggo
    {K}_gw:""")
    lds_wait(f"{K}_lw2", 3)
    a(f"{K}_ggo:")
    HC = [0, 1, 2, 3, 4]
    hreg = lambda s, ct: HWB + 4 * (5 * s + ct)
    p3_wo_loads(a, HC, hreg, vWm, vWt)
    a("s_waitcnt vmcnt(45)")
    stamp(a, 8, SV)
    a("s_barrier")
    if not OPT.get('x_nowarm'): p3_wo_loads(a, [8], lambda s, ct: HOF + 4 * (s % 4), vWm, vWt)
    a(f"""s_mul_i32 s{sT0}, s{sTH}, 27648
    s_add_u32 s{sT0}, s{sT0}, s{sRing}
    s_barrier""")
    for s in range(9 if not OPT.get('x_nostage') else 0):
        for i, ct in enumerate(CL):
            n = 3 * s + i
            if s < 8:
                a(f"""s_add_u32 m0, s{sT0}, {1024*n}
                s_add_u32 s{sT3}, s{sGW[s>>1]}, {2*(s&1)*4608 + 512*ct}
                buffer_load_dwordx4 v{vWm}, s[{sWS}:{sWS+3}], s{sT3} offen sc1 lds""")
            else:
                a(f"""s_add_u32 m0, s{sT0}, {1024*n}
                s_add_u32 s{sT3}, s{sWtb}, {256*ct}
                buffer_load_dwordx4 v{vWt}, s[{sWS}:{sWS+3}], s{sT3} offen sc1 lds""")
    a(f"""s_mul_i32 s{sT0}, s{sP3T}, {32*1152}
    {"buffer_load_dword v1, v%d, s[%d:%d], s%d offen" % (vL16, sOut, sOut+3, sT0) if OPT.get("otouch", "0") == "1" else ""}
    s_waitcnt vmcnt(0)""")
    stamp(a, 9, SV)
    a("s_barrier")
    stamp(a, 10, SV)
    p3_helper(a, HC, hreg, HAC, HOF, vOm, vOt, vRd, vL16, vVa3, vSy3, int(OPT.get("hslp", 1)))
    stamp(a, 11, SV)
    if OPT["stamp"]: a(f"v_mov_b32 v30, v{SV}\nv_mov_b32 v31, v{SV+1}")
    a(f"s_branch {K}_final")
    a(f"""{K}_ldblk:
    s_add_u32 s{sQ}, s{sQ}, 2
    s_cmp_ge_u32 s{sQ}, 9
    s_cselect_b32 s{sT0}, 0, 7
    s_cselect_b32 s{sT2}, 1, 0
    s_add_u32 s{sT0}, s{sT0}, s{sQ}
    s_and_b32 s{sT0}, s{sT0}, 7
    s_xor_b32 s{sT0}, s{sT0}, s{sE}
    s_lshl_b32 s{sT0}, s{sT0}, 1
    s_add_u32 s{sT0}, s{sT0}, s{sT2}
    s_mul_i32 s{sT1}, s{sT0}, {BLK}
    s_add_u32 s{sT1}, s{sT1}, s{sKVg}
    s_and_b32 s{sT0}, s{sQ}, 7
    s_mul_i32 s{sT0}, s{sT0}, {BLK}
    s_add_u32 s{sT0}, s{sT0}, s{sRing}""")
    for i in range(10):
        if i % 4 == 0:
            a(f"""s_add_u32 m0, s{sT0}, {1024*i}
            s_add_u32 s{sT2}, s{sT1}, {1024*i}""")
        if i == 9: a("s_mov_b64 exec, 0xffff")
        a(f"buffer_load_dwordx4 v{vL16}, s[{sWS}:{sWS+3}], s{sT2} offen offset:{1024*(i%4)} sc1 lds")
    a(f"""s_mov_b64 exec, -1
    s_setpc_b64 s[{sRet}:{sRet+1}]""")

def compute(a, K):
    RX = int(OPT["rx"])
    common_late(a)
    a("s_waitcnt lgkmcnt(0)")
    stamp(a, 0, 30)
    vXr = [2, 3, 20, 21]
    vWc = [4, 5, 9, 1]
    t0, t1, t2, t3, t4, t5 = 64, 65, 66, 67, 68, 69
    WF = 32
    XF = [96, 112]
    ACC = 128
    def reset_flags():
        a(f"""s_cmp_eq_u32 s{sWv}, 0
        s_cselect_b32 s{sCnt}, {OPT.get("rstit", 4)}, 100
        s_cbranch_scc0 {K}_norst
        s_lshl_b32 s{sT0}, s{sPr}, 12
        s_lshl_b32 s{sT1}, s{sE}, 8
        s_add_u32 s{sT0}, s{sT0}, s{sT1}
        s_add_u32 s{sT0}, s{sT0}, {WS_F}
        v_lshlrev_b32 v75, 7, v0
        v_mov_b32 v76, 0
        v_mov_b32 v77, 0
        s_mov_b64 exec, 3
        buffer_store_dwordx2 v[76:77], v75, s[{sWS}:{sWS+3}], s{sT0} offen sc1
        buffer_store_dwordx2 v[76:77], v75, s[{sWS}:{sWS+3}], s{sT0} offen offset:2048 sc1""")
        if OPT.get("touch", "0") == "1":
            a(f"""s_mov_b64 exec, 1
            buffer_load_dword v78, v75, s[{sWS}:{sWS+3}], s{sKVg} offen
            s_add_u32 s{sT0}, s{sKVg}, {2*KVH-128}
            buffer_load_dword v79, v75, s[{sWS}:{sWS+3}], s{sT0} offen""")
        a(f"""s_mov_b64 exec, -1
        {K}_norst:""")
    a(f"v_mov_b32 v{ACC}, 0")
    if OPT.get("rstpos", "late") == "start": reset_flags()
    a(f"""v_and_b32 v{t0}, 15, v0
    v_lshrrev_b32 v{t1}, 4, v0
    v_bfe_u32 v{t2}, v0, 1, 3
    v_xor_b32 v{t2}, v{t2}, v{t1}
    v_lshlrev_b32 v{t2}, 4, v{t2}
    v_lshlrev_b32 v{t3}, 7, v{t0}
    s_lshl_b32 s{sT0}, s{sTH}, 12
    s_lshl_b32 s{sT1}, s{sHH}, 11
    s_add_u32 s{sT0}, s{sT0}, s{sT1}
    s_add_u32 s{sT0}, s{sT0}, {L_XR}
    v_add_u32 v{t3}, s{sT0}, v{t3}
    v_add_u32 v{vXr[0]}, v{t3}, v{t2}
    v_xor_b32 v{t2}, 64, v{t2}
    v_add_u32 v{vXr[1]}, v{t3}, v{t2}
    v_xor_b32 v{vXr[2]}, 2048, v{vXr[0]}
    v_xor_b32 v{vXr[3]}, 2048, v{vXr[1]}
    v_bfe_u32 v{t2}, v0, 2, 2
    v_lshl_add_u32 v{t2}, v{t1}, 3, v{t2}
    v_lshlrev_b32 v{t2}, 8, v{t2}
    v_bfe_u32 v{t4}, v0, 2, 3
    v_lshlrev_b32 v{t4}, 5, v{t4}
    v_and_b32 v{t3}, 3, v0
    v_lshlrev_b32 v{t3}, 3, v{t3}
    s_mul_i32 s{sT1}, s{sHH}, 40
    s_mov_b32 s{sT0}, {192 | (112 << 8) | (32 << 16) | (240 << 24)}
    v_lshrrev_b32 v{t5}, v{t3}, s{sT0}
    v_and_b32 v{t5}, 0xff, v{t5}
    v_xor_b32 v{t5}, v{t5}, v{t4}
    v_add_u32 v{vWc[3]}, v{t2}, v{t5}
    v_add_u32 v{t3}, s{sT1}, v{t3}
    v_lshrrev_b32 v{t5}, 3, v{t3}
    v_and_b32 v{t5}, 8, v{t5}
    v_add_u32 v{t3}, v{t3}, v{t5}""")
    for ct, off in enumerate((80, 0, 160)):
        a(f"""v_add_u32 v{t5}, {off}, v{t3}
        v_xor_b32 v{t5}, v{t5}, v{t4}
        v_add_u32 v{vWc[ct]}, v{t2}, v{t5}""")
    for i in range(1, 128):
        if i % 32 < 28: a(f"v_mov_b32 v{ACC+i}, 0")
    vKa, vTa, vVa, vIdx = 6, 7, 8, 10
    vKw, vQw, vVw, vMul, vSq, vSqh = 11, 12, 13, 24, 25, 19
    vSt, vStt, vWm3, vWt, vCp, vOnes, vQr = 14, 15, 16, 17, 18, 22, 23
    vM0, vDs, vDt, vDe, vDh = 70, 71, 72, 73, 74
    MA = lambda tt, i: ACC + 32 * tt + 28 + i
    sBlk, sScr = sXb, sKo
    a(f"""s_mul_i32 s{sRing}, s{sHH}, {RING}
    s_mul_i32 s{sBlk}, s{sTH}, {BLK}
    s_add_u32 s{sBlk}, s{sBlk}, s{sRing}
    s_mul_i32 s{sScr}, s{sWv}, 5120
    s_add_u32 s{sScr}, s{sScr}, {L_SCR}
    v_lshrrev_b32 v{t2}, 2, v{t0}
    v_and_b32 v{t3}, 3, v0
    v_lshl_add_u32 v{t4}, v{t2}, 3, v{t3}
    v_lshrrev_b32 v{t5}, 5, v0
    v_lshlrev_b32 v{t5}, 9, v{t5}
    v_and_b32 v{vQw}, 16, v0
    v_lshrrev_b32 v{vQw}, 1, v{vQw}
    v_add_u32 v{t5}, v{t5}, v{vQw}
    v_lshl_add_u32 v{vKw}, v{t4}, 4, v{t5}
    s_lshl_b32 s{sT0}, s{sTH}, 11
    s_add_u32 s{sT0}, s{sT0}, s{sRing}
    v_add_u32 v{vKw}, s{sT0}, v{vKw}
    v_lshl_add_u32 v{vQw}, v{t0}, 4, v{t5}
    v_add_u32 v{vQw}, s{sScr}, v{vQw}
    v_mul_u32_u24 v{vVw}, 304, v{t1}
    v_lshl_add_u32 v{vVw}, v{t0}, 4, v{vVw}
    s_mul_i32 s{sT0}, s{sTH}, 2432
    s_add_u32 s{sT0}, s{sT0}, s{sRing}
    v_add_u32 v{vVw}, s{sT0}, v{vVw}""")
    a(f"""s_mul_i32 s{sT2}, s{sTH}, 2432
    s_mul_i32 s{sT3}, s{sTH}, 5120
    v_mul_u32_u24 v{vM0}, 304, v{t2}
    v_lshl_add_u32 v{vM0}, v{t3}, 1, v{vM0}
    s_add_u32 s{sT0}, s{sT2}, {4608+256}
    v_add_u32 v{vM0}, s{sT0}, v{vM0}
    s_lshl_b32 s{sT0}, s{sTH}, 3
    s_add_u32 s{sT0}, s{sT0}, 4096
    s_add_u32 s{sT1}, s{sT3}, {L_SCR+4096-1024}
    v_lshlrev_b32 v{t5}, 9, v{t1}
    v_add_u32 v{t5}, s{sT1}, v{t5}
    v_mov_b32 v{vDh}, s{sT0}
    v_cmp_eq_u32 vcc, 1, v{t1}
    v_mov_b32 v{vDs}, 64
    v_mov_b32 v{vDt}, 4
    v_cndmask_b32 v{t5}, v{t5}, v{vDh}, vcc
    v_lshl_add_u32 v{t5}, v{t4}, 4, v{t5}
    v_cmp_eq_u32 vcc, 0, v{t1}
    v_mov_b32 v{vDe}, 2
    v_mov_b32 v{t3}, 1216
    v_cndmask_b32 v{vM0}, v{t5}, v{vM0}, vcc
    v_cndmask_b32 v{vDs}, v{vDs}, 8, vcc
    v_cndmask_b32 v{vDt}, v{vDt}, v{t3}, vcc
    v_cndmask_b32 v{vDe}, v{vDe}, 16, vcc
    v_cmp_gt_u32 vcc, 2, v{t1}
    v_mov_b32 v{vDh}, {2*5120}
    v_mov_b32 v{t3}, {RING}
    v_cndmask_b32 v{vDh}, v{vDh}, v{t3}, vcc
    v_mov_b32 v{t5}, 8
    v_mov_b32 v{t3}, {BLK}
    v_cndmask_b32 v{t5}, v{t5}, v{t3}, vcc
    v_mul_u32_u24 v{t3}, s{sHH}, v{vDs}
    v_add_u32 v{MA(0,0)}, v{vM0}, v{t3}
    v_sub_u32 v{t3}, v{vDs}, v{t3}
    v_add3_u32 v{MA(0,2)}, v{vM0}, v{t3}, v{vDh}
    v_add_u32 v{MA(0,1)}, v{MA(0,0)}, v{vDe}
    v_add_u32 v{MA(0,3)}, v{MA(0,2)}, v{vDe}""")
    for i in range(4):
        a(f"""v_add_u32 v{MA(1,i)}, v{MA(0,i)}, v{vDt}
        v_add_u32 v{MA(2,i)}, v{MA(0,i)}, v{t5}
        v_add_u32 v{MA(3,i)}, v{MA(1,i)}, v{t5}""")
    a(f"""v_cmp_eq_u32 vcc, 2, v{t1}
    v_mov_b32 v{vMul}, 1.0
    v_mov_b32 v{t2}, {f32(CSCALE)}
    v_cndmask_b32 v{vMul}, v{vMul}, v{t2}, vcc""")
    a(f"""v_and_b32 v{t2}, 16, v0
    v_lshrrev_b32 v{t2}, 2, v{t2}
    v_add_u32 v{t2}, v{t2}, v{t4}
    v_lshlrev_b32 v{vSq}, 4, v{t2}
    s_add_u32 s{sT1}, s{sScr}, 4096
    v_add_u32 v{vSq}, s{sT1}, v{vSq}
    v_and_b32 v{t0}, 31, v0
    v_lshrrev_b32 v{t1}, 5, v0
    v_mul_u32_u24 v{t3}, 304, v{t1}
    v_lshl_add_u32 v{t3}, v{t0}, 4, v{t3}
    v_add_u32 v{t3}, s{sRing}, v{t3}
    v_cmp_gt_u32 vcc, 19, v{t0}
    v_mov_b32 v{vVa}, {LDS_BYTES}
    v_lshl_add_u32 v{vKa}, v0, 4, s{sRing}
    v_cndmask_b32 v{vVa}, v{vVa}, v{t3}, vcc
    v_lshl_add_u32 v{vTa}, v{t0}, 4, s{sRing}
    v_mov_b32 v{vIdx}, 0xdddddddd
    v_lshl_add_u32 v{vSqh}, v{t1}, 2, v{vSq}
    s_mov_b32 s{sWsrc}, 0
    s_mov_b32 s{sXm0}, 0
    v_mul_u32_u24 v{vOnes}, 304, v0
    v_add_u32 v{vOnes}, s{sBlk}, v{vOnes}
    v_lshl_add_u32 v{vQr}, v0, 4, s{sScr}
    s_mul_i32 s{sT0}, s{sTH}, 27648
    s_add_u32 s{sT0}, s{sT0}, s{sRing}
    v_lshl_add_u32 v{vCp}, v0, 4, s{sT0}
    s_lshl_b32 s{sT0}, s{sHH}, 4
    v_xor_b32 v{t2}, s{sT0}, v0
    v_lshlrev_b32 v{vSt}, 4, v{t2}
    s_and_b32 s{sT0}, s{sTt}, 1
    v_xor_b32 v{vStt}, s{sT0}, v{t1}
    v_mul_u32_u24 v{vStt}, {64*1152}, v{vStt}
    v_and_b32 v{t2}, 31, v{t2}
    v_lshl_add_u32 v{vStt}, v{t2}, 2, v{vStt}
    s_lshl_b32 s{sT1}, s{sE}, 1
    s_add_u32 s{sT1}, s{sT1}, s{sTH}
    s_lshl_b32 s{sT1}, s{sT1}, 8
    s_add_u32 s{sT1}, s{sT1}, s{sBH}
    s_mul_i32 s{sT1}, s{sT1}, 1152
    s_add_u32 s{sRef}, s{sT1}, {WS_O}
    s_cmp_ge_u32 s{sPr}, 16
    s_mov_b32 s60, {f32(-LOG2E)}
    s_cselect_b32 s60, {f32(LOG2E)}, s60
    s_mov_b32 s61, {f32(2.0**-40)}
    s_mov_b32 s64, {f32(2.0**40) if not OPT['force_fb'] else f32(2.0**-39)}
    s_mov_b32 s65, {f32(CSCALE)}""")
    for x in range(4):
        a(f"""s_xor_b32 s{56+x}, s{sTt}, {x}
        s_mul_i32 s{56+x}, s{56+x}, {64*1152}
        s_add_u32 s{56+x}, s{56+x}, s{sRef}""")
    a("""s_min_u32 s4, s56, s57
    s_min_u32 s5, s58, s59""")
    p3_scal(a)
    p3_addr_w(a, vWm3, vWt, t0, t1, t2)
    coff = (48, 0, 96, 0)
    def wfrag(k2):
        r = []
        for ct in range(4):
            for hf in range(2):
                r.append(f"ds_read_b64_tr_b16 {vr(WF+16*k2+4*ct+2*hf,2)}, v{vWc[ct]} offset:{L_WR + (32*k2+4*hf)*256}")
        return r
    def xread(buf):
        r = []
        for k2 in range(2):
            for s in range(2):
                r.append(f"ds_read_b128 {vr(XF[buf]+8*k2+4*s,4)}, v{vXr[2*s+k2]}")
        return r
    xadv = [f"s_add_u32 s{sXm0}, s{sXm0}, 1", f"s_cmp_eq_u32 s{sXm0}, {RX}", f"s_cselect_b32 s{sXm0}, 0, s{sXm0}",
            f"s_cselect_b32 s{sT1}, s{sWk}, s{sWcnt}",
            ] + [f"v_add_u32 v{c}, s{sT1}, v{c}" for c in vXr]
    wadv = [f"s_add_u32 s{sWsrc}, s{sWsrc}, 1", f"s_cmp_eq_u32 s{sWsrc}, {RW}", f"s_cselect_b32 s{sWsrc}, 0, s{sWsrc}",
            f"s_cselect_b32 s{sT2}, s{sWm0}, s{sGk}",
            ] + [f"v_add_u32 v{c}, s{sT2}, v{c}" for c in vWc]
    if OPT.get('noadv'):
        xadv = [''] * 8; wadv = [''] * 8
    a(f"""s_mov_b32 s{sWk}, {(-(RX-1)*8192) & 0xffffffff}
    s_mov_b32 s{sWcnt}, 8192
    s_mov_b32 s{sWm0}, {(-(RW-1)*WSL) & 0xffffffff}
    s_mov_b32 s{sGk}, {WSL}""")
    if OPT.get("rstpos", "late") == "late": reset_flags()
    if OPT.get("pf9", "1") == "1":
        a(f"""s_lshr_b32 s{sT0}, s2, 5
        s_bfe_u32 s{sT1}, s2, {(2 << 16) | 3}
        s_cmp_eq_u32 s{sWv}, 0
        s_cbranch_scc1 {K}_pfx
        s_cmp_eq_u32 s{sWv}, 1
        s_cbranch_scc0 {K}_pfw
        s_lshl_b32 s{sT2}, s{sT1}, 1
        s_sub_u32 s{sT2}, s{sT2}, 1
        s_cselect_b32 s{sT2}, 8, s{sT2}
        s_lshl_b32 s{sT2}, s{sT2}, 7
        s_lshl_b32 s{sT3}, s{sE}, 3
        s_add_u32 s{sT3}, s{sT3}, s{sT0}
        s_mul_i32 s{sT3}, s{sT3}, {32*1152}
        s_add_u32 s{sT2}, s{sT2}, s{sT3}
        v_mul_u32_u24 v75, 1152, v0
        s_mov_b32 exec_hi, 0
        buffer_load_dword v76, v75, s[{sX}:{sX+3}], s{sT2} offen
        s_branch {K}_pfd
        {K}_pfw:
        s_sub_u32 s{sT2}, s{sT0}, 1
        s_cselect_b32 s{sT2}, 8, s{sT2}
        s_lshl_b32 s{sT2}, s{sT2}, 2
        s_add_u32 s{sT2}, s{sT2}, s{sT1}
        s_mul_i32 s{sT2}, s{sT2}, {16*3456}
        s_and_b32 s{sT3}, s{sPr}, 15
        s_mul_i32 s{sT3}, s{sT3}, 72
        s_add_u32 s{sT2}, s{sT2}, s{sT3}
        s_mul_i32 s{sT3}, s{sTH}, 68
        s_add_u32 s{sT2}, s{sT2}, s{sT3}
        v_mul_u32_u24 v75, 1152, v0
        s_mov_b32 exec_hi, 0xffff
        buffer_load_dword v76, v75, s[{sW}:{sW+3}], s{sT2} offen
        {K}_pfd:
        s_mov_b64 exec, -1
        {K}_pfx:""")
    a("s_barrier")
    stamp(a, 1, 30)
    if OPT.get("rstpos", "late") == "afterp": reset_flags()
    for m in xread(0) + xadv + wfrag(0) + wfrag(1): a(m)
    QM, QT = 32, 48
    KF, V0, V1, KT = [80, 84], [88, 92], [96, 100], [56, 60]
    vGl = 26
    TP = 108
    def epi(tt):
        tp = (64, 80)[tt % 2]
        r = []
        for s in range(2):
            b = ACC + 32 * tt + 16 * s
            k_, q_ = tp + 2 * s, tp + 4 + 2 * s
            r += f"""v_cvt_pk_bf16_f32 v{k_}, v{b}, v{b+1}
            v_cvt_pk_bf16_f32 v{k_+1}, v{b+2}, v{b+3}
            v_mul_f32 v{b+4}, s65, v{b+4}
            v_mul_f32 v{b+5}, s65, v{b+5}
            v_mul_f32 v{b+6}, s65, v{b+6}
            v_mul_f32 v{b+7}, s65, v{b+7}
            ds_write_b64 v{vKw}, {vr(k_,2)} offset:{(tt>>1)*BLK + (tt&1)*1024 + s*64}
            v_cvt_pk_bf16_f32 v{q_}, v{b+4}, v{b+5}
            v_cvt_pk_bf16_f32 v{q_+1}, v{b+6}, v{b+7}
            v_cvt_pk_bf16_f32 v{tp+8+2*s}, v{b+8}, v{b+9}
            v_cvt_pk_bf16_f32 v{tp+9+2*s}, v{b+10}, v{b+11}
            ds_write_b64 v{vQw}, {vr(q_,2)} offset:{tt*1024 + s*256}""".split("\n")
        b = ACC + 32 * tt
        r += f"""ds_write_b128 v{vVw}, {vr(tp+8,4)} offset:{4608 + (tt>>1)*BLK + (tt&1)*1216}
        v_mul_f32 v{b+12}, v{vMul}, v{b+12}
        v_mul_f32 v{b+13}, v{vMul}, v{b+13}
        v_mul_f32 v{b+14}, v{vMul}, v{b+14}
        v_mul_f32 v{b+15}, v{vMul}, v{b+15}
        v_cvt_pk_bf16_f32 v{tp+12}, v{b+12}, v{b+13}
        v_cvt_pk_bf16_f32 v{tp+13}, v{b+14}, v{b+15}
        ds_write_b16 v{MA(tt,0)}, v{tp+12}
        ds_write_b16_d16_hi v{MA(tt,1)}, v{tp+12}
        ds_write_b16 v{MA(tt,2)}, v{tp+13}
        ds_write_b16_d16_hi v{MA(tt,3)}, v{tp+13}""".split("\n")
        return r
    NM = 14
    def chunk(last):
        for tt in range(4):
            cur = XF[tt & 1]
            mf = []
            for k2 in range(2):
                for ct in range(4):
                    for s in range(2 if ct < 3 else 1):
                        d = ACC + 32 * tt + 16 * s + 4 * ct
                        w_, x_ = vr(WF + 16 * k2 + 4 * ct, 4), vr(cur + 8 * k2 + 4 * s, 4)
                        A_, B_ = (x_, w_) if ct == 2 else (w_, x_)
                        mf.append(f"v_mfma_f32_16x16x32_bf16 {vr(d,4)}, {A_}, {B_}, {vr(d,4)}")
            fill = {i: [] for i in range(-1, NM)}
            xr = xread((tt + 1) & 1)
            if tt == 0:
                fill[-1].append("s_waitcnt lgkmcnt(8)")
                for i in range(4): fill[i].append(xr[i])
                fill[6].append("s_waitcnt lgkmcnt(4)")
                for i in range(8): fill[(4, 5, 7, 8, 9, 10, 11, 12)[i]].append(xadv[i])
                if last:
                    for i in range(4): fill[i].append(f"v_mov_b32 v{92+i}, 0x3f803f80")
                    fill[13] += ["s_mov_b64 exec, 0xffff", f"ds_write_b128 v{vOnes}, v[92:95] offset:{4608+288}", "s_mov_b64 exec, -1"]
            elif last:
                if tt < 3:
                    for i in range(4): fill[i // 2].append(xr[i])
                    if tt == 1:
                        for i in range(8): fill[2 + i // 3].append(xadv[i])
                e = epi(tt - 1)
                st = (0, 5, 2, 1)[tt]
                per = -(-len(e) // (NM - st))
                for i, m in enumerate(e): fill[st + i // per].append(m)
            elif tt == 3:
                for i in range(4): fill[-1 + (i + 1) // 2].append(xr[i])
                w0, w1 = wfrag(0), wfrag(1)
                lastuse = (1, 3, 5, 6)
                for ct in range(4):
                    fill[lastuse[ct]] += [w0[2 * ct]]; fill[lastuse[ct] + 1] += [w0[2 * ct + 1]]
                    fill[7 + lastuse[ct]] += [w1[2 * ct]]; fill[min(NM - 1, 8 + lastuse[ct])] += [w1[2 * ct + 1]]
                for i in range(8): fill[(2, 3, 4, 5, 7, 8, 9, 10)[i]].append(xadv[i])
                fill[11].append(f"s_sub_u32 s{sIt}, s{sIt}, 1")
            else:
                for i in range(4): fill[i].append(xr[i])
                for i in range(8): fill[4 + i].append(xadv[i])
                if tt == 1:
                    for i in range(4): fill[10 + i].append(wadv[i])
                if tt == 2:
                    for i in range(4): fill[10 + i].append(wadv[4 + i])
            if tt % 2 == 0: a("s_barrier")
            for m in fill[-1]: a(m)
            for i in range(NM):
                if not OPT.get("nomf"): a(mf[i])
                for m in fill[i]: a(m)
            if last:
                if tt == 0: a("s_waitcnt lgkmcnt(1)")
                elif tt == 1: a("s_waitcnt lgkmcnt(9)")
                elif tt == 2: a("s_waitcnt lgkmcnt(0)\ns_barrier")
            elif tt == 3:
                a(f"""s_waitcnt lgkmcnt(15)
                s_cmp_eq_u32 s{sIt}, s{sCnt}
                s_cbranch_scc1 {K}_rst
                {K}_rst_ret:
                s_cmp_lg_u32 s{sIt}, 0""")
            else:
                a("s_waitcnt lgkmcnt(0)")
    a(f"""s_mov_b32 s{sIt}, 8
    s_waitcnt lgkmcnt(0)
    {K}_p1:""")
    chunk(False)
    a(f"s_cbranch_scc1 {K}_p1")
    a("s_waitcnt vmcnt(0)")
    chunk(True)
    stamp(a, 2, 30)
    a("s_nop 1")
    for m in epi(3): a(m)
    S = [128, 144, 160, 176]
    O = [192, 208, 224, 240]
    zo = [f"v_mov_b32 v{O[x]+i}, 0" for x in range(4) for i in range(11)]
    zj = [f"v_mov_b32 v{O[x]+i}, 0" for x in range(4) for i in range(11, 16)]
    zq = [f"v_mov_b32 v{QT+4*j+i}, 0" for j in range(2) for i in (1, 2)]
    zs = [f"v_mov_b32 v{S[3]+8+i}, 0" for i in range(8)] + [f"v_mov_b32 v{V1[1]+i}, 0" for i in range(4)]
    for m in zo[:22] + zj[:10]: a(m)
    a("s_waitcnt lgkmcnt(0)")
    for x in range(4): a(f"ds_read_b128 {vr(QM+4*x,4)}, v{vQr} offset:{1024*x}")
    a("s_barrier")
    stamp(a, 3, 30)
    NB = int(OPT["nb"])
    T2F = OPT.get("t2f", "0") == "1"
    def ldK(t, buf): return f"ds_read_b128 {vr(KF[buf],4)}, v{vKa} offset:{((t//4)%NB)*BLK + (t%4)*1024}"
    def ldV(t, half, buf): return f"ds_read_b128 {vr((V0,V1)[half][buf],4)}, v{vVa} offset:{((t//4)%NB)*BLK + 4608 + (t%4)*1216 + 608*half}"
    def ldT(b=0): return f"ds_read_b128 {vr(KT[b%2],4)}, v{vTa} offset:{(b%NB)*BLK + 4096}"
    def QKM(t, x, s, c="0"): return f"v_mfma_f32_32x32x16_bf16 {vr(s,16)}, {vr(KF[t%2],4)}, {vr(QM+4*x,4)}, {c}"
    def QKT(t, x, s): return f"v_mfma_f32_32x32x4_2b_bf16 {vr(s,32)}, {vr(KT[(t//4)%2]+(t&2),2)}, {vr(QT+2*x+2*(t&1),2)}, {vr(s,32) if not T2F else 0}"
    def PV(half, t, x, s): return f"v_smfmac_f32_32x32x32_bf16 {vr(O[x],16)}, {vr((V0,V1)[half][t%2],4)}, {vr(s+8*half,8)}, v{vIdx}"
    a(ldK(0, 0))
    a(f"ds_read2_b32 {vr(TP,2)}, v{vSqh} offset0:0 offset1:2")
    a(ldT()); a(ldV(0, 0, 0)); a(ldV(0, 1, 0))
    a(f"ds_read_b128 {vr(vGl,4)}, v{vSq} offset:512")
    HOOKS = [1, 3, 7, 11, 13, 15]
    assert NB % 2 == 0
    for m in zq + zs: a(m)
    a(f"""s_mov_b32 s{sIt}, 0
    s_mov_b32 s{sWk}, {NB*BLK}
    s_mov_b32 s{sWcnt}, {(NB*BLK - RING) & 0xffffffff}
    s_waitcnt lgkmcnt(4)""")
    if not T2F:
        a(QKM(0, 0, S[0]))
        a(f"""v_mov_b32 v{QT}, v{TP}
    v_mov_b32 v{QT+3}, v{TP}
    v_mov_b32 v{QT+4}, v{TP+1}
    v_mov_b32 v{QT+7}, v{TP+1}""")
        a(QKM(0, 1, S[1]))
        for m in zo[22:27]: a(m)
        a(QKM(0, 2, S[2]))
        for m in zo[27:32]: a(m)
        a("s_waitcnt lgkmcnt(3)")
        a(QKT(0, 0, S[0]))
        for m in zo[32:]: a(m)
        for m in zj[10:]: a(m)
        a("s_waitcnt lgkmcnt(0)")
    else:
        a(f"""v_mov_b32 v{QT}, v{TP}
        v_mov_b32 v{QT+3}, v{TP}
        v_mov_b32 v{QT+4}, v{TP+1}
        v_mov_b32 v{QT+7}, v{TP+1}
        s_waitcnt lgkmcnt(3)""")
        a(QKT(0, 0, S[0]))
        for m in zo[22:40]: a(m)
        a(QKM(0, 0, S[0], vr(S[0], 16)))
        for m in zo[40:]: a(m)
        a(QKM(0, 1, S[1], vr(S[1], 16)))
        a("s_nop 5")
        a("s_waitcnt lgkmcnt(0)")
    if OPT.get("cprio"): a(f"s_setprio {OPT['cprio']}")
    hookblks = []
    a(".p2align 6")
    a(f"{K}_att:")
    pos = tuple(int(z) for z in OPT.get("pos", "2.5.10.14.22.26.30" if not T2F else "2.5.13.18.21.26.30").split("."))
    NIT = 16 // NB
    SB = lambda u: S[u % 4]
    for u in range(0, 16 * NB, 2):
        t, x = divmod(u, 4)
        blk, ub = divmod(u, 16)
        ins = {i: [] for i in range(33)}
        ins[pos[0]].append(PV(1, *divmod(u - 1, 4), SB(u - 1)))
        if not T2F:
            ins[pos[1]].append(QKM(*divmod(u + 3, 4), SB(u + 3)))
            ins[pos[2]].append(PV(0, t, x, SB(u)))
            ins[pos[3]].append(QKT(*divmod(u + 2, 4), SB(u + 2)))
            ins[pos[4]].append(PV(1, t, x, SB(u)))
            ins[pos[5]].append(PV(0, t, x + 1, SB(u + 1)))
            ins[pos[6]].append(QKM(*divmod(u + 4, 4), SB(u + 4)))
        else:
            ins[pos[1]].append(QKT(*divmod(u + 2, 4), SB(u + 2)))
            ins[pos[2]].append(PV(0, t, x, SB(u)))
            ins[pos[3]].append(PV(1, t, x, SB(u)))
            ins[pos[4]].append(QKM(*divmod(u + 2, 4), SB(u + 2), vr(SB(u + 2), 16)))
            ins[pos[5]].append(PV(0, t, x + 1, SB(u + 1)))
            ins[pos[6]].append(QKM(*divmod(u + 3, 4), SB(u + 3), vr(SB(u + 3), 16)))
        if x == 0:
            ins[pos[0]].append(ldV(t + 1, 1, (t + 1) % 2))
            ins[pos[1]].append(ldK(t + 1, (t + 1) % 2))
            ins[pos[2]].append(ldV(t + 1, 0, (t + 1) % 2))
            if ub == 12: ins[pos[3]].append(ldT(blk + 1))
            ins[pos[5]].append("s_waitcnt lgkmcnt(0)")
        if ub == 10:
            if blk == NB - 1:
                ins[pos[0]].append(f"s_cmp_eq_u32 s{sIt}, {NIT//2 - 1}")
                ins[pos[1]].append(f"s_cselect_b32 s{sT0}, s{sWcnt}, s{sWk}")
                ins[pos[2]].append(f"v_add_u32 v{vKa}, s{sT0}, v{vKa}")
                ins[pos[3]].append(f"v_add_u32 v{vTa}, s{sT0}, v{vTa}")
                ins[pos[4]].append(f"v_add_u32 v{vVa}, s{sT0}, v{vVa}")
            its = [it for it in range(NIT) if it * NB + blk in HOOKS]
            if len(its) == NIT and (not OPT["stamp"] or OPT.get("light")):
                ins[pos[6]].append("s_barrier")
            elif its:
                ins[pos[6]] += [f"s_bitcmp1_b32 {sum(1 << i for i in its)}, s{sIt}", f"s_cbranch_scc1 {K}_hook{blk}", f"{K}_hook_ret{blk}:"]
                hookblks.append(blk)
        if u == 16 * NB - 2:
            ins[pos[5]].append(f"s_add_u32 s{sIt}, s{sIt}, 1")
            ins[pos[6]].append(f"s_cmp_lt_u32 s{sIt}, {NIT}")
        for i in range(32):
            for m in ins[i]: a(m)
            a(f"v_exp_f32 v{SB(u)+i}, v{SB(u)+i}")
    if OPT.get("light"):
        a(f"""s_memtime s[82:83]
        s_memrealtime s[80:81]
        s_add_u32 m0, s{sIt}, 15
        s_waitcnt lgkmcnt(0)
        v_writelane_b32 v30, s80, m0
        v_writelane_b32 v31, s82, m0
        s_cmp_lt_u32 s{sIt}, {NIT}""")
    a(f"s_cbranch_scc1 {K}_att")
    a("s_nop 1")
    a(PV(1, 3, 3, S[3]))
    stamp(a, 8, 30)
    CC = [5, 6, 7, 8]
    R8 = [64, 68, 72, 76, 104, 108, 112, 116, 120]
    RL = list(range(32, 64, 4)) + list(range(80, 104, 4)) + [124] + list(range(128, 176, 4))
    creg = lambda s, ct: R8[s] if ct == 8 else RL[3 * s + ct - 5]
    for x in range(4): a(f"v_lshlrev_b32 v{vGl+x}, 16, v{vGl+x}")
    for x in range(4): a(f"v_mul_f32 v{vGl+x}, s60, v{vGl+x}")
    for x in range(4): a(f"v_exp_f32 v{vGl+x}, v{vGl+x}")
    l_ = [O[x] + 10 for x in range(4)]
    tq = [2, 3, 4, 5]
    a(f"""v_add_f32 v2, v{l_[0]}, v{l_[1]}
    v_min3_f32 v3, v{l_[0]}, v{l_[1]}, v{l_[2]}
    v_add_f32 v2, v2, v{l_[2]}
    s_waitcnt lgkmcnt(0)
    v_add_f32 v2, v2, v{l_[3]}
    v_min_f32 v3, v3, v{l_[3]}
    v_cmp_ge_f32 s[{sEx}:{sEx+1}], s64, v2
    v_cmp_le_f32 vcc, s61, v3
    s_nop 1
    s_and_b32 vcc_lo, vcc_lo, s{sEx}
    s_cmp_eq_u32 vcc_lo, -1
    s_cbranch_scc0 {K}_fbchk
    {K}_fbdone:""")
    cp = [f"ds_read_b128 {vr(creg(s_,ct),4)}, v{vCp} offset:{1024*(3*s_+i)}" for s_ in range(9) for i, ct in enumerate(CL)]
    for x in range(4): a(f"v_mov_b32 v{tq[x]}, v{O[x]+10}")
    a(cp.pop(0))
    for x in range(4): a(f"v_permlane32_swap_b32 v{O[x]+10}, v{tq[x]}")
    a(cp.pop(0))
    for x in range(4): a(f"v_fma_f32 v{tq[x]}, v{O[x]+10}, v{vGl+x}, v{O[x]+10}")
    for x in range(4): a(f"v_rcp_f32 v{tq[x]}, v{tq[x]}")
    a(cp.pop(0))
    for x in range(4):
        o = O[x]
        sel = "op_sel_hi:[1,0]" if x % 2 == 0 else "op_sel:[0,1]"
        for i in range(0, 10, 2): a(f"v_pk_mul_f32 {vr(o+i,2)}, {vr(o+i,2)}, {vr(tq[x & 2],2)} {sel}")
        for i in range(4): a(f"v_cvt_pk_bf16_f32 v{o+12+i}, v{o+2*i}, v{o+2*i+1}")
        a(f"""v_cvt_pk_bf16_f32 v{o+11}, v{o+8}, v{o+9}
        buffer_store_dwordx4 {vr(o+12,4)}, v{vSt}, s[{sWS}:{sWS+3}], s{56+x} offen sc1""")
        if x % 2 == 1:
            a(cp.pop(0))
            a(f"""v_permlane32_swap_b32 v{O[x-1]+11}, v{o+11}
            buffer_store_dword v{O[x-1]+11}, v{vStt}, s[{sWS}:{sWS+3}], s{4+(x>>1)} offen offset:1024 sc1""")
    for m in cp: a(m)
    stamp(a, 9, 30)
    a(f"""v_mov_b32 v6, {L_SYNC + 20}
    v_mov_b32 v7, 1
    s_setprio {OPT.get("p3prio", 2)}
    s_mov_b64 exec, 1
    s_waitcnt lgkmcnt(0)
    ds_add_u32 v6, v7
    s_mov_b64 exec, -1""")
    vOm, vOt, vRd = [2, 8], 3, 4
    p3_addr_o(a, vOm, vOt, vRd, [9, 10], 5, 11, 12, 13)
    for i in range(32): a(f"v_mov_b32 v{224+i}, 0")
    stamp(a, 10, 30)
    if OPT.get("drain"):
        a("s_waitcnt vmcnt(0)")
        stamp(a, 12, 30)
    p3_comp(a, CC, creg, 224, 176, vOm, vOt, vRd, 5, [9, 10])
    stamp(a, 11, 30)
    a(f"{K}_final:")
    final_reduce(a, K, 30)
    a(f"{K}_end:")
    a("s_endpgm")
    a(f"""{K}_rst:
    s_lshl_b32 s{sT0}, s{sPr}, 2
    v_mov_b32 v28, s{sT0}
    v_mov_b32 v29, 1
    s_mov_b64 exec, 1
    s_waitcnt vmcnt(0)
    buffer_atomic_add v29, v28, s[{sD}:{sD+3}], 0 offen
    s_mov_b64 exec, -1
    s_branch {K}_rst_ret""")
    for blk in hookblks:
        a(f"{K}_hook{blk}:")
        if OPT["stamp"]:
            for hb, i_ in ((1, 4), (3, 6)):
                if hb % NB == blk:
                    a(f"s_cmp_eq_u32 s{sIt}, {hb // NB}\ns_cbranch_scc0 {K}_hk{hb}")
                    stamp(a, i_, 30); a("s_barrier"); stamp(a, i_ + 1, 30); a(f"s_branch {K}_hook_ret{blk}")
                    a(f"{K}_hk{hb}:")
        if 13 % NB == blk:
            a(f"""s_cmp_eq_u32 s{sIt}, {13 // NB}
            s_cbranch_scc0 {K}_hkb{blk}""")
            if not OPT.get('x_no8'): p3_wo_loads(a, [8], creg, vWm3, vWt)
            a(f"{K}_hkb{blk}:")
        a(f"""s_barrier
        s_branch {K}_hook_ret{blk}""")
    FQ = S[3]
    a(f"{K}_fbchk:")
    for x in range(4):
        a(f"""v_cmp_le_f32 vcc, s61, v{O[x]+10}
        v_cmp_ge_f32 s[{sEx}:{sEx+1}], s64, v{O[x]+10}
        s_nop 1
        s_and_b32 vcc_lo, vcc_lo, s{sEx}
        s_cmp_eq_u32 vcc_lo, -1
        s_cbranch_scc0 {K}_fb{x}
        {K}_fbret{x}:""")
    a(f"s_branch {K}_fbdone")
    for x in range(4):
        a(f"{K}_fb{x}:")
        for i in range(4): a(f"v_mov_b32 v{FQ+i}, v{QM+4*x+i}")
        for i in range(4): a(f"v_mov_b32 v{FQ+4+i}, 0")
        a(f"""s_mov_b32 {'exec_hi' if x % 2 == 0 else 'exec_lo'}, 0
        v_mov_b32 v{FQ+4}, v{QT+4*(x>>1)}
        v_mov_b32 v{FQ+7}, v{QT+4*(x>>1)}
        s_mov_b64 exec, -1""")
        a(f"s_call_b64 s[{sRet}:{sRet+1}], {K}_slow")
        for i in range(16): a(f"v_mov_b32 v{O[x]+i}, v{S[2]+i}")
        a(f"s_branch {K}_fbret{x}")
    a(f"{K}_slow:")
    vb, vc, vm = 11, 12, 13
    sA, sB = sWsrc, sWm0
    t0 = 9
    a(f"""v_lshlrev_b32 v{t0}, 4, v0
    v_and_b32 v{vm}, 31, v0
    v_lshlrev_b32 v{vb}, 4, v{vm}
    v_lshrrev_b32 v{vc}, 5, v0
    v_mul_u32_u24 v{vc}, 304, v{vc}
    v_lshl_add_u32 v{vc}, v{vm}, 4, v{vc}
    v_cmp_lt_u32 vcc, 18, v{vm}
    v_mov_b32 v{vm}, 0x40000000
    s_nop 1
    v_cndmask_b32 v{vc}, v{vc}, v{vm}, vcc""")
    def slow_qk(t, c):
        a(f"""v_mfma_f32_32x32x16_bf16 {vr(S[0],16)}, {vr(KF[0],4)}, {vr(FQ,4)}, {c}
        v_mfma_f32_32x32x8_bf16 {vr(S[0],16)}, {vr(KT[0]+(t&2),2)}, {vr(FQ+4+2*(t&1),2)}, {vr(S[0],16)}
        s_nop 15""")
    def slow_next(lbl):
        a(f"""s_add_u32 s{sA}, s{sA}, {BLK}
        s_sub_u32 s{sIt}, s{sIt}, 1
        s_cmp_lg_u32 s{sIt}, 0
        s_cbranch_scc1 {lbl}""")
    a(f"""v_mov_b32 v{vm}, 0xff800000
    s_mov_b32 s{sA}, s{sKVg}
    s_mov_b32 s{sIt}, 16
    {K}_sl1:
    s_add_u32 s{sB}, s{sA}, 4096
    buffer_load_dwordx4 {vr(KT[0],4)}, v{vb}, s[{sWS}:{sWS+3}], s{sB} offen sc1""")
    for t in range(4):
        a(f"""buffer_load_dwordx4 {vr(KF[0],4)}, v{t0}, s[{sWS}:{sWS+3}], s{sA} offen offset:{1024*t} sc1
        s_waitcnt vmcnt(0)""")
        slow_qk(t, "0")
        for i in range(8): a(f"v_max3_f32 v{vm}, v{S[0]+2*i}, v{S[0]+2*i+1}, v{vm}")
    slow_next(f"{K}_sl1")
    a(f"""v_mov_b32 v{S[0]}, v{vm}
    s_nop 1
    v_permlane32_swap_b32 v{vm}, v{S[0]}
    s_nop 1
    v_max_f32 v{vm}, v{vm}, v{S[0]}""")
    for i in range(16):
        a(f"v_sub_f32 v{S[1]+i}, 0, v{vm}")
        a(f"v_mov_b32 v{S[2]+i}, 0")
    a(f"""s_mov_b32 s{sA}, s{sKVg}
    s_mov_b32 s{sIt}, 16
    {K}_sl2:
    s_add_u32 s{sB}, s{sA}, 4096
    buffer_load_dwordx4 {vr(KT[0],4)}, v{vb}, s[{sWS}:{sWS+3}], s{sB} offen sc1""")
    for t in range(4):
        a(f"""buffer_load_dwordx4 {vr(KF[0],4)}, v{t0}, s[{sWS}:{sWS+3}], s{sA} offen offset:{1024*t} sc1
        s_add_u32 s{sB}, s{sA}, {4608+1216*t}
        buffer_load_dwordx4 {vr(V0[0],4)}, v{vc}, s[{sWS}:{sWS+3}], s{sB} offen sc1
        buffer_load_dwordx4 {vr(V1[0],4)}, v{vc}, s[{sWS}:{sWS+3}], s{sB} offen offset:608 sc1
        s_waitcnt vmcnt(0)""")
        slow_qk(t, vr(S[1], 16))
        for i in range(16): a(f"v_exp_f32 v{S[0]+i}, v{S[0]+i}")
        a(f"""s_nop 3
        v_smfmac_f32_32x32x32_bf16 {vr(S[2],16)}, {vr(V0[0],4)}, {vr(S[0],8)}, v{vIdx}
        v_smfmac_f32_32x32x32_bf16 {vr(S[2],16)}, {vr(V1[0],4)}, {vr(S[0]+8,8)}, v{vIdx}
        s_nop 7""")
    slow_next(f"{K}_sl2")
    a(f"""s_nop 15
    s_setpc_b64 s[{sRet}:{sRet+1}]""")

def main(out):
    ka = f"{NAME}_kernel"
    a = Asm(); kernel(a)
    t = f"""; gated mix of two MHA blocks (both on A_x): one fused kernel, written with the generator gen/gen_final.py
; @launch grid=(256,1,1) block=(512,1,1) lds={LDS_BYTES}
;
; Workgroup = (pair of adjacent heads of one branch, 256 tokens); waves 0-3 compute, waves 4-7 load / hand off.
;     P = exp2(S), O^T/l accumulated by a sparse MFMA that reads the high halves of the f32 P registers;
.amdgcn_target "amdgcn-amd-amdhsa--gfx950"
.text
.globl {ka}
.p2align 8
.type {ka},@function
{ka}:
{a.text()}.section .rodata,"a"
.p2align 6
.amdhsa_kernel {ka}
  .amdhsa_next_free_vgpr 256
  .amdhsa_next_free_sgpr 102
  .amdhsa_accum_offset 256
  .amdhsa_group_segment_fixed_size 0
  .amdhsa_kernarg_size 80
  .amdhsa_user_sgpr_count 2
  .amdhsa_user_sgpr_kernarg_segment_ptr 1
  .amdhsa_system_sgpr_workgroup_id_x 1
.end_amdhsa_kernel
"""
    open(out, "w").write(t)

if __name__ == "__main__":
    for kv in sys.argv[2:]:
        k, v = kv.split("=")
        OPT[k] = {"True": True, "False": False}.get(v, v)
    main(sys.argv[1])
```

```python
import sys, struct

NAME = "gated_mix__mha_block__mha_block__prompt"
def f32(x): return "0x%08x" % struct.unpack("<I", struct.pack("<f", x))[0]
CSCALE = (18 ** -0.5) * 1.4426950408889634
LOG2E = 1.4426950408889634

BLK = 9472
KVH = 16 * BLK
RING = 8 * BLK
WS_O = 0x0A00000
WS_WOM = 0x0F00000
WS_WOT = 0x1080000
WS_F = 0x10C0000
WS_STAMP = 0x1100000
WS_SIZE = 0x1200000
SENT = 0xffffffff
L_WR = 0
WSL = 16384
RW = 3
L_XR = 98304
L_SCR = 49152
L_GT = 155648
L_SYNC = L_GT + 3 * 2048 + 1536
L_WO = 151552
LDS_BYTES = 163840
RS = 592
STRAD = sum(1 << p for p in range(32) if (72 * (p & 15)) % 128 > 56)
L_OA = 6 * BLK
L_OB = 94720
PLANE = 32 * RS

class Asm:
    def __init__(self): self.l = []
    def __call__(self, s):
        for x in s.strip("\n").split("\n"):
            x = x.strip()
            if not x: continue
            self.l.append(x if x.endswith(":") or x.startswith(";") else "    " + x)
    def text(self): return "\n".join(self.l) + "\n"

def vr(a, n): return f"v[{a}:{a+n-1}]"
OPT = dict(force_fb=False, stamp=False, rx="7", txor="1", nb="4", cprio="2", hp3="1", pf9="0", rf="1.2.2.2.1", tx4="5")

def srd(a, d, lo, hi, size):
    a(f"""s_mov_b32 s{d}, s{lo}
    s_and_b32 s{d+1}, s{hi}, 0xffff
    s_mov_b32 s{d+2}, {size}
    s_mov_b32 s{d+3}, 0x00020000""")

sX, sW, sWo, sG, sD, sWS, sOut = 8, 12, 16, 20, 24, 28, 84
sWv, sPr, sE, sHd, sRot = 32, 33, 34, 35, 36
sT0, sT1, sT2, sT3 = 37, 38, 39, 40
sRef, sCnt, sKo, sXb, sRing, sIt, sKVg, sSpin, sW8 = 41, 42, 43, 44, 45, 46, 47, 48, 49
sRet, sEx = 50, 52
sWsrc, sWm0, sWk, sWcnt, sXm0, sGk, sTt, sBH = 54, 55, 62, 63, 76, 77, 78, 79
sP3T, sP3C, sOb, sWmb, sWtb, sHH, sTH, sOtb = 88, 89, 90, 91, 92, 93, 94, 95
SV = 254
sLA, sLB = 74, 75
sGO = [66, 67, 68, 69]
sGW = [70, 71, 72, 73]

def stamp(a, idx, vreg):
    if not OPT["stamp"]: return
    a(f"""s_memrealtime s[80:81]
    s_memtime s[82:83]
    s_waitcnt lgkmcnt(0)
    v_writelane_b32 v{vreg}, s80, {idx}
    v_writelane_b32 v{vreg+1}, s82, {idx}""")
def sstamp(a, k):
    if not OPT["stamp"]: return
    a(f"""s_memrealtime s[80:81]
    s_waitcnt lgkmcnt(0)
    s_mov_b32 s{96+k}, s80""")
def stamp_out(a, vreg, vt=1, mask=None):
    if not OPT["stamp"]: return
    a(f"""s_lshl_b32 s80, s2, 3
    s_add_u32 s80, s80, s{sW8}
    s_lshl_b32 s80, s80, 8
    s_add_u32 s80, s80, {WS_STAMP}
    v_lshlrev_b32 v{vt}, 3, v0
    s_mov_b32 exec_hi, 0""")
    if mask is not None: a(f"s_mov_b32 exec_lo, {mask}")
    a(f"""buffer_store_dwordx2 v[{vreg}:{vreg+1}], v{vt}, s[{sWS}:{sWS+3}], s80 offen
    s_mov_b64 exec, -1""")

def p3_addr_w(a, vWm, vWt, t0, t1, t2):
    a(f"""v_and_b32 v{t0}, 15, v0
    v_lshrrev_b32 v{t1}, 5, v0
    v_bfe_u32 v{t2}, v0, 4, 1
    v_mul_u32_u24 v{vWm}, 4608, v{t1}
    v_lshl_add_u32 v{vWm}, v{t2}, 8, v{vWm}
    v_lshl_add_u32 v{vWm}, v{t0}, 4, v{vWm}
    v_xor_b32 v{t1}, s{sP3C}, v{t1}
    v_and_b32 v{t1}, 1, v{t1}
    v_lshl_add_u32 v{t2}, v{t1}, 3, v{t2}
    v_mul_u32_u24 v{vWt}, 2304, v{t2}
    v_lshl_add_u32 v{vWt}, v{t0}, 4, v{vWt}""")
def p3_addr_o(a, vOm, vOt, vRd, vVa, vSy, t0, t1, t2):
    a(f"""v_and_b32 v{t0}, 15, v0
    v_lshrrev_b32 v{t1}, 5, v0
    v_bfe_u32 v{t2}, v0, 4, 1
    v_lshlrev_b32 v{vOm[0]}, 4, v0
    v_mul_u32_u24 v{vOt}, 4608, v{t1}
    v_lshl_add_u32 v{vOt}, v{t2}, 8, v{vOt}
    v_lshl_add_u32 v{vOt}, v{t0}, 2, v{vOt}
    v_add_u32 v{vOm[1]}, s{sLB}, v{vOm[0]}
    v_add_u32 v{vOm[0]}, s{sLA}, v{vOm[0]}
    v_lshrrev_b32 v{t1}, 4, v0
    v_mul_u32_u24 v{vRd}, {RS}, v{t0}
    v_lshl_add_u32 v{vRd}, v{t1}, 4, v{vRd}
    s_cmp_eq_u32 s{sWv}, 3
    s_cselect_b32 s{sT3}, 4, s{sWv}
    s_mul_i32 s{sT3}, s{sT3}, {PLANE}
    v_add_u32 v{vRd}, s{sT3}, v{vRd}
    v_lshlrev_b32 v{vVa[0]}, 3, v0
    v_add_u32 v{vVa[0]}, 4096, v{vVa[0]}
    v_add_u32 v{vVa[1]}, s{sLB}, v{vVa[0]}
    v_add_u32 v{vVa[0]}, s{sLA}, v{vVa[0]}
    s_lshl_b32 s{sT3}, s{sWv}, 2
    s_add_u32 s{sT3}, s{sT3}, {L_SYNC + 32}
    v_mov_b32 v{vSy}, s{sT3}""")
def p3_scal(a):
    a(f"""s_and_b32 s{sP3T}, s2, 7
    s_lshr_b32 s{sT0}, s2, 5
    s_lshl_b32 s{sT0}, s{sT0}, 3
    s_add_u32 s{sP3T}, s{sP3T}, s{sT0}
    s_lshr_b32 s{sP3C}, s2, 3
    s_and_b32 s{sP3C}, s{sP3C}, 3
    s_lshl_b32 s{sOb}, s{sP3T}, 7
    s_lshl_b32 s{sT3}, s{sWv}, 3
    s_add_u32 s{sOb}, s{sOb}, s{sT3}
    s_mul_i32 s{sOb}, s{sOb}, 576
    s_add_u32 s{sOb}, s{sOb}, {WS_O}
    s_lshl_b32 s{sWmb}, s{sP3C}, 6
    s_add_u32 s{sWmb}, s{sWmb}, s{sT3}
    s_mul_i32 s{sWmb}, s{sWmb}, 4608
    s_add_u32 s{sWmb}, s{sWmb}, {WS_WOM}
    s_lshl_b32 s{sWtb}, s{sP3C}, 3
    s_add_u32 s{sWtb}, s{sWtb}, s{sWv}
    s_mul_i32 s{sWtb}, s{sWtb}, 4608
    s_add_u32 s{sWtb}, s{sWtb}, {WS_WOT}
    s_mul_i32 s{sLA}, s{sHH}, {RING}
    s_mul_i32 s{sT3}, s{sTH}, 9216
    s_add_u32 s{sLA}, s{sLA}, s{sT3}
    s_add_u32 s{sLA}, s{sLA}, {L_OA}
    s_mul_i32 s{sLB}, s{sWv}, 9216
    s_add_u32 s{sLB}, s{sLB}, {L_OB}""")
    for g in range(2):
        a(f"""s_add_u32 s{sT3}, s{sP3C}, {g}
        s_and_b32 s{sT3}, s{sT3}, 1
        s_mul_i32 s{sGO[g]}, s{sT3}, {32*576}
        s_add_u32 s{sGO[g]}, s{sGO[g]}, s{sOb}
        s_add_u32 s{sGO[g+2]}, s{sGO[g]}, {64*576}
        s_mul_i32 s{sGW[g]}, s{sT3}, {32*4608}
        s_add_u32 s{sGW[g]}, s{sGW[g]}, s{sWmb}""")
def p3_wo_loads(a, cts, reg, vWm, vWt, steps=range(9)):
    for s in range(8):
        if s not in steps: continue
        a(f"s_add_u32 s{sT3}, s{sGW[s>>2]}, {2*(s&3)*4608 + 512*cts[0]}")
        for i, ct in enumerate(cts):
            a(f"buffer_load_dwordx4 {vr(reg(s,ct),4)}, v{vWm}, s[{sWS}:{sWS+3}], s{sT3} offen offset:{512*i} sc1")
    for ct in (cts if 8 in steps else []):
        a(f"buffer_load_dwordx4 {vr(reg(8,ct),4)}, v{vWt}, s[{sWS}:{sWS+3}], s{sWtb} offen offset:{256*ct} sc1")
def p3_oread(a, g, OF, vOm):
    for k in range(4):
        a(f"ds_read_b128 {vr(OF+4*k,4)}, v{vOm[g>>1]} offset:{4608*(g&1) + 1024*k}")
def p3_unit(a, cts, reg, AC, g, OF):
    for k in range(4):
        for i, ct in enumerate(cts):
            d = AC + 8 * i + 4 * (g >> 1)
            a(f"v_mfma_f32_16x16x32_bf16 {vr(d,4)}, {vr(reg(4*(g&1)+k,ct),4)}, {vr(OF+4*k,4)}, {vr(d,4)}")
def p3_mf(a, cts, reg, AC, st, o):
    for i, ct in enumerate(cts):
        for th in range(2):
            d = AC + 8 * i + 4 * th
            a(f"v_mfma_f32_16x16x32_bf16 {vr(d,4)}, {vr(reg(st,ct),4)}, {vr(o+4*th,4)}, {vr(d,4)}")
def p3_tail(a, cts, reg, AC, OF, vOt, vRd):
    for th in range(2):
        a(f"v_add_u32 v1, s{(sLA, sLB)[th]}, v{vOt}")
        for i in range(4):
            a(f"ds_read_b32 v{OF+4*th+i}, v1 offset:{64*i + 4096}")
    final_addr(a)
    a("s_waitcnt lgkmcnt(0)")
    p3_mf(a, cts, reg, AC, 8, OF)
    sstamp(a, 5)
    a("s_nop 7")
    for i, ct in enumerate(cts):
        for th in range(2):
            a(f"ds_write_b128 v{vRd}, {vr(AC+8*i+4*th,4)} offset:{16*th*RS + 64*ct}")
def p3_hint_addr(a, OF):
    vHa, vE4 = OF + 21, OF + 22
    a(f"""v_and_b32 v1, 7, v0
    v_lshlrev_b32 v{vHa}, 6, v1
    v_add_u32 v{vHa}, 4096, v{vHa}
    s_and_b32 s{sT3}, s{sP3C}, 1
    v_bfe_u32 v1, v0, 3, 2
    v_xor_b32 v1, s{sT3}, v1
    v_mul_u32_u24 v1, {32*576}, v1
    v_add_u32 v{vHa}, v{vHa}, v1
    v_mov_b32 v{vE4}, {L_SYNC + 20}""")
def p3_helper(a, cts, reg, AC, OF, vOm, vOt, vRd, vL16, vVa, vSy, slp):
    L = "h3"
    WIDE = OPT.get("wide", "0") == "1"
    sDone = sCnt
    def dma(g):
        lb = (sLA, sLB)[g >> 1]
        a(f"""s_add_u32 m0, s{lb}, {4608*(g&1)}
        s_add_u32 s{sT3}, s{sGO[g]}, 4096""")
        for i in range(4):
            a(f"buffer_load_dwordx4 v{vL16}, s[{sWS}:{sWS+3}], s{sGO[g]} offen offset:{1024*i} sc1 lds")
        a(f"""s_add_u32 m0, s{lb}, {4608*(g&1) + 4096}
        s_mov_b32 exec_hi, 0
        buffer_load_dwordx4 v{vL16}, s[{sWS}:{sWS+3}], s{sT3} offen sc1 lds
        s_mov_b64 exec, -1""")
    sFly, sLand, sTry, sBlk_, sFirst, sNum, sNext = sWk, sWcnt, sKo, sXb, sRef, sXm0, sGk
    vH, vHa, vE4 = OF + 18, OF + 21, OF + 22
    a(f"""s_mov_b32 s{sSpin}, 60000
    s_mov_b32 s{sIt}, {SENT}
    s_mov_b32 s{sDone}, 0
    s_mov_b32 s{sFly}, 0
    s_mov_b32 s{sLand}, 0
    s_mov_b32 s{sBlk_}, 12
    s_mov_b32 s{sFly}, 3""")
    dma(0); dma(1)
    a(f"""{L}_round:
    s_or_b32 s{sT0}, s{sDone}, s{sFly}
    s_andn2_b32 s{sT0}, 15, s{sT0}
    s_cbranch_scc1 {L}_hint
    s_waitcnt vmcnt(0)
    s_branch {L}_nohint
    {L}_hint:
    s_mul_i32 s{sT0}, s{sT0}, 0x00204081
    s_and_b32 s{sT0}, s{sT0}, 0x01010101
    s_mul_i32 exec_lo, s{sT0}, 0xff
    s_mov_b32 exec_hi, 0
    buffer_load_dword v{vH}, v{vHa}, s[{sWS}:{sWS+3}], s{sOb} offen sc1
    s_mov_b64 exec, -1
    {L}_nohint:
    s_cmp_eq_u32 s{sFly}, 0
    s_cbranch_scc1 {L}_nofly
    s_or_b32 s{sLand}, s{sLand}, s{sFly}
    s_waitcnt vmcnt(1)
    v_mov_b32 v{vH+1}, s{sLand}
    ds_write_b32 v{vSy}, v{vH+1}
    {L}_nofly:
    s_mov_b32 s{sTry}, s{sFly}
    s_or_b32 s{sT1}, s{sDone}, s{sTry}
    s_cmp_eq_u32 s{sT1}, 15
    s_mov_b32 s{sFly}, 0
    s_cbranch_scc1 {L}_work""")
    if int(OPT.get("spec", 0)):
        a(f"""s_bcnt1_i32_b32 s{sT0}, s{sT1}
        s_mov_b32 vcc_lo, -1
        s_cmp_ge_u32 s{sT0}, {4 - int(OPT["spec"])}
        s_cselect_b32 s{sT0}, s{sBlk_}, 1
        s_cmp_eq_u32 s{sT0}, 0
        s_cbranch_scc1 {L}_spec""")
    a(f"""s_waitcnt vmcnt(0)
    ds_read_b32 v1, v{vE4}
    v_cmp_ne_u32 vcc, s{sIt}, v{vH}
    s_waitcnt lgkmcnt(0)
    v_readfirstlane_b32 s{sT0}, v1
    s_cmp_ge_u32 s{sT0}, 4
    s_cselect_b32 s{sBlk_}, 0, s{sBlk_}
    s_or_b32 s{sT1}, s{sT1}, s{sBlk_}
    {L}_spec:""")
    for g in range(4):
        a(f"""s_bitcmp1_b32 s{sT1}, {g}
        s_cbranch_scc1 {L}_l{g}
        s_bfe_u32 s{sT0}, vcc_lo, {(8 << 16) | (8 * g)}
        s_cmp_eq_u32 s{sT0}, 0xff
        s_cbranch_scc0 {L}_l{g}
        s_bitset1_b32 s{sFly}, {g}""")
        dma(g)
        a(f"{L}_l{g}:")
    a(f"{L}_work:")
    for g in range(4):
        a(f"""s_bitcmp1_b32 s{sTry}, {g}
        s_cbranch_scc0 {L}_n{g}""")
        p3_check(a, g, OF, vOm, vVa)
        a(f"""s_cbranch_vccnz {L}_n{g}
        s_bitset1_b32 s{sDone}, {g}""")
        stamp(a, 27 + g, SV)
        p3_unit(a, cts, reg, AC, g, OF)
        a(f"{L}_n{g}:")
    a(f"""s_cmp_eq_u32 s{sDone}, 15
    s_cbranch_scc1 {L}_done
    s_sub_u32 s{sSpin}, s{sSpin}, 1
    s_cmp_lt_i32 s{sSpin}, 0
    s_cbranch_scc1 {L}_done
    s_or_b32 s{sT0}, s{sFly}, s{sTry}
    s_cbranch_scc1 {L}_round
    s_sleep {slp}
    s_branch {L}_round
    {L}_done:
    s_waitcnt vmcnt(0)""")
    p3_tail(a, cts, reg, AC, OF, vOt, vRd)
def p3_check(a, g, OF, vOm, vVa):
    p3_oread(a, g, OF, vOm)
    a(f"""ds_read_b64 {vr(OF+16,2)}, v{vVa[g>>1]} offset:{4608*(g&1)}
    s_waitcnt lgkmcnt(3)
    v_max3_u32 v1, v{OF}, v{OF+1}, v{OF+2}
    v_max3_u32 v1, v{OF+3}, v{OF+4}, v1
    v_max3_u32 v1, v{OF+5}, v{OF+6}, v1
    s_waitcnt lgkmcnt(0)
    v_max3_u32 v1, v{OF+7}, v{OF+8}, v1
    v_max3_u32 v1, v{OF+9}, v{OF+10}, v1
    v_max3_u32 v1, v{OF+11}, v{OF+12}, v1
    v_max3_u32 v1, v{OF+13}, v{OF+14}, v1
    v_max3_u32 v1, v{OF+15}, v{OF+16}, v1
    v_max_u32 v1, v{OF+17}, v1
    v_cmp_eq_u32 vcc, s{sIt}, v1
    s_nop 1""")
def p3_comp(a, cts, reg, AC, OF, vOm, vOt, vRd, vSy, vVa):
    L = "c3"
    sDone = sCnt
    a(f"""s_mov_b32 s{sSpin}, 400000
    s_mov_b32 s{sIt}, {SENT}
    s_mov_b32 s{sDone}, 0
    s_waitcnt vmcnt(6)
    {L}_round:
    ds_read_b32 v1, v{vSy}
    s_waitcnt lgkmcnt(0)
    v_readfirstlane_b32 s{sT0}, v1
    s_andn2_b32 s{sT0}, s{sT0}, s{sDone}""")
    for g in range(4):
        a(f"""s_bitcmp1_b32 s{sT0}, {g}
        s_cbranch_scc0 {L}_n{g}""")
        p3_check(a, g, OF, vOm, vVa)
        a(f"""s_cbranch_vccnz {L}_n{g}
        s_bitset1_b32 s{sDone}, {g}""")
        t_ = Asm(); p3_unit(t_, cts, reg, AC, g, OF)
        for i_, m in enumerate(t_.l):
            a(m)
            if g < 3 and i_ == 5: a(f"ds_read_b32 v1, v{vSy}")
        if g < 3:
            a(f"""s_waitcnt lgkmcnt(0)
            v_readfirstlane_b32 s{sT0}, v1
            s_andn2_b32 s{sT0}, s{sT0}, s{sDone}""")
        a(f"{L}_n{g}:")
    a(f"""s_cmp_eq_u32 s{sDone}, 15
    s_cbranch_scc1 {L}_done
    s_sub_u32 s{sSpin}, s{sSpin}, 1
    s_cmp_lt_i32 s{sSpin}, 0
    s_cbranch_scc0 {L}_round
    {L}_done:""")
    p3_tail(a, cts, reg, AC, OF, vOt, vRd)

def srd_tail(a, d, size):
    a(f"""s_mov_b32 s{d+2}, {size}
    s_mov_b32 s{d+3}, 0x00020000""")
def kernel(a):
    K = "k"
    if OPT["stamp"]: a("s_memrealtime s[96:97]")
    a(f"""
    s_cmp_ge_u32 s2, 256
    s_cbranch_scc1 {K}_end
    s_load_dwordx2 s[{sX}:{sX+1}], s[0:1], 0
    s_bfe_u32 s{sT0}, s2, {(1 << 16) | 2}
    s_mul_i32 s{sT0}, s{sT0}, 24
    s_add_u32 s{sT1}, s{sT0}, 8
    s_add_u32 s{sT0}, s{sT0}, 16
    s_load_dwordx2 s[{sW}:{sW+1}], s[0:1], s{sT1}
    s_load_dwordx2 s[{sG}:{sG+1}], s[0:1], 48
    s_load_dwordx2 s[{sWS}:{sWS+1}], s[0:1], 72
    s_load_dwordx2 s[{sD}:{sD+1}], s[0:1], 64
    s_load_dwordx2 s[{sOut}:{sOut+1}], s[0:1], 56
    s_load_dwordx2 s[{sWo}:{sWo+1}], s[0:1], s{sT0}
    v_lshrrev_b32 v1, 6, v0
    v_and_b32 v0, 63, v0
    s_bfe_u32 s{sT1}, s2, {(2 << 16) | 3}
    v_readfirstlane_b32 s{sW8}, v1
    s_lshr_b32 s{sT2}, s2, 5
    s_and_b32 s{sE}, s2, 1
    s_lshl_b32 s{sE}, s{sE}, 2
    s_add_u32 s{sE}, s{sE}, s{sT1}
    s_and_b32 s{sPr}, s2, 6
    s_lshl_b32 s{sPr}, s{sPr}, 2
    s_add_u32 s{sPr}, s{sPr}, s{sT2}
    s_and_b32 s{sWv}, s{sW8}, 3
    s_lshr_b32 s{sHH}, s{sWv}, 1
    s_and_b32 s{sTH}, s{sWv}, 1
    s_bfe_u32 s{sTt}, s2, {(1 << 16) | 5}
    s_lshl_b32 s{sTt}, s{sTt}, 1
    s_bfe_u32 s{sT2}, s2, {(1 << 16) | 6}
    s_or_b32 s{sTt}, s{sTt}, s{sT2}
    s_cmp_ge_u32 s{sW8}, 4
    s_cbranch_scc0 {K}_compute""")
    helper(a, K)
    a(f"{K}_compute:")
    compute(a, K)
def common_late(a):
    srd_tail(a, sWS, WS_SIZE)
    srd_tail(a, sOut, 2048 * 1152)
    srd_tail(a, sD, 256)
    srd_tail(a, sWo, 576 * 1152)
    a(f"""s_lshl_b32 s{sBH}, s{sPr}, 1
    s_add_u32 s{sBH}, s{sBH}, s{sHH}
    s_mul_i32 s{sKVg}, s{sBH}, {KVH}""")

FA = 32
def final_addr(a):
    a(f"""s_lshl_b32 s{sT3}, s{sW8}, 6
    v_add_u32 v1, s{sT3}, v0
    s_and_b32 s{sT0}, s{sP3T}, 60
    s_add_u32 s{sT0}, s{sT0}, s{sP3T}
    s_mul_i32 s{sT0}, s{sT0}, {16*1152}
    s_mul_i32 s{sT1}, s{sP3C}, 288
    s_add_u32 s{sT0}, s{sT0}, s{sT1}""")
    for r in range(2):
        if r: a("v_add_u32 v1, 512, v1")
        a(f"""v_mul_u32_u24 v{FA+6}, 3641, v1
        v_lshrrev_b32 v{FA+6}, 16, v{FA+6}
        v_mul_u32_u24 v{FA+7}, 18, v{FA+6}
        v_sub_u32 v{FA+7}, v1, v{FA+7}
        v_mul_u32_u24 v{FA+r}, {RS}, v{FA+6}
        v_lshl_add_u32 v{FA+r}, v{FA+7}, 5, v{FA+r}
        v_add_u32 v{FA+4+r}, {4*PLANE}, v{FA+r}
        v_and_b32 v{FA+2+r}, 16, v{FA+6}
        v_mad_u32_u24 v{FA+6}, v{FA+2+r}, 3, v{FA+6}
        v_mul_u32_u24 v{FA+2+r}, 1152, v{FA+6}
        v_lshl_add_u32 v{FA+2+r}, v{FA+7}, 4, v{FA+2+r}""")
def final_reduce(a, K, SVr):
    def reads(r):
        b = 48 + 32 * r
        for w in range(4):
            for hf in range(2):
                if w < 3: a(f"ds_read_b128 {vr(b+8*w+4*hf,4)}, v{FA+r} offset:{w*PLANE + 16*hf}")
                else: a(f"ds_read_b128 {vr(b+8*w+4*hf,4)}, v{FA+4+r} offset:{16*hf}")
    def finish(r, extra):
        b = 48 + 32 * r
        a(f"s_waitcnt lgkmcnt({4+extra})")
        for i in range(0, 8, 2): a(f"v_pk_add_f32 {vr(b+i,2)}, {vr(b+i,2)}, {vr(b+8+i,2)}")
        a(f"s_waitcnt lgkmcnt({extra})")
        for i in range(0, 8, 2): a(f"v_pk_add_f32 {vr(b+16+i,2)}, {vr(b+16+i,2)}, {vr(b+24+i,2)}")
        for i in range(0, 8, 2): a(f"v_pk_add_f32 {vr(b+i,2)}, {vr(b+i,2)}, {vr(b+16+i,2)}")
        for i in range(4): a(f"v_cvt_pk_bf16_f32 v{b+8+i}, v{b+2*i}, v{b+2*i+1}")
        a(f"buffer_store_dwordx4 {vr(b+8,4)}, v{FA+2+r}, s[{sOut}:{sOut+3}], s{sT0} offen")
    def fin():
        if OPT["stamp"]:
            a("s_waitcnt vmcnt(0)")
            stamp(a, 15, SVr)
            for k in range(6): a(f"v_writelane_b32 v{SVr}, s{96+k}, {20+k}")
            a(f"s_sub_u32 s80, 60000, s{sSpin}\nv_writelane_b32 v{SVr}, s80, 26")
            stamp_out(a, SVr)
    a(f"""s_cmp_eq_u32 s{sW8}, 0
    s_waitcnt lgkmcnt(0)
    s_barrier""")
    reads(0)
    a(f"s_cbranch_scc1 {K}_fin0")
    finish(0, 0)
    fin()
    a(f"""s_endpgm
    {K}_fin0:""")
    reads(1)
    finish(0, 8)
    finish(1, 0)
    fin()

def poll(a, lbl, ld, cond, slp):
    a(f"""s_mov_b32 s{sSpin}, 40000
    {lbl}:
    {ld}
    s_waitcnt vmcnt(0)""")
    cond()
    a(f"""s_cbranch_scc1 {lbl}_go
    s_sub_u32 s{sSpin}, s{sSpin}, 1
    s_cmp_eq_u32 s{sSpin}, 0
    s_cbranch_scc1 {lbl}_go
    s_sleep {slp}
    s_branch {lbl}
    {lbl}_go:""")

CL = [5, 6, 7]
def wo_lds_base(w): return (w >> 1) * RING + (w & 1) * 27648

def helper(a, K):
    a("; ===== helper waves =====")
    RX = int(OPT["rx"])
    a(f"s_setprio {OPT.get('hprio', 2)}")
    vXs, vWs = [24, 25], [26, 27]
    vL16, vGr, vGw = 7, 8, 9
    t0, t1, t2, t3 = 10, 11, 12, 13
    vGv = 14
    WM = [sum(1 << L for L in range(64) if ((L & 15) ^ (((L >> 4) | (hi << 2)) << 1)) != 15) for hi in range(2)]
    sM0, sM1 = sEx, 64
    a(f"""s_lshr_b32 s{sRot}, s2, 7
    s_lshl_b32 s{sT1}, s{sT1}, 1
    s_add_u32 s{sRot}, s{sRot}, s{sT1}
    s_and_b32 s{sT1}, s2, 7
    s_add_u32 s{sRot}, s{sRot}, s{sT1}
    s_sub_u32 s{sT1}, s{sRot}, 9
    s_cselect_b32 s{sRot}, s{sRot}, s{sT1}""")
    order = []
    a(f"""v_lshrrev_b32 v{t0}, 3, v0
    v_mul_u32_u24 v{t0}, 1152, v{t0}
    v_and_b32 v{t1}, 7, v0
    v_lshrrev_b32 v{t2}, 4, v0
    v_xor_b32 v{t1}, v{t1}, v{t2}
    v_lshlrev_b32 v{t1}, 4, v{t1}
    v_xor_b32 v{t2}, 64, v{t1}
    v_add_u32 v{vXs[0]}, v{t0}, v{t1}
    v_add_u32 v{vXs[1]}, v{t0}, v{t2}
    v_add_u32 v{vXs[1]}, {8*1152-1024}, v{vXs[1]}
    s_lshl_b32 s{sXb}, s{sE}, 4
    s_lshl_b32 s{sT0}, s{sHH}, 3
    s_add_u32 s{sXb}, s{sXb}, s{sT0}
    s_add_u32 s{sXb}, s{sXb}, s{sTH}
    s_mul_i32 s{sXb}, s{sXb}, {16*1152}
    s_lshl_b32 s{sKo}, s{sRot}, 7
    s_lshl_b32 s{sRing}, s{sWv}, 11
    s_add_u32 s{sRing}, s{sRing}, {L_XR}
    s_add_u32 s{sRef}, s{sXb}, s{sKo}
    s_mov_b32 s{sXm0}, s{sRing}""")
    sTo = [56, 57, 58, 59]
    for tt in range(4):
        a(f"""s_xor_b32 s{sTo[tt]}, s{sTt}, {tt}
        s_mul_i32 s{sTo[tt]}, s{sTo[tt]}, {32*1152}""")
    xstate = [0]
    def xnext():
        a(f"""s_add_u32 s{sKo}, s{sKo}, 128
        s_cmp_ge_u32 s{sKo}, 1152
        s_cselect_b32 s{sKo}, 0, s{sKo}
        s_add_u32 s{sRef}, s{sXb}, s{sKo}""")
    def xdma(j):
        tt = j & 3
        if tt == 0 and j: xnext()
        a(f"""s_mov_b32 m0, s{sXm0}
        s_add_u32 s{sT0}, s{sRef}, s{sTo[tt]}
        buffer_load_dwordx4 v{vXs[0]}, s[{sX}:{sX+3}], s{sT0} offen lds
        buffer_load_dwordx4 v{vXs[1]}, s[{sX}:{sX+3}], s{sT0} offen offset:1024 lds
        s_add_u32 s{sXm0}, s{sXm0}, 8192
        s_cmp_ge_u32 s{sXm0}, {L_XR + RX*8192}
        s_cselect_b32 s{sXm0}, s{sRing}, s{sXm0}""")
    srd_tail(a, sX, 2048 * 1152)
    srd_tail(a, sW, 576 * 3456)
    srd_tail(a, sG, 1152)
    a("s_waitcnt lgkmcnt(0)")
    stamp(a, 0, SV)
    xdma(0)
    order += ["X0"] * 2
    a(f"""v_lshrrev_b32 v{t0}, 4, v0
    v_lshlrev_b32 v{t1}, 1, v{t0}
    v_and_b32 v{t2}, 15, v0
    v_xor_b32 v{t1}, v{t1}, v{t2}
    s_mov_b32 s{sT0}, {((1<<4)|(1<<9)|(1<<14)) << 3}
    v_mul_u32_u24 v{t0}, 3456, v{t0}""")
    for hi in range(2):
        if hi: a(f"v_xor_b32 v{t1}, 8, v{t1}")
        a(f"""v_mul_u32_u24 v{t2}, 52, v{t1}
        v_lshrrev_b32 v{t2}, 8, v{t2}
        v_mul_u32_u24 v{t2}, {1152-80}, v{t2}
        v_lshl_add_u32 v{t2}, v{t1}, 4, v{t2}
        v_lshrrev_b32 v{t3}, v{t1}, s{sT0}
        v_and_b32 v{t3}, 8, v{t3}
        v_sub_u32 v{t2}, v{t2}, v{t3}
        v_add_u32 v{vWs[hi]}, v{t0}, v{t2}""")
    a(f"""v_lshlrev_b32 v{vL16}, 4, v0
    s_mul_i32 s{sT0}, s{sWv}, {16*3456}
    s_and_b32 s{sT1}, s{sPr}, 15
    s_mul_i32 s{sT1}, s{sT1}, 72
    s_add_u32 s{sWsrc}, s{sT0}, s{sT1}
    s_mul_i32 s{sWk}, s{sRot}, {64*3456}
    s_add_u32 s{sWcnt}, s{sWsrc}, s{sWk}
    s_lshl_b32 s{sWm0}, s{sWv}, 12
    s_lshl_b32 s{sT2}, s{sWv}, 11
    s_add_u32 s{sT2}, s{sT2}, {L_GT}
    s_mov_b32 s{sM0}, {WM[0] & 0xffffffff}
    s_mov_b32 s{sM0+1}, {WM[0] >> 32}
    s_mov_b32 s{sM1}, {WM[1] & 0xffffffff}
    s_mov_b32 s{sM1+1}, {WM[1] >> 32}""")
    def wdma2(hi):
        m = (sM0, sM1)[hi]
        a(f"""s_add_u32 m0, s{sWm0}, {L_WR + hi*2048}
        s_add_u32 s{sT0}, s{sWcnt}, {hi*8*3456}
        s_add_u32 s{sT1}, s{sWcnt}, {hi*8*3456 + 4*3456 - 1024}
        s_mov_b64 exec, s[{m}:{m+1}]
        buffer_load_dwordx4 v{vWs[hi]}, s[{sW}:{sW+3}], s{sT0} offen lds
        buffer_load_dwordx4 v{vWs[hi]}, s[{sW}:{sW+3}], s{sT1} offen offset:1024 lds
        s_mov_b64 exec, -1""")
    def wnext():
        a(f"""s_add_u32 s{sWk}, s{sWk}, {64*3456}
        s_cmp_ge_u32 s{sWk}, {576*3456}
        s_cselect_b32 s{sWk}, 0, s{sWk}
        s_add_u32 s{sWcnt}, s{sWsrc}, s{sWk}
        s_add_u32 s{sWm0}, s{sWm0}, {WSL}
        s_sub_u32 s{sT0}, s{sWm0}, {RW*WSL}
        s_cmp_ge_u32 s{sWm0}, {RW*WSL}
        s_cselect_b32 s{sWm0}, s{sT0}, s{sWm0}""")
    a(f"""s_mov_b32 m0, s{sT2}
    s_nop 0
    buffer_load_dwordx4 v{vL16}, s[{sG}:{sG+3}], 0 offen lds
    s_mov_b64 exec, 0xff
    buffer_load_dwordx4 v{vL16}, s[{sG}:{sG+3}], 0 offen offset:1024 lds
    s_mov_b64 exec, -1""")
    order += ["G"] * 2
    wdma2(0); wdma2(1)
    order += ["W0"] * 4
    wnext()
    xdma(1)
    order += ["X1"] * 2
    EARLY = OPT.get("early", "0") == "1"
    def second_batch():
        nonlocal order
        xdma(2)
        wdma2(0); wdma2(1)
        wnext()
        order += ["X2"] * 2 + ["W1"] * 4
        for j in range(3, RX - 1):
            xdma(j); order += [f"X{j}"] * 2
    a(f"s_mov_b32 s{sCnt}, s{sWm0}")
    if EARLY: second_batch()
    nb2 = len(order) - 10
    stamp(a, 16, SV)
    common_late(a)
    a(f"""s_lshl_b32 s{sT0}, s{sWv}, 5
    s_add_u32 s{sT0}, s{sT0}, s{sT2}
    v_lshl_add_u32 v{vGr}, v0, 1, s{sT0}
    v_and_b32 v{t1}, 3, v0
    v_lshlrev_b32 v{t1}, 1, v{t1}
    v_and_b32 v{t2}, 8, v0
    v_or_b32 v{t1}, v{t1}, v{t2}
    v_xor_b32 v{t1}, 15, v{t1}
    v_lshlrev_b32 v{t1}, 4, v{t1}
    v_lshl_add_u32 v{t1}, v0, 8, v{t1}
    s_lshl_b32 s{sGk}, s{sRot}, 7
    v_mov_b32 v{t0}, {L_SYNC}
    v_mov_b32 v20, 0
    v_mov_b32 v21, 0
    v_mov_b32 v22, 0
    v_mov_b32 v23, 0
    ds_write_b128 v{t0}, v[20:23]
    ds_write_b128 v{t0}, v[20:23] offset:16
    ds_write_b128 v{t0}, v[20:23] offset:32""")
    def gate(slotreg):
        a(f"""v_add_u32 v{t0}, s{sGk}, v{vGr}
        s_mov_b64 exec, 0xffff
        ds_read_u16 v{vGv}, v{t0}
        v_add_u32 v{t0}, s{slotreg}, v{t1}
        s_add_u32 s{sGk}, s{sGk}, 128
        s_cmp_ge_u32 s{sGk}, 1152
        s_cselect_b32 s{sGk}, 0, s{sGk}
        s_waitcnt lgkmcnt(0)
        ds_write2_b32 v{t0}, v{vGv}, v{vGv} offset0:0 offset1:1
        s_mov_b64 exec, -1""")
    vWos, vWos2, vPub, vC100, vPk, vA4, vSn = 28, 29, 30, 31, [76, 77, 78], 79, 80
    vP, vPa, vSy, vOne, vFa = 20, 17, 18, 19, 16
    vOm, vOt, vWm, vWt, vRd = [2, 252], 3, 4, 5, 6
    vVa3, vSy3 = [248, 253], 251
    HWB, HAC, HOF = 8, 188, 228
    u0, u1, u2, u3, vSa = 84, 85, 86, 87, 88
    def setup1():
        a(f"""v_mul_u32_u24 v{u0}, 57, v0
        v_lshrrev_b32 v{u0}, 10, v{u0}
        v_mul_u32_u24 v{u1}, 18, v{u0}
        v_sub_u32 v{u1}, v0, v{u1}
        v_lshlrev_b32 v{u1}, 4, v{u1}
        s_and_b32 s{sT0}, s{sE}, 1
        s_lshl_b32 s{sT0}, s{sT0}, 1
        s_mul_i32 s{sT1}, s{sWv}, 3
        s_add_u32 s{sT0}, s{sT0}, s{sT1}
        v_add_u32 v{u0}, s{sT0}, v{u0}
        v_mul_u32_u24 v{vWos}, 1152, v{u0}
        v_add_u32 v{vWos}, v{vWos}, v{u1}
        v_cmp_le_u32 vcc, 6, v{u0}
        v_add_u32 v{u2}, {12*1152}, v{vWos}
        v_subrev_u32 v{u3}, {6*1152}, v{vWos}
        v_cndmask_b32 v{vWos2}, v{u2}, v{u3}, vcc
        s_mul_i32 s{sT0}, s{sHH}, {RING}
        s_mul_i32 s{sT1}, s{sTH}, 5120
        s_add_u32 s{sT0}, s{sT0}, s{sT1}
        v_add_u32 v{vPub}, s{sT0}, v{vL16}
        s_lshl_b32 s{sT0}, s{sPr}, 2
        v_mov_b32 v{vPa}, s{sT0}
        s_lshl_b32 s{sT0}, s{sPr}, 12
        s_lshl_b32 s{sT3}, s{sHH}, 7
        s_add_u32 s{sT0}, s{sT0}, s{sT3}
        s_add_u32 s{sT0}, s{sT0}, {WS_F}
        v_and_b32 v{vFa}, 1, v0
        v_lshl_add_u32 v{vFa}, v{vFa}, 2, s{sT0}
        v_lshrrev_b32 v{u0}, 1, v0
        v_lshl_add_u32 v{vFa}, v{u0}, 8, v{vFa}
        v_mov_b32 v{vSy}, {L_SYNC}
        v_mov_b32 v{vOne}, 1
        v_mov_b32 v{vC100}, 0x100
        v_lshlrev_b32 v{vA4}, 2, v0
        v_bfe_u32 v{u0}, v0, 2, 3
        v_mul_u32_u24 v{u0}, 288, v{u0}
        v_and_b32 v{u1}, 3, v0
        v_lshlrev_b32 v{u1}, 3, v{u1}
        v_add_u32 v{u1}, {L_WO}, v{u1}
        v_and_b32 v{u2}, 32, v0
        v_add3_u32 v{vPk[1]}, v{u0}, v{u1}, v{u2}
        s_lshl_b32 s{sT0}, s{sWv}, 6
        v_add_u32 v{vPk[0]}, s{sT0}, v{vPk[1]}
        v_bfe_u32 v{u0}, v0, 2, 2
        v_mul_u32_u24 v{u0}, 288, v{u0}
        v_lshrrev_b32 v{u2}, 4, v0
        v_lshlrev_b32 v{u2}, 5, v{u2}
        v_add3_u32 v{u0}, v{u0}, v{u1}, v{u2}
        s_lshl_b32 s{sT0}, s{sWv}, 7
        v_add_u32 v{vPk[2]}, s{sT0}, v{u0}""")
        for i in range(4): a(f"v_mov_b32 v{vSn+i}, {SENT}")
        a(f"""s_and_b32 s{sT0}, s{sBH}, 7
        s_mul_i32 s{sT0}, s{sT0}, 448
        s_sub_u32 s{sT0}, {4096-512}, s{sT0}
        v_lshrrev_b32 v{u0}, 5, v0
        v_mul_u32_u24 v{u0}, s{sT0}, v{u0}
        v_add_u32 v{vSa}, v{u0}, v{vL16}""")
    def setup2():
        p3_scal(a)
        p3_addr_w(a, vWm, vWt, u0, u1, u2)
        p3_addr_o(a, vOm, vOt, vRd, vVa3, vSy3, u0, u1, u2)
        p3_hint_addr(a, HOF)
        for i in range(40): a(f"v_mov_b32 v{HAC+i}, 0")
    SP = OPT.get('setup', 'head')
    if SP == 'head': setup1(); setup2()
    a(f"""s_sub_u32 s{sT3}, s{sCnt}, {WSL}
    s_waitcnt vmcnt({6 + nb2})""")
    stamp(a, 17, SV)
    gate(sT3); gate(sCnt)
    a(f"""s_waitcnt vmcnt({2 + nb2}) lgkmcnt(0)
    s_barrier""")
    stamp(a, 1, SV)
    if not EARLY: second_batch()
    stamp(a, 18, SV)
    a(f"""s_mov_b32 s{sIt}, 0
    v_add_u32 v{t0}, s{sGk}, v{vGr}
    {K}_hl:""")
    for tt in (0, 2):
        a(f"""s_waitcnt vmcnt(@W{tt}@) lgkmcnt(0)
        s_barrier""")
        if OPT.get("prof"):
            a(f"""s_memtime s[82:83]
            s_lshl_b32 m0, s{sIt}, 1
            s_add_u32 m0, m0, {2 + (tt >> 1)}
            s_waitcnt lgkmcnt(0)
            v_writelane_b32 v{SV-8}, s82, m0""")
        if not OPT.get("noh"):
            def thr(k):
                if OPT.get("thr"):
                    a(f"""s_bitcmp1_b32 {STRAD}, s{sPr}
                    s_cbranch_scc1 {K}_th{tt}{k}
                    s_waitcnt vmcnt({OPT["thr"]})
                    {K}_th{tt}{k}:""")
            if tt == 0:
                a(f"ds_read_u16 v{vGv}, v{t0}")
            else:
                a(f"""s_mov_b64 exec, 0xffff
                ds_write2_b32 v{t2}, v{vGv}, v{vGv} offset0:0 offset1:1""")
            wdma2(tt >> 1)
            thr(0)
            xdma(tt + RX - 1)
            thr(1)
            xdma(tt + RX)
            if tt == 0:
                a(f"""v_add_u32 v{t2}, s{sWm0}, v{t1}
                s_add_u32 s{sGk}, s{sGk}, 128
                s_cmp_ge_u32 s{sGk}, 1152
                s_cselect_b32 s{sGk}, 0, s{sGk}
                v_add_u32 v{t0}, s{sGk}, v{vGr}""")
    wnext()
    a(f"""s_add_u32 s{sIt}, s{sIt}, 1
    s_cmp_lt_u32 s{sIt}, 7
    s_cbranch_scc1 {K}_hl""")
    need = {0: 99, 2: 99}
    for j in range(0, 36, 2):
        req = [f"X{min(j+2,35)}"]
        if j % 4 == 2 and j // 4 + 1 <= 8: req.append(f"W{j//4+1}")
        last = max(i for i, o in enumerate(order) if o in req)
        n_ = len(order) - 1 - last
        if j < 28:
            need[j % 4] = min(need[j % 4], n_)
            order += [f"W{j//4+2}"] * 2 + [f"X{j+RX-1}"] * 2 + [f"X{j+RX}"] * 2
        else:
            a(f"""s_waitcnt vmcnt({n_}) lgkmcnt(0)
            s_barrier""")
            for jj in (j + RX - 1, j + RX):
                if jj <= 35:
                    xdma(jj); order += [f"X{jj}"] * 2
            if SP == 'tail' and j == 28: setup1()
            if SP == 'tail' and j == 30: setup2()
    for i in (0, 2): a.l = [x.replace(f"@W{i}@", str(need[i])) for x in a.l]
    stamp(a, 2, SV)
    if OPT.get("prof"):
        a(f"""v_readlane_b32 s80, v{SV+1}, 0
        v_readlane_b32 s81, v{SV+1}, 1
        v_readlane_b32 s82, v{SV+1}, 2
        s_nop 3
        v_writelane_b32 v{SV-8}, s80, 0
        v_writelane_b32 v{SV-8}, s81, 1
        v_writelane_b32 v{SV-8}, s82, 16
        s_lshl_b32 s80, s2, 3
        s_add_u32 s80, s80, s{sW8}
        s_lshl_b32 s80, s80, 8
        s_add_u32 s80, s80, {WS_STAMP + 0x80000}
        v_lshlrev_b32 v1, 2, v0
        buffer_store_dword v{SV-8}, v1, s[{sWS}:{sWS+3}], s80 offen""")
    sPH, sPC = sWsrc, sWm0
    sQ = sGk
    a(f"""s_lshl_b32 s{sPH}, s{sPr}, 1
    s_and_b32 s{sT0}, s{sE}, 1
    s_add_u32 s{sPH}, s{sPH}, s{sT0}
    s_lshr_b32 s{sPC}, s{sE}, 1
    s_and_b32 s{sT0}, s{sPH}, 31
    s_mul_i32 s{sT0}, s{sT0}, {18*1152}
    s_mul_i32 s{sT1}, s{sPC}, 288
    s_add_u32 s{sT0}, s{sT0}, s{sT1}
    s_mul_i32 s{sT1}, s{sWv}, 864
    s_add_u32 m0, s{sT1}, {L_WO}
    s_mov_b32 exec_hi, 0x003fffff
    buffer_load_dwordx4 v{vWos}, s[{sWo}:{sWo+3}], s{sT0} offen lds
    s_add_u32 m0, s{sT1}, {L_WO + 4*864}
    s_nop 0
    buffer_load_dwordx4 v{vWos2}, s[{sWo}:{sWo+3}], s{sT0} offen lds
    s_mov_b64 exec, 1
    buffer_load_dword v{vP+1}, v{vPa}, s[{sD}:{sD+3}], 0 offen sc1
    s_mov_b64 exec, -1
    s_mul_i32 s{sRing}, s{sHH}, {RING}
    s_mul_i32 s{sT2}, s{sTH}, 5120
    s_mul_i32 s{sT1}, s{sE}, {2*BLK}
    s_add_u32 s{sT1}, s{sT1}, s{sKVg}
    s_add_u32 s{sT1}, s{sT1}, s{sT2}
    s_mov_b32 s{sQ}, s{sTH}
    s_cmp_eq_u32 s{sTH}, 1
    s_cselect_b32 s{sM0}, 0xffff, -1
    s_cselect_b32 s{sM0+1}, 0, -1
    s_barrier""")
    t0 = vPub
    stamp(a, 3, SV)
    for i in range(5): a(f"ds_read_b128 {vr(32+4*i,4)}, v{t0} offset:{1024*i}")
    a(f"s_mov_b32 s{sXb}, s{sT1}")
    def publish(ph):
        for i in range(5 * ph, 5 * ph + 5):
            if i % 5 == 4: a(f"""s_add_u32 s{sXb}, s{sXb}, 4096
            s_mov_b64 exec, s[{sM0}:{sM0+1}]""")
            if ph == 0: a(f"s_waitcnt lgkmcnt({4-i})")
            a(f"buffer_store_dwordx4 {vr(32+4*i,4)}, v{vL16}, s[{sWS}:{sWS+3}], s{sXb} offen offset:{1024*((i%5)%4)} sc1")
            if i % 5 == 4: a(f"""s_mov_b64 exec, -1
            s_add_u32 s{sXb}, s{sXb}, {BLK-4096}""")
    publish(0)
    a("s_barrier")
    for i in range(5, 10): a(f"ds_read_b128 {vr(32+4*i,4)}, v{t0} offset:{BLK + 1024*(i-5)}")
    def arrive(word, vm=0):
        a(f"""s_mov_b64 exec, 1
        s_waitcnt vmcnt({vm})
        ds_add_rtn_u32 v{vP}, v{vSy}, v{vOne} offset:{4*word}
        s_waitcnt lgkmcnt(0)
        v_readfirstlane_b32 s{sT1}, v{vP}
        s_mov_b64 exec, -1
        s_cmp_eq_u32 s{sT1}, 3""")
    def lds_wait(lbl, word):
        a(f"""s_mov_b32 s{sSpin}, 400000
        {lbl}:
        ds_read_b32 v{vP}, v{vSy} offset:{4*word}
        s_waitcnt lgkmcnt(0)
        v_readfirstlane_b32 s{sT1}, v{vP}
        s_cmp_lg_u32 s{sT1}, 0
        s_cbranch_scc1 {lbl}_go
        s_sub_u32 s{sSpin}, s{sSpin}, 1
        s_cmp_eq_u32 s{sSpin}, 0
        s_cbranch_scc1 {lbl}_go
        s_sleep 6
        s_branch {lbl}
        {lbl}_go:""")
    def flag(off, vm):
        a(f"""s_lshl_b32 s{sT0}, s{sE}, 8
        s_lshl_b32 s{sT1}, s{sTH}, 2
        s_add_u32 s{sT0}, s{sT0}, s{sT1}
        s_mov_b64 exec, 1
        s_waitcnt vmcnt({vm})
        buffer_store_dword v{vOne}, v{vFa}, s[{sWS}:{sWS+3}], s{sT0} offen offset:{off} sc1
        s_mov_b64 exec, -1""")
    flag(0, 0)
    stamp(a, 4, SV)
    def rst_ok(r):
        a(f"""v_readfirstlane_b32 s{sT0}, v{r}
        s_and_b32 s{sT0}, s{sT0}, 0xff
        s_cmp_ge_u32 s{sT0}, 8""")
    def kv_ready():
        a(f"""v_cmp_eq_u32 vcc, 1, v{vP}
        s_nop 1
        s_cmp_eq_u32 vcc_lo, 0xffff""")
    a("s_mov_b64 exec, 1")
    rst_ok(vP + 1)
    a(f"s_cbranch_scc1 {K}_pl0_go")
    poll(a, f"{K}_pl0", f"buffer_load_dword v{vP}, v{vPa}, s[{sD}:{sD+3}], 0 offen sc1", lambda: rst_ok(vP), 8)
    a(f"""s_add_u32 s{sT2}, s{sTH}, 1
    s_xor_b32 s{sT2}, s{sT2}, s{sE}
    s_lshl_b32 s{sT2}, s{sT2}, 8
    s_mov_b64 exec, 3""")
    def kv1_ready():
        a(f"""v_cmp_eq_u32 vcc, 1, v{vP}
        s_nop 1
        s_cmp_eq_u32 vcc_lo, 3""")
    poll(a, f"{K}_pl1", f"buffer_load_dword v{vP}, v{vFa}, s[{sWS}:{sWS+3}], s{sT2} offen sc1", kv1_ready, 1)
    a("s_mov_b64 exec, -1")
    stamp(a, 5, SV)
    def ldblock():
        a(f"s_call_b64 s[{sRet}:{sRet+1}], {K}_ldblk")
    ldblock()
    a("s_waitcnt lgkmcnt(0)")
    publish(1)
    a("s_waitcnt vmcnt(5)")
    stamp(a, 6, SV)
    a("s_barrier")
    flag(2048, 0)
    a("s_mov_b64 exec, 0xffff")
    poll(a, f"{K}_pl1a", f"buffer_load_dword v{vP}, v{vFa}, s[{sWS}:{sWS+3}], 0 offen sc1", kv_ready, 2)
    a("s_mov_b64 exec, -1")
    ldblock(); ldblock()
    a("s_waitcnt vmcnt(0)")
    stamp(a, 7, SV)
    a("s_barrier")
    a("s_mov_b64 exec, 0xffff")
    poll(a, f"{K}_pl1b", f"buffer_load_dword v{vP}, v{vFa}, s[{sWS}:{sWS+3}], 0 offen offset:2048 sc1", kv_ready, 2)
    a("s_mov_b64 exec, -1")
    ldblock(); ldblock()
    a(f"""ds_read_b64_tr_b16 {vr(64,2)}, v{vPk[0]}
    ds_read_b64_tr_b16 {vr(66,2)}, v{vPk[0]} offset:2304
    ds_read_b64_tr_b16 {vr(68,2)}, v{vPk[1]} offset:256
    ds_read_b64_tr_b16 {vr(70,2)}, v{vPk[1]} offset:{256+2304}
    ds_read_b64_tr_b16 {vr(72,2)}, v{vPk[2]} offset:{16*288-128}
    s_lshl_b32 s{sT0}, s{sPC}, 6
    s_add_u32 s{sT0}, s{sT0}, s{sPH}
    s_mul_i32 s{sT0}, s{sT0}, 4608
    s_add_u32 s{sT0}, s{sT0}, {WS_WOM}
    s_lshl_b32 s{sT1}, s{sWv}, 10
    s_add_u32 s{sT1}, s{sT1}, s{sT0}
    s_lshl_b32 s{sT2}, s{sPC}, 4
    s_lshr_b32 s{sT3}, s{sPH}, 2
    s_add_u32 s{sT2}, s{sT2}, s{sT3}
    s_mul_i32 s{sT2}, s{sT2}, 2304
    s_and_b32 s{sT3}, s{sPH}, 3
    s_lshl_b32 s{sT3}, s{sT3}, 2
    s_add_u32 s{sT2}, s{sT2}, s{sT3}
    s_lshl_b32 s{sT3}, s{sWv}, 10
    s_add_u32 s{sT2}, s{sT2}, s{sT3}
    s_add_u32 s{sT2}, s{sT2}, {WS_WOT - 1024}
    s_waitcnt lgkmcnt(0)
    buffer_store_dwordx4 {vr(64,4)}, v{vL16}, s[{sWS}:{sWS+3}], s{sT1} offen sc1
    s_cmp_eq_u32 s{sWv}, 0
    s_cbranch_scc0 {K}_wo_tail
    s_mov_b32 exec_hi, 0
    s_add_u32 s{sT3}, s{sT0}, 4096
    buffer_store_dwordx4 {vr(68,4)}, v{vL16}, s[{sWS}:{sWS+3}], s{sT3} offen sc1
    s_branch {K}_wo_done
    {K}_wo_tail:
    s_cmp_eq_u32 s{sWv}, 3
    s_cselect_b32 exec_lo, 0xffff, -1
    s_cselect_b32 exec_hi, 0, -1
    buffer_store_dword v72, v{vL16}, s[{sWS}:{sWS+3}], s{sT2} offen sc1
    {K}_wo_done:
    s_mov_b64 exec, -1""")
    a(f"""s_lshl_b32 s{sT1}, s{sE}, 1
    s_add_u32 s{sT1}, s{sT1}, s{sTH}
    s_lshl_b32 s{sT1}, s{sT1}, 9
    s_add_u32 s{sT1}, s{sT1}, s{sBH}
    s_mul_i32 s{sT1}, s{sT1}, 576
    s_and_b32 s{sT0}, s{sBH}, 7
    s_lshl_b32 s{sT0}, s{sT0}, 6
    s_sub_u32 s{sT1}, s{sT1}, s{sT0}
    s_add_u32 s{sT1}, s{sT1}, {WS_O}
    s_mov_b32 exec_hi, 15""")
    for x in range(8):
        a(f"""buffer_store_dwordx4 {vr(vSn,4)}, v{vSa}, s[{sWS}:{sWS+3}], s{sT1} offen sc1
        s_add_u32 s{sT1}, s{sT1}, {64*576}""")
    arrive(1)
    a(f"""s_cbranch_scc0 {K}_sg2
    s_mov_b64 exec, 1
    buffer_atomic_add v{vC100}, v{vPa}, s[{sD}:{sD+3}], 0 offen
    s_mov_b64 exec, -1
    {K}_sg2:""")
    a("s_barrier")
    ldblock(); ldblock()
    stamp(a, 12, SV)
    a(f"""s_cmp_eq_u32 s{sWv}, 0
    s_cbranch_scc0 {K}_gw
    s_mov_b32 exec_hi, 0""")
    def all_init():
        a(f"""v_bfe_u32 v{vP}, v{vP}, 8, 8
        v_cmp_le_u32 vcc, 8, v{vP}
        s_nop 1
        s_cmp_eq_u32 vcc_lo, -1""")
    poll(a, f"{K}_pl2", f"buffer_load_dword v{vP}, v{vA4}, s[{sD}:{sD+3}], 0 offen sc1", all_init, 32)
    a(f"""ds_write_b32 v{vSy}, v{vOne} offset:12
    s_mov_b64 exec, -1
    s_branch {K}_ggo
    {K}_gw:""")
    lds_wait(f"{K}_lw2", 3)
    a(f"{K}_ggo:")
    HC = [0, 1, 2, 3, 4]
    hreg = lambda s, ct: HWB + 4 * (5 * s + ct)
    p3_wo_loads(a, HC, hreg, vWm, vWt)
    a("s_waitcnt vmcnt(45)")
    stamp(a, 8, SV)
    a("s_barrier")
    if not OPT.get('x_nowarm'): p3_wo_loads(a, [8], lambda s, ct: HOF + 4 * (s % 4), vWm, vWt)
    a(f"""s_mul_i32 s{sT0}, s{sTH}, 27648
    s_add_u32 s{sT0}, s{sT0}, s{sRing}
    s_barrier""")
    for s in range(9 if not OPT.get('x_nostage') else 0):
        for i, ct in enumerate(CL):
            n = 3 * s + i
            if s < 8:
                a(f"""s_add_u32 m0, s{sT0}, {1024*n}
                s_add_u32 s{sT3}, s{sGW[s>>2]}, {2*(s&3)*4608 + 512*ct}
                buffer_load_dwordx4 v{vWm}, s[{sWS}:{sWS+3}], s{sT3} offen sc1 lds""")
            else:
                a(f"""s_add_u32 m0, s{sT0}, {1024*n}
                s_add_u32 s{sT3}, s{sWtb}, {256*ct}
                buffer_load_dwordx4 v{vWt}, s[{sWS}:{sWS+3}], s{sT3} offen sc1 lds""")
    if OPT.get("otlb"):
        a(f"""s_mov_b64 exec, 1
        buffer_load_dword v1, v{vL16}, s[{sWS}:{sWS+3}], s{sGO[0]} offen sc1
        buffer_load_dword v1, v{vL16}, s[{sWS}:{sWS+3}], s{sGO[3]} offen sc1
        s_mov_b64 exec, -1""")
    a("s_waitcnt vmcnt(0)")
    if OPT.get("hp3"): a("s_setprio 3")
    stamp(a, 9, SV)
    a("s_barrier")
    stamp(a, 10, SV)
    p3_helper(a, HC, hreg, HAC, HOF, vOm, vOt, vRd, vL16, vVa3, vSy3, int(OPT.get("hslp", 1)))
    stamp(a, 11, SV)
    if OPT["stamp"]: a(f"v_mov_b32 v30, v{SV}\nv_mov_b32 v31, v{SV+1}")
    a(f"s_branch {K}_final")
    a(f"""{K}_ldblk:
    s_add_u32 s{sQ}, s{sQ}, 2
    s_cmp_ge_u32 s{sQ}, 9
    s_cselect_b32 s{sT0}, 0, 7
    s_cselect_b32 s{sT2}, 1, 0
    s_add_u32 s{sT0}, s{sT0}, s{sQ}
    s_and_b32 s{sT0}, s{sT0}, 7
    s_xor_b32 s{sT0}, s{sT0}, s{sE}
    s_lshl_b32 s{sT0}, s{sT0}, 1
    s_add_u32 s{sT0}, s{sT0}, s{sT2}
    s_mul_i32 s{sT1}, s{sT0}, {BLK}
    s_add_u32 s{sT1}, s{sT1}, s{sKVg}
    s_and_b32 s{sT0}, s{sQ}, 7
    s_mul_i32 s{sT0}, s{sT0}, {BLK}
    s_add_u32 s{sT0}, s{sT0}, s{sRing}""")
    for i in range(10):
        if i % 4 == 0:
            a(f"""s_add_u32 m0, s{sT0}, {1024*i}
            s_add_u32 s{sT2}, s{sT1}, {1024*i}""")
        if i == 9: a("s_mov_b64 exec, 0xffff")
        a(f"buffer_load_dwordx4 v{vL16}, s[{sWS}:{sWS+3}], s{sT2} offen offset:{1024*(i%4)} sc1 lds")
    a(f"""s_mov_b64 exec, -1
    s_setpc_b64 s[{sRet}:{sRet+1}]""")

def compute(a, K):
    RX = int(OPT["rx"])
    common_late(a)
    a("s_waitcnt lgkmcnt(0)")
    stamp(a, 0, 30)
    vXr = [2, 3, 20, 21]
    vWc = [4, 5, 9, 1]
    t0, t1, t2, t3, t4, t5 = 64, 65, 66, 67, 68, 69
    WF = 32
    XF = [96, 112]
    ACC = 128
    def reset_flags():
        a(f"""s_cmp_eq_u32 s{sWv}, 0
        s_cselect_b32 s{sCnt}, {OPT.get("rstit", 4)}, 100
        s_cbranch_scc0 {K}_norst
        s_lshl_b32 s{sT0}, s{sPr}, 12
        s_lshl_b32 s{sT1}, s{sE}, 8
        s_add_u32 s{sT0}, s{sT0}, s{sT1}
        s_add_u32 s{sT0}, s{sT0}, {WS_F}
        v_lshlrev_b32 v75, 7, v0
        v_mov_b32 v76, 0
        v_mov_b32 v77, 0
        s_mov_b64 exec, 3
        buffer_store_dwordx2 v[76:77], v75, s[{sWS}:{sWS+3}], s{sT0} offen sc1
        buffer_store_dwordx2 v[76:77], v75, s[{sWS}:{sWS+3}], s{sT0} offen offset:2048 sc1""")
        if OPT.get("touch", "0") == "1":
            a(f"""s_mov_b64 exec, 1
            buffer_load_dword v78, v75, s[{sWS}:{sWS+3}], s{sKVg} offen
            s_add_u32 s{sT0}, s{sKVg}, {2*KVH-128}
            buffer_load_dword v79, v75, s[{sWS}:{sWS+3}], s{sT0} offen""")
        a(f"""s_mov_b64 exec, -1
        {K}_norst:""")
    a(f"v_mov_b32 v{ACC}, 0")
    if OPT.get("rstpos", "late") == "start": reset_flags()
    a(f"""v_and_b32 v{t0}, 15, v0
    v_lshrrev_b32 v{t1}, 4, v0
    v_bfe_u32 v{t2}, v0, 1, 3
    v_xor_b32 v{t2}, v{t2}, v{t1}
    v_lshlrev_b32 v{t2}, 4, v{t2}
    v_lshlrev_b32 v{t3}, 7, v{t0}
    s_lshl_b32 s{sT0}, s{sTH}, 12
    s_lshl_b32 s{sT1}, s{sHH}, 11
    s_add_u32 s{sT0}, s{sT0}, s{sT1}
    s_add_u32 s{sT0}, s{sT0}, {L_XR}
    v_add_u32 v{t3}, s{sT0}, v{t3}
    v_add_u32 v{vXr[0]}, v{t3}, v{t2}
    v_xor_b32 v{t2}, 64, v{t2}
    v_add_u32 v{vXr[1]}, v{t3}, v{t2}
    v_xor_b32 v{vXr[2]}, 2048, v{vXr[0]}
    v_xor_b32 v{vXr[3]}, 2048, v{vXr[1]}
    v_bfe_u32 v{t2}, v0, 2, 2
    v_lshl_add_u32 v{t2}, v{t1}, 3, v{t2}
    v_lshlrev_b32 v{t2}, 8, v{t2}
    v_bfe_u32 v{t4}, v0, 2, 3
    v_lshlrev_b32 v{t4}, 5, v{t4}
    v_and_b32 v{t3}, 3, v0
    v_lshlrev_b32 v{t3}, 3, v{t3}
    s_mul_i32 s{sT1}, s{sHH}, 40
    s_mov_b32 s{sT0}, {192 | (112 << 8) | (32 << 16) | (240 << 24)}
    v_lshrrev_b32 v{t5}, v{t3}, s{sT0}
    v_and_b32 v{t5}, 0xff, v{t5}
    v_xor_b32 v{t5}, v{t5}, v{t4}
    v_add_u32 v{vWc[3]}, v{t2}, v{t5}
    v_add_u32 v{t3}, s{sT1}, v{t3}
    v_lshrrev_b32 v{t5}, 3, v{t3}
    v_and_b32 v{t5}, 8, v{t5}
    v_add_u32 v{t3}, v{t3}, v{t5}""")
    for ct, off in enumerate((80, 0, 160)):
        a(f"""v_add_u32 v{t5}, {off}, v{t3}
        v_xor_b32 v{t5}, v{t5}, v{t4}
        v_add_u32 v{vWc[ct]}, v{t2}, v{t5}""")
    for i in range(1, 128):
        if i % 32 < 28: a(f"v_mov_b32 v{ACC+i}, 0")
    vKa, vTa, vVa, vIdx = 6, 7, 8, 10
    vKw, vQw, vVw, vMul, vSq, vSqh = 11, 12, 13, 24, 25, 19
    vSt, vStt, vWm3, vWt, vCp, vOnes, vQr = 14, 15, 16, 17, 18, 22, 23
    vM0, vDs, vDt, vDe, vDh = 70, 71, 72, 73, 74
    MA = lambda tt, i: ACC + 32 * tt + 28 + i
    sBlk, sScr = sXb, sKo
    a(f"""s_mul_i32 s{sRing}, s{sHH}, {RING}
    s_mul_i32 s{sBlk}, s{sTH}, {BLK}
    s_add_u32 s{sBlk}, s{sBlk}, s{sRing}
    s_mul_i32 s{sScr}, s{sWv}, 5120
    s_add_u32 s{sScr}, s{sScr}, {L_SCR}
    v_lshrrev_b32 v{t2}, 2, v{t0}
    v_and_b32 v{t3}, 3, v0
    v_lshl_add_u32 v{t4}, v{t2}, 3, v{t3}
    v_lshrrev_b32 v{t5}, 5, v0
    v_lshlrev_b32 v{t5}, 9, v{t5}
    v_and_b32 v{vQw}, 16, v0
    v_lshrrev_b32 v{vQw}, 1, v{vQw}
    v_add_u32 v{t5}, v{t5}, v{vQw}
    v_lshl_add_u32 v{vKw}, v{t4}, 4, v{t5}
    s_lshl_b32 s{sT0}, s{sTH}, 11
    s_add_u32 s{sT0}, s{sT0}, s{sRing}
    v_add_u32 v{vKw}, s{sT0}, v{vKw}
    v_lshl_add_u32 v{vQw}, v{t0}, 4, v{t5}
    v_add_u32 v{vQw}, s{sScr}, v{vQw}
    v_mul_u32_u24 v{vVw}, 304, v{t1}
    v_lshl_add_u32 v{vVw}, v{t0}, 4, v{vVw}
    s_mul_i32 s{sT0}, s{sTH}, 2432
    s_add_u32 s{sT0}, s{sT0}, s{sRing}
    v_add_u32 v{vVw}, s{sT0}, v{vVw}""")
    a(f"""s_mul_i32 s{sT2}, s{sTH}, 2432
    s_mul_i32 s{sT3}, s{sTH}, 5120
    v_mul_u32_u24 v{vM0}, 304, v{t2}
    v_lshl_add_u32 v{vM0}, v{t3}, 1, v{vM0}
    s_add_u32 s{sT0}, s{sT2}, {4608+256}
    v_add_u32 v{vM0}, s{sT0}, v{vM0}
    s_lshl_b32 s{sT0}, s{sTH}, 3
    s_add_u32 s{sT0}, s{sT0}, 4096
    s_add_u32 s{sT1}, s{sT3}, {L_SCR+4096-1024}
    v_lshlrev_b32 v{t5}, 9, v{t1}
    v_add_u32 v{t5}, s{sT1}, v{t5}
    v_mov_b32 v{vDh}, s{sT0}
    v_cmp_eq_u32 vcc, 1, v{t1}
    v_mov_b32 v{vDs}, 64
    v_mov_b32 v{vDt}, 4
    v_cndmask_b32 v{t5}, v{t5}, v{vDh}, vcc
    v_lshl_add_u32 v{t5}, v{t4}, 4, v{t5}
    v_cmp_eq_u32 vcc, 0, v{t1}
    v_mov_b32 v{vDe}, 2
    v_mov_b32 v{t3}, 1216
    v_cndmask_b32 v{vM0}, v{t5}, v{vM0}, vcc
    v_cndmask_b32 v{vDs}, v{vDs}, 8, vcc
    v_cndmask_b32 v{vDt}, v{vDt}, v{t3}, vcc
    v_cndmask_b32 v{vDe}, v{vDe}, 16, vcc
    v_cmp_gt_u32 vcc, 2, v{t1}
    v_mov_b32 v{vDh}, {2*5120}
    v_mov_b32 v{t3}, {RING}
    v_cndmask_b32 v{vDh}, v{vDh}, v{t3}, vcc
    v_mov_b32 v{t5}, 8
    v_mov_b32 v{t3}, {BLK}
    v_cndmask_b32 v{t5}, v{t5}, v{t3}, vcc
    v_mul_u32_u24 v{t3}, s{sHH}, v{vDs}
    v_add_u32 v{MA(0,0)}, v{vM0}, v{t3}
    v_sub_u32 v{t3}, v{vDs}, v{t3}
    v_add3_u32 v{MA(0,2)}, v{vM0}, v{t3}, v{vDh}
    v_add_u32 v{MA(0,1)}, v{MA(0,0)}, v{vDe}
    v_add_u32 v{MA(0,3)}, v{MA(0,2)}, v{vDe}""")
    for i in range(4):
        a(f"""v_add_u32 v{MA(1,i)}, v{MA(0,i)}, v{vDt}
        v_add_u32 v{MA(2,i)}, v{MA(0,i)}, v{t5}
        v_add_u32 v{MA(3,i)}, v{MA(1,i)}, v{t5}""")
    a(f"""s_and_b32 s{sT0}, s{sTt}, 2
    s_lshl_b32 s{sT0}, s{sT0}, 2
    v_mov_b32 v{t3}, s{sT0}
    v_cndmask_b32 v{t3}, v{t3}, 0, vcc""")
    for tt in range(4):
        for i in range(4): a(f"v_xor_b32 v{MA(tt,i)}, v{t3}, v{MA(tt,i)}")
    a(f"""v_cmp_eq_u32 vcc, 2, v{t1}
    v_mov_b32 v{vMul}, 1.0
    v_mov_b32 v{t2}, {f32(CSCALE)}
    v_cndmask_b32 v{vMul}, v{vMul}, v{t2}, vcc""")
    a(f"""v_and_b32 v{t2}, 16, v0
    v_lshrrev_b32 v{t2}, 2, v{t2}
    v_add_u32 v{t2}, v{t2}, v{t4}
    v_lshlrev_b32 v{vSq}, 4, v{t2}
    s_add_u32 s{sT1}, s{sScr}, 4096
    v_add_u32 v{vSq}, s{sT1}, v{vSq}
    v_and_b32 v{t0}, 31, v0
    v_lshrrev_b32 v{t1}, 5, v0
    v_mul_u32_u24 v{t3}, 304, v{t1}
    v_lshl_add_u32 v{t3}, v{t0}, 4, v{t3}
    v_add_u32 v{t3}, s{sRing}, v{t3}
    v_cmp_gt_u32 vcc, 19, v{t0}
    v_mov_b32 v{vVa}, {LDS_BYTES}
    v_lshl_add_u32 v{vKa}, v0, 4, s{sRing}
    v_cndmask_b32 v{vVa}, v{vVa}, v{t3}, vcc
    v_lshl_add_u32 v{vTa}, v{t0}, 4, s{sRing}
    v_mov_b32 v{vIdx}, 0xdddddddd
    v_lshl_add_u32 v{vSqh}, v{t1}, 2, v{vSq}
    s_mov_b32 s{sWsrc}, 0
    s_mov_b32 s{sXm0}, 0
    v_mul_u32_u24 v{vOnes}, 304, v0
    v_add_u32 v{vOnes}, s{sBlk}, v{vOnes}
    s_and_b32 s{sT0}, s{sTt}, 2
    s_lshl_b32 s{sT0}, s{sT0}, 10
    s_add_u32 s{sT1}, s{sScr}, s{sT0}
    v_lshl_add_u32 v{vQr}, v0, 4, s{sT1}
    s_lshl_b32 s6, s{sT0}, 1
    s_sub_u32 s6, 2048, s6
    s_mul_i32 s{sT0}, s{sTH}, 27648
    s_add_u32 s{sT0}, s{sT0}, s{sRing}
    v_lshl_add_u32 v{vCp}, v0, 4, s{sT0}
    v_bfe_u32 v{t2}, v0, 4, 1
    v_xor_b32 v{t2}, s{sHH}, v{t2}
    v_and_b32 v{t3}, 15, v0
    v_mul_u32_u24 v{vSt}, {128*576}, v{t2}
    v_lshl_add_u32 v{vStt}, v{t3}, 2, v{vSt}
    v_lshl_add_u32 v{vSt}, v{t3}, 4, v{vSt}
    v_lshl_add_u32 v{vSt}, v{t1}, 8, v{vSt}
    s_and_b32 s{sT2}, s{sTt}, 1
    v_xor_b32 v{t2}, s{sT2}, v{t1}
    v_mul_u32_u24 v{t2}, {256*576}, v{t2}
    v_add_u32 v{vStt}, v{vStt}, v{t2}
    s_lshl_b32 s{sT1}, s{sE}, 1
    s_add_u32 s{sT1}, s{sT1}, s{sTH}
    s_lshl_b32 s{sT1}, s{sT1}, 9
    s_add_u32 s{sT1}, s{sT1}, s{sBH}
    s_mul_i32 s{sT1}, s{sT1}, 576
    s_and_b32 s{sT3}, s{sBH}, 7
    s_lshl_b32 s{sT0}, s{sT3}, 6
    s_sub_u32 s{sT1}, s{sT1}, s{sT0}
    s_add_u32 s4, s{sT1}, {WS_O}
    s_add_u32 s5, s4, {64*576}
    s_mul_i32 s{sT0}, s{sT2}, {256*576}
    s_sub_u32 s{sT1}, {256*576}, s{sT0}
    s_add_u32 s56, s4, s{sT0}
    s_add_u32 s57, s4, s{sT1}
    s_add_u32 s58, s5, s{sT0}
    s_add_u32 s59, s5, s{sT1}
    s_mul_i32 s{sT3}, s{sT3}, 448
    s_sub_u32 s{sT3}, 4096, s{sT3}
    s_add_u32 s4, s4, s{sT3}
    s_add_u32 s5, s5, s{sT3}
    s_cmp_ge_u32 s{sPr}, 16
    s_mov_b32 s60, {f32(-LOG2E)}
    s_cselect_b32 s60, {f32(LOG2E)}, s60
    s_mov_b32 s61, {f32(2.0**-40)}
    s_mov_b32 s64, {f32(2.0**40) if not OPT['force_fb'] else f32(2.0**-39)}
    s_mov_b32 s65, {f32(CSCALE)}""")
    p3_scal(a)
    p3_addr_w(a, vWm3, vWt, t0, t1, t2)
    coff = (48, 0, 96, 0)
    def wfrag(k2):
        r = []
        for ct in range(4):
            for hf in range(2):
                r.append(f"ds_read_b64_tr_b16 {vr(WF+16*k2+4*ct+2*hf,2)}, v{vWc[ct]} offset:{L_WR + (32*k2+4*hf)*256}")
        return r
    def xread(buf):
        r = []
        for k2 in range(2):
            for s in range(2):
                r.append(f"ds_read_b128 {vr(XF[buf]+8*k2+4*s,4)}, v{vXr[2*s+k2]}")
        return r
    xadv = [f"s_add_u32 s{sXm0}, s{sXm0}, 1", f"s_cmp_eq_u32 s{sXm0}, {RX}", f"s_cselect_b32 s{sXm0}, 0, s{sXm0}",
            f"s_cselect_b32 s{sT1}, s{sWk}, s{sWcnt}",
            ] + [f"v_add_u32 v{c}, s{sT1}, v{c}" for c in vXr]
    wadv = [f"s_add_u32 s{sWsrc}, s{sWsrc}, 1", f"s_cmp_eq_u32 s{sWsrc}, {RW}", f"s_cselect_b32 s{sWsrc}, 0, s{sWsrc}",
            f"s_cselect_b32 s{sT2}, s{sWm0}, s{sGk}",
            ] + [f"v_add_u32 v{c}, s{sT2}, v{c}" for c in vWc]
    if OPT.get('noadv'):
        xadv = [''] * 8; wadv = [''] * 8
    a(f"""s_mov_b32 s{sWk}, {(-(RX-1)*8192) & 0xffffffff}
    s_mov_b32 s{sWcnt}, 8192
    s_mov_b32 s{sWm0}, {(-(RW-1)*WSL) & 0xffffffff}
    s_mov_b32 s{sGk}, {WSL}""")
    if OPT.get("rstpos", "late") == "late": reset_flags()
    if OPT.get("pf9", "1") == "1":
        a(f"""s_lshr_b32 s{sT0}, s2, 5
        s_bfe_u32 s{sT1}, s2, {(2 << 16) | 3}
        s_cmp_eq_u32 s{sWv}, 0
        s_cbranch_scc1 {K}_pfx
        s_cmp_eq_u32 s{sWv}, 1
        s_cbranch_scc0 {K}_pfw
        s_lshl_b32 s{sT2}, s{sT1}, 1
        s_sub_u32 s{sT2}, s{sT2}, 1
        s_cselect_b32 s{sT2}, 8, s{sT2}
        s_lshl_b32 s{sT2}, s{sT2}, 7
        s_lshl_b32 s{sT3}, s{sE}, 3
        s_add_u32 s{sT3}, s{sT3}, s{sT0}
        s_mul_i32 s{sT3}, s{sT3}, {32*1152}
        s_add_u32 s{sT2}, s{sT2}, s{sT3}
        v_mul_u32_u24 v75, 1152, v0
        s_mov_b32 exec_hi, 0
        buffer_load_dword v76, v75, s[{sX}:{sX+3}], s{sT2} offen
        s_branch {K}_pfd
        {K}_pfw:
        s_sub_u32 s{sT2}, s{sT0}, 1
        s_cselect_b32 s{sT2}, 8, s{sT2}
        s_lshl_b32 s{sT2}, s{sT2}, 2
        s_add_u32 s{sT2}, s{sT2}, s{sT1}
        s_mul_i32 s{sT2}, s{sT2}, {16*3456}
        s_and_b32 s{sT3}, s{sPr}, 15
        s_mul_i32 s{sT3}, s{sT3}, 72
        s_add_u32 s{sT2}, s{sT2}, s{sT3}
        s_mul_i32 s{sT3}, s{sTH}, 68
        s_add_u32 s{sT2}, s{sT2}, s{sT3}
        v_mul_u32_u24 v75, 1152, v0
        s_mov_b32 exec_hi, 0xffff
        buffer_load_dword v76, v75, s[{sW}:{sW+3}], s{sT2} offen
        {K}_pfd:
        s_mov_b64 exec, -1
        {K}_pfx:""")
    a("s_barrier")
    stamp(a, 1, 30)
    if OPT.get("rstpos", "late") == "afterp": reset_flags()
    for m in xread(0) + xadv + wfrag(0) + wfrag(1): a(m)
    QM, QT = 32, 48
    KF, V0, V1, KT = [80, 84], [88, 92], [96, 100], [56, 60]
    vGl = 26
    TP = 108
    def epi(tt):
        tp = (64, 80)[tt % 2]
        r = []
        for s in range(2):
            b = ACC + 32 * tt + 16 * s
            k_, q_ = tp + 2 * s, tp + 4 + 2 * s
            r += f"""v_cvt_pk_bf16_f32 v{k_}, v{b}, v{b+1}
            v_cvt_pk_bf16_f32 v{k_+1}, v{b+2}, v{b+3}
            v_mul_f32 v{b+4}, s65, v{b+4}
            v_mul_f32 v{b+5}, s65, v{b+5}
            v_mul_f32 v{b+6}, s65, v{b+6}
            v_mul_f32 v{b+7}, s65, v{b+7}
            ds_write_b64 v{vKw}, {vr(k_,2)} offset:{(tt>>1)*BLK + (tt&1)*1024 + s*64}
            v_cvt_pk_bf16_f32 v{q_}, v{b+4}, v{b+5}
            v_cvt_pk_bf16_f32 v{q_+1}, v{b+6}, v{b+7}
            v_cvt_pk_bf16_f32 v{tp+8+2*s}, v{b+8}, v{b+9}
            v_cvt_pk_bf16_f32 v{tp+9+2*s}, v{b+10}, v{b+11}
            ds_write_b64 v{vQw}, {vr(q_,2)} offset:{tt*1024 + s*256}""".split("\n")
        b = ACC + 32 * tt
        r += f"""ds_write_b128 v{vVw}, {vr(tp+8,4)} offset:{4608 + (tt>>1)*BLK + (tt&1)*1216}
        v_mul_f32 v{b+12}, v{vMul}, v{b+12}
        v_mul_f32 v{b+13}, v{vMul}, v{b+13}
        v_mul_f32 v{b+14}, v{vMul}, v{b+14}
        v_mul_f32 v{b+15}, v{vMul}, v{b+15}
        v_cvt_pk_bf16_f32 v{tp+12}, v{b+12}, v{b+13}
        v_cvt_pk_bf16_f32 v{tp+13}, v{b+14}, v{b+15}
        ds_write_b16 v{MA(tt,0)}, v{tp+12}
        ds_write_b16_d16_hi v{MA(tt,1)}, v{tp+12}
        ds_write_b16 v{MA(tt,2)}, v{tp+13}
        ds_write_b16_d16_hi v{MA(tt,3)}, v{tp+13}""".split("\n")
        return r
    NM = 14
    def chunk(last):
        for tt in range(4):
            cur = XF[tt & 1]
            mf = []
            for k2 in range(2):
                for ct in range(4):
                    for s in range(2 if ct < 3 else 1):
                        d = ACC + 32 * tt + 16 * s + 4 * ct
                        w_, x_ = vr(WF + 16 * k2 + 4 * ct, 4), vr(cur + 8 * k2 + 4 * s, 4)
                        A_, B_ = (x_, w_) if ct == 2 else (w_, x_)
                        mf.append(f"v_mfma_f32_16x16x32_bf16 {vr(d,4)}, {A_}, {B_}, {vr(d,4)}")
            fill = {i: [] for i in range(-1, NM)}
            xr = xread((tt + 1) & 1)
            if tt == 0:
                fill[-1].append("s_waitcnt lgkmcnt(8)")
                for i in range(4): fill[i].append(xr[i])
                fill[6].append("s_waitcnt lgkmcnt(4)")
                for i in range(8): fill[(4, 5, 7, 8, 9, 10, 11, 12)[i]].append(xadv[i])
                if last:
                    for i in range(4): fill[i].append(f"v_mov_b32 v{92+i}, 0x3f803f80")
                    fill[13] += ["s_mov_b64 exec, 0xffff", f"ds_write_b128 v{vOnes}, v[92:95] offset:{4608+288}", "s_mov_b64 exec, -1"]
            elif last:
                if tt < 3:
                    for i in range(4): fill[i // 2].append(xr[i])
                    if tt == 1:
                        for i in range(8): fill[2 + i // 3].append(xadv[i])
                e = epi(tt - 1)
                st = (0, 5, 2, 1)[tt]
                per = -(-len(e) // (NM - st))
                for i, m in enumerate(e): fill[st + i // per].append(m)
            elif tt == 3:
                for i in range(4): fill[-1 + (i + 1) // 2].append(xr[i])
                w0, w1 = wfrag(0), wfrag(1)
                lastuse = (1, 3, 5, 6)
                for ct in range(4):
                    fill[lastuse[ct]] += [w0[2 * ct]]; fill[lastuse[ct] + 1] += [w0[2 * ct + 1]]
                    fill[7 + lastuse[ct]] += [w1[2 * ct]]; fill[min(NM - 1, 8 + lastuse[ct])] += [w1[2 * ct + 1]]
                for i in range(8): fill[(2, 3, 4, 5, 7, 8, 9, 10)[i]].append(xadv[i])
                fill[11].append(f"s_sub_u32 s{sIt}, s{sIt}, 1")
            else:
                for i in range(4): fill[i].append(xr[i])
                for i in range(8): fill[4 + i].append(xadv[i])
                if tt == 1:
                    for i in range(4): fill[10 + i].append(wadv[i])
                if tt == 2:
                    for i in range(4): fill[10 + i].append(wadv[4 + i])
            if tt % 2 == 0: a("s_barrier")
            for m in fill[-1]: a(m)
            for i in range(NM):
                if not OPT.get("nomf"): a(mf[i])
                for m in fill[i]: a(m)
            if last:
                if tt == 0: a("s_waitcnt lgkmcnt(1)")
                elif tt == 1: a("s_waitcnt lgkmcnt(9)")
                elif tt == 2: a("s_waitcnt lgkmcnt(0)\ns_barrier")
            elif tt == 3:
                a(f"""s_waitcnt lgkmcnt(15)
                s_cmp_eq_u32 s{sIt}, s{sCnt}
                s_cbranch_scc1 {K}_rst
                {K}_rst_ret:
                s_cmp_lg_u32 s{sIt}, 0""")
            else:
                a("s_waitcnt lgkmcnt(0)")
    a(f"""s_mov_b32 s{sIt}, 8
    s_waitcnt lgkmcnt(0)
    {K}_p1:""")
    chunk(False)
    a(f"s_cbranch_scc1 {K}_p1")
    a("s_waitcnt vmcnt(0)")
    chunk(True)
    stamp(a, 2, 30)
    a("s_nop 1")
    for m in epi(3): a(m)
    S = [128, 144, 160, 176]
    O = [192, 208, 224, 240]
    zo = [f"v_mov_b32 v{O[x]+i}, 0" for x in range(4) for i in range(11)]
    zj = [f"v_mov_b32 v{O[x]+i}, 0" for x in range(4) for i in range(11, 16)]
    zq = [f"v_mov_b32 v{QT+4*j+i}, 0" for j in range(2) for i in (1, 2)]
    zs = [f"v_mov_b32 v{S[3]+8+i}, 0" for i in range(8)] + [f"v_mov_b32 v{V1[1]+i}, 0" for i in range(4)]
    for m in zo[:22] + zj[:10]: a(m)
    a("s_waitcnt lgkmcnt(0)")
    for x in range(4):
        if x == 2: a(f"v_add_u32 v{vQr}, s6, v{vQr}")
        a(f"ds_read_b128 {vr(QM+4*x,4)}, v{vQr} offset:{1024*(x&1)}")
    a("s_barrier")
    stamp(a, 3, 30)
    NB = int(OPT["nb"])
    T2F = OPT.get("t2f", "0") == "1"
    def ldK(t, buf): return f"ds_read_b128 {vr(KF[buf],4)}, v{vKa} offset:{((t//4)%NB)*BLK + (t%4)*1024}"
    def ldV(t, half, buf): return f"ds_read_b128 {vr((V0,V1)[half][buf],4)}, v{vVa} offset:{((t//4)%NB)*BLK + 4608 + (t%4)*1216 + 608*half}"
    def ldT(b=0): return f"ds_read_b128 {vr(KT[b%2],4)}, v{vTa} offset:{(b%NB)*BLK + 4096}"
    def QKM(t, x, s, c="0"): return f"v_mfma_f32_32x32x16_bf16 {vr(s,16)}, {vr(KF[t%2],4)}, {vr(QM+4*x,4)}, {c}"
    def QKT(t, x, s): return f"v_mfma_f32_32x32x4_2b_bf16 {vr(s,32)}, {vr(KT[(t//4)%2]+(t&2),2)}, {vr(QT+2*x+2*(t&1),2)}, {vr(s,32) if not T2F else 0}"
    def PV(half, t, x, s): return f"v_smfmac_f32_32x32x32_bf16 {vr(O[x],16)}, {vr((V0,V1)[half][t%2],4)}, {vr(s+8*half,8)}, v{vIdx}"
    a(ldK(0, 0))
    a(f"ds_read2_b32 {vr(TP,2)}, v{vSqh} offset0:0 offset1:2")
    a(ldT()); a(ldV(0, 0, 0)); a(ldV(0, 1, 0))
    a(f"ds_read_b128 {vr(vGl,4)}, v{vSq} offset:512")
    HOOKS = [1, 3, 7, 11, 13, 15]
    assert NB % 2 == 0
    for m in zq + zs: a(m)
    a(f"""s_mov_b32 s{sIt}, 0
    s_mov_b32 s{sWk}, {NB*BLK}
    s_mov_b32 s{sWcnt}, {(NB*BLK - RING) & 0xffffffff}
    s_waitcnt lgkmcnt(4)""")
    if not T2F:
        a(QKM(0, 0, S[0]))
        a(f"""v_mov_b32 v{QT}, v{TP}
    v_mov_b32 v{QT+3}, v{TP}
    v_mov_b32 v{QT+4}, v{TP+1}
    v_mov_b32 v{QT+7}, v{TP+1}""")
        a(QKM(0, 1, S[1]))
        for m in zo[22:27]: a(m)
        a(QKM(0, 2, S[2]))
        for m in zo[27:32]: a(m)
        a("s_waitcnt lgkmcnt(3)")
        a(QKT(0, 0, S[0]))
        for m in zo[32:]: a(m)
        for m in zj[10:]: a(m)
        a("s_waitcnt lgkmcnt(0)")
    else:
        a(f"""v_mov_b32 v{QT}, v{TP}
        v_mov_b32 v{QT+3}, v{TP}
        v_mov_b32 v{QT+4}, v{TP+1}
        v_mov_b32 v{QT+7}, v{TP+1}
        s_waitcnt lgkmcnt(3)""")
        a(QKT(0, 0, S[0]))
        for m in zo[22:40]: a(m)
        a(QKM(0, 0, S[0], vr(S[0], 16)))
        for m in zo[40:]: a(m)
        a(QKM(0, 1, S[1], vr(S[1], 16)))
        a("s_nop 5")
        a("s_waitcnt lgkmcnt(0)")
    if OPT.get("cprio"): a(f"s_setprio {OPT['cprio']}")
    hookblks = []
    a(".p2align 6")
    a(f"{K}_att:")
    pos = (2, 5, 10, 14, 22, 26, 30)
    assert NB == 4
    NIT = 4
    SB = lambda u: S[u % 4]
    CC = [5, 6, 7, 8]
    R8 = [64, 68, 72, 76, 104, 108, 112, 116, 120]
    RL = list(range(32, 64, 4)) + list(range(80, 104, 4)) + [124] + list(range(128, 176, 4))
    creg = lambda s, ct: R8[s] if ct == 8 else RL[3 * s + ct - 5]
    tq = [2, 3, 4, 5]
    sDef = 7
    def window(u, unit, last=10**9):
        ins = {i: [] for i in range(33)}
        ins[pos[0]].append(PV(1, *unit(u - 1), SB(u - 1)))
        if u + 3 <= last: ins[pos[1]].append(QKM(*unit(u + 3), SB(u + 3)))
        ins[pos[2]].append(PV(0, *unit(u), SB(u)))
        if u + 3 <= last: ins[pos[3]].append(QKT(*unit(u + 2), SB(u + 2)))
        ins[pos[4]].append(PV(1, *unit(u), SB(u)))
        ins[pos[5]].append(PV(0, *unit(u + 1), SB(u + 1)))
        if u + 4 <= last: ins[pos[6]].append(QKM(*unit(u + 4), SB(u + 4)))
        return ins
    def emit(u, ins):
        for i in range(32):
            for m in ins[i]:
                if callable(m): m()
                else: a(m)
            a(f"v_exp_f32 v{SB(u)+i}, v{SB(u)+i}")
    def check(xs, fail):
        l0, l1 = O[xs[0]] + 10, O[xs[1]] + 10
        a(f"""v_add_f32 v2, v{l0}, v{l1}
        v_min_f32 v3, v{l0}, v{l1}
        v_cmp_ge_f32 s[{sEx}:{sEx+1}], s64, v2
        v_cmp_le_f32 vcc, s61, v3
        s_nop 1
        s_and_b32 vcc_lo, vcc_lo, s{sEx}
        s_cmp_eq_u32 vcc_lo, -1
        s_cbranch_scc0 {fail}""")
    def out_tiles(xs, gap):
        for x in xs: a(f"v_mov_b32 v{tq[x]}, v{O[x]+10}")
        gap()
        for x in xs: a(f"v_permlane32_swap_b32 v{O[x]+10}, v{tq[x]}")
        for x in xs: a(f"v_fma_f32 v{tq[x]}, v{O[x]+10}, v{vGl+x}, v{O[x]+10}")
        for x in xs: a(f"v_rcp_f32 v{tq[x]}, v{tq[x]}")
        gap()
        for x in xs:
            o = O[x]
            sel = "op_sel_hi:[1,0]" if x % 2 == 0 else "op_sel:[0,1]"
            for i in range(0, 10, 2): a(f"v_pk_mul_f32 {vr(o+i,2)}, {vr(o+i,2)}, {vr(tq[x & 2],2)} {sel}")
            for i in range(4): a(f"v_cvt_pk_bf16_f32 v{o+12+i}, v{o+2*i}, v{o+2*i+1}")
            a(f"""v_cvt_pk_bf16_f32 v{o+11}, v{o+8}, v{o+9}
            buffer_store_dwordx4 {vr(o+12,4)}, v{vSt}, s[{sWS}:{sWS+3}], s{56+x} offen sc1""")
        gap()
        a(f"""v_permlane32_swap_b32 v{O[xs[0]]+11}, v{O[xs[1]]+11}
        buffer_store_dword v{O[xs[0]]+11}, v{vStt}, s[{sWS}:{sWS+3}], s{4+(xs[0]>>1)} offen sc1""")
    std = lambda u: divmod(u, 4)
    for u in range(0, 64, 2):
        t, x = divmod(u, 4)
        blk, ub = divmod(u, 16)
        ins = window(u, std)
        if x == 0:
            ins[pos[0]].append(ldV(t + 1, 1, (t + 1) % 2))
            ins[pos[1]].append(ldK(t + 1, (t + 1) % 2))
            ins[pos[2]].append(ldV(t + 1, 0, (t + 1) % 2))
            if ub == 12: ins[pos[3]].append(ldT(blk + 1))
            ins[pos[5]].append("s_waitcnt lgkmcnt(0)")
        if ub == 10:
            if blk == 3:
                ins[pos[0]].append(f"s_cmp_eq_u32 s{sIt}, 1")
                ins[pos[1]].append(f"s_cselect_b32 s{sT0}, s{sWcnt}, s{sWk}")
                ins[pos[2]].append(f"v_add_u32 v{vKa}, s{sT0}, v{vKa}")
                ins[pos[3]].append(f"v_add_u32 v{vTa}, s{sT0}, v{vTa}")
                ins[pos[4]].append(f"v_add_u32 v{vVa}, s{sT0}, v{vVa}")
                ins[pos[5]].append(f"s_add_u32 s{sIt}, s{sIt}, 1")
                ins[pos[6]].append("s_barrier")
            elif blk == 1:
                ins[pos[6]] += [f"s_bitcmp1_b32 9, s{sIt}", f"s_cbranch_scc1 {K}_hook1", f"{K}_hook_ret1:"]
                hookblks.append(blk)
        if u == 44: ins[pos[6]].append(f"s_cmp_eq_u32 s{sIt}, 3")
        if u == 46: ins[0].append(f"s_cbranch_scc1 {K}_last")
        emit(u, ins)
    if OPT.get("light"):
        a(f"""s_memtime s[82:83]
        s_memrealtime s[80:81]
        s_add_u32 m0, s{sIt}, 15
        s_waitcnt lgkmcnt(0)
        v_writelane_b32 v30, s80, m0
        v_writelane_b32 v31, s82, m0""")
    a(f"s_branch {K}_att")
    a("; ----- last key block: query tiles 0,1 first (stored early), then 2,3 -----")
    a(f"{K}_last:")
    def lastu(u):
        if u < 48: return divmod(u, 4)
        v = u - 48
        return 12 + ((v >> 1) & 3), 2 * (v >> 3) + (v & 1)
    w8 = Asm(); p3_wo_loads(w8, [8], creg, vWm3, vWt)
    w8 = [x_.strip() for x_ in w8.l]
    def early():
        for x in range(4): a(f"v_lshlrev_b32 v{vGl+x}, 16, v{vGl+x}")
        for x in range(4): a(f"v_mul_f32 v{vGl+x}, s60, v{vGl+x}")
        for x in range(4): a(f"v_exp_f32 v{vGl+x}, v{vGl+x}")
        a(f"s_mov_b32 s{sDef}, 0")
        check((0, 1), f"{K}_defer")
        a(f"s_mov_b32 s{sDef}, -1")
        out_tiles((0, 1), lambda: a("s_nop 0"))
        a(f"{K}_defer:")
    for u in range(46, 64, 2):
        ins = window(u, lastu, 63)
        if u == 46:
            ins[pos[1]].append(ldK(13, 1))
            ins[pos[5]].append("s_waitcnt lgkmcnt(0)")
        else:
            q = 12 + ((u - 48) >> 1)
            tl = lambda q_: 12 + (q_ & 3)
            if q + 1 <= 19:
                ins[pos[0]].append(ldV(tl(q + 1), 1, (q + 1) % 2))
                ins[pos[2]].append(ldV(tl(q + 1), 0, (q + 1) % 2))
                ins[pos[5]].append("s_waitcnt lgkmcnt(0)")
            if q + 2 <= 19: ins[pos[1]].append(ldK(tl(q + 2), q % 2))
        if u <= 54:
            for p_ in (pos[3], pos[4]):
                if w8 and w8[0].startswith("s_add"): ins[p_].append(w8.pop(0))
                if w8: ins[p_].append(w8.pop(0))
        if u == 56: ins[pos[3]].append(early)
        if u == 60: ins[pos[6]].append("s_barrier")
        emit(u, ins)
    assert not w8
    a("s_nop 1")
    a(PV(1, 15, 3, S[3]))
    stamp(a, 8, 30)
    if OPT.get("light"): stamp(a, 19, 30)
    cp = [f"ds_read_b128 {vr(creg(s_,ct),4)}, v{vCp} offset:{1024*(3*s_+i)}" for s_ in range(9) for i, ct in enumerate(CL)]
    a(f"""s_nop 10
    s_and_b32 s64, s64, s{sDef}""")
    check((2, 3), f"{K}_fbchk")
    a(f"{K}_fbdone:")
    def popn():
        for _ in range(int(OPT.get("cpn", 1))):
            a(cp.pop(0) if cp else "s_nop 0")
            if not cp: break
    out_tiles((2, 3), popn)
    for m in cp: a(m)
    stamp(a, 9, 30)
    a(f"""v_mov_b32 v6, {L_SYNC + 20}
    v_mov_b32 v7, 1
    s_setprio {OPT.get("p3prio", 2)}
    s_mov_b64 exec, 1
    s_waitcnt lgkmcnt(0)
    ds_add_u32 v6, v7
    s_mov_b64 exec, -1""")
    vOm, vOt, vRd = [2, 8], 3, 4
    p3_addr_o(a, vOm, vOt, vRd, [9, 10], 5, 11, 12, 13)
    for i in range(32): a(f"v_mov_b32 v{224+i}, 0")
    stamp(a, 10, 30)
    if OPT.get("drain"):
        a("s_waitcnt vmcnt(0)")
        stamp(a, 12, 30)
    p3_comp(a, CC, creg, 224, 176, vOm, vOt, vRd, 5, [9, 10])
    stamp(a, 11, 30)
    a(f"{K}_final:")
    final_reduce(a, K, 30)
    a(f"{K}_end:")
    a("s_endpgm")
    a(f"""{K}_rst:
    s_lshl_b32 s{sT0}, s{sPr}, 2
    v_mov_b32 v28, s{sT0}
    v_mov_b32 v29, 1
    s_mov_b64 exec, 1
    s_waitcnt vmcnt(0)
    buffer_atomic_add v29, v28, s[{sD}:{sD+3}], 0 offen
    s_mov_b64 exec, -1
    s_branch {K}_rst_ret""")
    for blk in hookblks:
        a(f"{K}_hook{blk}:")
        if OPT["stamp"]:
            for hb, i_ in ((1, 4), (3, 6)):
                if hb % NB == blk:
                    a(f"s_cmp_eq_u32 s{sIt}, {hb // NB}\ns_cbranch_scc0 {K}_hk{hb}")
                    stamp(a, i_, 30); a("s_barrier"); stamp(a, i_ + 1, 30); a(f"s_branch {K}_hook_ret{blk}")
                    a(f"{K}_hk{hb}:")
        a(f"""s_barrier
        s_branch {K}_hook_ret{blk}""")
    FQ = S[3]
    a(f"""{K}_fbchk:
    s_mov_b32 s64, {f32(2.0**40) if not OPT['force_fb'] else f32(2.0**-39)}
    s_cmp_lg_u32 s{sDef}, 0
    s_cbranch_scc1 {K}_fbc2""")
    for x in range(4):
        if x == 2:
            out_tiles((0, 1), lambda: a("s_nop 0"))
            a(f"{K}_fbc2:")
        a(f"""v_cmp_le_f32 vcc, s61, v{O[x]+10}
        v_cmp_ge_f32 s[{sEx}:{sEx+1}], s64, v{O[x]+10}
        s_nop 1
        s_and_b32 vcc_lo, vcc_lo, s{sEx}
        s_cmp_eq_u32 vcc_lo, -1
        s_cbranch_scc0 {K}_fb{x}
        {K}_fbret{x}:""")
    a(f"s_branch {K}_fbdone")
    for x in range(4):
        a(f"{K}_fb{x}:")
        for i in range(4): a(f"v_mov_b32 v{FQ+i}, v{QM+4*x+i}")
        for i in range(4): a(f"v_mov_b32 v{FQ+4+i}, 0")
        a(f"""s_mov_b32 {'exec_hi' if x % 2 == 0 else 'exec_lo'}, 0
        v_mov_b32 v{FQ+4}, v{QT+4*(x>>1)}
        v_mov_b32 v{FQ+7}, v{QT+4*(x>>1)}
        s_mov_b64 exec, -1""")
        a(f"s_call_b64 s[{sRet}:{sRet+1}], {K}_slow")
        for i in range(16): a(f"v_mov_b32 v{O[x]+i}, v{S[2]+i}")
        a(f"s_branch {K}_fbret{x}")
    a(f"{K}_slow:")
    vb, vc, vm = 11, 12, 13
    sA, sB = sWsrc, sWm0
    t0 = 9
    a(f"""v_lshlrev_b32 v{t0}, 4, v0
    v_and_b32 v{vm}, 31, v0
    v_lshlrev_b32 v{vb}, 4, v{vm}
    v_lshrrev_b32 v{vc}, 5, v0
    v_mul_u32_u24 v{vc}, 304, v{vc}
    v_lshl_add_u32 v{vc}, v{vm}, 4, v{vc}
    v_cmp_lt_u32 vcc, 18, v{vm}
    v_mov_b32 v{vm}, 0x40000000
    s_nop 1
    v_cndmask_b32 v{vc}, v{vc}, v{vm}, vcc""")
    def slow_qk(t, c):
        a(f"""v_mfma_f32_32x32x16_bf16 {vr(S[0],16)}, {vr(KF[0],4)}, {vr(FQ,4)}, {c}
        v_mfma_f32_32x32x8_bf16 {vr(S[0],16)}, {vr(KT[0]+(t&2),2)}, {vr(FQ+4+2*(t&1),2)}, {vr(S[0],16)}
        s_nop 15""")
    def slow_next(lbl):
        a(f"""s_add_u32 s{sA}, s{sA}, {BLK}
        s_sub_u32 s{sIt}, s{sIt}, 1
        s_cmp_lg_u32 s{sIt}, 0
        s_cbranch_scc1 {lbl}""")
    a(f"""v_mov_b32 v{vm}, 0xff800000
    s_mov_b32 s{sA}, s{sKVg}
    s_mov_b32 s{sIt}, 16
    {K}_sl1:
    s_add_u32 s{sB}, s{sA}, 4096
    buffer_load_dwordx4 {vr(KT[0],4)}, v{vb}, s[{sWS}:{sWS+3}], s{sB} offen sc1""")
    for t in range(4):
        a(f"""buffer_load_dwordx4 {vr(KF[0],4)}, v{t0}, s[{sWS}:{sWS+3}], s{sA} offen offset:{1024*t} sc1
        s_waitcnt vmcnt(0)""")
        slow_qk(t, "0")
        for i in range(8): a(f"v_max3_f32 v{vm}, v{S[0]+2*i}, v{S[0]+2*i+1}, v{vm}")
    slow_next(f"{K}_sl1")
    a(f"""v_mov_b32 v{S[0]}, v{vm}
    s_nop 1
    v_permlane32_swap_b32 v{vm}, v{S[0]}
    s_nop 1
    v_max_f32 v{vm}, v{vm}, v{S[0]}""")
    for i in range(16):
        a(f"v_sub_f32 v{S[1]+i}, 0, v{vm}")
        a(f"v_mov_b32 v{S[2]+i}, 0")
    a(f"""s_mov_b32 s{sA}, s{sKVg}
    s_mov_b32 s{sIt}, 16
    {K}_sl2:
    s_add_u32 s{sB}, s{sA}, 4096
    buffer_load_dwordx4 {vr(KT[0],4)}, v{vb}, s[{sWS}:{sWS+3}], s{sB} offen sc1""")
    for t in range(4):
        a(f"""buffer_load_dwordx4 {vr(KF[0],4)}, v{t0}, s[{sWS}:{sWS+3}], s{sA} offen offset:{1024*t} sc1
        s_add_u32 s{sB}, s{sA}, {4608+1216*t}
        buffer_load_dwordx4 {vr(V0[0],4)}, v{vc}, s[{sWS}:{sWS+3}], s{sB} offen sc1
        buffer_load_dwordx4 {vr(V1[0],4)}, v{vc}, s[{sWS}:{sWS+3}], s{sB} offen offset:608 sc1
        s_waitcnt vmcnt(0)""")
        slow_qk(t, vr(S[1], 16))
        for i in range(16): a(f"v_exp_f32 v{S[0]+i}, v{S[0]+i}")
        a(f"""s_nop 3
        v_smfmac_f32_32x32x32_bf16 {vr(S[2],16)}, {vr(V0[0],4)}, {vr(S[0],8)}, v{vIdx}
        v_smfmac_f32_32x32x32_bf16 {vr(S[2],16)}, {vr(V1[0],4)}, {vr(S[0]+8,8)}, v{vIdx}
        s_nop 7""")
    slow_next(f"{K}_sl2")
    a(f"""s_nop 15
    s_setpc_b64 s[{sRet}:{sRet+1}]""")

def main(out):
    ka = f"{NAME}_kernel"
    a = Asm(); kernel(a)
    t = f"""; gated mix of two MHA blocks (both on A_x): one fused kernel, written with the generator gen/gen_final.py
; @launch grid=(256,1,1) block=(512,1,1) lds={LDS_BYTES}
;
; Workgroup = (pair of adjacent heads of one branch, 256 tokens); waves 0-3 compute, waves 4-7 load / hand off.
;     P = exp2(S), O^T/l accumulated by a sparse MFMA that reads the high halves of the f32 P registers;
.amdgcn_target "amdgcn-amd-amdhsa--gfx950"
.text
.globl {ka}
.p2align 8
.type {ka},@function
{ka}:
{a.text()}.section .rodata,"a"
.p2align 6
.amdhsa_kernel {ka}
  .amdhsa_next_free_vgpr 256
  .amdhsa_next_free_sgpr 102
  .amdhsa_accum_offset 256
  .amdhsa_group_segment_fixed_size 0
  .amdhsa_kernarg_size 80
  .amdhsa_user_sgpr_count 2
  .amdhsa_user_sgpr_kernarg_segment_ptr 1
  .amdhsa_system_sgpr_workgroup_id_x 1
.end_amdhsa_kernel
"""
    open(out, "w").write(t)

if __name__ == "__main__":
    for kv in sys.argv[2:]:
        k, v = kv.split("=")
        OPT[k] = {"True": True, "False": False}.get(v, v)
    main(sys.argv[1])
```

```python
import sys, struct

NAME = "gated_mix__mha_block__mha_block__prompt"
def f32(x): return "0x%08x" % struct.unpack("<I", struct.pack("<f", x))[0]
CSCALE = (18 ** -0.5) * 1.4426950408889634
LOG2E = 1.4426950408889634

BLK = 9472
KVH = 16 * BLK
RING = 8 * BLK
WS_O = 0x0A00000
WS_WOM = 0x0F00000
WS_WOT = 0x1080000
WS_F = 0x10C0000
WS_STAMP = 0x1100000
WS_SIZE = 0x1200000
SENT = 0xffffffff
L_WR = 0
WSL = 16384
RW = 3
L_XR = 98304
L_SCR = 49152
L_GT = 155648
L_SYNC = L_GT + 3 * 2048 + 1536
L_WO = 151552
LDS_BYTES = 163840
RS = 592
STRAD = sum(1 << p for p in range(32) if (72 * (p & 15)) % 128 > 56)
L_OA = 6 * BLK
L_OB = 94720
PLANE = 32 * RS

class Asm:
    def __init__(self): self.l = []
    def __call__(self, s):
        for x in s.strip("\n").split("\n"):
            x = x.strip()
            if not x: continue
            self.l.append(x if x.endswith(":") or x.startswith(";") else "    " + x)
    def text(self): return "\n".join(self.l) + "\n"

def vr(a, n): return f"v[{a}:{a+n-1}]"
OPT = dict(force_fb=False, stamp=False, rx="7", txor="1", nb="4", cprio="2", hp3="1", cpn="14", lb="1", pf9="0", rf="1.2.2.2.1", tx4="5")

def srd(a, d, lo, hi, size):
    a(f"""s_mov_b32 s{d}, s{lo}
    s_and_b32 s{d+1}, s{hi}, 0xffff
    s_mov_b32 s{d+2}, {size}
    s_mov_b32 s{d+3}, 0x00020000""")

sX, sW, sWo, sG, sD, sWS, sOut = 8, 12, 16, 20, 24, 28, 84
sWv, sPr, sE, sHd, sRot = 32, 33, 34, 35, 36
sT0, sT1, sT2, sT3 = 37, 38, 39, 40
sRef, sCnt, sKo, sXb, sRing, sIt, sKVg, sSpin, sW8 = 41, 42, 43, 44, 45, 46, 47, 48, 49
sRet, sEx = 50, 52
sWsrc, sWm0, sWk, sWcnt, sXm0, sGk, sTt, sBH = 54, 55, 62, 63, 76, 77, 78, 79
sP3T, sP3C, sOb, sWmb, sWtb, sHH, sTH, sOtb = 88, 89, 90, 91, 92, 93, 94, 95
SV = 254
sLA, sLB = 74, 75
sGO = [66, 67, 68, 69]
sGW = [70, 71, 72, 73]

def stamp(a, idx, vreg):
    if not OPT["stamp"]: return
    a(f"""s_memrealtime s[80:81]
    s_memtime s[82:83]
    s_waitcnt lgkmcnt(0)
    v_writelane_b32 v{vreg}, s80, {idx}
    v_writelane_b32 v{vreg+1}, s82, {idx}""")
def sstamp(a, k):
    if not OPT["stamp"]: return
    a(f"""s_memrealtime s[80:81]
    s_waitcnt lgkmcnt(0)
    s_mov_b32 s{96+k}, s80""")
def stamp_out(a, vreg, vt=1, mask=None):
    if not OPT["stamp"]: return
    a(f"""s_lshl_b32 s80, s2, 3
    s_add_u32 s80, s80, s{sW8}
    s_lshl_b32 s80, s80, 8
    s_add_u32 s80, s80, {WS_STAMP}
    v_lshlrev_b32 v{vt}, 3, v0
    s_mov_b32 exec_hi, 0""")
    if mask is not None: a(f"s_mov_b32 exec_lo, {mask}")
    a(f"""buffer_store_dwordx2 v[{vreg}:{vreg+1}], v{vt}, s[{sWS}:{sWS+3}], s80 offen
    s_mov_b64 exec, -1""")

def p3_addr_w(a, vWm, vWt, t0, t1, t2):
    a(f"""v_and_b32 v{t0}, 15, v0
    v_lshrrev_b32 v{t1}, 5, v0
    v_bfe_u32 v{t2}, v0, 4, 1
    v_mul_u32_u24 v{vWm}, 4608, v{t1}
    v_lshl_add_u32 v{vWm}, v{t2}, 8, v{vWm}
    v_lshl_add_u32 v{vWm}, v{t0}, 4, v{vWm}
    v_xor_b32 v{t1}, s{sP3C}, v{t1}
    v_and_b32 v{t1}, 1, v{t1}
    v_lshl_add_u32 v{t2}, v{t1}, 3, v{t2}
    v_mul_u32_u24 v{vWt}, 2304, v{t2}
    v_lshl_add_u32 v{vWt}, v{t0}, 4, v{vWt}""")
def p3_addr_o(a, vOm, vOt, vRd, vVa, vSy, t0, t1, t2):
    a(f"""v_and_b32 v{t0}, 15, v0
    v_lshrrev_b32 v{t1}, 5, v0
    v_bfe_u32 v{t2}, v0, 4, 1
    v_lshlrev_b32 v{vOm[0]}, 4, v0
    v_mul_u32_u24 v{vOt}, 4608, v{t1}
    v_lshl_add_u32 v{vOt}, v{t2}, 8, v{vOt}
    v_lshl_add_u32 v{vOt}, v{t0}, 2, v{vOt}
    v_add_u32 v{vOm[1]}, s{sLB}, v{vOm[0]}
    v_add_u32 v{vOm[0]}, s{sLA}, v{vOm[0]}
    v_lshrrev_b32 v{t1}, 4, v0
    v_mul_u32_u24 v{vRd}, {RS}, v{t0}
    v_lshl_add_u32 v{vRd}, v{t1}, 4, v{vRd}
    s_cmp_eq_u32 s{sWv}, 3
    s_cselect_b32 s{sT3}, 4, s{sWv}
    s_mul_i32 s{sT3}, s{sT3}, {PLANE}
    v_add_u32 v{vRd}, s{sT3}, v{vRd}
    v_lshlrev_b32 v{vVa[0]}, 3, v0
    v_add_u32 v{vVa[0]}, 4096, v{vVa[0]}
    v_add_u32 v{vVa[1]}, s{sLB}, v{vVa[0]}
    v_add_u32 v{vVa[0]}, s{sLA}, v{vVa[0]}
    s_lshl_b32 s{sT3}, s{sWv}, 2
    s_add_u32 s{sT3}, s{sT3}, {L_SYNC + 32}
    v_mov_b32 v{vSy}, s{sT3}""")
def p3_scal(a):
    a(f"""s_and_b32 s{sP3T}, s2, 7
    s_lshr_b32 s{sT0}, s2, 5
    s_lshl_b32 s{sT0}, s{sT0}, 3
    s_add_u32 s{sP3T}, s{sP3T}, s{sT0}
    s_lshr_b32 s{sP3C}, s2, 3
    s_and_b32 s{sP3C}, s{sP3C}, 3
    s_lshl_b32 s{sOb}, s{sP3T}, 7
    s_lshl_b32 s{sT3}, s{sWv}, 3
    s_add_u32 s{sOb}, s{sOb}, s{sT3}
    s_mul_i32 s{sOb}, s{sOb}, 576
    s_add_u32 s{sOb}, s{sOb}, {WS_O}
    s_lshl_b32 s{sWmb}, s{sP3C}, 6
    s_add_u32 s{sWmb}, s{sWmb}, s{sT3}
    s_mul_i32 s{sWmb}, s{sWmb}, 4608
    s_add_u32 s{sWmb}, s{sWmb}, {WS_WOM}
    s_lshl_b32 s{sWtb}, s{sP3C}, 3
    s_add_u32 s{sWtb}, s{sWtb}, s{sWv}
    s_mul_i32 s{sWtb}, s{sWtb}, 4608
    s_add_u32 s{sWtb}, s{sWtb}, {WS_WOT}
    s_mul_i32 s{sLA}, s{sHH}, {RING}
    s_mul_i32 s{sT3}, s{sTH}, 9216
    s_add_u32 s{sLA}, s{sLA}, s{sT3}
    s_add_u32 s{sLA}, s{sLA}, {L_OA}
    s_mul_i32 s{sLB}, s{sWv}, 9216
    s_add_u32 s{sLB}, s{sLB}, {L_OB}""")
    for g in range(2):
        a(f"""s_add_u32 s{sT3}, s{sP3C}, {g}
        s_and_b32 s{sT3}, s{sT3}, 1
        s_mul_i32 s{sGO[g]}, s{sT3}, {32*576}
        s_add_u32 s{sGO[g]}, s{sGO[g]}, s{sOb}
        s_add_u32 s{sGO[g+2]}, s{sGO[g]}, {64*576}
        s_mul_i32 s{sGW[g]}, s{sT3}, {32*4608}
        s_add_u32 s{sGW[g]}, s{sGW[g]}, s{sWmb}""")
def p3_wo_loads(a, cts, reg, vWm, vWt, steps=range(9)):
    for s in range(8):
        if s not in steps: continue
        a(f"s_add_u32 s{sT3}, s{sGW[s>>2]}, {2*(s&3)*4608 + 512*cts[0]}")
        for i, ct in enumerate(cts):
            a(f"buffer_load_dwordx4 {vr(reg(s,ct),4)}, v{vWm}, s[{sWS}:{sWS+3}], s{sT3} offen offset:{512*i} sc1")
    for ct in (cts if 8 in steps else []):
        a(f"buffer_load_dwordx4 {vr(reg(8,ct),4)}, v{vWt}, s[{sWS}:{sWS+3}], s{sWtb} offen offset:{256*ct} sc1")
def p3_oread(a, g, OF, vOm):
    for k in range(4):
        a(f"ds_read_b128 {vr(OF+4*k,4)}, v{vOm[g>>1]} offset:{4608*(g&1) + 1024*k}")
def p3_unit(a, cts, reg, AC, g, OF):
    for k in range(4):
        for i, ct in enumerate(cts):
            d = AC + 8 * i + 4 * (g >> 1)
            a(f"v_mfma_f32_16x16x32_bf16 {vr(d,4)}, {vr(reg(4*(g&1)+k,ct),4)}, {vr(OF+4*k,4)}, {vr(d,4)}")
def p3_mf(a, cts, reg, AC, st, o):
    for i, ct in enumerate(cts):
        for th in range(2):
            d = AC + 8 * i + 4 * th
            a(f"v_mfma_f32_16x16x32_bf16 {vr(d,4)}, {vr(reg(st,ct),4)}, {vr(o+4*th,4)}, {vr(d,4)}")
def p3_tail(a, cts, reg, AC, OF, vOt, vRd):
    for th in range(2):
        a(f"v_add_u32 v1, s{(sLA, sLB)[th]}, v{vOt}")
        for i in range(4):
            a(f"ds_read_b32 v{OF+4*th+i}, v1 offset:{64*i + 4096}")
    final_addr(a)
    a("s_waitcnt lgkmcnt(0)")
    p3_mf(a, cts, reg, AC, 8, OF)
    sstamp(a, 5)
    a("s_nop 7")
    for i, ct in enumerate(cts):
        for th in range(2):
            a(f"ds_write_b128 v{vRd}, {vr(AC+8*i+4*th,4)} offset:{16*th*RS + 64*ct}")
def p3_hint_addr(a, OF):
    vHa, vE4 = OF + 21, OF + 22
    a(f"""v_and_b32 v1, 7, v0
    v_lshlrev_b32 v{vHa}, 6, v1
    v_add_u32 v{vHa}, 4096, v{vHa}
    s_and_b32 s{sT3}, s{sP3C}, 1
    v_bfe_u32 v1, v0, 3, 2
    v_xor_b32 v1, s{sT3}, v1
    v_mul_u32_u24 v1, {32*576}, v1
    v_add_u32 v{vHa}, v{vHa}, v1
    v_mov_b32 v{vE4}, {L_SYNC + 20}""")
def p3_helper(a, cts, reg, AC, OF, vOm, vOt, vRd, vL16, vVa, vSy, slp):
    L = "h3"
    WIDE = OPT.get("wide", "0") == "1"
    sDone = sCnt
    def dma(g):
        lb = (sLA, sLB)[g >> 1]
        a(f"""s_add_u32 m0, s{lb}, {4608*(g&1)}
        s_add_u32 s{sT3}, s{sGO[g]}, 4096""")
        for i in range(4):
            a(f"buffer_load_dwordx4 v{vL16}, s[{sWS}:{sWS+3}], s{sGO[g]} offen offset:{1024*i} sc1 lds")
        a(f"""s_add_u32 m0, s{lb}, {4608*(g&1) + 4096}
        s_mov_b32 exec_hi, 0
        buffer_load_dwordx4 v{vL16}, s[{sWS}:{sWS+3}], s{sT3} offen sc1 lds
        s_mov_b64 exec, -1""")
    sFly, sLand, sTry, sBlk_, sFirst, sNum, sNext = sWk, sWcnt, sKo, sXb, sRef, sXm0, sGk
    vH, vHa, vE4 = OF + 18, OF + 21, OF + 22
    a(f"""s_mov_b32 s{sSpin}, 60000
    s_mov_b32 s{sIt}, {SENT}
    s_mov_b32 s{sDone}, 0
    s_mov_b32 s{sFly}, 0
    s_mov_b32 s{sLand}, 0
    s_mov_b32 s{sBlk_}, 12
    s_mov_b32 s{sFly}, 3""")
    dma(0); dma(1)
    a(f"""{L}_round:
    s_or_b32 s{sT0}, s{sDone}, s{sFly}
    s_andn2_b32 s{sT0}, 15, s{sT0}
    s_cbranch_scc1 {L}_hint
    s_waitcnt vmcnt(0)
    s_branch {L}_nohint
    {L}_hint:
    s_mul_i32 s{sT0}, s{sT0}, 0x00204081
    s_and_b32 s{sT0}, s{sT0}, 0x01010101
    s_mul_i32 exec_lo, s{sT0}, 0xff
    s_mov_b32 exec_hi, 0
    buffer_load_dword v{vH}, v{vHa}, s[{sWS}:{sWS+3}], s{sOb} offen sc1
    s_mov_b64 exec, -1
    {L}_nohint:
    s_cmp_eq_u32 s{sFly}, 0
    s_cbranch_scc1 {L}_nofly
    s_or_b32 s{sLand}, s{sLand}, s{sFly}
    s_waitcnt vmcnt(1)
    v_mov_b32 v{vH+1}, s{sLand}
    ds_write_b32 v{vSy}, v{vH+1}
    {L}_nofly:
    s_mov_b32 s{sTry}, s{sFly}
    s_or_b32 s{sT1}, s{sDone}, s{sTry}
    s_cmp_eq_u32 s{sT1}, 15
    s_mov_b32 s{sFly}, 0
    s_cbranch_scc1 {L}_work""")
    if int(OPT.get("spec", 0)):
        a(f"""s_bcnt1_i32_b32 s{sT0}, s{sT1}
        s_mov_b32 vcc_lo, -1
        s_cmp_ge_u32 s{sT0}, {4 - int(OPT["spec"])}
        s_cselect_b32 s{sT0}, s{sBlk_}, 1
        s_cmp_eq_u32 s{sT0}, 0
        s_cbranch_scc1 {L}_spec""")
    a(f"""s_waitcnt vmcnt(0)
    ds_read_b32 v1, v{vE4}
    v_cmp_ne_u32 vcc, s{sIt}, v{vH}
    s_waitcnt lgkmcnt(0)
    v_readfirstlane_b32 s{sT0}, v1
    s_cmp_ge_u32 s{sT0}, 4
    s_cselect_b32 s{sBlk_}, 0, s{sBlk_}
    s_or_b32 s{sT1}, s{sT1}, s{sBlk_}
    {L}_spec:""")
    for g in range(4):
        a(f"""s_bitcmp1_b32 s{sT1}, {g}
        s_cbranch_scc1 {L}_l{g}
        s_bfe_u32 s{sT0}, vcc_lo, {(8 << 16) | (8 * g)}
        s_cmp_eq_u32 s{sT0}, 0xff
        s_cbranch_scc0 {L}_l{g}
        s_bitset1_b32 s{sFly}, {g}""")
        dma(g)
        a(f"{L}_l{g}:")
    a(f"{L}_work:")
    for g in range(4):
        a(f"""s_bitcmp1_b32 s{sTry}, {g}
        s_cbranch_scc0 {L}_n{g}""")
        p3_check(a, g, OF, vOm, vVa)
        a(f"""s_cbranch_vccnz {L}_n{g}
        s_bitset1_b32 s{sDone}, {g}""")
        stamp(a, 27 + g, SV)
        p3_unit(a, cts, reg, AC, g, OF)
        a(f"{L}_n{g}:")
    a(f"""s_cmp_eq_u32 s{sDone}, 15
    s_cbranch_scc1 {L}_done
    s_sub_u32 s{sSpin}, s{sSpin}, 1
    s_cmp_lt_i32 s{sSpin}, 0
    s_cbranch_scc1 {L}_done
    s_or_b32 s{sT0}, s{sFly}, s{sTry}
    s_cbranch_scc1 {L}_round
    s_sleep {slp}
    s_branch {L}_round
    {L}_done:
    s_waitcnt vmcnt(0)""")
    p3_tail(a, cts, reg, AC, OF, vOt, vRd)
def p3_check(a, g, OF, vOm, vVa):
    p3_oread(a, g, OF, vOm)
    a(f"""ds_read_b64 {vr(OF+16,2)}, v{vVa[g>>1]} offset:{4608*(g&1)}
    s_waitcnt lgkmcnt(3)
    v_max3_u32 v1, v{OF}, v{OF+1}, v{OF+2}
    v_max3_u32 v1, v{OF+3}, v{OF+4}, v1
    v_max3_u32 v1, v{OF+5}, v{OF+6}, v1
    s_waitcnt lgkmcnt(0)
    v_max3_u32 v1, v{OF+7}, v{OF+8}, v1
    v_max3_u32 v1, v{OF+9}, v{OF+10}, v1
    v_max3_u32 v1, v{OF+11}, v{OF+12}, v1
    v_max3_u32 v1, v{OF+13}, v{OF+14}, v1
    v_max3_u32 v1, v{OF+15}, v{OF+16}, v1
    v_max_u32 v1, v{OF+17}, v1
    v_cmp_eq_u32 vcc, s{sIt}, v1
    s_nop 1""")
def p3_comp(a, cts, reg, AC, OF, vOm, vOt, vRd, vSy, vVa):
    L = "c3"
    sDone = sCnt
    a(f"""s_mov_b32 s{sSpin}, 400000
    s_mov_b32 s{sIt}, {SENT}
    s_mov_b32 s{sDone}, 0
    s_waitcnt vmcnt(6)
    {L}_round:
    ds_read_b32 v1, v{vSy}
    s_waitcnt lgkmcnt(0)
    v_readfirstlane_b32 s{sT0}, v1
    s_andn2_b32 s{sT0}, s{sT0}, s{sDone}""")
    for g in range(4):
        a(f"""s_bitcmp1_b32 s{sT0}, {g}
        s_cbranch_scc0 {L}_n{g}""")
        p3_check(a, g, OF, vOm, vVa)
        a(f"""s_cbranch_vccnz {L}_n{g}
        s_bitset1_b32 s{sDone}, {g}""")
        t_ = Asm(); p3_unit(t_, cts, reg, AC, g, OF)
        for i_, m in enumerate(t_.l):
            a(m)
            if g < 3 and i_ == 5: a(f"ds_read_b32 v1, v{vSy}")
        if g < 3:
            a(f"""s_waitcnt lgkmcnt(0)
            v_readfirstlane_b32 s{sT0}, v1
            s_andn2_b32 s{sT0}, s{sT0}, s{sDone}""")
        a(f"{L}_n{g}:")
    a(f"""s_cmp_eq_u32 s{sDone}, 15
    s_cbranch_scc1 {L}_done
    s_sub_u32 s{sSpin}, s{sSpin}, 1
    s_cmp_lt_i32 s{sSpin}, 0
    s_cbranch_scc0 {L}_round
    {L}_done:""")
    p3_tail(a, cts, reg, AC, OF, vOt, vRd)

def srd_tail(a, d, size):
    a(f"""s_mov_b32 s{d+2}, {size}
    s_mov_b32 s{d+3}, 0x00020000""")
def kernel(a):
    K = "k"
    if OPT["stamp"]: a("s_memrealtime s[96:97]")
    a(f"""
    s_cmp_ge_u32 s2, 256
    s_cbranch_scc1 {K}_end
    s_load_dwordx2 s[{sX}:{sX+1}], s[0:1], 0
    s_bfe_u32 s{sT0}, s2, {(1 << 16) | 2}
    s_mul_i32 s{sT0}, s{sT0}, 24
    s_add_u32 s{sT1}, s{sT0}, 8
    s_add_u32 s{sT0}, s{sT0}, 16
    s_load_dwordx2 s[{sW}:{sW+1}], s[0:1], s{sT1}
    s_load_dwordx2 s[{sG}:{sG+1}], s[0:1], 48
    s_load_dwordx2 s[{sWS}:{sWS+1}], s[0:1], 72
    s_load_dwordx2 s[{sD}:{sD+1}], s[0:1], 64
    s_load_dwordx2 s[{sOut}:{sOut+1}], s[0:1], 56
    s_load_dwordx2 s[{sWo}:{sWo+1}], s[0:1], s{sT0}
    v_lshrrev_b32 v1, 6, v0
    v_and_b32 v0, 63, v0
    s_bfe_u32 s{sT1}, s2, {(2 << 16) | 3}
    v_readfirstlane_b32 s{sW8}, v1
    s_lshr_b32 s{sT2}, s2, 5
    s_and_b32 s{sE}, s2, 1
    s_lshl_b32 s{sE}, s{sE}, 2
    s_add_u32 s{sE}, s{sE}, s{sT1}
    s_and_b32 s{sPr}, s2, 6
    s_lshl_b32 s{sPr}, s{sPr}, 2
    s_add_u32 s{sPr}, s{sPr}, s{sT2}
    s_and_b32 s{sWv}, s{sW8}, 3
    s_lshr_b32 s{sHH}, s{sWv}, 1
    s_and_b32 s{sTH}, s{sWv}, 1
    s_bfe_u32 s{sTt}, s2, {(1 << 16) | 5}
    s_lshl_b32 s{sTt}, s{sTt}, 1
    s_bfe_u32 s{sT2}, s2, {(1 << 16) | 6}
    s_or_b32 s{sTt}, s{sTt}, s{sT2}
    s_cmp_ge_u32 s{sW8}, 4
    s_cbranch_scc0 {K}_compute""")
    helper(a, K)
    a(f"{K}_compute:")
    compute(a, K)
def common_late(a):
    srd_tail(a, sWS, WS_SIZE)
    srd_tail(a, sOut, 2048 * 1152)
    srd_tail(a, sD, 256)
    srd_tail(a, sWo, 576 * 1152)
    a(f"""s_lshl_b32 s{sBH}, s{sPr}, 1
    s_add_u32 s{sBH}, s{sBH}, s{sHH}
    s_mul_i32 s{sKVg}, s{sBH}, {KVH}""")

FA = 32
def final_addr(a):
    a(f"""s_lshl_b32 s{sT3}, s{sW8}, 6
    v_add_u32 v1, s{sT3}, v0
    s_and_b32 s{sT0}, s{sP3T}, 60
    s_add_u32 s{sT0}, s{sT0}, s{sP3T}
    s_mul_i32 s{sT0}, s{sT0}, {16*1152}
    s_mul_i32 s{sT1}, s{sP3C}, 288
    s_add_u32 s{sT0}, s{sT0}, s{sT1}""")
    for r in range(2):
        if r: a("v_add_u32 v1, 512, v1")
        a(f"""v_mul_u32_u24 v{FA+6}, 3641, v1
        v_lshrrev_b32 v{FA+6}, 16, v{FA+6}
        v_mul_u32_u24 v{FA+7}, 18, v{FA+6}
        v_sub_u32 v{FA+7}, v1, v{FA+7}
        v_mul_u32_u24 v{FA+r}, {RS}, v{FA+6}
        v_lshl_add_u32 v{FA+r}, v{FA+7}, 5, v{FA+r}
        v_add_u32 v{FA+4+r}, {4*PLANE}, v{FA+r}
        v_and_b32 v{FA+2+r}, 16, v{FA+6}
        v_mad_u32_u24 v{FA+6}, v{FA+2+r}, 3, v{FA+6}
        v_mul_u32_u24 v{FA+2+r}, 1152, v{FA+6}
        v_lshl_add_u32 v{FA+2+r}, v{FA+7}, 4, v{FA+2+r}""")
def final_reduce(a, K, SVr):
    def reads(r):
        b = 48 + 32 * r
        for w in range(4):
            for hf in range(2):
                if w < 3: a(f"ds_read_b128 {vr(b+8*w+4*hf,4)}, v{FA+r} offset:{w*PLANE + 16*hf}")
                else: a(f"ds_read_b128 {vr(b+8*w+4*hf,4)}, v{FA+4+r} offset:{16*hf}")
    def finish(r, extra):
        b = 48 + 32 * r
        a(f"s_waitcnt lgkmcnt({4+extra})")
        for i in range(0, 8, 2): a(f"v_pk_add_f32 {vr(b+i,2)}, {vr(b+i,2)}, {vr(b+8+i,2)}")
        a(f"s_waitcnt lgkmcnt({extra})")
        for i in range(0, 8, 2): a(f"v_pk_add_f32 {vr(b+16+i,2)}, {vr(b+16+i,2)}, {vr(b+24+i,2)}")
        for i in range(0, 8, 2): a(f"v_pk_add_f32 {vr(b+i,2)}, {vr(b+i,2)}, {vr(b+16+i,2)}")
        for i in range(4): a(f"v_cvt_pk_bf16_f32 v{b+8+i}, v{b+2*i}, v{b+2*i+1}")
        a(f"buffer_store_dwordx4 {vr(b+8,4)}, v{FA+2+r}, s[{sOut}:{sOut+3}], s{sT0} offen")
    def fin():
        if OPT["stamp"]:
            a("s_waitcnt vmcnt(0)")
            stamp(a, 15, SVr)
            for k in range(6): a(f"v_writelane_b32 v{SVr}, s{96+k}, {20+k}")
            a(f"s_sub_u32 s80, 60000, s{sSpin}\nv_writelane_b32 v{SVr}, s80, 26")
            stamp_out(a, SVr)
    a(f"""s_cmp_eq_u32 s{sW8}, 0
    s_waitcnt lgkmcnt(0)
    s_barrier""")
    reads(0)
    a(f"s_cbranch_scc1 {K}_fin0")
    finish(0, 0)
    fin()
    a(f"""s_endpgm
    {K}_fin0:""")
    reads(1)
    finish(0, 8)
    finish(1, 0)
    fin()

def poll(a, lbl, ld, cond, slp):
    a(f"""s_mov_b32 s{sSpin}, 40000
    {lbl}:
    {ld}
    s_waitcnt vmcnt(0)""")
    cond()
    a(f"""s_cbranch_scc1 {lbl}_go
    s_sub_u32 s{sSpin}, s{sSpin}, 1
    s_cmp_eq_u32 s{sSpin}, 0
    s_cbranch_scc1 {lbl}_go
    s_sleep {slp}
    s_branch {lbl}
    {lbl}_go:""")

CL = [5, 6, 7]
def wo_lds_base(w): return (w >> 1) * RING + (w & 1) * 27648

def helper(a, K):
    a("; ===== helper waves =====")
    RX = int(OPT["rx"])
    a(f"s_setprio {OPT.get('hprio', 2)}")
    vXs, vWs = [24, 25], [26, 27]
    vL16, vGr, vGw = 7, 8, 9
    t0, t1, t2, t3 = 10, 11, 12, 13
    vGv = 14
    WM = [sum(1 << L for L in range(64) if ((L & 15) ^ (((L >> 4) | (hi << 2)) << 1)) != 15) for hi in range(2)]
    sM0, sM1 = sEx, 64
    a(f"""s_lshr_b32 s{sRot}, s2, 7
    s_lshl_b32 s{sT1}, s{sT1}, 1
    s_add_u32 s{sRot}, s{sRot}, s{sT1}
    s_and_b32 s{sT1}, s2, 7
    s_add_u32 s{sRot}, s{sRot}, s{sT1}
    s_sub_u32 s{sT1}, s{sRot}, 9
    s_cselect_b32 s{sRot}, s{sRot}, s{sT1}""")
    order = []
    a(f"""v_lshrrev_b32 v{t0}, 3, v0
    v_mul_u32_u24 v{t0}, 1152, v{t0}
    v_and_b32 v{t1}, 7, v0
    v_lshrrev_b32 v{t2}, 4, v0
    v_xor_b32 v{t1}, v{t1}, v{t2}
    v_lshlrev_b32 v{t1}, 4, v{t1}
    v_xor_b32 v{t2}, 64, v{t1}
    v_add_u32 v{vXs[0]}, v{t0}, v{t1}
    v_add_u32 v{vXs[1]}, v{t0}, v{t2}
    v_add_u32 v{vXs[1]}, {8*1152-1024}, v{vXs[1]}
    s_lshl_b32 s{sXb}, s{sE}, 4
    s_lshl_b32 s{sT0}, s{sHH}, 3
    s_add_u32 s{sXb}, s{sXb}, s{sT0}
    s_add_u32 s{sXb}, s{sXb}, s{sTH}
    s_mul_i32 s{sXb}, s{sXb}, {16*1152}
    s_lshl_b32 s{sKo}, s{sRot}, 7
    s_lshl_b32 s{sRing}, s{sWv}, 11
    s_add_u32 s{sRing}, s{sRing}, {L_XR}
    s_add_u32 s{sRef}, s{sXb}, s{sKo}
    s_mov_b32 s{sXm0}, s{sRing}""")
    sTo = [56, 57, 58, 59]
    for tt in range(4):
        a(f"""s_xor_b32 s{sTo[tt]}, s{sTt}, {tt}
        s_mul_i32 s{sTo[tt]}, s{sTo[tt]}, {32*1152}""")
    xstate = [0]
    def xnext():
        a(f"""s_add_u32 s{sKo}, s{sKo}, 128
        s_cmp_ge_u32 s{sKo}, 1152
        s_cselect_b32 s{sKo}, 0, s{sKo}
        s_add_u32 s{sRef}, s{sXb}, s{sKo}""")
    def xdma(j):
        tt = j & 3
        if tt == 0 and j: xnext()
        a(f"""s_mov_b32 m0, s{sXm0}
        s_add_u32 s{sT0}, s{sRef}, s{sTo[tt]}
        buffer_load_dwordx4 v{vXs[0]}, s[{sX}:{sX+3}], s{sT0} offen lds
        buffer_load_dwordx4 v{vXs[1]}, s[{sX}:{sX+3}], s{sT0} offen offset:1024 lds
        s_add_u32 s{sXm0}, s{sXm0}, 8192
        s_cmp_ge_u32 s{sXm0}, {L_XR + RX*8192}
        s_cselect_b32 s{sXm0}, s{sRing}, s{sXm0}""")
    srd_tail(a, sX, 2048 * 1152)
    srd_tail(a, sW, 576 * 3456)
    srd_tail(a, sG, 1152)
    a("s_waitcnt lgkmcnt(0)")
    stamp(a, 0, SV)
    xdma(0)
    order += ["X0"] * 2
    a(f"""v_lshrrev_b32 v{t0}, 4, v0
    v_lshlrev_b32 v{t1}, 1, v{t0}
    v_and_b32 v{t2}, 15, v0
    v_xor_b32 v{t1}, v{t1}, v{t2}
    s_mov_b32 s{sT0}, {((1<<4)|(1<<9)|(1<<14)) << 3}
    v_mul_u32_u24 v{t0}, 3456, v{t0}""")
    for hi in range(2):
        if hi: a(f"v_xor_b32 v{t1}, 8, v{t1}")
        a(f"""v_mul_u32_u24 v{t2}, 52, v{t1}
        v_lshrrev_b32 v{t2}, 8, v{t2}
        v_mul_u32_u24 v{t2}, {1152-80}, v{t2}
        v_lshl_add_u32 v{t2}, v{t1}, 4, v{t2}
        v_lshrrev_b32 v{t3}, v{t1}, s{sT0}
        v_and_b32 v{t3}, 8, v{t3}
        v_sub_u32 v{t2}, v{t2}, v{t3}
        v_add_u32 v{vWs[hi]}, v{t0}, v{t2}""")
    a(f"""v_lshlrev_b32 v{vL16}, 4, v0
    s_mul_i32 s{sT0}, s{sWv}, {16*3456}
    s_and_b32 s{sT1}, s{sPr}, 15
    s_mul_i32 s{sT1}, s{sT1}, 72
    s_add_u32 s{sWsrc}, s{sT0}, s{sT1}
    s_mul_i32 s{sWk}, s{sRot}, {64*3456}
    s_add_u32 s{sWcnt}, s{sWsrc}, s{sWk}
    s_lshl_b32 s{sWm0}, s{sWv}, 12
    s_lshl_b32 s{sT2}, s{sWv}, 11
    s_add_u32 s{sT2}, s{sT2}, {L_GT}
    s_mov_b32 s{sM0}, {WM[0] & 0xffffffff}
    s_mov_b32 s{sM0+1}, {WM[0] >> 32}
    s_mov_b32 s{sM1}, {WM[1] & 0xffffffff}
    s_mov_b32 s{sM1+1}, {WM[1] >> 32}""")
    def wdma2(hi):
        m = (sM0, sM1)[hi]
        a(f"""s_add_u32 m0, s{sWm0}, {L_WR + hi*2048}
        s_add_u32 s{sT0}, s{sWcnt}, {hi*8*3456}
        s_add_u32 s{sT1}, s{sWcnt}, {hi*8*3456 + 4*3456 - 1024}
        s_mov_b64 exec, s[{m}:{m+1}]
        buffer_load_dwordx4 v{vWs[hi]}, s[{sW}:{sW+3}], s{sT0} offen lds
        buffer_load_dwordx4 v{vWs[hi]}, s[{sW}:{sW+3}], s{sT1} offen offset:1024 lds
        s_mov_b64 exec, -1""")
    def wnext():
        a(f"""s_add_u32 s{sWk}, s{sWk}, {64*3456}
        s_cmp_ge_u32 s{sWk}, {576*3456}
        s_cselect_b32 s{sWk}, 0, s{sWk}
        s_add_u32 s{sWcnt}, s{sWsrc}, s{sWk}
        s_add_u32 s{sWm0}, s{sWm0}, {WSL}
        s_sub_u32 s{sT0}, s{sWm0}, {RW*WSL}
        s_cmp_ge_u32 s{sWm0}, {RW*WSL}
        s_cselect_b32 s{sWm0}, s{sT0}, s{sWm0}""")
    a(f"""s_mov_b32 m0, s{sT2}
    s_nop 0
    buffer_load_dwordx4 v{vL16}, s[{sG}:{sG+3}], 0 offen lds
    s_mov_b64 exec, 0xff
    buffer_load_dwordx4 v{vL16}, s[{sG}:{sG+3}], 0 offen offset:1024 lds
    s_mov_b64 exec, -1""")
    order += ["G"] * 2
    wdma2(0); wdma2(1)
    order += ["W0"] * 4
    wnext()
    xdma(1)
    order += ["X1"] * 2
    EARLY = OPT.get("early", "0") == "1"
    def second_batch():
        nonlocal order
        xdma(2)
        wdma2(0); wdma2(1)
        wnext()
        order += ["X2"] * 2 + ["W1"] * 4
        for j in range(3, RX - 1):
            xdma(j); order += [f"X{j}"] * 2
    a(f"s_mov_b32 s{sCnt}, s{sWm0}")
    if EARLY: second_batch()
    nb2 = len(order) - 10
    stamp(a, 16, SV)
    common_late(a)
    a(f"""s_lshl_b32 s{sT0}, s{sWv}, 5
    s_add_u32 s{sT0}, s{sT0}, s{sT2}
    v_lshl_add_u32 v{vGr}, v0, 1, s{sT0}
    v_and_b32 v{t1}, 3, v0
    v_lshlrev_b32 v{t1}, 1, v{t1}
    v_and_b32 v{t2}, 8, v0
    v_or_b32 v{t1}, v{t1}, v{t2}
    v_xor_b32 v{t1}, 15, v{t1}
    v_lshlrev_b32 v{t1}, 4, v{t1}
    v_lshl_add_u32 v{t1}, v0, 8, v{t1}
    s_lshl_b32 s{sGk}, s{sRot}, 7
    v_mov_b32 v{t0}, {L_SYNC}
    v_mov_b32 v20, 0
    v_mov_b32 v21, 0
    v_mov_b32 v22, 0
    v_mov_b32 v23, 0
    ds_write_b128 v{t0}, v[20:23]
    ds_write_b128 v{t0}, v[20:23] offset:16
    ds_write_b128 v{t0}, v[20:23] offset:32""")
    def gate(slotreg):
        a(f"""v_add_u32 v{t0}, s{sGk}, v{vGr}
        s_mov_b64 exec, 0xffff
        ds_read_u16 v{vGv}, v{t0}
        v_add_u32 v{t0}, s{slotreg}, v{t1}
        s_add_u32 s{sGk}, s{sGk}, 128
        s_cmp_ge_u32 s{sGk}, 1152
        s_cselect_b32 s{sGk}, 0, s{sGk}
        s_waitcnt lgkmcnt(0)
        ds_write2_b32 v{t0}, v{vGv}, v{vGv} offset0:0 offset1:1
        s_mov_b64 exec, -1""")
    vWos, vWos2, vPub, vC100, vPk, vA4, vSn = 28, 29, 30, 31, [76, 77, 78], 79, 80
    vP, vPa, vSy, vOne, vFa = 20, 17, 18, 19, 16
    vOm, vOt, vWm, vWt, vRd = [2, 252], 3, 4, 5, 6
    vVa3, vSy3 = [248, 253], 251
    HWB, HAC, HOF = 8, 188, 228
    u0, u1, u2, u3, vSa = 84, 85, 86, 87, 88
    def setup1():
        a(f"""v_mul_u32_u24 v{u0}, 57, v0
        v_lshrrev_b32 v{u0}, 10, v{u0}
        v_mul_u32_u24 v{u1}, 18, v{u0}
        v_sub_u32 v{u1}, v0, v{u1}
        v_lshlrev_b32 v{u1}, 4, v{u1}
        s_and_b32 s{sT0}, s{sE}, 1
        s_lshl_b32 s{sT0}, s{sT0}, 1
        s_mul_i32 s{sT1}, s{sWv}, 3
        s_add_u32 s{sT0}, s{sT0}, s{sT1}
        v_add_u32 v{u0}, s{sT0}, v{u0}
        v_mul_u32_u24 v{vWos}, 1152, v{u0}
        v_add_u32 v{vWos}, v{vWos}, v{u1}
        v_cmp_le_u32 vcc, 6, v{u0}
        v_add_u32 v{u2}, {12*1152}, v{vWos}
        v_subrev_u32 v{u3}, {6*1152}, v{vWos}
        v_cndmask_b32 v{vWos2}, v{u2}, v{u3}, vcc
        s_mul_i32 s{sT0}, s{sHH}, {RING}
        s_mul_i32 s{sT1}, s{sTH}, 5120
        s_add_u32 s{sT0}, s{sT0}, s{sT1}
        v_add_u32 v{vPub}, s{sT0}, v{vL16}
        s_lshl_b32 s{sT0}, s{sPr}, 2
        v_mov_b32 v{vPa}, s{sT0}
        s_lshl_b32 s{sT0}, s{sPr}, 12
        s_lshl_b32 s{sT3}, s{sHH}, 7
        s_add_u32 s{sT0}, s{sT0}, s{sT3}
        s_add_u32 s{sT0}, s{sT0}, {WS_F}
        v_and_b32 v{vFa}, 1, v0
        v_lshl_add_u32 v{vFa}, v{vFa}, 2, s{sT0}
        v_lshrrev_b32 v{u0}, 1, v0
        v_lshl_add_u32 v{vFa}, v{u0}, 8, v{vFa}
        v_mov_b32 v{vSy}, {L_SYNC}
        v_mov_b32 v{vOne}, 1
        v_mov_b32 v{vC100}, 0x100
        v_lshlrev_b32 v{vA4}, 2, v0
        v_bfe_u32 v{u0}, v0, 2, 3
        v_mul_u32_u24 v{u0}, 288, v{u0}
        v_and_b32 v{u1}, 3, v0
        v_lshlrev_b32 v{u1}, 3, v{u1}
        v_add_u32 v{u1}, {L_WO}, v{u1}
        v_and_b32 v{u2}, 32, v0
        v_add3_u32 v{vPk[1]}, v{u0}, v{u1}, v{u2}
        s_lshl_b32 s{sT0}, s{sWv}, 6
        v_add_u32 v{vPk[0]}, s{sT0}, v{vPk[1]}
        v_bfe_u32 v{u0}, v0, 2, 2
        v_mul_u32_u24 v{u0}, 288, v{u0}
        v_lshrrev_b32 v{u2}, 4, v0
        v_lshlrev_b32 v{u2}, 5, v{u2}
        v_add3_u32 v{u0}, v{u0}, v{u1}, v{u2}
        s_lshl_b32 s{sT0}, s{sWv}, 7
        v_add_u32 v{vPk[2]}, s{sT0}, v{u0}""")
        for i in range(4): a(f"v_mov_b32 v{vSn+i}, {SENT}")
        a(f"""s_and_b32 s{sT0}, s{sBH}, 7
        s_mul_i32 s{sT0}, s{sT0}, 448
        s_sub_u32 s{sT0}, {4096-512}, s{sT0}
        v_lshrrev_b32 v{u0}, 5, v0
        v_mul_u32_u24 v{u0}, s{sT0}, v{u0}
        v_add_u32 v{vSa}, v{u0}, v{vL16}""")
    def setup2():
        p3_scal(a)
        p3_addr_w(a, vWm, vWt, u0, u1, u2)
        p3_addr_o(a, vOm, vOt, vRd, vVa3, vSy3, u0, u1, u2)
        p3_hint_addr(a, HOF)
        for i in range(40): a(f"v_mov_b32 v{HAC+i}, 0")
    SP = OPT.get('setup', 'head')
    if SP == 'head': setup1(); setup2()
    a(f"""s_sub_u32 s{sT3}, s{sCnt}, {WSL}
    s_waitcnt vmcnt({6 + nb2})""")
    stamp(a, 17, SV)
    gate(sT3); gate(sCnt)
    a(f"""s_waitcnt vmcnt({2 + nb2}) lgkmcnt(0)
    s_barrier""")
    stamp(a, 1, SV)
    if not EARLY: second_batch()
    stamp(a, 18, SV)
    a(f"""s_mov_b32 s{sIt}, 0
    v_add_u32 v{t0}, s{sGk}, v{vGr}
    {K}_hl:""")
    for tt in (0, 2):
        a(f"""s_waitcnt vmcnt(@W{tt}@) lgkmcnt(0)
        s_barrier""")
        if OPT.get("prof"):
            a(f"""s_memtime s[82:83]
            s_lshl_b32 m0, s{sIt}, 1
            s_add_u32 m0, m0, {2 + (tt >> 1)}
            s_waitcnt lgkmcnt(0)
            v_writelane_b32 v{SV-8}, s82, m0""")
        if not OPT.get("noh"):
            def thr(k):
                if OPT.get("thr"):
                    a(f"""s_bitcmp1_b32 {STRAD}, s{sPr}
                    s_cbranch_scc1 {K}_th{tt}{k}
                    s_waitcnt vmcnt({OPT["thr"]})
                    {K}_th{tt}{k}:""")
            if tt == 0:
                a(f"ds_read_u16 v{vGv}, v{t0}")
            else:
                a(f"""s_mov_b64 exec, 0xffff
                ds_write2_b32 v{t2}, v{vGv}, v{vGv} offset0:0 offset1:1""")
            wdma2(tt >> 1)
            thr(0)
            xdma(tt + RX - 1)
            thr(1)
            xdma(tt + RX)
            if tt == 0:
                a(f"""v_add_u32 v{t2}, s{sWm0}, v{t1}
                s_add_u32 s{sGk}, s{sGk}, 128
                s_cmp_ge_u32 s{sGk}, 1152
                s_cselect_b32 s{sGk}, 0, s{sGk}
                v_add_u32 v{t0}, s{sGk}, v{vGr}""")
    wnext()
    a(f"""s_add_u32 s{sIt}, s{sIt}, 1
    s_cmp_lt_u32 s{sIt}, 7
    s_cbranch_scc1 {K}_hl""")
    need = {0: 99, 2: 99}
    for j in range(0, 36, 2):
        req = [f"X{min(j+2,35)}"]
        if j % 4 == 2 and j // 4 + 1 <= 8: req.append(f"W{j//4+1}")
        last = max(i for i, o in enumerate(order) if o in req)
        n_ = len(order) - 1 - last
        if j < 28:
            need[j % 4] = min(need[j % 4], n_)
            order += [f"W{j//4+2}"] * 2 + [f"X{j+RX-1}"] * 2 + [f"X{j+RX}"] * 2
        else:
            a(f"""s_waitcnt vmcnt({n_}) lgkmcnt(0)
            s_barrier""")
            for jj in (j + RX - 1, j + RX):
                if jj <= 35:
                    xdma(jj); order += [f"X{jj}"] * 2
            if SP == 'tail' and j == 28: setup1()
            if SP == 'tail' and j == 30: setup2()
    for i in (0, 2): a.l = [x.replace(f"@W{i}@", str(need[i])) for x in a.l]
    stamp(a, 2, SV)
    if OPT.get("prof"):
        a(f"""v_readlane_b32 s80, v{SV+1}, 0
        v_readlane_b32 s81, v{SV+1}, 1
        v_readlane_b32 s82, v{SV+1}, 2
        s_nop 3
        v_writelane_b32 v{SV-8}, s80, 0
        v_writelane_b32 v{SV-8}, s81, 1
        v_writelane_b32 v{SV-8}, s82, 16
        s_lshl_b32 s80, s2, 3
        s_add_u32 s80, s80, s{sW8}
        s_lshl_b32 s80, s80, 8
        s_add_u32 s80, s80, {WS_STAMP + 0x80000}
        v_lshlrev_b32 v1, 2, v0
        buffer_store_dword v{SV-8}, v1, s[{sWS}:{sWS+3}], s80 offen""")
    sPH, sPC = sWsrc, sWm0
    sQ = sGk
    a(f"""s_lshl_b32 s{sPH}, s{sPr}, 1
    s_and_b32 s{sT0}, s{sE}, 1
    s_add_u32 s{sPH}, s{sPH}, s{sT0}
    s_lshr_b32 s{sPC}, s{sE}, 1
    s_and_b32 s{sT0}, s{sPH}, 31
    s_mul_i32 s{sT0}, s{sT0}, {18*1152}
    s_mul_i32 s{sT1}, s{sPC}, 288
    s_add_u32 s{sT0}, s{sT0}, s{sT1}
    s_mul_i32 s{sT1}, s{sWv}, 864
    s_add_u32 m0, s{sT1}, {L_WO}
    s_mov_b32 exec_hi, 0x003fffff
    buffer_load_dwordx4 v{vWos}, s[{sWo}:{sWo+3}], s{sT0} offen lds
    s_add_u32 m0, s{sT1}, {L_WO + 4*864}
    s_nop 0
    buffer_load_dwordx4 v{vWos2}, s[{sWo}:{sWo+3}], s{sT0} offen lds
    s_mov_b64 exec, 1
    buffer_load_dword v{vP+1}, v{vPa}, s[{sD}:{sD+3}], 0 offen sc1
    s_mov_b64 exec, -1
    s_mul_i32 s{sRing}, s{sHH}, {RING}
    s_mul_i32 s{sT2}, s{sTH}, 5120
    s_mul_i32 s{sT1}, s{sE}, {2*BLK}
    s_add_u32 s{sT1}, s{sT1}, s{sKVg}
    s_add_u32 s{sT1}, s{sT1}, s{sT2}
    s_mov_b32 s{sQ}, s{sTH}
    s_cmp_eq_u32 s{sTH}, 1
    s_cselect_b32 s{sM0}, 0xffff, -1
    s_cselect_b32 s{sM0+1}, 0, -1
    s_barrier""")
    t0 = vPub
    stamp(a, 3, SV)
    for i in range(5): a(f"ds_read_b128 {vr(32+4*i,4)}, v{t0} offset:{1024*i}")
    a(f"s_mov_b32 s{sXb}, s{sT1}")
    def publish(ph):
        for i in range(5 * ph, 5 * ph + 5):
            if i % 5 == 4: a(f"""s_add_u32 s{sXb}, s{sXb}, 4096
            s_mov_b64 exec, s[{sM0}:{sM0+1}]""")
            if ph == 0: a(f"s_waitcnt lgkmcnt({4-i})")
            a(f"buffer_store_dwordx4 {vr(32+4*i,4)}, v{vL16}, s[{sWS}:{sWS+3}], s{sXb} offen offset:{1024*((i%5)%4)} sc1")
            if i % 5 == 4: a(f"""s_mov_b64 exec, -1
            s_add_u32 s{sXb}, s{sXb}, {BLK-4096}""")
    publish(0)
    a("s_setprio 3")
    a("s_barrier")
    for i in range(5, 10): a(f"ds_read_b128 {vr(32+4*i,4)}, v{t0} offset:{BLK + 1024*(i-5)}")
    def arrive(word, vm=0):
        a(f"""s_mov_b64 exec, 1
        s_waitcnt vmcnt({vm})
        ds_add_rtn_u32 v{vP}, v{vSy}, v{vOne} offset:{4*word}
        s_waitcnt lgkmcnt(0)
        v_readfirstlane_b32 s{sT1}, v{vP}
        s_mov_b64 exec, -1
        s_cmp_eq_u32 s{sT1}, 3""")
    def lds_wait(lbl, word):
        a(f"""s_mov_b32 s{sSpin}, 400000
        {lbl}:
        ds_read_b32 v{vP}, v{vSy} offset:{4*word}
        s_waitcnt lgkmcnt(0)
        v_readfirstlane_b32 s{sT1}, v{vP}
        s_cmp_lg_u32 s{sT1}, 0
        s_cbranch_scc1 {lbl}_go
        s_sub_u32 s{sSpin}, s{sSpin}, 1
        s_cmp_eq_u32 s{sSpin}, 0
        s_cbranch_scc1 {lbl}_go
        s_sleep 6
        s_branch {lbl}
        {lbl}_go:""")
    def flag(off, vm):
        a(f"""s_lshl_b32 s{sT0}, s{sE}, 8
        s_lshl_b32 s{sT1}, s{sTH}, 2
        s_add_u32 s{sT0}, s{sT0}, s{sT1}
        s_mov_b64 exec, 1
        s_waitcnt vmcnt({vm})
        buffer_store_dword v{vOne}, v{vFa}, s[{sWS}:{sWS+3}], s{sT0} offen offset:{off} sc1
        s_mov_b64 exec, -1""")
    flag(0, 0)
    stamp(a, 4, SV)
    def rst_ok(r):
        a(f"""v_readfirstlane_b32 s{sT0}, v{r}
        s_and_b32 s{sT0}, s{sT0}, 0xff
        s_cmp_ge_u32 s{sT0}, 8""")
    def kv_ready():
        a(f"""v_cmp_eq_u32 vcc, 1, v{vP}
        s_nop 1
        s_cmp_eq_u32 vcc_lo, 0xffff""")
    a("s_mov_b64 exec, 1")
    rst_ok(vP + 1)
    a(f"s_cbranch_scc1 {K}_pl0_go")
    poll(a, f"{K}_pl0", f"buffer_load_dword v{vP}, v{vPa}, s[{sD}:{sD+3}], 0 offen sc1", lambda: rst_ok(vP), 8)
    a(f"""s_add_u32 s{sT2}, s{sTH}, 1
    s_xor_b32 s{sT2}, s{sT2}, s{sE}
    s_lshl_b32 s{sT2}, s{sT2}, 8
    s_mov_b64 exec, 3""")
    def kv1_ready():
        a(f"""v_cmp_eq_u32 vcc, 1, v{vP}
        s_nop 1
        s_cmp_eq_u32 vcc_lo, 3""")
    poll(a, f"{K}_pl1", f"buffer_load_dword v{vP}, v{vFa}, s[{sWS}:{sWS+3}], s{sT2} offen sc1", kv1_ready, 1)
    a("s_mov_b64 exec, -1")
    stamp(a, 5, SV)
    def ldblock():
        a(f"s_call_b64 s[{sRet}:{sRet+1}], {K}_ldblk")
    ldblock()
    a("s_waitcnt lgkmcnt(0)")
    publish(1)
    a("s_waitcnt vmcnt(5)")
    stamp(a, 6, SV)
    a("s_setprio 2")
    a("s_barrier")
    flag(2048, 0)
    a("s_mov_b64 exec, 0xffff")
    poll(a, f"{K}_pl1a", f"buffer_load_dword v{vP}, v{vFa}, s[{sWS}:{sWS+3}], 0 offen sc1", kv_ready, 2)
    a("s_mov_b64 exec, -1")
    ldblock(); ldblock()
    a("s_waitcnt vmcnt(0)")
    stamp(a, 7, SV)
    a("s_barrier")
    a("s_mov_b64 exec, 0xffff")
    poll(a, f"{K}_pl1b", f"buffer_load_dword v{vP}, v{vFa}, s[{sWS}:{sWS+3}], 0 offen offset:2048 sc1", kv_ready, 2)
    a("s_mov_b64 exec, -1")
    ldblock(); ldblock()
    a(f"""ds_read_b64_tr_b16 {vr(64,2)}, v{vPk[0]}
    ds_read_b64_tr_b16 {vr(66,2)}, v{vPk[0]} offset:2304
    ds_read_b64_tr_b16 {vr(68,2)}, v{vPk[1]} offset:256
    ds_read_b64_tr_b16 {vr(70,2)}, v{vPk[1]} offset:{256+2304}
    ds_read_b64_tr_b16 {vr(72,2)}, v{vPk[2]} offset:{16*288-128}
    s_lshl_b32 s{sT0}, s{sPC}, 6
    s_add_u32 s{sT0}, s{sT0}, s{sPH}
    s_mul_i32 s{sT0}, s{sT0}, 4608
    s_add_u32 s{sT0}, s{sT0}, {WS_WOM}
    s_lshl_b32 s{sT1}, s{sWv}, 10
    s_add_u32 s{sT1}, s{sT1}, s{sT0}
    s_lshl_b32 s{sT2}, s{sPC}, 4
    s_lshr_b32 s{sT3}, s{sPH}, 2
    s_add_u32 s{sT2}, s{sT2}, s{sT3}
    s_mul_i32 s{sT2}, s{sT2}, 2304
    s_and_b32 s{sT3}, s{sPH}, 3
    s_lshl_b32 s{sT3}, s{sT3}, 2
    s_add_u32 s{sT2}, s{sT2}, s{sT3}
    s_lshl_b32 s{sT3}, s{sWv}, 10
    s_add_u32 s{sT2}, s{sT2}, s{sT3}
    s_add_u32 s{sT2}, s{sT2}, {WS_WOT - 1024}
    s_waitcnt lgkmcnt(0)
    buffer_store_dwordx4 {vr(64,4)}, v{vL16}, s[{sWS}:{sWS+3}], s{sT1} offen sc1
    s_cmp_eq_u32 s{sWv}, 0
    s_cbranch_scc0 {K}_wo_tail
    s_mov_b32 exec_hi, 0
    s_add_u32 s{sT3}, s{sT0}, 4096
    buffer_store_dwordx4 {vr(68,4)}, v{vL16}, s[{sWS}:{sWS+3}], s{sT3} offen sc1
    s_branch {K}_wo_done
    {K}_wo_tail:
    s_cmp_eq_u32 s{sWv}, 3
    s_cselect_b32 exec_lo, 0xffff, -1
    s_cselect_b32 exec_hi, 0, -1
    buffer_store_dword v72, v{vL16}, s[{sWS}:{sWS+3}], s{sT2} offen sc1
    {K}_wo_done:
    s_mov_b64 exec, -1""")
    a(f"""s_lshl_b32 s{sT1}, s{sE}, 1
    s_add_u32 s{sT1}, s{sT1}, s{sTH}
    s_lshl_b32 s{sT1}, s{sT1}, 9
    s_add_u32 s{sT1}, s{sT1}, s{sBH}
    s_mul_i32 s{sT1}, s{sT1}, 576
    s_and_b32 s{sT0}, s{sBH}, 7
    s_lshl_b32 s{sT0}, s{sT0}, 6
    s_sub_u32 s{sT1}, s{sT1}, s{sT0}
    s_add_u32 s{sT1}, s{sT1}, {WS_O}
    s_mov_b32 exec_hi, 15""")
    for x in range(8):
        a(f"""buffer_store_dwordx4 {vr(vSn,4)}, v{vSa}, s[{sWS}:{sWS+3}], s{sT1} offen sc1
        s_add_u32 s{sT1}, s{sT1}, {64*576}""")
    arrive(1)
    a(f"""s_cbranch_scc0 {K}_sg2
    s_mov_b64 exec, 1
    buffer_atomic_add v{vC100}, v{vPa}, s[{sD}:{sD+3}], 0 offen
    s_mov_b64 exec, -1
    {K}_sg2:""")
    a("s_barrier")
    ldblock(); ldblock()
    stamp(a, 12, SV)
    a(f"""s_cmp_eq_u32 s{sWv}, 0
    s_cbranch_scc0 {K}_gw
    s_mov_b32 exec_hi, 0""")
    def all_init():
        a(f"""v_bfe_u32 v{vP}, v{vP}, 8, 8
        v_cmp_le_u32 vcc, 8, v{vP}
        s_nop 1
        s_cmp_eq_u32 vcc_lo, -1""")
    poll(a, f"{K}_pl2", f"buffer_load_dword v{vP}, v{vA4}, s[{sD}:{sD+3}], 0 offen sc1", all_init, 32)
    a(f"""ds_write_b32 v{vSy}, v{vOne} offset:12
    s_mov_b64 exec, -1
    s_branch {K}_ggo
    {K}_gw:""")
    lds_wait(f"{K}_lw2", 3)
    a(f"{K}_ggo:")
    HC = [0, 1, 2, 3, 4]
    hreg = lambda s, ct: HWB + 4 * (5 * s + ct)
    p3_wo_loads(a, HC, hreg, vWm, vWt)
    a("s_waitcnt vmcnt(45)")
    stamp(a, 8, SV)
    a("s_barrier")
    if not OPT.get('x_nowarm'): p3_wo_loads(a, [8], lambda s, ct: HOF + 4 * (s % 4), vWm, vWt)
    a(f"""s_mul_i32 s{sT0}, s{sTH}, 27648
    s_add_u32 s{sT0}, s{sT0}, s{sRing}
    s_barrier""")
    for s in range(9 if not OPT.get('x_nostage') else 0):
        for i, ct in enumerate(CL):
            n = 3 * s + i
            if s < 8:
                a(f"""s_add_u32 m0, s{sT0}, {1024*n}
                s_add_u32 s{sT3}, s{sGW[s>>2]}, {2*(s&3)*4608 + 512*ct}
                buffer_load_dwordx4 v{vWm}, s[{sWS}:{sWS+3}], s{sT3} offen sc1 lds""")
            else:
                a(f"""s_add_u32 m0, s{sT0}, {1024*n}
                s_add_u32 s{sT3}, s{sWtb}, {256*ct}
                buffer_load_dwordx4 v{vWt}, s[{sWS}:{sWS+3}], s{sT3} offen sc1 lds""")
    if OPT.get("otlb"):
        a(f"""s_mov_b64 exec, 1
        buffer_load_dword v1, v{vL16}, s[{sWS}:{sWS+3}], s{sGO[0]} offen sc1
        buffer_load_dword v1, v{vL16}, s[{sWS}:{sWS+3}], s{sGO[3]} offen sc1
        s_mov_b64 exec, -1""")
    a("s_waitcnt vmcnt(0)")
    if OPT.get("hp3"): a("s_setprio 3")
    stamp(a, 9, SV)
    a("s_barrier")
    stamp(a, 10, SV)
    p3_helper(a, HC, hreg, HAC, HOF, vOm, vOt, vRd, vL16, vVa3, vSy3, int(OPT.get("hslp", 1)))
    stamp(a, 11, SV)
    if OPT["stamp"]: a(f"v_mov_b32 v30, v{SV}\nv_mov_b32 v31, v{SV+1}")
    a(f"s_branch {K}_final")
    a(f"""{K}_ldblk:
    s_add_u32 s{sQ}, s{sQ}, 2
    s_cmp_ge_u32 s{sQ}, 9
    s_cselect_b32 s{sT0}, 0, 7
    s_cselect_b32 s{sT2}, 1, 0
    s_add_u32 s{sT0}, s{sT0}, s{sQ}
    s_and_b32 s{sT0}, s{sT0}, 7
    s_xor_b32 s{sT0}, s{sT0}, s{sE}
    s_lshl_b32 s{sT0}, s{sT0}, 1
    s_add_u32 s{sT0}, s{sT0}, s{sT2}
    s_mul_i32 s{sT1}, s{sT0}, {BLK}
    s_add_u32 s{sT1}, s{sT1}, s{sKVg}
    s_and_b32 s{sT0}, s{sQ}, 7
    s_mul_i32 s{sT0}, s{sT0}, {BLK}
    s_add_u32 s{sT0}, s{sT0}, s{sRing}""")
    for i in range(10):
        if i % 4 == 0:
            a(f"""s_add_u32 m0, s{sT0}, {1024*i}
            s_add_u32 s{sT2}, s{sT1}, {1024*i}""")
        if i == 9: a("s_mov_b64 exec, 0xffff")
        a(f"buffer_load_dwordx4 v{vL16}, s[{sWS}:{sWS+3}], s{sT2} offen offset:{1024*(i%4)} sc1 lds")
    a(f"""s_mov_b64 exec, -1
    s_setpc_b64 s[{sRet}:{sRet+1}]""")

def compute(a, K):
    RX = int(OPT["rx"])
    common_late(a)
    a("s_waitcnt lgkmcnt(0)")
    stamp(a, 0, 30)
    vXr = [2, 3, 20, 21]
    vWc = [4, 5, 9, 1]
    t0, t1, t2, t3, t4, t5 = 64, 65, 66, 67, 68, 69
    WF = 32
    XF = [96, 112]
    ACC = 128
    def reset_flags():
        a(f"""s_cmp_eq_u32 s{sWv}, 0
        s_cselect_b32 s{sCnt}, {OPT.get("rstit", 4)}, 100
        s_cbranch_scc0 {K}_norst
        s_lshl_b32 s{sT0}, s{sPr}, 12
        s_lshl_b32 s{sT1}, s{sE}, 8
        s_add_u32 s{sT0}, s{sT0}, s{sT1}
        s_add_u32 s{sT0}, s{sT0}, {WS_F}
        v_lshlrev_b32 v75, 7, v0
        v_mov_b32 v76, 0
        v_mov_b32 v77, 0
        s_mov_b64 exec, 3
        buffer_store_dwordx2 v[76:77], v75, s[{sWS}:{sWS+3}], s{sT0} offen sc1
        buffer_store_dwordx2 v[76:77], v75, s[{sWS}:{sWS+3}], s{sT0} offen offset:2048 sc1""")
        if OPT.get("touch", "0") == "1":
            a(f"""s_mov_b64 exec, 1
            buffer_load_dword v78, v75, s[{sWS}:{sWS+3}], s{sKVg} offen
            s_add_u32 s{sT0}, s{sKVg}, {2*KVH-128}
            buffer_load_dword v79, v75, s[{sWS}:{sWS+3}], s{sT0} offen""")
        a(f"""s_mov_b64 exec, -1
        {K}_norst:""")
    a(f"v_mov_b32 v{ACC}, 0")
    if OPT.get("rstpos", "late") == "start": reset_flags()
    a(f"""v_and_b32 v{t0}, 15, v0
    v_lshrrev_b32 v{t1}, 4, v0
    v_bfe_u32 v{t2}, v0, 1, 3
    v_xor_b32 v{t2}, v{t2}, v{t1}
    v_lshlrev_b32 v{t2}, 4, v{t2}
    v_lshlrev_b32 v{t3}, 7, v{t0}
    s_lshl_b32 s{sT0}, s{sTH}, 12
    s_lshl_b32 s{sT1}, s{sHH}, 11
    s_add_u32 s{sT0}, s{sT0}, s{sT1}
    s_add_u32 s{sT0}, s{sT0}, {L_XR}
    v_add_u32 v{t3}, s{sT0}, v{t3}
    v_add_u32 v{vXr[0]}, v{t3}, v{t2}
    v_xor_b32 v{t2}, 64, v{t2}
    v_add_u32 v{vXr[1]}, v{t3}, v{t2}
    v_xor_b32 v{vXr[2]}, 2048, v{vXr[0]}
    v_xor_b32 v{vXr[3]}, 2048, v{vXr[1]}
    v_bfe_u32 v{t2}, v0, 2, 2
    v_lshl_add_u32 v{t2}, v{t1}, 3, v{t2}
    v_lshlrev_b32 v{t2}, 8, v{t2}
    v_bfe_u32 v{t4}, v0, 2, 3
    v_lshlrev_b32 v{t4}, 5, v{t4}
    v_and_b32 v{t3}, 3, v0
    v_lshlrev_b32 v{t3}, 3, v{t3}
    s_mul_i32 s{sT1}, s{sHH}, 40
    s_mov_b32 s{sT0}, {192 | (112 << 8) | (32 << 16) | (240 << 24)}
    v_lshrrev_b32 v{t5}, v{t3}, s{sT0}
    v_and_b32 v{t5}, 0xff, v{t5}
    v_xor_b32 v{t5}, v{t5}, v{t4}
    v_add_u32 v{vWc[3]}, v{t2}, v{t5}
    v_add_u32 v{t3}, s{sT1}, v{t3}
    v_lshrrev_b32 v{t5}, 3, v{t3}
    v_and_b32 v{t5}, 8, v{t5}
    v_add_u32 v{t3}, v{t3}, v{t5}""")
    for ct, off in enumerate((80, 0, 160)):
        a(f"""v_add_u32 v{t5}, {off}, v{t3}
        v_xor_b32 v{t5}, v{t5}, v{t4}
        v_add_u32 v{vWc[ct]}, v{t2}, v{t5}""")
    for i in range(1, 128):
        if i % 32 < 28: a(f"v_mov_b32 v{ACC+i}, 0")
    vKa, vTa, vVa, vIdx = 6, 7, 8, 10
    vKw, vQw, vVw, vMul, vSq, vSqh = 11, 12, 13, 24, 25, 19
    vSt, vStt, vWm3, vWt, vCp, vOnes, vQr = 14, 15, 16, 17, 18, 22, 23
    vM0, vDs, vDt, vDe, vDh = 70, 71, 72, 73, 74
    MA = lambda tt, i: ACC + 32 * tt + 28 + i
    sBlk, sScr = sXb, sKo
    a(f"""s_mul_i32 s{sRing}, s{sHH}, {RING}
    s_mul_i32 s{sBlk}, s{sTH}, {BLK}
    s_add_u32 s{sBlk}, s{sBlk}, s{sRing}
    s_mul_i32 s{sScr}, s{sWv}, 5120
    s_add_u32 s{sScr}, s{sScr}, {L_SCR}
    v_lshrrev_b32 v{t2}, 2, v{t0}
    v_and_b32 v{t3}, 3, v0
    v_lshl_add_u32 v{t4}, v{t2}, 3, v{t3}
    v_lshrrev_b32 v{t5}, 5, v0
    v_lshlrev_b32 v{t5}, 9, v{t5}
    v_and_b32 v{vQw}, 16, v0
    v_lshrrev_b32 v{vQw}, 1, v{vQw}
    v_add_u32 v{t5}, v{t5}, v{vQw}
    v_lshl_add_u32 v{vKw}, v{t4}, 4, v{t5}
    s_lshl_b32 s{sT0}, s{sTH}, 11
    s_add_u32 s{sT0}, s{sT0}, s{sRing}
    v_add_u32 v{vKw}, s{sT0}, v{vKw}
    v_lshl_add_u32 v{vQw}, v{t0}, 4, v{t5}
    v_add_u32 v{vQw}, s{sScr}, v{vQw}
    v_mul_u32_u24 v{vVw}, 304, v{t1}
    v_lshl_add_u32 v{vVw}, v{t0}, 4, v{vVw}
    s_mul_i32 s{sT0}, s{sTH}, 2432
    s_add_u32 s{sT0}, s{sT0}, s{sRing}
    v_add_u32 v{vVw}, s{sT0}, v{vVw}""")
    a(f"""s_mul_i32 s{sT2}, s{sTH}, 2432
    s_mul_i32 s{sT3}, s{sTH}, 5120
    v_mul_u32_u24 v{vM0}, 304, v{t2}
    v_lshl_add_u32 v{vM0}, v{t3}, 1, v{vM0}
    s_add_u32 s{sT0}, s{sT2}, {4608+256}
    v_add_u32 v{vM0}, s{sT0}, v{vM0}
    s_lshl_b32 s{sT0}, s{sTH}, 3
    s_add_u32 s{sT0}, s{sT0}, 4096
    s_add_u32 s{sT1}, s{sT3}, {L_SCR+4096-1024}
    v_lshlrev_b32 v{t5}, 9, v{t1}
    v_add_u32 v{t5}, s{sT1}, v{t5}
    v_mov_b32 v{vDh}, s{sT0}
    v_cmp_eq_u32 vcc, 1, v{t1}
    v_mov_b32 v{vDs}, 64
    v_mov_b32 v{vDt}, 4
    v_cndmask_b32 v{t5}, v{t5}, v{vDh}, vcc
    v_lshl_add_u32 v{t5}, v{t4}, 4, v{t5}
    v_cmp_eq_u32 vcc, 0, v{t1}
    v_mov_b32 v{vDe}, 2
    v_mov_b32 v{t3}, 1216
    v_cndmask_b32 v{vM0}, v{t5}, v{vM0}, vcc
    v_cndmask_b32 v{vDs}, v{vDs}, 8, vcc
    v_cndmask_b32 v{vDt}, v{vDt}, v{t3}, vcc
    v_cndmask_b32 v{vDe}, v{vDe}, 16, vcc
    v_cmp_gt_u32 vcc, 2, v{t1}
    v_mov_b32 v{vDh}, {2*5120}
    v_mov_b32 v{t3}, {RING}
    v_cndmask_b32 v{vDh}, v{vDh}, v{t3}, vcc
    v_mov_b32 v{t5}, 8
    v_mov_b32 v{t3}, {BLK}
    v_cndmask_b32 v{t5}, v{t5}, v{t3}, vcc
    v_mul_u32_u24 v{t3}, s{sHH}, v{vDs}
    v_add_u32 v{MA(0,0)}, v{vM0}, v{t3}
    v_sub_u32 v{t3}, v{vDs}, v{t3}
    v_add3_u32 v{MA(0,2)}, v{vM0}, v{t3}, v{vDh}
    v_add_u32 v{MA(0,1)}, v{MA(0,0)}, v{vDe}
    v_add_u32 v{MA(0,3)}, v{MA(0,2)}, v{vDe}""")
    for i in range(4):
        a(f"""v_add_u32 v{MA(1,i)}, v{MA(0,i)}, v{vDt}
        v_add_u32 v{MA(2,i)}, v{MA(0,i)}, v{t5}
        v_add_u32 v{MA(3,i)}, v{MA(1,i)}, v{t5}""")
    a(f"""s_and_b32 s{sT0}, s{sTt}, 2
    s_lshl_b32 s{sT0}, s{sT0}, 2
    v_mov_b32 v{t3}, s{sT0}
    v_cndmask_b32 v{t3}, v{t3}, 0, vcc""")
    for tt in range(4):
        for i in range(4): a(f"v_xor_b32 v{MA(tt,i)}, v{t3}, v{MA(tt,i)}")
    a(f"""v_cmp_eq_u32 vcc, 2, v{t1}
    v_mov_b32 v{vMul}, 1.0
    v_mov_b32 v{t2}, {f32(CSCALE)}
    v_cndmask_b32 v{vMul}, v{vMul}, v{t2}, vcc""")
    a(f"""v_and_b32 v{t2}, 16, v0
    v_lshrrev_b32 v{t2}, 2, v{t2}
    v_add_u32 v{t2}, v{t2}, v{t4}
    v_lshlrev_b32 v{vSq}, 4, v{t2}
    s_add_u32 s{sT1}, s{sScr}, 4096
    v_add_u32 v{vSq}, s{sT1}, v{vSq}
    v_and_b32 v{t0}, 31, v0
    v_lshrrev_b32 v{t1}, 5, v0
    v_mul_u32_u24 v{t3}, 304, v{t1}
    v_lshl_add_u32 v{t3}, v{t0}, 4, v{t3}
    v_add_u32 v{t3}, s{sRing}, v{t3}
    v_cmp_gt_u32 vcc, 19, v{t0}
    v_mov_b32 v{vVa}, {LDS_BYTES}
    v_lshl_add_u32 v{vKa}, v0, 4, s{sRing}
    v_cndmask_b32 v{vVa}, v{vVa}, v{t3}, vcc
    v_lshl_add_u32 v{vTa}, v{t0}, 4, s{sRing}
    v_mov_b32 v{vIdx}, 0xdddddddd
    v_lshl_add_u32 v{vSqh}, v{t1}, 2, v{vSq}
    s_mov_b32 s{sWsrc}, 0
    s_mov_b32 s{sXm0}, 0
    v_mul_u32_u24 v{vOnes}, 304, v0
    v_add_u32 v{vOnes}, s{sBlk}, v{vOnes}
    s_and_b32 s{sT0}, s{sTt}, 2
    s_lshl_b32 s{sT0}, s{sT0}, 10
    s_add_u32 s{sT1}, s{sScr}, s{sT0}
    v_lshl_add_u32 v{vQr}, v0, 4, s{sT1}
    s_lshl_b32 s6, s{sT0}, 1
    s_sub_u32 s6, 2048, s6
    s_mul_i32 s{sT0}, s{sTH}, 27648
    s_add_u32 s{sT0}, s{sT0}, s{sRing}
    v_lshl_add_u32 v{vCp}, v0, 4, s{sT0}
    v_bfe_u32 v{t2}, v0, 4, 1
    v_xor_b32 v{t2}, s{sHH}, v{t2}
    v_and_b32 v{t3}, 15, v0
    v_mul_u32_u24 v{vSt}, {128*576}, v{t2}
    v_lshl_add_u32 v{vStt}, v{t3}, 2, v{vSt}
    v_lshl_add_u32 v{vSt}, v{t3}, 4, v{vSt}
    v_lshl_add_u32 v{vSt}, v{t1}, 8, v{vSt}
    s_and_b32 s{sT2}, s{sTt}, 1
    v_xor_b32 v{t2}, s{sT2}, v{t1}
    v_mul_u32_u24 v{t2}, {256*576}, v{t2}
    v_add_u32 v{vStt}, v{vStt}, v{t2}
    s_lshl_b32 s{sT1}, s{sE}, 1
    s_add_u32 s{sT1}, s{sT1}, s{sTH}
    s_lshl_b32 s{sT1}, s{sT1}, 9
    s_add_u32 s{sT1}, s{sT1}, s{sBH}
    s_mul_i32 s{sT1}, s{sT1}, 576
    s_and_b32 s{sT3}, s{sBH}, 7
    s_lshl_b32 s{sT0}, s{sT3}, 6
    s_sub_u32 s{sT1}, s{sT1}, s{sT0}
    s_add_u32 s4, s{sT1}, {WS_O}
    s_add_u32 s5, s4, {64*576}
    s_mul_i32 s{sT0}, s{sT2}, {256*576}
    s_sub_u32 s{sT1}, {256*576}, s{sT0}
    s_add_u32 s56, s4, s{sT0}
    s_add_u32 s57, s4, s{sT1}
    s_add_u32 s58, s5, s{sT0}
    s_add_u32 s59, s5, s{sT1}
    s_mul_i32 s{sT3}, s{sT3}, 448
    s_sub_u32 s{sT3}, 4096, s{sT3}
    s_add_u32 s4, s4, s{sT3}
    s_add_u32 s5, s5, s{sT3}
    s_cmp_ge_u32 s{sPr}, 16
    s_mov_b32 s60, {f32(-LOG2E)}
    s_cselect_b32 s60, {f32(LOG2E)}, s60
    s_mov_b32 s61, {f32(2.0**-40)}
    s_mov_b32 s64, {f32(2.0**40) if not OPT['force_fb'] else f32(2.0**-39)}
    s_mov_b32 s65, {f32(CSCALE)}""")
    p3_scal(a)
    p3_addr_w(a, vWm3, vWt, t0, t1, t2)
    coff = (48, 0, 96, 0)
    def wfrag(k2):
        r = []
        for ct in range(4):
            for hf in range(2):
                r.append(f"ds_read_b64_tr_b16 {vr(WF+16*k2+4*ct+2*hf,2)}, v{vWc[ct]} offset:{L_WR + (32*k2+4*hf)*256}")
        return r
    def xread(buf):
        r = []
        for k2 in range(2):
            for s in range(2):
                r.append(f"ds_read_b128 {vr(XF[buf]+8*k2+4*s,4)}, v{vXr[2*s+k2]}")
        return r
    xadv = [f"s_add_u32 s{sXm0}, s{sXm0}, 1", f"s_cmp_eq_u32 s{sXm0}, {RX}", f"s_cselect_b32 s{sXm0}, 0, s{sXm0}",
            f"s_cselect_b32 s{sT1}, s{sWk}, s{sWcnt}",
            ] + [f"v_add_u32 v{c}, s{sT1}, v{c}" for c in vXr]
    wadv = [f"s_add_u32 s{sWsrc}, s{sWsrc}, 1", f"s_cmp_eq_u32 s{sWsrc}, {RW}", f"s_cselect_b32 s{sWsrc}, 0, s{sWsrc}",
            f"s_cselect_b32 s{sT2}, s{sWm0}, s{sGk}",
            ] + [f"v_add_u32 v{c}, s{sT2}, v{c}" for c in vWc]
    if OPT.get('noadv'):
        xadv = [''] * 8; wadv = [''] * 8
    a(f"""s_mov_b32 s{sWk}, {(-(RX-1)*8192) & 0xffffffff}
    s_mov_b32 s{sWcnt}, 8192
    s_mov_b32 s{sWm0}, {(-(RW-1)*WSL) & 0xffffffff}
    s_mov_b32 s{sGk}, {WSL}""")
    if OPT.get("rstpos", "late") == "late": reset_flags()
    if OPT.get("pf9", "1") == "1":
        a(f"""s_lshr_b32 s{sT0}, s2, 5
        s_bfe_u32 s{sT1}, s2, {(2 << 16) | 3}
        s_cmp_eq_u32 s{sWv}, 0
        s_cbranch_scc1 {K}_pfx
        s_cmp_eq_u32 s{sWv}, 1
        s_cbranch_scc0 {K}_pfw
        s_lshl_b32 s{sT2}, s{sT1}, 1
        s_sub_u32 s{sT2}, s{sT2}, 1
        s_cselect_b32 s{sT2}, 8, s{sT2}
        s_lshl_b32 s{sT2}, s{sT2}, 7
        s_lshl_b32 s{sT3}, s{sE}, 3
        s_add_u32 s{sT3}, s{sT3}, s{sT0}
        s_mul_i32 s{sT3}, s{sT3}, {32*1152}
        s_add_u32 s{sT2}, s{sT2}, s{sT3}
        v_mul_u32_u24 v75, 1152, v0
        s_mov_b32 exec_hi, 0
        buffer_load_dword v76, v75, s[{sX}:{sX+3}], s{sT2} offen
        s_branch {K}_pfd
        {K}_pfw:
        s_sub_u32 s{sT2}, s{sT0}, 1
        s_cselect_b32 s{sT2}, 8, s{sT2}
        s_lshl_b32 s{sT2}, s{sT2}, 2
        s_add_u32 s{sT2}, s{sT2}, s{sT1}
        s_mul_i32 s{sT2}, s{sT2}, {16*3456}
        s_and_b32 s{sT3}, s{sPr}, 15
        s_mul_i32 s{sT3}, s{sT3}, 72
        s_add_u32 s{sT2}, s{sT2}, s{sT3}
        s_mul_i32 s{sT3}, s{sTH}, 68
        s_add_u32 s{sT2}, s{sT2}, s{sT3}
        v_mul_u32_u24 v75, 1152, v0
        s_mov_b32 exec_hi, 0xffff
        buffer_load_dword v76, v75, s[{sW}:{sW+3}], s{sT2} offen
        {K}_pfd:
        s_mov_b64 exec, -1
        {K}_pfx:""")
    a("s_barrier")
    stamp(a, 1, 30)
    if OPT.get("rstpos", "late") == "afterp": reset_flags()
    for m in xread(0) + xadv + wfrag(0) + wfrag(1): a(m)
    QM, QT = 32, 48
    KF, V0, V1, KT = [80, 84], [88, 92], [96, 100], [56, 60]
    vGl = 26
    TP = 108
    def epi(tt):
        tp = (64, 80)[tt % 2]
        r = []
        for s in range(2):
            b = ACC + 32 * tt + 16 * s
            k_, q_ = tp + 2 * s, tp + 4 + 2 * s
            r += f"""v_cvt_pk_bf16_f32 v{k_}, v{b}, v{b+1}
            v_cvt_pk_bf16_f32 v{k_+1}, v{b+2}, v{b+3}
            v_mul_f32 v{b+4}, s65, v{b+4}
            v_mul_f32 v{b+5}, s65, v{b+5}
            v_mul_f32 v{b+6}, s65, v{b+6}
            v_mul_f32 v{b+7}, s65, v{b+7}
            ds_write_b64 v{vKw}, {vr(k_,2)} offset:{(tt>>1)*BLK + (tt&1)*1024 + s*64}
            v_cvt_pk_bf16_f32 v{q_}, v{b+4}, v{b+5}
            v_cvt_pk_bf16_f32 v{q_+1}, v{b+6}, v{b+7}
            v_cvt_pk_bf16_f32 v{tp+8+2*s}, v{b+8}, v{b+9}
            v_cvt_pk_bf16_f32 v{tp+9+2*s}, v{b+10}, v{b+11}
            ds_write_b64 v{vQw}, {vr(q_,2)} offset:{tt*1024 + s*256}""".split("\n")
        b = ACC + 32 * tt
        r += f"""ds_write_b128 v{vVw}, {vr(tp+8,4)} offset:{4608 + (tt>>1)*BLK + (tt&1)*1216}
        v_mul_f32 v{b+12}, v{vMul}, v{b+12}
        v_mul_f32 v{b+13}, v{vMul}, v{b+13}
        v_mul_f32 v{b+14}, v{vMul}, v{b+14}
        v_mul_f32 v{b+15}, v{vMul}, v{b+15}
        v_cvt_pk_bf16_f32 v{tp+12}, v{b+12}, v{b+13}
        v_cvt_pk_bf16_f32 v{tp+13}, v{b+14}, v{b+15}
        ds_write_b16 v{MA(tt,0)}, v{tp+12}
        ds_write_b16_d16_hi v{MA(tt,1)}, v{tp+12}
        ds_write_b16 v{MA(tt,2)}, v{tp+13}
        ds_write_b16_d16_hi v{MA(tt,3)}, v{tp+13}""".split("\n")
        return r
    NM = 14
    def chunk(last):
        for tt in range(4):
            cur = XF[tt & 1]
            mf = []
            for k2 in range(2):
                for ct in range(4):
                    for s in range(2 if ct < 3 else 1):
                        d = ACC + 32 * tt + 16 * s + 4 * ct
                        w_, x_ = vr(WF + 16 * k2 + 4 * ct, 4), vr(cur + 8 * k2 + 4 * s, 4)
                        A_, B_ = (x_, w_) if ct == 2 else (w_, x_)
                        mf.append(f"v_mfma_f32_16x16x32_bf16 {vr(d,4)}, {A_}, {B_}, {vr(d,4)}")
            fill = {i: [] for i in range(-1, NM)}
            xr = xread((tt + 1) & 1)
            if tt == 0:
                fill[-1].append("s_waitcnt lgkmcnt(8)")
                for i in range(4): fill[i].append(xr[i])
                fill[6].append("s_waitcnt lgkmcnt(4)")
                for i in range(8): fill[(4, 5, 7, 8, 9, 10, 11, 12)[i]].append(xadv[i])
                if last:
                    for i in range(4): fill[i].append(f"v_mov_b32 v{92+i}, 0x3f803f80")
                    fill[13] += ["s_mov_b64 exec, 0xffff", f"ds_write_b128 v{vOnes}, v[92:95] offset:{4608+288}", "s_mov_b64 exec, -1"]
            elif last:
                if tt < 3:
                    for i in range(4): fill[i // 2].append(xr[i])
                    if tt == 1:
                        for i in range(8): fill[2 + i // 3].append(xadv[i])
                e = epi(tt - 1)
                st = (0, 5, 2, 1)[tt]
                per = -(-len(e) // (NM - st))
                for i, m in enumerate(e): fill[st + i // per].append(m)
            elif tt == 3:
                for i in range(4): fill[-1 + (i + 1) // 2].append(xr[i])
                w0, w1 = wfrag(0), wfrag(1)
                lastuse = (1, 3, 5, 6)
                for ct in range(4):
                    fill[lastuse[ct]] += [w0[2 * ct]]; fill[lastuse[ct] + 1] += [w0[2 * ct + 1]]
                    fill[7 + lastuse[ct]] += [w1[2 * ct]]; fill[min(NM - 1, 8 + lastuse[ct])] += [w1[2 * ct + 1]]
                for i in range(8): fill[(2, 3, 4, 5, 7, 8, 9, 10)[i]].append(xadv[i])
                fill[11].append(f"s_sub_u32 s{sIt}, s{sIt}, 1")
            else:
                for i in range(4): fill[i].append(xr[i])
                for i in range(8): fill[4 + i].append(xadv[i])
                if tt == 1:
                    for i in range(4): fill[10 + i].append(wadv[i])
                if tt == 2:
                    for i in range(4): fill[10 + i].append(wadv[4 + i])
            if tt % 2 == 0: a("s_barrier")
            for m in fill[-1]: a(m)
            for i in range(NM):
                if not OPT.get("nomf"): a(mf[i])
                for m in fill[i]: a(m)
            if last:
                if tt == 0: a("s_waitcnt lgkmcnt(1)")
                elif tt == 1: a("s_waitcnt lgkmcnt(9)")
                elif tt == 2: a("s_waitcnt lgkmcnt(0)\ns_barrier")
            elif tt == 3:
                a(f"""s_waitcnt lgkmcnt(15)
                s_cmp_eq_u32 s{sIt}, s{sCnt}
                s_cbranch_scc1 {K}_rst
                {K}_rst_ret:
                s_cmp_lg_u32 s{sIt}, 0""")
            else:
                a("s_waitcnt lgkmcnt(0)")
    a(f"""s_mov_b32 s{sIt}, 8
    s_waitcnt lgkmcnt(0)
    {K}_p1:""")
    chunk(False)
    a(f"s_cbranch_scc1 {K}_p1")
    a("s_waitcnt vmcnt(0)")
    chunk(True)
    stamp(a, 2, 30)
    a("s_nop 1")
    for m in epi(3): a(m)
    S = [128, 144, 160, 176]
    O = [192, 208, 224, 240]
    zo = [f"v_mov_b32 v{O[x]+i}, 0" for x in range(4) for i in range(11)]
    zj = [f"v_mov_b32 v{O[x]+i}, 0" for x in range(4) for i in range(11, 16)]
    zq = [f"v_mov_b32 v{QT+4*j+i}, 0" for j in range(2) for i in (1, 2)]
    zs = [f"v_mov_b32 v{S[3]+8+i}, 0" for i in range(8)] + [f"v_mov_b32 v{V1[1]+i}, 0" for i in range(4)]
    for m in zo[:22] + zj[:10]: a(m)
    a("s_waitcnt lgkmcnt(0)")
    for x in range(4):
        if x == 2: a(f"v_add_u32 v{vQr}, s6, v{vQr}")
        a(f"ds_read_b128 {vr(QM+4*x,4)}, v{vQr} offset:{1024*(x&1)}")
    a("s_barrier")
    stamp(a, 3, 30)
    NB = int(OPT["nb"])
    T2F = OPT.get("t2f", "0") == "1"
    def ldK(t, buf): return f"ds_read_b128 {vr(KF[buf],4)}, v{vKa} offset:{((t//4)%NB)*BLK + (t%4)*1024}"
    def ldV(t, half, buf): return f"ds_read_b128 {vr((V0,V1)[half][buf],4)}, v{vVa} offset:{((t//4)%NB)*BLK + 4608 + (t%4)*1216 + 608*half}"
    def ldT(b=0): return f"ds_read_b128 {vr(KT[b%2],4)}, v{vTa} offset:{(b%NB)*BLK + 4096}"
    def QKM(t, x, s, c="0"): return f"v_mfma_f32_32x32x16_bf16 {vr(s,16)}, {vr(KF[t%2],4)}, {vr(QM+4*x,4)}, {c}"
    def QKT(t, x, s): return f"v_mfma_f32_32x32x4_2b_bf16 {vr(s,32)}, {vr(KT[(t//4)%2]+(t&2),2)}, {vr(QT+2*x+2*(t&1),2)}, {vr(s,32) if not T2F else 0}"
    def PV(half, t, x, s): return f"v_smfmac_f32_32x32x32_bf16 {vr(O[x],16)}, {vr((V0,V1)[half][t%2],4)}, {vr(s+8*half,8)}, v{vIdx}"
    a(ldK(0, 0))
    a(f"ds_read2_b32 {vr(TP,2)}, v{vSqh} offset0:0 offset1:2")
    a(ldT()); a(ldV(0, 0, 0)); a(ldV(0, 1, 0))
    a(f"ds_read_b128 {vr(vGl,4)}, v{vSq} offset:512")
    HOOKS = [1, 3, 7, 11, 13, 15]
    assert NB % 2 == 0
    for m in zq + zs: a(m)
    a(f"""s_mov_b32 s{sIt}, 0
    s_mov_b32 s{sWk}, {NB*BLK}
    s_mov_b32 s{sWcnt}, {(NB*BLK - RING) & 0xffffffff}
    s_waitcnt lgkmcnt(4)""")
    if not T2F:
        a(QKM(0, 0, S[0]))
        a(f"""v_mov_b32 v{QT}, v{TP}
    v_mov_b32 v{QT+3}, v{TP}
    v_mov_b32 v{QT+4}, v{TP+1}
    v_mov_b32 v{QT+7}, v{TP+1}""")
        a(QKM(0, 1, S[1]))
        for m in zo[22:27]: a(m)
        a(QKM(0, 2, S[2]))
        for m in zo[27:32]: a(m)
        a("s_waitcnt lgkmcnt(3)")
        a(QKT(0, 0, S[0]))
        for m in zo[32:]: a(m)
        for m in zj[10:]: a(m)
        a("s_waitcnt lgkmcnt(0)")
    else:
        a(f"""v_mov_b32 v{QT}, v{TP}
        v_mov_b32 v{QT+3}, v{TP}
        v_mov_b32 v{QT+4}, v{TP+1}
        v_mov_b32 v{QT+7}, v{TP+1}
        s_waitcnt lgkmcnt(3)""")
        a(QKT(0, 0, S[0]))
        for m in zo[22:40]: a(m)
        a(QKM(0, 0, S[0], vr(S[0], 16)))
        for m in zo[40:]: a(m)
        a(QKM(0, 1, S[1], vr(S[1], 16)))
        a("s_nop 5")
        a("s_waitcnt lgkmcnt(0)")
    if OPT.get("cprio"): a(f"s_setprio {OPT['cprio']}")
    hookblks = []
    a(".p2align 6")
    a(f"{K}_att:")
    pos = (2, 5, 10, 14, 22, 26, 30)
    assert NB == 4
    NIT = 4
    SB = lambda u: S[u % 4]
    CC = [5, 6, 7, 8]
    R8 = [64, 68, 72, 76, 104, 108, 112, 116, 120]
    RL = list(range(32, 64, 4)) + list(range(80, 104, 4)) + [124] + list(range(128, 176, 4))
    creg = lambda s, ct: R8[s] if ct == 8 else RL[3 * s + ct - 5]
    tq = [2, 3, 4, 5]
    sDef = 7
    def window(u, unit, last=10**9):
        ins = {i: [] for i in range(33)}
        ins[pos[0]].append(PV(1, *unit(u - 1), SB(u - 1)))
        if u + 3 <= last: ins[pos[1]].append(QKM(*unit(u + 3), SB(u + 3)))
        ins[pos[2]].append(PV(0, *unit(u), SB(u)))
        if u + 3 <= last: ins[pos[3]].append(QKT(*unit(u + 2), SB(u + 2)))
        ins[pos[4]].append(PV(1, *unit(u), SB(u)))
        ins[pos[5]].append(PV(0, *unit(u + 1), SB(u + 1)))
        if u + 4 <= last: ins[pos[6]].append(QKM(*unit(u + 4), SB(u + 4)))
        return ins
    def emit(u, ins):
        for i in range(32):
            for m in ins[i]:
                if callable(m): m()
                else: a(m)
            a(f"v_exp_f32 v{SB(u)+i}, v{SB(u)+i}")
    def check(xs, fail):
        l0, l1 = O[xs[0]] + 10, O[xs[1]] + 10
        a(f"""v_add_f32 v2, v{l0}, v{l1}
        v_min_f32 v3, v{l0}, v{l1}
        v_cmp_ge_f32 s[{sEx}:{sEx+1}], s64, v2
        v_cmp_le_f32 vcc, s61, v3
        s_nop 1
        s_and_b32 vcc_lo, vcc_lo, s{sEx}
        s_cmp_eq_u32 vcc_lo, -1
        s_cbranch_scc0 {fail}""")
    def out_tiles(xs, gap):
        for x in xs: a(f"v_mov_b32 v{tq[x]}, v{O[x]+10}")
        gap()
        for x in xs: a(f"v_permlane32_swap_b32 v{O[x]+10}, v{tq[x]}")
        for x in xs: a(f"v_fma_f32 v{tq[x]}, v{O[x]+10}, v{vGl+x}, v{O[x]+10}")
        for x in xs: a(f"v_rcp_f32 v{tq[x]}, v{tq[x]}")
        gap()
        for x in xs:
            o = O[x]
            sel = "op_sel_hi:[1,0]" if x % 2 == 0 else "op_sel:[0,1]"
            for i in range(0, 10, 2): a(f"v_pk_mul_f32 {vr(o+i,2)}, {vr(o+i,2)}, {vr(tq[x & 2],2)} {sel}")
            for i in range(4): a(f"v_cvt_pk_bf16_f32 v{o+12+i}, v{o+2*i}, v{o+2*i+1}")
            a(f"""v_cvt_pk_bf16_f32 v{o+11}, v{o+8}, v{o+9}
            buffer_store_dwordx4 {vr(o+12,4)}, v{vSt}, s[{sWS}:{sWS+3}], s{56+x} offen sc1""")
        gap()
        a(f"""v_permlane32_swap_b32 v{O[xs[0]]+11}, v{O[xs[1]]+11}
        buffer_store_dword v{O[xs[0]]+11}, v{vStt}, s[{sWS}:{sWS+3}], s{4+(xs[0]>>1)} offen sc1""")
    std = lambda u: divmod(u, 4)
    LB = int(OPT["lb"]); U0 = 64 - 16 * LB; T0 = U0 // 4; NT = 4 * LB
    for u in range(0, 64, 2):
        t, x = divmod(u, 4)
        blk, ub = divmod(u, 16)
        ins = window(u, std)
        if x == 0:
            ins[pos[0]].append(ldV(t + 1, 1, (t + 1) % 2))
            ins[pos[1]].append(ldK(t + 1, (t + 1) % 2))
            ins[pos[2]].append(ldV(t + 1, 0, (t + 1) % 2))
            if ub == 12: ins[pos[3]].append(ldT(blk + 1))
            ins[pos[5]].append("s_waitcnt lgkmcnt(0)")
        if ub == 10:
            if blk == 3:
                ins[pos[0]].append(f"s_cmp_eq_u32 s{sIt}, 1")
                ins[pos[1]].append(f"s_cselect_b32 s{sT0}, s{sWcnt}, s{sWk}")
                ins[pos[2]].append(f"v_add_u32 v{vKa}, s{sT0}, v{vKa}")
                ins[pos[3]].append(f"v_add_u32 v{vTa}, s{sT0}, v{vTa}")
                ins[pos[4]].append(f"v_add_u32 v{vVa}, s{sT0}, v{vVa}")
                ins[pos[5]].append(f"s_add_u32 s{sIt}, s{sIt}, 1")
                ins[pos[6]].append("s_barrier")
            elif blk == 1:
                ins[pos[6]] += [f"s_bitcmp1_b32 9, s{sIt}", f"s_cbranch_scc1 {K}_hook1", f"{K}_hook_ret1:"]
                hookblks.append(blk)
        if u == U0 - 4: ins[pos[6]].append(f"s_cmp_eq_u32 s{sIt}, 3")
        if u == U0 - 2: ins[0].append(f"s_cbranch_scc1 {K}_last")
        emit(u, ins)
    if OPT.get("light"):
        a(f"""s_memtime s[82:83]
        s_memrealtime s[80:81]
        s_add_u32 m0, s{sIt}, 15
        s_waitcnt lgkmcnt(0)
        v_writelane_b32 v30, s80, m0
        v_writelane_b32 v31, s82, m0""")
    a(f"s_branch {K}_att")
    a("; ----- last key block: query tiles 0,1 first (stored early), then 2,3 -----")
    a(f"{K}_last:")
    def lastu(u):
        if u < U0: return divmod(u, 4)
        v = u - U0
        return T0 + ((v >> 1) % NT), 2 * (v // (2 * NT)) + (v & 1)
    w8 = Asm(); p3_wo_loads(w8, [8], creg, vWm3, vWt)
    w8 = [x_.strip() for x_ in w8.l]
    def early():
        for x in range(4): a(f"v_lshlrev_b32 v{vGl+x}, 16, v{vGl+x}")
        for x in range(4): a(f"v_mul_f32 v{vGl+x}, s60, v{vGl+x}")
        for x in range(4): a(f"v_exp_f32 v{vGl+x}, v{vGl+x}")
        a(f"s_mov_b32 s{sDef}, 0")
        check((0, 1), f"{K}_defer")
        a(f"s_mov_b32 s{sDef}, -1")
        out_tiles((0, 1), lambda: a("s_nop 0"))
        a(f"{K}_defer:")
    for u in range(U0 - 2, 64, 2):
        ins = window(u, lastu, 63)
        if u == U0 - 2:
            ins[pos[1]].append(ldK(T0 + 1, 1))
            ins[pos[5]].append("s_waitcnt lgkmcnt(0)")
        else:
            q = (u - U0) >> 1
            tl = lambda q_: T0 + (q_ % NT)
            if q + 1 < 2 * NT:
                ins[pos[0]].append(ldV(tl(q + 1), 1, (q + 1) % 2))
                ins[pos[2]].append(ldV(tl(q + 1), 0, (q + 1) % 2))
                ins[pos[5]].append("s_waitcnt lgkmcnt(0)")
            if q + 2 < 2 * NT: ins[pos[1]].append(ldK(tl(q + 2), q % 2))
            if LB == 2 and q == 0: ins[pos[3]].append(ldT(3))
        UE = U0 + 2 * NT
        if UE - 10 <= u <= UE - 2:
            for p_ in (pos[3], pos[4]):
                if w8 and w8[0].startswith("s_add"): ins[p_].append(w8.pop(0))
                if w8: ins[p_].append(w8.pop(0))
        if u == UE: ins[pos[3]].append(early)
        if u == 60: ins[pos[6]].append("s_barrier")
        emit(u, ins)
    assert not w8
    a("s_nop 1")
    a(PV(1, 15, 3, S[3]))
    stamp(a, 8, 30)
    if OPT.get("light"): stamp(a, 19, 30)
    cp = [f"ds_read_b128 {vr(creg(s_,ct),4)}, v{vCp} offset:{1024*(3*s_+i)}" for s_ in range(9) for i, ct in enumerate(CL)]
    a(f"""s_nop 10
    s_and_b32 s64, s64, s{sDef}""")
    check((2, 3), f"{K}_fbchk")
    a(f"{K}_fbdone:")
    def popn():
        for _ in range(int(OPT.get("cpn", 1))):
            a(cp.pop(0) if cp else "s_nop 0")
            if not cp: break
    out_tiles((2, 3), popn)
    for m in cp: a(m)
    stamp(a, 9, 30)
    a(f"""v_mov_b32 v6, {L_SYNC + 20}
    v_mov_b32 v7, 1
    s_setprio {OPT.get("p3prio", 2)}
    s_mov_b64 exec, 1
    s_waitcnt lgkmcnt(0)
    ds_add_u32 v6, v7
    s_mov_b64 exec, -1""")
    vOm, vOt, vRd = [2, 8], 3, 4
    p3_addr_o(a, vOm, vOt, vRd, [9, 10], 5, 11, 12, 13)
    for i in range(32): a(f"v_mov_b32 v{224+i}, 0")
    stamp(a, 10, 30)
    if OPT.get("drain"):
        a("s_waitcnt vmcnt(0)")
        stamp(a, 12, 30)
    p3_comp(a, CC, creg, 224, 176, vOm, vOt, vRd, 5, [9, 10])
    stamp(a, 11, 30)
    a(f"{K}_final:")
    final_reduce(a, K, 30)
    a(f"{K}_end:")
    a("s_endpgm")
    a(f"""{K}_rst:
    s_lshl_b32 s{sT0}, s{sPr}, 2
    v_mov_b32 v28, s{sT0}
    v_mov_b32 v29, 1
    s_mov_b64 exec, 1
    s_waitcnt vmcnt(0)
    buffer_atomic_add v29, v28, s[{sD}:{sD+3}], 0 offen
    s_mov_b64 exec, -1
    s_branch {K}_rst_ret""")
    for blk in hookblks:
        a(f"{K}_hook{blk}:")
        if OPT["stamp"]:
            for hb, i_ in ((1, 4), (3, 6)):
                if hb % NB == blk:
                    a(f"s_cmp_eq_u32 s{sIt}, {hb // NB}\ns_cbranch_scc0 {K}_hk{hb}")
                    stamp(a, i_, 30); a("s_barrier"); stamp(a, i_ + 1, 30); a(f"s_branch {K}_hook_ret{blk}")
                    a(f"{K}_hk{hb}:")
        a(f"""s_barrier
        s_branch {K}_hook_ret{blk}""")
    FQ = S[3]
    a(f"""{K}_fbchk:
    s_mov_b32 s64, {f32(2.0**40) if not OPT['force_fb'] else f32(2.0**-39)}
    s_cmp_lg_u32 s{sDef}, 0
    s_cbranch_scc1 {K}_fbc2""")
    for x in range(4):
        if x == 2:
            out_tiles((0, 1), lambda: a("s_nop 0"))
            a(f"{K}_fbc2:")
        a(f"""v_cmp_le_f32 vcc, s61, v{O[x]+10}
        v_cmp_ge_f32 s[{sEx}:{sEx+1}], s64, v{O[x]+10}
        s_nop 1
        s_and_b32 vcc_lo, vcc_lo, s{sEx}
        s_cmp_eq_u32 vcc_lo, -1
        s_cbranch_scc0 {K}_fb{x}
        {K}_fbret{x}:""")
    a(f"s_branch {K}_fbdone")
    for x in range(4):
        a(f"{K}_fb{x}:")
        for i in range(4): a(f"v_mov_b32 v{FQ+i}, v{QM+4*x+i}")
        for i in range(4): a(f"v_mov_b32 v{FQ+4+i}, 0")
        a(f"""s_mov_b32 {'exec_hi' if x % 2 == 0 else 'exec_lo'}, 0
        v_mov_b32 v{FQ+4}, v{QT+4*(x>>1)}
        v_mov_b32 v{FQ+7}, v{QT+4*(x>>1)}
        s_mov_b64 exec, -1""")
        a(f"s_call_b64 s[{sRet}:{sRet+1}], {K}_slow")
        for i in range(16): a(f"v_mov_b32 v{O[x]+i}, v{S[2]+i}")
        a(f"s_branch {K}_fbret{x}")
    a(f"{K}_slow:")
    vb, vc, vm = 11, 12, 13
    sA, sB = sWsrc, sWm0
    t0 = 9
    a(f"""v_lshlrev_b32 v{t0}, 4, v0
    v_and_b32 v{vm}, 31, v0
    v_lshlrev_b32 v{vb}, 4, v{vm}
    v_lshrrev_b32 v{vc}, 5, v0
    v_mul_u32_u24 v{vc}, 304, v{vc}
    v_lshl_add_u32 v{vc}, v{vm}, 4, v{vc}
    v_cmp_lt_u32 vcc, 18, v{vm}
    v_mov_b32 v{vm}, 0x40000000
    s_nop 1
    v_cndmask_b32 v{vc}, v{vc}, v{vm}, vcc""")
    def slow_qk(t, c):
        a(f"""v_mfma_f32_32x32x16_bf16 {vr(S[0],16)}, {vr(KF[0],4)}, {vr(FQ,4)}, {c}
        v_mfma_f32_32x32x8_bf16 {vr(S[0],16)}, {vr(KT[0]+(t&2),2)}, {vr(FQ+4+2*(t&1),2)}, {vr(S[0],16)}
        s_nop 15""")
    def slow_next(lbl):
        a(f"""s_add_u32 s{sA}, s{sA}, {BLK}
        s_sub_u32 s{sIt}, s{sIt}, 1
        s_cmp_lg_u32 s{sIt}, 0
        s_cbranch_scc1 {lbl}""")
    a(f"""v_mov_b32 v{vm}, 0xff800000
    s_mov_b32 s{sA}, s{sKVg}
    s_mov_b32 s{sIt}, 16
    {K}_sl1:
    s_add_u32 s{sB}, s{sA}, 4096
    buffer_load_dwordx4 {vr(KT[0],4)}, v{vb}, s[{sWS}:{sWS+3}], s{sB} offen sc1""")
    for t in range(4):
        a(f"""buffer_load_dwordx4 {vr(KF[0],4)}, v{t0}, s[{sWS}:{sWS+3}], s{sA} offen offset:{1024*t} sc1
        s_waitcnt vmcnt(0)""")
        slow_qk(t, "0")
        for i in range(8): a(f"v_max3_f32 v{vm}, v{S[0]+2*i}, v{S[0]+2*i+1}, v{vm}")
    slow_next(f"{K}_sl1")
    a(f"""v_mov_b32 v{S[0]}, v{vm}
    s_nop 1
    v_permlane32_swap_b32 v{vm}, v{S[0]}
    s_nop 1
    v_max_f32 v{vm}, v{vm}, v{S[0]}""")
    for i in range(16):
        a(f"v_sub_f32 v{S[1]+i}, 0, v{vm}")
        a(f"v_mov_b32 v{S[2]+i}, 0")
    a(f"""s_mov_b32 s{sA}, s{sKVg}
    s_mov_b32 s{sIt}, 16
    {K}_sl2:
    s_add_u32 s{sB}, s{sA}, 4096
    buffer_load_dwordx4 {vr(KT[0],4)}, v{vb}, s[{sWS}:{sWS+3}], s{sB} offen sc1""")
    for t in range(4):
        a(f"""buffer_load_dwordx4 {vr(KF[0],4)}, v{t0}, s[{sWS}:{sWS+3}], s{sA} offen offset:{1024*t} sc1
        s_add_u32 s{sB}, s{sA}, {4608+1216*t}
        buffer_load_dwordx4 {vr(V0[0],4)}, v{vc}, s[{sWS}:{sWS+3}], s{sB} offen sc1
        buffer_load_dwordx4 {vr(V1[0],4)}, v{vc}, s[{sWS}:{sWS+3}], s{sB} offen offset:608 sc1
        s_waitcnt vmcnt(0)""")
        slow_qk(t, vr(S[1], 16))
        for i in range(16): a(f"v_exp_f32 v{S[0]+i}, v{S[0]+i}")
        a(f"""s_nop 3
        v_smfmac_f32_32x32x32_bf16 {vr(S[2],16)}, {vr(V0[0],4)}, {vr(S[0],8)}, v{vIdx}
        v_smfmac_f32_32x32x32_bf16 {vr(S[2],16)}, {vr(V1[0],4)}, {vr(S[0]+8,8)}, v{vIdx}
        s_nop 7""")
    slow_next(f"{K}_sl2")
    a(f"""s_nop 15
    s_setpc_b64 s[{sRet}:{sRet+1}]""")

def main(out):
    ka = f"{NAME}_kernel"
    a = Asm(); kernel(a)
    t = f"""; gated mix of two MHA blocks (both on A_x): one fused kernel, written with the generator gen/gen_final.py
; @launch grid=(256,1,1) block=(512,1,1) lds={LDS_BYTES}
;
; Workgroup = (pair of adjacent heads of one branch, 256 tokens); waves 0-3 compute, waves 4-7 load / hand off.
;     P = exp2(S), O^T/l accumulated by a sparse MFMA that reads the high halves of the f32 P registers;
.amdgcn_target "amdgcn-amd-amdhsa--gfx950"
.text
.globl {ka}
.p2align 8
.type {ka},@function
{ka}:
{a.text()}.section .rodata,"a"
.p2align 6
.amdhsa_kernel {ka}
  .amdhsa_next_free_vgpr 256
  .amdhsa_next_free_sgpr 102
  .amdhsa_accum_offset 256
  .amdhsa_group_segment_fixed_size 0
  .amdhsa_kernarg_size 80
  .amdhsa_user_sgpr_count 2
  .amdhsa_user_sgpr_kernarg_segment_ptr 1
  .amdhsa_system_sgpr_workgroup_id_x 1
.end_amdhsa_kernel
"""
    open(out, "w").write(t)

if __name__ == "__main__":
    for kv in sys.argv[2:]:
        k, v = kv.split("=")
        OPT[k] = {"True": True, "False": False}.get(v, v)
    main(sys.argv[1])
```
